```python
import torch

def _softmax(x, axis=-1):
    return torch.softmax(x, dim=axis)
def _gelu(x):
    return torch.nn.functional.gelu(x, approximate="tanh")
def _silu(x):
    return torch.nn.functional.silu(x)
def _sigmoid(x):
    return torch.sigmoid(x)
def _layernorm(x, axis=-1, eps=1e-5):
    m = x.mean(dim=axis, keepdim=True)
    v = x.var(dim=axis, keepdim=True, unbiased=False)
    return (x - m) / torch.sqrt(v + eps)
def _scatter_add(tgt, idx, src, axis=0):
    return tgt.clone().index_add_(axis, idx, src)
def _segment_sum(src, seg, n):
    out = torch.zeros((n,) + src.shape[1:], dtype=src.dtype)
    return out.index_add_(0, seg, src)
def _pad(x, pw):
    flat = tuple(v for pair in reversed(pw) for v in pair)
    return torch.nn.functional.pad(x, flat)

kernel_name = 'gated_mix__compressed_kv_cla__moe_arch_mod__prompt'

def setup_inputs():

    _w = (lambda a: (lambda t: t.to(torch.bfloat16) if t.is_floating_point() else t)(torch.as_tensor(a)))
    def _A_setup():
        B, H, Sq, Sk, D, M = 1, 16, 2048, 2048, 256, 448
        Dc = 4 * D
        return {
            "x": _w((lambda *s: torch.randn(*s, dtype=torch.bfloat16) * 0.05)(B, Sq, M)),
            "c_kv": _w((lambda *s: torch.randn(*s, dtype=torch.bfloat16) * 0.8)(B, Sk, Dc)),
            "w_q": _w((lambda *s: torch.randn(*s, dtype=torch.bfloat16) * 6.4)(M, H, D) * (M ** -0.5)),
            "w_uk": _w((lambda *s: torch.randn(*s, dtype=torch.bfloat16) * 6.4)(Dc, H, D) * (Dc ** -0.5)),
            "w_uv": _w((lambda *s: torch.randn(*s, dtype=torch.bfloat16) * 0.8)(Dc, H, D) * (Dc ** -0.5)),
            "w_o": _w((lambda *s: torch.randn(*s, dtype=torch.bfloat16) * 0.8)(H, D, M) * ((H * D) ** -0.5)),
        }
    _A_in = _A_setup()

    def _B_setup():
        B, S, D, F, C = 1, 2048, 448, 1792, 2
        return {
            "x": _w((lambda *s: torch.randn(*s, dtype=torch.bfloat16) * 0.05)(B, S, D)),
            "w_r": _w((lambda *s: torch.randn(*s, dtype=torch.bfloat16) * 3.2)(D)),
            "w_gate": _w((lambda *s: torch.randn(*s, dtype=torch.bfloat16) * 0.4)(D, F)),
            "w_up": _w((lambda *s: torch.randn(*s, dtype=torch.bfloat16) * 0.4)(D, F)),
            "w_down": _w((lambda *s: torch.randn(*s, dtype=torch.bfloat16) * 0.4)(F, D)),
        }
    _B_in = _B_setup()

    return {
        "A_x": _A_in["x"],
        "A_c_kv": _A_in["c_kv"],
        "A_w_q": _A_in["w_q"],
        "A_w_uk": _A_in["w_uk"],
        "A_w_uv": _A_in["w_uv"],
        "A_w_o": _A_in["w_o"],
        "B_x": _B_in["x"],
        "B_w_r": _B_in["w_r"],
        "B_w_gate": _B_in["w_gate"],
        "B_w_up": _B_in["w_up"],
        "B_w_down": _B_in["w_down"],
        "gate_w": _w((lambda *s: torch.randn(*s, dtype=torch.bfloat16) * 0.05)(448) * 16.0),
    }

def reference(A_x, A_c_kv, A_w_q, A_w_uk, A_w_uv, A_w_o, B_x, B_w_r, B_w_gate, B_w_up, B_w_down, gate_w):
    def _A_ref(x, c_kv, w_q, w_uk, w_uv, w_o):
        B, Sq, M = x.shape[0], x.shape[1], x.shape[2]
        Sk = c_kv.shape[1]
        H, D = w_q.shape[1], w_q.shape[2]
        q = torch.einsum("bqm,mhd->bhqd", x, w_q)
        k = torch.einsum("bkc,chd->bhkd", c_kv, w_uk)
        v = torch.einsum("bkc,chd->bhkd", c_kv, w_uv)
        scores = torch.einsum("bhqd,bhkd->bhqk", q, k) * (D ** -0.5)
        off = Sk - Sq
        qi = torch.arange(Sq)[:, None]
        kj = torch.arange(Sk)[None, :]
        cmask = kj <= (qi + off)
        scores = torch.where(cmask[None, None], scores, -1e9)
        p = _softmax(scores, axis=-1)
        ctx = torch.einsum("bhqk,bhkd->bhqd", p, v)
        return torch.einsum("bhqd,hdm->bqm", ctx, w_o)

    def _B_ref(x, w_r, w_gate, w_up, w_down):
        B, S, D = x.shape
        C = 2
        r = x @ w_r
        idx = torch.argsort(-r, axis=-1)[:, :C]
        idx_e = (lambda x, n, axis: torch.repeat_interleave(x, n, dim=axis))(idx.reshape(B, C, 1), D, axis=2)
        x_sel = (lambda x, i, axis: torch.take_along_dim(x, i, dim=axis))(x, idx_e, axis=1)
        g = _silu(x_sel @ w_gate)
        u = x_sel @ w_up
        y = (g * u) @ w_down
        r_sel = _sigmoid((lambda x, i, axis: torch.take_along_dim(x, i, dim=axis))(r, idx, axis=1))
        y = y * r_sel.reshape(B, C, 1)
        b_off = (torch.arange(B) * S).reshape(B, 1)
        flat_idx = (idx + b_off).reshape(B * C)
        zero = (x * 0.0).reshape(B * S, D)
        upd = _scatter_add(zero, flat_idx, y.reshape(B * C, D), axis=0)
        return x + upd.reshape(B, S, D)

    x = A_x
    g = _sigmoid((x * gate_w).sum(-1, keepdims=True))
    a = _A_ref(x, A_c_kv, A_w_q, A_w_uk, A_w_uv, A_w_o)
    b = _B_ref(x, B_w_r, B_w_gate, B_w_up, B_w_down)
    return g * a + (1 - g) * b
```

```python
import re

TRANS = ("v_exp_f32", "v_log_f32", "v_rcp_f32", "v_rsq_f32", "v_sqrt_f32", "v_sin_f32", "v_cos_f32")
_REG = re.compile(r"^(-?)(?:abs\()?([vas])(?:(\d+)|\[(\d+):(\d+)\])\)?$")


def regs_of(tok):
    tok = tok.strip()
    if tok in ("vcc", "exec", "m0", "scc"):
        return [tok]
    if tok in ("vcc_lo", "vcc_hi"):
        return ["vcc"]
    if tok in ("exec_lo", "exec_hi"):
        return ["exec"]
    m = _REG.match(tok.replace("|", ""))
    if not m:
        return []
    k = m.group(2)
    if m.group(3) is not None:
        return [k + m.group(3)]
    return [k + str(i) for i in range(int(m.group(4)), int(m.group(5)) + 1)]


def R(kind, lo, n=1):
    return f"{kind}{lo}" if n == 1 else f"{kind}[{lo}:{lo + n - 1}]"


BARX = True
VM2 = True


class Inst:
    __slots__ = ("text", "op", "kind", "reads", "writes", "tag", "srcc", "srcab", "extra")

    def __init__(self, text, tag=None, **extra):
        self.text = text.strip()
        self.tag = tag
        self.extra = extra
        self.srcc = []
        self.srcab = []
        self.parse()

    def parse(self):
        t = self.text.split(";")[0].strip()
        if t.endswith(":") or t.startswith("."):
            self.op, self.kind, self.reads, self.writes = t, "label", [], []
            return
        parts = t.split(None, 1)
        op = parts[0]
        self.op = op
        ops = []
        mods = ""
        if len(parts) > 1:
            depth = 0
            cur = ""
            for ch in parts[1]:
                if ch in "[(":
                    depth += 1
                if ch in "])":
                    depth -= 1
                if ch == "," and depth == 0:
                    ops.append(cur.strip())
                    cur = ""
                else:
                    cur += ch
            last = cur.strip().split(None, 1)
            if last:
                ops.append(last[0])
                mods = last[1] if len(last) > 1 else ""
        rd, wr = [], []
        allr = [regs_of(o) for o in ops]
        flat = lambda ls: [r for l in ls for r in l]
        if op.startswith("v_mfma"):
            kind = "mfma"
            wr = allr[0]
            self.srcab = allr[1] + allr[2]
            self.srcc = allr[3]
            rd = flat(allr[1:])
        elif op.startswith("ds_read") or op.startswith("ds_bpermute") or op.startswith("ds_swizzle") or op.startswith("ds_permute"):
            kind = "dsr"
            wr = allr[0]
            rd = flat(allr[1:])
        elif op.startswith("ds_"):
            kind = "dsw"
            rd = flat(allr)
        elif op.startswith("buffer_load") or op.startswith("global_load"):
            if " lds" in " " + mods or "_lds_" in op:
                kind = "dma"
                rd = flat(allr) + ["m0"]
            else:
                kind = "vld"
                wr = allr[0]
                rd = flat(allr[1:])
        elif op.startswith("buffer_store") or op.startswith("global_store"):
            kind = "vst"
            rd = flat(allr)
        elif op.startswith("buffer_atomic") or op.startswith("global_atomic"):
            if "sc0" in mods:
                kind = "vld"
                wr = allr[0]
                rd = flat(allr)
            else:
                kind = "vst"
                rd = flat(allr)
        elif op in ("buffer_inv", "buffer_wbl2"):
            kind = "vst"
        elif op.startswith("s_load") or op in ("s_memtime", "s_memrealtime"):
            kind = "smem"
            wr = allr[0]
            rd = flat(allr[1:])
        elif op.startswith("v_"):
            base = op.replace("_e32", "").replace("_e64", "").replace("_dpp", "").replace("_sdwa", "")
            kind = "trans" if base in TRANS else "valu"
            wr = list(allr[0])
            rd = flat(allr[1:])
            if base.startswith("v_permlane") and "swap" in base:
                wr = allr[0] + allr[1]
                rd = allr[0] + allr[1]
            if base in ("v_fmac_f32", "v_dot2c_f32_bf16", "v_writelane_b32", "v_pk_fmac_f16") or "row_" in mods or "quad_perm" in mods:
                rd = rd + allr[0]
            if base in ("v_add_co_u32", "v_sub_co_u32", "v_addc_co_u32"):
                wr = allr[0] + allr[1]
                rd = flat(allr[2:])
            if base.startswith("v_cmpx"):
                wr = wr + ["exec"]
            self.extra["dpp"] = ("row_" in mods or "quad_perm" in mods)
        elif op in ("s_waitcnt", "s_nop", "s_barrier", "s_sleep", "s_setprio", "s_endpgm"):
            kind = "sctl"
        elif op.startswith("s_cbranch") or op in ("s_branch", "s_setpc_b64", "s_swappc_b64", "s_call_b64"):
            kind = "branch"
            rd = flat(allr)
            if "vcc" in op:
                rd = rd + ["vcc"]
            if op == "s_swappc_b64":
                wr = allr[0]
        elif op.startswith("s_cmp") or op.startswith("s_bitcmp"):
            kind = "salu"
            rd = flat(allr)
        elif op.startswith("s_"):
            kind = "salu"
            wr = allr[0] if allr else []
            rd = flat(allr[1:])
            if "saveexec" in op:
                wr = wr + ["exec"]
                rd = rd + ["exec"]
            if op in ("s_addk_i32", "s_mulk_i32"):
                rd = rd + wr
        elif op in ("NEED", "WAITV"):
            kind = "pseudo"
            rd = []
            self.extra["regs"] = flat(allr)
        else:
            raise ValueError("cannot parse: " + self.text)
        self.kind, self.reads, self.writes = kind, rd, wr

    def slots(self):
        if self.kind in ("label", "mfma"):
            return (0, 0)
        if self.kind == "trans" or (VM2 and self.kind in ("dma", "vld", "vst")):
            return (2, 0)
        if self.kind in ("valu", "dsr", "dsw", "dma", "vld", "vst"):
            return (1, 0)
        return (0, 1)

    def __repr__(self):
        return self.text


def I(text, **kw):
    return Inst(text, **kw)


def NEED(*regtexts):
    return Inst("NEED " + ", ".join(regtexts))


def WAITV(tag, lgkm0=False):
    i = Inst("WAITV")
    i.tag = tag
    i.extra["lgkm0"] = lgkm0
    return i


_NO_SCC = ("s_mov", "s_mul_i32", "s_cselect", "s_getpc", "s_movk", "s_getreg", "s_mul_hi", "s_cmov", "s_ff1", "s_bitset")
def writes_scc(i):
    return i.kind == "salu" and not i.op.startswith(_NO_SCC)
def reads_scc(i):
    return i.op.startswith(("s_cselect", "s_cbranch_scc", "s_addc", "s_subb", "s_cmov"))


def L(text):
    out = []
    last = None
    for line in text.split("\n"):
        line = line.strip()
        if line and not line.startswith(";"):
            i = Inst(line)
            if reads_scc(i) and last is not None:
                i.extra["scc"] = last
            if writes_scc(i):
                last = i
            out.append(i)
    return out


def link(ins):
    last = {}
    for i in ins:
        if not isinstance(i, Inst):
            continue
        for r in i.reads:
            if r in last and r not in i.extra.get("pin", ()):
                i.extra.setdefault("raw", {})[r] = last[r]
        for r in i.writes:
            last[r] = i
    return ins


def check_raw(insts, name):
    last = {}
    for i in insts:
        for r, src in i.extra.get("raw", {}).items():
            assert last.get(r) is src, f"{name}: {i.text} reads {r} from {last.get(r)} instead of {src.text}"
        for r in i.writes:
            last[r] = i


def check_scc(insts, name):
    last = None
    for i in insts:
        if reads_scc(i):
            src = i.extra.get("scc")
            if src is not None:
                assert last is src, f"SCC clobbered in {name}: {i.text} expects {src.text}, got {last.text if last else None}"
            else:
                assert last is not None and last.op.startswith(("s_cmp", "s_bitcmp")), f"SCC source unclear in {name}: {i.text} after {last}"
        if writes_scc(i):
            last = i


class Gaps:
    def __init__(self, mfmas):
        self.m = list(mfmas)
        self.n = len(self.m)
        self.sc = [[] for _ in range(self.n)]
        self.ve = [[] for _ in range(self.n)]
        self.pre = []

    def used(self, k):
        if BARX and any(i.op == "s_barrier" for i in self.sc[k]):
            return 2
        v = sum(max(i.slots()) for i in self.ve[k])
        s = len([i for i in self.sc[k] if i.kind != 'label'])
        return v + max(0, s - 1)

    def vm_near(self, k, d=3):
        return any(i.kind in ("dma", "vld", "vst") and "x4" in i.op for j in range(max(0, k - d), min(self.n, k + d + 1)) for i in self.ve[j])

    def vm_slot(self, k, inst, reach=10):
        if inst.kind in ("dma", "vld", "vst") and "x4" in inst.op:
            for d in (3, 2, 1):
                for j in range(k, min(self.n, k + reach)):
                    if self.used(j) + max(inst.slots()) <= 2 and not self.vm_near(j, d):
                        return j
        return k

    def put_s(self, k, inst):
        self.sc[k].append(inst)

    def put(self, k, inst):
        self.ve[k].append(inst)

    def fit(self, k, inst, lim=None):
        need = max(inst.slots())
        j = k
        while j < self.n and self.used(j) + need > 2:
            j += 1
        if j >= self.n or (lim is not None and j > lim):
            j = min(self.n - 1, k if lim is None else lim)
        self.ve[j].append(inst)
        return j

    def fit_s(self, k, inst, lim=None):
        j = k
        while j < self.n and len(self.sc[j]) >= 1:
            j += 1
        if j >= self.n or (lim is not None and j > lim):
            j = min(self.n - 1, k if lim is None else lim)
        self.sc[j].append(inst)
        return j

    def spread(self, insts, lo, hi):
        n = len(insts)
        last = lo
        for x, ins in enumerate(insts):
            k = max(last, lo + (x * (hi - lo)) // max(n, 1))
            last = self.fit(k, ins)

    def flat(self):
        last = self.n - 1
        if self.ve[last] and self.sc[last] and self.sc[last][-1].kind == "branch":
            self.ve[last].append(self.sc[last].pop())
        assert not any(i.kind == "branch" for i in self.sc[last][:-1])
        out = list(self.pre)
        for k in range(self.n):
            out.append(self.m[k])
            out += self.sc[k]
            out += self.ve[k]
        return out


def est_cycles(insts):
    t = 0
    vfree = 0
    mfree = 0
    nm = 0
    ta = 0
    for i in insts:
        if i.kind in ("label", "pseudo"):
            continue
        if i.kind == "mfma":
            t = max(t, vfree, mfree)
            mfree = t + 16
            vfree = t + 8
            t += 4
            nm += 1
        elif i.kind in ("valu", "dsr", "dsw", "dma", "vld", "vst", "trans"):
            t = max(t, vfree)
            if i.kind in ("dma", "vld", "vst"):
                t = max(t, ta - 64)
                ta = max(ta, t) + (64 if "x4" in i.op else 16)
            t += 8 if i.kind in ("trans", "dma", "vld", "vst") else 4
            vfree = t
        elif i.op == "s_nop":
            t += 4 * (int(i.text.split()[1]) + 1)
        else:
            t += 4
    return max(t, mfree), nm


class State:
    def __init__(self):
        self.lg = []
        self.vm = []
        self.smem = set()

    def copy(self):
        s = State()
        s.lg = list(self.lg)
        s.vm = list(self.vm)
        s.smem = set(self.smem)
        return s

    def key(self):
        return (tuple(tuple(sorted(x)) for x in self.lg), tuple((tuple(sorted(w)), str(t)) for w, t in self.vm))


def _parse_wait(text):
    v = re.search(r"vmcnt\((\d+)\)", text)
    l = re.search(r"lgkmcnt\((\d+)\)", text)
    return (int(v.group(1)) if v else None, int(l.group(1)) if l else None)


def wait_text(v, l):
    p = []
    if v is not None:
        p.append(f"vmcnt({min(v, 63)})")
    if l is not None:
        p.append(f"lgkmcnt({min(l, 15)})")
    return "s_waitcnt " + " ".join(p)


def wait_pass(insts, st, forced=None, log=None):
    st = st.copy()
    waits = {}

    def apply(v, l):
        if v is not None:
            v = min(v, 63)
            st.vm = st.vm[len(st.vm) - v:] if v < len(st.vm) and v > 0 else ([] if v == 0 else st.vm)
        if l is not None:
            l = min(l, 15)
            st.lg = st.lg[len(st.lg) - l:] if l < len(st.lg) and l > 0 else ([] if l == 0 else st.lg)
            if l == 0:
                st.smem = set()

    for idx, ins in enumerate(insts):
        if "ignore" in ins.text:
            continue
        v = l = None
        if forced and idx in forced:
            v, l = forced[idx]
        touch = set(ins.reads) | set(ins.writes)
        if ins.op == "NEED":
            touch = set(ins.extra["regs"])
        if touch:
            for p in range(len(st.lg) - 1, -1, -1):
                if st.lg[p] & touch:
                    n = len(st.lg) - 1 - p
                    if st.smem:
                        n = 0
                    l = n if l is None else min(l, n)
                    break
            for p in range(len(st.vm) - 1, -1, -1):
                if st.vm[p][0] & touch:
                    n = len(st.vm) - 1 - p
                    v = n if v is None else min(v, n)
                    break
            if st.smem & touch:
                l = 0
        if ins.op == "WAITV":
            tags = ins.tag if isinstance(ins.tag, list) else [ins.tag]
            for p in range(len(st.vm) - 1, -1, -1):
                if st.vm[p][1] in tags:
                    n = len(st.vm) - 1 - p
                    v = n if v is None else min(v, n)
                    break
            if ins.extra.get("lgkm0") and (st.lg or st.smem):
                l = 0
        if v is not None or l is not None:
            waits[idx] = (v, l)
            if log is not None and ins.kind != "pseudo" and not (forced and idx in forced):
                log.append((idx, ins.text, v, l))
            apply(v, l)
        if ins.op == "s_waitcnt":
            apply(*_parse_wait(ins.text))
        elif ins.kind == "dsr":
            st.lg.append(set(ins.writes))
        elif ins.kind == "dsw":
            st.lg.append(set())
        elif ins.kind in ("vld",):
            st.vm.append((set() if ins.tag == "TOUCH" else set(ins.writes), ins.tag))
        elif ins.kind in ("dma", "vst"):
            if "nocount" not in ins.text:
                st.vm.append((set(), ins.tag))
        elif ins.kind == "smem":
            st.smem |= set(ins.writes)
    return waits, st


def materialize(insts, waits):
    out = []
    for idx, ins in enumerate(insts):
        if idx in waits:
            out.append(Inst(wait_text(*waits[idx])))
        if ins.kind != "pseudo":
            out.append(ins)
    return out


def is_v(r):
    return r[0] in "va" and r not in ("vcc",)


def hazard_need(prod, cons):
    need = 0
    pw, pr = set(prod.writes), set(prod.reads)
    cr, cw = set(cons.reads), set(cons.writes)
    pvalu = prod.kind in ("valu", "trans")
    cvalu = cons.kind in ("valu", "trans")
    cmem = cons.kind in ("dsr", "dsw", "vld", "vst", "dma")
    if prod.kind == "mfma":
        passes = 4 if "16x16" in prod.op else 8
        big = {4: 8, 8: 12}[passes]
        if cons.kind == "mfma":
            if pw & set(cons.srcab):
                need = max(need, big)
            if pw & set(cons.srcc):
                if not (list(prod.writes) == list(cons.srcc) and prod.op == cons.op):
                    need = max(need, {4: 6, 8: 10}[passes])
            if pw & cw and not (pw & set(cons.srcc)):
                need = max(need, {4: 6, 8: 10}[passes])
        elif cvalu:
            if pw & (cr | cw):
                need = max(need, big)
            if set(prod.srcc) & cw:
                need = max(need, {4: 3, 8: 7}[passes])
        elif cmem:
            if pw & (cr | cw):
                need = max(need, big)
    if pvalu:
        vw = {r for r in pw if is_v(r)}
        sw = pw - vw
        if cons.kind == "mfma":
            if vw & cr:
                need = max(need, 2)
            if "exec" in pw:
                need = max(need, 4)
        if cvalu:
            if prod.kind == "trans" and vw & cr:
                need = max(need, 1)
            if cons.op.startswith("v_permlane") and vw & cr:
                need = max(need, 2)
            if cons.extra.get("dpp") and vw & cr:
                need = max(need, 2)
            if cons.extra.get("dpp") and "exec" in pw:
                need = max(need, 5)
            if (cons.op.startswith("v_readlane") or cons.op.startswith("v_readfirstlane")) and vw & cr:
                need = max(need, 1)
            if (cons.op.startswith("v_readlane") or cons.op.startswith("v_writelane")) and sw & cr:
                need = max(need, 4)
            if (cons.op.startswith("v_readlane") or cons.op.startswith("v_writelane") or cons.op.startswith("v_readfirstlane") or cons.op.startswith("v_permlane")) and "exec" in pw:
                need = max(need, 4)
            if sw & cr:
                need = max(need, 2)
            if ("sdwa" in prod.text or "_sel:" in prod.text) and not prod.op.startswith("v_pk_") and vw & (cr | cw):
                need = max(need, 1)
            if prod.op.startswith("v_dot") and vw & (cr | cw) and prod.op != cons.op:
                need = max(need, 3)
        if prod.op.startswith("v_dot") and (cmem or cons.kind == "mfma") and vw & cr:
            need = max(need, 3)
        if cons.kind in ("vld", "vst", "dma") and sw & cr:
            need = max(need, 5)
        if prod.kind == "trans" and cmem and vw & cr:
            need = max(need, 1)
        if cons.kind in ("salu", "branch") and sw & cr:
            need = max(need, 1)
    if prod.kind == "vst" and ("x4" in prod.op or "x3" in prod.op):
        data = {r for r in pr if is_v(r)}
        if data & cw:
            need = max(need, 2)
    if prod.kind == "salu" and "m0" in pw and (cons.kind == "dma" or "m0" in cr):
        need = max(need, 1)
    return need


def states_of(ins):
    if ins.kind in ("label", "pseudo"):
        return 0
    if ins.op == "s_nop":
        return int(ins.text.split()[1]) + 1
    return 1


def hazard_pass(insts, history=None, log=None):
    hist = list(history or [])
    out = []
    for ins in insts:
        if ins.kind in ("label", "pseudo"):
            out.append(ins)
            continue
        dist = 0
        pad = 0
        for p in reversed(hist):
            if dist >= 12:
                break
            nd = hazard_need(p, ins)
            if nd > dist:
                pad = max(pad, nd - dist)
                if log is not None:
                    log.append((p.text, ins.text, nd, dist))
            dist += states_of(p)
        if pad:
            nop = Inst(f"s_nop {pad - 1}")
            out.append(nop)
            hist.append(nop)
        out.append(ins)
        hist.append(ins)
        hist = hist[-16:]
    return out


class Prog:
    def __init__(self, verbose=False):
        self.out = []
        self.st = State()
        self.verbose = verbose
        self.hist = []

    def _report(self, name, wl, hl, insts):
        if self.verbose:
            c, nm = est_cycles(insts)
            print(f"; [{name}] insts={len(insts)} mfma={nm} est_cycles={c} (ideal {nm * 16}) auto_waits={len(wl)} pads={len(hl)}")
            if self.verbose > 1:
                for w in wl:
                    print(";   auto wait before", w)
                for h in hl:
                    print(";   pad", h)

    def add(self, insts, name="seq"):
        if isinstance(insts, str):
            insts = L(insts)
        if isinstance(insts, Inst):
            insts = [insts]
        wl, hl = [], []
        waits, self.st = wait_pass(insts, self.st, log=wl)
        m = materialize(insts, waits)
        m = hazard_pass(m, self.hist, log=hl)
        self.hist = (self.hist + [i for i in m if i.kind != "label"])[-16:]
        self.out += m
        if any(i.kind == "mfma" for i in m):
            self._report(name, wl, hl, m)

    def loop(self, body, name="loop"):
        wl, hl = [], []
        w1, s1 = wait_pass(body, self.st, log=wl)
        forced = dict(w1)
        for _ in range(4):
            w2, s2 = wait_pass(body, s1, forced=forced, log=wl)
            same = (w2 == forced) and s2.key() == s1.key()
            forced = w2
            _, s1n = wait_pass(body, self.st, forced=forced)
            s1 = s2
            if same:
                break
        _, sa = wait_pass(body, self.st, forced=forced)
        if sa.key() != s1.key():
            if self.verbose:
                print(f"; note: loop {name}: first-trip exit state differs from steady state")
        m = materialize(body, forced)
        m = hazard_pass(m, self.hist, log=hl)
        m2 = hazard_pass(m, [i for i in m if i.kind != "label"][-16:], log=hl)
        self.hist = [i for i in m2 if i.kind != "label"][-16:]
        self.out += m2
        self.st = s1
        self._report(name, wl, hl, m2)

    def reset(self):
        self.st = State()
        self.hist = []

    def raw(self, text):
        self.out.append(Inst(".raw"))
        self.out[-1].text = text

    def text(self):
        return "\n".join(("" if i.kind == "label" else "  ") + i.text for i in self.out)


class CFG:
    def __init__(self, verbose=1):
        self.blocks = {}
        self.order = []
        self.paths = []
        self.verbose = verbose

    def block(self, name, *parts):
        ins = []
        for p in parts:
            if isinstance(p, str):
                ins += L(p)
            elif isinstance(p, Inst):
                ins.append(p)
            else:
                for q in p:
                    ins += L(q) if isinstance(q, str) else [q]
        assert name not in self.blocks, name
        self.blocks[name] = ins
        self.order.append(name)

    def path(self, *names):
        self.paths.append(list(names))

    def finalize(self):
        import sys
        forced = {n: {} for n in self.blocks}
        logs = {n: [] for n in self.blocks}
        seen = set()
        cache = {}
        ver = {n: 0 for n in self.blocks}
        for _ in range(10):
            changed = False
            for path in self.paths:
                st = State()
                for n in path:
                    seen.add(n)
                    key = (n, ver[n], st.key(), tuple(sorted(st.smem)))
                    if key in cache:
                        st = cache[key]
                        continue
                    w, st = wait_pass(self.blocks[n], st, forced=forced[n], log=logs[n])
                    if w != forced[n]:
                        forced[n] = w
                        ver[n] += 1
                        changed = True
                    else:
                        cache[key] = st
            if not changed:
                break
        else:
            raise RuntimeError("wait analysis did not converge")
        for n in self.blocks:
            assert n in seen, f"block {n} is on no path"
        mat = {n: materialize(self.blocks[n], forced[n]) for n in self.blocks}
        for n in mat: check_scc(mat[n], n); check_raw(mat[n], n)
        hl = {n: [] for n in self.blocks}
        for n in mat:
            mat[n] = hazard_pass(mat[n], [], log=hl[n])
        for _ in range(2):
            for path in self.paths:
                hist = []
                for n in path:
                    mat[n] = hazard_pass(mat[n][:24], hist, log=hl[n]) + mat[n][24:]
                    hist = (hist + [i for i in mat[n][-24:] if i.kind != "label"])[-16:]
        for n in self.order:
            if self.verbose:
                c, nm = est_cycles(mat[n])
                sys.stderr.write(f"; [{n}] insts={len(mat[n])} mfma={nm} est={c} ideal={nm * 16} auto_waits={len(logs[n])} pads={len(hl[n])}\n")
                if self.verbose > 1 and nm:
                    for w in logs[n]:
                        sys.stderr.write(f";    auto wait {w}\n")
                    for h in hl[n]:
                        sys.stderr.write(f";    pad {h}\n")
        self.mat = mat
        out = []
        for n in self.order:
            out.append(f"; ---- {n}")
            out += [("" if i.kind == "label" else "  ") + i.text for i in mat[n]]
        return "\n".join(out)
```

```python
from common import *

class AttRegs:
    S_WS = 8
    S_DBG = 12
    sWAVE = 20
    sK, sKcnt, sKn1, sKc1, sKn2 = 21, 22, 23, 24, 25
    sV, sIT, sM0, sT0, sT1 = 26, 27, 28, 29, 30
    sTHR, sQ, sOP, sPO, sDQ = 31, 32, 33, 34, 35
    sRET = 36
    sVn = 38
    sREQ, sCHK = 6, 7
    sTRI = (16, 18, 48, 50)
    vRD0, vRD1, vDM0, vDM1, vL16 = 7, 2, 3, 4, 7
    vF0 = 1
    vRL = 5
    vNEG = 8
    vX = 10
    vT = 18
    vSUM = 26
    vLS = 30
    vNM = 32
    vP0, vP1 = 40, 56
    vS, vO = 64, 128
    aQ, aF, aX = 0, 64, 128
A = AttRegs
KSLOT = {0: 3, 1: 1}
VSLOT = {0: 2, 1: 0}

def Sreg(b, kb, qb): return A.vS + 32 * b + (kb * 2 + qb) * 4
def Oreg(db, qb): return A.vO + (db * 2 + qb) * 4
def Preg(b, kp, qb): return (A.vP0 + 8 * b + 4 * qb) if kp == 0 else (A.vP1 + 4 * qb)
def Qreg(qb, ks): return A.aQ + (qb * 8 + ks) * 4
def Freg(batch, f): return A.aF + (batch & 1) * 32 + f * 4

WI = dict(nr=8, nd=8, noadd=0)
def rd_batch(slot, batch):
    va = A.vRD1 if slot >= 2 else A.vRD0
    return [I(f"ds_read_b128 a[{Freg(batch, f)}:{Freg(batch, f)+3}], v{va} offset:{(slot & 1) * 32768 + batch * 8192 + f * 1024}") for f in range(WI['nr'])]

DFL = "sc1"
def dma_tile(slot, soff, flags=None):
    flags = DFL
    out = []
    for j in range(WI['nd']):
        pre = I(f"s_add_u32 m0, s{A.sM0}, {slot * 32768 + (j >> 2) * 4096}") if j % 4 == 0 else None
        v = A.vDM0 if j < 4 else A.vDM1
        out.append((pre, I(f"buffer_load_dwordx4 v{v}, s[{A.S_WS}:{A.S_WS+3}], s{soff} offen offset:{(j & 3) * 1024} {flags} lds", tag=("T", slot))))
    return out
def dma_flat(slot, soff):
    out = []
    for pre, d in dma_tile(slot, soff):
        if pre: out.append(pre)
        out.append(d)
    return out
def adv_k():
    return L(f"""
    s_add_u32 s{A.sK}, s{A.sK}, 32768
    s_sub_u32 s{A.sKcnt}, s{A.sKcnt}, 1
    s_cmp_eq_u32 s{A.sKcnt}, 0
    s_cselect_b32 s{A.sK}, s{A.sKn1}, s{A.sK}
    s_cselect_b32 s{A.sKcnt}, s{A.sKc1}, s{A.sKcnt}
    s_cselect_b32 s{A.sKn1}, s{A.sKn2}, s{A.sKn1}
    s_cselect_b32 s{A.sKc1}, 0x7fff, s{A.sKc1}
    """)
def adv_v(): return L(f"s_add_u32 s{A.sV}, s{A.sV}, 32768")

X = dict(nodma=0, nobar=0, rp=0, dp=0, wide=1, ls=1, r3=1, r3x='-')
RPAT = {0: [0, 1, 3, 4, 6, 7, 9, 10], 1: [0, 1, 2, 4, 5, 6, 8, 9], 2: [0, 1, 4, 5, 8, 9, 12, 13], 3: [0, 0, 2, 2, 4, 4, 6, 6], 4: [0, 2, 4, 6, 8, 10, 12, 14], 5: [0, 0, 3, 3, 6, 6, 9, 9], 6: [0, 1, 2, 3, 5, 6, 7, 8]}
def weave_dma(g, slot, soff, post, lo=1, hi=45):
    t = dma_tile(slot, soff)
    link([i for p in t for i in p if i] + list(post))
    step = (hi - lo) / 8.0
    kk = lo
    for j, (pre, d) in enumerate(t):
        k = max(kk, int(lo + j * step))
        if pre:
            k = g.fit_s(max(k - 1, kk if j else 0), pre) + 1
        if X["dp"] == 1:
            while g.used(k) != 1: k += 1
        if X["dp"] == 2:
            while g.used(k) != 0: k += 1
        kk = k if X["nodma"] else g.fit(k, d)
    k = kk + 1
    for ins in post:
        k = g.fit_s(k, ins) + 1
    return k

def weave_reads(g, slot, nslot, wait_tags, base=0):
    pat = RPAT[X["rp"]]; late = pat[-1] > 10
    if late: g.put_s(base + 3, NEED(R("a", Freg(0, 4), 16)))
    for b in range(1, 4):
        rs = rd_batch(slot, b)
        p = pat if (b < 3 or not late) else RPAT[X['r3']]
        if b == 3 and X['r3x'] != '-': p = RPAT[int(X['r3x'])]
        for f, r in enumerate(rs):
            g.put(base + (b - 1) * 16 + p[f], r)
        if b < 3:
            g.put_s(base + b * 16 - 1, NEED(R("a", Freg(b, 0), 16 if late else 32)))
            if late: g.put_s(base + b * 16 + 3, NEED(R("a", Freg(b, 4), 16)))
    g.put_s(base + 46, WAITV(wait_tags, lgkm0=True))
    if not X["nobar"]: g.put_s(base + 47, I("s_barrier"))
    if nslot is not None:
        for f, r in enumerate(rd_batch(nslot, 0)):
            g.put(base + 48 + pat[f], r)
        g.put_s(base + 62, NEED(R("a", Freg(0, 0), 16 if late else 32)))

def qk_mfmas(b, cmode, breg=None, kbs=range(4)):
    ms = []
    for kb in kbs:
        for qb in range(2):
            d = R("v", Sreg(b, kb, qb), 4)
            order = range(8) if qb == 0 else range(7, -1, -1)
            for n, ks in enumerate(order):
                c = d if n else {"nm": R("v", A.vNM + 4 * qb, 4), "self": d, "zero": "0", "mask": R("v", A.vNM + 4, 4) if (kb, qb) == (0, 1) else d}[cmode]
                bq = breg(qb, ks) if breg else R("a", Qreg(qb, ks), 4)
                ms.append(mfma(d, R("a", Freg(kb, ks), 4), bq, c))
    return ms
def pv_mfmas(b):
    ms = []
    for db in range(16):
        for qb in range(2):
            d = R("v", Oreg(db, qb), 4)
            for kp in ((0, 1) if qb == 0 else (1, 0)):
                ms.append(mfma(d, R("a", Freg(db >> 2, (db & 3) * 2 + kp), 4), R("v", Preg(b, kp, qb), 4), d))
    return ms

def softmax_groups(b, kp):
    groups = []
    n = 0
    for qb in range(2):
        for kk in range(2):
            for pr in range(2):
                s = Sreg(b, 2 * kp + kk, qb) + 2 * pr
                t0, t1 = A.vT + (n % 4) * 2, A.vT + (n % 4) * 2 + 1
                sm = A.vSUM + 2 * b + qb
                ex = [I(f"v_exp_f32 v{t0}, v{s}"), I(f"v_exp_f32 v{t1}, v{s+1}")]
                if kp == 0 and kk == 0 and pr == 0:
                    post = [I(f"v_add_f32 v{sm}, v{t0}, v{t1}")]
                else:
                    post = [I(f"v_add_f32 v{sm}, v{t0}, v{sm}"), I(f"v_add_f32 v{sm}, v{t1}, v{sm}")]
                if WI['noadd']: post = post[:0]
                post.insert(1, I(f"v_cvt_pk_bf16_f32 v{Preg(b, kp, qb) + 2 * kk + pr}, v{t0}, v{t1}"))
                groups.append((ex, post))
                n += 1
    return groups
def softmax_half(b, kp):
    out = []
    prev = []
    for ex, post in softmax_groups(b, kp):
        out.append(ex[0]); out += prev[:2]; out.append(ex[1]); out += prev[2:]
        prev = post
    out += prev
    return out
def sched_softmax(g, b, kp, lo, hi, pre=()):
    grp = softmax_groups(b, kp)
    link(list(pre) + [i for e, p in grp for i in e + p])
    ex = [(n, i) for n, (e, p) in enumerate(grp) for i in e]
    po = [(-1, i) for i in pre] + [(n, i) for n, (e, p) in enumerate(grp) for i in p]
    done_e = {}; last = lo; ne = 0
    for k in range(lo, g.n):
        empty_left = sum(1 for q in range(k, hi) if g.used(q) == 0)
        if ex and g.used(k) == 0:
            n = ex[0][0]
            free = not any(m <= n - 4 for m, _ in po)
            due = k >= lo + ne * (hi - lo) // 16 or empty_left <= len(ex)
            if free and due:
                g.put(k, ex.pop(0)[1]); done_e[n] = (done_e.get(n, (0, 0))[0] + 1, k); ne += 1; last = k
                continue
        keep = ex and g.used(k) == 0 and empty_left <= len(ex) and not any(m <= ex[0][0] - 4 for m, _ in po)
        while po and g.used(k) < 2 and not keep:
            n = po[0][0]
            if n >= 0 and not (done_e.get(n, (0, 0))[0] == 2 and done_e[n][1] < k): break
            g.put(k, po.pop(0)[1]); last = k
    if ex or po:
        last = g.n - 1
        for n in range(-1, 8):
            for m, i in ex:
                if m == n: g.put(last, i)
            for m, i in po:
                if m == n: g.put(last, i)
    return last

def check(b, label):
    return [I(f"v_max_f32 v{A.vX}, v{A.vSUM + 2*b}, v{A.vSUM + 2*b + 1}"),
            I(f"v_cmp_lt_f32 vcc, s{A.sTHR}, v{A.vX}"),
            I(f"s_cbranch_vccnz {label}")]
def add_l(b):
    return [I(f"v_add_f32 v{A.vLS + q}, v{A.vSUM + 2*b + q}, v{A.vLS + q}") for q in range(2)]

def xlane(op, r, t):
    return L(f"""
    v_mov_b32 v{t}, v{r}
    v_permlane16_swap_b32 v{t}, v{r}
    {op} v{r}, v{t}, v{r}
    v_mov_b32 v{t}, v{r}
    v_permlane32_swap_b32 v{t}, v{r}
    {op} v{r}, v{t}, v{r}
    """)
def rowmax(b):
    ins = []
    for qb in range(2):
        vals = [Sreg(b, kb, qb) + e for kb in range(4) for e in range(4)]
        m = A.vX + qb
        ins.append(I(f"v_max3_f32 v{m}, v{vals[0]}, v{vals[1]}, v{vals[2]}"))
        for x in range(3, 15, 2):
            ins.append(I(f"v_max3_f32 v{m}, v{vals[x]}, v{vals[x+1]}, v{m}"))
        ins.append(I(f"v_max_f32 v{m}, v{vals[15]}, v{m}"))
    a, c = xlane("v_max_f32", A.vX, A.vX + 2), xlane("v_max_f32", A.vX + 1, A.vX + 3)
    for x, y in zip(a, c): ins += [x, y]
    ins += [I(f"v_ceil_f32 v{A.vX + q}, v{A.vX + q}") for q in range(2)]
    return ins
def sub_S(b):
    return [I(f"v_sub_f32 v{Sreg(b, kb, qb) + e}, v{Sreg(b, kb, qb) + e}, v{A.vX + qb}") for kb in range(4) for qb in range(2) for e in range(4)]
def init_softmax(b):
    ins = rowmax(b)
    ins += [I(f"v_sub_f32 v{A.vNM + 4*q + e}, 0, v{A.vX + q}") for q in range(2) for e in range(4)]
    ins += sub_S(b)
    ins += [I(f"v_mov_b32 v{A.vLS + q}, 0") for q in range(2)]
    ins += softmax_half(b, 0)
    return ins
def rescale_state():
    ins = [I(f"v_sub_f32 v{A.vNM + 4*q + e}, v{A.vNM + 4*q + e}, v{A.vX + q}") for q in range(2) for e in range(4)]
    ins += [I(f"v_exp_f32 v{A.vX + 2 + q}, -v{A.vX + q}") for q in range(2)]
    ins += [I(f"v_mul_f32 v{A.vLS + q}, v{A.vX + 2 + q}, v{A.vLS + q}") for q in range(2)]
    ins += [I(f"v_mul_f32 v{Oreg(db, q) + e}, v{A.vX + 2 + q}, v{Oreg(db, q) + e}") for db in range(16) for q in range(2) for e in range(4)]
    return ins
def slow_sub(b, other=True):
    ins = [I(f"L_slow{b}{'' if other else 'n'}:"), I("s_nop 7"), I("s_nop 3")]
    ins += rowmax(b)
    ins += [I(f"v_max_f32 v{A.vX + q}, 0, v{A.vX + q}") for q in range(2)]
    ins += sub_S(b) + (sub_S(1 - b) if other else [])
    ins += rescale_state()
    ins += softmax_half(b, 0) + softmax_half(b, 1)
    ins += [I("s_nop 3"), I(f"s_setpc_b64 s[{A.sRET}:{A.sRET+1}]")]
    return ins

def fill_valu(g, ins, lo, hi):
    tot = sum(max(i.slots()) for i in link(ins))
    k = lo; acc = 0
    for i in ins:
        tgt = lo + int(acc * (hi - lo) / max(tot, 1))
        k = g.fit(g.vm_slot(max(k, tgt), i, 4), i)
        acc += max(i.slots())
    return k

def mask_regs(wa):
    out = f"""
    s_cmp_eq_u32 s{A.sWAVE}, {wa}
    s_cselect_b64 s[64:65], -1, 0
    s_cmp_eq_u32 s{A.sWAVE}, {wa + 1}
    s_cselect_b64 s[84:85], -1, 0
    s_or_b64 s[66:67], s[64:65], s[84:85]
    """
    for e in range(4):
        t = A.sTRI[e]
        out += f"""s_and_b64 s[{68+2*e}:{69+2*e}], s[{t}:{t+1}], s[64:65]
        s_and_b64 s[{76+2*e}:{77+2*e}], s[{t}:{t+1}], s[84:85]
        s_or_b64 s[{76+2*e}:{77+2*e}], s[{76+2*e}:{77+2*e}], s[64:65]
        """
    return L(out)
def mask_blk(b, kb, qb, inplace=False):
    kind = {(0, 0): 1, (1, 0): 2, (1, 1): 1, (2, 0): 3, (2, 1): 2, (3, 0): 4, (3, 1): 3}.get((kb, qb))
    if kind is None: return []
    out = []
    for e in range(4):
        m = {1: 68 + 2 * e, 2: 64, 3: 76 + 2 * e, 4: 66}[kind]
        d = Sreg(b, kb, qb) + e
        out.append(I(f"v_cndmask_b32 v{d}, v{d if inplace else A.vNM + 4 * qb}, v{A.vNEG}, s[{m}:{m+1}]"))
    return out

def put_groups(g, groups, lo, hi):
    k = lo
    link([i for grp in groups for i in grp])
    for n, grp in enumerate(groups):
        k = max(k, lo + n * (hi - lo) // len(groups))
        for i in grp:
            if i.slots()[0] == 0:
                q = k + 1
                while q < g.n - 1 and (g.sc[q] or q in getattr(g, "nos", ())): q += 1
                if q < g.n - 1: g.put_s(q, i); k = q
                else: k = g.n - 1; g.put(k, i)
            else: k = g.fit(g.vm_slot(k, i, 5), i)
    return k
def win_qk(b, slowlabel, retlabel, extra=(), masked=False, cmode="nm", breg=None, spare=(), groups=(), head=(), pre_done=False, ghi=58, scal=()):
    g = Gaps(qk_mfmas(1 - b, "mask" if masked else cmode, breg))
    weave_reads(g, KSLOT[1 - b], VSLOT[b], [("T", VSLOT[b])])
    for e in extra: g.fit(0, e)
    hk = -1
    for e in head:
        if e.kind != 'label': hk += 1
        g.put_s(hk, e)
    if masked:
        if not pre_done: g.pre = mask_blk(1 - b, 0, 0)
        for blk in range(2, 8):
            k = max(0, 8 * blk - 16)
            for i in mask_blk(1 - b, blk >> 1, blk & 1):
                while g.used(k) != 1 and k < 8 * blk - 5: k += 1
                k = g.fit(k, i)
            assert k <= 8 * blk - 2, (blk, k)
    weave_dma(g, VSLOT[1 - b], A.sV, adv_v(), lo=hk + 2, hi=64 if (len(groups) >= 4 and X['wide']) else 45)
    k = 2
    for i in scal: k = g.fit_s(k, i) + 1
    if groups: put_groups(g, groups, 2, ghi)
    k = sched_softmax(g, b, 1, 0, 56) if X['ls'] else fill_valu(g, softmax_half(b, 1), 0, 50 if masked or groups else 53)
    c = check(b, slowlabel)
    if k <= 59:
        k = g.fit(max(k + 1, 58), c[0], lim=61); k = g.fit(k + 1, c[1], lim=62)
        g.put_s(63, c[2])
    else:
        for i in c: g.put(63, i)
    spare = list(spare)
    for k in range(63):
        while spare and g.used(k) < 2: g.put(k, spare.pop(0))
    return g.flat() + [I(retlabel + ":")], spare
def win_pv(b, tail=(), chk=None, post=(), valu=None, spare=(), lo=0, groups=(), tags=(), scal=(), ghi=32, glo=2, nowide=False):
    g = Gaps(pv_mfmas(b))
    weave_reads(g, VSLOT[b], KSLOT[b], [("T", KSLOT[b])] + list(tags))
    wide = len(groups) >= 4 and X["wide"] and not nowide
    k = weave_dma(g, KSLOT[1 - b], A.sK, adv_k(), hi=58 if wide else 38)
    if wide:
        glo = 4; g.nos = set(range(k - 9, k))
    if groups: put_groups(g, groups, glo, ghi)
    if scal:
        import kvq
        g.lock = set(range(k - 9, k))
        assert not kvq.seq_fit(g, list(scal), 1)[1]
    assert k <= (61 if wide else 53), k
    if chk:
        g.put(50, chk[0]); g.put_s(53, chk[1]); g.put_s(53, chk[2])
        ck = 53
        for i in chk[3:]:
            if i.kind != 'label': ck += 1
            g.put_s(ck, i)
        assert ck < 60
    k = 49
    for i in post: k = g.fit(k, i)
    if valu is None and X['ls']: sched_softmax(g, 1 - b, 0, 0, 59, add_l(b))
    elif valu is None: fill_valu(g, add_l(b) + softmax_half(1 - b, 0), 0, 60)
    else: valu(g)
    k = lo; left = []
    for i in link(list(spare)):
        if left: left.append(i); continue
        if i.slots()[0] == 0:
            k += 1
            while k < 60 and g.sc[k]: k += 1
            if k >= 60: left.append(i)
            else: g.put_s(k, i)
            continue
        while k < 63 and g.used(k) + max(i.slots()) > 2: k += 1
        if k >= 63: left.append(i)
        else: g.put(k, i)
    for n, ins in enumerate(tail):
        g.put_s(64 - len(tail) + n - (1 if n < len(tail) - 1 else 0), ins)
    assert not (tail and left)
    return g.flat() + left

def zero_O_mfma(ins, z):
    out = []; step = max(len(ins) // 9, 1); n = 0
    for k, i in enumerate(ins):
        out.append(i)
        if k % step == step - 1 and n < 8:
            out.append(I(f"v_mfma_f32_32x32x16_bf16 v[{A.vO + 16*n}:{A.vO + 16*n + 15}], v[{z}:{z+3}], v[{z}:{z+3}], 0")); n += 1
    assert n == 8
    return out
def q_from_lds(dst, flip=0):
    pre = L(f"""
    s_lshr_b32 s64, s{A.sWAVE}, 1
    s_add_u32 s64, s64, {flip}
    s_lshl_b32 s64, s64, {17 - flip}
    s_and_b32 s65, s{A.sWAVE}, 1
    s_lshl_b32 s65, s65, 14
    s_add_u32 s64, s64, s65
    v_add_u32 v{A.vX}, s64, v{A.vL16}
    """)
    return pre + [I(f"ds_read_b128 a[{dst + 4*n}:{dst + 4*n + 3}], v{A.vX} offset:{n * 1024}") for n in range(16)]
def zero_O(): return [I(f"v_mov_b32 v{A.vO + r}, 0") for r in range(128)]
def load_Q():
    out = []
    for j in range(16):
        if j % 4 == 0: out.append(I(f"s_add_u32 s{A.sT1}, s{A.sQ}, {j * 1024}"))
        out.append(I(f"buffer_load_dwordx4 a[{A.aQ + 4*j}:{A.aQ + 4*j + 3}], v{A.vL16}, s[{A.S_WS}:{A.S_WS+3}], s{A.sT1} offen offset:{(j & 3) * 1024} sc1"))
    return out
def cvt_ctx(ks, qb):
    a, c = Oreg(2 * ks, qb), Oreg(2 * ks + 1, qb)
    return L(f"""v_cvt_pk_bf16_f32 v{a}, v{a}, v{a+1}
    v_cvt_pk_bf16_f32 v{a+1}, v{a+2}, v{a+3}
    v_cvt_pk_bf16_f32 v{a+2}, v{c}, v{c+1}
    v_cvt_pk_bf16_f32 v{a+3}, v{c+2}, v{c+3}""")

def mix(valu, mem, lo=0, hi=None):
    hi = len(valu) if hi is None else hi
    link(valu); link(mem)
    groups = []; cur = []
    for i in mem:
        cur.append(i)
        if i.slots()[0]: groups.append(cur); cur = []
    tail = cur
    out = []; n = 0
    for k, i in enumerate(valu):
        while n < len(groups) and k >= lo + n * (hi - lo) // len(groups):
            g_ = groups[n]; n += 1
            if len(g_) > 1 and out and out[-1].kind in ("valu", "trans"):
                last = out.pop(); out += g_[:-1] + [last, g_[-1]]
            else: out += g_
            if n == len(groups): out += tail
        out.append(i)
    assert n == len(groups)
    return out
```

```python
from asmlib import *
NAME = "gated_mix__compressed_kv_cla__moe_arch_mod__prompt"
A_X, A_CKV, A_WQ, A_WUK, A_WUV, A_WO, A_BX, A_WR, A_WG, A_WU, A_WD, A_GW, A_OUT, A_DBG, A_WS = [8 * i for i in range(15)]
import sys as _sys
def _arg(k, d):
    for a in _sys.argv[1:]:
        if a.startswith(k + "="): return int(a[len(k) + 1:])
    return d
HS = (1 << 20) + _arg("hpad", 0)
WS_K = 0
WS_V = 16 * HS + _arg("vpad", 0)
WS_Q = 2 * WS_V
WS_PO = 130 << 20
WS_OP = 64 << 20
assert 3 * WS_V <= WS_OP
WS_R = 100 << 20
WS_STAMP = 120 << 20

def srd(s, base_lo, nbytes):
    return (f"s_mov_b32 s{s}, s{base_lo}\ns_and_b32 s{s+1}, s{base_lo+1}, 0xffff\n"
            f"s_mov_b32 s{s+2}, {nbytes}\ns_mov_b32 s{s+3}, 0x20000")

def mfma(d, a, b, c):
    return I(f"v_mfma_f32_16x16x32_bf16 {d}, {a}, {b}, {c}")

def kernel_header(name):
    return f".globl {name}\n.p2align 8\n.type {name},@function\n{name}:"

def kernel_desc(name, vgpr=512, accum=256, sgpr=96):
    return f""".amdhsa_kernel {name}
  .amdhsa_next_free_vgpr {vgpr}
  .amdhsa_next_free_sgpr {sgpr}
  .amdhsa_accum_offset {accum}
  .amdhsa_group_segment_fixed_size 0
  .amdhsa_kernarg_size 120
  .amdhsa_user_sgpr_count 2
  .amdhsa_user_sgpr_kernarg_segment_ptr 1
  .amdhsa_system_sgpr_workgroup_id_x 1
  .amdhsa_float_denorm_mode_32 3
.end_amdhsa_kernel"""

WS_WO = 96 << 20
PO_STRIDE = 73728
OP_HEAD = 114688 + _arg("opad", 0)
assert 256 * OP_HEAD <= 32 << 20
LOG2E_16 = 1.4426950408889634 / 16.0
import struct
def f2u(x): return struct.unpack("<I", struct.pack("<f", x))[0]

WS_Y = WS_R + (1 << 20)
WS_SEL = WS_R + 32768
WS_FKV = WS_R + 65536
WS_FPO = WS_FKV + 4096
WS_FOP = WS_FPO + 4096
WS_FH = WS_FOP + 4096
SPIN_MAX = 1 << 16
WS_DUMMY = 110 << 20
LDS_R = 163840 - 256

WS_RG = WS_R
WS_KEY = WS_FKV - 8192
NZERO = 21

FSTR = 4352
WS_FL = WS_FKV
WS_FOP = WS_FL + 16 * FSTR
WS_FH = WS_FL + 32 * FSTR
WS_YF = WS_R + 40960
NZERO = 41

WS_RL = WS_R + (2 << 20)
```

```python
from common import *
from side import sWAVE, sH, sJ, WS, OOB, sigmoid, lane0_wave0, flag_store
LB = 131072
LX = LB + 28672
sFS, sLD, sMK = 86, 87, 88

HNT = "nt"
MAP = "0"
def unit(m0off, n, srdreg, soff, tag, adv, v=28, fl="nt"):
    return ([I(f"s_add_u32 m0, s{sLD}, {m0off}")] +
            [I(f"buffer_load_dwordx4 v{v+j}, s[{srdreg}:{srdreg+3}], s{soff} offen offset:{1024*j} {fl} lds", tag=tag) for j in range(n)] +
            [I(f"s_add_u32 s{soff}, s{soff}, {adv}")])
def s1_weights():
    pre = L(f"""
    {f's_mul_i32 s{sFS}, s{sH}, 7' if MAP != '0' else f'''
    s_and_b32 s{sFS}, s{sH}, 7
    s_mul_i32 s{sFS}, s{sFS}, 14
    s_lshr_b32 s64, s{sH}, 3
    s_mul_i32 s64, s64, 7
    s_add_u32 s{sFS}, s{sFS}, s64'''}
    s_min_u32 s64, s{sJ}, 6
    s_add_u32 s{sFS}, s{sFS}, s64
    s_sub_u32 s64, 6, s{sJ}
    s_and_b32 s{sMK}, s64, {OOB}
    s_mul_i32 s{sLD}, s{sWAVE}, 7168
    s_add_u32 s{sLD}, s{sLD}, {LB}
    s_cmp_lt_u32 s{sWAVE}, 2
    s_cselect_b64 s[72:73], s[80:81], s[82:83]
    {srd(60, 72, 448*3584)}
    {srd(68, 84, 1792*896)}
    s_lshl_b32 s89, s{sFS}, 5
    s_and_b32 s64, s{sWAVE}, 1
    s_mul_i32 s64, s64, {224 * 3584}
    s_add_u32 s89, s89, s64
    v_lshrrev_b32 v28, 1, v0
    v_mul_u32_u24 v28, 3584, v28
    v_and_b32 v29, 1, v0
    v_lshl_add_u32 v25, v29, 4, v28
    v_or_b32 v25, s{sMK}, v25
    """)
    return pre, [unit(1024 * n, 1, 60, 89, "HW", 32 * 3584, 25, HNT) for n in range(7)]
KEYS = [f"buffer_load_dwordx4 v[{16+4*n}:{19+4*n}], v7, {WS}, s67 offen offset:{1024*n} sc1" for n in range(2)]
KMIN = """v_min3_u32 v28, v16, v17, v18
    v_min3_u32 v28, v28, v19, v20
    v_min3_u32 v28, v28, v21, v22
    v_min_u32 v28, v28, v23
    v_cmp_eq_u32 vcc, 0, v28"""
def s2_keys():
    return L(f"s_lshl_b32 s67, s{sWAVE}, 11\ns_add_u32 s67, s67, {WS_KEY}\n" + "\n".join(KEYS))
def key_stub():
    return L(f"L_hs:\ns_mov_b32 s91, {SPIN_MAX}\nL_hs_l:\n" + "\n".join(KEYS) + f"\ns_waitcnt vmcnt(0)\ns_sub_u32 s91, s91, 1\ns_cbranch_scc1 L_hr\n{KMIN}\ns_cbranch_vccnz L_hs_l\ns_branch L_hr")
def merge(a1, a2, b1, b2, t):
    return L(f"v_min_u32 v{t}, v{a1}, v{b1}\nv_max_u32 v{a1}, v{a1}, v{b1}\nv_max3_u32 v{a2}, v{a2}, v{b2}, v{t}")
def s3_top2():
    out = L(KMIN + "\ns_nop 0\ns_cbranch_vccnz L_hs\nL_hr:\nv_max_u32 v28, v16, v17\nv_min_u32 v29, v16, v17")
    for n in range(18, 24): out += L(f"v_med3_u32 v29, v28, v29, v{n}\nv_max_u32 v28, v28, v{n}")
    for sh in ("row_ror:8", "row_ror:4", "row_ror:2", "row_ror:1"):
        out += L(f"v_mov_b32 v30, v28 {sh} row_mask:0xf bank_mask:0xf\nv_mov_b32 v31, v29 {sh} row_mask:0xf bank_mask:0xf") + merge(28, 29, 30, 31, 16)
    for sw in ("v_permlane16_swap_b32", "v_permlane32_swap_b32"):
        out += L(f"v_mov_b32 v30, v28\nv_mov_b32 v31, v29\n{sw} v30, v28\n{sw} v31, v29") + merge(28, 29, 30, 31, 16)
    out += L(f"s_lshl_b32 s64, s{sWAVE}, 3\ns_add_u32 s64, s64, {LX}\nv_mov_b32 v16, s64\nds_write_b64 v16, v[28:29]")
    return out
def s4_sel():
    out = L(f"v_mov_b32 v28, {LX}\nds_read_b128 v[16:19], v28\nds_read_b128 v[20:23], v28 offset:16") + [8]
    out += merge(16, 17, 18, 19, 28) + merge(20, 21, 22, 23, 29) + merge(16, 17, 20, 21, 28)
    out += L(f"""
    v_and_b32 v28, 1, v0
    v_cmp_eq_u32 vcc, 0, v28
    s_and_b32 s64, s{sWAVE}, 1
    s_mul_i32 s64, s64, 448
    v_cndmask_b32 v24, v17, v16, vcc
    v_and_b32 v24, 0x7ff, v24
    v_sub_u32 v24, 2047, v24
    v_mul_u32_u24 v28, 896, v24
    v_lshrrev_b32 v29, 4, v0
    v_lshl_add_u32 v28, v29, 4, v28
    v_bfe_u32 v30, v0, 1, 3
    v_lshl_or_b32 v28, v30, 26, v28
    """) + [I(f"buffer_load_dwordx4 a[{208+4*k}:{211+4*k}], v28, s[56:59], s64 offen offset:{64*k}") for k in range(7)] + L(f"""
    v_lshrrev_b32 v28, 4, v24
    v_lshlrev_b32 v28, 5, v28
    v_and_b32 v30, 15, v24
    v_add_lshl_u32 v28, v28, v30, 2
    v_lshrrev_b32 v30, 1, v0
    v_min_u32 v30, 1, v30
    v_lshl_or_b32 v28, v30, 29, v28
    s_mov_b32 s64, {WS_RG}
    buffer_load_dword v23, v28, {WS}, s64 offen sc1
    v_bfe_u32 v28, v0, 2, 2
    v_lshl_add_u32 v28, v29, 3, v28
    v_lshlrev_b32 v28, 5, v28
    v_and_b32 v30, 3, v0
    v_lshl_add_u32 v28, v30, 3, v28
    v_add_u32 v22, s{sLD}, v28
    """)
    return out
def s5_gemm():
    rounds = []
    for ks0, n in ((0, 4), (4, 3)):
        rd = [I(f"ds_read_b64_tr_b16 a[{176+4*k+2*j}:{177+4*k+2*j}], v22 offset:{(ks0+k)*1024 + j*128}") for k in range(n) for j in range(2)]
        mm = [mfma("v[16:19]", R("a", 176 + 4 * k, 4), R("a", 208 + 4 * (ks0 + k), 4), "v[16:19]" if ks0 + k else "0") for k in range(n)]
        rounds.append((rd, mm))
    return rounds
def s6_down_dma():
    pre = L(f"""
    s_lshl_b32 s64, s{sWAVE}, 10
    s_add_u32 s64, s64, {LX}
    v_add_u32 v21, s64, v7
    ds_write_b128 v21, v[16:19]
    s_mul_i32 s67, s{sFS}, {16 * 896}
    s_mul_i32 s64, s{sWAVE}, 224
    s_add_u32 s67, s67, s64
    v_lshrrev_b32 v28, 4, v0
    v_mul_u32_u24 v28, 896, v28
    v_and_b32 v29, 15, v0
    v_lshl_add_u32 v28, v29, 4, v28
    v_mov_b32 v30, {OOB}
    v_cmp_gt_u32 vcc, 14, v29
    s_nop 0
    s_nop 0
    v_cndmask_b32 v28, v30, v28, vcc
    v_add_u32 v29, {4 * 896 - 1024}, v28
    v_add_u32 v30, {2 * (4 * 896 - 1024)}, v28
    v_add_u32 v31, {3 * (4 * 896 - 1024)}, v28
    """)
    return pre, unit(0, 4, 68, 67, "HD", 0)
def rnd2(a, b, t):
    return L(f"v_cvt_pk_bf16_f32 v{t}, v{a}, v{b}\nv_lshlrev_b32 v{a}, 16, v{t}\nv_and_b32 v{b}, 0xffff0000, v{t}")
def s7_act():
    out = L(f"""
    v_cvt_pk_bf16_f32 v23, v23, v23
    v_and_b32 v23, 0xffff0000, v23
    """) + sigmoid(23, 22) + L(f"""
    s_or_b32 s64, s{sFS}, s{sWAVE}
    s_min_u32 s64, s64, 1
    s_lshl_b32 s64, s64, 29
    v_lshrrev_b32 v22, 1, v0
    v_min_u32 v22, 1, v22
    v_lshlrev_b32 v22, 29, v22
    v_lshl_or_b32 v22, v0, 2, v22
    v_or_b32 v22, s64, v22
    v_cvt_pk_bf16_f32 v23, v23, v23
    v_and_b32 v23, 0xffff0000, v23
    s_mov_b32 s64, {WS_SEL}
    buffer_store_dword v24, v22, {WS}, s64 offen sc1
    buffer_store_dword v23, v22, {WS}, s64 offen offset:8 sc1
    v_add_u32 v25, {LX}, v7
    ds_read_b128 v[16:19], v25
    ds_read_b128 v[28:31], v25 offset:1024
    ds_read_b128 v[20:23], v25 offset:2048
    """) + [7]
    out += [I(f"v_add_f32 v{16+e}, v{28+e}, v{16+e}") for e in range(4)]
    out += L("ds_read_b128 v[28:31], v25 offset:3072")
    out += rnd2(16, 17, 25) + rnd2(18, 19, 25)
    out += [I(f"v_add_f32 v{20+e}, v{28+e}, v{20+e}") for e in range(4)]
    out += [I(f"v_mul_f32 v{28+e}, 0xbfb8aa3b, v{16+e}") for e in range(4)]
    out += [I(f"v_exp_f32 v{28+e}, v{28+e}") for e in range(4)]
    out += rnd2(20, 21, 25) + rnd2(22, 23, 25)
    out += [I(f"v_add_f32 v{28+e}, 1.0, v{28+e}") for e in range(4)]
    out += [I(f"v_rcp_f32 v{28+e}, v{28+e}") for e in range(4)]
    out += [I(f"v_mul_f32 v{16+e}, v{28+e}, v{16+e}") for e in range(4)]
    out += rnd2(16, 17, 25) + rnd2(18, 19, 25)
    out += [I(f"v_mul_f32 v{16+e}, v{20+e}, v{16+e}") for e in range(4)]
    out += L("v_cvt_pk_bf16_f32 v16, v16, v17\nv_cvt_pk_bf16_f32 v17, v18, v19")
    return out
def s8_down():
    pre = L(f"""
    v_lshrrev_b32 v28, 2, v0
    v_lshlrev_b32 v28, 8, v28
    v_and_b32 v29, 3, v0
    v_lshl_add_u32 v28, v29, 3, v28
    v_add_u32 v28, s{sLD}, v28
    """) + [WAITV("HD")] + [I(f"ds_read_b64_tr_b16 a[{176+2*m}:{177+2*m}], v28 offset:{32*m}") for m in range(7)] + L(f"""
    """)
    adr = L(f"""
    v_and_b32 v29, 15, v0
    v_mul_u32_u24 v30, 1792, v29
    v_lshrrev_b32 v31, 4, v0
    v_lshl_add_u32 v30, v31, 4, v30
    v_lshrrev_b32 v29, 1, v29
    v_min_u32 v29, 1, v29
    v_lshl_or_b32 v30, v29, 29, v30
    v_or_b32 v30, s{sMK}, v30
    s_mul_i32 s89, s{sFS}, 3584
    s_mul_i32 s64, s{sWAVE}, 448
    s_add_u32 s89, s89, s64
    s_add_u32 s89, s89, {WS_Y}
    """)
    mm = [I(f"v_mfma_f32_16x16x16_bf16 a[{208+4*m}:{211+4*m}], a[{176+2*m}:{177+2*m}], v[16:17], 0") for m in range(7)]
    st = [I(f"buffer_store_dwordx4 a[{208+4*m}:{211+4*m}], v30, {WS}, s89 offen offset:{64*m} sc1", tag="KVST") for m in range(7)]
    return pre, mm, adr, st
def s9_flag():
    return L(f"s_lshl_b32 s89, s{sFS}, 2\ns_add_u32 s89, s89, {WS_FH}\nv_mov_b32 v29, 1\nv_or_b32 v28, s{sMK}, v1") + [flag_store(89, 28, 29)]
```

```python
from common import *

class KR:
    S_WS, S_DBG, S_W, S_C, S_WQ, S_X = 8, 12, 16, 48, 52, 56
    sWAVE = 20
    sWOFF, sCOFF, sM0W, sM0C, sT, sOOFF, sQOFF, sWQOFF, sXOFF, sLOOP, sSC = 21, 22, 23, 24, 3, 93, 4, 28, 29, 30, 5
    vWR, vCR, vST, vWD, vCD, vXD, vWR2, vT = 1, 5, 7, 8, 12, 16, 20, 24
K = KR
WSLOT = [0, 16384, 32768, 49152, 131072, 147456]

def kacc(y, x):
    return ("a", 4 * x) if y == 0 else ("v", 32 + 4 * ((y - 1) * 8 + x))
def rr(t): return R(t[0], t[1], 4)
def wfrag(buf, x, ks): return 32 + buf * 64 + (x * 2 + ks) * 4
def cfrag(buf, ks): return 160 + buf * 8 + ks * 4

NTW = 'nt'
NTC = 99
CFL = ''
def unit(m0base, ldsoff, vreg, srdreg, soff, adv, tag, fl=''):
    return ([I(f"s_add_u32 m0, s{m0base}, {ldsoff}")] +
            [I(f"buffer_load_dwordx4 v{vreg+j}, s[{srdreg}:{srdreg+3}], s{soff} offen offset:{1024*j} {CFL} {NTW if srdreg == K.S_W else fl} lds", tag=tag) for j in range(4)] +
            [I(f"s_add_u32 s{soff}, s{soff}, {adv}") if adv >= 0 else I(f"s_sub_u32 s{soff}, s{soff}, {-adv}")])
def unit_w(u): return unit(K.sM0W, WSLOT[u & 3], K.vWD, K.S_W, K.sWOFF, 128 if u % 2 == 0 else 64 * 8192 - 128, ("W", u & 3))
def unit_c(u): return unit(K.sM0C, (u & 3) * 16384, K.vCD, K.S_C, K.sCOFF, 1024 * 2048 if u % 2 == 0 else -(1024 * 2048 - 128), ("C", u & 3), 'nt' if (u >= NTC if NTC > 0 else u < -NTC) else '')
WQ_SCHED = {27: [0], 28: [1, 4], 29: [2, 5], 30: [3], 31: [6]}
def unit_wq(v):
    order = [x for u in sorted(WQ_SCHED) for x in WQ_SCHED[u]] + list(range(7, 15))
    off = lambda x: (x >> 1) * 64 * 8192 + (x & 1) * 128
    return unit(K.sM0W, WSLOT[v % 6], K.vWD, K.S_WQ, K.sWQOFF, off(order[order.index(v) + 1]) - off(v), ("W", v % 6))
X6LOW = True
def unit_x(t): return unit(K.sM0C, (t & 3) * 16384, K.vXD, K.S_X, K.sXOFF, 128, ("C", t & 3)) if (t < 6 or not X6LOW) else unit(K.sM0W, 32768, K.vXD, K.S_X, K.sXOFF, 128, ("C", 2))

def rd_w(buf, slot, x, ks, j):
    r = wfrag(buf, x, ks) + 2 * j
    va, base = (K.vWR, WSLOT[slot]) if slot < 4 else (K.vWR2, WSLOT[slot] - 131072)
    return I(f"ds_read_b64_tr_b16 a[{r}:{r+1}], v{va + (x & 3)} offset:{base + (32 * ks + 4 * j) * 256}")
def rd_w_unit(buf, slot, hx):
    return [rd_w(buf, slot, x, ks, j) for x in range(4 * hx, 4 * hx + 4) for ks in range(2) for j in range(2)]
def rd_c(buf, slot, y4, ks):
    r = cfrag(buf, ks)
    return I(f"ds_read_b128 a[{r}:{r+3}], v{K.vCR + ks} offset:{slot * 16384 + y4 * 2048}")

def weave_units(g, units, lo, hi):
    n = sum(len(u) - 2 for u in units)
    if not n: return
    step = (hi - lo) / float(n)
    x = 0; kk = lo - 1
    link([i for u in units for i in u])
    for un in units:
        k = max(int(lo + x * step), kk + 1)
        k = g.fit_s(max(k - 1, kk + 1 if x else 0), un[0]) + 1
        for j in range(len(un) - 2):
            kk = g.fit(max(k, int(lo + x * step)), un[1 + j]); k = kk; x += 1
        kk = g.fit_s(kk + 1, un[-1])

def row_mfmas(accf, y, wbuf, cbuf, vtype, first):
    ms = []
    for x in range(8):
        for n, ks in enumerate((0, 1) if x % 2 == 0 else (1, 0)):
            w = R("a", wfrag(wbuf, x, ks), 4); c = R("a", cfrag(cbuf, ks), 4)
            d = rr(accf(y, x))
            cin = "0" if (first and n == 0) else d
            ms.append(mfma(d, c, w, cin) if vtype else mfma(d, w, c, cin))
    return ms

def spread2(g, ins, lo, hi):
    if not PAIR: return g.spread(ins, lo, hi)
    n = len(ins) // 2; k = lo
    for x in range(n):
        k = max(k, lo + x * (hi - lo) // n)
        while g.used(k): k += 1
        g.put(k, ins[2 * x]); g.put(k, ins[2 * x + 1])
PAIR = True
FAST0 = True
def kv_tile(t, vtype, dma, first=False):
    ms = []
    for y in range(8): ms += row_mfmas(kacc, y, t & 1, y & 1, vtype, first)
    g = Gaps(ms)
    for h in (1, 2):
        u = 2 * t + h
        k0 = (4 * h - 1) * 16 - 1
        g.put_s(k0 - 1, WAITV([("C", u & 3), ("W", (u + 2) & 3)], lgkm0=True))
        g.put_s(k0, I("s_barrier"))
    for y in range(8):
        ny = y + 1
        u = 2 * t + (ny >> 2)
        for ks in range(2): g.put(y * 16 + (0 if PAIR else ks), rd_c(ny & 1, u & 3, ny & 3, ks))
        g.put_s(y * 16 + 13, NEED(R("a", cfrag(ny & 1, 0), 8)))
    if first and FAST0:
        for x in range(1, 8, 2): g.put_s(2 * x - 1, NEED(R("a", wfrag(0, x, 0), 16 if x < 7 else 8)))
        g.put_s(14, WAITV([("W", 2)], lgkm0=True)); g.put_s(15, I("s_barrier"))
        spread2(g, rd_w_unit(1, 2, 0), 17, 42)
        spread2(g, rd_w_unit(1, 3, 1), 50, 106)
        a_, b_, c_ = [unit_w(3)], [unit_c(2), unit_w(4)], dma[0] + dma[1]
        link([i for u_ in a_ + b_ + c_ for i in u_])
        weave_units(g, a_, 1, 14); weave_units(g, b_, 17, 46); weave_units(g, c_, 49, 110 if len(c_) > 3 else 90)
        return g
    spread2(g, rd_w_unit((t + 1) & 1, (2 * t + 2) & 3, 0), 1, 42)
    spread2(g, rd_w_unit((t + 1) & 1, (2 * t + 3) & 3, 1), 50, 106)
    short = 2 * t < max(CU)
    weave_units(g, dma[0], 1 if short else 3, 36 if short and len(dma[0]) < 3 else 44)
    weave_units(g, dma[1], 49 if short else 51, 90 if short and len(dma[1]) < 3 else 108)
    return g
CU = (0, 0)
def kv_dma(t):
    out = []
    for u in (2 * t, 2 * t + 1):
        l = []
        if 0 < u <= CU[0]: l.append(unit_c(u + 2))
        if 0 < u <= CU[1]: l.append(unit_w(u + 4))
        if u >= CU[0]: l.append(unit_c(u + 3) if u + 3 < 32 else unit_x(u + 3 - 32))
        if u >= CU[1]:
            if u + 5 < 32: l.append(unit_w(u + 5))
            else: l += [unit_wq(v) for v in WQ_SCHED[u]]
        out.append(l)
    return out

def pack(ta, tb, tmp):
    ins = []
    ra, rb = ta[1], tb[1]
    if ta[0] == "a":
        ins += [I(f"v_accvgpr_read_b32 v{tmp+e}, a{ta[1]+e}") for e in range(4)]; ra = tmp
    if tb[0] == "a":
        ins += [I(f"v_accvgpr_read_b32 v{tmp+4+e}, a{tb[1]+e}") for e in range(4)]; rb = tmp + 4
    ins += L(f"""v_cvt_pk_bf16_f32 v{ra}, v{ra}, v{ra+1}
    v_cvt_pk_bf16_f32 v{ra+1}, v{ra+2}, v{ra+3}
    v_cvt_pk_bf16_f32 v{ra+2}, v{rb}, v{rb+1}
    v_cvt_pk_bf16_f32 v{ra+3}, v{rb+2}, v{rb+3}""")
    return ins, ra
NOST = False
STF = 'sc1'
QSF = 'sc1'
class Storer:
    def __init__(self, sbase, tag, va=None): self.sbase, self.cur, self.tag, self.va = sbase, None, tag, va or K.vST
    def st(self, reg, off):
        ins = []
        if NOST == 1 and self.tag == 'KVST' or (NOST == 2 and self.tag != 'KV4'): return ins
        if self.cur != off >> 12:
            self.cur = off >> 12
            ins.append(I(f"s_add_u32 s{K.sT}, s{self.sbase}, {off & ~0xfff}")); self.base = ins[-1]
        ins.append(I(f"buffer_store_dwordx4 {reg}, v{self.va}, s[{K.S_WS}:{K.S_WS+3}], s{K.sT} offen offset:{off & 0xfff} {QSF if self.tag == 'QST' else STF}", tag=self.tag))
        link([self.base, ins[-1]])
        return ins
def kv_pairs(vtype):
    if not vtype:
        return [((y, 2 * xp), (y, 2 * xp + 1), (y >> 1) * 262144 + (y & 1) * 8192 + xp * 1024) for y in range(8) for xp in range(4)]
    return [((2 * yp, x), (2 * yp + 1, x), yp * 262144 + x * 2048) for yp in range(4) for x in range(8)]
def qacc_map(vtype):
    if not vtype:
        free = [kacc(1, x) for x in range(8)] + [kacc(y, x) for y in range(2, 8) for x in (1, 3, 5, 7)]
    else:
        free = [kacc(y, x) for y in (1, 3, 5, 7) for x in range(8)]
    return lambda y, x: free[y * 8 + x]

VMR = 6
def seq_fit(g, ins, k, pace=0):
    fresh = False
    link(ins)
    lock = g.__dict__.setdefault("lock", set())
    n = -1
    while n + 1 < len(ins):
        n += 1
        i = ins[n]
        if isinstance(i, int):
            if k + i >= g.n: return g.n, ins[n + 1:]
            k += i; fresh = True
            continue
        need = max(i.slots())
        if i.kind == "label":
            (g.ve[k] if (g.ve[k] and g.ve[k][-1] is ins[n - 1]) else g.sc[k]).append(i)
            continue
        m = 0
        while n + m + 1 < len(ins) and not isinstance(ins[n + m + 1], int) and ins[n + m + 1].extra.get("scc") is i: m += 1
        if m:
            j = k if fresh else k + 1
            while True:
                slots = []; q = j
                while q < g.n and len(slots) < m + 1 and not any(writes_scc(x) for x in g.sc[q] + g.ve[q]) and q not in lock:
                    if not g.sc[q]: slots.append(q)
                    q += 1
                if len(slots) == m + 1: break
                if q >= g.n: return g.n, ins[n:]
                j = q + 1
            for x, q in enumerate(slots): g.put_s(q, ins[n + x])
            lock.update(range(slots[0], slots[-1]))
            k = slots[-1]; fresh = False; n += m
            continue
        w = writes_scc(i)
        if i.slots()[0] == 0:
            j = k if fresh else k + 1
            if j < g.n and not g.sc[j] and not (w and j in lock):
                g.put_s(j, i); k = j; fresh = False
                continue
        j = g.vm_slot(k, i, VMR) if VMR else k
        while j < g.n and (g.used(j) + need > 2 or (w and j in lock)): j += 1
        if j >= g.n: return g.n, ins[n:]
        g.put(j, i); k = j; fresh = False
        if pace and i.slots()[0]:
            k = min(j + pace, g.n - 1); fresh = k > j
    return k, []

def q_tile(tau, qacc, last=6):
    ms = []
    for y in range(4): ms += row_mfmas(qacc, y, tau & 1, y & 1, 0, tau == 0)
    g = Gaps(ms)
    if tau < last:
        v0 = 2 * tau + 2
        g.put_s(30, WAITV([("W", (v0 + 1) % 6), ("C", (tau + 1) & 3)], lgkm0=True)); g.put_s(31, I("s_barrier"))
        if tau + 1 < last:
            g.put_s(62, WAITV([("W", (v0 + 2) % 6)], lgkm0=True)); g.put_s(63, I("s_barrier"))
        else:
            g.put_s(62, WAITV([], lgkm0=True)); g.put_s(63, I("s_barrier"))
    for y in range(4):
        if y == 3 and tau == last: continue
        ny = y + 1
        for ks in range(2): g.put(y * 16 + (0 if PAIR else ks), rd_c(ny & 1, (tau + (ny >> 2)) & 3, ny & 3, ks))
        g.put_s(y * 16 + 13, NEED(R("a", cfrag(ny & 1, 0), 8)))
    if tau < last:
        spread2(g, rd_w_unit((tau + 1) & 1, (2 * tau + 2) % 6, 0), 1, 26)
        spread2(g, rd_w_unit((tau + 1) & 1, (2 * tau + 3) % 6, 1), 33, 58)
    u0 = [unit_wq(2 * tau + 7)] if 2 * tau + 7 < 14 else []
    u1 = [unit_wq(2 * tau + 8)] if 2 * tau + 8 < 14 else []
    if tau + 3 < last: u0.append(unit_x(tau + 3))
    if tau == 4: u0.append(unit_x(6))
    if tau == 5 and X6LOW:
        for ks in range(2): g.fit(40, I(f"v_subrev_u32 v{K.vCR + ks}, 0x10000, v{K.vCR + ks}"))
    if len(u0) == 2 and u1: weave_units(g, u0 + u1, 1, 60)
    else: weave_units(g, u0, 1, 28 if tau != 4 else 17); weave_units(g, u1, 34, 58)
    return g

def kv_to_q(vtype, n15, nst, flag_at, flag, stamp, weave, head6, dma6, extra=(), extra_at=8, mid6=()):
    g = kv_tile(15, vtype, kv_dma(15))
    st = Storer(K.sOOFF, "KVST")
    def store(n, reg, off):
        st.tag = "KV1" if n < 8 else ("KVM" if n < 24 and not vtype else "KVST")
        return st.st(reg, off)
    pend = []
    k = 0; carry = []
    prs = kv_pairs(vtype)
    done_at = lambda ta, tb: max(ta[0] * 16 + ta[1] * 2 + 1, tb[0] * 16 + tb[1] * 2 + 1) + 4
    lo = 8 if not vtype else 22
    for n, (ta, tb, off) in enumerate(prs[:n15]):
        ins, reg = pack(kacc(*ta), kacc(*tb), K.vT)
        k, left = seq_fit(g, ins + store(n, R("v", reg, 4), off), max(k, done_at(ta, tb), lo + (n * (118 - lo) // n15 if n15 >= 8 else n * 6))); assert not left
    for grp in (0, 1):
        if grp: k = 0
        for n, (ta, tb, off) in enumerate(prs):
            if n < n15 or (n >= 8) != grp: continue
            ins, reg = pack(kacc(*ta), kacc(*tb), K.vT)
            if n < 8:
                park = 4 * n if vtype else (8 * n if n < 4 else 8 * (n - 4) + 4)
                ins += [I(f"v_accvgpr_write_b32 a{park + e}, v{reg + e}") for e in range(4)]
                pend.append((n, R("a", park, 4), off))
            else:
                pend.append((n, R("v", reg, 4), off))
            if carry: carry += ins; continue
            k, carry = seq_fit(g, ins, max(k, done_at(ta, tb)))
        assert grp or not carry
    pend = pend[:extra_at - n15] + [(None, e, None) for e in extra] + pend[extra_at - n15:]
    def reset(e):
        st.cur = None; return e
    nxt = lambda: (lambda p: reset(p[1]) if p[0] is None else store(*p))(pend.pop(0))
    out = g.flat() + stamp()
    qacc = qacc_map(vtype)
    for tau in range(7):
        g = q_tile(tau, qacc)
        k = 3
        if flag_at == tau - 1: seq_fit(g, list(flag), 0)
        if carry:
            cs = set(map(id, carry))
            k, carry = seq_fit(g, carry, 3 if len(carry) <= 16 else 0); assert not carry
            for q in range(g.n):
                for i in g.ve[q]:
                    if id(i) in cs: assert not any(set(i.reads) & set(g.m[x].writes) for x in range(q + 1)), (q, i.text)
        if tau < 6:
            if tau in weave:
                k2, left = seq_fit(g, list(weave[tau]), 1 if tau != 4 else 17); assert not left, (tau, len(left))
            for n in range(nst[tau]):
                k, left = seq_fit(g, nxt(), max(k, 3 + (58 // nst[tau]) * n)); assert not left
            if flag_at == tau:
                g.sc[62][0].tag = g.sc[62][0].tag + ["KV1"]; assert all(p[0] is None or p[0] >= 8 for p in pend)
            out += g.flat() + stamp()
        else:
            qs = Storer(K.sQOFF, "QST", 13); rest = []
            g.put_s(39, WAITV(["KVM"] if mid6 else [], lgkm0=True)); g.put_s(40, I("s_barrier"))
            assert not mid6 or all(p[0] is None or p[0] >= 24 for p in pend)
            dma6 = list(mid6) + list(dma6)
            k, left = seq_fit(g, list(head6), 0); assert not left and k < 39, k
            k, left2 = seq_fit(g, list(dma6), 41); k = 0
            n6 = nst[6]
            for y in range(4):
                for xp in range(4):
                    ta, tb = qacc(y, 2 * xp), qacc(y, 2 * xp + 1)
                    if rest: ins = [I(f"v_pk_mul_f32 v[{r[1]+e}:{r[1]+e+1}], v[{r[1]+e}:{r[1]+e+1}], s[{K.sSC - 1}:{K.sSC}] op_sel:[0,1] op_sel_hi:[1,1]") for r in (ta, tb) for e in (0, 2)]
                    else: ins = [I(f"v_mul_f32 v{r[1]+e}, s{K.sSC}, v{r[1]+e}") for r in (ta, tb) for e in range(4)]
                    p, reg = pack(ta, tb, K.vT)
                    ins += p + [I(f"ds_write_b128 v14, v[{reg}:{reg+3}] offset:{y * 8192 + xp * 1024}")]
                    if n6: ins += nxt(); n6 -= 1
                    if rest: rest += ins; continue
                    k0 = max(k, y * 16 + 4 * xp + 3 + 4)
                    k, rest = seq_fit(g, ins, k0)
            from att import mix
            out += g.flat() + (mix(rest, left2, 0, len(rest) // 2) if any(i.slots()[0] for i in left2) else left2 + rest)
    return out, [(p[1], p[2]) for p in pend]

def addr_wd():
    out = ""
    for jn in range(4):
        out += f"""
        v_or_b32 v28, {(jn >> 1) << 2}, v25
        v_lshlrev_b32 v28, 1, v28
        v_xor_b32 v28, v28, v24
        v_lshrrev_b32 v29, 3, v28
        v_lshlrev_b32 v29, 8, v29
        v_and_b32 v28, 7, v28
        v_lshl_add_u32 v28, v28, 4, v29
        v_lshl_add_u32 v28, v25, 13, v28
        s_lshl_b32 s64, s{K.sWAVE}, 17
        s_add_u32 s64, s64, {4*jn*8192 - 1024*jn}
        v_add_u32 v{K.vWD+jn}, s64, v28
        """ if jn % 2 == 0 else f"""
        v_add_u32 v{K.vWD+jn}, {4*8192 - 1024}, v{K.vWD+jn-1}
        """
    return out
def addr_cd():
    out = ""
    for jn in range(2):
        out += f"""
        v_add_u32 v28, {4*jn}, v25
        v_and_b32 v29, 7, v0
        v_xor_b32 v28, v28, v29
        v_lshlrev_b32 v28, 4, v28
        v_lshrrev_b32 v29, 3, v0
        v_lshl_add_u32 v30, v29, 11, v28
        s_lshl_b32 s64, s66, 19
        s_lshl_b32 s67, s65, 20
        s_add_u32 s64, s64, s67
        s_add_u32 s64, s64, {8*jn*2048 - 1024*jn}
        v_add_u32 v{K.vCD+jn}, s64, v30
        v_add_u32 v{K.vCD+jn+2}, {16*2048 - 2048}, v{K.vCD+jn}
        """
    return out
def addr_rd():
    out = """
    v_lshrrev_b32 v26, 2, v24
    v_and_b32 v28, 1, v25
    v_lshl_or_b32 v28, v28, 2, v26
    v_lshl_add_u32 v29, v25, 3, v26
    v_lshlrev_b32 v29, 8, v29
    v_and_b32 v30, 3, v0
    v_lshl_add_u32 v29, v30, 3, v29
    """
    for b in range(4):
        out += f"""
        s_lshl_b32 s64, s65, 2
        s_add_u32 s64, s64, {b}
        v_xor_b32 v30, s64, v28
        v_lshl_add_u32 v{K.vWR+b}, v30, 5, v29
        """
    for ks in range(2):
        out += f"""
        v_add_u32 v28, {4*ks}, v25
        v_lshrrev_b32 v29, 1, v24
        v_xor_b32 v28, v28, v29
        v_lshlrev_b32 v28, 4, v28
        v_lshl_add_u32 v28, v24, 7, v28
        s_lshl_b32 s64, s66, 13
        s_add_u32 s64, s64, 65536
        v_add_u32 v{K.vCR+ks}, s64, v28
        """
    return out

def addr_q():
    out = ""
    for jn in range(2):
        out += f"""
        v_lshrrev_b32 v28, 4, v0
        v_add_u32 v28, {4*jn}, v28
        v_and_b32 v29, 7, v0
        v_xor_b32 v28, v28, v29
        v_lshlrev_b32 v28, 4, v28
        v_lshrrev_b32 v29, 3, v0
        v_mul_u32_u24 v29, 896, v29
        s_mul_i32 s64, s{K.sWAVE}, {32*896}
        s_add_u32 s64, s64, {8*jn*896 - 1024*jn}
        v_add3_u32 v{K.vXD+jn}, v29, v28, s64
        v_add_u32 v{K.vXD+jn+2}, {16*896 - 2048}, v{K.vXD+jn}
        """
    for b in range(4): out += f"v_add_u32 v{K.vWR2+b}, 0x20000, v{K.vWR+b}\n"
    return L(out)
```

```python
from common import *
S_WS, S_DBG = 8, 12
sWAVE, sH, sJ = 20, 41, 42
WS = f"s[{S_WS}:{S_WS+3}]"
OOB = 0x20000000

def wave_sum(regs, tmps):
    out = []
    for sh in ("row_ror:8", "row_ror:4", "row_ror:2", "row_ror:1"):
        for r in regs: out.append(I(f"v_add_f32 v{r}, v{r}, v{r} {sh} row_mask:0xf bank_mask:0xf"))
    for sw in ("v_permlane16_swap_b32", "v_permlane32_swap_b32"):
        for r, t in zip(regs, tmps): out.append(I(f"v_mov_b32 v{t}, v{r}"))
        for r, t in zip(regs, tmps): out.append(I(f"{sw} v{t}, v{r}"))
        for r, t in zip(regs, tmps): out.append(I(f"v_add_f32 v{r}, v{t}, v{r}"))
    return out

def sigmoid(r, t):
    return L(f"""v_mul_f32 v{t}, 0xbfb8aa3b, v{r}
    v_exp_f32 v{t}, v{t}
    v_add_f32 v{t}, 1.0, v{t}
    v_rcp_f32 v{r}, v{t}""")

RNT = 'nt'
def r_loads(zero=True):
    return L(f"""
    s_lshl_b32 s64, s2, 2
    s_add_u32 s64, s64, s{sWAVE}
    s_mul_i32 s72, s64, 1792
    """) + [I(f"v_mov_b32 v{40+r}, 0") for r in range(16 if zero else 0)] + L(f"""
    s_mov_b32 exec_hi, 0x00ffffff
    buffer_load_dwordx4 v[40:43], v7, s[56:59], s72 offen {RNT}
    buffer_load_dwordx4 v[44:47], v7, s[56:59], s72 offen offset:896 {RNT}
    buffer_load_dwordx4 v[48:51], v7, s[60:63], 0 offen
    buffer_load_dwordx4 v[52:55], v7, s[68:71], 0 offen
    s_mov_b64 exec, -1
    """)
def r_compute():
    out = [I(f"v_mov_b32 v{56+r}, 0") for r in range(4)]
    for w in range(4):
        for n, (xr, wr) in enumerate(((40, 48), (44, 48), (40, 52), (44, 52))):
            out.append(I(f"v_dot2c_f32_bf16 v{56+n}, v{xr+w}, v{wr+w}"))
    out += wave_sum([56, 57, 58, 59], [60, 61, 62, 63])
    out += L(f"""
    v_cmp_eq_u32 vcc, 0, v0
    v_cndmask_b32 v56, v57, v56, vcc
    v_cndmask_b32 v58, v59, v58, vcc
    s_lshl_b32 s64, s2, 3
    s_lshl_b32 s72, s{sWAVE}, 1
    s_add_u32 s64, s64, s72
    v_add_u32 v60, s64, v0
    v_ashrrev_i32 v61, 31, v56
    v_or_b32 v61, 0x80000000, v61
    v_xor_b32 v61, v61, v56
    v_and_b32 v61, 0xfffff800, v61
    v_sub_u32 v62, 2047, v60
    v_or_b32 v61, v61, v62
    v_max_u32 v61, 1, v61
    """) + sigmoid(58, 59) + L(f"""
    s_lshl_b32 s72, s{sWAVE}, 3
    s_add_u32 s72, s72, {LDS_R}
    v_lshl_add_u32 v60, v0, 2, s72
    s_mov_b64 exec, 3
    ds_write_b32 v60, v61
    ds_write_b32 v60, v56 offset:32
    ds_write_b32 v60, v58 offset:64
    s_mov_b64 exec, -1
    """)
    return out
def r_store(skip):
    return L(f"""
    s_cmp_lg_u32 s{sWAVE}, 0
    s_cbranch_scc1 {skip}
    v_lshlrev_b32 v28, 2, v0
    v_add_u32 v29, {LDS_R}, v28
    s_mov_b32 exec_hi, 0
    ds_read_b32 v29, v29 ; ignore
    s_lshl_b32 s72, s2, 7
    s_add_u32 s72, s72, {WS_R}
    s_waitcnt lgkmcnt(0) ; ignore
    buffer_store_dword v29, v28, {WS}, s72 offen sc1 ; nocount
    s_mov_b64 exec, -1
    s_cmp_ge_u32 s2, 13
    s_cbranch_scc1 {skip}
    v_mov_b32 v32, 0
    v_mov_b32 v33, 0
    v_mov_b32 v34, 0
    v_mov_b32 v35, 0
    s_lshl_b32 s72, s2, 10
    s_add_u32 s72, s72, {WS_FKV}
    buffer_store_dwordx4 v[32:35], v7, {WS}, s72 offen sc1 ; nocount
    {skip}:
    """)
def r_signal(skip):
    return L(f"""
    s_cmp_lg_u32 s{sWAVE}, 0
    s_cbranch_scc1 {skip}
    v_mov_b32 v28, 1
    s_mov_b64 exec, 1
    buffer_atomic_add v28, off, s[{S_DBG}:{S_DBG+3}], 0 sc1 ; nocount
    s_mov_b64 exec, -1
    {skip}:
    """)

def wo_dma():
    out = L(f"""
    v_lshrrev_b32 v28, 5, v0
    v_mul_u32_u24 v28, 896, v28
    v_and_b32 v29, 31, v0
    v_lshl_add_u32 v28, v29, 4, v28
    s_lshr_b32 s64, s{sJ}, 1
    s_lshl_b32 s64, s64, 5
    s_lshl_b32 s72, s{sH}, 8
    s_add_u32 s64, s64, s72
    s_lshl_b32 s72, s{sWAVE}, 3
    s_add_u32 s64, s64, s72
    s_mul_i32 s64, s64, 896
    s_and_b32 s72, s{sJ}, 1
    s_mul_i32 s72, s72, 448
    s_add_u32 s64, s64, s72
    s_lshl_b32 s72, s{sWAVE}, 12
    s_add_u32 m0, s72, 131072
    s_mov_b32 exec_lo, 0x0fffffff
    s_mov_b32 exec_hi, 0x0fffffff
    """)
    for j in range(4):
        out.append(I(f"buffer_load_dwordx4 v28, s[60:63], s64 offen offset:{1024*j} lds", tag="WO"))
        if j < 3: out.append(I(f"s_add_u32 s64, s64, {2*896 - 1024}"))
    out.append(I("s_mov_b64 exec, -1"))
    return out
def wo_setup():
    out = L(f"""
    v_and_b32 v28, 15, v0
    v_lshrrev_b32 v29, 4, v0
    v_lshrrev_b32 v30, 2, v28
    v_lshl_add_u32 v29, v29, 2, v30
    v_lshlrev_b32 v29, 9, v29
    v_and_b32 v28, 3, v28
    v_lshl_add_u32 v29, v28, 4, v29
    s_lshr_b32 s64, s{sWAVE}, 1
    s_lshl_b32 s64, s64, 6
    s_and_b32 s72, s{sWAVE}, 1
    s_lshl_b32 s72, s72, 3
    s_add_u32 s64, s64, s72
    s_add_u32 s64, s64, 131072
    v_add_u32 v31, s64, v29
    s_lshl_b32 s73, s{sH}, 18
    s_lshr_b32 s64, s{sJ}, 1
    s_lshl_b32 s64, s64, 10
    s_add_u32 s73, s73, s64
    s_add_u32 s73, s73, {WS_WO}
    s_and_b32 s74, s{sJ}, 1
    s_mul_i32 s74, s74, 14
    s_add_u32 s74, s74, s{sWAVE}
    """)
    for n in range(4):
        out += L(f"""
        s_add_u32 s64, s74, {4*n}
        s_lshr_b32 s72, s64, 2
        s_lshl_b32 s72, s72, 15
        s_and_b32 s64, s64, 3
        s_lshl_b32 s64, s64, 13
        s_add_u32 s72, s73, s72
        s_add_u32 s{76+n}, s72, s64
        """)
    out += L(f"""
    s_cmp_lt_u32 s{sWAVE}, 2
    s_cselect_b64 s[74:75], -1, 0
    """)
    return out
def wo_reads():
    return [I(f"ds_read_b64_tr_b16 a[{192+4*n+2*j}:{193+4*n+2*j}], v31 offset:{n*128 + j*8192}") for n in range(4) for j in range(2)]
def wo_stores():
    st = [[I(f"buffer_store_dwordx4 a[{176+4*n}:{179+4*n}], v7, {WS}, s{76+n} offen sc1" + (" ; nocount" if n == 3 else ""))] for n in range(4)]
    st[3] = [I("s_mov_b64 exec, s[74:75]")] + st[3] + [I("s_mov_b64 exec, -1")]
    return st

def set_flag(addr_sreg, skip, vt):
    return L(f"""
    s_cmp_lg_u32 s{sWAVE}, 0
    s_cbranch_scc1 {skip}
    v_mov_b32 v{vt}, 1
    s_mov_b64 exec, 1
    buffer_store_dword v{vt}, off, {WS}, s{addr_sreg} sc1 ; nocount
    s_mov_b64 exec, -1
    {skip}:
    """)
def poll_flags(addr_sreg, nl, label, vt, va, sc):
    return L(f"""
    s_mov_b32 s{sc}, {SPIN_MAX}
    s_mov_b32 exec_lo, {hex(((1 << nl) - 1) & 0xffffffff)}
    s_mov_b32 exec_hi, {hex(((1 << nl) - 1) >> 32)}
    {label}:
    buffer_load_dword v{vt}, v{va}, {WS}, s{addr_sreg} offen sc1
    s_sub_u32 s{sc}, s{sc}, 1
    s_cbranch_scc1 {label}_x
    s_waitcnt vmcnt(0)
    v_cmp_ne_u32 vcc, 1, v{vt}
    s_cbranch_vccz {label}_x
    s_sleep 2
    s_branch {label}
    {label}_x:
    s_waitcnt vmcnt(0)
    s_mov_b64 exec, -1
    """)
def poll_count(label, vt, sc, n):
    return L(f"""
    s_mov_b32 s{sc}, {SPIN_MAX}
    {label}:
    buffer_load_dword v{vt}, off, s[{S_DBG}:{S_DBG+3}], 0 sc1
    s_sub_u32 s{sc}, s{sc}, 1
    s_cbranch_scc1 {label}_x
    s_waitcnt vmcnt(0)
    v_cmp_gt_u32 vcc, {n}, v{vt}
    s_cbranch_vccnz {label}
    {label}_x:
    s_waitcnt vmcnt(0)
    """)

def h_keys(vl16):
    return [I(f"buffer_load_dwordx4 v[{64+4*n}:{67+4*n}], v{vl16}, {WS}, s{90 + n // 4} offen offset:{(n & 3) * 1024} sc1") for n in range(8)]
def h_keymin():
    out = L("v_min3_u32 v14, v64, v65, v66")
    for n in range(3, 31, 2): out += L(f"v_min3_u32 v14, v14, v{64+n}, v{65+n}")
    return out + L("v_min_u32 v14, v14, v95\nv_cmp_eq_u32 vcc, 0, v14")
def h_stub(vl16):
    return (L(f"L_hs:\ns_mov_b32 s64, {SPIN_MAX}\nL_hs_l:") + h_keys(vl16) + L("s_waitcnt vmcnt(0)\ns_sub_u32 s64, s64, 1\ns_cbranch_scc1 L_hr") +
            h_keymin() + L("s_cbranch_vccnz L_hs_l\ns_branch L_hr"))
def h_block(vl16, lds=65536, after=()):
    out = L(f"""
    s_load_dwordx4 s[64:67], s[0:1], {A_WG}
    s_load_dwordx2 s[72:73], s[0:1], {A_WD}
    s_load_dwordx2 s[74:75], s[0:1], {A_X}
    s_and_b32 s76, s{sH}, 7
    s_mul_i32 s76, s76, 14
    s_lshr_b32 s77, s{sH}, 3
    s_mul_i32 s77, s77, 7
    s_add_u32 s76, s76, s77
    s_add_u32 s76, s76, s{sJ}
    s_mov_b32 s90, {WS_KEY}
    s_mov_b32 s91, {WS_KEY + 4096}
    """)
    out += h_keys(vl16)
    out += L(f"""
    {srd(52, 64, 448*3584)}
    {srd(56, 66, 448*3584)}
    {srd(60, 72, 1792*896)}
    {srd(68, 74, 2048*896)}
    v_lshrrev_b32 v10, 1, v0
    v_mul_u32_u24 v10, 3584, v10
    v_and_b32 v11, 1, v0
    v_lshl_add_u32 v10, v11, 4, v10
    s_lshl_b32 s77, s76, 5
    s_and_b32 s78, s{sWAVE}, 1
    s_mul_i32 s79, s78, {7 * 32 * 3584}
    s_add_u32 s77, s77, s79
    s_mul_i32 s79, s{sWAVE}, 7168
    s_add_u32 s79, s79, {lds}
    s_cmp_lt_u32 s{sWAVE}, 2
    s_cselect_b32 s52, s52, s56
    s_cselect_b32 s53, s53, s57
    """)
    for n in range(7):
        out += L(f"""s_add_u32 m0, s79, {n * 1024}
        s_nop 0""") + [I(f"buffer_load_dwordx4 v10, s[52:55], s77 offen lds", tag="HW")] + L(f"s_add_u32 s77, s77, {32 * 3584}")
    out += L(f"""
    v_lshlrev_b32 v11, 2, v0
    s_mul_i32 s77, s76, {16 * 896}
    s_mul_i32 s78, s{sWAVE}, 224
    s_add_u32 s77, s77, s78
    s_mov_b32 exec_hi, 0x00ffffff
    """)
    for f in range(16):
        if f and f % 4 == 0: out.append(I(f"s_add_u32 s77, s77, {4 * 896}"))
        out.append(I(f"buffer_load_dword v{100+f}, v11, s[60:63], s77 offen offset:{(f & 3) * 896}"))
    out.append(I("s_mov_b64 exec, -1"))
    out += h_keymin() + L("s_cbranch_vccnz L_hs\nL_hr:")
    out += L("v_max_u32 v12, v64, v65\nv_min_u32 v13, v64, v65")
    for n in range(2, 32):
        out += L(f"v_med3_u32 v13, v12, v13, v{64+n}\nv_max_u32 v12, v12, v{64+n}")
    def merge():
        return L("""v_min_u32 v16, v12, v14
        v_max_u32 v12, v12, v14
        v_max3_u32 v13, v13, v15, v16""")
    for sh in ("row_ror:8", "row_ror:4", "row_ror:2", "row_ror:1"):
        out += L(f"""v_mov_b32 v14, v12 {sh} row_mask:0xf bank_mask:0xf
        v_mov_b32 v15, v13 {sh} row_mask:0xf bank_mask:0xf""") + merge()
    for sw in ("v_permlane16_swap_b32", "v_permlane32_swap_b32"):
        out += L(f"""v_mov_b32 v14, v12
        v_mov_b32 v15, v13
        {sw} v14, v12
        {sw} v15, v13""") + merge()
    out += L(f"""
    v_and_b32 v12, 0x7ff, v12
    v_and_b32 v13, 0x7ff, v13
    v_sub_u32 v12, 2047, v12
    v_sub_u32 v13, 2047, v13
    v_and_b32 v14, 1, v0
    v_cmp_eq_u32 vcc, 0, v14
    v_cndmask_b32 v14, v13, v12, vcc
    v_lshrrev_b32 v17, 3, v14
    v_lshlrev_b32 v17, 4, v17
    v_and_b32 v15, 7, v14
    v_add_lshl_u32 v17, v17, v15, 2
    s_mov_b32 s77, {WS_RG}
    buffer_load_dword v18, v17, {WS}, s77 offen sc1
    v_mul_u32_u24 v15, 896, v14
    v_lshrrev_b32 v16, 4, v0
    v_lshl_add_u32 v15, v16, 4, v15
    """)
    for ks in range(14):
        out.append(I(f"buffer_load_dwordx4 v[{128+4*ks}:{131+4*ks}], v15, s[68:71], 0 offen offset:{64*ks}"))
    out += L(f"""
    v_and_b32 v19, 15, v0
    v_lshrrev_b32 v19, 2, v19
    v_lshl_add_u32 v19, v16, 3, v19
    v_lshlrev_b32 v19, 5, v19
    v_and_b32 v20, 3, v0
    v_lshl_add_u32 v19, v20, 3, v19
    v_add_u32 v19, {lds}, v19
    """) + [WAITV(["HW", "KVST"]), I("s_barrier")] + list(after)
    for mt in range(2):
        for ks in range(14):
            for j in range(2):
                r = mt * 56 + ks * 4 + 2 * j
                out.append(I(f"ds_read_b64_tr_b16 a[{r}:{r+1}], v19 offset:{mt * 14336 + ks * 1024 + j * 128}"))
    for mt in range(2):
        for ks in range(14):
            d = R("v", 24 + 4 * mt, 4)
            out.append(mfma(d, R("v", 128 + 4 * ks, 4), R("a", mt * 56 + ks * 4, 4), d if ks else "0"))
    out += L("""
    v_cvt_pk_bf16_f32 v24, v24, v25
    v_cvt_pk_bf16_f32 v28, v28, v29
    v_lshlrev_b32 v20, 16, v24
    v_and_b32 v21, 0xffff0000, v24
    v_mov_b32 v22, v20
    v_mov_b32 v23, v21
    """) + sigmoid(22, 26) + sigmoid(23, 27) + L("""
    v_mul_f32 v20, v20, v22
    v_mul_f32 v21, v21, v23
    v_cvt_pk_bf16_f32 v24, v20, v21
    v_lshlrev_b32 v20, 16, v24
    v_and_b32 v21, 0xffff0000, v24
    v_lshlrev_b32 v22, 16, v28
    v_and_b32 v23, 0xffff0000, v28
    v_mul_f32 v20, v20, v22
    v_mul_f32 v21, v21, v23
    v_cvt_pk_bf16_f32 v24, v20, v21
    v_lshlrev_b32 v20, 16, v24
    v_and_b32 v21, 0xffff0000, v24
    """)
    out += [I(f"v_mov_b32 v{32+n}, 0") for n in range(4)]
    for f in range(16):
        out += L(f"""v_readlane_b32 s80, v20, {f}
        v_readlane_b32 s81, v21, {f}
        v_lshlrev_b32 v22, 16, v{100+f}
        v_and_b32 v23, 0xffff0000, v{100+f}
        v_fmac_f32 v32, s80, v22
        v_fmac_f32 v33, s80, v23
        v_fmac_f32 v34, s81, v22
        v_fmac_f32 v35, s81, v23""")
    out += L(f"""
    s_mul_i32 s77, s{sWAVE}, 448
    s_mul_i32 s78, s76, 3584
    s_add_u32 s77, s77, s78
    s_add_u32 s77, s77, {WS_Y}
    v_lshlrev_b32 v22, 3, v0
    s_mov_b32 exec_hi, 0x00ffffff
    buffer_store_dwordx2 v[32:33], v22, {WS}, s77 offen sc1
    buffer_store_dwordx2 v[34:35], v22, {WS}, s77 offen offset:1792 sc1
    s_mov_b64 exec, -1
    v_cvt_pk_bf16_f32 v18, v18, v18
    v_and_b32 v18, 0xffff0000, v18
    """) + sigmoid(18, 22) + L(f"""
    v_cvt_pk_bf16_f32 v18, v18, v18
    v_and_b32 v18, 0xffff0000, v18
    s_mov_b32 s77, {WS_SEL}
    s_or_b32 s78, s76, s{sWAVE}
    s_cmp_eq_u32 s78, 0
    s_cselect_b64 exec, 3, 0
    buffer_store_dword v14, v11, {WS}, s77 offen sc1 ; nocount
    buffer_store_dword v18, v11, {WS}, s77 offen offset:8 sc1 ; nocount
    s_mov_b64 exec, -1
    s_lshl_b32 s39, s76, 2
    s_add_u32 s39, s39, {WS_FH}
    """)
    return out

FH0_LOAD = f"buffer_load_dword v24, off, {WS}, s79 sc1"
FOP_LOAD = f"buffer_load_dword v9, v14, {WS}, s46 offen sc1"
EPAR, NE = 0, 7
def sel_a(vl16):
    return L(f"""
    s_mov_b32 s79, {WS_FL}
    {FH0_LOAD}
    v_lshrrev_b32 v0, 4, v{vl16}
    v_and_b32 v14, 15, v0
    v_lshlrev_b32 v14, 2, v14
    v_lshrrev_b32 v11, 4, v0
    {srd(52, 96, 2048*896)}
    {f's_and_b32 s74, s{sH}, 1' if EPAR < 2 else f's_lshr_b32 s74, s{sH}, 3'}
    s_xor_b32 s74, s74, {EPAR & 1}
    s_mul_i32 s67, s74, {14 - 2 * NE}
    s_mul_i32 s74, s74, {NE}
    s_add_u32 s74, s74, s{sWAVE}
    s_lshl_b32 s75, s74, 6
    s_add_u32 s76, s75, 256
    s_add_u32 s67, s67, {NE - 5}
    s_sub_u32 s67, s67, s{sWAVE}
    s_and_b32 s67, s67, {OOB}
    s_or_b32 s76, s76, s67
    v_or_b32 v27, s67, v{vl16}
    v_add_u32 v27, 4096, v27
    """)
def sel_b(tag):
    return L(f"""
    v_cmp_gt_u32 vcc, 4, v24
    s_mov_b32 s65, {WS_SEL}
    s_cbranch_vccnz L_fhs{tag}
    L_fhr{tag}:
    buffer_load_dword v25, v14, {WS}, s65 offen sc1
    """)
def sel_c():
    return L("""
    v_readlane_b32 s84, v25, 0
    v_readlane_b32 s85, v25, 1
    v_mov_b32 v24, 0x3f80
    v_mov_b32 v25, 0x3f800000
    """)
RS = [dict(row=10, off=12, g=15, x=16, b=32, acc=48), dict(row=29, off=28, g=26, x=96, b=80, acc=64)]
OSF = ''
def red_a(vl16):
    out = L(f"""
    s_lshl_b32 s64, s{sJ}, 1
    s_lshr_b32 s65, s{sH}, 3
    s_add_u32 s46, s64, s65
    s_mul_i32 s46, s46, {FSTR}
    s_and_b32 s65, s{sH}, 7
    s_lshl_b32 s65, s65, 7
    s_add_u32 s46, s46, s65
    s_add_u32 s46, s46, {WS_FOP}
    v_and_b32 v14, 31, v0
    v_lshlrev_b32 v14, 2, v14
    {FOP_LOAD}
    s_sub_u32 s64, 15, s64
    {f's_lshr_b32 s72, s{sH}, 1' if EPAR < 2 else f's_and_b32 s72, s{sH}, 7'}
    s_mul_i32 s77, s{sJ}, {16 * OP_HEAD}
    s_mul_i32 s78, s72, 14336
    s_add_u32 s77, s77, s78
    s_lshl_b32 s78, s74, 10
    s_add_u32 s77, s77, s78
    s_add_u32 s77, s77, {WS_OP}
    s_sub_u32 s78, s64, 1
    s_mul_i32 s78, s78, {16 * OP_HEAD}
    s_add_u32 s78, s78, s77
    s_lshl_b32 s73, s72, 4
    s_lshl_b32 s65, s{sJ}, 7
    s_add_u32 s73, s73, s65
    s_lshl_b32 s64, s64, 7
    v_and_b32 v10, 15, v0
    v_add_u32 v10, s73, v10
    v_add_u32 v29, s64, v10
    s_mov_b32 s64, {WS_RG + 64}
    """)
    for r in RS:
        out += L(f"""
        v_mul_u32_u24 v{r['off']}, 896, v{r['row']}
        v_lshl_add_u32 v{r['off']}, v11, 4, v{r['off']}
        v_lshrrev_b32 v13, 4, v{r['row']}
        v_lshlrev_b32 v13, 5, v13
        v_and_b32 v104, 15, v{r['row']}
        v_add_lshl_u32 v13, v13, v104, 2
        buffer_load_dword v{r['g']}, v13, {WS}, s64 offen sc1
        buffer_load_dwordx4 v[{r['x']}:{r['x']+3}], v{r['off']}, s[56:59], s75 offen
        buffer_load_dwordx4 v[{r['x']+4}:{r['x']+7}], v{r['off']}, s[56:59], s76 offen
        """)
    return out + [I(f"v_mov_b32 v{48+n}, 0") for n in range(32)]
def red_b(t):
    r = RS[t]
    return [i for w in range(8) for i in L(f"v_lshlrev_b32 v{r['b']+2*w}, 16, v{r['x']+w}\nv_and_b32 v{r['b']+1+2*w}, 0xffff0000, v{r['x']+w}")] + L(f"""
    v_sub_f32 v13, 1.0, v{r['g']}
    v_cmp_eq_u32 s[80:81], s84, v{r['row']}
    v_cmp_eq_u32 s[82:83], s85, v{r['row']}
    s_or_b64 vcc, s[80:81], s[82:83]
    s_cbranch_vccnz L_moe{t}
    L_moe_ret{t}:
    """) + [I(f"v_mul_f32 v{r['b']+e}, v13, v{r['b']+e}") for e in range(16)]
def red_main(vl16, st=lambda: [], lag=6, early=True, sent=True):
    out = L(f"""
    v_cmp_eq_u32 vcc, 1, v9
    s_mov_b32 s91, {SPIN_MAX}
    s_mov_b32 s69, 0
    s_mov_b32 s70, vcc_lo
    s_mov_b32 s68, vcc_lo
    """)
    ring = [16, 17, 18, 19, 48, 49, 50, 51]; assert lag < 8
    def acc(k):
        d = lambda t: [i for w in range(8) for i in L(f"v_dot2c_f32_bf16 v{RS[t]['acc']+2*w}, v{128+8*(k%16)+w}, v24\nv_dot2c_f32_bf16 v{RS[t]['acc']+1+2*w}, v{128+8*(k%16)+w}, v25")]
        if sent:
            r = 128 + 8 * (k % 16); d0 = d
            tst = f"v_max3_u32 v13, v{r}, v{r+1}, v{r+2}\nv_max3_u32 v104, v{r+3}, v{r+4}, v{r+5}\nv_max3_u32 v13, v13, v{r+6}, v{r+7}\nv_max_u32 v13, v13, v104\nv_cmp_eq_u32 vcc, -1, v13"
            d = lambda t: d0(0) if t == 0 else L(tst + f"\ns_cbranch_vccnz L_rz{k}\nL_rw{k}:") + d0(1)
            far.extend(L(f"""L_rz{k}:
            buffer_load_dwordx4 v[{r}:{r+3}], v{vl16}, {WS}, s{ring[k % 8]} offen sc1
            buffer_load_dwordx4 v[{r+4}:{r+7}], v27, {WS}, s{ring[k % 8]} offen sc1
            s_waitcnt vmcnt(0)
            {tst}
            s_sub_u32 s91, s91, 1
            s_cbranch_scc1 L_rw{k}
            s_cbranch_vccnz L_rz{k}
            s_branch L_rw{k}"""))
        f = 0 if k < 16 else 1
        return ([NEED(R("v", 128 + 8 * (k % 16), 8))] + L(f"s_bitcmp{1 - f}_b32 s69, {k}\ns_cbranch_scc1 L_rx{k}") + d(f) + L(f"L_ry{k}:"),
                L(f"L_rx{k}:") + d(1 - f) + L(f"s_branch L_ry{k}"))
    def fin(t, note=""):
        r = RS[t]; o = []
        for u in range(2):
            o += [I(f"v_fmac_f32 v{r['b']+8*u+e}, v{r['g']}, v{r['acc']+8*u+e}") for e in range(8)]
            o += [I(f"v_cvt_pk_bf16_f32 v{r['x']+4*u+w}, v{r['b']+8*u+2*w}, v{r['b']+1+8*u+2*w}") for w in range(4)]
            o.append(I(f"buffer_store_dwordx4 v[{r['x']+4*u}:{r['x']+3+4*u}], v{r['off']}, s[52:55], s{75+u} offen {OSF}{note}"))
        return o
    far = []
    for k in range(32 + lag):
        if k < 32:
            out += L(f"""s_cmp_lg_u32 s70, 0
            s_cbranch_scc1 L_rk{k}
            s_call_b64 s[36:37], L_rpoll
            L_rk{k}:
            s_ff1_i32_b32 s71, s70
            s_bitset0_b32 s70, s71
            s_cmp_ge_u32 s71, 16
            s_cselect_b32 s72, s78, s77
            s_cselect_b32 s73, {hex(1 << k)}, 0
            s_mul_i32 s71, s71, {OP_HEAD}
            s_add_u32 s{ring[k % 8]}, s71, s72
            buffer_load_dwordx4 v[{128+8*(k%16)}:{131+8*(k%16)}], v{vl16}, {WS}, s{ring[k % 8]} offen sc1
            s_or_b32 s69, s69, s73
            buffer_load_dwordx4 v[{132+8*(k%16)}:{135+8*(k%16)}], v27, {WS}, s{ring[k % 8]} offen sc1""")
        if k in (1, 2): out += red_b(k - 1)
        if k == 31: out += st()
        if k >= lag:
            a_, f_ = acc(k - lag); out += a_; far += f_
        if early and k == 27:
            out += L(f"""s_and_b32 s71, s69, {hex((1 << (k - lag + 1)) - 1)}
            s_bcnt1_i32_b32 s71, s71
            s_cmp_eq_u32 s71, {k - lag + 1 - 16}
            s_cselect_b32 s66, 1, 0
            s_cbranch_scc0 L_rne""") + fin(0, " ; nocount") + L("L_rne:")
    out += st() + L("s_nop 1") + fin(1)
    if early: out += L("s_cmp_eq_u32 s66, 1\ns_cbranch_scc1 L_rdone")
    out += fin(0) + L("L_rdone:")
    return out, far
def red_poll():
    return L(f"""
    L_rpoll0:
    s_sleep 1
    L_rpoll:
    {FOP_LOAD}
    s_waitcnt vmcnt(0)
    v_cmp_eq_u32 vcc, 1, v9
    s_sub_u32 s91, s91, 1
    s_cselect_b32 s70, -1, 0
    s_or_b32 s70, s70, vcc_lo
    s_andn2_b32 s70, s70, s68
    s_cbranch_scc0 L_rpoll0
    s_or_b32 s68, s68, s70
    s_setpc_b64 s[36:37]
    """)
def red_moe():
    out = []
    for t in range(2):
        out += L(f"L_moe{t}:\ns_call_b64 s[36:37], L_moe") + [I(f"v_add_f32 v{RS[t]['b']+e}, v{108+e}, v{RS[t]['b']+e}") for e in range(16)] + L(f"s_mov_b64 exec, -1\ns_branch L_moe_ret{t}")
    out += L(f"""
    L_moe:
    v_min_u32 v104, 27, v0
    v_lshlrev_b32 v104, 2, v104
    s_mov_b32 s64, {WS_FH + 512}
    """) + poll_flags(64, 64, "L_pfy", 105, 104, 65) + L(f"""
    s_or_b64 exec, s[80:81], s[82:83]
    v_mov_b32 v104, 1792
    v_cndmask_b32 v104, v104, 0, s[80:81]
    v_lshl_add_u32 v104, v11, 5, v104
    s_lshl_b32 s88, s75, 1
    s_add_u32 s88, s88, {WS_YF}
    buffer_load_dwordx4 v[108:111], v104, {WS}, s88 offen sc1
    buffer_load_dwordx4 v[112:115], v104, {WS}, s88 offen offset:16 sc1
    buffer_load_dwordx4 v[116:119], v104, {WS}, s88 offen offset:512 sc1
    buffer_load_dwordx4 v[120:123], v104, {WS}, s88 offen offset:528 sc1
    s_waitcnt vmcnt(0)
    s_setpc_b64 s[36:37]
    """)
    return out
def y_reduce():
    out = L(f"""
    L_yred:
    s_lshl_b32 s89, s{sH}, 1
    s_add_u32 s89, s89, s{sWAVE}
    s_cmp_ge_u32 s89, 28
    s_cbranch_scc1 L_yred_ret
    v_lshrrev_b32 v20, 4, v7
    v_lshrrev_b32 v21, 3, v20
    v_mul_u32_u24 v21, {FSTR}, v21
    v_and_b32 v22, 7, v20
    v_lshl_add_u32 v21, v22, 7, v21
    s_mov_b32 s64, {WS_FL}
    s_mov_b32 s88, {WS_FL + 8 * FSTR}
    s_mov_b32 s91, {SPIN_MAX}
    L_yp:
    buffer_load_dword v22, v21, {WS}, s64 offen sc1
    buffer_load_dword v23, v21, {WS}, s88 offen sc1
    s_waitcnt vmcnt(0)
    v_min_u32 v22, v22, v23
    v_cmp_gt_u32 vcc, 4, v22
    s_sub_u32 s91, s91, 1
    s_cbranch_scc1 L_ypx
    s_cbranch_vccnz L_yp
    L_ypx:
    s_cmp_lt_u32 s89, 14
    s_cselect_b32 s64, 8, 12
    s_add_u32 s64, s64, {WS_SEL}
    buffer_load_dword v23, off, {WS}, s64 sc1
    v_lshrrev_b32 v21, 3, v20
    v_mul_u32_u24 v21, 3584, v21
    v_and_b32 v22, 7, v20
    v_lshl_add_u32 v21, v22, 4, v21
    s_lshl_b32 s88, s89, 7
    s_add_u32 s90, s88, {WS_YF}
    s_add_u32 s88, s88, {WS_Y}
    """)
    for n in range(14):
        out += L(f"buffer_load_dwordx4 v[{64+4*n}:{67+4*n}], v21, {WS}, s88 offen sc1\ns_add_u32 s88, s88, {8 * 3584}")
    out += L("s_branch L_yred_ret\nL_yred2:\ns_cmp_ge_u32 s89, 28\ns_cbranch_scc1 L_yred2_ret\nv_mov_b32 v22, 1\ns_waitcnt vmcnt(0)")
    acc = [64 + e for e in range(4)]
    for n in range(1, 14): out += [I(f"v_add_f32 v{a}, v{a + 4 * n}, v{a}") for a in acc]
    out += [I(f"v_add_f32 v{a}, v{a}, v{a} row_ror:8 row_mask:0xf bank_mask:0xf") for a in acc]
    for sw in ("v_permlane16_swap_b32", "v_permlane32_swap_b32"):
        out += [I(f"v_mov_b32 v{a + 4}, v{a}") for a in acc]
        out += [I(f"{sw} v{a + 4}, v{a}") for a in acc]
        out += [I(f"v_add_f32 v{a}, v{a + 4}, v{a}") for a in acc]
    for rep in range(2):
        for p in (64, 66):
            out += L(f"v_cvt_pk_bf16_f32 v21, v{p}, v{p+1}\nv_lshlrev_b32 v{p}, 16, v21\nv_and_b32 v{p+1}, 0xffff0000, v21")
        if rep == 0: out += [I(f"v_mul_f32 v{a}, v23, v{a}") for a in acc]
    out += L(f"""
    s_mov_b64 exec, 0xff
    buffer_store_dwordx4 v[64:67], v7, {WS}, s90 offen sc1
    s_lshl_b32 s89, s89, 2
    s_add_u32 s89, s89, {WS_FH + 512}
    s_mov_b64 exec, 1
    s_waitcnt vmcnt(0)
    buffer_store_dword v22, off, {WS}, s89 sc1
    s_mov_b64 exec, -1
    s_branch L_yred2_ret
    """)
    return out


JUNK = 240
NTT = "nt"
def touch(vaddr, srdreg, soff, imm=0, nt=True):
    return I(f"buffer_load_dword a{JUNK}, v{vaddr}, s[{srdreg}:{srdreg+3}], {soff} offen offset:{imm} {NTT if nt else ('sc1' if srdreg == S_WS else '')}", tag="TOUCH")
def code_addr(v, t):
    return L(f"""
    v_lshl_add_u32 v{t}, v0, 7, s95
    v_and_b32 v{v}, 48, v0
    v_lshl_add_u32 v{v}, v{v}, 24, v{t}
    """)
def code_touch():
    return L(f"""
    s_getpc_b64 s[76:77]
    L_pc0:
    s_and_b32 s77, s77, 0xffff
    s_mov_b32 s78, L_code_end-L_pc0
    s_mov_b32 s79, 0x20000
    s_lshr_b32 s64, s2, 3
    s_lshl_b32 s64, s64, 2
    s_add_u32 s64, s64, s{sWAVE}
    s_lshl_b32 s95, s64, 11
    """) + code_addr(28, 29) + [touch(28, 76, 0, nt=False)]
def kv_touch_setup(sKV):
    return L(f"""
    s_lshr_b32 s64, s{sH}, 3
    s_lshl_b32 s64, s64, 1
    s_add_u32 s64, s64, s{sKV}
    s_lshl_b32 s64, s64, 2
    s_add_u32 s64, s64, s{sWAVE}
    s_lshl_b32 s64, s64, 15
    v_lshrrev_b32 v28, 1, v0
    v_and_b32 v29, 1, v0
    v_lshlrev_b32 v29, 7, v29
    v_lshl_add_u32 v28, v28, 11, v29
    v_add_u32 v24, s64, v28
    v_and_b32 v28, 32, v0
    v_lshl_add_u32 v24, v28, 24, v24
    s_lshr_b32 s64, s{sJ}, 1
    s_lshl_b32 s64, s64, 2
    s_add_u32 s64, s64, s{sWAVE}
    s_lshl_b32 s64, s64, 15
    v_lshrrev_b32 v28, 2, v0
    v_and_b32 v29, 3, v0
    v_lshlrev_b32 v29, 7, v29
    v_lshl_add_u32 v28, v28, 13, v29
    v_add_u32 v25, s64, v28
    v_and_b32 v28, 48, v0
    v_lshl_add_u32 v25, v28, 24, v25
    """)
def kv_touch(sc, sw):
    return [touch(24, sc, 0), touch(25, sw, 0), I("v_add_u32 v24, 256, v24"), I(f"v_add_u32 v25, {128 * 8192}, v25")]
def q_touch(swq, sx, px):
    pre = L(f"""
    s_lshl_b32 s64, s{sJ}, 2
    s_add_u32 s64, s64, s{sWAVE}
    s_mul_i32 s64, s64, {7 * 8192}
    v_lshrrev_b32 v28, 2, v0
    v_and_b32 v29, 3, v0
    v_lshlrev_b32 v29, 7, v29
    v_lshl_add_u32 v28, v28, 13, v29
    v_add_u32 v16, s64, v28
    v_mov_b32 v29, 0x20000000
    v_cmp_gt_u32 vcc, 28, v0
    s_lshl_b32 s64, s{sJ}, 1
    s_lshr_b32 s72, s{sH}, 3
    v_cndmask_b32 v16, v29, v16, vcc
    s_add_u32 s64, s64, s72
    s_lshl_b32 s64, s64, 2
    s_add_u32 s64, s64, s{sWAVE}
    s_mul_i32 s64, s64, 14336
    v_lshl_add_u32 v17, v0, 7, s64
    v_cmp_gt_u32 vcc, 56, v0
    s_nop 1
    v_cndmask_b32 v17, v29, v17, vcc
    s_mov_b32 s67, 7168
    """)
    return pre, [touch(16, swq, 0)] + ([touch(17, sx, 0), touch(17, sx, "s67")] if px else [])
def h_touch_srd():
    return L(f"""
    s_load_dwordx4 s[80:83], s[0:1], {A_WG}
    s_load_dwordx2 s[84:85], s[0:1], {A_WD}
    """)
def h_touch():
    return L(f"""
    s_lshr_b32 s64, s2, 3
    s_lshl_b32 s64, s64, 2
    s_add_u32 s64, s64, s{sWAVE}
    s_cmp_lt_u32 s64, 64
    s_cselect_b32 s72, s80, s82
    s_cselect_b32 s73, s81, s83
    {srd(60, 72, 448*3584)}
    {srd(68, 84, 1792*896)}
    s_and_b32 s72, s64, 63
    s_mul_i32 s72, s72, {7 * 3584}
    s_and_b32 s73, s{sH}, 7
    s_mul_i32 s74, s73, 448
    s_add_u32 s72, s72, s74
    s_and_b32 s72, s72, 0xffffff80
    v_lshrrev_b32 v28, 2, v0
    v_mul_u32_u24 v28, 3584, v28
    v_and_b32 v29, 3, v0
    v_lshl_add_u32 v28, v29, 7, v28
    v_add_u32 v28, s72, v28
    v_mov_b32 v29, 0x20000000
    v_cmp_gt_u32 vcc, 28, v0
    s_mul_i32 s73, s73, {224 * 896}
    s_mul_i32 s64, s64, 1664
    v_cndmask_b32 v30, v29, v28, vcc
    s_add_u32 s64, s64, s73
    v_lshl_add_u32 v28, v0, 7, s64
    v_cmp_gt_u32 vcc, 13, v0
    s_nop 1
    v_cndmask_b32 v31, v29, v28, vcc
    """), [touch(30, 60, 0), touch(31, 68, 0)]


def bg_r_loads():
    return L(f"""
    s_lshl_b32 s64, s2, 2
    s_add_u32 s64, s64, s{sWAVE}
    s_mul_i32 s72, s64, 1792
    v_mov_b32 v28, {OOB}
    v_cmp_gt_u32 vcc, 56, v0
    s_nop 0
    v_cndmask_b32 v28, v28, v7, vcc
    buffer_load_dwordx4 v[16:19], v28, s[56:59], s72 offen
    buffer_load_dwordx4 v[20:23], v28, s[56:59], s72 offen offset:896
    buffer_load_dwordx4 a[176:179], v28, s[60:63], 0 offen
    buffer_load_dwordx4 a[180:183], v28, s[68:71], 0 offen
    """)
def bg_r_compute():
    out = [I(f"v_mov_b32 v{28+r}, 0") for r in range(4)]
    for w in range(4):
        out += L(f"""v_accvgpr_read_b32 v26, a{176+w}
        v_accvgpr_read_b32 v27, a{180+w}
        v_dot2c_f32_bf16 v28, v{16+w}, v26
        v_dot2c_f32_bf16 v29, v{20+w}, v26
        v_dot2c_f32_bf16 v30, v{16+w}, v27
        v_dot2c_f32_bf16 v31, v{20+w}, v27""")
    out += wave_sum([28, 29, 30, 31], [16, 17, 18, 19])
    out += L(f"""
    v_cmp_eq_u32 vcc, 0, v0
    s_lshl_b32 s64, s2, 3
    s_lshl_b32 s72, s{sWAVE}, 1
    v_cndmask_b32 v28, v29, v28, vcc
    v_cndmask_b32 v30, v31, v30, vcc
    s_add_u32 s64, s64, s72
    v_add_u32 v16, s64, v0
    v_ashrrev_i32 v17, 31, v28
    v_or_b32 v17, 0x80000000, v17
    v_xor_b32 v17, v17, v28
    v_and_b32 v17, 0xfffff800, v17
    v_sub_u32 v18, 2047, v16
    v_or_b32 v17, v17, v18
    """) + sigmoid(30, 31) + L(f"""
    s_lshl_b32 s72, s{sWAVE}, 3
    s_add_u32 s72, s72, {LDS_R}
    v_lshl_add_u32 v16, v0, 2, s72
    v_mov_b32 v18, {LDS_R + 128}
    v_cmp_gt_u32 vcc, 2, v0
    s_nop 0
    v_cndmask_b32 v16, v18, v16, vcc
    ds_write_b32 v16, v17
    ds_write_b32 v16, v28 offset:32
    ds_write_b32 v16, v30 offset:64
    """)
    return out
def bg_r_store():
    return L(f"""
    v_and_b32 v16, 31, v0
    v_lshlrev_b32 v16, 2, v16
    v_add_u32 v17, {LDS_R}, v16
    ds_read_b32 v17, v17
    s_cmp_eq_u32 s{sWAVE}, 0
    s_cselect_b32 s64, 0, {OOB}
    v_and_b32 v18, 32, v0
    v_lshl_add_u32 v16, v18, 24, v16
    v_or_b32 v16, s64, v16
    s_lshl_b32 s72, s2, 7
    s_add_u32 s72, s72, {WS_R}
    s_cmp_lt_u32 s2, 14
    s_cselect_b32 s64, s64, {OOB}
    v_or_b32 v18, s64, v7
    v_mov_b32 v20, 0
    v_mov_b32 v21, 0
    v_mov_b32 v22, 0
    v_mov_b32 v23, 0
    s_and_b32 s73, s2, 15
    s_lshl_b32 s73, s73, 10
    s_add_u32 s73, s73, {WS_FKV}
    buffer_store_dword v17, v16, {WS}, s72 offen sc1
    """) + [I(f"buffer_store_dwordx4 v[20:23], v18, {WS}, s73 offen sc1", tag="RST")]
def lane0_wave0(v):
    return L(f"""
    v_or_b32 v{v}, s{sWAVE}, v0
    v_min_u32 v{v}, 1, v{v}
    v_lshlrev_b32 v{v}, 29, v{v}
    """)
def bg_r_signal():
    return lane0_wave0(16) + L("v_mov_b32 v17, 1") + [WAITV("RST"), I(f"buffer_atomic_add v17, v16, s[{S_DBG}:{S_DBG+3}], 0 offen sc1")]
def bg_wo_dma():
    pre = L(f"""
    v_lshrrev_b32 v28, 5, v0
    v_mul_u32_u24 v28, 896, v28
    v_and_b32 v29, 31, v0
    v_lshl_add_u32 v28, v29, 4, v28
    v_mov_b32 v30, {OOB}
    v_cmp_gt_u32 vcc, 28, v29
    s_lshr_b32 s64, s{sJ}, 1
    s_lshl_b32 s64, s64, 5
    v_cndmask_b32 v28, v30, v28, vcc
    s_lshl_b32 s72, s{sH}, 8
    s_add_u32 s64, s64, s72
    s_lshl_b32 s72, s{sWAVE}, 3
    s_add_u32 s64, s64, s72
    s_mul_i32 s64, s64, 896
    s_and_b32 s72, s{sJ}, 1
    s_mul_i32 s72, s72, 448
    s_add_u32 s67, s64, s72
    v_add_u32 v29, {2*896 - 1024}, v28
    v_add_u32 v30, {2*(2*896 - 1024)}, v28
    v_add_u32 v31, {3*(2*896 - 1024)}, v28
    """)
    un = [I("s_add_u32 m0, s23, 131072")] + [I(f"buffer_load_dwordx4 v{28+j}, s[60:63], s67 offen offset:{1024*j} nt lds", tag="WO") for j in range(4)] + [I("s_nop 0")]
    return pre, un
def bg_wo_finish():
    out = wo_setup()[:-2] + L(f"""
    s_cmp_lt_u32 s{sWAVE}, 2
    s_cselect_b32 s75, 0, {OOB}
    """) + wo_reads()
    st = [I(f"buffer_store_dwordx4 a[{192+4*n}:{195+4*n}], v{24 if n == 3 else 7}, {WS}, s{76+n} offen sc1", tag="KVST") for n in range(4)]
    return out, [I('v_or_b32 v24, s75, v7')] + st
def c_touch_setup():
    return L(f"""
    s_lshl_b32 s64, s2, 2
    s_add_u32 s64, s64, s{sWAVE}
    s_lshl_b32 s64, s64, 12
    v_lshrrev_b32 v28, 2, v0
    v_and_b32 v29, 3, v0
    v_lshlrev_b32 v29, 7, v29
    v_lshl_add_u32 v28, v28, 11, v29
    v_add_u32 v24, s64, v28
    v_and_b32 v28, 56, v0
    v_lshl_add_u32 v24, v28, 24, v24
    """)
def w_touch_setup(t0, t1):
    return L(f"""
    s_and_b32 s64, s{sJ}, 7
    s_lshl_b32 s64, s64, 2
    s_add_u32 s64, s64, s{sWAVE}
    s_lshl_b32 s64, s64, 14
    v_lshrrev_b32 v{t0}, 2, v0
    v_and_b32 v{t1}, 3, v0
    v_lshlrev_b32 v{t1}, 7, v{t1}
    v_lshl_add_u32 v{t0}, v{t0}, 13, v{t1}
    v_add_u32 v25, s64, v{t0}
    v_and_b32 v{t0}, 56, v0
    v_lshl_add_u32 v25, v{t0}, 24, v25
    """)
def w_touch(sw, t):
    return [I(f"s_mov_b32 s65, {t * 64 * 8192}"), touch(25, sw, "s65")]
def c_touch(sc, quarter):
    return [touch(24, sc, 0, quarter * 512, nt=False)]


def z_store():
    return L(f"""
    s_lshl_b32 s64, s{sJ}, 4
    s_add_u32 s64, s64, s{sH}
    s_lshl_b32 s64, s64, 2
    s_add_u32 s64, s64, s{sWAVE}
    s_cmp_lt_u32 s64, {NZERO}
    s_cselect_b32 s39, 0, {OOB}
    s_min_u32 s64, s64, {NZERO}
    s_lshl_b32 s38, s64, 2
    s_max_u32 s67, s64, 8
    s_sub_u32 s67, s67, 8
    s_mul_i32 s67, s67, {FSTR - 1024}
    s_lshl_b32 s64, s64, 10
    s_add_u32 s64, s64, s67
    s_add_u32 s73, s64, {WS_KEY}
    v_or_b32 v64, s39, v7
    v_mov_b32 v68, 0
    v_mov_b32 v69, 0
    v_mov_b32 v70, 0
    v_mov_b32 v71, 0
    """) + [I(f"buffer_store_dwordx4 v[68:71], v64, {WS}, s73 offen offset:{1024 * n} sc1", tag="ZST") for n in range(3)]
def z_signal():
    return L(f"""
    v_min_u32 v16, 1, v0
    v_lshlrev_b32 v16, 29, v16
    v_or_b32 v16, s39, v16
    v_mov_b32 v17, 1
    """) + [WAITV("ZST"), I(f"buffer_store_dword v17, v16, s[{S_DBG}:{S_DBG+3}], s38 offen sc1")]
def z_load():
    return L(f"""
    v_min_u32 v16, {NZERO - 1}, v0
    v_lshlrev_b32 v16, 2, v16
    buffer_load_dword v17, v16, s[{S_DBG}:{S_DBG+3}], 0 offen sc1
    """)
def z_check(tag):
    return L(f"""
    v_cmp_ne_u32 vcc, 1, v17
    s_nop 0
    s_cbranch_vccnz L_zs{tag}
    L_zr{tag}:
    """)
def spin_stub(label, ret, load, vt, sc=64, cmp_="v_cmp_ne_u32 vcc, 1, v{vt}"):
    return L(f"""
    {label}:
    s_mov_b32 s{sc}, {SPIN_MAX}
    {label}_l:
    s_sleep 2
    {load}
    s_sub_u32 s{sc}, s{sc}, 1
    s_cbranch_scc1 {label}_x
    s_waitcnt vmcnt(0)
    {cmp_.format(vt=vt)}
    s_cbranch_vccnz {label}_l
    {label}_x:
    s_waitcnt vmcnt(0)
    s_branch {ret}
    """)
def z_stub(tag):
    return spin_stub(f"L_zs{tag}", f"L_zr{tag}", f"buffer_load_dword v17, v16, s[{S_DBG}:{S_DBG+3}], 0 offen sc1", 17)
def rg_store():
    return L(f"""
    v_and_b32 v20, 31, v0
    v_lshlrev_b32 v20, 2, v20
    v_add_u32 v21, {LDS_R}, v20
    ds_read_b32 v19, v21
    ds_read_b32 v21, v21 offset:32
    s_cmp_eq_u32 s{sWAVE}, 0
    s_cselect_b32 s64, 0, {OOB}
    v_mov_b32 v22, {OOB}
    v_or_b32 v20, s64, v20
    v_cmp_gt_u32 vcc, 8, v0
    s_lshl_b32 s72, s2, 6
    s_add_u32 s72, s72, {WS_RG}
    v_cndmask_b32 v18, v22, v20, vcc
    v_cmp_gt_u32 vcc, 16, v0
    s_nop 0
    s_nop 0
    v_cndmask_b32 v20, v22, v20, vcc
    """) + [I(f"buffer_store_dword v21, v20, {WS}, s72 offen sc1", tag="RST")]
def key_store():
    return L(f"""
    s_lshl_b32 s72, s2, 5
    s_add_u32 s72, s72, {WS_KEY}
    """) + [WAITV("RST"), I(f"buffer_store_dword v19, v18, {WS}, s72 offen sc1")]
def lanes8(v):
    return f"v_and_b32 v28, 56, v0\nv_lshl_add_u32 v{v}, v28, 24, v{v}"
def wo_touch():
    pre = L(f"""
    s_lshr_b32 s64, s{sJ}, 1
    s_lshl_b32 s64, s64, 5
    s_lshl_b32 s72, s{sH}, 8
    s_add_u32 s64, s64, s72
    s_lshl_b32 s72, s{sWAVE}, 3
    s_add_u32 s64, s64, s72
    s_mul_i32 s64, s64, 896
    s_and_b32 s72, s{sJ}, 1
    s_mul_i32 s72, s72, 384
    s_add_u32 s64, s64, s72
    v_bfe_u32 v28, v0, 2, 2
    v_mul_u32_u24 v28, 896, v28
    v_and_b32 v29, 3, v0
    v_lshl_add_u32 v28, v29, 7, v28
    v_add_u32 v23, s64, v28
    v_and_b32 v28, 48, v0
    v_lshl_add_u32 v23, v28, 24, v23
    """)
    return pre, [[touch(23, 60, 0, n * 3584)] for n in range(2)]
def q_touch2(swq):
    pre = L(f"""
    s_lshl_b32 s64, s{sJ}, 2
    s_add_u32 s64, s64, s{sWAVE}
    s_mul_i32 s64, s64, {7 * 8192}
    v_bfe_u32 v28, v0, 2, 2
    v_and_b32 v29, 3, v0
    v_lshlrev_b32 v29, 7, v29
    v_lshl_add_u32 v28, v28, 13, v29
    v_add_u32 v23, s64, v28
    v_and_b32 v28, 48, v0
    v_lshl_add_u32 v23, v28, 24, v23
    """)
    return pre, [[touch(23, swq, 0), I(f"v_add_u32 v23, {4 * 8192}, v23")], [touch(23, swq, 0)]]
def h_touch2():
    pre = L(f"""
    s_lshr_b32 s64, s2, 3
    s_lshl_b32 s64, s64, 2
    s_add_u32 s64, s64, s{sWAVE}
    s_cmp_lt_u32 s64, 64
    s_cselect_b32 s72, s80, s82
    s_cselect_b32 s73, s81, s83
    {srd(60, 72, 448*3584)}
    {srd(68, 84, 1792*896)}
    s_and_b32 s72, s64, 63
    s_mul_i32 s72, s72, {7 * 3584}
    s_and_b32 s73, s{sH}, 7
    s_mul_i32 s74, s73, 448
    s_add_u32 s72, s72, s74
    s_and_b32 s72, s72, 0xffffff80
    v_bfe_u32 v28, v0, 2, 2
    v_mul_u32_u24 v28, 3584, v28
    v_and_b32 v29, 3, v0
    v_lshl_add_u32 v28, v29, 7, v28
    v_add_u32 v21, s72, v28
    v_and_b32 v28, 48, v0
    v_lshl_add_u32 v21, v28, 24, v21
    s_mul_i32 s73, s73, {224 * 896}
    s_mul_i32 s64, s64, 1664
    s_add_u32 s64, s64, s73
    v_lshl_add_u32 v22, v0, 7, s64
    v_lshl_add_u32 v22, v28, 24, v22
    """)
    return pre, [[touch(21, 60, 0), I(f"v_add_u32 v21, {4 * 3584}, v21")], [touch(21, 60, 0)], [touch(22, 68, 0)]]

def x_touch():
    pre = L(f"""
    s_xor_b32 s64, s2, 1
    s_lshl_b32 s64, s64, 2
    s_add_u32 s64, s64, s{sWAVE}
    s_mul_i32 s64, s64, 1792
    v_lshl_add_u32 v23, v0, 7, s64
    v_mov_b32 v28, {OOB}
    v_cmp_gt_u32 vcc, 14, v0
    s_nop 0
    s_nop 0
    v_cndmask_b32 v23, v28, v23, vcc
    """)
    return pre, [[touch(23, 56, 0, nt=False)]]

def x_touch2():
    pre = L(f"""
    s_lshl_b32 s64, s{sJ}, 1
    s_lshr_b32 s72, s{sH}, 3
    s_add_u32 s64, s64, s72
    s_lshl_b32 s64, s64, 2
    s_add_u32 s64, s64, s{sWAVE}
    s_mul_i32 s64, s64, 14336
    v_lshl_add_u32 v25, v0, 7, s64
    v_mov_b32 v28, {OOB}
    v_cmp_gt_u32 vcc, 28, v0
    s_nop 0
    s_nop 0
    v_cndmask_b32 v25, v28, v25, vcc
    """)
    return pre, [[touch(25, 56, 0, nt=False), I("v_add_u32 v25, 3584, v25")] for n in range(4)]
def flag_store(addr_sreg, va, vt, tag=None):
    return I(f"buffer_store_dword v{vt}, v{va}, {WS}, s{addr_sreg} offen sc1", tag=tag)

def q_touch3(swq):
    pre = L(f"""
    s_and_b32 s64, s{sJ}, 7
    s_lshl_b32 s64, s64, 2
    s_add_u32 s64, s64, s{sWAVE}
    s_mul_i32 s64, s64, {14 * 8192}
    v_bfe_u32 v28, v0, 2, 2
    v_and_b32 v29, 3, v0
    v_lshlrev_b32 v29, 7, v29
    v_lshl_add_u32 v28, v28, 13, v29
    v_add_u32 v23, s64, v28
    v_and_b32 v28, 48, v0
    v_lshl_add_u32 v23, v28, 24, v23
    """)
    return pre, [[touch(23, swq, 0, nt=False), I(f"v_add_u32 v23, {(4 if n < 2 else 2) * 8192}, v23")] for n in range(4)]


def wo2_dma():
    pre = L(f"""
    s_and_b32 s64, s{sJ}, 7
    s_lshl_b32 s72, s{sH}, 3
    s_add_u32 s64, s64, s72
    s_lshl_b32 s64, s64, 2
    s_add_u32 s64, s64, s{sWAVE}
    s_mul_i32 s67, s64, 7168
    s_mul_i32 s86, s{sWAVE}, 7168
    s_add_u32 s86, s86, 131072
    """)
    un = lambda o, n: [I(f"s_add_u32 m0, s86, {o}")] + [I(f"buffer_load_dwordx4 v7, s[60:63], s67 offen offset:{1024*j} nt lds", tag="WO") for j in range(n)] + [I("s_add_u32 s67, s67, 4096")]
    return pre, [un(0, 4), un(4096, 3)]
def wo2_reads():
    return L(f"""
    v_lshrrev_b32 v28, 2, v0
    v_mul_u32_u24 v28, 896, v28
    v_and_b32 v29, 3, v0
    v_lshl_add_u32 v28, v29, 4, v28
    s_lshr_b32 s64, s{sWAVE}, 1
    s_lshl_b32 s64, s64, 6
    s_and_b32 s72, s{sWAVE}, 1
    s_lshl_b32 s72, s72, 3
    s_add_u32 s64, s64, s72
    s_add_u32 s64, s64, 131072
    v_add_u32 v28, s64, v28
    s_lshl_b32 s94, s{sH}, 18
    s_and_b32 s64, s{sJ}, 7
    s_lshl_b32 s64, s64, 10
    s_add_u32 s94, s94, s64
    s_lshl_b32 s64, s{sWAVE}, 13
    s_add_u32 s94, s94, s64
    s_add_u32 s94, s94, {WS_WO}
    """) + [I(f"ds_read_b64_tr_b16 a[{192+4*n+2*j}:{193+4*n+2*j}], v28 offset:{n*128 + j*14336}") for n in range(7) for j in range(2)]
def wo2_stores():
    return [[I(f"s_add_u32 s3, s94, {n * 32768}"), I(f"buffer_store_dwordx4 a[{192+4*n}:{195+4*n}], v7, {WS}, s3 offen sc1", tag="KVST")] for n in range(7)]

def tlb_touch(srds, sel):
    out = L(f"""
    s_lshr_b32 s64, s2, 3
    s_lshl_b32 s64, s64, 2
    s_add_u32 s64, s64, s{sWAVE}
    s_and_b32 s64, s64, {sel}
    s_min_u32 s64, s64, 1
    s_lshl_b32 s64, s64, 29
    v_lshlrev_b32 v28, 21, v0
    v_or_b32 v28, s64, v28
    """)
    return out + [touch(28, r, 0, nt=False) for r in srds]


def r4_loads():
    return L(f"""
    s_lshl_b32 s30, s{sH}, 3
    s_add_u32 s30, s30, s{sJ}
    s_lshl_b32 s64, s30, 2
    s_add_u32 s64, s64, s{sWAVE}
    s_mul_i32 s72, s64, 3584
    v_mov_b32 v32, {OOB}
    v_cmp_gt_u32 vcc, 56, v0
    s_lshl_b32 s67, s64, 2
    s_nop 0
    v_cndmask_b32 v32, v32, v7, vcc
    """) + [I(f"buffer_load_dwordx4 v[{40+4*r}:{43+4*r}], v32, s[56:59], s72 offen offset:{896*r}") for r in range(4)] + L("""
    buffer_load_dwordx4 v[56:59], v32, s[60:63], 0 offen
    buffer_load_dwordx4 v[60:63], v32, s[68:71], 0 offen
    """)
def r4_compute():
    out = [I(f"v_mov_b32 v{72+r}, 0") for r in range(8)]
    for w in range(4):
        for m in range(2):
            for r in range(4): out.append(I(f"v_dot2c_f32_bf16 v{72+4*m+r}, v{40+4*r+w}, v{56+4*m+w}"))
    prs = [(72, 74), (73, 75), (76, 78), (77, 79)]
    out += [I(f"v_permlane32_swap_b32 v{a}, v{b}") for a, b in prs] + [I(f"v_add_f32 v{a}, v{a}, v{b}") for a, b in prs]
    out += L("v_lshrrev_b32 v80, 4, v0\nv_permlane16_swap_b32 v72, v73\nv_permlane16_swap_b32 v76, v77\nv_add_f32 v72, v72, v73\nv_add_f32 v76, v76, v77\nv_add_u32 v81, s67, v80")
    for sh in ("row_ror:8", "row_ror:4", "row_ror:2", "row_ror:1"):
        out += L(f"v_add_f32 v72, v72, v72 {sh} row_mask:0xf bank_mask:0xf\nv_add_f32 v76, v76, v76 {sh} row_mask:0xf bank_mask:0xf")
    out += L(f"""
    v_ashrrev_i32 v82, 31, v72
    v_or_b32 v82, 0x80000000, v82
    v_xor_b32 v82, v82, v72
    v_and_b32 v82, 0xfffff800, v82
    v_sub_u32 v81, 2047, v81
    v_or_b32 v82, v82, v81
    v_max_u32 v82, 1, v82
    """) + sigmoid(76, 77) + L(f"""
    s_lshl_b32 s72, s{sWAVE}, 4
    s_add_u32 s72, s72, {LDS_R}
    v_lshl_add_u32 v80, v80, 2, s72
    ds_write_b32 v80, v82
    ds_write_b32 v80, v72 offset:64
    ds_write_b32 v80, v76 offset:128
    """)
    return out
def rg4_store():
    return L(f"""
    v_and_b32 v20, 31, v0
    v_lshlrev_b32 v20, 2, v20
    v_add_u32 v21, {LDS_R}, v20
    ds_read_b32 v19, v21
    ds_read_b32 v21, v21 offset:64
    s_min_u32 s64, s{sWAVE}, 1
    s_lshl_b32 s64, s64, 29
    v_and_b32 v22, 32, v0
    v_lshl_or_b32 v20, v22, 24, v20
    v_or_b32 v20, s64, v20
    v_and_b32 v22, 16, v0
    v_lshl_or_b32 v18, v22, 25, v20
    s_lshl_b32 s72, s30, 7
    s_add_u32 s72, s72, {WS_RG}
    """) + [6, I(f"buffer_store_dword v21, v20, {WS}, s72 offen sc1", tag="RST")]
def key4_store():
    return L(f"""
    s_lshl_b32 s72, s30, 6
    s_add_u32 s72, s72, {WS_KEY}
    """) + [WAITV("RST"), I(f"buffer_store_dword v19, v18, {WS}, s72 offen sc1")]
```

```python
import sys
from att import *
import kvq, side, hw, asmlib, att
from kvq import K
opt = dict(hpad="0", vpad="0", opad="0", e0="1", eseq="WCW", dtc="3", dtw="12", dtn="1", ld2="1", kvonly="0", bare="0", kvx="", stamp="0", v="1", thr=str(2.0 ** 24), nost="0", pc="2", pk="1", pq="1", ph="1", px="0", fine="0", pw="0", pcq="4", tR="3", tW="5", tQ="9", tH="7", p0="0", ntw="nt", ntt="", two="0", rpos="1", xs_="20", vmr="6", odh="45", n1="8", late="0", sent="0", nl="5", ls="1", r3="0", vm2="1", cu="0,0", pwe="1", tg="113", fsh="7", sg="30", ovr="0", epar="2", ne="8", map="0", dn="9087", l3="0", wi="880", dfl="sc1", cfl="", fast0="1", barx="1", r3x="-", pair="1", wide="1", lhi="48", c2h="30", early="1", lag="6", jy="6", nq="8", qhi="40", fpg="24", f4g="26", nd="8", w0h="30", w0l="30", k15="8", kst="2224a56", v15="4", vst="2204444", kf="0", vf="2", fvg="30", bq="12", ntc="99", hnt="nt", t04="0", osf="sc1", rfp="1", tlb="0", tlbt="1", psf="sc1", qsf="sc1", xs="", xl="0000", xa="50", f1="4", tc="6,13", tl="1", tX="99", rnt="", stf="sc1")
for a in sys.argv[1:]:
    k, v = a.split("="); opt[k] = v
STAMP = opt["stamp"] in "12"
LIGHT = opt["stamp"] == "2"
BARE = opt['bare'] == '1'
kvq.NOST = int(opt["nost"])
kvq.NTW = opt["ntw"]; side.NTT = opt["ntt"]; side.RNT = opt["rnt"]; kvq.STF = opt["stf"]; att.DFL = opt["dfl"].replace("+", " "); kvq.CFL = opt["cfl"].replace("+", " "); hw.MAP = opt["map"]; side.EPAR = int(opt["epar"]); side.NE = int(opt["ne"]); kvq.CU = tuple(int(x) for x in opt["cu"].split(",")); asmlib.VM2 = opt["vm2"] == "1"; asmlib.BARX = opt["barx"] == "1"; kvq.PAIR = opt["pair"] == "1"; kvq.FAST0 = opt["fast0"] == "1"; kvq.VMR = int(opt["vmr"]); kvq.QSF = opt["qsf"]; side.OSF = opt["osf"].replace("+", " "); kvq.NTC = int(opt["ntc"]); hw.HNT = opt["hnt"]
sMODE, sH, sJ, sHS, sSTK, sKV = 40, 41, 42, 43, 44, 45
sMLD, sMPB, sPBV = 39, 92, 4
XS = int(opt['xs_'])
ODD = XS & 1
assert opt['fsh'] == '7'
FSH = int(opt['fsh'])
OVR = opt['ovr'] == '1'
JC = XS // 2
sFL, sVD, sNC = 45, 43, 35
aST = 250
def stamp(t=16, force=False):
    if not STAMP or (LIGHT and not force): return []
    return L(f"""s_memrealtime s[36:37]
    s_memtime s[98:99]
    v_accvgpr_read_b32 v{t}, a{aST}
    v_accvgpr_read_b32 v{t+1}, a{aST+1}
    s_mov_b32 s100, m0
    s_mov_b32 m0, s{sSTK}
    s_waitcnt lgkmcnt(0)
    v_writelane_b32 v{t}, s98, m0
    v_writelane_b32 v{t+1}, s36, m0
    s_add_u32 s{sSTK}, s{sSTK}, 1
    s_mov_b32 m0, s100
    v_accvgpr_write_b32 a{aST}, v{t}
    v_accvgpr_write_b32 a{aST+1}, v{t+1}""")

def stamp0(t=26):
    if not STAMP: return []
    return L(f"""s_waitcnt lgkmcnt(0)
    v_mov_b32 v{t}, 0
    v_mov_b32 v{t+1}, 0
    v_writelane_b32 v{t}, s38, 0
    v_writelane_b32 v{t+1}, s46, 0
    s_mov_b32 s{sSTK}, 1
    v_accvgpr_write_b32 a{aST}, v{t}
    v_accvgpr_write_b32 a{aST+1}, v{t+1}""")
def EXIT():
    return L("s_waitcnt vmcnt(0) lgkmcnt(0)") + stamp(26) + L(f"""
            s_lshl_b32 s29, s2, 2
            s_add_u32 s29, s29, s{A.sWAVE}
            s_lshl_b32 s29, s29, 9
            s_add_u32 s29, s29, {WS_STAMP}
            v_lshrrev_b32 v10, 1, v7
            buffer_store_dwordx2 a[{aST}:{aST+1}], v10, {WSR}, s29 offen
            s_endpgm
            """)
def PK(): return side.kv_touch(K.S_C, K.S_W) if opt['pk'] == '1' else []
MAPS = {"0": f"""
    s_and_b32 s{sH}, s2, 7
    s_lshr_b32 s{sJ}, s2, 3
    s_lshr_b32 s64, s{sJ}, 4
    s_lshl_b32 s64, s64, 3
    s_add_u32 s{sH}, s{sH}, s64
    s_and_b32 s{sJ}, s{sJ}, 15"""}
for par in (0, 1):
    MAPS[str(par + 1)] = f"""
    s_and_b32 s{sH}, s2, 6
    s_lshl_b32 s{sH}, s{sH}, 1
    s_lshr_b32 s64, s2, 6
    s_add_u32 s{sH}, s{sH}, s64
    s_bfe_u32 s{sJ}, s2, 0x30003
    s_and_b32 s64, s2, 1
    s_xor_b32 s64, s64, {1 - par}
    s_lshl_b32 s64, s64, 3
    s_add_u32 s{sJ}, s{sJ}, s64"""
def old_entry(c):
    c.block("entry", f"""
    s_cmp_lt_u32 s2, 256
    s_cbranch_scc1 L_go
    s_endpgm
    L_go:
    {"s_memrealtime s[46:47]" + chr(10) + "s_memtime s[38:39]" if STAMP else ""}
    s_load_dwordx8 s[80:87], s[0:1], {A_X}
    s_load_dwordx4 s[88:91], s[0:1], {A_WUV}
    s_load_dwordx2 s[92:93], s[0:1], {A_WR}
    s_load_dwordx2 s[94:95], s[0:1], {A_GW}
    s_load_dwordx4 s[4:7], s[0:1], {A_DBG}
    v_lshrrev_b32 v24, 6, v0
    v_and_b32 v0, 63, v0
    v_readfirstlane_b32 s{K.sWAVE}, v24
    {MAPS[opt['map']]}
    s_lshr_b32 s{sKV}, s{sJ}, 3
    s_mov_b32 s{sSTK}, 0
    v_accvgpr_write_b32 a{aST}, 0
    v_accvgpr_write_b32 a{aST+1}, 0
    v_and_b32 v24, 15, v0
    v_lshrrev_b32 v25, 4, v0
    v_lshlrev_b32 v{K.vST}, 4, v0
    s_and_b32 s65, s{K.sWAVE}, 1
    s_lshr_b32 s66, s{K.sWAVE}, 1
    {kvq.addr_wd()}
    {kvq.addr_cd()}
    s_mov_b32 s{K.sWOFF}, 0
    s_mov_b32 s{K.sCOFF}, 0
    s_mov_b32 s{K.sWQOFF}, 0
    s_lshl_b32 s{K.sM0W}, s{K.sWAVE}, 12
    s_add_u32 s{K.sM0C}, s{K.sM0W}, 65536
    """, kvq.addr_rd(), side.c_touch_setup(), stamp0(), stamp(26), f"""
    s_cmp_eq_u32 s{sKV}, 0
    s_cselect_b32 s72, s86, s88
    s_cselect_b32 s73, s87, s89
    s_lshl_b32 s74, s{sH}, 9
    s_add_u32 s72, s72, s74
    s_addc_u32 s73, s73, 0
    s_sub_u32 s75, {1024*8192}, s74
    {srd(K.S_W, 72, "s75")}
    s_and_b32 s64, s{sJ}, 7
    s_lshl_b32 s64, s64, 16
    s_add_u32 s72, s82, s64
    s_addc_u32 s73, s83, 0
    s_sub_u32 s75, {2048*2048}, s64
    {srd(K.S_C, 72, "s75")}
    {srd(32, 82, 2048*2048)}
    """, side.c_touch(32, 0) if opt['p0'] == '1' else [], kvq.unit_w(0), kvq.unit_c(0), side.c_touch(32, 0) if opt['p0'] == '2' else [], kvq.unit_w(1),
        side.c_touch(32, 0) if opt['p0'] == '3' else [], stamp(26), f"""
    {srd(K.S_X, 80, 2048*896)}
    {srd(60, 92, 896)}
    {srd(68, 94, 896)}
    """, side.code_touch()[:-1], f"""
    {srd(K.S_WS, 6, 1 << 28)}
    {srd(K.S_DBG, 4, 256)}
    s_add_u32 s72, s84, s74
    s_addc_u32 s73, s85, 0
    s_sub_u32 s75, {448*8192}, s74
    {srd(K.S_WQ, 72, "s75")}
    s_mul_i32 s{K.sXOFF}, s{sJ}, {128*896}
    s_mov_b32 s{K.sSC}, {hex(f2u(LOG2E_16))}
    s_mul_i32 s72, s{sKV}, {WS_V}
    s_mul_i32 s73, s{sH}, {HS}
    s_add_u32 s72, s72, s73
    s_bfe_u32 s64, s{sJ}, 0x20001
    s_lshl_b32 s64, s64, 15
    s_add_u32 s72, s72, s64
    s_lshl_b32 s64, s66, 17
    s_add_u32 s72, s72, s64
    s_and_b32 s67, s{sJ}, 1
    s_cmp_eq_u32 s{sKV}, 0
    s_cselect_b32 s64, 12, 14
    s_cselect_b32 s75, 14, 10
    s_lshl_b32 s67, s67, s75
    s_add_u32 s72, s72, s67
    s_lshl_b32 s64, s65, s64
    s_add_u32 s{K.sOOFF}, s72, s64
    """, side.h_touch_srd(), f"s_load_dwordx2 s[96:97], s[0:1], {A_OUT}", f"s_cmp_eq_u32 s{sKV}, 0\ns_cbranch_scc0 L_kv1")
def new_entry(c):
    ct = L(f"""
    s_getpc_b64 s[76:77]
    L_pc0:
    s_lshr_b32 s{sJ}, s2, 3
    s_mov_b32 s79, 0x20000
    s_lshl_b32 s67, s{sJ}, 13
    s_mov_b32 s78, L_code_end-L_pc0
    s_and_b32 s77, s77, 0xffff
    v_lshl_add_u32 v31, v0, 5, s67
    """) + [side.touch(31, 76, 0, nt=False)]
    ld1 = f"""
    s_load_dwordx8 s[80:87], s[0:1], {A_X}
    s_load_dwordx4 s[88:91], s[0:1], {A_WUV}
    """
    ld2 = f"""
    s_load_dwordx2 s[92:93], s[0:1], {A_WR}
    s_load_dwordx2 s[94:95], s[0:1], {A_GW}
    s_load_dwordx4 s[4:7], s[0:1], {A_DBG}
    """
    adr = f"""
    v_lshrrev_b32 v24, 6, v0
    v_and_b32 v0, 63, v0
    s_and_b32 s{sH}, s2, 7
    v_readfirstlane_b32 s{K.sWAVE}, v24
    s_lshr_b32 s64, s2, 7
    v_and_b32 v24, 15, v0
    v_lshrrev_b32 v25, 4, v0
    s_lshl_b32 s64, s64, 3
    s_add_u32 s{sH}, s{sH}, s64
    s_and_b32 s{sJ}, s{sJ}, 15
    s_lshr_b32 s{sKV}, s{sJ}, 3
    v_lshlrev_b32 v28, 1, v25
    v_xor_b32 v28, v28, v24
    v_and_b32 v29, 8, v28
    v_and_b32 v28, 7, v28
    v_lshlrev_b32 v28, 4, v28
    v_lshl_add_u32 v28, v29, 5, v28
    v_lshl_add_u32 v28, v25, 13, v28
    s_lshl_b32 s64, s{K.sWAVE}, 17
    v_add_u32 v{K.vWD}, s64, v28
    v_xor_b32 v28, 0x100, v{K.vWD}
    v_add_u32 v{K.vWD+1}, {4*8192 - 1024}, v{K.vWD}
    v_add_u32 v{K.vWD+2}, {8*8192 - 2048}, v28
    v_add_u32 v{K.vWD+3}, {12*8192 - 3072}, v28
    s_and_b32 s65, s{K.sWAVE}, 1
    s_lshr_b32 s66, s{K.sWAVE}, 1
    v_and_b32 v29, 7, v0
    v_xor_b32 v28, v25, v29
    v_lshlrev_b32 v28, 4, v28
    v_lshrrev_b32 v29, 3, v0
    v_lshl_add_u32 v30, v29, 11, v28
    s_lshl_b32 s64, s66, 19
    s_lshl_b32 s67, s65, 20
    s_add_u32 s64, s64, s67
    v_add_u32 v{K.vCD}, s64, v30
    v_xor_b32 v30, 64, v{K.vCD}
    v_add_u32 v{K.vCD+2}, {16*2048 - 2048}, v{K.vCD}
    v_add_u32 v{K.vCD+1}, {8*2048 - 1024}, v30
    v_add_u32 v{K.vCD+3}, {24*2048 - 3072}, v30
    s_mov_b32 s{K.sWOFF}, 0
    s_mov_b32 s{K.sCOFF}, 0
    s_lshl_b32 s{K.sM0W}, s{K.sWAVE}, 12
    s_add_u32 s{K.sM0C}, s{K.sM0W}, 65536
    s_lshl_b32 s74, s{sH}, 9
    s_sub_u32 s{K.S_W+2}, {1024*8192}, s74
    s_mov_b32 s{K.S_W+3}, 0x20000
    s_and_b32 s64, s{sJ}, 7
    s_lshl_b32 s64, s64, 16
    s_sub_u32 s{K.S_C+2}, {2048*2048}, s64
    s_mov_b32 s{K.S_C+3}, 0x20000
    """
    tsetup = f"""
    s_lshr_b32 s67, s{sH}, 3
    s_lshl_b32 s67, s67, 1
    s_add_u32 s67, s67, s{sKV}
    s_lshl_b32 s67, s67, 19
    s_lshl_b32 s72, s{K.sWAVE}, 14
    s_add_u32 s67, s67, s72
    v_bfe_u32 v28, v0, 2, 3
    v_lshlrev_b32 v28, 11, v28
    v_lshrrev_b32 v29, 5, v0
    v_lshl_add_u32 v28, v29, 21, v28
    v_and_b32 v29, 3, v0
    v_lshl_add_u32 v28, v29, 7, v28
    v_add_u32 v26, s67, v28
    s_and_b32 s67, s{sJ}, 7
    s_lshl_b32 s67, s67, 2
    s_add_u32 s67, s67, s{K.sWAVE}
    s_lshl_b32 s67, s67, 14
    v_bfe_u32 v28, v0, 2, 1
    v_lshlrev_b32 v28, 13, v28
    v_lshl_add_u32 v28, v29, 7, v28
    v_lshrrev_b32 v30, 3, v0
    v_lshl_add_u32 v28, v30, 19, v28
    v_add_u32 v27, s67, v28
    v_mov_b32 v28, {side.OOB}
    v_cmp_gt_u32 vcc, {opt['dtc']}, v29
    s_nop 1
    v_cndmask_b32 v26, v28, v26, vcc
    v_subrev_u32 v30, {opt['dtw'][0]}, v30
    v_cmp_gt_u32 vcc, {opt['dtw'][1]}, v30
    s_nop 1
    v_cndmask_b32 v27, v28, v27, vcc
    """ if 't' in opt['eseq'] or 'u' in opt['eseq'] else ""
    base = f"""
    s_cmp_eq_u32 s{sKV}, 0
    s_cselect_b32 s72, s86, s88
    s_cselect_b32 s73, s87, s89
    s_add_u32 s{K.S_W}, s72, s74
    s_addc_u32 s73, s73, 0
    s_and_b32 s{K.S_W+1}, s73, 0xffff
    s_add_u32 s{K.S_C}, s82, s64
    s_addc_u32 s73, s83, 0
    s_and_b32 s{K.S_C+1}, s73, 0xffff
    """
    seq = []; nw = nc = 0
    for ch in opt['eseq']:
        if ch == 'W': seq += kvq.unit_w(nw); nw += 1
        if ch == 'C': seq += kvq.unit_c(nc); nc += 1
        if ch == 't': seq += [side.touch(26, K.S_C, 0, nt=False)]
        if ch == 'u': seq += [side.touch(27, K.S_W, 0, nt=opt['dtn'] == '1')]
    assert (nw, nc) == (2, 1)
    c.block("entry", f"""
    s_cmp_lt_u32 s2, 256
    s_cbranch_scc1 L_go
    s_endpgm
    L_go:
    {"s_memrealtime s[46:47]" + chr(10) + "s_memtime s[38:39]" if STAMP else ""}
    """, ld1, ct if opt['e0'] == '1' else ct[:-1], adr, tsetup, ld2 if opt['ld2'] == '0' else "", base, seq, ld2 if opt['ld2'] == '1' else "", ct[-1:] if opt['e0'] == '2' else [], stamp0(28), stamp(28), f"""
    v_lshlrev_b32 v{K.vST}, 4, v0
    s_mov_b32 s{K.sWQOFF}, 0
    """, kvq.addr_rd(), side.c_touch_setup(), f"""
    {srd(32, 82, 2048*2048)}
    {srd(K.S_X, 80, 2048*896)}
    {srd(60, 92, 896)}
    {srd(68, 94, 896)}
    s_lshl_b32 s95, s{K.sWAVE}, 11
    s_lshr_b32 s64, s2, 3
    s_lshl_b32 s64, s64, 13
    s_add_u32 s95, s95, s64
    {srd(K.S_WS, 6, 1 << 28)}
    {srd(K.S_DBG, 4, 256)}
    s_add_u32 s72, s84, s74
    s_addc_u32 s73, s85, 0
    s_sub_u32 s75, {448*8192}, s74
    {srd(K.S_WQ, 72, "s75")}
    s_mul_i32 s{K.sXOFF}, s{sJ}, {128*896}
    s_mov_b32 s{K.sSC}, {hex(f2u(LOG2E_16))}
    s_mul_i32 s72, s{sKV}, {WS_V}
    s_mul_i32 s73, s{sH}, {HS}
    s_add_u32 s72, s72, s73
    s_bfe_u32 s64, s{sJ}, 0x20001
    s_lshl_b32 s64, s64, 15
    s_add_u32 s72, s72, s64
    s_lshl_b32 s64, s66, 17
    s_add_u32 s72, s72, s64
    s_and_b32 s67, s{sJ}, 1
    s_cmp_eq_u32 s{sKV}, 0
    s_cselect_b32 s64, 12, 14
    s_cselect_b32 s75, 14, 10
    s_lshl_b32 s67, s67, s75
    s_add_u32 s72, s72, s67
    s_lshl_b32 s64, s65, s64
    s_add_u32 s{K.sOOFF}, s72, s64
    """, side.h_touch_srd(), f"s_load_dwordx2 s[96:97], s[0:1], {A_OUT}", f"s_cmp_eq_u32 s{sKV}, 0\ns_cbranch_scc0 L_kv1")
def build_front(c):
    X.update(wide=int(opt['wide']), ls=int(opt['ls']), r3=int(opt['r3']), r3x=opt['r3x'])
    X.update(rp=int(opt['xa'][0]), dp=int(opt['xa'][1]))
    if opt['e0'] == '0': old_entry(c)
    else: new_entry(c)
    pw, pcq = int(opt["pw"]), int(opt["pcq"])
    tR, tW, tQ, tH = int(opt["tR"]), int(opt["tW"]), int(opt["tQ"]), int(opt["tH"])
    for vt in (0, 1):
        frags = [kvq.rd_c(0, 0, 0, 0), kvq.rd_c(0, 0, 0, 1)] + kvq.rd_w_unit(0, 0, 0) + kvq.rd_w_unit(0, 1, 1)
        ct = side.code_touch()[-1:] if opt['e0'] == '0' else []
        out = (side.z_store()[:-3] + (side.r4_loads() + side.z_store()[-3:] if opt['rpos'] == '1' else []) if vt == 0 else L(srd(60, 90, 4096*896)) + side.w_touch_setup(30, 29)) + (ct if opt['pc'] == '1' else []) + kvq.unit_w(2) + kvq.unit_c(1)
        out += [WAITV([("W", 1), ("C", 0), ("W", 0)], lgkm0=True), I("s_barrier")] + stamp(26) + frags + (ct if opt['pc'] == '2' else []) + (side.r4_loads() + side.z_store()[-3:] if opt['rpos'] == '3' and vt == 0 else [])
        if not kvq.FAST0: out += kvq.unit_w(3) + kvq.unit_c(2)
        if vt == 0: out += side.r4_compute()
        if not kvq.FAST0: out += [WAITV([("W", 2)], lgkm0=True), I("s_barrier")] + kvq.unit_w(4)
        else: out += [NEED(R("a", kvq.wfrag(0, 0, 0), 8), R("a", 160, 8))]
        out += stamp(26) if opt['fine'] == '9' else []
        for t in range(15):
            dma = kvq.kv_dma(t)
            if vt == 1 and t == tW:
                pre, uns = side.wo2_dma(); dma[1] = dma[1] + [uns[0]]
            if vt == 1 and t == tW + 1: dma[1] = dma[1] + [uns[1]]
            if vt == 0 and t == 2:
                pre, uns = hw.s1_weights()
            if vt == 0 and 2 <= t <= 8: dma[1] = dma[1] + [uns[t - 2]]
            if vt == 0 and t == 11:
                pre, un = hw.s6_down_dma(); dma[1] = dma[1] + [un]
            if BARE: dma = kvq.kv_dma(t)
            g = kvq.kv_tile(t, vt, dma, first=(t == 0))
            def fit(ins, k, pace=0):
                if BARE: return 0
                k, left = kvq.seq_fit(g, ins, k, pace); assert not left, (t, len(left)); return k
            def mm(ms, k):
                if BARE: return 0
                k |= 1
                for m in ms: g.put(k, m)
                return k
            tch = []
            if pw and vt and t + pw < 16 and t % int(opt['pwe']) == 0:
                for q in range(int(opt['pwe'])): tch += side.w_touch(K.S_W, t + pw + q)
            if pcq and (t + pcq) % 4 == 0 and t + pcq < 16: tch += side.c_touch(32, (t + pcq) // 4)
            if t == 1 and vt == 0: fit(side.z_signal(), 112)
            if t == int(opt['tlbt']) and opt['tlb'] != '0':
                fit(L(srd(68, 96, 2048*896)) + side.tlb_touch([K.S_WS, K.S_W, K.S_WQ, 60, 68], int(opt['tlb'])), 4)
            if t == 2 and vt == 0: assert fit(side.rg4_store(), 4, 1) < 42
            if t == 3: fit(side.z_load(), 50)
            if t == 4:
                k = fit(side.z_check(vt), 112)
                if vt == 0: fit(side.key4_store(), k + 1)
            if vt == 1:
                pre_, tl = side.q_touch3(K.S_WQ)
                if t == tQ: fit(pre_, 60)
                if 0 <= t - tQ < len(tl): tch += tl[t - tQ]
            if vt == 1:
                if t == tW: assert fit(pre, 42) < 80
                if t == tW + 2: g.sc[110][0].tag = g.sc[110][0].tag + ["WO"]
                if t == tW + 3: assert fit(side.wo2_reads(), 2, 2) < 108
            if vt == 0:
                if t == 2: assert fit(pre, 42) < 90
                if t == 7: fit(hw.s2_keys(), 4)
                if t == 8: assert fit(hw.s3_top2(), 10, 1) < 108
                if t == 9: fit(hw.s4_sel(), 4, 1)
                if t == 10:
                    (r0, m0), (r1, m1) = hw.s5_gemm()
                    k = fit([WAITV("HW")] + r0, 50); k = mm(m0, max(k + 6, 78)); k = fit(r1, k + 1); mm(m1, max(k + 6, 110))
                if t == 11: assert fit(pre, 4) < 44
                if t == 12: fit(hw.s7_act(), 2, 1)
                if t == 13:
                    pre, ms, yadr, yst = hw.s8_down(); link(yadr + yst)
                    k = fit(pre, 2); k = mm(ms, max(k + 2, 46))
            if t == 14: assert fit(kvq.addr_q(), 2) < 46
            if str(t) in opt['tc'].split(','): tch += side.code_addr(26, 27) + [side.touch(26, 76, 0, nt=False)]
            fit(tch, int(opt['tg']))
            fl_ = g.flat()
            if t >= 1:
                if 'b' in opt['kvx']: fl_ = [i for i in fl_ if i.op != 's_barrier']
                if 'd' in opt['kvx']: fl_ = [i for i in fl_ if i.kind != 'dma']
                if 'r' in opt['kvx']: fl_ = [i for i in fl_ if i.kind != 'dsr']
                if 'w' in opt['kvx']: fl_ = [i for i in fl_ if i.op != 'WAITV']
            if opt['fine'] == '8' and t < 3:
                f2 = []
                for i in fl_:
                    f2.append(i)
                    if i.op == 's_barrier': f2 += stamp(26)
                fl_ = f2
            out += fl_
            if t in (0, 1, 11, 14) or opt['fine'] == '1': out += stamp(26)
        if opt['kvonly'] == '1': out += EXIT()
        pre1 = L(f"""
        s_mul_i32 s72, s{sH}, {FSTR}
        s_add_u32 s46, s72, {WS_FL}
        s_lshl_b32 s{sFL}, s{sJ}, {FSH}
        s_add_u32 s{sFL}, s{sFL}, s46
        v_mov_b32 v12, 1
        """) + side.lane0_wave0(15)
        setupA = L(f"""
        s_mov_b32 s{A.sTHR}, {hex(f2u(float(opt['thr'])))}
        s_sub_u32 s66, 15, s{sJ}
        s_min_u32 s66, s66, s{sJ}
        s_lshl_b32 s47, s66, {FSH}
        s_add_u32 s47, s47, s46
        s_add_u32 s47, s47, 2048
        s_lshl_b32 s65, s{sH}, 3
        s_add_u32 s65, s65, s66
        s_mul_i32 s{A.sPO}, s65, {PO_STRIDE}
        s_add_u32 s{A.sPO}, s{A.sPO}, {WS_PO}
        s_lshl_b32 s65, s{sJ}, 4
        s_add_u32 s65, s65, s{sH}
        s_mul_i32 s{A.sOP}, s65, {OP_HEAD}
        s_mul_i32 s65, s{A.sWAVE}, 28672
        s_add_u32 s{A.sOP}, s{A.sOP}, s65
        s_add_u32 s{A.sOP}, s{A.sOP}, {WS_OP}
        s_lshl_b32 s{A.sKn2}, s{sH}, 18
        s_add_u32 s{A.sKn2}, s{A.sKn2}, {WS_WO}
        s_add_u32 s{A.sVn}, s{A.sKn2}, 65536
        s_mov_b32 s{A.sREQ}, 0
        s_mov_b32 s{A.sCHK}, {vt}
        s_cmp_eq_u32 s{A.sWAVE}, 0
        s_cselect_b32 s{sMLD}, 0x12, 0
        s_cselect_b32 s{sMPB}, {2 * vt}, 0
        s_mov_b32 s{sPBV}, 4
        s_mov_b32 s{sMODE}, 1
        """)
        setup = L(f"""
        s_lshl_b32 s{A.sM0}, s{A.sWAVE}, 13
        s_mul_i32 s{A.sK}, s{sH}, {HS}
        s_lshl_b32 s{A.sT1}, s{sJ}, 16
        s_add_u32 s{A.sKn1}, s{A.sK}, s{A.sT1}
        s_add_u32 s{sVD}, s{A.sKn1}, {WS_V - WS_K}
        s_min_u32 s{A.sIT}, s{sJ}, {JC - 1}
        s_lshl_b32 s{A.sKcnt}, s{A.sIT}, 1
        s_sub_u32 s{A.sT1}, 15, s66
        s_lshl_b32 s{A.sT1}, s{A.sT1}, 16
        s_add_u32 s{A.sQ}, s{A.sK}, s{A.sT1}
        s_lshl_b32 s{A.sT1}, s{A.sWAVE}, 14
        s_add_u32 s{A.sQ}, s{A.sQ}, s{A.sT1}
        s_add_u32 s{A.sQ}, s{A.sQ}, {WS_Q}
        """) + L((f"""
        s_mov_b32 s{A.sIT}, {(XS - 3) // 2}
        s_cmp_ge_u32 s{sJ}, {JC}
        s_cselect_b32 s{A.sKcnt}, {XS - 2}, 1
        s_cselect_b32 s{A.sKc1}, 2, {XS - 1}
        s_cselect_b32 s{A.sKn1}, s{A.sKn1}, s{A.sK}
        """ if ODD else f"s_mov_b32 s{A.sKc1}, 2") if vt else f"""
        s_add_u32 s{A.sKcnt}, s{A.sKcnt}, 2
        s_mov_b32 s{A.sKc1}, 0x7fff
        {f'''s_cmp_le_u32 s{sJ}, {15 - JC}
        s_cselect_b32 s{A.sKn1}, {side.OOB}, s{A.sKn2}''' if not OVR else f'''
        s_add_u32 s64, s{A.sK}, {(XS - 2) * 32768}
        s_sub_u32 s65, {34 - XS}, s{A.sKcnt}
        s_cmp_le_u32 s{sJ}, {15 - JC}
        s_cselect_b32 s{A.sKn1}, s64, s{A.sKn2}
        s_cselect_b32 s{A.sKc1}, s65, s{A.sKc1}''' if not ODD else f'''
        s_add_u32 s64, s{A.sK}, {(XS - 2) * 32768}
        s_add_u32 s65, s64, 32768
        s_cmp_lt_u32 s{sJ}, {15 - JC}
        s_cselect_b32 s{A.sKn1}, s65, s{A.sKn2}
        s_cmp_le_u32 s{sJ}, {15 - JC}
        s_cselect_b32 s{A.sKc1}, 1, s{A.sKc1}
        s_cselect_b32 s{A.sKn2}, s64, s{A.sKn2}'''}
        """)
        pre3 = L(f"""
        v_min_u32 v25, 15, v0
        v_lshlrev_b32 v25, {FSH}, v25
        """)
        if opt['f1'] == '3': pre3 += [52] + L(F1_LOAD)
        else: setup = setup[:13] + L(F1_LOAD) + setup[13:]
        pre5 = L(f"""
        v_add_u32 v10, s{A.sM0}, v{A.vL16}
        v_add_u32 v11, 0x1000, v10
        v_cmp_eq_u32 vcc, 0, v24
        s_add_u32 s{A.sV}, s{A.sK}, {WS_V - WS_K}
        s_cbranch_vccnz L_f1s{vt}
        L_f1r{vt}:
        """)
        fl = ODD & vt
        kvq.X6LOW = not fl
        k0 = dma_flat(KSLOT[fl], A.sK)
        for i in k0:
            i.text = i.text.replace(f"dwordx4 v{A.vDM0},", "dwordx4 v10,").replace(f"dwordx4 v{A.vDM1},", "dwordx4 v11,"); i.parse()
            pre5 += [i]
        pre5 += adv_k() + L(f"""
        v_mov_b32 v9, v25
        v_lshrrev_b32 v24, 4, v0
        v_lshlrev_b32 v24, 2, v24
        v_and_b32 v25, 15, v0
        v_sub_u32 v24, v24, v25
        s_lshr_b32 s64, s{K.sWAVE}, 1
        s_add_u32 s64, s64, {fl}
        s_lshl_b32 s64, s64, {17 - fl}
        s_and_b32 s65, s{K.sWAVE}, 1
        s_lshl_b32 s65, s65, 12
        s_add_u32 s64, s64, s65
        v_add_u32 v14, s64, v7
        s_sub_u32 s64, s{sJ}, {JC}
        s_and_b32 s{sNC}, s64, {side.OOB}
        v_mov_b32 v{A.vNEG}, 0xff800000
        """) + [I(f"v_cmp_lt_i32 s[{A.sTRI[e]}:{A.sTRI[e]+1}], {-e}, v24") for e in range(4)]
        head6 = L(f"""
        v_mov_b32 v{A.vF0}, v15
        v_add_u32 v{A.vRD1}, 0x10000, v{A.vL16}
        v_mov_b32 v{A.vDM0}, v10
        v_mov_b32 v{A.vDM1}, v11
        s_mov_b64 s[60:61], s[76:77]
        s_mov_b32 s62, s78
        s_mov_b32 s63, 0x20000
        """) + side.code_addr(0, 10)
        dma6 = dma_flat(KSLOT[1 - fl], A.sK) + adv_k()
        o = "k" if vt == 0 else "v"
        body, left = kvq.kv_to_q(vt, int(opt[o + "15"]), [int(x, 16) for x in opt[o + "st"]], int(opt[o + "f"]), [side.flag_store(sFL, 15, 12)],
                                 (lambda: stamp(26)) if opt['fine'] == '2' else (lambda: []),
                                 {0: pre1, 1: setupA, 2: yadr if vt == 0 else [], 3: pre3, 4: setup, 5: pre5}, head6, dma6,
                                 [] if vt else [[i] for i in yst], 24 if OVR else 16,
                                 L("v_mov_b32 v12, 3") + [side.flag_store(sFL, 15, 12)] if OVR and not vt else [])
        assert len(left) <= (16 if vt else 8), len(left)
        st = kvq.Storer(K.sOOFF, "KV4")
        def grp(reg, off):
            st.cur = None; return st.st(reg, off)
        nd = len(left) - 8 if vt else len(left)
        direct = [grp(r, off) for r, off in left[:nd]]
        park = [I(f"v_accvgpr_write_b32 a{128 + 4*n + e}, v{int(r[2:r.index(':')]) + e}") for n, (r, off) in enumerate(left[nd:]) for e in range(4)]
        later = [grp(R("a", 128 + 4 * n, 4), off) for n, (r, off) in enumerate(left[nd:])]
        consts = L(f"v_mov_b32 v{A.vX + 5}, {2 if direct or vt else 4}\nv_or_b32 v{A.vRL + 1}, s{sNC}, v{A.vL16}") + ZZ()
        qst = [[I(f"s_add_u32 s3, s{A.sQ}, {(n >> 2) * 4096}"),
                I(f"buffer_store_dwordx4 a[{4*n}:{4*n+3}], v{A.vRL + 1}, {WSR}, s3 offen offset:{(n & 3) * 1024} sc1", tag="KV3")] for n in range(16)] if vt else []
        nq = int(opt['nq'])
        g = Gaps(qk_mfmas(fl, "zero"))
        weave_reads(g, KSLOT[fl], KSLOT[1 - fl], [("T", KSLOT[1 - fl]), "KVST", "KVM"])
        g.fit(48, side.flag_store(sFL, A.vF0, A.vX + 5))
        weave_dma(g, VSLOT[fl], A.sV, adv_v(), hi=int(opt['w0h']))
        if vt == 0 and OVR:
            consts += L(f"v_min_u32 v{A.vX + 6}, {7 << FSH}, v9"); g.fit(4, I(F2_LOAD))
        if direct + qst[:nq]: put_groups(g, direct + qst[:nq], int(opt['w0l']), 60)
        assert not kvq.seq_fit(g, mask_regs(0), 2 if vt else 0)[1]
        fill_valu(g, park + (SELM() if vt else []), 0, 60)
        xch = [WAITV([("T", KSLOT[fl])], lgkm0=True), I("s_barrier")] + stamp() + rd_batch(KSLOT[fl], 0) + q_from_lds(A.aQ, fl) + consts + [NEED(R("a", 0, 96))] + stamp(26) + (EXIT() if opt['kvonly'] == '2' else [])
        if vt == 1:
            wo = side.wo2_stores()
            for s_ in wo: s_[-1].tag = "KV4"
            later += wo
            mpub = [L(f"s_lshl_b32 s3, s{A.sWAVE}, 10\ns_add_u32 s3, s3, s{A.sPO}\ns_add_u32 s3, s3, {65536 + 4096}") +
                    [I(f"buffer_store_dwordx4 v[{A.vNM + 2}:{A.vNM + 5}], v{A.vRL + 1}, {WSR}, s3 offen sc1", tag="KV3")]]
            null = L(f"s_cmp_lt_u32 s{sJ}, {JC}\ns_cbranch_scc1 L_null\nL_nullr:") if fl else []
            al = mpub + qst[nq:] + later
            dn = [int(x, 36) for x in opt['dn']]; assert sum(dn) == len(al), len(al)
            ws = [al[sum(dn[:n]):sum(dn[:n + 1])] for n in range(4)]
            l3 = dict(tags=["KV3"], post=L(f"v_mov_b32 v{A.vX + 7}, 3") + [side.flag_store(sFL, A.vF0, A.vX + 7)])
            at0 = opt['l3'] == '0'
            assert all(i[-1].tag != "KV3" for w_ in ws[1 if at0 else 3:] for i in w_)
            c.block("kv1", "L_kv1:", out, body, xch, g.flat(), INIT(fl), null, stamp(),
                    win_qk(fl, "L_st8", "L_rt8", groups=ws[0], ghi=int(opt['qhi']))[0],
                    win_pv(fl, groups=ws[1], ghi=int(opt['lhi']), **(l3 if at0 else {})), stamp() if opt['fine'] == '3' else [],
                    win_qk(1 - fl, "L_st9", "L_rt9", groups=ws[2])[0],
                    win_pv(1 - fl, groups=ws[3], ghi=int(opt['lhi']), **({} if at0 else l3),
                           tail=L(f"s_sub_u32 s{A.sIT}, s{A.sIT}, 1\ns_branch {'L_loop_top' if fl else 'L_loop_mid'}")))
        else:
            assert not direct
            c.block("kv0", "L_kv0:", out, body, xch, g.flat(),
                    f"v_cmp_gt_u32 vcc, 3, v{A.vRL}\ns_cbranch_vccnz L_f2s\nL_f2r:" if OVR else "", f"s_cmp_lg_u32 s{sJ}, 0\ns_cbranch_scc1 L_init")
            c.block("mask0", [i for kb in range(4) for qb in range(2) for i in mask_blk(0, kb, qb, inplace=True)], mask_regs(2), PBASE())
            c.block("init", "L_init:", INIT(), stamp(), f"s_cmp_lg_u32 s{A.sIT}, 0\ns_cbranch_scc1 L_loop_mid\ns_branch L_p2")

F1_LOAD = f"buffer_load_dword v24, v25, s[{A.S_WS}:{A.S_WS+3}], s46 offen sc1"
F2_LOAD = f"buffer_load_dword v{A.vRL}, v{A.vX + 6}, s[{A.S_WS}:{A.S_WS+3}], s46 offen sc1"
FL_LOAD = f"buffer_load_dword v{A.vRL}, v9, s[{A.S_WS}:{A.S_WS+3}], s46 offen sc1"
F4_LOAD = f"buffer_load_dword v{A.vX}, v9, s[{A.S_WS}:{A.S_WS+3}], s46 offen sc1"
FP_LOAD = f"buffer_load_dword v{A.vRL}, off, s[{A.S_WS}:{A.S_WS+3}], s47 sc1"
F3_LOAD = f"buffer_load_dword v{A.vRL + 1}, v9, s[{A.S_WS}:{A.S_WS+3}], s46 offen sc1"
WSR = f"s[{A.S_WS}:{A.S_WS+3}]"
ZZ = lambda: [I(f"v_mov_b32 v{A.vP1 + e}, 0") for e in range(4)]
INIT = lambda b=0: zero_O_mfma(mix(init_softmax(b), dma_flat(KSLOT[b], A.sK) + adv_k(), 1, 100), A.vP1)
SELM = lambda: L(f"""
    v_lshrrev_b32 v{A.vT+4}, 8, v{A.vL16}
    v_bfe_u32 v{A.vT+5}, v{A.vL16}, 6, 2
    v_and_b32 v{A.vT+6}, 16, v{A.vL16}
    v_lshlrev_b32 v{A.vT+6}, v{A.vT+6}, v{A.vT+3}
    v_cmp_eq_u32 vcc, v{A.vT+4}, v{A.vT+5}
    v_and_b32 v{A.vT+7}, 32, v{A.vL16}
    v_accvgpr_write_b32 a224, 0
    v_accvgpr_write_b32 a232, -1
    v_accvgpr_write_b32 a233, -1
    v_accvgpr_write_b32 a234, -1
    v_accvgpr_write_b32 a235, -1
    v_cndmask_b32 v{A.vT+6}, 0, v{A.vT+6}, vcc
    v_cmp_eq_u32 vcc, 0, v{A.vT+7}
    v_accvgpr_write_b32 a225, 0
    v_accvgpr_write_b32 a228, 0
    v_cndmask_b32 v{A.vT+4}, 0, v{A.vT+6}, vcc
    v_sub_u32 v{A.vT+5}, v{A.vT+6}, v{A.vT+4}
    v_accvgpr_write_b32 a229, 0
    v_accvgpr_write_b32 a226, v{A.vT+4}
    v_accvgpr_write_b32 a227, v{A.vT+5}
    """.replace("    v_lshrrev_b32", f"    v_mov_b32 v{A.vT+3}, 0x3f80\n    v_lshrrev_b32", 1))
MPRE = lambda: L(f"""
    s_sub_u32 s94, s{sJ}, 8
    s_and_b32 s94, s94, {side.OOB}
    s_add_u32 s94, s94, s{A.sOP}
    s_add_u32 s94, s94, 10240
    s_add_u32 s95, s94, 14336
    """)
PBASE = lambda: L(f"""
    s_lshl_b32 s86, s{A.sWAVE}, 14
    s_add_u32 s86, s86, s{A.sPO}
    s_add_u32 s87, s86, 4096
    s_add_u32 s88, s86, 8192
    s_add_u32 s89, s86, 12288
    s_lshl_b32 s90, s{A.sWAVE}, 10
    s_add_u32 s90, s90, s{A.sPO}
    s_add_u32 s90, s90, 65536
    """)

def build_att(c):
    fs = (lambda: stamp()) if opt['fine'] == '3' else (lambda: [])
    WI.update(nr=int(opt['wi'][0]), nd=int(opt['wi'][1]), noadd=int(opt['wi'][2]))
    X.update(nodma=int(opt['xl'][0]), nobar=int(opt['xl'][1]), rp=int(opt['xl'][2]), dp=int(opt['xl'][3]))
    c.block("loop_top", ".p2align 6\nL_loop_top:", fs(), win_qk(1, "L_st1", "L_rt1", extra=[side.touch(0, 60, 0, nt=False)] if opt['tl'] == '1' else [])[0], win_pv(1))
    c.block("loop_mid", "L_loop_mid:", fs(), win_qk(0, "L_st0", "L_rt0", head=L(f"s_bitcmp1_b32 s{sMLD}, s{A.sCHK}\ns_cbranch_scc1 L_fll\nL_fllr:"))[0],
            win_pv(0, tail=L(f"s_sub_u32 s{A.sIT}, s{A.sIT}, 1\ns_cmp_lg_u32 s{A.sIT}, 0\ns_cbranch_scc1 L_loop_top"), tags=["KV4"],
                   chk=L(f"""v_cmp_gt_u32 vcc, s{A.sREQ}, v{A.vRL}
                   s_cbranch_vccnz L_fls0
                   L_flr0:
                   s_mov_b32 s{A.sREQ}, 0
                   s_bitcmp1_b32 s{sMPB}, s{A.sCHK}
                   s_cbranch_scc1 L_fl4
                   L_fl4r:
                   s_add_u32 s{A.sCHK}, s{A.sCHK}, 1""")))
    X.update(nodma=0, nobar=0, rp=int(opt['xa'][0]), dp=int(opt['xa'][1]))
    pbase = PBASE
    pchk = lambda n: L(f"v_cmp_ne_u32 vcc, 1, v{A.vRL}\ns_cbranch_vccnz L_fps{n}\nL_fpr{n}:")
    ploads = lambda: [I(f"buffer_load_dwordx4 v[{A.vX+4}:{A.vX+7}], v{A.vL16}, {WSR}, s90 offen sc1")] + [
        I(f"buffer_load_dwordx4 a[{A.aX + 4*j}:{A.aX + 4*j + 3}], v{A.vL16}, {WSR}, s{86 + j // 4} offen offset:{(j & 3) * 1024} sc1") for j in range(16)]
    SENT = opt['sent'] == '1'
    n1 = int(opt['n1']); LATE = opt['late'] == '1'
    c.block("p1", "L_p1:", stamp(), f"s_cmp_eq_u32 s{sMODE}, 0\ns_cbranch_scc1 L_final_h\ns_mov_b32 s{A.sV}, s{sVD}", "" if LATE else FP_LOAD,
            win_qk(1, "L_st5", "L_rt5", masked=True, scal=pbase())[0], fs(), "" if LATE else f"s_cmp_ge_u32 s{sJ}, {JC}\ns_cbranch_scc1 L_p1c")
    mark = [[I(f"buffer_store_dwordx4 a[232:235], v{A.vL16}, {WSR}, s{94 + (n >> 2)} offen offset:{(n & 3) * 1024} sc1")] for n in range(8)] if False else []
    c.block("p1n", win_pv(1, scal=mask_regs(2), groups=mark, ghi=60), fs())
    c.block("p2", "L_p2:", f"s_cmp_lt_u32 s{A.sWAVE}, 2\ns_cbranch_scc1 L_e")
    fbar = lambda: stamp(26) + [WAITV([("T", 0)], lgkm0=True), I("s_barrier")] + rd_batch(0, 0)
    c.block("p2b", win_qk(0, "L_st6", "L_rt6", masked=True)[0], fs(), "" if LATE else f"s_cmp_ge_u32 s{sJ}, {JC}\ns_cbranch_scc1 L_p2c")
    c.block("p2n", win_pv(0, groups=[L(F3_LOAD)] + ([L(FP_LOAD)] if LATE else []), glo=int(opt['fpg'])), fbar(), f"s_cmp_le_u32 s{sJ}, {15 - JC}\ns_cbranch_scc1 L_final_k",
            f"s_cmp_ge_u32 s{sJ}, {JC}\ns_cbranch_scc1 L_final_c" if LATE else "")
    lfin = lambda: xlane("v_add_f32", A.vLS, A.vX) + xlane("v_add_f32", A.vLS + 1, A.vX + 1) + L(f"v_rcp_f32 v{A.vRL}, v{A.vLS}\nv_rcp_f32 v{A.vRL+1}, v{A.vLS+1}")
    w2a = lambda: L(f"s_add_u32 s{A.sVn}, s{A.sVn}, 32768")
    w2 = lambda: dma_flat(2, A.sVn) + w2a()
    def cvt_weave(g, extra=None, pre=()):
        k = 0; rest = []
        if pre: k, rest = kvq.seq_fit(g, list(pre), 0, 1)
        for ks in range(8):
            for qb in range(2):
                ins = cvt_ctx(ks, qb) + (extra(ks, qb) if extra else [])
                if rest: rest += ins; continue
                k, rest = kvq.seq_fit(g, ins, max(k, 8 * ks + 5 + 2 * qb + 4))
        return rest
    g = Gaps(pv_mfmas(1))
    weave_reads(g, 0, 3, [("T", 3)])
    weave_dma(g, 2, A.sVn, w2a())
    rest = cvt_weave(g, pre=add_l(1) + lfin())
    c.block("final_o", softmax_half(1, 1))
    c.block("final_o2", "L_final_o2:", check(1, "L_st2"), "L_rt2:", NEED(R("a", Freg(0, 0), 32), R("v", A.vRL, 2)), stamp(), g.flat(), rest, stamp(), "s_branch L_op1")
    def cmf():
        return [mfma(R("v", Oreg(2 * ks + hf, qb), 4), R("a", 226 - 2 * hf, 4), R("a", A.aX + (qb * 8 + ks) * 4, 4), R("v", Oreg(2 * ks + hf, qb), 4))
                for qb in range(2) for ks in range(8) for hf in range(2)]
    ctest = lambda n: [NEED(R("a", A.aX, 64), R("v", A.vX + 4, 4))] + L(f"""
    v_cmp_neq_f32 vcc, v{A.vNM}, v{A.vX+4}
    v_cmp_neq_f32 s[64:65], v{A.vNM+4}, v{A.vX+5}
    s_or_b64 vcc, vcc, s[64:65]
    s_cbranch_vccnz L_cg{n}
    v_add_f32 v{A.vLS}, v{A.vX+6}, v{A.vLS}
    v_add_f32 v{A.vLS+1}, v{A.vX+7}, v{A.vLS+1}
    """)
    cvall = lambda: [i for qb in range(2) for ks in range(8) for i in cvt_ctx(ks, qb)]
    if not LATE:
        g = Gaps(cmf())
        k, left = kvq.seq_fit(g, softmax_half(1, 1), 0)
        pl = ploads(); pl = pl[1:] + pl[:1]
        c.block("p1c", "L_p1c:", pchk(0), win_pv(1, scal=mask_regs(2), groups=[[i] for i in pl[:n1]], ghi=60), fs(), "s_branch L_p2")
        c.block("p2c", "L_p2c:", win_pv(0, groups=[[i] for i in pl[n1:]], ghi=int(opt['c2h'])), fbar(), ctest(0), g.flat(), left, "s_branch L_final_o2")
    else:
        nl = int(opt['nl']); pl = ploads()
        g = Gaps(pv_mfmas(1))
        weave_reads(g, 0, 3, [("T", 3)])
        k = put_groups(g, [[i] for i in pl[nl:]], 0, 36)
        weave_dma(g, 2, A.sVn, w2a(), lo=k + 3, hi=62)
        fill_valu(g, add_l(1), 0, 4)
        c.block("final_c", "L_final_c:", pchk(0), mix(softmax_half(1, 1), pl[:nl], 0), check(1, "L_st10"), "L_rt10:", NEED(R("a", Freg(0, 0), 32)), stamp(26), g.flat())
        g = Gaps(cmf())
        ct = ctest(0); ct[0] = NEED(R("v", A.vX + 4, 4), R("a", A.aX, 32))
        g.put_s(15, NEED(R("a", A.aX + 32, 16))); g.put_s(23, NEED(R("a", A.aX + 48, 16)))
        k, left = kvq.seq_fit(g, lfin(), 0)
        cv = cvall()
        for n in range(16):
            if left: left += cv[4 * n:4 * n + 4]
            else: k, left = kvq.seq_fit(g, cv[4 * n:4 * n + 4], max(k, 2 * n + 5))
        c.block("lc", "L_lc:", ct, g.flat(), left, stamp())
    comb = L(f"""
    L_comb:
    v_sub_f32 v{A.vX}, v{A.vNM}, v{A.vX+4}
    v_sub_f32 v{A.vX+1}, v{A.vNM+4}, v{A.vX+5}
    v_max_f32 v{A.vX}, 0, v{A.vX}
    v_max_f32 v{A.vX+1}, 0, v{A.vX+1}
    """) + sub_S(1) + rescale_state() + softmax_half(1, 0) + softmax_half(1, 1) + L(f"""
    v_sub_f32 v{A.vX}, v{A.vNM}, v{A.vX+4}
    v_sub_f32 v{A.vX+1}, v{A.vNM+4}, v{A.vX+5}
    v_cvt_i32_f32 v{A.vX}, v{A.vX}
    v_cvt_i32_f32 v{A.vX+1}, v{A.vX+1}
    v_ldexp_f32 v{A.vX}, 1.0, v{A.vX}
    v_ldexp_f32 v{A.vX+1}, 1.0, v{A.vX+1}
    v_and_b32 v{A.vX}, 0xffff0000, v{A.vX}
    v_and_b32 v{A.vX+1}, 0xffff0000, v{A.vX+1}
    v_fmac_f32 v{A.vLS}, v{A.vX}, v{A.vX+6}
    v_fmac_f32 v{A.vLS+1}, v{A.vX+1}, v{A.vX+7}
    v_lshrrev_b32 v{A.vX+2}, 16, v{A.vX}
    v_lshrrev_b32 v{A.vX+3}, 16, v{A.vX+1}
    """)
    n = 0
    for qb in range(2):
        for ks in range(8):
            for w in range(4):
                t = A.vT + (n % 8); n += 1
                o = Oreg(2 * ks + (w >> 1), qb) + 2 * (w & 1)
                comb += L(f"""v_accvgpr_read_b32 v{t}, a{A.aX + (qb * 8 + ks) * 4 + w}
                v_dot2c_f32_bf16 v{o}, v{t}, v{A.vX + 2 + qb}
                v_dot2c_f32_bf16 v{o+1}, v{t}, v{A.vX + qb}""")
    comb += L(f"""s_nop 2
    s_setpc_b64 s[{A.sRET}:{A.sRET+1}]
""") + (L(f"""
    L_cg0:
    s_call_b64 s[{A.sRET}:{A.sRET+1}], L_comb
    s_branch L_final_o2
    L_cg1:
    s_call_b64 s[{A.sRET}:{A.sRET+1}], L_comb
    s_branch L_e_o""") if not LATE else L(f"L_cg0:\ns_waitcnt vmcnt(0)\ns_nop 7\ns_call_b64 s[{A.sRET}:{A.sRET+1}], L_comb") + lfin() + cvall() + L("s_nop 1\ns_branch L_op1"))
    slots = [3, 1, 2, 0, 3, 1, 2]
    def op_out(j, split=False):
        b = j & 1
        ins = L(f"s_add_u32 s{A.sT0}, s{A.sOP}, {2 * j * 1024}\ns_add_u32 s{A.sT1}, s{A.sOP}, {14336 + 2 * j * 1024}")
        for pp in range(2):
            if split and pp == 1: ins.append(64)
            for qb in range(2):
                a, d = Sreg(b, 2 * pp, qb), Sreg(b, 2 * pp + 1, qb)
                ins += [I(f"v_mul_f32 v{r + e}, v{A.vRL + qb}, v{r + e}") for r in (a, d) for e in range(4)]
                ins += L(f"""v_cvt_pk_bf16_f32 v{a}, v{a}, v{a+1}
                v_cvt_pk_bf16_f32 v{a+1}, v{a+2}, v{a+3}
                v_cvt_pk_bf16_f32 v{a+2}, v{d}, v{d+1}
                v_cvt_pk_bf16_f32 v{a+3}, v{d+2}, v{d+3}""")
                ins.append(I(f"buffer_store_dwordx4 v[{a}:{a+3}], v{A.vL16}, {WSR}, s{A.sT0 + qb} offen offset:{pp * 1024} sc1", tag=("OP", j)))
        return ins
    fop = lambda: L(f"""
    s_sub_u32 s64, 15, s{sJ}
    s_min_u32 s64, s64, s{sJ}
    s_mul_i32 s{sFL}, s64, {2 * FSTR}
    s_and_b32 s64, s{sJ}, 8
    s_lshl_b32 s64, s64, 1
    s_add_u32 s64, s64, s{sH}
    s_lshl_b32 s64, s64, 2
    s_add_u32 s{sFL}, s{sFL}, s64
    s_add_u32 s{sFL}, s{sFL}, {WS_FOP}
    {f'''s_lshr_b32 s64, s{A.sWAVE}, 1
    s_mul_i32 s64, s64, {FSTR}
    s_add_u32 s{sFL}, s{sFL}, s64
    s_and_b32 s64, s{A.sWAVE}, 1
    s_lshl_b32 s64, s64, 9''' if side.EPAR < 2 else f"s_lshl_b32 s64, s{A.sWAVE}, 8"}
    s_add_u32 s{sFL}, s{sFL}, s64
    s_add_u32 s3, s{sFL}, {128 if side.EPAR < 2 else FSTR}
    v_lshrrev_b32 v{A.vX + 7}, 5, v{A.vL16}
    v_min_u32 v{A.vX + 7}, 1, v{A.vX + 7}
    v_lshlrev_b32 v{A.vX + 6}, {4 if side.EPAR < 2 else 3}, v{A.vL16}
    v_lshl_or_b32 v{A.vX + 6}, v{A.vX + 7}, 29, v{A.vX + 6}
    v_mov_b32 v{A.vX + 5}, 1
    """)
    fin = lambda: (L("s_mov_b64 exec, -1\ns_waitcnt vmcnt(0)") + stamp(30, True) + L(f"""
        s_lshl_b32 s{A.sT0}, s2, 2
        s_add_u32 s{A.sT0}, s{A.sT0}, s{A.sWAVE}
        s_lshl_b32 s{A.sT0}, s{A.sT0}, 9
        s_add_u32 s{A.sT0}, s{A.sT0}, {WS_STAMP}
        v_lshrrev_b32 v10, 1, v{A.vL16}
        buffer_store_dwordx2 a[{aST}:{aST+1}], v10, {WSR}, s{A.sT0} offen
        """)) if STAMP else []
    def last_reads(g, slot):
        for b in range(1, 4):
            for f, r in enumerate(rd_batch(slot, b)): g.put((b - 1) * 16 + RPAT[0][f], r)
            g.put_s(b * 16 - 1, NEED(R("a", Freg(b, 0), 32)))
    ctx_v = lambda qb, ks: R("v", Oreg(2 * ks, qb), 4)
    ctx_a = lambda qb, ks: R("a", A.aX + (qb * 8 + ks) * 4, 4)
    os_ = lambda: stamp(30) if opt['fine'] == '4' else []
    pub = lambda: L(f"s_waitcnt vmcnt(0)\nbuffer_store_dword v{A.vX + 5}, v{A.vX + 6}, {WSR}, s{sFL if side.EPAR & 1 else 3} offen sc1") + stamp(30)
    def outproj(tag, ctx, first=(), tags0=(), post0=()):
        ow = []
        for j in range(7):
            g = Gaps(qk_mfmas(j & 1, "zero", breg=ctx))
            if j < 6: weave_reads(g, slots[j], slots[j + 1], [("T", slots[j + 1])] + (list(tags0) if j == 0 else []))
            else: last_reads(g, slots[j])
            if j == 0:
                for i in post0: g.fit(48, i)
            if j == 0 and tag == 0 and OVR:
                k = weave_dma(g, 2, A.sVn, w2a(), 1, 30); weave_dma(g, 0, A.sVn, w2a(), k + 1, 62)
            elif j + 3 < 7: weave_dma(g, slots[j + 3], A.sVn, w2a(), 1, int(opt['odh']))
            if j == 0: assert not kvq.seq_fit(g, fop() + list(first) + side.sel_a(A.vL16), 2)[1]
            if j in (4, 5): assert not kvq.seq_fit(g, {4: side.sel_b(tag), 5: side.sel_c()}[j], 40 if j == 5 else 2)[1]
            if j == (side.NE - 1) // 2 + 2:
                assert not kvq.seq_fit(g, [WAITV([("OP", j - 2)]), I(f"buffer_store_dword v{A.vX + 5}, v{A.vX + 6}, {WSR}, s{3 if side.EPAR & 1 else sFL} offen sc1")], 52)[1]
            if j == 6 and tag == 1 and SENT:
                assert not kvq.seq_fit(g, L(f"s_or_b32 s64, s{sNC}, s{sFL if side.EPAR & 1 else 3}") +
                                       [WAITV([("OP", 4)]), I(f"buffer_store_dword v{A.vX + 5}, v{A.vX + 6}, {WSR}, s64 offen sc1")], int(opt['sg']))[1]
            if j > 0: k = fill_valu(g, op_out(j - 1), 3, 58 if j < 6 else 36)
            if j == 6: k, last = kvq.seq_fit(g, op_out(6, True), max(k, 38))
            ow += g.flat() + os_()
        end = pub()
        if tag == 1 and SENT:
            end = L(f"s_cmp_ge_u32 s{sJ}, {JC}\ns_cbranch_scc1 L_pv") + end[:2] + L("L_pv:") + end[2:]
            for i in end[2:4]: i.text += " ; ignore"
        return ow + stamp(30) + [i for i in last if not isinstance(i, int)] + end
    c.block("op1", "L_op1:", outproj(1, ctx_v), f"s_cmp_lt_u32 s{sJ}, 8\ns_cbranch_scc1 L_red")
    c.block("end1", fin(), "s_endpgm")
    qld = lambda: L(f"s_add_u32 s76, s90, 4096\nbuffer_load_dwordx4 v[{A.vX+4}:{A.vX+7}], v{A.vL16}, {WSR}, s76 offen sc1") + [I(f"buffer_load_dwordx4 a[{4*n}:{4*n+3}], v{A.vL16}, {WSR}, s{72 + n // 4} offen offset:{(n & 3) * 1024} sc1") for n in range(16)]
    hset = lambda n: L(f"""
    v_cmp_gt_u32 vcc, 3, v{A.vRL + 1}
    s_sub_u32 s{A.sIT}, {16 - JC - ODD}, s{sJ}
    s_cbranch_vccnz L_f3s{n}
    L_f3r{n}:
    {f'''s_mul_i32 s{A.sK}, s{sH}, {HS}
    s_add_u32 s{A.sK}, s{A.sK}, {(XS - 2) * 32768}
    s_add_u32 s{A.sV}, s{A.sK}, {WS_V - WS_K}
    s_lshl_b32 s{A.sKcnt}, s{A.sIT}, 1
    s_add_u32 s{A.sKcnt}, s{A.sKcnt}, {ODD}
    s_mov_b32 s{A.sKn1}, s{A.sKn2}''' if not OVR else f'''
    s_mul_i32 s{A.sV}, s{sH}, {HS}
    s_add_u32 s{A.sV}, s{A.sV}, {WS_V + (XS - 2) * 32768}''' if not ODD else f'''
    s_add_u32 s{A.sV}, s{A.sKn2}, {WS_V - WS_K}
    s_add_u32 s{A.sK}, s{A.sKn2}, 65536
    s_sub_u32 s{A.sKn1}, s{A.sVn}, 65536
    s_sub_u32 s64, s{A.sVn}, 32768
    s_lshl_b32 s{A.sKcnt}, s{A.sIT}, 1
    s_sub_u32 s{A.sKcnt}, s{A.sKcnt}, 1
    s_cselect_b32 s{A.sK}, s64, s{A.sK}'''}
    s_mov_b32 s{sMODE}, 0
    s_max_u32 s{A.sCHK}, s{A.sCHK}, 3
    s_mov_b32 s72, s{A.sQ}
    s_add_u32 s73, s72, 4096
    s_add_u32 s74, s72, 8192
    s_add_u32 s75, s72, 12288
    """)
    g = Gaps(pv_mfmas(1))
    k0s, k1s = KSLOT[ODD], KSLOT[1 - ODD]
    weave_reads(g, 0, k0s, [("T", k0s)])
    q_ = qld()
    kd = lambda s_: [] if OVR else dma_flat(s_, A.sK) + adv_k()
    put_groups(g, [[i] for i in q_[6:]], 0, 40)
    rest = cvt_weave(g, pre=add_l(1) + lfin())
    c.block("final_k", "L_final_k:", hset(0), mix(softmax_half(1, 1), kd(k0s) + q_[:6], 0), check(1, "L_st11"), "L_rt11:",
            NEED(R("a", Freg(0, 0), 32), R("v", A.vRL, 2)), stamp(26), g.flat(), rest if OVR else mix(rest, kd(k1s), 1), stamp(26))
    parkc = [I(f"v_accvgpr_write_b32 a{A.aX + (qb * 8 + ks) * 4 + e}, v{Oreg(2 * ks, qb) + e}") for qb in range(2) for ks in range(8) for e in range(4)]
    parkc += L(f"v_accvgpr_write_b32 a192, v{A.vRL}\nv_accvgpr_write_b32 a193, v{A.vRL + 1}")
    g = Gaps(qk_mfmas(ODD, "nm"))
    weave_reads(g, k0s, k1s, [("T", k1s)])
    weave_dma(g, VSLOT[ODD], A.sV, adv_v(), *((1, 30) if SENT else ()))
    if SENT:
        mk = L(f"""s_lshl_b32 s94, s{sJ}, 1
        s_sub_u32 s94, 15, s94
        s_mul_i32 s94, s94, {16 * OP_HEAD}
        s_add_u32 s94, s94, s{A.sOP}
        s_add_u32 s94, s94, 10240
        s_add_u32 s95, s94, 14336""") + [I(f"v_mov_b32 v{A.vT + e}, -1") for e in range(4)]
        ms = [I(f"buffer_store_dwordx4 v[{A.vT}:{A.vT + 3}], v{A.vL16}, {WSR}, s{94 + (n >> 2)} offen offset:{(n & 3) * 1024} sc1") for n in range(8)]
        link(mk + ms); assert not kvq.seq_fit(g, mk, 2)[1]
        put_groups(g, [[i] for i in ms], 31, 62)
    fill_valu(g, parkc + ZZ(), 0, 62)
    inith = L(f"v_mov_b32 v{A.vLS}, 0\nv_mov_b32 v{A.vLS + 1}, 0") + softmax_half(ODD, 0)
    c.block("w0h", "L_w0h:", [I(f"v_mov_b32 v{A.vNM + r}, v{A.vX + 4 + 2 * (r >> 2)}") for r in range(8)], NEED(R("a", 0, 64)), g.flat(),
            zero_O_mfma(mix(inith, dma_flat(KSLOT[ODD], A.sK) + adv_k(), 1), A.vP1), stamp(),
            f"s_cmp_lg_u32 s{A.sIT}, 0\ns_cbranch_scc1 L_loop_top" if ODD else "s_branch L_loop_mid")
    pst = lambda ks, qb: [I(f"buffer_store_dwordx4 v[{Oreg(2*ks, qb)}:{Oreg(2*ks, qb)+3}], v{A.vL16}, {WSR}, s{86 + (qb*8+ks) // 4} offen offset:{(ks & 3) * 1024} sc1", tag="PST")]
    g = Gaps(pv_mfmas(1))
    weave_reads(g, 0, 3, [("T", 3)])
    rest = cvt_weave(g, pst)
    c.block("final_h", "L_final_h:", WAITV([("T", 0)], lgkm0=True), "s_barrier", rd_batch(0, 0), softmax_half(1, 1) if OVR else mix(softmax_half(1, 1), w2(), 1), check(1, "L_st4"), "L_rt4:", add_l(1), f"""
    v_mov_b32 v{A.vX+2}, v{A.vNM}
    v_mov_b32 v{A.vX+3}, v{A.vNM+4}
    v_mov_b32 v{A.vX+4}, v{A.vLS}
    v_mov_b32 v{A.vX+5}, v{A.vLS+1}
    buffer_store_dwordx4 v[{A.vX+2}:{A.vX+5}], v{A.vL16}, {WSR}, s90 offen sc1
    """, NEED(R("a", Freg(0, 0), 32)), stamp(), g.flat(), rest, stamp())
    c.block("op0", outproj(0, ctx_a, L(f"v_accvgpr_read_b32 v{A.vRL}, a192\nv_accvgpr_read_b32 v{A.vRL + 1}, a193"), ["PST"], [side.flag_store(47, A.vF0, A.vX + 5)]))
    rm, far = side.red_main(A.vL16, lambda: stamp(30), int(opt['lag']), opt['early'] == '1', SENT)
    c.block("red", "L_red:", side.red_a(A.vL16), rm, fin(), "s_endpgm")
    c.block("redfar", far)
    c.block("rpoll", side.red_poll())
    g = Gaps(pv_mfmas(0))
    weave_reads(g, 2, None, [("T", 3)])
    weave_dma(g, 1, A.sK, adv_k(), hi=38)
    g.fit(int(opt['fpg']), I(F3_LOAD))
    if LATE: g.fit(int(opt['fpg']), I(FP_LOAD))
    c.block("e", "L_e:", mix(softmax_half(0, 1), dma_flat(0, A.sV), 1), check(0, "L_st7"), "L_rt7:", add_l(0),
            f"s_cmp_eq_u32 s{sJ}, {opt['jy']}\ns_cbranch_scc1 L_yred\nL_yred_ret:", "" if LATE else f"s_cmp_lt_u32 s{sJ}, {JC}\ns_cbranch_scc1 L_e2")
    pl = ploads(); pl = pl[1:] + pl[:1]
    if not LATE: c.block("e_l", pl[n1:])
    c.block("e2", "L_e2:", WAITV([("T", 2)], lgkm0=True), "s_barrier",
            rd_batch(2, 0), NEED(R("a", Freg(0, 0), 32)), g.flat(), stamp(26), WAITV([("T", 0)], lgkm0=True), "s_barrier",
            f"s_cmp_le_u32 s{sJ}, {15 - JC}\ns_cbranch_scc1 L_e_k\ns_cmp_lt_u32 s{sJ}, {JC}\ns_cbranch_scc1 L_e_o")
    eb = lambda s=3: [WAITV([("T", s)]), I("s_barrier")] + rd_batch(s, 0) + [NEED(R("a", Freg(0, 0), 32))]
    if LATE: c.block("e_c", pchk(1), ploads(), stamp(26), eb(), w2(), "s_branch L_lc")
    else: c.block("e_c", ctest(1), cmf())
    c.block("e_o", "L_e_o:", stamp(), f"s_cmp_eq_u32 s{sJ}, {opt['jy']}\ns_cbranch_scc1 L_yred2\nL_yred2_ret:", mix(cvall(), w2(), 1), lfin(), eb(), stamp(), "s_branch L_op1")
    c.block("e_k", "L_e_k:", hset(1), stamp(), mix(cvall(), kd(k0s) + qld() + kd(k1s), 1),
            lfin(), eb(k0s), stamp(26), "s_branch L_w0h")
    c.block("comb", comb)
    stubs = ""
    for n, b in ((0, "0"), (1, "1"), (2, "1n"), (4, "1n"), (5, "1"), (6, "0"), (7, "0"), (8, str(ODD)), (9, str(1 - ODD)), (11, "1n")) + (((10, "1n"),) if LATE else ()):
        stubs += f"L_st{n}:\ns_call_b64 s[{A.sRET}:{A.sRET+1}], L_slow{b}\ns_branch L_rt{n}\n"
    c.block("stubs", stubs)
    c.block("slow0", slow_sub(0)); c.block("slow1", slow_sub(1)); c.block("slow1n", slow_sub(1, False))
    c.block("moe", side.red_moe(), side.y_reduce())
    c.block("spins", f"""
    L_fll:
    {FL_LOAD}
    s_cmp_eq_u32 s{A.sCHK}, 1
    s_cselect_b32 s{A.sREQ}, 2, 4
    s_branch L_fllr
    L_fl4:
    v_mov_b32 v{A.vX + 7}, s{sPBV}
    """, side.flag_store(sFL, A.vF0, A.vX + 7), "s_branch L_fl4r\ns_waitcnt vmcnt(0)",
            *[side.spin_stub(f"L_fhs{n}", f"L_fhr{n}", side.FH0_LOAD, 24, 91, "v_cmp_gt_u32 vcc, 4, v{vt}") for n in range(2)],
            *[side.spin_stub(f"L_fps{n}", f"L_fpr{n}", FP_LOAD, A.vRL, 91) for n in range(1 + LATE)],
            *[side.spin_stub(f"L_f3s{n}", f"L_f3r{n}", F3_LOAD, A.vRL + 1, 91, "v_cmp_gt_u32 vcc, 3, v{vt}") for n in range(2)],
            side.spin_stub("L_fls0", "L_flr0", FL_LOAD, A.vRL, 91, f"v_cmp_gt_u32 vcc, s{A.sREQ}, v{{vt}}"))

def early_stubs(c):
    c.block("spins0", "L_null:", [I(f"v_mov_b32 v{r}, 0") for r in list(range(Preg(1, 0, 0), Preg(1, 0, 0) + 8)) + [A.vSUM + 2, A.vSUM + 3]],
            [I(f"v_mov_b32 v{Sreg(1, 2, 0) + r}, v{A.vNEG}") for r in range(16)], f"s_sub_u32 s{A.sV}, s{A.sV}, 32768\ns_branch {'L_nullr' if ODD else 'L_null'}", side.z_stub(0), side.z_stub(1), hw.key_stub(),
            side.spin_stub("L_f2s", "L_f2r", F2_LOAD, A.vRL, 91, "v_cmp_gt_u32 vcc, 3, v{vt}") if OVR else [],
            *[side.spin_stub(f"L_f1s{n}", f"L_f1r{n}", F1_LOAD, 24, 91, "v_cmp_eq_u32 vcc, 0, v{vt}") for n in range(2)])

def paths(c):
    lp = ["loop_top", "loop_mid"]
    red = ["red"]
    cp = (["p1n", "p2", "p2b", "p2n", "final_c", "lc"], ["p1n", "p2", "e", "e2", "e_c", "lc"]) if opt['late'] == '1' else (["p1c", "p2", "p2b", "p2c", "final_o2"], ["p1c", "p2", "e", "e_l", "e2", "e_c", "e_o"])
    for end in (*cp, ["p1n", "p2", "p2b", "p2n", "final_o", "final_o2"], ["p1n", "p2", "e", "e2", "e_o"]):
        c.path("entry", "kv1", *([] if ODD else ["loop_mid"]), *lp, *lp, "p1", *end, "op1", "end1")
    for end in (["p2", "p2b", "p2n", "final_o", "final_o2"], ["p2", "e", "e2", "e_o"]):
        c.path("entry", "kv0", "init", "loop_mid", *lp, *lp, "p1", "p1n", *end, "op1", *red)
    for end in (["p2", "p2b", "p2n", "final_k"], ["p2", "e", "e2", "e_k"]):
        for own in (["mask0", "init"], ["init", "loop_mid", "p1", "p1n"], ["init", "loop_mid", *lp, "p1", "p1n"], ["init", "loop_mid", *lp, *lp, "p1", "p1n"]):
            for nh in (0, 1, 2):
                c.path("entry", "kv0", *own, *end, "w0h", *([] if ODD else ["loop_mid"]), *(lp * nh), "final_h", "op0", *red)
    for b in ("redfar", "rpoll", "stubs", "slow0", "slow1", "slow1n", "comb", "moe", "spins", "spins0"): c.path(b)

if __name__ == "__main__":
    c = CFG(verbose=int(opt["v"]))
    build_front(c); early_stubs(c); build_att(c); paths(c)
    body = c.finalize()
    kn = NAME + "_kernel"
    print("; @launch grid=(256,1,1) block=(256,1,1) lds=163840")
    print('.amdgcn_target "amdgcn-amd-amdhsa--gfx950"\n.text')
    print(".macro M d, a, b, c\nv_mfma_f32_16x16x32_bf16 \\d, \\a, \\b, \\c\n.endm")
    print(kernel_header(kn))
    print(body.replace("  v_mfma_f32_16x16x32_bf16 ", "M ").replace("\n  ", "\n "))
    if BARE: print("L_zr0:\nL_zr1:\nL_hr:\n s_endpgm")
    print("L_code_end:")
    print('.section .rodata,"a"\n.p2align 6')
    print(kernel_desc(kn, sgpr=102))
```

```python
from common import *
from sched import *
import att
from att import A, Sreg, Oreg, Preg, Qreg, Freg, RPAT, X, xlane, add_l, cvt_ctx, softmax_groups, softmax_half, rowmax, sub_S, rescale_state, mix, zero_O_mfma
from kv5 import dep, tr_addr
KSLOT, VSLOT = att.KSLOT, att.VSLOT
KSLOT.update({0: 2, 1: 3}); VSLOT.update({0: 0, 1: 1})
WSR = f"s[{A.S_WS}:{A.S_WS+3}]"
S_WO = 12
sWO = 38
vWO = 0
vOA = (18, 22)
aSEL = 244
def adv_k():
    return L(f"""
    s_add_u32 s{A.sK}, s{A.sK}, 32768
    s_sub_u32 s{A.sKcnt}, s{A.sKcnt}, 1
    s_cselect_b32 s{A.sK}, s{A.sKn1}, s{A.sK}
    """)
att.adv_k = adv_k
adv_v = att.adv_v
def dma_flat(slot, soff, lo=0, hi=8):
    out = []
    for j, (pre, d) in enumerate(att.dma_tile(slot, soff)):
        if not lo <= j < hi: continue
        if j == lo and not pre: pre = I(f"s_add_u32 m0, s{A.sM0}, {slot * 32768 + (j >> 2) * 4096}")
        if pre: out.append(pre)
        out.append(d)
    return out
def rd_batch(slot, batch, v4=None):
    if slot < 4: return att.rd_batch(slot, batch)
    return [I(f"ds_read_b128 a[{Freg(batch, f)}:{Freg(batch, f)+3}], v{v4} offset:{batch * 8192 + f * 1024}") for f in range(8)]
def rd_wo(slot, mb):
    return [I(f"ds_read_b64_tr_b16 a[{Freg(mb, ks) + 2*j}:{Freg(mb, ks) + 2*j + 1}], v{vOA[slot >> 1] + mb} offset:{(slot & 1) * 32768 + ks * 4096 + j * 2048}") for ks in range(8) for j in range(2)]
def wo_dma(slot, lo=0, hi=8):
    out = []
    for i in range(lo, hi):
        if i % 4 == 0 or i == lo: out.append(I(f"s_add_u32 m0, s{A.sM0}, {slot * 32768 + (i >> 2) * 4096}"))
        out.append(I(f"s_add_u32 s85, s{sWO}, {i * 7168 - (i & 3) * 1024}"))
        out.append(I(f"buffer_load_dwordx4 v{vWO}, s[{S_WO}:{S_WO+3}], s85 offen offset:{(i & 3) * 1024} lds", tag=("T", slot)))
    if hi == 8: out.append(I(f"s_add_u32 s{sWO}, s{sWO}, 128"))
    return out
def wo_setup(t):
    return L(f"""
    v_lshrrev_b32 v{t}, 7, v{A.vL16}
    v_mul_u32_u24 v{t}, 896, v{t}
    v_lshrrev_b32 v{t+1}, 8, v{A.vL16}
    v_lshlrev_b32 v{t+1}, 5, v{t+1}
    v_xor_b32 v{t+1}, v{t+1}, v{A.vL16}
    v_and_b32 v{t+1}, 0x70, v{t+1}
    v_add_u32 v{vWO}, v{t}, v{t+1}
    s_mul_i32 s{sWO}, s{A.sWAVE}, {64 * 896}
    """)
def oa_setup(t):
    return L(f"v_lshrrev_b32 v{t+2}, 4, v{A.vL16}") + tr_addr(vOA[0], t + 2, t) + [I(f"v_add_u32 v{vOA[1] + x}, 0x10000, v{vOA[0] + x}") for x in range(4)]

RP8 = [0, 0, 3, 3, 6, 6, 9, 9]
RP16 = [0, 0, 1, 1, 3, 3, 4, 4, 6, 6, 7, 7, 9, 9, 10, 10]
def put_batch(g, reads, base, per=16, pat=None):
    pat = pat or (RP8 if len(reads) == 8 else RP16)
    for k, r in zip(pat, reads): g.put(base + k, r)
def need_batch(b, lo=0, n=32): return NEED(R("a", Freg(b, 0) + lo, n))
def tile_reads(g, rdf, nxt, tags, base=0, per=16, pat=None, npat=None):
    for b in range(1, 4):
        put_batch(g, rdf(b), base + (b - 1) * per, per, pat)
        if b < 3: g.put_s(base + b * per - 1, need_batch(b))
    if tags is None: g.put_s(base + 3 * per - 1, need_batch(3))
    else:
        g.put_s(base + 3 * per - 2, WAITV(tags, lgkm0=True))
        g.put_s(base + 3 * per - 1, I("s_barrier"))
    if nxt:
        put_batch(g, nxt, base + 3 * per, per, npat or pat)
        g.put_s(base + 4 * per - 2, need_batch(0))

def qk_mfmas(b, cf, order=(0, 1), breg=None, asc0=False):
    ms = []
    for kb in range(4):
        for m, qb in enumerate(order):
            d = R("v", Sreg(b, kb, qb), 4)
            for n, ks in enumerate(range(8) if m == 0 or (asc0 and kb == 0) else range(7, -1, -1)):
                bq = breg(qb, ks) if breg else R("a", Qreg(qb, ks), 4)
                ms.append(mfma(d, R("a", Freg(kb, ks), 4), bq, d if n else cf(kb, qb)))
    return ms
C0 = lambda kb, qb: "0"
NMq = lambda qb: R("v", A.vNM + 4 * qb, 4)
def pv_mfmas(b, zero=False):
    ms = []
    for db in range(16):
        for qb in range(2):
            d = R("v", Oreg(db, qb), 4)
            for n, kp in enumerate((0, 1) if qb == 0 else (1, 0)):
                ms.append(mfma(d, R("a", Freg(db >> 2, (db & 3) * 2 + kp), 4), R("v", Preg(b, kp, qb), 4), "0" if zero and n == 0 else d))
    return ms
def Pb(kp): return Preg(1, 0, 1 - kp)
def pvb_mfmas(comb=False):
    ms = []
    for db in range(16):
        d = R("v", Oreg(db, 1), 4)
        for kp in range(2): ms.append(mfma(d, R("a", Freg(db >> 2, (db & 3) * 2 + kp), 4), R("v", Pb(kp), 4), d))
        if comb:
            for qb in (1, 0):
                d = R("v", Oreg(db, qb), 4)
                ms.append(mfma(d, R("a", aSEL + 2 - 2 * (db & 1), 4), R("a", A.aX + (qb * 8 + (db >> 1)) * 4, 4), d))
    return ms
def groups_b():
    out = []; sm = A.vSUM + 3
    for n in range(8):
        kb, pr = n >> 1, n & 1
        s = Sreg(1, kb, 1) + 2 * pr
        t0, t1 = A.vT + (n % 4) * 2, A.vT + (n % 4) * 2 + 1
        ex = [I(f"v_exp_f32 v{t0}, v{s}"), I(f"v_exp_f32 v{t1}, v{s+1}")]
        post = [I(f"v_add_f32 v{sm}, v{t0}, v{t1}")] if n == 0 else [I(f"v_add_f32 v{sm}, v{t0}, v{sm}"), I(f"v_add_f32 v{sm}, v{t1}, v{sm}")]
        post.insert(1, I(f"v_cvt_pk_bf16_f32 v{Pb(kb >> 1) + 2 * (kb & 1) + pr}, v{t0}, v{t1}"))
        out.append((ex, post))
    return out
def groups_first(b, order=(0, 1), base=0):
    out = []; n = 0; early = []
    for kk in range(2):
        for m, qb in enumerate(order):
            for pr in range(2):
                s = Sreg(b, kk, qb) + 2 * pr
                t0, t1 = A.vT + (n % 4) * 2, A.vT + (n % 4) * 2 + 1
                sm = A.vSUM + 2 * b + qb
                ex = [I(f"v_exp_f32 v{t0}, v{s}"), I(f"v_exp_f32 v{t1}, v{s+1}")]
                post = [I(f"v_add_f32 v{sm}, v{t0}, v{t1}")] if kk == 0 and pr == 0 else [I(f"v_add_f32 v{sm}, v{t0}, v{sm}"), I(f"v_add_f32 v{sm}, v{t1}, v{sm}")]
                post.insert(1, I(f"v_cvt_pk_bf16_f32 v{Preg(b, 0, qb) + 2 * kk + pr}, v{t0}, v{t1}"))
                out.append((ex, post)); early.append(base + 16 * kk + 8 * m + 7 + 5); n += 1
    return out, early
def flat_groups(grp):
    out = []; prev = []
    for ex, post in grp:
        out.append(ex[0]); out += prev[:2]; out.append(ex[1]); out += prev[2:]
        prev = post
    return out + prev
def sched_sm(g, grp, lo, hi, pre=(), early=None):
    link(list(pre) + [i for e, p in grp for i in e + p])
    ex = [(n, i) for n, (e, p) in enumerate(grp) for i in e]
    po = [(-1, i) for i in pre] + [(n, i) for n, (e, p) in enumerate(grp) for i in p]
    done_e = {}; last = lo; ne = 0; tot = len(ex)
    for k in range(lo, g.n):
        empty_left = sum(1 for q in range(k, hi) if g.used(q) == 0)
        if ex and g.used(k) == 0 and not (early and early[ex[0][0]] > k):
            n = ex[0][0]
            free = not any(m <= n - 4 for m, _ in po)
            due = k >= lo + ne * (hi - lo) // tot or empty_left <= len(ex)
            if free and due:
                g.put(k, ex.pop(0)[1]); done_e[n] = (done_e.get(n, (0, 0))[0] + 1, k); ne += 1; last = k
                continue
        keep = ex and g.used(k) == 0 and empty_left <= len(ex) and not any(m <= ex[0][0] - 4 for m, _ in po) and not (early and early[ex[0][0]] > k)
        while po and g.used(k) < 2 and not keep:
            n = po[0][0]
            if n >= 0 and not (done_e.get(n, (0, 0))[0] == 2 and done_e[n][1] < k): break
            g.put(k, po.pop(0)[1]); last = k
    if ex or po:
        last = g.n - 1
        for n in range(-1, len(grp) + 1):
            for m, i in ex:
                if m == n: g.put(last, i)
            for m, i in po:
                if m == n - 1: g.put(last, i)
    return last
def put_tail(g, k, ins):
    if k <= g.n - 2 - len(ins):
        k = max(k + 1, g.n - 3 - len(ins))
        for i in ins[:-1]: k = g.fit(k, i, lim=g.n - 2) + 1
        g.put_s(g.n - 1, ins[-1])
    else:
        for i in ins: g.put(g.n - 1, i)
def check(b, label): return att.check(b, label)
def check_first(label):
    return L(f"""v_max_f32 v{A.vX}, v{A.vSUM}, v{A.vSUM + 1}
    v_min_f32 v{A.vX + 1}, v{A.vSUM}, v{A.vSUM + 1}
    v_cmp_lt_f32 vcc, s{A.sTHR}, v{A.vX}
    v_cmp_gt_f32 s[64:65], s{A.sLOW}, v{A.vX + 1}
    s_or_b64 vcc, vcc, s[64:65]
    s_cbranch_vccnz {label}""")
A.sLOW = 24
def check_b(label):
    return L(f"v_cmp_lt_f32 vcc, s{A.sTHR}, v{A.vSUM + 3}\ns_cbranch_vccnz {label}")
def presets(second, zero=False):
    out = []
    b, qb = (1, 1) if second else (0, 0)
    for kb in range(4):
        m = 66 + 8 * (kb & 1)
        ins = L(f"""s_cmp_{'gt' if second else 'lt'}_u32 s{A.sWAVE}, {3 - kb if second else kb}
        s_cselect_b64 s[82:83], -1, 0
        s_cmp_eq_u32 s{A.sWAVE}, {3 - kb if second else kb}
        """ + "\n".join(f"s_cselect_b64 s[{m+2*e}:{m+2*e+1}], s[{A.sTRI[e]}:{A.sTRI[e]+1}], s[82:83]" for e in range(4)))
        ins += [I(f"v_cndmask_b32 v{Sreg(b, kb, qb) + e}, {'0' if zero else 'v%d' % (A.vNM + 4 * qb)}, v{A.vNEG}, s[{m+2*e}:{m+2*e+1}]") for e in range(4)]
        out.append(ins)
    return out

RET = lambda: [I("s_nop 3"), I(f"s_setpc_b64 s[{A.sRET}:{A.sRET+1}]")]
def slow_first(name, other):
    ins = [I(name + ":"), I("s_nop 7"), I("s_nop 3")] + rowmax(0) + sub_S(0) + (sub_S(1) if other else [])
    ins += [I(f"v_sub_f32 v{A.vNM + 4*q + e}, v{A.vNM + 4*q + e}, v{A.vX + q}") for q in range(2) for e in range(4)]
    return ins + softmax_half(0, 0) + (softmax_half(0, 1) if other else []) + RET()
def rescale_b():
    return [I(f"v_sub_f32 v{Sreg(1, kb, 1) + e}, v{Sreg(1, kb, 1) + e}, v{A.vX + 1}") for kb in range(4) for e in range(4)] + rescale_state() + flat_groups(groups_b())
def slow_b():
    vals = [Sreg(1, kb, 1) + e for kb in range(4) for e in range(4)]
    m = A.vX + 1
    ins = [I("L_slowb:"), I("s_nop 7"), I("s_nop 3"), I(f"v_max3_f32 v{m}, v{vals[0]}, v{vals[1]}, v{vals[2]}")]
    ins += [I(f"v_max3_f32 v{m}, v{vals[x]}, v{vals[x+1]}, v{m}") for x in range(3, 15, 2)] + [I(f"v_max_f32 v{m}, v{vals[15]}, v{m}")]
    ins += xlane("v_max_f32", m, A.vX + 3) + L(f"v_ceil_f32 v{m}, v{m}\nv_max_f32 v{m}, 0, v{m}\nv_mov_b32 v{A.vX}, 0")
    return ins + rescale_b() + RET()
def comb_slow():
    ins = L(f"""L_comb:
    s_waitcnt vmcnt(0)
    s_nop 7
    v_sub_f32 v{A.vX}, v{A.vNM}, v{A.vX+4}
    v_sub_f32 v{A.vX+1}, v{A.vNM+4}, v{A.vX+5}
    v_max_f32 v{A.vX}, 0, v{A.vX}
    v_max_f32 v{A.vX+1}, 0, v{A.vX+1}
    """) + rescale_b() + L(f"""
    v_sub_f32 v{A.vX}, v{A.vNM}, v{A.vX+4}
    v_sub_f32 v{A.vX+1}, v{A.vNM+4}, v{A.vX+5}
    v_exp_f32 v{A.vX}, v{A.vX}
    v_exp_f32 v{A.vX+1}, v{A.vX+1}
    s_nop 0
    v_mul_f32 v{A.vX+6}, v{A.vX}, v{A.vX+6}
    v_mul_f32 v{A.vX+7}, v{A.vX+1}, v{A.vX+7}
    """)
    for qb in range(2):
        for n in range(32):
            a = A.aX + qb * 32 + n; t = Sreg(0, 0, 0) + 2 * (n % 8)
            ins += L(f"""v_accvgpr_read_b32 v{t}, a{a}
            v_and_b32 v{t+1}, 0xffff0000, v{t}
            v_lshlrev_b32 v{t}, 16, v{t}
            v_mul_f32 v{t}, v{A.vX + qb}, v{t}
            v_mul_f32 v{t+1}, v{A.vX + qb}, v{t+1}
            v_cvt_pk_bf16_f32 v{t}, v{t}, v{t+1}
            v_accvgpr_write_b32 a{a}, v{t}""")
    return ins + RET()
def lfin(): return xlane("v_add_f32", A.vLS, A.vX) + xlane("v_add_f32", A.vLS + 1, A.vX + 1) + L(f"v_rcp_f32 v{A.vRL}, v{A.vLS}\nv_rcp_f32 v{A.vRL+1}, v{A.vLS+1}")
def lfin2():
    a, c = xlane("v_add_f32", A.vLS, A.vX), xlane("v_add_f32", A.vLS + 1, A.vX + 1)
    out = []
    for x, y in zip(a, c): out += [x, y]
    return out + L(f"v_rcp_f32 v{A.vRL}, v{A.vLS}\nv_rcp_f32 v{A.vRL+1}, v{A.vLS+1}")
def selm(t):
    return L(f"""
    v_mov_b32 v{t}, 0x3f80
    v_lshrrev_b32 v{t+1}, 8, v{A.vL16}
    v_bfe_u32 v{t+2}, v{A.vL16}, 6, 2
    v_and_b32 v{t+3}, 16, v{A.vL16}
    v_lshlrev_b32 v{t+3}, v{t+3}, v{t}
    v_cmp_eq_u32 vcc, v{t+1}, v{t+2}
    v_and_b32 v{t+4}, 32, v{A.vL16}
    v_accvgpr_write_b32 a{aSEL}, 0
    v_cndmask_b32 v{t+3}, 0, v{t+3}, vcc
    v_cmp_eq_u32 vcc, 0, v{t+4}
    v_accvgpr_write_b32 a{aSEL+1}, 0
    v_accvgpr_write_b32 a{aSEL+4}, 0
    v_cndmask_b32 v{t+1}, 0, v{t+3}, vcc
    v_sub_u32 v{t+2}, v{t+3}, v{t+1}
    v_accvgpr_write_b32 a{aSEL+5}, 0
    v_accvgpr_write_b32 a{aSEL+2}, v{t+1}
    v_accvgpr_write_b32 a{aSEL+3}, v{t+2}
    """)
```

```python
from common import *
from sched import *
import kvq
from kvq import K, kacc, rr, cfrag, rd_c, unit, weave_units, spread2, pack, WSLOT

def dep(cons, *prods):
    for p in prods:
        for r in p.writes:
            if r in cons.reads:
                cons.extra.setdefault("raw", {})[r] = p; cons.extra.setdefault("pin", set()).add(r)

def wfrag(buf, x, ks): return 32 + (buf ^ 1) * 64 + (x * 2 + ks) * 4
NTW = 'nt'
def unit_w(u): return unit(K.sM0W, WSLOT[u & 3], K.vWD, K.S_W, K.sWOFF, 128 if u % 2 == 0 else 64 * 8192 - 128, ("W", u & 3))
def unit_c(u): return unit(K.sM0C, (u & 3) * 16384, K.vCD, K.S_C, K.sCOFF, 512 * 2048 if u % 2 == 0 else -(512 * 2048 - 128), ("C", u & 3))
QUART = [0, 2, 1, 3]
def rd_w(buf, slot, x, ks, j):
    r = wfrag(buf, x, ks) + 2 * j
    return I(f"ds_read_b64_tr_b16 a[{r}:{r+1}], v{K.vWR + (x & 3)} offset:{WSLOT[slot] + (32 * ks + 4 * j) * 256}")
def rd_w_unit(buf, slot, hx):
    return [rd_w(buf, slot, x, ks, j) for x in range(4 * hx, 4 * hx + 4) for ks in range(2) for j in range(2)]
def row_mfmas(y, wbuf, cbuf, vtype, first):
    ms = []
    for x in range(8):
        for n, ks in enumerate((0, 1) if x % 2 == 0 else (1, 0)):
            w = R("a", wfrag(wbuf, x, ks), 4); c = R("a", cfrag(cbuf, ks), 4)
            d = rr(kacc(y, x))
            cin = "0" if (first and n == 0) else d
            ms.append(mfma(d, c, w, cin) if vtype else mfma(d, w, c, cin))
    return ms
def kv_dma(t):
    out = []
    for u in (2 * t, 2 * t + 1):
        l = []
        if u + 3 < 32: l.append(unit_c(u + 3))
        if u + 5 < 32: l.append(unit_w(u + 5))
        out.append(l)
    return out
def kv_tile(t, vtype, dma, endtags=()):
    first = t == 0
    ms = []
    for y in range(8): ms += row_mfmas(y, t & 1, y & 1, vtype, first)
    g = Gaps(ms)
    for h in (1, 2):
        u = 2 * t + h
        k0 = (4 * h - 1) * 16 - 1
        tags = ([("C", u & 3)] if u < 32 else []) + ([("W", (u + 2) & 3)] if u + 2 < 32 else []) + (list(endtags) if h == 2 else [])
        g.put_s(k0 - 1, WAITV(tags, lgkm0=True))
        g.put_s(k0, I("s_barrier"))
    for y in range(8):
        ny = y + 1
        u = 2 * t + (ny >> 2)
        if u < 32:
            for ks in range(2): g.put(y * 16, rd_c(ny & 1, u & 3, ny & 3, ks))
            g.put_s(y * 16 + 13, NEED(R("a", cfrag(ny & 1, 0), 8)))
    if first:
        for x in range(1, 8, 2): g.put_s(2 * x - 1, NEED(R("a", wfrag(0, x, 0), 16 if x < 7 else 8)))
        g.put_s(14, WAITV([("W", 2)], lgkm0=True)); g.put_s(15, I("s_barrier"))
        spread2(g, rd_w_unit(1, 2, 0), 17, 42)
        spread2(g, rd_w_unit(1, 3, 1), 50, 106)
        a_, b_, c_ = [unit_w(3)], [unit_c(2), unit_w(4)], dma[0] + dma[1]
        link([i for u_ in a_ + b_ + c_ for i in u_])
        weave_units(g, a_, 1, 14); weave_units(g, b_, 17, 46); weave_units(g, c_, 49, 110)
        return g
    if t < 15:
        spread2(g, rd_w_unit((t + 1) & 1, (2 * t + 2) & 3, 0), 1, 42)
        spread2(g, rd_w_unit((t + 1) & 1, (2 * t + 3) & 3, 1), 50, 106)
    weave_units(g, dma[0], 3, 44)
    weave_units(g, dma[1], 51, 108)
    return g
def kv_pairs(vtype):
    if not vtype:
        return [((y, 2 * xp), (y, 2 * xp + 1), QUART[y >> 1] * 262144 + (y & 1) * 8192 + xp * 1024) for y in range(8) for xp in range(4)]
    return [((2 * yp, x), (2 * yp + 1, x), QUART[yp] * 262144 + x * 2048) for yp in range(4) for x in range(8)]

class QR:
    vQD = 8
    vXA = 10
    vRB = {2: 12, 0: 16, 1: 20}
    sW1K, sOFF = 4, 25
USLOT = [4, 0, 1, 2, 3, 4, 0, 1]
def xreg(qb, ks): return (176 + (ks * 2 + qb) * 4) if ks < 7 else (96 + ((ks - 7) * 2 + qb) * 4)
def q_setup():
    out = f"""
    s_lshl_b32 s{QR.sW1K}, s{K.sWAVE}, 10
    v_bfe_u32 v28, v0, 3, 2
    v_lshrrev_b32 v29, 5, v0
    v_lshl_add_u32 v28, v29, 3, v28
    v_lshlrev_b32 v28, 13, v28
    v_lshrrev_b32 v29, 4, v0
    v_lshlrev_b32 v29, 1, v29
    v_and_b32 v30, 7, v0
    v_xor_b32 v29, v29, v30
    v_lshl_add_u32 v28, v29, 4, v28
    s_and_b32 s64, s{K.sWAVE}, 1
    s_lshl_b32 s64, s64, 17
    s_lshr_b32 s65, s{K.sWAVE}, 1
    s_lshl_b32 s65, s65, 15
    s_add_u32 s64, s64, s65
    v_add_u32 v{QR.vQD}, s64, v28
    v_and_b32 v28, 15, v0
    v_mul_u32_u24 v28, 896, v28
    v_lshrrev_b32 v29, 4, v0
    v_lshl_add_u32 v28, v29, 4, v28
    s_mul_i32 s64, s{K.sWAVE}, {16 * 896}
    s_sub_u32 s65, {7 * 16 * 896}, s64
    v_add_u32 v{QR.vXA}, s64, v28
    v_add_u32 v{QR.vXA + 1}, s65, v28
    """
    return L(out)
def tr_addr(dst, lane, t):
    return L(f"""
    v_lshrrev_b32 v{t}, 2, v{lane}
    v_lshlrev_b32 v{t}, 7, v{t}
    v_and_b32 v{t+1}, 3, v{lane}
    v_lshl_add_u32 v{t}, v{t+1}, 3, v{t}
    v_bfe_u32 v{t+1}, v{lane}, 3, 2
    v_lshl_add_u32 v{dst}, v{t+1}, 5, v{t}
    v_xor_b32 v{dst+1}, 32, v{dst}
    v_xor_b32 v{dst+2}, 64, v{dst}
    v_xor_b32 v{dst+3}, 0x60, v{dst}
    """)
def q_setup2():
    out = tr_addr(QR.vRB[0], 0, 28)
    for b in (1, 2): out += [I(f"v_add_u32 v{QR.vRB[b] + x}, {hex(b << 16)}, v{QR.vRB[0] + x}") for x in range(4)]
    return out
def wq_dma(u, f):
    cg, ks = u >> 1, 7 * (u & 1) + f
    return [I(f"s_mov_b32 s{QR.sOFF}, {cg * 128 + ks * 32 * 8192}"), I(f"s_add_u32 m0, s{QR.sW1K}, {USLOT[u] * 32768 + f * 4096}"),
            I(f"buffer_load_dwordx4 v{QR.vQD}, s[{K.S_WQ}:{K.S_WQ+3}], s{QR.sOFF} offen lds", tag=("U", u))]
def wq_unit(u, lo=0, hi=7): return [i for f in range(lo, hi) for i in wq_dma(u, f)]
def x_load(qb, ks):
    r = xreg(qb, ks)
    return I(f"buffer_load_dwordx4 a[{r}:{r+3}], v{QR.vXA + qb}, s[{K.S_X}:{K.S_X+3}], s{K.sXOFF} offen offset:{64 * ks}")
XORD = [(qb, ks + d) for ks in (0, 2, 4) for qb in range(2) for d in range(2)] + [(0, 6), (1, 6), (0, 7), (1, 7)] + [(qb, ks + d) for ks in (8, 10, 12) for qb in range(2) for d in range(2)]

class QPhase:
    def __init__(self, vbuf, accq):
        self.vbuf, self.accq, self.lastm = vbuf, accq, {}
        self.rd = [self._reads(n) for n in range(32)]
    def frag(self, n, f):
        return ("v", self.vbuf[f]) if n % 2 == 0 else ("a", 152 + 4 * f if f < 6 else 232)
    def acc(self, cg, x4, qb): return self.accq[(cg & 1) * 8 + x4 * 2 + qb]
    def _reads(self, n):
        u = n >> 2; s = USLOT[u]; out = []
        for f in range(7):
            k, r = self.frag(n, f)
            out += [I(f"ds_read_b64_tr_b16 {k}[{r + 2*j}:{r + 2*j + 1}], v{QR.vRB[s >> 1] + (n & 3)} offset:{(s & 1) * 32768 + f * 4096 + j * 2048}") for j in range(2)]
        return out
    def mfmas(self, xl):
        ms = []
        for n in range(32):
            cg, hf, x4 = n >> 3, (n >> 2) & 1, n & 3
            for qb in range(2):
                d = R("v", self.acc(cg, x4, qb), 4)
                for m, f in enumerate(range(7) if qb == 0 else range(6, -1, -1)):
                    k, r = self.frag(n, f)
                    i = mfma(d, R(k, r, 4), R("a", xreg(qb, 7 * hf + f), 4), "0" if hf == 0 and m == 0 else d)
                    dep(i, self.rd[n][2 * f], self.rd[n][2 * f + 1], xl[(qb, 7 * hf + f)])
                    ms.append(i); self.lastm[(cg, x4, qb)] = i
        return ms
    PAT = [0, 0, 2, 2, 3, 3, 5, 5, 6, 6, 8, 8, 9, 9]
    def place_reads(self, g, n, base, pat=None):
        for k, r in zip(pat or self.PAT, self.rd[n]): g.put(base + k, r)
    def need(self, n, lo, hi): return NEED(*[R(*self.frag(n, f), 4) for f in range(lo, hi)])
    def out(self, cg, p2, qb, qreg):
        a, b = self.acc(cg, 2 * p2, qb), self.acc(cg, 2 * p2 + 1, qb)
        ins = [I(f"v_mul_f32 v{r + e}, s{K.sSC}, v{r + e}") for r in (a, b) for e in range(4)]
        if (cg, p2) != (3, 1):
            for i in ins: dep(i, self.lastm[(cg, 2 * p2, qb)], self.lastm[(cg, 2 * p2 + 1, qb)])
        ins += pack(("v", a), ("v", b), 0)[0]
        ins += [I(f"v_accvgpr_write_b32 a{qreg + e}, v{a + e}") for e in range(4)]
        return ins, 14 * (8 * cg + 4 + 2 * p2 + 1) + 7 * qb + 6
```

```python
from asmlib import *

class At:
    def __init__(self, k): self.k = k
class By:
    def __init__(self, k): self.k = k
class Sep:
    def __init__(self, n): self.n = n

def is_vm4(i): return i.kind in ("dma", "vld", "vst") and "x4" in i.op
def cost(i):
    if i.kind == "label": return 0
    return max(i.slots())

class Stream:
    def __init__(self, items, lo, hi, asap, vmd):
        self.it = []
        e = lo; sep = 0
        for x in items:
            if isinstance(x, int): x = Sep(x)
            if isinstance(x, At): e = max(e, x.k)
            elif isinstance(x, Sep): sep += x.n
            elif isinstance(x, By):
                for r in self.it: r[2] = min(r[2], x.k)
            else:
                self.it.append([x, e, 10 ** 9, sep]); sep = 0
        link([r[0] for r in self.it])
        tot = sum(cost(r[0]) if r[0].slots()[0] else 0 for r in self.it) or 1
        acc = 0; self.tgt = []
        for r in self.it:
            self.tgt.append(max(r[1], lo if asap else lo + (acc * (hi - lo)) // tot))
            if r[0].slots()[0]: acc += cost(r[0])
        for n in range(len(self.it) - 1, -1, -1):
            if not self.it[n][0].slots()[0] and n + 1 < len(self.it): self.tgt[n] = max(self.it[n][1], min(self.tgt[n], self.tgt[n + 1] - 1))
        self.p = 0; self.last = -1; self.last_head = True; self.hi = hi; self.vmd = vmd
    def left(self): return [r[0] for r in self.it[self.p:]]

class Sched:
    def __init__(self, g):
        self.g = g; self.s = []
    def add(self, items, lo=0, hi=None, asap=False, vmd=3):
        items = list(items)
        if items: self.s.append(Stream(items, lo, self.g.n - 1 if hi is None else hi, asap, vmd))
        return self
    def run(self, spill=False, cap=None):
        g = self.g; lock = None
        fixed_scc = [any(writes_scc(x) for x in g.sc[k] + g.ve[k]) for k in range(g.n)]
        def nscc(s, n):
            m = 0
            while n + m + 1 < len(s.it) and s.it[n + m + 1][0].extra.get("scc") is s.it[n][0]: m += 1
            return m
        def depends_later(s, n):
            return any(r[0].extra.get("scc") is s.it[n][0] for r in s.it[n + 1:])
        for k in range(g.n):
            final = k == g.n - 1
            while True:
                best = None
                for si, s in enumerate(self.s):
                    if s.p >= len(s.it): continue
                    i, e, l, sep = s.it[s.p]
                    if i.kind == "label":
                        best = (-10 ** 9, si, "label"); break
                    forced = l <= k or (final and not spill)
                    if s.last == k and sep and not forced: continue
                    if (k < e or k < s.last + sep) and not final: continue
                    if final and spill and l > k and (k < e or k < s.last + sep): continue
                    if s.p and "m0" in s.it[s.p - 1][0].writes and s.last == k and i.kind == "dma" and not forced: continue
                    if writes_scc(i) and lock is not None and lock != si: continue
                    due = s.tgt[s.p] <= k
                    if not due and not forced: continue
                    scalar = i.slots()[0] == 0
                    if scalar and writes_scc(i) and depends_later(s, s.p) and not forced:
                        m = nscc(s, s.p)
                        if any(fixed_scc[q] for q in range(k, min(g.n, k + 2 * m + 2))): continue
                    head = scalar and not [x for x in g.sc[k] if x.kind != "label"] and (s.last < k or s.last_head) and not (lock is None and writes_scc(i) and False)
                    if head: how = "head"
                    else:
                        room = (cap or 2) - g.used(k)
                        if cost(i) > room and not forced: continue
                        if scalar and not forced and not (s.tgt[s.p] < k - 1 or lock == si): continue
                        if is_vm4(i) and not forced:
                            late = k - s.tgt[s.p]
                            d = s.vmd if late < 4 else (min(s.vmd, 2) if late < 8 else min(s.vmd, 1))
                            if g.vm_near(k, d): continue
                        how = "body"
                    key = (0 if forced else (1 if how == 'head' or cost(i) == 2 else 2), min(l, s.tgt[s.p] + (0 if not scalar else -2)), si)
                    if best is None or key < best[0]: best = (key, si, how)
                if best is None: break
                _, si, how = best
                s = self.s[si]; i = s.it[s.p][0]
                if how == "label":
                    q = max(s.last, 0)
                    (g.sc[q] if s.last_head else g.ve[q]).append(i)
                    s.p += 1; continue
                if how == "head": g.put_s(k, i); s.last_head = True
                else: g.put(k, i); s.last_head = False
                s.last = k
                if writes_scc(i) and depends_later(s, s.p): lock = si
                s.p += 1
                if lock == si:
                    src = [r[0] for r in s.it[:s.p] if writes_scc(r[0])][-1]
                    if not any(r[0].extra.get("scc") is src for r in s.it[s.p:]): lock = None
        assert lock is None or spill
        return [s.left() for s in self.s]
```

```python
from common import *
from side import S_WS, sWAVE, sH, sJ, WS, OOB, poll_flags
sI0, sI1 = 92, 94
NE = 8
FOP_LOAD = f"buffer_load_dword v9, v14, {WS}, s46 offen sc1"
RS = [dict(row=10, off=12, g=15, x=16, b=32, acc=48), dict(row=29, off=28, g=26, x=96, b=80, acc=64)]
def red_a(vl16):
    out = L(f"""
    v_lshrrev_b32 v0, 4, v{vl16}
    s_lshl_b32 s64, s{sJ}, 1
    s_lshr_b32 s74, s{sH}, 3
    s_add_u32 s46, s64, s74
    s_mul_i32 s46, s46, {FSTR}
    s_and_b32 s72, s{sH}, 7
    s_lshl_b32 s65, s72, 7
    s_add_u32 s46, s46, s65
    s_add_u32 s46, s46, {WS_FOP}
    v_and_b32 v14, 31, v0
    v_lshlrev_b32 v14, 2, v14
    {FOP_LOAD}
    v_bfe_u32 v11, v0, 4, 1
    v_lshlrev_b32 v11, 1, v11
    v_lshrrev_b32 v13, 5, v0
    v_add_u32 v11, v11, v13
    {srd(52, 96, 2048*896)}
    s_mul_i32 s67, s74, {14 - 2 * NE}
    s_mul_i32 s74, s74, {NE}
    s_add_u32 s74, s74, s{sWAVE}
    s_lshl_b32 s75, s74, 6
    s_add_u32 s76, s75, 256
    s_add_u32 s67, s67, {NE - 5}
    s_sub_u32 s67, s67, s{sWAVE}
    s_and_b32 s67, s67, {OOB}
    s_or_b32 s76, s76, s67
    v_or_b32 v27, s67, v{vl16}
    v_add_u32 v27, 4096, v27
    s_sub_u32 s64, 15, s64
    s_mul_i32 s77, s{sJ}, {16 * OP_HEAD}
    s_mul_i32 s78, s72, 14336
    s_add_u32 s77, s77, s78
    s_lshl_b32 s78, s74, 10
    s_add_u32 s77, s77, s78
    s_add_u32 s77, s77, {WS_OP}
    s_sub_u32 s78, s64, 1
    s_mul_i32 s78, s78, {16 * OP_HEAD}
    s_add_u32 s78, s78, s77
    s_lshr_b32 s73, s72, 1
    s_sub_u32 s65, 7, s73
    s_bitcmp1_b32 s72, 0
    s_cselect_b32 s73, s65, s73
    s_lshl_b32 s73, s73, 4
    s_lshl_b32 s65, s{sJ}, 7
    s_add_u32 s73, s73, s65
    s_lshl_b32 s64, s64, 7
    v_and_b32 v10, 15, v0
    v_add_u32 v10, s73, v10
    v_add_u32 v29, s64, v10
    s_mov_b32 s64, {WS_RG + 64}
    """)
    for r in RS:
        out += L(f"""
        v_mul_u32_u24 v{r['off']}, 896, v{r['row']}
        v_lshl_add_u32 v{r['off']}, v11, 4, v{r['off']}
        v_lshrrev_b32 v13, 4, v{r['row']}
        v_lshlrev_b32 v13, 5, v13
        v_and_b32 v104, 15, v{r['row']}
        v_add_lshl_u32 v13, v13, v104, 2
        buffer_load_dword v{r['g']}, v13, {WS}, s64 offen sc1
        buffer_load_dwordx4 v[{r['x']}:{r['x']+3}], v{r['off']}, s[56:59], s75 offen
        buffer_load_dwordx4 v[{r['x']+4}:{r['x']+7}], v{r['off']}, s[56:59], s76 offen
        """)
    return out + L("v_mov_b32 v24, 0x3f80\nv_mov_b32 v25, 0x3f800000") + [I(f"v_mov_b32 v{48+n}, 0") for n in range(32)]
def red_b(t):
    r = RS[t]
    return [i for w in range(8) for i in L(f"v_lshlrev_b32 v{r['b']+2*w}, 16, v{r['x']+w}\nv_and_b32 v{r['b']+1+2*w}, 0xffff0000, v{r['x']+w}")] + L(f"""
    v_sub_f32 v13, 1.0, v{r['g']}
    v_cmp_eq_u32 s[80:81], s{sI0}, v{r['row']}
    v_cmp_eq_u32 s[82:83], s{sI1}, v{r['row']}
    s_or_b64 vcc, s[80:81], s[82:83]
    s_cbranch_vccnz L_moe{t}
    L_moe_ret{t}:
    """) + [I(f"v_mul_f32 v{r['b']+e}, v13, v{r['b']+e}") for e in range(16)]
def red_main(vl16, st=lambda: [], lag=6, ke=27):
    out = L(f"""
    v_cmp_eq_u32 vcc, 1, v9
    s_mov_b32 s91, {SPIN_MAX}
    s_mov_b32 s69, 0
    s_mov_b32 s70, vcc_lo
    s_mov_b32 s68, vcc_lo
    """)
    ring = [16, 17, 18, 19, 48, 49, 50, 51]; assert lag < 8
    def acc(k):
        d = lambda t: [i for w in range(8) for i in L(f"v_dot2c_f32_bf16 v{RS[t]['acc']+2*w}, v{128+8*(k%16)+w}, v24\nv_dot2c_f32_bf16 v{RS[t]['acc']+1+2*w}, v{128+8*(k%16)+w}, v25")]
        f = 0 if k < 16 else 1
        return ([NEED(R("v", 128 + 8 * (k % 16), 8))] + L(f"s_bitcmp{1 - f}_b32 s69, {k}\ns_cbranch_scc1 L_rx{k}") + d(f) + L(f"L_ry{k}:"),
                L(f"L_rx{k}:") + d(1 - f) + L(f"s_branch L_ry{k}"))
    def fin(t, note=""):
        r = RS[t]; o = L("s_nop 2")
        o += [I(f"v_permlane16_swap_b32 v{r['acc']+8*u+e}, v{r['acc']+8*u+4+e}") for u in range(2) for e in range(4)]
        for u in range(2):
            o += [I(f"v_fmac_f32 v{r['b']+8*u+e}, v{r['g']}, v{r['acc']+8*u+e}") for e in range(8)]
            o += [I(f"v_cvt_pk_bf16_f32 v{r['x']+4*u+w}, v{r['b']+8*u+2*w}, v{r['b']+1+8*u+2*w}") for w in range(4)]
            o.append(I(f"buffer_store_dwordx4 v[{r['x']+4*u}:{r['x']+3+4*u}], v{r['off']}, s[52:55], s{75+u} offen sc1{note}"))
        return o
    far = []
    for k in range(32 + lag):
        if k < 32:
            out += L(f"""s_cmp_lg_u32 s70, 0
            s_cbranch_scc1 L_rk{k}
            s_call_b64 s[36:37], L_rpoll
            L_rk{k}:
            s_ff1_i32_b32 s71, s70
            s_bitset0_b32 s70, s71
            s_cmp_ge_u32 s71, 16
            s_cselect_b32 s72, s78, s77
            s_cselect_b32 s73, {hex(1 << k)}, 0
            s_mul_i32 s71, s71, {OP_HEAD}
            s_add_u32 s{ring[k % 8]}, s71, s72
            buffer_load_dwordx4 v[{128+8*(k%16)}:{131+8*(k%16)}], v{vl16}, {WS}, s{ring[k % 8]} offen sc1
            s_or_b32 s69, s69, s73
            buffer_load_dwordx4 v[{132+8*(k%16)}:{135+8*(k%16)}], v27, {WS}, s{ring[k % 8]} offen sc1""")
        if k in (1, 2): out += red_b(k - 1)
        if k == 31: out += st()
        if k >= lag:
            a_, f_ = acc(k - lag); out += a_; far += f_
        if k == ke:
            out += L(f"""s_and_b32 s71, s69, {hex((1 << (k - lag + 1)) - 1)}
            s_bcnt1_i32_b32 s71, s71
            s_cmp_eq_u32 s71, {k - lag + 1 - 16}
            s_cselect_b32 s66, 1, 0
            s_cbranch_scc0 L_rne""") + fin(0, " ; nocount") + L("L_rne:")
    out += st() + fin(1) + L("s_cmp_eq_u32 s66, 1\ns_cbranch_scc1 L_rdone") + fin(0) + L("L_rdone:")
    return out, far
def red_poll():
    return L(f"""
    L_rpoll0:
    s_sleep 1
    L_rpoll:
    {FOP_LOAD}
    s_waitcnt vmcnt(0)
    v_cmp_eq_u32 vcc, 1, v9
    s_sub_u32 s91, s91, 1
    s_cselect_b32 s70, -1, 0
    s_or_b32 s70, s70, vcc_lo
    s_andn2_b32 s70, s70, s68
    s_cbranch_scc0 L_rpoll0
    s_or_b32 s68, s68, s70
    s_setpc_b64 s[36:37]
    """)
def red_moe():
    out = []
    for t in range(2):
        out += L(f"L_moe{t}:\ns_call_b64 s[36:37], L_moe") + [I(f"v_add_f32 v{RS[t]['b']+e}, v{108+e}, v{RS[t]['b']+e}") for e in range(16)] + L(f"s_mov_b64 exec, -1\ns_branch L_moe_ret{t}")
    out += L(f"""
    L_moe:
    v_min_u32 v104, 27, v0
    v_lshlrev_b32 v104, 2, v104
    s_mov_b32 s64, {WS_FH + 512}
    """) + poll_flags(64, 64, "L_pfy", 105, 104, 65) + L(f"""
    s_or_b64 exec, s[80:81], s[82:83]
    v_mov_b32 v104, 1792
    v_cndmask_b32 v104, v104, 0, s[80:81]
    v_lshl_add_u32 v104, v11, 5, v104
    s_lshl_b32 s88, s75, 1
    s_add_u32 s88, s88, {WS_YF}
    buffer_load_dwordx4 v[108:111], v104, {WS}, s88 offen sc1
    buffer_load_dwordx4 v[112:115], v104, {WS}, s88 offen offset:16 sc1
    buffer_load_dwordx4 v[116:119], v104, {WS}, s88 offen offset:512 sc1
    buffer_load_dwordx4 v[120:123], v104, {WS}, s88 offen offset:528 sc1
    s_waitcnt vmcnt(0)
    s_setpc_b64 s[36:37]
    """)
    return out
def y_stubs(ret):
    adr = f"""
    v_lshrrev_b32 v11, 7, v7
    v_mul_u32_u24 v11, {FSTR}, v11
    v_and_b32 v12, 0x70, v7
    v_lshl_add_u32 v11, v12, 3, v11
    s_mov_b32 s64, {WS_FL}
    s_mov_b32 s65, {WS_FL + 8 * FSTR}
    """
    ld = f"buffer_load_dword a128, v11, {WS}, s64 offen sc1\nbuffer_load_dword a129, v11, {WS}, s65 offen sc1"
    un = f"s_lshl_b32 s66, s{sH}, 1\ns_add_u32 s66, s66, s{sWAVE}"
    out = L(f"""
    L_y2:
    {adr}
    {ld}
    s_branch {ret}
    s_waitcnt vmcnt(0)
    L_y3:
    s_mov_b32 s91, {SPIN_MAX}
    L_y3c:
    v_accvgpr_read_b32 v12, a128
    v_accvgpr_read_b32 v13, a129
    v_min_u32 v12, v12, v13
    v_cmp_eq_u32 vcc, 0, v12
    s_sub_u32 s91, s91, 1
    s_cbranch_scc1 L_y3x
    s_cbranch_vccz L_y3x
    {adr}
    {ld}
    s_waitcnt vmcnt(0)
    s_branch L_y3c
    L_y3x:
    {un}
    s_cmp_lt_u32 s66, 14
    s_cselect_b32 s64, 8, 12
    s_add_u32 s64, s64, {WS_SEL}
    buffer_load_dword a130, off, {WS}, s64 sc1
    v_lshrrev_b32 v11, 7, v7
    v_mul_u32_u24 v11, 3584, v11
    v_and_b32 v12, 0x70, v7
    v_add_u32 v11, v12, v11
    s_lshl_b32 s65, s66, 7
    s_add_u32 s65, s65, {WS_Y}
    """)
    for n in range(14):
        out += L(f"buffer_load_dwordx4 a[{132+4*n}:{135+4*n}], v11, {WS}, s65 offen sc1\ns_add_u32 s65, s65, {8 * 3584}")
    out += L(f"s_branch {ret}\ns_waitcnt vmcnt(0)\nL_y4:")
    acc = [12 + e for e in range(4)]
    out += [I(f"v_accvgpr_read_b32 v{a}, a{132 + e}") for e, a in enumerate(acc)]
    for n in range(1, 14):
        for h in range(2):
            out += [I(f"v_accvgpr_read_b32 v{16 + e}, a{132 + 4 * n + 2 * h + e}") for e in range(2)] + [I(f"v_add_f32 v{12 + 2 * h + e}, v{16 + e}, v{12 + 2 * h + e}") for e in range(2)]
    out += [I(f"v_add_f32 v{a}, v{a}, v{a} row_ror:8 row_mask:0xf bank_mask:0xf") for a in acc]
    for sw in ("v_permlane16_swap_b32", "v_permlane32_swap_b32"):
        for a in acc: out += L(f"v_mov_b32 v11, v{a}\n{sw} v11, v{a}\nv_add_f32 v{a}, v11, v{a}")
    out += L("v_accvgpr_read_b32 v16, a130")
    for rep in range(2):
        for p in (12, 14):
            out += L(f"v_cvt_pk_bf16_f32 v11, v{p}, v{p+1}\nv_lshlrev_b32 v{p}, 16, v11\nv_and_b32 v{p+1}, 0xffff0000, v11")
        if rep == 0: out += [I(f"v_mul_f32 v{a}, v16, v{a}") for a in acc]
    out += L(f"""
    {un}
    s_lshl_b32 s65, s66, 7
    s_add_u32 s65, s65, {WS_YF}
    s_mov_b64 exec, 0xff
    buffer_store_dwordx4 v[12:15], v7, {WS}, s65 offen sc1
    s_mov_b64 exec, -1
    s_nop 1
    s_branch {ret}
    L_y5:
    {un}
    s_lshl_b32 s66, s66, 2
    s_add_u32 s66, s66, {WS_FH + 512}
    v_mov_b32 v11, 1
    s_mov_b64 exec, 1
    buffer_store_dword v11, off, {WS}, s66 sc1
    s_mov_b64 exec, -1
    s_branch {ret}
    """)
    return out
```

```python
import sys
from att5 import *
import att, att5, kvq, kv5, side, side5, hw, asmlib
from kv5 import K, QR, QPhase, kacc
opt = dict(stamp="0", v="1", thr=str(2.0 ** 24), low=str(2.0 ** -24), fine="0", no="16", hpad="0", vpad="0", opad="0", kvonly="0",
           tg="113", tcq="0,4,7", tc="6,13", tQ="9", lag="6", ke="27", w29="xxxxxxxxxxxx", w30="xx2222222", w31="xxxxxxxx", q0="xxxxxx33333334444444",
           fl="250", fc="290", s15="20,108", sq="2,400", vq="4,4", vp="3,3,2,0", l1="1", pfg="30", wq="8,0,8,12,12,8,8", wh="8,4,16,12,8,8", tw="3", odh="45", fpl="20", fpc="0", pl="56")
for a in sys.argv[1:]:
    k, v = a.split("="); assert k in opt, k; opt[k] = v
STAMP = opt["stamp"] in "12"; LIGHT = opt["stamp"] == "2"
ints = lambda k: [int(x) for x in opt[k].split(",")]
side.NTT = ""; side.RNT = ""
X.update(wide=1, ls=1, r3=0, r3x='-')
sMODE, sH, sJ, sVD, sSTK, sFL = 40, 41, 42, 43, 44, 45
sKV, sMLD, sNC = 45, 39, 35
NO = int(opt['no']); assert NO % 2 == 0
JH = NO // 2
aST = 250
OOB = side.OOB
def stamp(t=16, force=False):
    if not STAMP or (LIGHT and not force): return []
    return L(f"""s_memrealtime s[36:37]
    s_memtime s[98:99]
    v_accvgpr_read_b32 v{t}, a{aST}
    v_accvgpr_read_b32 v{t+1}, a{aST+1}
    s_mov_b32 s100, m0
    s_mov_b32 m0, s{sSTK}
    s_waitcnt lgkmcnt(0)
    v_writelane_b32 v{t}, s98, m0
    v_writelane_b32 v{t+1}, s36, m0
    s_add_u32 s{sSTK}, s{sSTK}, 1
    s_mov_b32 m0, s100
    v_accvgpr_write_b32 a{aST}, v{t}
    v_accvgpr_write_b32 a{aST+1}, v{t+1}""")
def stampa():
    if not STAMP or LIGHT: return []
    return L("v_accvgpr_write_b32 a252, v10\nv_accvgpr_write_b32 a253, v11") + stamp(10) + L("v_accvgpr_read_b32 v10, a252\nv_accvgpr_read_b32 v11, a253")
fs = lambda c: stampa() if c in opt['fine'] else []
def stamp0(t=26):
    if not STAMP: return []
    return L(f"""s_waitcnt lgkmcnt(0)
    v_mov_b32 v{t}, 0
    v_mov_b32 v{t+1}, 0
    v_writelane_b32 v{t}, s38, 0
    v_writelane_b32 v{t+1}, s46, 0
    s_mov_b32 s{sSTK}, 1
    v_accvgpr_write_b32 a{aST}, v{t}
    v_accvgpr_write_b32 a{aST+1}, v{t+1}""")
def fin():
    if not STAMP: return []
    return L("s_mov_b64 exec, -1\ns_waitcnt vmcnt(0) lgkmcnt(0)") + stamp(30, True) + L(f"""
        s_lshl_b32 s29, s2, 2
        s_add_u32 s29, s29, s{A.sWAVE}
        s_lshl_b32 s29, s29, 9
        s_add_u32 s29, s29, {WS_STAMP}
        v_lshrrev_b32 v10, 1, v{A.vL16}
        buffer_store_dwordx2 a[{aST}:{aST+1}], v10, {WSR}, s29 offen
        """)
EXIT = lambda: fin() + L("s_endpgm")

def entry(c):
    c.block("entry", f"""
    s_cmp_lt_u32 s2, 256
    s_cbranch_scc1 L_go
    s_endpgm
    L_go:
    {"s_memrealtime s[46:47]" + chr(10) + "s_memtime s[38:39]" if STAMP else ""}
    s_load_dwordx8 s[80:87], s[0:1], {A_X}
    s_load_dwordx4 s[88:91], s[0:1], {A_WUV}
    s_getpc_b64 s[76:77]
    L_pc0:
    s_lshr_b32 s{sJ}, s2, 3
    s_mov_b32 s79, 0x20000
    s_lshl_b32 s67, s{sJ}, 13
    s_mov_b32 s78, L_code_end-L_pc0
    s_and_b32 s77, s77, 0xffff
    v_lshl_add_u32 v31, v0, 5, s67
    """, side.touch(31, 76, 0, nt=False), f"""
    v_lshrrev_b32 v24, 6, v0
    v_and_b32 v0, 63, v0
    s_and_b32 s{sH}, s2, 7
    v_readfirstlane_b32 s{K.sWAVE}, v24
    s_lshr_b32 s64, s2, 7
    v_and_b32 v24, 15, v0
    v_lshrrev_b32 v25, 4, v0
    s_lshl_b32 s64, s64, 3
    s_add_u32 s{sH}, s{sH}, s64
    s_and_b32 s{sJ}, s{sJ}, 15
    s_lshr_b32 s{sKV}, s{sJ}, 3
    v_lshlrev_b32 v28, 1, v25
    v_xor_b32 v28, v28, v24
    v_and_b32 v29, 8, v28
    v_and_b32 v28, 7, v28
    v_lshlrev_b32 v28, 4, v28
    v_lshl_add_u32 v28, v29, 5, v28
    v_lshl_add_u32 v28, v25, 13, v28
    s_lshl_b32 s64, s{K.sWAVE}, 17
    v_add_u32 v{K.vWD}, s64, v28
    v_xor_b32 v28, 0x100, v{K.vWD}
    v_add_u32 v{K.vWD+1}, {4*8192 - 1024}, v{K.vWD}
    v_add_u32 v{K.vWD+2}, {8*8192 - 2048}, v28
    v_add_u32 v{K.vWD+3}, {12*8192 - 3072}, v28
    s_and_b32 s65, s{K.sWAVE}, 1
    s_lshr_b32 s66, s{K.sWAVE}, 1
    v_and_b32 v29, 7, v0
    v_xor_b32 v28, v25, v29
    v_lshlrev_b32 v28, 4, v28
    v_lshrrev_b32 v29, 3, v0
    v_lshl_add_u32 v30, v29, 11, v28
    s_lshl_b32 s64, s66, 19
    s_lshl_b32 s67, s65, 21
    s_add_u32 s64, s64, s67
    v_add_u32 v{K.vCD}, s64, v30
    v_xor_b32 v30, 64, v{K.vCD}
    v_add_u32 v{K.vCD+2}, {16*2048 - 2048}, v{K.vCD}
    v_add_u32 v{K.vCD+1}, {8*2048 - 1024}, v30
    v_add_u32 v{K.vCD+3}, {24*2048 - 3072}, v30
    s_mov_b32 s{K.sWOFF}, 0
    s_mov_b32 s{K.sCOFF}, 0
    s_lshl_b32 s{K.sM0W}, s{K.sWAVE}, 12
    s_add_u32 s{K.sM0C}, s{K.sM0W}, 65536
    s_lshl_b32 s74, s{sH}, 9
    s_sub_u32 s{K.S_W+2}, {1024*8192}, s74
    s_mov_b32 s{K.S_W+3}, 0x20000
    s_and_b32 s64, s{sJ}, 7
    s_lshl_b32 s64, s64, 16
    s_sub_u32 s{K.S_C+2}, {2048*2048}, s64
    s_mov_b32 s{K.S_C+3}, 0x20000
    s_cmp_eq_u32 s{sKV}, 0
    s_cselect_b32 s72, s86, s88
    s_cselect_b32 s73, s87, s89
    s_add_u32 s{K.S_W}, s72, s74
    s_addc_u32 s73, s73, 0
    s_and_b32 s{K.S_W+1}, s73, 0xffff
    s_add_u32 s{K.S_C}, s82, s64
    s_addc_u32 s73, s83, 0
    s_and_b32 s{K.S_C+1}, s73, 0xffff
    """, kv5.unit_w(0), kv5.unit_c(0), kv5.unit_w(1), f"""
    s_load_dwordx2 s[92:93], s[0:1], {A_WR}
    s_load_dwordx2 s[94:95], s[0:1], {A_GW}
    s_load_dwordx4 s[4:7], s[0:1], {A_DBG}
    """, stamp0(28), stamp(28), f"v_lshlrev_b32 v{K.vST}, 4, v0", kvq.addr_rd(), side.c_touch_setup(), f"""
    {srd(32, 82, 2048*2048)}
    {srd(K.S_X, 80, 2048*896)}
    {srd(60, 92, 896)}
    {srd(68, 94, 896)}
    s_lshl_b32 s95, s{K.sWAVE}, 11
    s_lshr_b32 s64, s2, 3
    s_lshl_b32 s64, s64, 13
    s_add_u32 s95, s95, s64
    {srd(K.S_WS, 6, 1 << 28)}
    {srd(K.S_DBG, 4, 256)}
    s_add_u32 s72, s84, s74
    s_addc_u32 s73, s85, 0
    s_sub_u32 s75, {448*8192}, s74
    {srd(K.S_WQ, 72, "s75")}
    s_mul_i32 s{K.sXOFF}, s{sJ}, {128*896}
    s_mov_b32 s{K.sSC}, {hex(f2u(LOG2E_16))}
    s_mul_i32 s72, s{sKV}, {WS_V}
    s_mul_i32 s73, s{sH}, {HS}
    s_add_u32 s72, s72, s73
    s_bfe_u32 s64, s{sJ}, 0x20001
    s_lshl_b32 s64, s64, 15
    s_add_u32 s72, s72, s64
    s_lshl_b32 s64, s66, 17
    s_add_u32 s72, s72, s64
    s_and_b32 s67, s{sJ}, 1
    s_cmp_eq_u32 s{sKV}, 0
    s_cselect_b32 s64, 12, 14
    s_cselect_b32 s75, 14, 10
    s_lshl_b32 s67, s67, s75
    s_add_u32 s72, s72, s67
    s_lshl_b32 s64, s65, s64
    s_add_u32 s{K.sOOFF}, s72, s64
    """, side.h_touch_srd(), f"s_load_dwordx2 s[96:97], s[0:1], {A_OUT}", f"s_cmp_eq_u32 s{sKV}, 0\ns_cbranch_scc0 L_kv1")

FL_LOAD = lambda: I(f"buffer_load_dword v{A.vRL}, v9, {WSR}, s46 offen sc1")
FP_LOAD = lambda: I(f"buffer_load_dword v{A.vRL + 1}, off, {WSR}, s47 sc1")
def level(val, t): return L(f"v_mov_b32 v{t}, {val}") + [side.flag_store(sFL, A.vF0, t)]
def lcheck(val, n): return L(f"v_cmp_gt_u32 vcc, {val}, v{A.vRL}\ns_cbranch_vccnz L_ls{n}\nL_lr{n}:")
LSPIN = {}
PBASE = lambda: L(f"""
    s_lshl_b32 s86, s{A.sWAVE}, 14
    s_add_u32 s86, s86, s{A.sPO}
    s_add_u32 s87, s86, 4096
    s_add_u32 s88, s86, 8192
    s_add_u32 s89, s86, 12288
    s_lshl_b32 s90, s{A.sWAVE}, 10
    s_add_u32 s90, s90, s{A.sPO}
    s_add_u32 s90, s90, 65536
    """)

class KVStore:
    def __init__(self, vt):
        self.prs = kv5.kv_pairs(vt); self.reg = {}; self.src = {}
    def st(self, n, tag, reg=None, newpage=True):
        off = self.prs[n][2]
        s = I(f"buffer_store_dwordx4 {reg or self.reg[n]}, v{K.vST}, {WSR}, s3 offen offset:{off & 0xfff} sc1", tag=tag)
        if not reg: dep(s, *self.src[n])
        return ([I(f"s_add_u32 s3, s{K.sOOFF}, {off & ~0xfff}")] if newpage else []) + [s]
    def many(self, ns, tag, regf=None):
        out = []; cur = None
        for n in ns:
            pg = self.prs[n][2] >> 12
            out += self.st(n, tag(n) if callable(tag) else tag, regf(n) if regf else None, pg != cur); cur = pg
        return out

def win_qk1(vslot, v4, stub, extra=lambda s: None, tags=(), post=()):
    g = Gaps(qk_mfmas(1, C0))
    tile_reads(g, lambda b: rd_batch(KSLOT[1], b), rd_batch(vslot, 0, v4), [("T", vslot)] + list(tags))
    s = Sched(g).add(dma_flat(KSLOT[0], A.sK) + adv_k(), 1, 40)
    if post: s.add(post, 48, 52, asap=True)
    extra(s); s.run()
    put_tail(g, sched_sm(g, softmax_groups(0, 1), 0, 54), check_first(f"L_st{stub}"))
    return g.flat() + L(f"L_rt{stub}:"), None
def win_pv0(vslot, v4, extra=lambda s: None, tags=(), post=()):
    g = Gaps(pv_mfmas(0, zero=True))
    tile_reads(g, lambda b: rd_batch(vslot, b, v4), rd_batch(KSLOT[0], 0), [("T", KSLOT[0])] + list(tags))
    s = Sched(g).add(dma_flat(KSLOT[1], A.sK) + adv_k(), 1, 44)
    if post: s.add(post, 48, 52, asap=True)
    extra(s); s.run()
    sched_sm(g, softmax_groups(1, 0), 0, 60, add_l(0))
    return g.flat()
def win_qk(b, stub, extra=lambda s: None, tags=(), post=()):
    g = Gaps(qk_mfmas(1 - b, lambda kb, qb: NMq(qb)))
    tile_reads(g, lambda n: rd_batch(KSLOT[1 - b], n), rd_batch(VSLOT[b], 0), [("T", VSLOT[b])] + list(tags))
    s = Sched(g).add(dma_flat(VSLOT[1 - b], A.sV) + adv_v(), 1, 44)
    if post: s.add(post, 48, 52, asap=True)
    extra(s); s.run()
    put_tail(g, sched_sm(g, softmax_groups(b, 1), 0, 56), check(b, f"L_st{stub}"))
    return g.flat() + L(f"L_rt{stub}:")
def win_pv(b, extra=lambda s: None, tags=(), post=()):
    g = Gaps(pv_mfmas(b))
    tile_reads(g, lambda n: rd_batch(VSLOT[b], n), rd_batch(KSLOT[b], 0), [("T", KSLOT[b])] + list(tags))
    s = Sched(g).add(dma_flat(KSLOT[1 - b], A.sK) + adv_k(), 1, 44)
    if post: s.add(post, 48, 52, asap=True)
    extra(s); s.run()
    sched_sm(g, softmax_groups(1 - b, 0), 0, 60, add_l(b))
    return g.flat()
HELPER_K = lambda: L(f"""
    s_mul_i32 s{A.sK}, s{sH}, {HS}
    s_add_u32 s{A.sK}, s{A.sK}, {NO * 32768}
    s_lshl_b32 s84, s{sJ}, 1
    s_sub_u32 s{A.sKcnt}, {30 - NO - 1}, s84
    s_mov_b32 s{A.sKn1}, {OOB}
    """)

def front(c, vt):
    frags = [kvq.rd_c(0, 0, 0, 0), kvq.rd_c(0, 0, 0, 1)] + kv5.rd_w_unit(0, 0, 0) + kv5.rd_w_unit(0, 1, 1)
    out = (side.z_store()[:-3] + side.r4_loads() + side.z_store()[-3:] if vt == 0 else []) + kv5.unit_w(2) + kv5.unit_c(1)
    out += [WAITV([("W", 1), ("C", 0), ("W", 0)], lgkm0=True), I("s_barrier")] + stamp(26) + frags
    if vt == 0: out += side.r4_compute()
    out += [NEED(R("a", kv5.wfrag(0, 0, 0), 8), R("a", 160, 8))]
    tQ = int(opt["tQ"])
    xl = {k: kv5.x_load(*k) for k in kv5.XORD}
    xq = list(kv5.XORD); uq = {u: 0 for u in range(8)}
    def items(spec):
        o = []
        for ch in spec:
            if ch == 'x': o.append(xl[xq.pop(0)])
            else:
                u = int(ch); o += kv5.wq_dma(u, uq[u]); uq[u] += 1
        return o
    for t in range(15):
        dma = kv5.kv_dma(t)
        if vt == 0 and t == 2: hpre, uns = hw.s1_weights()
        if vt == 0 and 3 <= t <= 6: dma[1] = dma[1] + uns[2 * (t - 3):2 * (t - 2)]
        if vt == 0 and t == 10:
            dpre, un = hw.s6_down_dma(); dma[1] = dma[1] + [un]
        late = t >= 13
        g = kv5.kv_tile(t, vt, [dma[0] if t == 13 else [], []] if late else dma)
        def fit(ins, k, pace=0):
            k, left = kvq.seq_fit(g, ins, k, pace); assert not left, (t, len(left)); return k
        def mm(ms, k):
            k |= 1
            for m in ms: g.put(k, m)
            return k
        tch = []
        if t in ints('tcq'): tch += side.c_touch(32, ints('tcq').index(t) + 1)
        if t == 1 and vt == 0: fit(side.z_signal(), 112)
        if t == 2 and vt == 0: assert fit(side.rg4_store(), 4, 1) < 42
        if t == 3: fit(side.z_load(), 50)
        if t == 4:
            k = fit(side.z_check(vt), 112)
            if vt == 0: fit(side.key4_store(), k + 1)
        if t == 5: fit(L(f"""s_mul_i32 s64, s{sH}, {256 * 896}
            s_add_u32 s72, s90, s64
            s_addc_u32 s73, s91, 0
            s_sub_u32 s75, {4096 * 896}, s64
            {srd(S_WO, 72, "s75")}"""), 4)
        if vt == 1:
            pre_, tl = side.q_touch3(K.S_WQ)
            if t == tQ: fit(pre_, 60)
            if 0 <= t - tQ < len(tl): tch += tl[t - tQ]
        else:
            if t == 2: fit(hpre, 42)
            if t == 6: fit(hw.s2_keys(), 64)
            if t == 7: assert fit(hw.s3_top2(), 10, 1) < 108
            if t == 8: fit(hw.s4_sel() + L(f"v_readlane_b32 s{side5.sI0}, v24, 0\nv_readlane_b32 s{side5.sI1}, v24, 1"), 4, 1)
            if t == 9:
                (r0, m0), (r1, m1) = hw.s5_gemm()
                k = fit([WAITV("HW")] + r0, 50); k = mm(m0, max(k + 6, 78)); k = fit(r1, k + 1); mm(m1, max(k + 6, 110))
            if t == 10: assert fit(dpre, 4) < 44
            if t == 11: fit(hw.s7_act(), 2, 1)
            if t == 12:
                pre, ms, yadr, yst = hw.s8_down(); link(yadr + yst)
                k = fit(pre, 2); k = mm(ms, max(k + 2, 30)); k = fit(yadr, k + 1); fit(yst, max(k + 1, 60), 6)
        if str(t) in opt['tc'].split(','): tch += side.code_addr(26, 27) + [side.touch(26, 76, 0, nt=False)]
        if late:
            s = Sched(g)
            fl = lambda us: [i for u in us for i in u]
            if t == 13: s.add(kv5.q_setup() + [At(51)] + fl(dma[1]) + items("0000000"), 45, 110)
            if t == 14:
                s.add(fl(dma[0]) + items("1111111") + [By(47)], 2, 46)
                s.add([At(49)] + kv5.q_setup2(), 49, 70); s.add(items(opt['w29']), 50, 110)
            s.run()
        fit(tch, int(opt['tg']))
        out += g.flat()
        if t in (0, 1, 11, 14) or '1' in opt['fine']: out += stamp(26)
    g = kv5.kv_tile(15, vt, [[], []], endtags=[("U", 0), ("U", 1)])
    ks = KVStore(vt)
    lastw = {}
    for m in g.m:
        for r in m.writes: lastw[r] = m
    done_at = lambda n: max(p[0] * 16 + p[1] * 2 + 1 for p in ks.prs[n][:2]) + 4
    packs = {}
    for n, (ta, tb, off) in enumerate(ks.prs):
        ins, reg = kvq.pack(kacc(*ta), kacc(*tb), K.vT + (4 * (n & 1) if vt else 0))
        seen = set()
        for i in ins:
            for r in i.reads:
                if r in lastw and r not in seen: i.extra.setdefault("raw", {})[r] = lastw[r]
            seen |= set(i.writes)
        packs[n] = ins; ks.reg[n] = R("v", reg, 4); ks.src[n] = ins[-4:]
    qp = QPhase([32 + 4 * f for f in range(7)], [kacc(y, x)[1] for y in (3, 5) for x in range(8)] if vt else [kacc(y, x)[1] for y in (2, 3, 4, 5) for x in (1, 3, 5, 7)])
    qp.place_reads(g, 0, 112)
    g.put_s(126, NEED(R("a", 176, 56))); g.put_s(127, qp.need(0, 0, 4))
    s = Sched(g)
    lo, hi = ints('s15'); st1 = []; cur = None
    for n in range(8):
        pg = ks.prs[n][2] >> 12
        st1 += [At(max(done_at(n), lo + n * (hi - lo) // 8 - 6))] + packs[n] + ks.st(n, "KV1", newpage=pg != cur); cur = pg
    s.add(st1 + [By(110)], 0, hi, asap=True)
    s.add(items(opt['w30']) + [At(49)] + items(opt['w31']), 1, 124)
    s.add([x for n in range(8, 32) for x in [At(done_at(n))] + packs[n]], 0, 127, asap=True)
    left = s.run(spill=True); assert not left[0] and not left[1], left
    carry = left[2]
    out += g.flat() + (stamp(26) if '2' in opt['fine'] else [])
    g = Gaps(qp.mfmas(xl))
    LV = {1: [("U", 2), ("U", 3)], 2: [("U", 4), ("U", 5)], 3: [("U", 6), ("U", 7)], 4: [("T", KSLOT[0])]}
    l1 = int(opt['l1'])
    LV[l1] = LV[l1] + ["KV1"]
    if not vt: LV[3] = LV[3] + ["KV2"]
    g.put_s(2, qp.need(0, 4, 7))
    for n in range(32):
        if n < 31: qp.place_reads(g, n + 1, 14 * n)
        else: put_batch(g, rd_batch(KSLOT[0], 0), 14 * n); g.put_s(14 * n + 13, need_batch(0))
        if n % 8 == 6:
            g.put_s(14 * n + 12, WAITV(LV[n // 8 + 1], lgkm0=True)); g.put_s(14 * n + 13, I("s_barrier"))
        elif n < 31:
            g.put_s(14 * n + 13, qp.need(n + 1, 0, 4)); g.put_s(14 * n + 16, qp.need(n + 1, 4, 7))
    g.put_s(54, NEED(R("a", 96, 56)))
    QB = lambda x: 112 * x - 14
    setup = L(f"""
    s_mul_i32 s72, s{sH}, {FSTR}
    s_add_u32 s46, s72, {WS_FL}
    s_lshl_b32 s{sFL}, s{sJ}, 7
    s_add_u32 s{sFL}, s{sFL}, s46
    """) + side.lane0_wave0(A.vF0) + L(f"""
    v_min_u32 v9, 15, v0
    v_lshlrev_b32 v9, 7, v9
    s_sub_u32 s66, 15, s{sJ}
    s_max_u32 s67, s66, s{sJ}
    s_min_u32 s66, s66, s{sJ}
    s_mul_i32 s{A.sK}, s{sH}, {HS}
    s_lshl_b32 s64, s67, 16
    s_add_u32 s{A.sQ}, s{A.sK}, s64
    s_lshl_b32 s64, s{A.sWAVE}, 14
    s_add_u32 s{A.sQ}, s{A.sQ}, s64
    s_add_u32 s{A.sQ}, s{A.sQ}, {WS_Q}
    s_sub_u32 s64, s{sJ}, {JH + 1}
    s_and_b32 s{sNC}, s64, {OOB}
    v_or_b32 v6, s{sNC}, v{A.vL16}
    """) + [By(80)] + L(f"""
    s_lshl_b32 s{A.sM0}, s{A.sWAVE}, 13
    v_add_u32 v{A.vRD1}, 0x10000, v{A.vL16}
    v_add_u32 v{A.vDM0}, s{A.sM0}, v{A.vL16}
    v_add_u32 v{A.vDM1}, 0x1000, v{A.vDM0}
    s_lshl_b32 s64, s{sJ}, 16
    s_add_u32 s{A.sKn1}, s{A.sK}, s64
    s_add_u32 s{sVD}, s{A.sKn1}, {WS_V}
    s_add_u32 s{A.sV}, s{A.sK}, {WS_V}
    {f'''s_min_u32 s{A.sIT}, s{sJ}, {JH}
    s_lshl_b32 s{A.sKcnt}, s{A.sIT}, 1
    s_sub_u32 s{A.sKcnt}, s{A.sKcnt}, 1
    s_sub_u32 s{A.sIT}, s{A.sIT}, 2''' if vt else f'''s_mov_b32 s{A.sKcnt}, 0x7fff
    s_sub_u32 s{A.sIT}, s{sJ}, 1
    s_cmp_eq_u32 s{sJ}, 0
    s_cselect_b32 s64, 32768, 0
    s_add_u32 s{A.sV}, s{A.sV}, s64'''}
    s_mov_b32 s{A.sTHR}, {hex(f2u(float(opt['thr'])))}
    s_mov_b32 s{A.sLOW}, {hex(f2u(float(opt['low'])))}
    s_lshl_b32 s47, s66, 7
    s_add_u32 s47, s47, s46
    s_lshl_b32 s64, s{A.sWAVE}, 5
    s_add_u32 s47, s47, s64
    s_add_u32 s47, s47, 2048
    s_lshl_b32 s65, s{sH}, 3
    s_add_u32 s65, s65, s66
    s_mul_i32 s{A.sPO}, s65, {PO_STRIDE}
    s_add_u32 s{A.sPO}, s{A.sPO}, {WS_PO}
    s_lshl_b32 s65, s{sJ}, 4
    s_add_u32 s65, s65, s{sH}
    s_mul_i32 s{A.sOP}, s65, {OP_HEAD}
    s_mul_i32 s65, s{A.sWAVE}, 28672
    s_add_u32 s{A.sOP}, s{A.sOP}, s65
    s_add_u32 s{A.sOP}, s{A.sOP}, {WS_OP}
    s_mov_b32 s{A.sREQ}, 0
    s_mov_b32 s{A.sCHK}, {vt}
    s_mov_b32 s{sMODE}, 1
    s_cmp_eq_u32 s{A.sWAVE}, 0
    s_cselect_b32 s{sMLD}, 2, 0
    {f's_or_b32 s{sMLD}, s{sMLD}, {1 << int(opt["tw"])}' if vt else f'''s_lshl_b32 s64, s{sH}, 1
    s_add_u32 s64, s64, s{A.sWAVE}
    s_cmp_lt_u32 s64, 28
    s_cselect_b32 s64, 0x3c, 0
    s_cmp_lt_u32 s{A.sWAVE}, 2
    s_cselect_b32 s64, s64, 0
    s_cmp_eq_u32 s{sJ}, 7
    s_cselect_b32 s64, s64, 0
    s_or_b32 s{sMLD}, s{sMLD}, s64'''}
    s_mov_b64 s[60:61], s[76:77]
    s_mov_b32 s62, s78
    s_mov_b32 s63, 0x20000
    v_lshrrev_b32 v24, 4, v0
    v_lshlrev_b32 v24, 2, v24
    v_and_b32 v25, 15, v0
    v_sub_u32 v24, v24, v25
    """) + [I(f"v_cmp_lt_i32 s[{A.sTRI[e]}:{A.sTRI[e]+1}], {-e}, v24") for e in range(4)] + side.code_addr(0, 25) + selm(24) + [By(int(opt['fl']) + 30)]
    LSPIN[f"q{vt}"] = 1
    dq = items(opt['q0']) + [By(QB(1) - 3), At(QB(1))] + items("55555556666666") + [At(QB(2))] + items("7777777") + L(f"v_mov_b32 v{A.vNEG}, 0xff800000")
    assert not xq and all(v == 7 for v in uq.values())
    dq2 = [At(int(opt['fl'])), FL_LOAD(), At(int(opt['fc']))] + lcheck(1, f"q{vt}") + dma_flat(KSLOT[0], A.sK) + adv_k() + [At(QB(3))] + dma_flat(KSLOT[1], A.sK) + adv_k() + dma_flat(4, A.sV) + adv_v()
    qout = []; tail = []
    def qst(qb, kq): return [I(f"s_add_u32 s30, s{A.sQ}, {(qb * 8 + kq) >> 2 << 12}"), I(f"buffer_store_dwordx4 a[{Qreg(qb, kq)}:{Qreg(qb, kq)+3}], v6, {WSR}, s30 offen offset:{(kq & 3) * 1024} sc1", tag="KV2")] if vt else []
    for cg in range(4):
        for p2 in range(2):
            for qb in range(2):
                if (cg, p2) == (3, 1): continue
                ins, k = qp.out(cg, p2, qb, Qreg(qb, 2 * cg + p2))
                qout += [At(k + 4)] + ins + qst(qb, 2 * cg + p2)
    qlast = lambda: qp.out(3, 1, 0, Qreg(0, 7))[0] + [By(4), At(1)] + qp.out(3, 1, 1, Qreg(1, 7))[0] + [By(12)] + qst(0, 7) + qst(1, 7)
    lo, hi = ints('sq')
    s = Sched(g)
    s.add(carry, 0, 40, asap=True)
    s.add(dq, 0, 240, asap=True, vmd=2).add(dq2, int(opt['fl']), 430)
    s.add(ks.many(range(8, 16 if vt else 32), lambda n: "KV2" if n < 16 else "KV4"), lo, 200 if vt else hi)
    s.add(qout, 0, 447, asap=True)
    s.add(setup, 20, 270)
    s.add([At(QB(l1))] + level(1, 31) + ([] if vt else [At(QB(3))] + level(2, 31)), 0, 447, asap=True)
    s.run()
    out += g.flat() + stamp(26) + (EXIT() if opt['kvonly'] == '2' else [])
    init = lambda: [I(f"v_mov_b32 v{r}, 0") for r in [A.vLS, A.vLS + 1] + list(range(A.vNM, A.vNM + 8))]
    rd2 = lambda: L(f"v_add_u32 v16, 0x20000, v{A.vL16}")
    g = Gaps(qk_mfmas(0, C0, asc0=True))
    tile_reads(g, lambda b: rd_batch(KSLOT[0], b), rd_batch(KSLOT[1], 0), [("T", KSLOT[1])] + ([] if vt else ["KV4"]))
    s = Sched(g).add(qlast(), 0, 20, asap=True).add(dma_flat(VSLOT[1], A.sV) + adv_v(), 14, 46).add(init() + rd2(), 0, 63)
    if vt:
        a, b = ints('vq'); assert a + b == 8
        s.add(ks.many(range(16, 16 + a), "KV4"), 20, 62)
        park = [I(f"v_accvgpr_write_b32 a{128 + 4 * (n - 24) + e}, v{int(ks.reg[n][2:ks.reg[n].index(':')]) + e}") for n in range(24, 32) for e in range(4)]
        for i in park: dep(i, *[p for n in range(24, 32) for p in ks.src[n]])
    else: s.add([At(48)] + level(4, A.vX + 5), 48, 52, asap=True)
    s.run()
    grp, early = groups_first(0)
    sched_sm(g, grp, 12, 62, early=early)
    qk0 = g.flat() + stampa()
    if vt:
        def spare(ins):
            return ins
        w1, left = win_qk1(4, 16, "v1", lambda s: s.add(ks.many(range(16 + a, 24), "KV4") + [By(60)], 4, 58), ["KV2"], level(2, A.vX + 5))
        vp = ints('vp'); assert sum(vp) == 8
        later = lambda m: (lambda s: s.add(ks.many(range(24 + sum(vp[:m]), 24 + sum(vp[:m + 1])), "KV4", lambda n: R("a", 128 + 4 * (n - 24), 4)), 34 if m == 0 else 4, 60))
        def pv0x(s): s.add(park + [By(28)], 0, 28); later(0)(s)
        c.block("kv1", "L_kv1:", out, qk0, w1, win_pv0(4, 16, pv0x), fs('3'), win_qk(1, "v2", later(1)), win_pv(1, later(2)), fs('3'),
                win_qk(0, "v3", later(3)), win_pv(0, tags=["KV4"], post=level(4, A.vX + 5)), "s_branch L_loop_top")
    else:
        c.block("kv0", "L_kv0:", out, f"s_cmp_eq_u32 s{sJ}, 0\ns_cbranch_scc1 L_j0")
        c.block("k1", qk0, win_qk1(4, 16, "k1")[0], win_pv0(4, 16), f"s_cmp_lg_u32 s{A.sIT}, 0\ns_cbranch_scc1 L_loop_top\ns_branch L_d1s")
        g = Gaps(qk_mfmas(0, lambda kb, qb: R("v", Sreg(0, kb, 0), 4) if qb == 0 else "0", order=(1, 0), asc0=True))
        tile_reads(g, lambda b: rd_batch(KSLOT[0], b), rd_batch(KSLOT[1], 0), [("T", KSLOT[1]), "KV4"])
        ql = qp.out(3, 1, 1, Qreg(1, 7))[0] + [By(5)] + qp.out(3, 1, 0, Qreg(0, 7))[0] + [By(12)]
        pr = presets(False, zero=True)
        LSPIN["j0"] = (2, 8)
        s = Sched(g).add([At(1)] + ql, 0, 20, asap=True).add([x for kb in range(4) for x in pr[kb] + [By(16 * kb + 6)]], 0, 50)
        s.add(L(f"s_mov_b32 s{A.sV}, s{sVD}") + dma_flat(VSLOT[0], A.sV) + L(f"v_min_u32 v17, {7 << 7}, v9\nbuffer_load_dword v{A.vRL}, v17, {WSR}, s46 offen sc1"), 14, 44)
        s.add(init(), 0, 63).add([At(48)] + level(4, A.vX + 5), 48, 52, asap=True).run()
        grp, early = groups_first(0, (1, 0))
        sched_sm(g, grp, 12, 62, early=early)
        ucheck = L(f"v_mov_b32 v{A.vX}, v{A.vSUM}\nv_mov_b32 v{A.vX+1}, v{A.vSUM+1}") + [i for p in zip(xlane("v_max_f32", A.vX, A.vX + 2), xlane("v_max_f32", A.vX + 1, A.vX + 3)) for i in p] + L(f"""
            v_min_f32 v{A.vX}, v{A.vX}, v{A.vX+1}
            v_cmp_gt_f32 vcc, s{A.sLOW}, v{A.vX}
            s_cbranch_vccnz L_stj0
            L_rtj0:""")
        zz = [I(f"v_mov_b32 v{A.vP1 + e}, 0") for e in range(4)]
        rest = [i for p in presets(True) for i in p]
        c.block("j0", "L_j0:", g.flat(), stampa(), zz, HELPER_K(), PBASE(), lcheck(2, "j0"), mix(ucheck[:-2], dma_flat(KSLOT[0], A.sK) + adv_k(), 1), ucheck[-2:], zero_O_mfma(rest, A.vP1), "s_branch L_d3h")

def build_att(c):
    X.update(nodma=0, nobar=0, rp=0, dp=0)
    c.block("loop_top", ".p2align 6\nL_loop_top:", fs('3'), att.win_qk(1, "L_st1", "L_rt1", extra=[side.touch(0, 60, 0, nt=False)])[0], att.win_pv(1))
    c.block("loop_mid", fs('3'), att.win_qk(0, "L_st0", "L_rt0", head=L(f"s_bitcmp1_b32 s{sMLD}, s{A.sCHK}\ns_cbranch_scc1 L_fll\nL_fllr:"))[0],
            att.win_pv(0, tail=L(f"s_sub_u32 s{A.sIT}, s{A.sIT}, 1\ns_cmp_lg_u32 s{A.sIT}, 0\ns_cbranch_scc1 L_loop_top"),
                       chk=L(f"""v_cmp_gt_u32 vcc, s{A.sREQ}, v{A.vRL}
                       s_cbranch_vccnz L_fls0
                       L_flr0:
                       s_mov_b32 s{A.sREQ}, 0
                       s_add_u32 s{A.sCHK}, s{A.sCHK}, 1""")))
    c.block("p1", f"s_cmp_eq_u32 s{sMODE}, 0\ns_cbranch_scc1 L_final_h")
    g = Gaps(qk_mfmas(0, lambda kb, qb: R("v", Sreg(0, kb, 0), 4) if qb == 0 else NMq(1), order=(1, 0)))
    tile_reads(g, lambda b: rd_batch(KSLOT[0], b), rd_batch(VSLOT[1], 0), [("T", VSLOT[1])])
    pr = presets(False)
    Sched(g).add([x for kb in range(4) for x in pr[kb] + [By(16 * kb + 6)]], 0, 50).add(
        L(f"s_mov_b32 s{A.sV}, s{sVD}") + [FL_LOAD()] + dma_flat(VSLOT[0], A.sV) + adv_v() + dma_flat(4, A.sV, 0, 4), 1, 60).add(PBASE(), 30, 62).run()
    put_tail(g, sched_sm(g, softmax_groups(1, 1), 0, 56), check(1, "L_std1"))
    c.block("d1", "L_d1s:", stampa(), g.flat(), "L_rtd1:", fs('4'), f"s_cmp_lt_u32 s{sJ}, {15 - JH}\ns_cbranch_scc1 L_d2h")
    wq = ints('wq')
    class WoQ:
        def __init__(self, slots): self.slots, self.n = slots, 0
        def take(self, m):
            o = []
            while m and self.n < 56:
                t, i = divmod(self.n, 8); k = min(m, 8 - i)
                o += wo_dma(self.slots[t], i, i + k); self.n += k; m -= k
            return o
    def d2(nxt):
        g = Gaps(pv_mfmas(1))
        tile_reads(g, lambda b: rd_batch(VSLOT[1], b), rd_batch(KSLOT[1], 0), [("T", KSLOT[1])])
        Sched(g).add(dma_flat(4, A.sV, 4, 8) + nxt, 1, 60).add([i for p in presets(True) for i in p] + [By(61)], 4, 60).run()
        sched_sm(g, softmax_groups(0, 0), 0, 62, add_l(1))
        return g.flat() + fs('4')
    P8 = [0, 0, 1, 1, 2, 2, 3, 3]
    def d3(stub, extra):
        g = Gaps(qk_mfmas(1, lambda kb, qb: R("v", Sreg(1, kb, 1), 4), order=(1,)))
        tile_reads(g, lambda b: rd_batch(KSLOT[1], b), rd_batch(VSLOT[0], 0), [("T", VSLOT[0])], per=8, pat=P8)
        Sched(g).add(L(f"v_add_u32 v{A.vNEG}, 0x20000, v{A.vL16}") + extra, 4, 30, asap=True).run()
        put_tail(g, sched_sm(g, softmax_groups(0, 1), 0, 30), check(0, f"L_st{stub}"))
        return g.flat() + L(f"L_rt{stub}:") + fs('4')
    def d4(stub, s1, s2, lo2, hi2):
        g = Gaps(pv_mfmas(0))
        tile_reads(g, lambda b: rd_batch(VSLOT[0], b), rd_batch(4, 0, A.vNEG), [("T", 4)])
        Sched(g).add(s2, lo2, hi2, vmd=2).add(s1, 1, 60, vmd=2).run()
        put_tail(g, sched_sm(g, groups_b(), 0, 60, add_l(0)), check_b(f"L_st{stub}"))
        return g.flat() + L(f"L_rt{stub}:") + fs('4')
    addb = lambda: L(f"v_add_f32 v{A.vLS + 1}, v{A.vSUM + 3}, v{A.vLS + 1}")
    wo = WoQ([2, 1, 3, 0, 2, 1, 3])
    c.block("d2n", d2(wo_setup(A.vX + 4) + wo.take(wq[0])))
    c.block("d3n", d3("d3n", [At(int(opt['fpl'])), FP_LOAD()]))
    pl = L(f"v_or_b32 v9, s{sNC}, v{A.vL16}\nv_cmp_ne_u32 vcc, 1, v{A.vRL + 1}\ns_cbranch_vccnz L_fps\nL_fpr:") + [I(f"buffer_load_dwordx4 v[{A.vX+4}:{A.vX+7}], v9, {WSR}, s90 offen sc1")]
    for kq in range(8):
        for qb in (1, 0):
            n = qb * 8 + kq
            pl.append(I(f"buffer_load_dwordx4 a[{A.aX + 4*n}:{A.aX + 4*n + 3}], v9, {WSR}, s{86 + n // 4} offen offset:{(n & 3) * 1024} sc1"))
    c.block("d4n", d4("d4n", wo.take(wq[1]), pl, int(opt['fpc']), int(opt['pl'])))
    g = Gaps(pvb_mfmas(True))
    tile_reads(g, lambda b: rd_batch(4, b, A.vNEG), rd_wo(2, 0), [("T", 2)], npat=RP16)
    pn = lambda k0: NEED(*[R("a", A.aX + (qb * 8 + kq) * 4, 4) for kq in (k0, k0 + 1) for qb in range(2)])
    for k, k0 in ((1, 0), (14, 2), (30, 4), (45, 6)): g.put_s(k, pn(k0))
    cv = [x for kq in range(8) for qb in (1, 0) for x in [At(8 * kq + 11 - qb)] + cvt_ctx(kq, qb)]
    left = Sched(g).add(oa_setup(A.vX + 4) + [By(46)], 20, 44).add(L(f"v_add_f32 v{A.vLS}, v{A.vX+6}, v{A.vLS}\nv_add_f32 v{A.vLS+1}, v{A.vX+7}, v{A.vLS+1}") + addb() + lfin2() + [By(19)], 0, 18).add(
        wo.take(wq[2]), 2, 40).add(cv, 0, 63, asap=True).run(spill=True)
    c.block("d5n", NEED(R("v", A.vX + 4, 4)), f"""
    v_cmp_neq_f32 vcc, v{A.vNM}, v{A.vX+4}
    v_cmp_neq_f32 s[64:65], v{A.vNM+4}, v{A.vX+5}
    s_cmp_eq_u32 s{sNC}, 0
    s_cselect_b64 s[66:67], -1, 0
    s_or_b64 vcc, vcc, s[64:65]
    s_and_b64 vcc, vcc, s[66:67]
    s_cbranch_vccnz L_stc
    L_rtc:""", g.flat(), [i for l in left for i in l], stampa())
    def op_out(j, split=False):
        b = j & 1
        ins = L(f"s_add_u32 s{A.sT0}, s{A.sOP}, {2 * j * 1024}\ns_add_u32 s{A.sT1}, s{A.sOP}, {14336 + 2 * j * 1024}")
        for pp in range(2):
            for qb in range(2):
                if split: ins.append(At(32 * pp + 27 + 8 * qb))
                a, d = Sreg(b, 2 * pp, qb), Sreg(b, 2 * pp + 1, qb)
                ins += [I(f"v_mul_f32 v{r + e}, v{A.vRL + qb}, v{r + e}") for r in (a, d) for e in range(4)]
                ins += kvq.pack(("v", a), ("v", d), 0)[0]
                ins.append(I(f"buffer_store_dwordx4 v[{a}:{a+3}], v{A.vL16}, {WSR}, s{A.sT0 + qb} offen offset:{pp * 1024} sc1", tag=("OP", j)))
        return ins
    fop = lambda: L(f"""
    s_sub_u32 s64, 15, s{sJ}
    s_min_u32 s64, s64, s{sJ}
    s_mul_i32 s{sFL}, s64, {2 * FSTR}
    s_and_b32 s64, s{sJ}, 8
    s_lshl_b32 s64, s64, 1
    s_add_u32 s64, s64, s{sH}
    s_lshl_b32 s64, s64, 2
    s_add_u32 s{sFL}, s{sFL}, s64
    s_add_u32 s{sFL}, s{sFL}, {WS_FOP}
    s_lshl_b32 s64, s{A.sWAVE}, 8
    s_add_u32 s{sFL}, s{sFL}, s64
    s_add_u32 s3, s{sFL}, {FSTR}
    v_lshrrev_b32 v{A.vX + 7}, 5, v{A.vL16}
    v_min_u32 v{A.vX + 7}, 1, v{A.vX + 7}
    v_lshlrev_b32 v{A.vX + 6}, 3, v{A.vL16}
    v_lshl_or_b32 v{A.vX + 6}, v{A.vX + 7}, 29, v{A.vX + 6}
    v_mov_b32 v{A.vX + 5}, 1
    """)
    def outproj(wo, quota, ctx, first=(), extra0=()):
        ow = []; sl = wo.slots
        for j in range(7):
            g = Gaps(qk_mfmas(j & 1, C0, breg=ctx))
            tile_reads(g, lambda b: rd_wo(sl[j], b), rd_wo(sl[j + 1], 0) if j < 6 else None, [("T", sl[j + 1])] if j < 6 else None)
            s = Sched(g)
            if j < len(quota): s.add(wo.take(quota[j]), 1, int(opt['odh']), vmd=2)
            if j == 0: s.add(list(first) + fop() + list(extra0), 0, 40, asap=True)
            if j == (side5.NE - 1) // 2 + 2: s.add([At(52), WAITV([("OP", j - 2)]), I(f"buffer_store_dword v{A.vX + 5}, v{A.vX + 6}, {WSR}, s{sFL} offen sc1")], 52, 56, asap=True)
            if j > 0: s.add(op_out(j - 1) + (op_out(6, True) if j == 6 else []), 2, 62 if j < 6 else 63, asap=j == 6, vmd=2)
            left = s.run(spill=j == 6)
            ow += g.flat() + fs('5')
        assert wo.n == 56
        return ow + stamp(30) + [i for l in left for i in l] + L(f"s_waitcnt vmcnt(0)\nbuffer_store_dword v{A.vX + 5}, v{A.vX + 6}, {WSR}, s3 offen sc1") + stamp(30)
    c.block("opn", outproj(wo, wq[3:], lambda qb, ks: R("v", Oreg(2 * ks, qb), 4)), f"s_cmp_lt_u32 s{sJ}, 8\ns_cbranch_scc1 L_red")
    c.block("end1", EXIT())
    LSPIN["h2"] = 2; LSPIN["h4"] = 2
    c.block("d2h", "L_d2h:", d2(HELPER_K() + lcheck(2, "h2") + dma_flat(KSLOT[0], A.sK) + adv_k()))
    c.block("d3h", "L_d3h:", d3("d3h", [FL_LOAD()]))
    ql = lcheck(2, "h4") + L(f"s_add_u32 s73, s{A.sQ}, 4096\ns_add_u32 s74, s{A.sQ}, 8192\ns_add_u32 s75, s{A.sQ}, 12288")
    ql += [I(f"buffer_load_dwordx4 a[{4*n}:{4*n+3}], v{A.vL16}, {WSR}, s{72 + n // 4 if n >= 4 else A.sQ} offen offset:{(n & 3) * 1024} sc1") for n in range(16)]
    c.block("d4h", d4("d4h", [], ql, 0, 58))
    g = Gaps(pvb_mfmas() + qk_mfmas(0, C0))
    tile_reads(g, lambda b: rd_batch(4, b, A.vNEG), rd_batch(KSLOT[0], 0), [("T", KSLOT[0])], per=8, pat=P8)
    tile_reads(g, lambda b: rd_batch(KSLOT[0], b), rd_batch(KSLOT[1], 0), [("T", KSLOT[1])], base=32)
    g.put_s(29, NEED(R("a", 0, 64)))
    def cpk(kq, qb): return link(cvt_ctx(kq, qb) + [I(f"v_accvgpr_write_b32 a{A.aX + (qb * 8 + kq) * 4 + e}, v{Oreg(2 * kq, qb) + e}") for e in range(4)])
    order = [(0, 0), (1, 0)] + [x for kq in range(6) for x in ((kq, 1), (kq + 2, 0))] + [(6, 1), (7, 1)]
    cp = {k: cpk(*k) for k in order}
    s = Sched(g).add(dma_flat(KSLOT[1], A.sK) + adv_k() + L(f"s_mul_i32 s{A.sV}, s{sH}, {HS}\ns_add_u32 s{A.sV}, s{A.sV}, {WS_V + NO * 32768}") + dma_flat(VSLOT[0], A.sV) + adv_v() + dma_flat(VSLOT[1], A.sV, 0, 4), 2, 92)
    s.add(addb() + lfin2() + L(f"v_accvgpr_write_b32 a192, v{A.vRL}\nv_accvgpr_write_b32 a193, v{A.vRL + 1}") + [I(f"v_mov_b32 v{r}, 0") for r in [A.vLS, A.vLS + 1] + list(range(A.vNM, A.vNM + 8))], 0, 40).run()
    grp, early = groups_first(0, base=32)
    sched_sm(g, grp, 44, 94, early=early)
    left = Sched(g).add([x for k in order for x in ([At(4 * k[0] + 7)] if k[1] else []) + cp[k]], 0, 95, asap=True).run(spill=True)[0]
    w5 = g.flat() + fs('4')
    g = Gaps(qk_mfmas(1, C0))
    tile_reads(g, lambda b: rd_batch(KSLOT[1], b), rd_batch(VSLOT[0], 0), [("T", VSLOT[0])])
    Sched(g).add(dma_flat(KSLOT[0], A.sK) + adv_k() + dma_flat(VSLOT[1], A.sV, 4, 8) + adv_v(), 1, 56).run()
    k = sched_sm(g, softmax_groups(0, 1), 0, 54)
    tail = check_first("L_sth1")
    ids = {id(i) for i in left}
    Sched(g).add(left + [By(57)], 0, 57).run()
    put_tail(g, max(k, 57), tail)
    w6 = g.flat() + L("L_rth1:")
    c.block("d5h", w5, w6, stampa(), win_pv0(VSLOT[0], None, lambda s: s.add(L(f"""s_mov_b32 s{sMODE}, 0
            s_mov_b32 s{A.sCHK}, 0
            s_and_b32 s{sMLD}, s{sMLD}, 2
            s_sub_u32 s{A.sIT}, {15 - JH - 1}, s{sJ}"""), 10, 30)), f"s_cmp_lg_u32 s{A.sIT}, 0\ns_cbranch_scc1 L_loop_top")
    wo = WoQ([2, 3, 0, 1, 2, 3, 0]); wh = ints('wh')
    pst = lambda kq, qb: [I(f"buffer_store_dwordx4 v[{Oreg(2*kq, qb)}:{Oreg(2*kq, qb)+3}], v{A.vL16}, {WSR}, s{86 + (qb*8+kq) // 4} offen offset:{(kq & 3) * 1024} sc1", tag="PST")]
    g = Gaps(pv_mfmas(1))
    tile_reads(g, lambda b: rd_batch(VSLOT[1], b), rd_wo(2, 0), [("T", 2)], npat=RP16)
    w0 = wo_setup(A.vX + 4) + wo.take(wh[0])
    left = Sched(g).add(oa_setup(A.vX + 4) + [By(46)], 0, 10).add([x for kq in range(8) for qb in range(2) for x in [At(8 * kq + 9 + 2 * qb)] + cvt_ctx(kq, qb) + pst(kq, qb)], 0, 63, asap=True, vmd=1).add(
        wo.take(wh[1]), 0, 12, vmd=1).run(spill=True)
    c.block("final_h", "L_final_h:", stampa(), WAITV([("T", VSLOT[1])], lgkm0=True), "s_barrier", rd_batch(VSLOT[1], 0), w0[:7], mix(softmax_half(1, 1), w0[7:], 1), check(1, "L_stfh"), "L_rtfh:", add_l(1), f"""
    v_mov_b32 v{A.vX}, v{A.vNM}
    v_mov_b32 v{A.vX+1}, v{A.vNM+4}
    v_mov_b32 v{A.vX+2}, v{A.vLS}
    v_mov_b32 v{A.vX+3}, v{A.vLS+1}
    """, I(f"buffer_store_dwordx4 v[{A.vX}:{A.vX+3}], v{A.vL16}, {WSR}, s90 offen sc1", tag="PST"), need_batch(0), fs('4'), g.flat(), left[1], left[2], stampa())
    assert not left[0]
    pflag = L(f"v_min_u32 v{A.vX}, 1, v{A.vL16}\nv_lshlrev_b32 v{A.vX}, 29, v{A.vX}") + [At(int(opt['pfg'])), WAITV("PST"), side.flag_store(47, A.vX, A.vX + 5)]
    c.block("oph", outproj(wo, wh[2:], lambda qb, ks: R("a", A.aX + (qb * 8 + ks) * 4, 4), L(f"v_accvgpr_read_b32 v{A.vRL}, a192\nv_accvgpr_read_b32 v{A.vRL + 1}, a193"), pflag))
    rm, far = side5.red_main(A.vL16, lambda: stamp(30), int(opt['lag']), int(opt['ke']))
    c.block("red", "L_red:", side5.red_a(A.vL16), rm, EXIT())
    c.block("redfar", far)
    c.block("rpoll", side5.red_poll())
    stubs = ""
    for n, f in (("0", "slow0"), ("1", "slow1"), ("v1", "slowf"), ("k1", "slowf"), ("h1", "slowf"), ("j0", "slowj"), ("v2", "slow1"), ("v3", "slow0"), ("d1", "slow1"),
                 ("d3n", "slow0"), ("d3h", "slow0"), ("d4n", "slowb"), ("d4h", "slowb"), ("fh", "slow1n"), ("c", "comb")):
        stubs += f"L_x{n}:\ns_call_b64 s[{A.sRET}:{A.sRET+1}], L_{f}\ns_branch L_rt{n}\n".replace("L_x", "L_st")
    return stubs

def mid_blocks(c, stubs):
    c.block("stubs", stubs)
    c.block("slow", att.slow_sub(0), att.slow_sub(1), att.slow_sub(1, False), slow_first("L_slowf", True), slow_first("L_slowj", False), slow_b(), comb_slow())
    sp = []
    for n, v in LSPIN.items():
        ld = FL_LOAD().text
        if isinstance(v, tuple): v, ld = v[0], ld.replace("v9", "v17")
        sp += side.spin_stub(f"L_ls{n}", f"L_lr{n}", ld, A.vRL, 91, f"v_cmp_gt_u32 vcc, {v}, v{{vt}}")
    c.block("spins", side.z_stub(0), side.z_stub(1), hw.key_stub(), sp, f"""
    L_fll:
    s_cmp_eq_u32 s{A.sCHK}, 1
    s_cbranch_scc0 L_fl2
    {FL_LOAD().text}
    s_mov_b32 s{A.sREQ}, 4
    s_branch L_fllr
    L_fl2:
    s_cmp_lt_u32 s{sJ}, 8
    s_cbranch_scc1 L_fl3
    s_and_b32 s64, s{sJ}, 7
    s_lshl_b32 s64, s64, 2
    s_add_u32 s64, s64, s{A.sWAVE}
    s_mul_i32 s64, s64, 7168
    v_lshlrev_b32 v11, 3, v{A.vL16}
    v_mov_b32 v12, {OOB}
    v_cmp_gt_u32 vcc, 7168, v11
    s_nop 1
    v_cndmask_b32 v11, v12, v11, vcc
    """, side.touch(11, S_WO, "s64", nt=False), f"""
    s_branch L_fllr
    L_fl3:
    s_cmp_eq_u32 s{A.sCHK}, 2
    s_cbranch_scc1 L_y2
    s_cmp_eq_u32 s{A.sCHK}, 3
    s_cbranch_scc1 L_y3
    s_cmp_eq_u32 s{A.sCHK}, 4
    s_cbranch_scc1 L_y4
    s_branch L_y5
    s_waitcnt vmcnt(0)
    L_fps:
    s_cmp_lg_u32 s{sNC}, 0
    s_cbranch_scc1 L_fpr
    """, side.spin_stub("L_fps2", "L_fpr", FP_LOAD().text, A.vRL + 1, 91),
            side.spin_stub("L_fls0", "L_flr0", FL_LOAD().text, A.vRL, 91, f"v_cmp_gt_u32 vcc, s{A.sREQ}, v{{vt}}"))
    c.block("ystubs", side5.y_stubs("L_fllr"))

def paths(c):
    lp = ["loop_top", "loop_mid"]
    n = ["d1", "d2n", "d3n", "d4n", "d5n", "opn"]
    c.path("entry", "kv1", *lp, *lp, *lp, "p1", *n, "end1")
    c.path("entry", "kv0", "k1", *lp, *lp, *lp, "p1", *n, "red")
    for own in (["j0"], ["k1", "d1", "d2h"], ["k1", *lp, "p1", "d1", "d2h"], ["k1", *lp, *lp, *lp, "p1", "d1", "d2h"]):
        for nh in (0, 1, 2, 3):
            c.path("entry", "kv0", *own, "d3h", "d4h", "d5h", *(lp * nh), *(["p1"] if nh else []), "final_h", "oph", "red")
    for b in ("redfar", "rpoll", "stubs", "slow", "moe", "spins", "ystubs"): c.path(b)

SHORT = [("v_mfma_f32_16x16x32_bf16", "M", 4), ("ds_read_b128", "R", 0), ("ds_read_b64_tr_b16", "T", 0), ("v_cvt_pk_bf16_f32", "C", 3), ("v_exp_f32", "E", 2),
         ("v_accvgpr_write_b32", "W", 2), ("v_accvgpr_read_b32", "G", 2), ("v_add_f32", "AF", 3), ("v_mul_f32", "MF", 3), ("s_add_u32", "SA", 3)]
def compress(body):
    hdr = []; out = []
    for full, sh, n in SHORT:
        if n: hdr.append(f".macro {sh} " + ", ".join("abcd"[:n]) + f"\n{full} " + ", ".join("\\" + x for x in "abcd"[:n]) + "\n.endm")
        else: hdr.append(f".macro {sh} a, b, c\n{full} \\a, \\b offset:\\c\n.endm")
    for ln in body.split("\n"):
        ln = ln.strip()
        for full, sh, n in SHORT:
            if ln.startswith(full + " ") and "row_" not in ln and (n or " offset:" in ln):
                ln = sh + " " + ln[len(full) + 1:].replace(" offset:", ",").replace(", ", ","); break
        out.append(ln)
    return "\n".join(hdr), "\n".join(out)

if __name__ == "__main__":
    c = CFG(verbose=int(opt["v"]))
    entry(c); front(c, 0); front(c, 1)
    stubs = build_att(c)
    n0 = len(c.order)
    mid_blocks(c, stubs); c.block("moe", side5.red_moe())
    k = c.order.index("loop_top")
    c.order = c.order[:k] + c.order[n0:-1] + c.order[k:n0] + c.order[-1:]
    paths(c)
    hdr, body = compress(c.finalize())
    kn = NAME + "_kernel"
    print("; @launch grid=(256,1,1) block=(256,1,1) lds=163840")
    print('.amdgcn_target "amdgcn-amd-amdhsa--gfx950"\n.text')
    print(hdr)
    print(kernel_header(kn))
    print(body)
    print("L_code_end:")
    print('.section .rodata,"a"\n.p2align 6')
    print(kernel_desc(kn, sgpr=102))
```

```python
import re

TRANS = ("v_exp_f32", "v_log_f32", "v_rcp_f32", "v_rsq_f32", "v_sqrt_f32", "v_sin_f32", "v_cos_f32")
_REG = re.compile(r"^(-?)(?:abs\()?([vas])(?:(\d+)|\[(\d+):(\d+)\])\)?$")


def regs_of(tok):
    tok = tok.strip()
    if tok in ("vcc", "exec", "m0", "scc"):
        return [tok]
    if tok in ("vcc_lo", "vcc_hi"):
        return ["vcc"]
    if tok in ("exec_lo", "exec_hi"):
        return ["exec"]
    m = _REG.match(tok.replace("|", ""))
    if not m:
        return []
    k = m.group(2)
    if m.group(3) is not None:
        return [k + m.group(3)]
    return [k + str(i) for i in range(int(m.group(4)), int(m.group(5)) + 1)]


def R(kind, lo, n=1):
    return f"{kind}{lo}" if n == 1 else f"{kind}[{lo}:{lo + n - 1}]"


BARX = True
VM2 = True


class Inst:
    __slots__ = ("text", "op", "kind", "reads", "writes", "tag", "srcc", "srcab", "extra")

    def __init__(self, text, tag=None, **extra):
        self.text = text.strip()
        self.tag = tag
        self.extra = extra
        self.srcc = []
        self.srcab = []
        self.parse()

    def parse(self):
        t = self.text.split(";")[0].strip()
        if t.endswith(":") or t.startswith("."):
            self.op, self.kind, self.reads, self.writes = t, "label", [], []
            return
        parts = t.split(None, 1)
        op = parts[0]
        self.op = op
        ops = []
        mods = ""
        if len(parts) > 1:
            depth = 0
            cur = ""
            for ch in parts[1]:
                if ch in "[(":
                    depth += 1
                if ch in "])":
                    depth -= 1
                if ch == "," and depth == 0:
                    ops.append(cur.strip())
                    cur = ""
                else:
                    cur += ch
            last = cur.strip().split(None, 1)
            if last:
                ops.append(last[0])
                mods = last[1] if len(last) > 1 else ""
        rd, wr = [], []
        allr = [regs_of(o) for o in ops]
        flat = lambda ls: [r for l in ls for r in l]
        if op.startswith("v_mfma"):
            kind = "mfma"
            wr = allr[0]
            self.srcab = allr[1] + allr[2]
            self.srcc = allr[3]
            rd = flat(allr[1:])
        elif op.startswith("ds_read") or op.startswith("ds_bpermute") or op.startswith("ds_swizzle") or op.startswith("ds_permute"):
            kind = "dsr"
            wr = allr[0]
            rd = flat(allr[1:])
        elif op.startswith("ds_"):
            kind = "dsw"
            rd = flat(allr)
        elif op.startswith("buffer_load") or op.startswith("global_load"):
            if " lds" in " " + mods or "_lds_" in op:
                kind = "dma"
                rd = flat(allr) + ["m0"]
            else:
                kind = "vld"
                wr = allr[0]
                rd = flat(allr[1:])
        elif op.startswith("buffer_store") or op.startswith("global_store"):
            kind = "vst"
            rd = flat(allr)
        elif op.startswith("buffer_atomic") or op.startswith("global_atomic"):
            if "sc0" in mods:
                kind = "vld"
                wr = allr[0]
                rd = flat(allr)
            else:
                kind = "vst"
                rd = flat(allr)
        elif op in ("buffer_inv", "buffer_wbl2"):
            kind = "vst"
        elif op.startswith("s_load") or op in ("s_memtime", "s_memrealtime"):
            kind = "smem"
            wr = allr[0]
            rd = flat(allr[1:])
        elif op.startswith("v_"):
            base = op.replace("_e32", "").replace("_e64", "").replace("_dpp", "").replace("_sdwa", "")
            kind = "trans" if base in TRANS else "valu"
            wr = list(allr[0])
            rd = flat(allr[1:])
            if base.startswith("v_permlane") and "swap" in base:
                wr = allr[0] + allr[1]
                rd = allr[0] + allr[1]
            if base in ("v_fmac_f32", "v_dot2c_f32_bf16", "v_writelane_b32", "v_pk_fmac_f16") or "row_" in mods or "quad_perm" in mods:
                rd = rd + allr[0]
            if base in ("v_add_co_u32", "v_sub_co_u32", "v_addc_co_u32"):
                wr = allr[0] + allr[1]
                rd = flat(allr[2:])
            if base.startswith("v_cmpx"):
                wr = wr + ["exec"]
            self.extra["dpp"] = ("row_" in mods or "quad_perm" in mods)
        elif op in ("s_waitcnt", "s_nop", "s_barrier", "s_sleep", "s_setprio", "s_endpgm"):
            kind = "sctl"
        elif op.startswith("s_cbranch") or op in ("s_branch", "s_setpc_b64", "s_swappc_b64", "s_call_b64"):
            kind = "branch"
            rd = flat(allr)
            if "vcc" in op:
                rd = rd + ["vcc"]
            if op == "s_swappc_b64":
                wr = allr[0]
        elif op.startswith("s_cmp") or op.startswith("s_bitcmp"):
            kind = "salu"
            rd = flat(allr)
        elif op.startswith("s_"):
            kind = "salu"
            wr = allr[0] if allr else []
            rd = flat(allr[1:])
            if "saveexec" in op:
                wr = wr + ["exec"]
                rd = rd + ["exec"]
            if op in ("s_addk_i32", "s_mulk_i32"):
                rd = rd + wr
        elif op in ("NEED", "WAITV"):
            kind = "pseudo"
            rd = []
            self.extra["regs"] = flat(allr)
        else:
            raise ValueError("cannot parse: " + self.text)
        self.kind, self.reads, self.writes = kind, rd, wr

    def slots(self):
        if self.kind in ("label", "mfma"):
            return (0, 0)
        if self.kind == "trans" or self.op.startswith("v_permlane") or (VM2 and self.kind in ("dma", "vld", "vst")):
            return (2, 0)
        if self.kind in ("valu", "dsr", "dsw", "dma", "vld", "vst"):
            return (1, 0)
        return (0, 1)

    def __repr__(self):
        return self.text


def I(text, **kw):
    return Inst(text, **kw)


def NEED(*regtexts):
    return Inst("NEED " + ", ".join(regtexts))


def WAITV(tag, lgkm0=False):
    i = Inst("WAITV")
    i.tag = tag
    i.extra["lgkm0"] = lgkm0
    return i


_NO_SCC = ("s_mov", "s_mul_i32", "s_cselect", "s_getpc", "s_movk", "s_getreg", "s_mul_hi", "s_cmov", "s_ff1", "s_bitset")
def writes_scc(i):
    return i.kind == "salu" and not i.op.startswith(_NO_SCC)
def reads_scc(i):
    return i.op.startswith(("s_cselect", "s_cbranch_scc", "s_addc", "s_subb", "s_cmov"))


def L(text):
    out = []
    last = None
    for line in text.split("\n"):
        line = line.strip()
        if line and not line.startswith(";"):
            i = Inst(line)
            if reads_scc(i) and last is not None:
                i.extra["scc"] = last
            if writes_scc(i):
                last = i
            out.append(i)
    return out


def link(ins):
    last = {}
    for i in ins:
        if not isinstance(i, Inst):
            continue
        for r in i.reads:
            if r in last and r not in i.extra.get("pin", ()):
                i.extra.setdefault("raw", {})[r] = last[r]
        for r in i.writes:
            last[r] = i
    return ins


def check_raw(insts, name):
    last = {}
    for i in insts:
        if i.extra.get("ghost"): continue
        for r, src in i.extra.get("raw", {}).items():
            assert last.get(r) is src, f"{name}: {i.text} reads {r} from {last.get(r)} instead of {src.text}"
        for r in i.writes:
            last[r] = i


def check_scc(insts, name):
    last = None
    for i in insts:
        if i.extra.get("ghost"): continue
        if reads_scc(i):
            src = i.extra.get("scc")
            if src is not None:
                assert last is src, f"SCC clobbered in {name}: {i.text} expects {src.text}, got {last.text if last else None}"
            else:
                assert last is not None and last.op.startswith(("s_cmp", "s_bitcmp", "s_and_b32")), f"SCC source unclear in {name}: {i.text} after {last}"
        if writes_scc(i):
            last = i


TIDY = False
SHARE = ()
def mem_first(ve):
    out = []
    for i in ve:
        p = len(out)
        if i.kind in ("dsr", "dsw", "dma", "vld", "vst"):
            while p and out[p - 1].kind in ("valu", "trans") and not (set(out[p - 1].writes) & set(i.reads + i.writes)) and not (set(out[p - 1].reads) & set(i.writes)):
                p -= 1
        out.insert(p, i)
    return out


class Gaps:
    def __init__(self, mfmas):
        self.m = list(mfmas)
        self.n = len(self.m)
        self.sc = [[] for _ in range(self.n)]
        self.ve = [[] for _ in range(self.n)]
        self.pre = []

    def used(self, k):
        if BARX and any(i.op == "s_barrier" for i in self.sc[k]):
            return 2
        v = sum(max(i.slots()) for i in self.ve[k])
        s = len([i for i in self.sc[k] if i.kind != 'label'])
        return v + max(0, s - 1)

    def fits(self, k, inst):
        u = self.used(k)
        if u + max(inst.slots()) <= 2: return True
        ve = self.ve[k]
        return (SHARE and inst.kind == "valu" and u == 2 and len(ve) == 1 and ve[0].kind in SHARE and not set(ve[0].reads) & set(inst.writes))

    def vm_near(self, k, d=3):
        return any(i.kind in ("dma", "vld", "vst") and "x4" in i.op for j in range(max(0, k - d), min(self.n, k + d + 1)) for i in self.ve[j])

    def vm_slot(self, k, inst, reach=10):
        if inst.kind in ("dma", "vld", "vst") and "x4" in inst.op:
            for d in (3, 2, 1):
                for j in range(k, min(self.n, k + reach)):
                    if self.used(j) + max(inst.slots()) <= 2 and not self.vm_near(j, d):
                        return j
        return k

    def put_s(self, k, inst):
        self.sc[k].append(inst)

    def put(self, k, inst):
        self.ve[k].append(inst)

    def fit(self, k, inst, lim=None):
        need = max(inst.slots())
        j = k
        while j < self.n and self.used(j) + need > 2:
            j += 1
        if j >= self.n or (lim is not None and j > lim):
            j = min(self.n - 1, k if lim is None else lim)
        self.ve[j].append(inst)
        return j

    def fit_s(self, k, inst, lim=None):
        j = k
        while j < self.n and len(self.sc[j]) >= 1:
            j += 1
        if j >= self.n or (lim is not None and j > lim):
            j = min(self.n - 1, k if lim is None else lim)
        self.sc[j].append(inst)
        return j

    def spread(self, insts, lo, hi):
        n = len(insts)
        last = lo
        for x, ins in enumerate(insts):
            k = max(last, lo + (x * (hi - lo)) // max(n, 1))
            last = self.fit(k, ins)

    def flat(self):
        last = self.n - 1
        if self.ve[last] and self.sc[last] and self.sc[last][-1].kind == "branch":
            self.ve[last].append(self.sc[last].pop())
        assert not any(i.kind == "branch" for i in self.sc[last][:-1])
        out = list(self.pre)
        prev_full = False
        for k in range(self.n):
            ve = mem_first(self.ve[k]) if TIDY else self.ve[k]
            out.append(self.m[k])
            out += self.sc[k]
            if (TIDY and len(ve) > 1 and ve[0].op == ve[1].op == "ds_read_b64_tr_b16" and not prev_full
                    and not any(i.kind not in ("label", "pseudo") for i in self.sc[k])):
                out.append(Inst("s_nop 0"))
            out += ve
            prev_full = sum(2 if i.kind == "trans" else 1 for i in ve if i.kind in ("valu", "trans", "dsr")) >= 2
        return out


def est_cycles(insts):
    t = 0
    vfree = 0
    mfree = 0
    nm = 0
    ta = 0
    for i in insts:
        if i.kind in ("label", "pseudo"):
            continue
        if i.kind == "mfma":
            t = max(t, vfree, mfree)
            mfree = t + 16
            vfree = t + 8
            t += 4
            nm += 1
        elif i.kind in ("valu", "dsr", "dsw", "dma", "vld", "vst", "trans"):
            t = max(t, vfree)
            if i.kind in ("dma", "vld", "vst"):
                t = max(t, ta - 64)
                ta = max(ta, t) + (64 if "x4" in i.op else 16)
            t += 8 if i.kind in ("trans", "dma", "vld", "vst") else 4
            vfree = t
        elif i.op == "s_nop":
            t += 4 * (int(i.text.split()[1]) + 1)
        else:
            t += 4
    return max(t, mfree), nm


class State:
    def __init__(self):
        self.lg = []
        self.vm = []
        self.smem = set()

    def copy(self):
        s = State()
        s.lg = list(self.lg)
        s.vm = list(self.vm)
        s.smem = set(self.smem)
        return s

    def key(self):
        return (tuple(tuple(sorted(x)) for x in self.lg), tuple((tuple(sorted(w)), str(t)) for w, t in self.vm))


def _parse_wait(text):
    v = re.search(r"vmcnt\((\d+)\)", text)
    l = re.search(r"lgkmcnt\((\d+)\)", text)
    return (int(v.group(1)) if v else None, int(l.group(1)) if l else None)


def wait_text(v, l):
    p = []
    if v is not None:
        p.append(f"vmcnt({min(v, 63)})")
    if l is not None:
        p.append(f"lgkmcnt({min(l, 15)})")
    return "s_waitcnt " + " ".join(p)


def wait_pass(insts, st, forced=None, log=None):
    st = st.copy()
    waits = {}

    def apply(v, l):
        if v is not None:
            v = min(v, 63)
            st.vm = st.vm[len(st.vm) - v:] if v < len(st.vm) and v > 0 else ([] if v == 0 else st.vm)
        if l is not None:
            l = min(l, 15)
            st.lg = st.lg[len(st.lg) - l:] if l < len(st.lg) and l > 0 else ([] if l == 0 else st.lg)
            if l == 0:
                st.smem = set()

    for idx, ins in enumerate(insts):
        if "ignore" in ins.text:
            continue
        v = l = None
        if forced and idx in forced:
            v, l = forced[idx]
        touch = set(ins.reads) | set(ins.writes)
        if ins.op == "NEED":
            touch = set(ins.extra["regs"])
        if touch:
            for p in range(len(st.lg) - 1, -1, -1):
                if st.lg[p] & touch:
                    n = len(st.lg) - 1 - p
                    if st.smem:
                        n = 0
                    l = n if l is None else min(l, n)
                    break
            for p in range(len(st.vm) - 1, -1, -1):
                if st.vm[p][0] & touch:
                    n = len(st.vm) - 1 - p
                    v = n if v is None else min(v, n)
                    break
            if st.smem & touch:
                l = 0
        if ins.op == "WAITV":
            tags = ins.tag if isinstance(ins.tag, list) else [ins.tag]
            for p in range(len(st.vm) - 1, -1, -1):
                if st.vm[p][1] in tags:
                    n = len(st.vm) - 1 - p
                    v = n if v is None else min(v, n)
                    break
            if ins.extra.get("lgkm0") and (st.lg or st.smem):
                l = 0
        if v is not None or l is not None:
            waits[idx] = (v, l)
            if log is not None and ins.kind != "pseudo" and not (forced and idx in forced):
                log.append((idx, ins.text, v, l))
            apply(v, l)
        if ins.op == "s_waitcnt":
            apply(*_parse_wait(ins.text))
        elif ins.kind == "dsr":
            st.lg.append(set(ins.writes))
        elif ins.kind == "dsw":
            st.lg.append(set())
        elif ins.kind in ("vld",):
            st.vm.append((set() if ins.tag == "TOUCH" else set(ins.writes), ins.tag))
        elif ins.kind in ("dma", "vst"):
            if "nocount" not in ins.text:
                st.vm.append((set(), ins.tag))
        elif ins.kind == "smem":
            st.smem |= set(ins.writes)
    return waits, st


def materialize(insts, waits):
    out = []
    for idx, ins in enumerate(insts):
        if idx in waits:
            out.append(Inst(wait_text(*waits[idx])))
        if ins.kind != "pseudo":
            out.append(ins)
    return out


def is_v(r):
    return r[0] in "va" and r not in ("vcc",)


def hazard_need(prod, cons):
    need = 0
    pw, pr = set(prod.writes), set(prod.reads)
    cr, cw = set(cons.reads), set(cons.writes)
    pvalu = prod.kind in ("valu", "trans")
    cvalu = cons.kind in ("valu", "trans")
    cmem = cons.kind in ("dsr", "dsw", "vld", "vst", "dma")
    if prod.kind == "mfma":
        passes = 4 if "16x16" in prod.op else 8
        big = {4: 8, 8: 12}[passes]
        if cons.kind == "mfma":
            if pw & set(cons.srcab):
                need = max(need, big)
            if pw & set(cons.srcc):
                if not (list(prod.writes) == list(cons.srcc) and prod.op == cons.op):
                    need = max(need, {4: 6, 8: 10}[passes])
            if pw & cw and not (pw & set(cons.srcc)):
                need = max(need, {4: 6, 8: 10}[passes])
        elif cvalu:
            if pw & (cr | cw):
                need = max(need, big)
            if set(prod.srcc) & cw:
                need = max(need, {4: 3, 8: 7}[passes])
        elif cmem:
            if pw & (cr | cw):
                need = max(need, big)
    if pvalu:
        vw = {r for r in pw if is_v(r)}
        sw = pw - vw
        if cons.kind == "mfma":
            if vw & cr:
                need = max(need, 2)
            if "exec" in pw:
                need = max(need, 4)
        if cvalu:
            if prod.kind == "trans" and vw & cr:
                need = max(need, 1)
            if cons.op.startswith("v_permlane") and vw & cr:
                need = max(need, 2)
            if cons.extra.get("dpp") and vw & cr:
                need = max(need, 2)
            if cons.extra.get("dpp") and "exec" in pw:
                need = max(need, 5)
            if (cons.op.startswith("v_readlane") or cons.op.startswith("v_readfirstlane")) and vw & cr:
                need = max(need, 1)
            if (cons.op.startswith("v_readlane") or cons.op.startswith("v_writelane")) and sw & cr:
                need = max(need, 4)
            if (cons.op.startswith("v_readlane") or cons.op.startswith("v_writelane") or cons.op.startswith("v_readfirstlane") or cons.op.startswith("v_permlane")) and "exec" in pw:
                need = max(need, 4)
            if sw & cr:
                need = max(need, 2)
            if ("sdwa" in prod.text or "_sel:" in prod.text) and not prod.op.startswith("v_pk_") and vw & (cr | cw):
                need = max(need, 1)
            if prod.op.startswith("v_dot") and vw & (cr | cw) and prod.op != cons.op:
                need = max(need, 3)
        if prod.op.startswith("v_dot") and (cmem or cons.kind == "mfma") and vw & cr:
            need = max(need, 3)
        if cons.kind in ("vld", "vst", "dma") and sw & cr:
            need = max(need, 5)
        if prod.kind == "trans" and cmem and vw & cr:
            need = max(need, 1)
        if cons.kind in ("salu", "branch") and sw & cr:
            need = max(need, 1)
    if prod.kind == "vst" and ("x4" in prod.op or "x3" in prod.op):
        data = {r for r in pr if is_v(r)}
        if data & cw:
            need = max(need, 2)
    if prod.kind == "salu" and "m0" in pw and (cons.kind == "dma" or "m0" in cr):
        need = max(need, 1)
    return need


def states_of(ins):
    if ins.kind in ("label", "pseudo"):
        return 0
    if ins.op == "s_nop":
        return int(ins.text.split()[1]) + 1
    return 1


def hazard_pass(insts, history=None, log=None):
    hist = list(history or [])
    out = []
    for ins in insts:
        if ins.kind in ("label", "pseudo"):
            out.append(ins)
            continue
        dist = 0
        pad = 0
        for p in reversed(hist):
            if dist >= 12:
                break
            nd = hazard_need(p, ins)
            if nd > dist:
                pad = max(pad, nd - dist)
                if log is not None:
                    log.append((p.text, ins.text, nd, dist))
            dist += states_of(p)
        if pad:
            nop = Inst(f"s_nop {pad - 1}")
            out.append(nop)
            hist.append(nop)
        out.append(ins)
        hist.append(ins)
        hist = hist[-16:]
    return out


class Prog:
    def __init__(self, verbose=False):
        self.out = []
        self.st = State()
        self.verbose = verbose
        self.hist = []

    def _report(self, name, wl, hl, insts):
        if self.verbose:
            c, nm = est_cycles(insts)
            print(f"; [{name}] insts={len(insts)} mfma={nm} est_cycles={c} (ideal {nm * 16}) auto_waits={len(wl)} pads={len(hl)}")
            if self.verbose > 1:
                for w in wl:
                    print(";   auto wait before", w)
                for h in hl:
                    print(";   pad", h)

    def add(self, insts, name="seq"):
        if isinstance(insts, str):
            insts = L(insts)
        if isinstance(insts, Inst):
            insts = [insts]
        wl, hl = [], []
        waits, self.st = wait_pass(insts, self.st, log=wl)
        m = materialize(insts, waits)
        m = hazard_pass(m, self.hist, log=hl)
        self.hist = (self.hist + [i for i in m if i.kind != "label"])[-16:]
        self.out += m
        if any(i.kind == "mfma" for i in m):
            self._report(name, wl, hl, m)

    def loop(self, body, name="loop"):
        wl, hl = [], []
        w1, s1 = wait_pass(body, self.st, log=wl)
        forced = dict(w1)
        for _ in range(4):
            w2, s2 = wait_pass(body, s1, forced=forced, log=wl)
            same = (w2 == forced) and s2.key() == s1.key()
            forced = w2
            _, s1n = wait_pass(body, self.st, forced=forced)
            s1 = s2
            if same:
                break
        _, sa = wait_pass(body, self.st, forced=forced)
        if sa.key() != s1.key():
            if self.verbose:
                print(f"; note: loop {name}: first-trip exit state differs from steady state")
        m = materialize(body, forced)
        m = hazard_pass(m, self.hist, log=hl)
        m2 = hazard_pass(m, [i for i in m if i.kind != "label"][-16:], log=hl)
        self.hist = [i for i in m2 if i.kind != "label"][-16:]
        self.out += m2
        self.st = s1
        self._report(name, wl, hl, m2)

    def reset(self):
        self.st = State()
        self.hist = []

    def raw(self, text):
        self.out.append(Inst(".raw"))
        self.out[-1].text = text

    def text(self):
        return "\n".join(("" if i.kind == "label" else "  ") + i.text for i in self.out)


class CFG:
    def __init__(self, verbose=1):
        self.blocks = {}
        self.order = []
        self.paths = []
        self.verbose = verbose

    def block(self, name, *parts):
        ins = []
        for p in parts:
            if isinstance(p, str):
                ins += L(p)
            elif isinstance(p, Inst):
                ins.append(p)
            else:
                for q in p:
                    ins += L(q) if isinstance(q, str) else [q]
        assert name not in self.blocks, name
        self.blocks[name] = ins
        self.order.append(name)

    def path(self, *names):
        self.paths.append(list(names))

    def finalize(self):
        import sys
        forced = {n: {} for n in self.blocks}
        logs = {n: [] for n in self.blocks}
        seen = set()
        cache = {}
        ver = {n: 0 for n in self.blocks}
        for _ in range(10):
            changed = False
            for path in self.paths:
                st = State()
                for n in path:
                    seen.add(n)
                    key = (n, ver[n], st.key(), tuple(sorted(st.smem)))
                    if key in cache:
                        st = cache[key]
                        continue
                    w, st = wait_pass(self.blocks[n], st, forced=forced[n], log=logs[n])
                    if w != forced[n]:
                        forced[n] = w
                        ver[n] += 1
                        changed = True
                    else:
                        cache[key] = st
            if not changed:
                break
        else:
            raise RuntimeError("wait analysis did not converge")
        for n in self.blocks:
            assert n in seen, f"block {n} is on no path"
        mat = {n: materialize(self.blocks[n], forced[n]) for n in self.blocks}
        for n in mat: check_scc(mat[n], n)
        for path in self.paths: check_raw([i for n in path for i in mat[n]], path[-1])
        hl = {n: [] for n in self.blocks}
        for n in mat:
            mat[n] = hazard_pass(mat[n], [], log=hl[n])
        for _ in range(2):
            for path in self.paths:
                hist = []
                for n in path:
                    mat[n] = hazard_pass(mat[n][:24], hist, log=hl[n]) + mat[n][24:]
                    hist = (hist + [i for i in mat[n][-24:] if i.kind != "label"])[-16:]
        for n in self.order:
            if self.verbose:
                c, nm = est_cycles(mat[n])
                sys.stderr.write(f"; [{n}] insts={len(mat[n])} mfma={nm} est={c} ideal={nm * 16} auto_waits={len(logs[n])} pads={len(hl[n])}\n")
                if self.verbose > 1 and nm:
                    for w in logs[n]:
                        sys.stderr.write(f";    auto wait {w}\n")
                    for h in hl[n]:
                        sys.stderr.write(f";    pad {h}\n")
        self.mat = mat
        out = []
        for n in self.order:
            out.append(f"; ---- {n}")
            out += [("" if i.kind == "label" else "  ") + i.text for i in mat[n]]
        return "\n".join(out)
```

```python
from common import *
from sched import *
import att
from att import A, Sreg, Oreg, Preg, Qreg, Freg, RPAT, X, xlane, add_l, cvt_ctx, softmax_groups, softmax_half, rowmax, sub_S, rescale_state, mix, zero_O_mfma
from kv5 import dep, tr_addr
KSLOT, VSLOT = att.KSLOT, att.VSLOT
KSLOT.update({0: 3, 1: 2}); VSLOT.update({0: 0, 1: 1})
WSR = f"s[{A.S_WS}:{A.S_WS+3}]"
S_WO = 12
sWO = 38
vWO = 0
vOA = (18, 22, 40)
aSEL = 244
def adv_k():
    return L(f"""
    s_add_u32 s{A.sK}, s{A.sK}, 32768
    s_sub_u32 s{A.sKcnt}, s{A.sKcnt}, 1
    s_cselect_b32 s{A.sK}, s{A.sKn1}, s{A.sK}
    """)
att.adv_k = adv_k
adv_v = att.adv_v
def dma_flat(slot, soff, lo=0, hi=8):
    out = []
    for j, (pre, d) in enumerate(att.dma_tile(slot, soff)):
        if not lo <= j < hi: continue
        if j == lo and not pre: pre = I(f"s_add_u32 m0, s{A.sM0}, {slot * 32768 + (j >> 2) * 4096}")
        if pre: out.append(pre)
        out.append(d)
    return out
def rd_batch(slot, batch, v4=None):
    if slot < 4: return att.rd_batch(slot, batch)
    return [I(f"ds_read_b128 a[{Freg(batch, f)}:{Freg(batch, f)+3}], v{v4} offset:{batch * 8192 + f * 1024}", lds=(131072, 163840, "r")) for f in range(8)]
RELAY = False
def rd_wo(slot, mb):
    if RELAY: return rd_batch(slot, mb, vOA[2])
    return [I(f"ds_read_b64_tr_b16 a[{Freg(mb, ks) + 2*j}:{Freg(mb, ks) + 2*j + 1}], v{vOA[slot >> 1] + mb} offset:{(slot & 1) * 32768 + ks * 4096 + j * 2048}", lds=(slot * 32768, slot * 32768 + 32768, "r")) for ks in range(8) for j in range(2)]
def wo_dma(slot, lo=0, hi=8):
    if RELAY: return dma_flat(slot, sWO, lo, hi) + (L(f"s_add_u32 s{sWO}, s{sWO}, 32768") if hi == 8 else [])
    out = []
    for i in range(lo, hi):
        if i % 4 == 0 or i == lo: out.append(I(f"s_add_u32 m0, s{A.sM0}, {slot * 32768 + (i >> 2) * 4096}"))
        out.append(I(f"s_add_u32 s85, s{sWO}, {i * 7168 - (i & 3) * 1024}"))
        out.append(I(f"buffer_load_dwordx4 v{vWO}, s[{S_WO}:{S_WO+3}], s85 offen offset:{(i & 3) * 1024} lds", tag=("T", slot)))
    if hi == 8: out.append(I(f"s_add_u32 s{sWO}, s{sWO}, 128"))
    return out
def wo_setup(t, skip=0):
    if RELAY: return L(f"s_lshl_b32 s{sWO}, s41, 18\ns_add_u32 s{sWO}, s{sWO}, {WS_WO + skip * 32768}")
    return L(f"""
    v_lshrrev_b32 v{t}, 7, v{A.vL16}
    v_mul_u32_u24 v{t}, 896, v{t}
    v_lshrrev_b32 v{t+1}, 8, v{A.vL16}
    v_lshlrev_b32 v{t+1}, 5, v{t+1}
    v_xor_b32 v{t+1}, v{t+1}, v{A.vL16}
    v_and_b32 v{t+1}, 0x70, v{t+1}
    v_add_u32 v{vWO}, v{t}, v{t+1}
    s_mul_i32 s{sWO}, s{A.sWAVE}, {64 * 896}
    """)
def oa_setup(t):
    if RELAY: return []
    return L(f"v_lshrrev_b32 v{t+2}, 4, v{A.vL16}") + tr_addr(vOA[0], t + 2, t) + [I(f"v_add_u32 v{vOA[1] + x}, 0x10000, v{vOA[0] + x}") for x in range(4)]

RP8 = [0, 0, 3, 3, 6, 6, 9, 9]
RP16 = [0, 0, 1, 1, 3, 3, 4, 4, 6, 6, 7, 7, 9, 9, 10, 10]
def put_batch(g, reads, base, per=16, pat=None):
    pat = pat or (RP8 if len(reads) == 8 else RP16)
    for k, r in zip(pat, reads): g.put(base + k, r)
def need_batch(b, lo=0, n=32): return NEED(R("a", Freg(b, 0) + lo, n))
def tile_reads(g, rdf, nxt, tags, base=0, per=16, pat=None, npat=None):
    for b in range(1, 4):
        put_batch(g, rdf(b), base + (b - 1) * per, per, pat)
        if b < 3: g.put_s(base + b * per - 1, need_batch(b))
    if tags is None: g.put_s(base + 3 * per - 1, need_batch(3))
    else:
        g.put_s(base + 3 * per - 2, WAITV(tags, lgkm0=True))
        g.put_s(base + 3 * per - 1, I("s_barrier"))
    if nxt:
        put_batch(g, nxt, base + 3 * per, per, npat or pat)
        g.put_s(base + 4 * per - 2, need_batch(0))

def qk_mfmas(b, cf, order=(0, 1), breg=None, asc0=False):
    ms = []
    for kb in range(4):
        for m, qb in enumerate(order):
            d = R("v", Sreg(b, kb, qb), 4)
            for n, ks in enumerate(range(8) if m == 0 or (asc0 and kb == 0) else range(7, -1, -1)):
                bq = breg(qb, ks) if breg else R("a", Qreg(qb, ks), 4)
                ms.append(mfma(d, R("a", Freg(kb, ks), 4), bq, d if n else cf(kb, qb)))
    return ms
C0 = lambda kb, qb: "0"
NMq = lambda qb: R("v", A.vNM + 4 * qb, 4)
def pv_mfmas(b, zero=False):
    ms = []
    for db in range(16):
        for qb in range(2):
            d = R("v", Oreg(db, qb), 4)
            for n, kp in enumerate((0, 1) if qb == 0 else (1, 0)):
                ms.append(mfma(d, R("a", Freg(db >> 2, (db & 3) * 2 + kp), 4), R("v", Preg(b, kp, qb), 4), "0" if zero and n == 0 else d))
    return ms
def Pb(kp): return Preg(1, 0, 1 - kp)
def comb_mfmas():
    return [mfma(R("v", Oreg(db, qb), 4), R("a", aSEL + 2 - 2 * (db & 1), 4), R("a", A.aX + (qb * 8 + (db >> 1)) * 4, 4), R("v", Oreg(db, qb), 4))
            for kq in range(8) for qb in (1, 0) for db in (2 * kq, 2 * kq + 1)]
def pvb_mfmas(comb=False):
    ms = []
    for db in range(16):
        d = R("v", Oreg(db, 1), 4)
        for kp in range(2): ms.append(mfma(d, R("a", Freg(db >> 2, (db & 3) * 2 + kp), 4), R("v", Pb(kp), 4), d))
        if comb:
            for qb in (1, 0):
                d = R("v", Oreg(db, qb), 4)
                ms.append(mfma(d, R("a", aSEL + 2 - 2 * (db & 1), 4), R("a", A.aX + (qb * 8 + (db >> 1)) * 4, 4), d))
    return ms
def groups_b():
    out = []; sm = A.vSUM + 3
    for n in range(8):
        kb, pr = n >> 1, n & 1
        s = Sreg(1, kb, 1) + 2 * pr
        t0, t1 = A.vT + (n % 4) * 2, A.vT + (n % 4) * 2 + 1
        ex = [I(f"v_exp_f32 v{t0}, v{s}"), I(f"v_exp_f32 v{t1}, v{s+1}")]
        post = [I(f"v_add_f32 v{sm}, v{t0}, v{t1}")] if n == 0 else [I(f"v_add_f32 v{sm}, v{t0}, v{sm}"), I(f"v_add_f32 v{sm}, v{t1}, v{sm}")]
        post.insert(1, I(f"v_cvt_pk_bf16_f32 v{Pb(kb >> 1) + 2 * (kb & 1) + pr}, v{t0}, v{t1}"))
        out.append((ex, post))
    return out
def groups_first(b, order=(0, 1), base=0):
    out = []; n = 0; early = []
    for kk in range(2):
        for m, qb in enumerate(order):
            for pr in range(2):
                s = Sreg(b, kk, qb) + 2 * pr
                t0, t1 = A.vT + (n % 4) * 2, A.vT + (n % 4) * 2 + 1
                sm = A.vSUM + 2 * b + qb
                ex = [I(f"v_exp_f32 v{t0}, v{s}"), I(f"v_exp_f32 v{t1}, v{s+1}")]
                post = [I(f"v_add_f32 v{sm}, v{t0}, v{t1}")] if kk == 0 and pr == 0 else [I(f"v_add_f32 v{sm}, v{t0}, v{sm}"), I(f"v_add_f32 v{sm}, v{t1}, v{sm}")]
                post.insert(1, I(f"v_cvt_pk_bf16_f32 v{Preg(b, 0, qb) + 2 * kk + pr}, v{t0}, v{t1}"))
                out.append((ex, post)); early.append(base + 16 * kk + 8 * m + 7 + 5); n += 1
    return out, early
def flat_groups(grp):
    out = []; prev = []
    for ex, post in grp:
        out.append(ex[0]); out += prev[:2]; out.append(ex[1]); out += prev[2:]
        prev = post
    return out + prev
def sched_sm(g, grp, lo, hi, pre=(), early=None):
    link(list(pre) + [i for e, p in grp for i in e + p])
    ex = [(n, i) for n, (e, p) in enumerate(grp) for i in e]
    po = [(-1, i) for i in pre] + [(n, i) for n, (e, p) in enumerate(grp) for i in p]
    done_e = {}; last = lo; ne = 0; tot = len(ex)
    for k in range(lo, g.n):
        empty_left = sum(1 for q in range(k, hi) if g.used(q) == 0)
        if ex and g.used(k) == 0 and not (early and early[ex[0][0]] > k):
            n = ex[0][0]
            free = not any(m <= n - 4 for m, _ in po)
            due = k >= lo + ne * (hi - lo) // tot or empty_left <= len(ex)
            if free and due:
                g.put(k, ex.pop(0)[1]); done_e[n] = (done_e.get(n, (0, 0))[0] + 1, k); ne += 1; last = k
                continue
        keep = ex and g.used(k) == 0 and empty_left <= len(ex) and not any(m <= ex[0][0] - 4 for m, _ in po) and not (early and early[ex[0][0]] > k)
        while po and g.fits(k, po[0][1]) and not keep:
            n = po[0][0]
            if n >= 0 and not (done_e.get(n, (0, 0))[0] == 2 and done_e[n][1] < k): break
            g.put(k, po.pop(0)[1]); last = k
    if ex or po:
        last = g.n - 1
        for n in range(-1, len(grp) + 1):
            for m, i in ex:
                if m == n: g.put(last, i)
            for m, i in po:
                if m == n - 1: g.put(last, i)
    return last
def put_tail(g, k, ins):
    if k <= g.n - 2 - len(ins):
        k = max(k + 1, g.n - 3 - len(ins))
        for i in ins[:-1]: k = g.fit(k, i, lim=g.n - 2) + 1
        g.put_s(g.n - 1, ins[-1])
    else:
        for i in ins: g.put(g.n - 1, i)
def check(b, label): return att.check(b, label)
def check_first(label):
    return L(f"""v_max_f32 v{A.vX}, v{A.vSUM}, v{A.vSUM + 1}
    v_min_f32 v{A.vX + 1}, v{A.vSUM}, v{A.vSUM + 1}
    v_cmp_lt_f32 vcc, s{A.sTHR}, v{A.vX}
    v_cmp_gt_f32 s[64:65], s{A.sLOW}, v{A.vX + 1}
    s_or_b64 vcc, vcc, s[64:65]
    s_cbranch_vccnz {label}""")
A.sLOW = 24
def check_b(label):
    return L(f"v_cmp_lt_f32 vcc, s{A.sTHR}, v{A.vSUM + 3}\ns_cbranch_vccnz {label}")
def presets(second, zero=False):
    out = []
    b, qb = (1, 1) if second else (0, 0)
    for kb in range(4):
        m = 66 + 8 * (kb & 1)
        ins = L(f"""s_cmp_{'gt' if second else 'lt'}_u32 s{A.sWAVE}, {3 - kb if second else kb}
        s_cselect_b64 s[82:83], -1, 0
        s_cmp_eq_u32 s{A.sWAVE}, {3 - kb if second else kb}
        """ + "\n".join(f"s_cselect_b64 s[{m+2*e}:{m+2*e+1}], s[{A.sTRI[e]}:{A.sTRI[e]+1}], s[82:83]" for e in range(4)))
        ins += [I(f"v_cndmask_b32 v{Sreg(b, kb, qb) + e}, {'0' if zero else 'v%d' % (A.vNM + 4 * qb)}, v{A.vNEG}, s[{m+2*e}:{m+2*e+1}]") for e in range(4)]
        out.append(ins)
    return out

RET = lambda: [I("s_nop 3"), I(f"s_setpc_b64 s[{A.sRET}:{A.sRET+1}]")]
def slow_first(name, other):
    ins = [I(name + ":"), I("s_nop 7"), I("s_nop 3")] + rowmax(0) + sub_S(0) + (sub_S(1) if other else [])
    ins += [I(f"v_sub_f32 v{A.vNM + 4*q + e}, v{A.vNM + 4*q + e}, v{A.vX + q}") for q in range(2) for e in range(4)]
    return ins + softmax_half(0, 0) + (softmax_half(0, 1) if other else []) + RET()
def rescale_b():
    return [I(f"v_sub_f32 v{Sreg(1, kb, 1) + e}, v{Sreg(1, kb, 1) + e}, v{A.vX + 1}") for kb in range(4) for e in range(4)] + rescale_state() + flat_groups(groups_b())
def slow_b():
    vals = [Sreg(1, kb, 1) + e for kb in range(4) for e in range(4)]
    m = A.vX + 1
    ins = [I("L_slowb:"), I("s_nop 7"), I("s_nop 3"), I(f"v_max3_f32 v{m}, v{vals[0]}, v{vals[1]}, v{vals[2]}")]
    ins += [I(f"v_max3_f32 v{m}, v{vals[x]}, v{vals[x+1]}, v{m}") for x in range(3, 15, 2)] + [I(f"v_max_f32 v{m}, v{vals[15]}, v{m}")]
    ins += xlane("v_max_f32", m, A.vX + 3) + L(f"v_ceil_f32 v{m}, v{m}\nv_max_f32 v{m}, 0, v{m}\nv_mov_b32 v{A.vX}, 0")
    return ins + rescale_b() + RET()
def comb_slow(late=False):
    ins = L(f"""L_comb:
    s_waitcnt vmcnt(0)
    s_nop 7
    v_sub_f32 v{A.vX}, v{A.vNM}, v{A.vX+4}
    v_sub_f32 v{A.vX+1}, v{A.vNM+4}, v{A.vX+5}
    v_max_f32 v{A.vX}, 0, v{A.vX}
    v_max_f32 v{A.vX+1}, 0, v{A.vX+1}
    """) + (rescale_state() if late else rescale_b()) + L(f"""
    v_sub_f32 v{A.vX}, v{A.vNM}, v{A.vX+4}
    v_sub_f32 v{A.vX+1}, v{A.vNM+4}, v{A.vX+5}
    v_exp_f32 v{A.vX}, v{A.vX}
    v_exp_f32 v{A.vX+1}, v{A.vX+1}
    s_nop 0
    v_mul_f32 v{A.vX+6}, v{A.vX}, v{A.vX+6}
    v_mul_f32 v{A.vX+7}, v{A.vX+1}, v{A.vX+7}
    """)
    for qb in range(2):
        for n in range(32):
            a = A.aX + qb * 32 + n; t = Sreg(0, 0, 0) + 2 * (n % 8)
            ins += L(f"""v_accvgpr_read_b32 v{t}, a{a}
            v_and_b32 v{t+1}, 0xffff0000, v{t}
            v_lshlrev_b32 v{t}, 16, v{t}
            v_mul_f32 v{t}, v{A.vX + qb}, v{t}
            v_mul_f32 v{t+1}, v{A.vX + qb}, v{t+1}
            v_cvt_pk_bf16_f32 v{t}, v{t}, v{t+1}
            v_accvgpr_write_b32 a{a}, v{t}""")
    return ins + RET()
def lfin(): return xlane("v_add_f32", A.vLS, A.vX) + xlane("v_add_f32", A.vLS + 1, A.vX + 1) + L(f"v_rcp_f32 v{A.vRL}, v{A.vLS}\nv_rcp_f32 v{A.vRL+1}, v{A.vLS+1}")
def lfin2():
    a, c = xlane("v_add_f32", A.vLS, A.vX), xlane("v_add_f32", A.vLS + 1, A.vX + 1)
    out = []
    for x, y in zip(a, c): out += [x, y]
    return out + L(f"v_rcp_f32 v{A.vRL}, v{A.vLS}\nv_rcp_f32 v{A.vRL+1}, v{A.vLS+1}")
def selm(t):
    return L(f"""
    v_mov_b32 v{t}, 0x3f80
    v_lshrrev_b32 v{t+1}, 8, v{A.vL16}
    v_bfe_u32 v{t+2}, v{A.vL16}, 6, 2
    v_and_b32 v{t+3}, 16, v{A.vL16}
    v_lshlrev_b32 v{t+3}, v{t+3}, v{t}
    v_cmp_eq_u32 vcc, v{t+1}, v{t+2}
    v_and_b32 v{t+4}, 32, v{A.vL16}
    v_accvgpr_write_b32 a{aSEL}, 0
    v_cndmask_b32 v{t+3}, 0, v{t+3}, vcc
    v_cmp_eq_u32 vcc, 0, v{t+4}
    v_accvgpr_write_b32 a{aSEL+1}, 0
    v_accvgpr_write_b32 a{aSEL+4}, 0
    v_cndmask_b32 v{t+1}, 0, v{t+3}, vcc
    v_sub_u32 v{t+2}, v{t+3}, v{t+1}
    v_accvgpr_write_b32 a{aSEL+5}, 0
    v_accvgpr_write_b32 a{aSEL+2}, v{t+1}
    v_accvgpr_write_b32 a{aSEL+3}, v{t+2}
    """)
```

```python
from common import *
from sched import *
import kvq
from kvq import K, kacc, rr, cfrag, rd_c, unit, weave_units, spread2, pack, WSLOT

def dep(cons, *prods):
    for p in prods:
        for r in p.writes:
            if r in cons.reads:
                cons.extra.setdefault("raw", {})[r] = p; cons.extra.setdefault("pin", set()).add(r)

def wfrag(buf, x, ks): return 32 + (buf ^ 1) * 64 + (x * 2 + ks) * 4
NTW = 'nt'
def unit_w(u): return unit(K.sM0W, WSLOT[u & 3], K.vWD, K.S_W, K.sWOFF, 128 if u % 2 == 0 else 64 * 8192 - 128, ("W", u & 3))
def unit_c(u): return unit(K.sM0C, (u & 3) * 16384, K.vCD, K.S_C, K.sCOFF, 512 * 2048 if u % 2 == 0 else -(512 * 2048 - 128), ("C", u & 3))
QUART = [0, 2, 1, 3]
def rd_w(buf, slot, x, ks, j):
    r = wfrag(buf, x, ks) + 2 * j
    return I(f"ds_read_b64_tr_b16 a[{r}:{r+1}], v{K.vWR + (x & 3)} offset:{WSLOT[slot] + (32 * ks + 4 * j) * 256}")
def rd_w_unit(buf, slot, hx):
    return [rd_w(buf, slot, x, ks, j) for x in range(4 * hx, 4 * hx + 4) for ks in range(2) for j in range(2)]
def row_mfmas(y, wbuf, cbuf, vtype, first):
    ms = []
    for x in range(8):
        for n, ks in enumerate((0, 1) if x % 2 == 0 else (1, 0)):
            w = R("a", wfrag(wbuf, x, ks), 4); c = R("a", cfrag(cbuf, ks), 4)
            d = rr(kacc(y, x))
            cin = "0" if (first and n == 0) else d
            ms.append(mfma(d, c, w, cin) if vtype else mfma(d, w, c, cin))
    return ms
def kv_dma(t):
    out = []
    for u in (2 * t, 2 * t + 1):
        l = []
        if u + 3 < 32: l.append(unit_c(u + 3))
        if u + 5 < 32: l.append(unit_w(u + 5))
        out.append(l)
    return out
DR = [3, 44, 51, 108, 0]
def kv_tile(t, vtype, dma, endtags=()):
    first = t == 0
    ms = []
    for y in range(8): ms += row_mfmas(y, t & 1, y & 1, vtype, first)
    g = Gaps(ms)
    for h in (1, 2):
        u = 2 * t + h
        k0 = (4 * h - 1) * 16 - 1
        tags = ([("C", u & 3)] if u < 32 else []) + ([("W", (u + 2) & 3)] if u + 2 < 32 else []) + (list(endtags) if h == 2 else [])
        g.put_s(k0 - 1, WAITV(tags, lgkm0=True))
        g.put_s(k0, I("s_barrier"))
    for y in range(8):
        ny = y + 1
        u = 2 * t + (ny >> 2)
        if u < 32:
            for ks in range(2): g.put(y * 16, rd_c(ny & 1, u & 3, ny & 3, ks))
            g.put_s(y * 16 + 13, NEED(R("a", cfrag(ny & 1, 0), 8)))
    if first:
        for x in range(1, 8, 2): g.put_s(2 * x - 1, NEED(R("a", wfrag(0, x, 0), 16 if x < 7 else 8)))
        g.put_s(14, WAITV([("W", 2)], lgkm0=True)); g.put_s(15, I("s_barrier"))
        spread2(g, rd_w_unit(1, 2, 0), 17, 42)
        spread2(g, rd_w_unit(1, 3, 1), 50, 106)
        a_, b_, c_ = [unit_w(3)], [unit_c(2), unit_w(4)], dma[0] + dma[1]
        link([i for u_ in a_ + b_ + c_ for i in u_])
        weave_units(g, a_, 1, 14); weave_units(g, b_, 17, 46); weave_units(g, c_, 49, 110)
        return g
    if t < 15:
        spread2(g, rd_w_unit((t + 1) & 1, (2 * t + 2) & 3, 0), 1, 42)
        spread2(g, rd_w_unit((t + 1) & 1, (2 * t + 3) & 3, 1), 50, 106)
    weave_units(g, dma[0], *DR[:2])
    weave_units(g, dma[1], DR[2], DR[3] + (DR[4] if len(dma[1]) > 2 else 0))
    return g
def kv_pairs(vtype):
    if not vtype:
        return [((y, 2 * xp), (y, 2 * xp + 1), QUART[y >> 1] * 262144 + (y & 1) * 8192 + xp * 1024) for y in range(8) for xp in range(4)]
    return [((2 * yp, x), (2 * yp + 1, x), QUART[yp] * 262144 + x * 2048) for yp in range(4) for x in range(8)]

class QR:
    vQD = 8
    vXD, vXR = 22, 20
    vRB = {2: 12, 0: 16, 1: 20}
    sW1K, sOFF, sXA, sXB = 4, 25, 29, 30
HALF = dict(w0=0, w1=16384, w2=32768, w3=49152, c0=65536, c1=81920, c2=98304, c3=114688, A=131072, B=147456)
def _locs(spec): return [HALF[p[:-2]] + 4096 * n for p in spec.split() for n in range(int(p[-2]), int(p[-1]))]
_L = [_locs("w004 w104 A04 B02"), _locs("w304 c204 c304 w202"), _locs("c004 c104 B24 A04"), _locs("w004 w104 w224 w304")]
ULOC = [l[7 * h:7 * h + 7] for l in _L for h in range(2)]
XLOC = [HALF[h] for h in "A B A B w2 c0 c1".split()]
def xreg(qb, ks): return (176 + (ks * 2 + qb) * 4) if ks < 8 else (96 + ((ks - 8) * 2 + qb) * 4)
def x_setup():
    return L(f"""
    v_lshrrev_b32 v28, 4, v0
    v_and_b32 v29, 7, v0
    v_xor_b32 v28, v28, v29
    v_lshlrev_b32 v28, 4, v28
    v_lshrrev_b32 v29, 3, v0
    v_mul_u32_u24 v29, 896, v29
    v_add_u32 v{QR.vXD}, v28, v29
    v_xor_b32 v28, 64, v28
    s_mul_i32 s64, s{K.sWAVE}, {16 * 896}
    s_sub_u32 s65, {7 * 16 * 896 - 2048}, s64
    s_add_u32 s{QR.sXB}, s{K.sXOFF}, s65
    s_add_u32 s{QR.sXA}, s{K.sXOFF}, s64
    v_add_u32 v29, {7168 - 1024}, v29
    v_add_u32 v{QR.vXD + 1}, v28, v29
    s_and_b32 s64, s{K.sWAVE}, 1
    s_lshl_b32 s64, s64, 12
    s_add_u32 s64, s64, 65536
    v_add_u32 v{QR.vXR}, s64, v{K.vCR}
    v_add_u32 v{QR.vXR + 1}, s64, v{K.vCR + 1}
    """)
def x_dma(kt):
    return ([I(f"s_add_u32 m0, s{K.sM0W}, {XLOC[kt]}")] +
            [I(f"buffer_load_dwordx4 v{QR.vXD + (j & 1)}, s[{K.S_X}:{K.S_X+3}], s{QR.sXA if j < 2 else QR.sXB} offen offset:{1024 * j} lds", tag=("X", kt), lds=(XLOC[kt], XLOC[kt] + 16384, "X!")) for j in range(4)] +
            L(f"s_add_u32 s{QR.sXA}, s{QR.sXA}, 128\ns_add_u32 s{QR.sXB}, s{QR.sXB}, 128"))
def x_read(kt, xl):
    base = 131072 if kt < 4 else 32768
    out = [WAITV([("X", kt)])]
    for k2 in range(2):
        for qb in range(2):
            r = xreg(qb, 2 * kt + k2)
            out.append(I(f"ds_read_b128 a[{r}:{r+3}], v{QR.vXR + k2} offset:{XLOC[kt] - base + qb * 2048}", lds=(XLOC[kt], XLOC[kt] + 16384, "X!"))); xl[(qb, 2 * kt + k2)] = out[-1]
    if kt == 3: out += [I(f"v_subrev_u32 v{QR.vXR + k2}, {131072 - 32768}, v{QR.vXR + k2}") for k2 in range(2)]
    return out
def q_setup():
    return L(f"""
    s_lshl_b32 s{QR.sW1K}, s{K.sWAVE}, 10
    v_bfe_u32 v28, v0, 3, 2
    v_lshrrev_b32 v29, 5, v0
    v_lshl_add_u32 v28, v29, 3, v28
    v_lshlrev_b32 v28, 13, v28
    v_lshrrev_b32 v29, 4, v0
    v_lshlrev_b32 v29, 1, v29
    v_and_b32 v30, 7, v0
    v_xor_b32 v29, v29, v30
    v_lshl_add_u32 v28, v29, 4, v28
    s_and_b32 s64, s{K.sWAVE}, 1
    s_lshl_b32 s64, s64, 17
    s_lshr_b32 s65, s{K.sWAVE}, 1
    s_lshl_b32 s65, s65, 15
    s_add_u32 s64, s64, s65
    v_add_u32 v{QR.vQD}, s64, v28
    """)
def tr_addr(dst, lane, t):
    return L(f"""
    v_lshrrev_b32 v{t}, 2, v{lane}
    v_lshlrev_b32 v{t}, 7, v{t}
    v_and_b32 v{t+1}, 3, v{lane}
    v_lshl_add_u32 v{t}, v{t+1}, 3, v{t}
    v_bfe_u32 v{t+1}, v{lane}, 3, 2
    v_lshl_add_u32 v{dst}, v{t+1}, 5, v{t}
    v_xor_b32 v{dst+1}, 32, v{dst}
    v_xor_b32 v{dst+2}, 64, v{dst}
    v_xor_b32 v{dst+3}, 0x60, v{dst}
    """)
def q_bank(b): return [I(f"v_add_u32 v{QR.vRB[b] + x}, {hex(b << 16)}, v{QR.vRB[0] + x}") for x in range(4)]
def q_setup2(): return tr_addr(QR.vRB[0], 0, 28) + q_bank(2)
def wq_dma(u, f):
    cg, ks = u >> 1, 7 * (u & 1) + f
    return [I(f"s_mov_b32 s{QR.sOFF}, {cg * 128 + ks * 32 * 8192}"), I(f"s_add_u32 m0, s{QR.sW1K}, {ULOC[u][f]}"),
            I(f"buffer_load_dwordx4 v{QR.vQD}, s[{K.S_WQ}:{K.S_WQ+3}], s{QR.sOFF} offen lds", tag=("U", u), lds=(ULOC[u][f], ULOC[u][f] + 4096, "U"))]
def wq_unit(u, lo=0, hi=7): return [i for f in range(lo, hi) for i in wq_dma(u, f)]
class QPhase:
    def __init__(self, vbuf, accq):
        self.vbuf, self.accq, self.lastm = vbuf, accq, {}
        self.rd = [self._reads(n) for n in range(32)]
    def frag(self, n, f):
        return ("v", self.vbuf[f]) if n % 2 == 0 else ("a", 144 + 4 * f)
    def acc(self, cg, x4, qb): return self.accq[(cg & 1) * 8 + x4 * 2 + qb]
    def _reads(self, n):
        u = n >> 2; out = []
        for f in range(7):
            k, r = self.frag(n, f)
            out += [I(f"ds_read_b64_tr_b16 {k}[{r + 2*j}:{r + 2*j + 1}], v{QR.vRB[ULOC[u][f] >> 16] + (n & 3)} offset:{(ULOC[u][f] & 0xffff) + j * 2048}", lds=(ULOC[u][f], ULOC[u][f] + 4096, "r")) for j in range(2)]
        return out
    def mfmas(self, xl):
        ms = []
        for n in range(32):
            cg, hf, x4 = n >> 3, (n >> 2) & 1, n & 3
            for qb in range(2):
                d = R("v", self.acc(cg, x4, qb), 4)
                for m, f in enumerate(range(7) if qb == 0 else range(6, -1, -1)):
                    k, r = self.frag(n, f)
                    i = mfma(d, R(k, r, 4), R("a", xreg(qb, 7 * hf + f), 4), "0" if hf == 0 and m == 0 else d)
                    dep(i, self.rd[n][2 * f], self.rd[n][2 * f + 1], xl[(qb, 7 * hf + f)])
                    ms.append(i); self.lastm[(cg, x4, qb)] = i
        return ms
    PAT = [0, 0, 2, 2, 3, 3, 5, 5, 6, 6, 8, 8, 9, 9]
    def place_reads(self, g, n, base, pat=None):
        for k, r in zip(pat or self.PAT, self.rd[n]): g.put(base + k, r)
    def need(self, n, lo, hi): return NEED(*[R(*self.frag(n, f), 4) for f in range(lo, hi)])
    def out(self, cg, p2, qb, qreg):
        a, b = self.acc(cg, 2 * p2, qb), self.acc(cg, 2 * p2 + 1, qb)
        ins = [I(f"v_mul_f32 v{r + e}, s{K.sSC}, v{r + e}") for r in (a, b) for e in range(4)]
        if (cg, p2) != (3, 1):
            for i in ins: dep(i, self.lastm[(cg, 2 * p2, qb)], self.lastm[(cg, 2 * p2 + 1, qb)])
        ins += pack(("v", a), ("v", b), 0)[0]
        ins += [I(f"v_accvgpr_write_b32 a{qreg + e}, v{a + e}") for e in range(4)]
        return ins, 14 * (8 * cg + 4 + 2 * p2 + 1) + 7 * qb + 6
```

```python
import re
def region(i):
    if "lds" in i.extra: return i.extra["lds"]
    off = re.search(r"offset:(\d+)", i.text); off = int(off.group(1)) if off else 0
    if i.kind == "dma":
        t = i.tag
        if isinstance(t, tuple):
            if t[0] == "W": return (t[1] * 16384, t[1] * 16384 + 16384, "W")
            if t[0] == "C": return (65536 + t[1] * 16384, 65536 + t[1] * 16384 + 16384, "C")
            if t[0] == "T": return (t[1] * 32768, t[1] * 32768 + 32768, "T")
        return (131072, 163840, "H!")
    a = [r for r in i.reads if r[0] == "v"][0]
    if i.op == "ds_read_b64_tr_b16" and a in ("v1", "v2", "v3", "v4"): return (off & ~16383, (off & ~16383) + 16384, "r")
    if i.op == "ds_read_b128" and a in ("v5", "v6"): return (65536 + (off & ~16383), 65536 + (off & ~16383) + 16384, "r")
    if i.op == "ds_read_b128" and a in ("v7", "v2"):
        b = (65536 if a == "v2" else 0) + (off & ~32767); return (b, b + 32768, "r")
    return (131072, 163840, "H!")
def check(c):
    for path in c.paths:
        vm = []; lg = []; wr = []; rd = []
        for b in path:
            for i in c.mat[b]:
                if "ignore" in i.text: continue
                if i.op == "s_waitcnt":
                    v = re.search(r"vmcnt\((\d+)\)", i.text); l = re.search(r"lgkmcnt\((\d+)\)", i.text)
                    for q, m in ((vm, v), (lg, l)):
                        if m:
                            while len(q) > int(m.group(1)):
                                x = q.pop(0)
                                if x: x[3] = 1
                elif i.op == "s_barrier":
                    for x in wr + rd:
                        if x[3] == 1: x[3] = 2
                    rd = [x for x in rd if x[3] < 2]
                elif i.kind in ("dsr", "dsw"):
                    lo, hi, k = region(i); x = [lo, hi, k, 0, i]
                    if k != "H!":
                        ws = [w for w in wr if w[0] < hi and lo < w[1]]
                        assert ws, (b, i.text, "reads unwritten region")
                        for w in ws: assert w[3] == 2 or (w[3] == 1 and k == w[2] and k.endswith("!")), (path, b, i.text, "not visible:", w[4].text, w[3])
                    rd.append(x); lg.append(x)
                elif i.kind == "dma":
                    lo, hi, k = region(i); x = [lo, hi, k, 0, i]
                    for r in rd:
                        if r[0] < hi and lo < r[1] and not (k == "H!" and r[2] == "H!"):
                            assert r[3] == 1 and r[2] == k and k.endswith("!"), (path, b, i.text, "overwrites unreleased", r[4].text, r[3])
                    for w in wr:
                        if w[0] < hi and lo < w[1]: assert w[3] == 2 or w[2] == k, (path, b, i.text, "write after write", w[4].text)
                    wr = [w for w in wr if not (w[3] == 2 and w[0] < hi and lo < w[1])] + [x]
                    if "nocount" not in i.text: vm.append(x)
                elif i.kind in ("vld", "vst"):
                    if "nocount" not in i.text: vm.append(None)
```

```python
from asmlib import *

class At:
    def __init__(self, k): self.k = k
class By:
    def __init__(self, k): self.k = k
class Sep:
    def __init__(self, n): self.n = n

class After:
    def __init__(self, i): self.i = i

def is_vm4(i): return i.kind in ("dma", "vld", "vst") and "x4" in i.op
def cost(i):
    if i.kind == "label": return 0
    return max(i.slots())

class Stream:
    def __init__(self, items, lo, hi, asap, vmd, sbody):
        self.sbody = sbody; self.after = {}
        self.it = []
        e = lo; sep = 0
        for x in items:
            if isinstance(x, int): x = Sep(x)
            if isinstance(x, At): e = max(e, x.k)
            elif isinstance(x, Sep): sep += x.n
            elif isinstance(x, After): self.after[len(self.it)] = x.i
            elif isinstance(x, By):
                for r in self.it: r[2] = min(r[2], x.k)
            else:
                self.it.append([x, e, 10 ** 9, sep]); sep = 0
        link([r[0] for r in self.it])
        tot = sum(cost(r[0]) if r[0].slots()[0] else 0 for r in self.it) or 1
        acc = 0; self.tgt = []
        for r in self.it:
            self.tgt.append(max(r[1], lo if asap else lo + (acc * (hi - lo)) // tot))
            if r[0].slots()[0]: acc += cost(r[0])
        for n in range(len(self.it) - 1, -1, -1):
            if not self.it[n][0].slots()[0] and n + 1 < len(self.it): self.tgt[n] = max(self.it[n][1], min(self.tgt[n], self.tgt[n + 1] - 1))
        self.p = 0; self.last = -1; self.last_head = True; self.hi = hi; self.vmd = vmd
    def left(self): return [r[0] for r in self.it[self.p:]]

class Sched:
    def __init__(self, g):
        self.g = g; self.s = []
    def add(self, items, lo=0, hi=None, asap=False, vmd=3, sbody=False):
        items = list(items)
        self.s.append(Stream(items, lo, self.g.n - 1 if hi is None else hi, asap, vmd, sbody))
        return self
    def run(self, spill=False, cap=None):
        g = self.g; lock = None; placed = {}
        fixed_scc = [any(writes_scc(x) for x in g.sc[k] + g.ve[k]) for k in range(g.n)]
        def nscc(s, n):
            m = 0
            while n + m + 1 < len(s.it) and s.it[n + m + 1][0].extra.get("scc") is s.it[n][0]: m += 1
            return m
        def depends_later(s, n):
            return any(r[0].extra.get("scc") is s.it[n][0] for r in s.it[n + 1:])
        for k in range(g.n):
            final = k == g.n - 1
            while True:
                best = None
                for si, s in enumerate(self.s):
                    if s.p >= len(s.it): continue
                    i, e, l, sep = s.it[s.p]
                    if i.kind == "label":
                        best = (-10 ** 9, si, "label"); break
                    if s.p in s.after and placed.get(id(s.after[s.p]), 10 ** 9) >= k + final: continue
                    forced = l <= k or (final and not spill)
                    if s.last == k and sep and not forced: continue
                    if (k < e or k < s.last + sep) and not final: continue
                    if final and spill and l > k and (k < e or k < s.last + sep): continue
                    if s.p and "m0" in s.it[s.p - 1][0].writes and s.last == k and i.kind == "dma" and not forced: continue
                    if writes_scc(i) and lock is not None and lock != si: continue
                    due = s.tgt[s.p] <= k
                    if not due and not forced: continue
                    scalar = i.slots()[0] == 0
                    if scalar and writes_scc(i) and depends_later(s, s.p) and not forced:
                        m = nscc(s, s.p)
                        if any(fixed_scc[q] for q in range(k, min(g.n, k + 2 * m + 2))): continue
                    head = scalar and not (final and s.p in s.after) and not [x for x in g.sc[k] if x.kind != "label"] and (s.last < k or s.last_head) and not (lock is None and writes_scc(i) and False)
                    if head: how = "head"
                    else:
                        if not g.fits(k, i) and not forced: continue
                        if scalar and not forced and not (s.sbody and s.tgt[s.p] < k - 1): continue
                        if is_vm4(i) and not forced:
                            late = k - s.tgt[s.p]
                            d = s.vmd if late < 4 else (min(s.vmd, 2) if late < 8 else min(s.vmd, 1))
                            if g.vm_near(k, d): continue
                        how = "body"
                    key = (0 if forced else (1 if how == 'head' or cost(i) == 2 else 2), min(l, s.tgt[s.p] + (0 if not scalar else -2)), si)
                    if best is None or key < best[0]: best = (key, si, how)
                if best is None: break
                _, si, how = best
                s = self.s[si]; i = s.it[s.p][0]
                if how == "label":
                    q = max(s.last, 0)
                    (g.sc[q] if s.last_head else g.ve[q]).append(i)
                    s.p += 1; continue
                if how == "head": g.put_s(k, i); s.last_head = True
                else: g.put(k, i); s.last_head = False
                s.last = k; placed[id(i)] = k
                if writes_scc(i) and depends_later(s, s.p): lock = si
                s.p += 1
                if lock == si:
                    src = [r[0] for r in s.it[:s.p] if writes_scc(r[0])][-1]
                    if not any(r[0].extra.get("scc") is src for r in s.it[s.p:]): lock = None
        assert spill or (lock is None and not any(s.left() for s in self.s))
        return [s.left() for s in self.s]
```

```python
from common import *
from side import S_WS, sWAVE, sH, sJ, WS, OOB, poll_flags
sI0, sI1 = 92, 94
FINE = False
NAT = True
COL = lambda: "v_bfe_u32 v34, v32, 4, 1\nv_lshlrev_b32 v34, 1, v34\nv_lshrrev_b32 v35, 5, v32\nv_add_u32 v34, v34, v35" if NAT else "v_lshrrev_b32 v34, 4, v32"
NE = 6
FOP_LOAD = f"buffer_load_dword v9, v33, {WS}, s46 offen sc1"
aSEL = 244
RS = [dict(row=37, off=38, g=39, x=48, b=64, acc=96, n=2, col=75), dict(row=29, off=28, g=26, x=44, b=80, acc=112, n=1, col=79),
      dict(row=29, off=28, g=26, x=44, b=48, acc=56, n=1, col=79)]
def red_k1(vl16):
    out = L(f"""
    v_lshrrev_b32 v32, 4, v{vl16}
    s_lshr_b32 s74, s{sH}, 3
    s_lshl_b32 s64, s{sJ}, 1
    s_add_u32 s46, s64, s74
    s_mul_i32 s46, s46, {FSTR}
    s_and_b32 s72, s{sH}, 7
    s_lshl_b32 s65, s72, 7
    s_add_u32 s46, s46, s65
    s_add_u32 s46, s46, {WS_FOP}
    v_and_b32 v33, 31, v32
    v_lshlrev_b32 v33, 2, v33
    s_lshl_b32 s65, s{sH}, 7
    s_add_u32 s65, s65, {WS_SEL}
    buffer_load_dword v31, v33, {WS}, s65 offen sc1
    {COL()}
    {srd(52, 96, 2048*896)}
    s_mul_i32 s77, s{sJ}, {16 * OP_HEAD}
    s_mul_i32 s78, s72, 14336
    s_add_u32 s77, s77, s78
    s_add_u32 s77, s77, {WS_OP}
    s_lshl_b32 s79, s74, {2 if NE == 8 else 1}
    s_add_u32 s79, s79, s{sWAVE}
    s_lshl_b32 s71, s74, 1
    s_add_u32 s71, s71, {3 if NE == 8 else 1}
    s_sub_u32 s71, s71, s{sWAVE}
    s_and_b32 s71, s71, {OOB}
    s_sub_u32 s64, 15, s64
    s_sub_u32 s78, s64, 1
    s_mul_i32 s78, s78, {16 * OP_HEAD}
    s_add_u32 s78, s78, s77
    s_lshl_b32 s65, s79, 10
    s_add_u32 s78, s78, s65
    s_add_u32 s78, s78, s71
    s_lshl_b32 s79, s79, 6
    s_or_b32 s79, s79, s71
    s_mul_i32 s67, s74, -2
    s_lshl_b32 s74, s74, 3
    s_add_u32 s74, s74, s{sWAVE}
    s_lshl_b32 s75, s74, 6
    s_add_u32 s76, s75, 256
    s_add_u32 s67, s67, 3
    s_sub_u32 s67, s67, s{sWAVE}
    s_and_b32 s67, s67, {OOB}
    s_or_b32 s76, s76, s67
    v_or_b32 v27, s67, v{vl16}
    v_add_u32 v27, 4096, v27
    s_lshl_b32 s65, s74, 10
    s_add_u32 s77, s77, s65
    s_lshl_b32 s64, s64, 7
    s_lshr_b32 s73, s72, 1
    s_sub_u32 s65, 7, s73
    s_bitcmp1_b32 s72, 0
    s_cselect_b32 s73, s65, s73
    s_lshl_b32 s73, s73, 4
    s_lshl_b32 s65, s{sJ}, 7
    s_add_u32 s73, s73, s65
    v_and_b32 v37, 15, v32
    v_add_u32 v37, s73, v37
    v_add_u32 v29, s64, v37
    s_mov_b32 s64, {WS_RG + 64}
    """)
    for r in RS[:2]:
        out += L(f"""
        v_mul_u32_u24 v{r['off']}, 896, v{r['row']}
        v_lshl_add_u32 v{r['off']}, v34, 4, v{r['off']}
        v_lshrrev_b32 v35, 4, v{r['row']}
        v_lshlrev_b32 v35, 5, v35
        v_and_b32 v36, 15, v{r['row']}
        v_add_lshl_u32 v35, v35, v36, 2
        buffer_load_dword v{r['g']}, v35, {WS}, s64 offen sc1
        """) + [I(f"buffer_load_dwordx4 v[{r['x']+4*u}:{r['x']+4*u+3}], v{r['off']}, s[56:59], s{r['col']+u} offen") for u in range(r['n'])]
    return out
def red_b(t):
    r = RS[t]; n = r['n']
    return L(f"v_readlane_b32 s{sI0}, v31, 0\nv_readlane_b32 s{sI1}, v31, 1" if t == 0 else "") + [i for w in range(4 * n) for i in L(f"v_lshlrev_b32 v{r['b']+2*w}, 16, v{r['x']+w}\nv_and_b32 v{r['b']+1+2*w}, 0xffff0000, v{r['x']+w}")] + L(f"""
    v_sub_f32 v30, 1.0, v{r['g']}
    v_cmp_eq_u32 s[80:81], s{sI0}, v{r['row']}
    v_cmp_eq_u32 s[82:83], s{sI1}, v{r['row']}
    s_or_b64 vcc, s[80:81], s[82:83]
    s_cbranch_vccnz L_moe{t}
    L_moe_ret{t}:
    """) + [I(f"v_mul_f32 v{r['b']+e}, v30, v{r['b']+e}") for e in range(8 * n)]
def red_fin(t, note=""):
    r = RS[t]; o = []
    o += [I(f"v_permlane16_swap_b32 v{r['acc']+8*u+e}, v{r['acc']+8*u+4+e}") for u in range(r['n']) for e in range(4) if NAT]
    for u in range(r['n']):
        o += [I(f"v_fmac_f32 v{r['b']+8*u+e}, v{r['g']}, v{r['acc']+8*u+e}") for e in range(8)]
        o += [I(f"v_cvt_pk_bf16_f32 v{r['x']+4*u+w}, v{r['b']+8*u+2*w}, v{r['b']+1+8*u+2*w}") for w in range(4)]
        o.append(I(f"buffer_store_dwordx4 v[{r['x']+4*u}:{r['x']+3+4*u}], v{r['off']}, s[52:55], s{r['col']+u} offen sc1{note}"))
    return o
def adds(t, reg, first):
    o = []
    for u in range(RS[t]['n']):
        for hf in range(2):
            d = R("v", RS[t]['acc'] + 8 * u + 4 * hf, 4)
            o.append(mfma(d, R("a", aSEL + 2 - 2 * hf, 4), R("v", reg + 4 * u, 4), "0" if first else d))
    return o
def pick(lab, base, regs, vas):
    return L(f"""s_cmp_lg_u32 s70, 0
    s_cbranch_scc1 {lab}
    s_call_b64 s[36:37], L_rpoll
    {lab}:
    s_ff1_i32_b32 s71, s70
    s_bitset0_b32 s70, s71
    s_mul_i32 s71, s71, {OP_HEAD}
    s_add_u32 s72, s71, s{base}""") + [I(f"buffer_load_dwordx4 v[{r}:{r+3}], v{a}, {WS}, s72 offen sc1") for r, a in zip(regs, vas)]
def red_main(vl16, st=lambda: [], lag=5, lag2=11):
    out = L(f"""
    v_cmp_eq_u32 vcc, 1, v9
    s_mov_b32 s91, {SPIN_MAX}
    s_mov_b32 s69, 0xffff
    s_and_b32 s70, vcc_lo, s69
    s_mov_b32 s68, s70
    """)
    reg = lambda k: 128 + 8 * (k % 8) if k < 16 else 192 + 4 * (k - 16)
    done = 0
    for k in range(32):
        if k == 16: out += L("v_cmp_eq_u32 vcc, 1, v8\ns_mov_b32 s69, 0xffff0000\ns_and_b32 s70, vcc_lo, s69\ns_mov_b32 s68, s70")
        out += pick(f"L_rk{k}", 77, [reg(k), reg(k) + 4], [vl16, 27]) if k < 16 else pick(f"L_rk{k}", 78, [reg(k)], [vl16])
        if k == PK: out += L(FOP_LOAD.replace("v9", "v8"))
        if k in (lag - 1, lag): out += red_b(k - lag + 1)
        if k == 31 or (FINE and k % 3 == 0): out += st()
        while done <= k - (lag if done < 16 else lag2):
            out += adds(done // 16, reg(done), done % 16 == 0); done += 1
            if done == 16: out += red_fin(0)
    while done < 32: out += adds(1, reg(done), False); done += 1
    return out + st() + red_fin(1)
PK = 12
def red_v1(vl16):
    return L(f"""
    v_lshrrev_b32 v32, 4, v{vl16}
    s_lshr_b32 s74, s{sH}, 3
    s_sub_u32 s64, 15, s{sJ}
    s_mul_i32 s46, s64, {2 * FSTR}
    s_and_b32 s72, s{sH}, 7
    s_lshl_b32 s65, s72, 7
    s_add_u32 s46, s46, s65
    s_add_u32 s46, s46, {WS_FOP + 1024}
    v_and_b32 v33, 31, v32
    v_lshlrev_b32 v33, 2, v33
    s_lshl_b32 s65, s{sH}, 7
    s_add_u32 s65, s65, {WS_SEL}
    buffer_load_dword v31, v33, {WS}, s65 offen sc1
    {COL()}
    {srd(52, 96, 2048*896)}
    s_mul_i32 s77, s{sJ}, {16 * OP_HEAD}
    s_mul_i32 s78, s72, 14336
    s_add_u32 s77, s77, s78
    s_add_u32 s77, s77, {WS_OP}
    s_lshl_b32 s79, s74, 2
    s_add_u32 s79, s79, s{sWAVE}
    s_add_u32 s79, s79, {NE}
    s_sub_u32 s67, 13, s79
    s_and_b32 s67, s67, {OOB}
    s_lshl_b32 s78, s79, 10
    s_add_u32 s78, s78, s77
    s_lshl_b32 s79, s79, 6
    s_or_b32 s79, s79, s67
    v_or_b32 v27, s67, v{vl16}
    s_lshr_b32 s73, s72, 1
    s_sub_u32 s65, 7, s73
    s_bitcmp1_b32 s72, 0
    s_cselect_b32 s73, s65, s73
    s_lshl_b32 s73, s73, 4
    s_lshl_b32 s65, s{sJ}, 7
    s_add_u32 s73, s73, s65
    v_and_b32 v29, 15, v32
    v_add_u32 v29, s73, v29
    s_mov_b32 s64, {WS_RG + 64}
    v_mul_u32_u24 v28, 896, v29
    v_lshl_add_u32 v28, v34, 4, v28
    v_lshrrev_b32 v35, 4, v29
    v_lshlrev_b32 v35, 5, v35
    v_and_b32 v36, 15, v29
    v_add_lshl_u32 v35, v35, v36, 2
    buffer_load_dword v26, v35, {WS}, s64 offen sc1
    buffer_load_dwordx4 v[44:47], v28, s[56:59], s79 offen
    """)
def red_v2():
    return L(f"""
    v_readlane_b32 s{sI0}, v31, 0
    v_readlane_b32 s{sI1}, v31, 1
    v_sub_f32 v30, 1.0, v26
    """) + [i for w in range(4) for i in L(f"v_lshlrev_b32 v{48+2*w}, 16, v{44+w}\nv_and_b32 v{49+2*w}, 0xffff0000, v{44+w}")] + L(f"""
    v_cmp_eq_u32 s[80:81], s{sI0}, v29
    v_cmp_eq_u32 s[82:83], s{sI1}, v29
    """)
def red_main_v(st=lambda: [], lag=8):
    out = L(f"""
    v_cmp_eq_u32 vcc, 1, v9
    s_mov_b32 s91, {SPIN_MAX}
    s_lshl_b32 s70, 1, s{sH}
    s_mov_b32 s69, 0xffff
    s_or_b32 s70, s70, vcc_lo
    s_mov_b32 s68, s70
    s_barrier
    """)
    for k in range(16 + lag):
        if k < 16: out += pick(f"L_vk{k}", 78, [128 + 4 * k], [27])
        if k == 7: out += L("""
            s_or_b64 vcc, s[80:81], s[82:83]
            s_cbranch_vccnz L_moe2
            L_moe_ret2:
            """) + [I(f"v_mul_f32 v{48+e}, v30, v{48+e}") for e in range(8)]
        if k == 15: out += st()
        if k >= lag: out += adds(2, 128 + 4 * (k - lag), k == lag)
    return out + st() + red_fin(2)
def red_poll():
    return L(f"""
    L_rpoll0:
    s_sleep 1
    L_rpoll:
    {FOP_LOAD}
    s_waitcnt vmcnt(0)
    v_cmp_eq_u32 vcc, 1, v9
    s_sub_u32 s91, s91, 1
    s_cselect_b32 s70, -1, 0
    s_or_b32 s70, s70, vcc_lo
    s_and_b32 s70, s70, s69
    s_andn2_b32 s70, s70, s68
    s_cbranch_scc0 L_rpoll0
    s_or_b32 s68, s68, s70
    s_setpc_b64 s[36:37]
    """)
def red_moe():
    out = []
    for n, t in enumerate((0, 1, 2)):
        out += L(f"L_moe{n}:\ns_lshl_b32 s88, s{RS[t]['col']}, 1\ns_call_b64 s[36:37], L_moe") + [I(f"v_add_f32 v{RS[t]['b']+e}, v{2+e if e < 4 else 6+e}, v{RS[t]['b']+e}") for e in range(8 * RS[t]['n'])] + L(f"s_mov_b64 exec, -1\ns_branch L_moe_ret{n}")
    out += L(f"""
    L_moe:
    v_min_u32 v0, 27, v32
    v_lshlrev_b32 v0, 2, v0
    s_mov_b32 s64, {WS_FH + 512}
    """) + poll_flags(64, 64, "L_pfy", 1, 0, 65) + L(f"""
    s_or_b64 exec, s[80:81], s[82:83]
    v_mov_b32 v0, 1792
    v_cndmask_b32 v0, v0, 0, s[80:81]
    v_lshl_add_u32 v0, v34, 5, v0
    s_add_u32 s88, s88, {WS_YF}
    buffer_load_dwordx4 v[2:5], v0, {WS}, s88 offen sc1
    buffer_load_dwordx4 v[10:13], v0, {WS}, s88 offen offset:16 sc1
    buffer_load_dwordx4 v[14:17], v0, {WS}, s88 offen offset:512 sc1
    buffer_load_dwordx4 v[18:21], v0, {WS}, s88 offen offset:528 sc1
    s_waitcnt vmcnt(0)
    s_setpc_b64 s[36:37]
    """)
    return out
def y_stubs(ret, ht):
    adr = f"""
    v_lshrrev_b32 v11, 7, v7
    v_mul_u32_u24 v11, {FSTR}, v11
    v_and_b32 v12, 0x70, v7
    v_lshl_add_u32 v11, v12, 3, v11
    s_mov_b32 s64, {WS_FL + 1024 * ht}
    s_mov_b32 s65, {WS_FL + 8 * FSTR + 1024 * ht}
    """
    ld = f"buffer_load_dword a128, v11, {WS}, s64 offen sc1\nbuffer_load_dword a129, v11, {WS}, s65 offen sc1"
    un = f"s_lshl_b32 s66, s{sH}, 1\ns_add_u32 s66, s66, s{sWAVE}\ns_sub_u32 s66, s66, 2"
    out = L(f"""
    L_y2:
    {adr}
    {ld}
    s_branch {ret}
    s_waitcnt vmcnt(0)
    L_y3:
    s_mov_b32 s91, {SPIN_MAX}
    L_y3c:
    v_accvgpr_read_b32 v12, a128
    v_accvgpr_read_b32 v13, a129
    v_min_u32 v12, v12, v13
    v_cmp_gt_u32 vcc, 2, v12
    s_sub_u32 s91, s91, 1
    s_cbranch_scc1 L_y3x
    s_cbranch_vccz L_y3x
    {adr}
    {ld}
    s_waitcnt vmcnt(0)
    s_branch L_y3c
    L_y3x:
    {un}
    s_cmp_lt_u32 s66, 14
    s_cselect_b32 s64, 8, 12
    s_add_u32 s64, s64, {WS_SEL}
    buffer_load_dword a130, off, {WS}, s64 sc1
    v_lshrrev_b32 v11, 7, v7
    v_mul_u32_u24 v11, 3584, v11
    v_and_b32 v12, 0x70, v7
    v_add_u32 v11, v12, v11
    s_lshl_b32 s65, s66, 7
    s_add_u32 s65, s65, {WS_Y}
    """)
    for n in range(14):
        out += L(f"buffer_load_dwordx4 a[{132+4*n}:{135+4*n}], v11, {WS}, s65 offen sc1\ns_add_u32 s65, s65, {8 * 3584}")
    out += L(f"s_branch {ret}\ns_waitcnt vmcnt(0)\nL_y4:")
    acc = [12 + e for e in range(4)]
    out += [I(f"v_accvgpr_read_b32 v{a}, a{132 + e}") for e, a in enumerate(acc)]
    for n in range(1, 14):
        for h in range(2):
            out += [I(f"v_accvgpr_read_b32 v{16 + e}, a{132 + 4 * n + 2 * h + e}") for e in range(2)] + [I(f"v_add_f32 v{12 + 2 * h + e}, v{16 + e}, v{12 + 2 * h + e}") for e in range(2)]
    out += [I(f"v_add_f32 v{a}, v{a}, v{a} row_ror:8 row_mask:0xf bank_mask:0xf") for a in acc]
    for sw in ("v_permlane16_swap_b32", "v_permlane32_swap_b32"):
        for a in acc: out += L(f"v_mov_b32 v11, v{a}\n{sw} v11, v{a}\nv_add_f32 v{a}, v11, v{a}")
    out += L("v_accvgpr_read_b32 v16, a130")
    for rep in range(2):
        for p in (12, 14):
            out += L(f"v_cvt_pk_bf16_f32 v11, v{p}, v{p+1}\nv_lshlrev_b32 v{p}, 16, v11\nv_and_b32 v{p+1}, 0xffff0000, v11")
        if rep == 0: out += [I(f"v_mul_f32 v{a}, v16, v{a}") for a in acc]
    out += L(f"""
    {un}
    s_lshl_b32 s65, s66, 7
    s_add_u32 s65, s65, {WS_YF}
    s_mov_b64 exec, 0xff
    buffer_store_dwordx4 v[12:15], v7, {WS}, s65 offen sc1
    s_mov_b64 exec, -1
    s_nop 1
    s_branch {ret}
    L_y5:
    {un}
    s_lshl_b32 s66, s66, 2
    s_add_u32 s66, s66, {WS_FH + 512}
    v_mov_b32 v11, 1
    s_mov_b64 exec, 1
    buffer_store_dword v11, off, {WS}, s66 sc1
    s_mov_b64 exec, -1
    s_branch {ret}
    """)
    return out
```

```python
import sys, re
from att5 import *
import warm, ldscheck, att, att5, kvq, kv5, side, side5, hw, asmlib
from kv5 import K, QR, QPhase, kacc
opt = dict(stamp="0", v="1", thr=str(2.0 ** 24), low=str(2.0 ** -24), fine="0", no="18", hpad="0", vpad="0", opad="0", kvonly="0", dbg="-", r3w="0", rfive="0", relay="0", tR="4", rq="8,0,12,12,8,8,8", rh="8,8,8,8,8", rw="0", w8="0", fl_="", hmap="0", tH="-", tHg="90", hnt="nt", ne="6", efg="52", idle="", lc="0", n4="8", share="0", pv2="6", nrm="0", pv1="4", tidy="1", pk="12", olo="2", d3w="4", five="1", tlb="-", kvd="6", warm="a", na="8", te1="6:5:13", ip="", ipd="2048", dr="3,44,51,108,0", twg="80", us="", wi="", rt="1", ht="0", xr="100", nost="0",
           tg="113", tcq="99", tc="6,13", tQ="6", lag="2", lag2="11", lagv="8", ke="27", q0="3333334444444555@99:55556666666777@211:7777", qsep="5", tX="", tW="1,2,3,4", kw="3,3,2", sw="34,60", dh="30,30,30", l2="4", qf="176", qd="0,0,0,0,14", qk="4444", qv="4400", qp="36,140,240,380", ssep="6", n15="8,8",
           fl="215", fc="260", fv="395", s15="12,90", sq="2,400", sqv="200", vq="0,0", vp="3,3,3,4,3", l1="20", pfg="30", wq="8,0,12,16,8,8", wh="8,4,16,16,12", tw="9", odh="45", fpl="20", fpc="0", pl="56")
for a in sys.argv[1:]:
    k, v = a.split("="); assert k in opt, k; opt[k] = v
STAMP = opt["stamp"] in "12"; LIGHT = opt["stamp"] == "2"
ints = lambda k: [int(x) for x in opt[k].split(",")]
kv5.DR[:] = ints("dr")
asmlib.TIDY = opt["tidy"] == "1"
pairs = lambda k: [tuple(int(y) for y in x.split(':')) for x in opt[k].split(',') if x]
asmlib.SHARE = {"0": (), "1": ("dma", "vld"), "2": ("dma", "vld", "vst")}[opt["share"]]
side5.NE = int(opt["ne"])
side5.FINE = "9" in opt["fine"]
side5.PK = int(opt["pk"])
hw.HNT = opt["hnt"]
RELAY = att5.RELAY = opt["relay"] == "1"; side5.NAT = not RELAY
if RELAY: opt["tW"] = ""
side.NTT = ""; side.RNT = ""
X.update(wide=1, ls=1, r3=0, r3x='-')
sMODE, sH, sJ, sVD, sSTK, sFL = 40, 41, 42, 43, 44, 45
sKV, sMLD, sNC = 45, 39, 35
NO = int(opt['no']); assert NO % 2 == 0
JH = NO // 2
aST = 250
RW = opt['rw'] == '1'
JY = 7 if NO == 16 else 6; TY = JY - 5
WARM = opt['warm'] != '0'
def wev(key, names):
    return warm.event(A.sWAVE, warm.spread(names)) if WARM and key in opt['warm'] else []
wsite = lambda n: warm.site(n) if WARM else []
OOB = side.OOB
def stamp(t=16, force=False):
    if not STAMP or (LIGHT and not force): return []
    return L(f"""s_memrealtime s[36:37]
    s_memtime s[98:99]
    v_accvgpr_read_b32 v{t}, a{aST}
    v_accvgpr_read_b32 v{t+1}, a{aST+1}
    s_mov_b32 s100, m0
    s_mov_b32 m0, s{sSTK}
    s_waitcnt lgkmcnt(0)
    v_writelane_b32 v{t}, s98, m0
    v_writelane_b32 v{t+1}, s36, m0
    s_add_u32 s{sSTK}, s{sSTK}, 1
    s_mov_b32 m0, s100
    v_accvgpr_write_b32 a{aST}, v{t}
    v_accvgpr_write_b32 a{aST+1}, v{t+1}""")
def stampa():
    if not STAMP or LIGHT: return []
    o = L("s_cselect_b32 s101, 1, 0\nv_accvgpr_write_b32 a252, v10\nv_accvgpr_write_b32 a253, v11") + stamp(10) + L("v_accvgpr_read_b32 v10, a252\nv_accvgpr_read_b32 v11, a253\ns_cmp_lg_u32 s101, 0")
    for i in o: i.extra["ghost"] = True
    return o
fs = lambda c: stampa() if c in opt['fine'] else []
def stamp0(t=26):
    if not STAMP: return []
    return L(f"""s_waitcnt lgkmcnt(0)
    v_mov_b32 v{t}, 0
    v_mov_b32 v{t+1}, 0
    v_writelane_b32 v{t}, s38, 0
    v_writelane_b32 v{t+1}, s46, 0
    s_mov_b32 s{sSTK}, 1
    v_accvgpr_write_b32 a254, v{t}
    v_accvgpr_write_b32 a{aST}, v{t}
    v_accvgpr_write_b32 a{aST+1}, v{t+1}""")
def fin():
    if not STAMP: return []
    return L("s_mov_b64 exec, -1\ns_waitcnt vmcnt(0) lgkmcnt(0)") + stamp(30, True) + L(f"""
        s_lshl_b32 s29, s2, 2
        s_add_u32 s29, s29, s{A.sWAVE}
        s_lshl_b32 s29, s29, 9
        s_add_u32 s29, s29, {WS_STAMP}
        v_lshrrev_b32 v10, 1, v{A.vL16}
        buffer_store_dwordx2 a[{aST}:{aST+1}], v10, {WSR}, s29 offen
        s_add_u32 s29, s29, {1 << 20}
        buffer_store_dword a254, v10, {WSR}, s29 offen
        """)
def dbg_out():
    if opt['dbg'] == '-': return []
    return L(f"""
    s_load_dwordx2 s[4:5], s[0:1], {A_DBG}
    v_accvgpr_read_b32 v11, a{aST+1}
    v_lshrrev_b32 v12, 4, v{A.vL16}
    v_not_b32 v13, v11
    v_cmp_eq_u32 vcc, 0, v12
    v_mov_b32 v14, s36
    s_nop 0
    v_cndmask_b32 v11, v11, v13, vcc
    v_cmp_eq_u32 vcc, 15, v12
    s_nop 1
    v_cndmask_b32 v11, v11, v14, vcc
    v_lshlrev_b32 v12, 2, v12
    s_waitcnt lgkmcnt(0)
    {srd(12, 4, 64)}
    s_cmp_eq_u32 s{sJ}, {opt['dbg']}
    s_cselect_b32 exec_lo, 0xffff, 0
    s_or_b32 exec_lo, exec_lo, 0x8001
    s_mov_b32 exec_hi, 0
    buffer_atomic_umax v11, v12, s[12:15], 0 offen
    """)
EXIT = lambda: fin() + dbg_out() + L("s_endpgm")

def entry(c):
    c.block("entry", f"""
    s_cmp_lt_u32 s2, 256
    s_cbranch_scc1 L_go
    s_endpgm
    L_go:
    {"s_memrealtime s[46:47]" + chr(10) + "s_memtime s[38:39]" if STAMP else ""}
    s_load_dwordx8 s[80:87], s[0:1], {A_X}
    s_load_dwordx4 s[88:91], s[0:1], {A_WUV}
    s_getpc_b64 s[76:77]
    L_pc0:
    s_lshr_b32 s{sJ}, s2, 3
    s_mov_b32 s79, 0x20000
    s_lshl_b32 s67, s{sJ}, 13
    s_mov_b32 s78, L_code_end-L_pc0
    s_and_b32 s77, s77, 0xffff
    v_lshl_add_u32 v31, v0, 5, s67
    """, side.touch(31, 76, 0, nt=False), f"""
    v_lshrrev_b32 v24, 6, v0
    v_and_b32 v0, 63, v0
    s_and_b32 s{sH}, s2, 7
    v_readfirstlane_b32 s{K.sWAVE}, v24
    s_lshr_b32 s64, s2, 7
    v_and_b32 v24, 15, v0
    v_lshrrev_b32 v25, 4, v0
    s_lshl_b32 s64, s64, 3
    s_add_u32 s{sH}, s{sH}, s64
    s_and_b32 s{sJ}, s{sJ}, 15
    s_lshr_b32 s{sKV}, s{sJ}, 3
    v_lshlrev_b32 v28, 1, v25
    v_xor_b32 v28, v28, v24
    v_and_b32 v29, 8, v28
    v_and_b32 v28, 7, v28
    v_lshlrev_b32 v28, 4, v28
    v_lshl_add_u32 v28, v29, 5, v28
    v_lshl_add_u32 v28, v25, 13, v28
    s_lshl_b32 s64, s{K.sWAVE}, 17
    v_add_u32 v{K.vWD}, s64, v28
    v_xor_b32 v28, 0x100, v{K.vWD}
    v_add_u32 v{K.vWD+1}, {4*8192 - 1024}, v{K.vWD}
    v_add_u32 v{K.vWD+2}, {8*8192 - 2048}, v28
    v_add_u32 v{K.vWD+3}, {12*8192 - 3072}, v28
    s_and_b32 s65, s{K.sWAVE}, 1
    s_lshr_b32 s66, s{K.sWAVE}, 1
    v_and_b32 v29, 7, v0
    v_xor_b32 v28, v25, v29
    v_lshlrev_b32 v28, 4, v28
    v_lshrrev_b32 v29, 3, v0
    v_lshl_add_u32 v30, v29, 11, v28
    s_lshl_b32 s64, s66, 19
    s_lshl_b32 s67, s65, 21
    s_add_u32 s64, s64, s67
    v_add_u32 v{K.vCD}, s64, v30
    v_xor_b32 v30, 64, v{K.vCD}
    v_add_u32 v{K.vCD+2}, {16*2048 - 2048}, v{K.vCD}
    v_add_u32 v{K.vCD+1}, {8*2048 - 1024}, v30
    v_add_u32 v{K.vCD+3}, {24*2048 - 3072}, v30
    s_mov_b32 s{K.sWOFF}, 0
    s_mov_b32 s{K.sCOFF}, 0
    s_lshl_b32 s{K.sM0W}, s{K.sWAVE}, 12
    s_add_u32 s{K.sM0C}, s{K.sM0W}, 65536
    s_lshl_b32 s74, s{sH}, 9
    s_sub_u32 s{K.S_W+2}, {1024*8192}, s74
    s_mov_b32 s{K.S_W+3}, 0x20000
    s_and_b32 s64, s{sJ}, 7
    s_lshl_b32 s64, s64, 16
    s_sub_u32 s{K.S_C+2}, {2048*2048}, s64
    s_mov_b32 s{K.S_C+3}, 0x20000
    s_cmp_eq_u32 s{sKV}, 0
    s_cselect_b32 s72, s86, s88
    s_cselect_b32 s73, s87, s89
    s_add_u32 s{K.S_W}, s72, s74
    s_addc_u32 s73, s73, 0
    s_and_b32 s{K.S_W+1}, s73, 0xffff
    s_add_u32 s{K.S_C}, s82, s64
    s_addc_u32 s73, s83, 0
    s_and_b32 s{K.S_C+1}, s73, 0xffff
    """, kv5.unit_w(0), kv5.unit_c(0), kv5.unit_w(1), f"""
    s_load_dwordx2 s[92:93], s[0:1], {A_WR}
    s_load_dwordx2 s[94:95], s[0:1], {A_GW}
    s_load_dwordx4 s[4:7], s[0:1], {A_DBG}
    """, stamp0(28), stamp(28), f"v_lshlrev_b32 v{K.vST}, 4, v0", kvq.addr_rd(), f"""
    {srd(K.S_X, 80, 2048*896)}
    {srd(60, 92, 896)}
    {srd(68, 94, 896)}
    s_lshl_b32 s95, s{K.sWAVE}, 11
    s_lshr_b32 s64, s2, 3
    s_lshl_b32 s64, s64, 13
    s_add_u32 s95, s95, s64
    {srd(K.S_WS, 6, 1 << 28)}
    {srd(K.S_DBG, 4, 256)}
    s_add_u32 s72, s84, s74
    s_addc_u32 s73, s85, 0
    s_sub_u32 s75, {448*8192}, s74
    {srd(K.S_WQ, 72, "s75")}
    s_mul_i32 s{K.sXOFF}, s{sJ}, {128*896}
    s_mov_b32 s{K.sSC}, {hex(f2u(LOG2E_16))}
    s_mul_i32 s72, s{sKV}, {WS_V}
    s_mul_i32 s73, s{sH}, {HS}
    s_add_u32 s72, s72, s73
    s_bfe_u32 s64, s{sJ}, 0x20001
    s_lshl_b32 s64, s64, 15
    s_add_u32 s72, s72, s64
    s_lshl_b32 s64, s66, 17
    s_add_u32 s72, s72, s64
    s_and_b32 s67, s{sJ}, 1
    s_cmp_eq_u32 s{sKV}, 0
    s_cselect_b32 s64, 12, 14
    s_cselect_b32 s75, 14, 10
    s_lshl_b32 s67, s67, s75
    s_add_u32 s72, s72, s67
    s_lshl_b32 s64, s65, s64
    s_add_u32 s{K.sOOFF}, s72, s64
    """, side.h_touch_srd(), f"s_load_dwordx2 s[96:97], s[0:1], {A_OUT}", f"s_cmp_eq_u32 s{sKV}, 0\ns_cbranch_scc0 L_kv1" + ("\ns_branch L_kv0" if WARM else ""))

FL_LOAD = lambda: I(f"buffer_load_dword v{A.vRL}, v9, {WSR}, s46 offen sc1")
FP_LOAD = lambda: I(f"buffer_load_dword v{A.vRL + 1}, off, {WSR}, s47 sc1")
def level(val, t): return L(f"v_mov_b32 v{t}, {val}") + [side.flag_store(sFL, A.vF0, t)]
def lcheck(val, n): return L(f"v_cmp_gt_u32 vcc, {val}, v{A.vRL}\ns_cbranch_vccnz L_ls{n}\nL_lr{n}:")
LSPIN = {}; WSPIN = {}
PBASE = lambda: L(f"""
    s_lshl_b32 s86, s{A.sWAVE}, 14
    s_add_u32 s86, s86, s{A.sPO}
    s_add_u32 s87, s86, 4096
    s_add_u32 s88, s86, 8192
    s_add_u32 s89, s86, 12288
    s_lshl_b32 s90, s{A.sWAVE}, 10
    s_add_u32 s90, s90, s{A.sPO}
    s_add_u32 s90, s90, 65536
    """)

class KVStore:
    def __init__(self, vt):
        self.prs = kv5.kv_pairs(vt); self.reg = {}; self.src = {}
    def st(self, n, tag, reg=None, newpage=True):
        off = self.prs[n][2]
        s = I(f"buffer_store_dwordx4 {reg or self.reg[n]}, v{K.vST}, {WSR}, s3 offen offset:{off & 0xfff} sc1", tag=tag)
        if not reg: dep(s, *self.src[n])
        if opt['nost'] == '1': return []
        if opt['nost'] == '2': s.text = s.text.replace(" sc1", "")
        return ([I(f"s_add_u32 s3, s{K.sOOFF}, {off & ~0xfff}")] if newpage else []) + [s]
    def many(self, ns, tag, regf=None):
        out = []; cur = None
        for n in ns:
            pg = self.prs[n][2] >> 12
            out += self.st(n, tag(n) if callable(tag) else tag, regf(n) if regf else None, pg != cur); cur = pg
        return out

def win_qk1(vslot, v4, stub, extra=lambda s: None, tags=(), post=()):
    g = Gaps(qk_mfmas(1, C0))
    tile_reads(g, lambda b: rd_batch(KSLOT[1], b), rd_batch(vslot, 0, v4), [("T", vslot)] + list(tags))
    s = Sched(g).add(dma_flat(KSLOT[0], A.sK) + adv_k(), 1, ints('dh')[1])
    if post: s.add(post, 48, 52, asap=True)
    s.add([I(f"v_mov_b32 v{r}, 0") for r in [A.vLS, A.vLS + 1] + list(range(A.vNM, A.vNM + 8))] + [By(56)], 4, 50)
    extra(s); s.run()
    put_tail(g, sched_sm(g, softmax_groups(0, 1), 0, 54), check_first(f"L_st{stub}"))
    return g.flat() + L(f"L_rt{stub}:"), None
def win_pv0(vslot, v4, extra=lambda s: None, tags=(), post=()):
    g = Gaps(pv_mfmas(0, zero=True))
    tile_reads(g, lambda b: rd_batch(vslot, b, v4), rd_batch(KSLOT[0], 0), [("T", KSLOT[0])] + list(tags))
    s = Sched(g).add(dma_flat(KSLOT[1], A.sK) + adv_k(), 1, ints('dh')[2])
    if post: s.add(post, 48, 52, asap=True)
    extra(s); s.run()
    sched_sm(g, softmax_groups(1, 0), 0, 60, add_l(0))
    return g.flat()
def win_qk(b, stub, extra=lambda s: None, tags=(), post=()):
    g = Gaps(qk_mfmas(1 - b, lambda kb, qb: NMq(qb)))
    tile_reads(g, lambda n: rd_batch(KSLOT[1 - b], n), rd_batch(VSLOT[b], 0), [("T", VSLOT[b])] + list(tags))
    s = Sched(g).add(dma_flat(VSLOT[1 - b], A.sV) + adv_v(), 1, ints('dh')[2])
    if post: s.add(post, 48, 52, asap=True)
    extra(s); s.run()
    put_tail(g, sched_sm(g, softmax_groups(b, 1), 0, 56), check(b, f"L_st{stub}"))
    return g.flat() + L(f"L_rt{stub}:")
def win_pv(b, extra=lambda s: None, tags=(), post=()):
    g = Gaps(pv_mfmas(b))
    tile_reads(g, lambda n: rd_batch(VSLOT[b], n), rd_batch(KSLOT[b], 0), [("T", KSLOT[b])] + list(tags))
    s = Sched(g).add(dma_flat(KSLOT[1 - b], A.sK) + adv_k(), 1, ints('dh')[2])
    if post: s.add(post, 48, 52, asap=True)
    extra(s); s.run()
    sched_sm(g, softmax_groups(1 - b, 0), 0, 60, add_l(b))
    return g.flat()
HELPER_K = lambda: L(f"""
    s_mul_i32 s{A.sK}, s{sH}, {HS}
    s_add_u32 s{A.sK}, s{A.sK}, {NO * 32768}
    s_lshl_b32 s84, s{sJ}, 1
    s_sub_u32 s{A.sKcnt}, {30 - NO - 1}, s84
    {f's_lshl_b32 s{A.sKn1}, s{sH}, 18' + chr(10) + f's_add_u32 s{A.sKn1}, s{A.sKn1}, {WS_WO}' if RELAY else f's_mov_b32 s{A.sKn1}, {OOB}'}
    """)

def r5_loads():
    o = side.r4_loads()
    for i in o:
        m = re.match(r"buffer_load_dwordx4 v\[(\d+):", i.text)
        if m: i.text = i.text.replace(f"v[{m.group(1)}:{int(m.group(1)) + 3}]", f"a[{int(m.group(1)) + 136}:{int(m.group(1)) + 139}]"); i.parse()
    return o
def r5_compute():
    out = [I(f"v_mov_b32 v{16+r}, 0") for r in range(8)]
    for w in range(4):
        out += L(f"v_accvgpr_read_b32 v28, a{192+w}\nv_accvgpr_read_b32 v29, a{196+w}")
        for r in (0, 2):
            out += L(f"""v_accvgpr_read_b32 v30, a{176+4*r+w}
            v_accvgpr_read_b32 v31, a{180+4*r+w}
            v_dot2c_f32_bf16 v{16+r}, v30, v28
            v_dot2c_f32_bf16 v{20+r}, v30, v29
            v_dot2c_f32_bf16 v{17+r}, v31, v28
            v_dot2c_f32_bf16 v{21+r}, v31, v29""")
    tail = side.r4_compute()[40:]
    for i in tail:
        i.text = re.sub(r"v(\d+)", lambda m: "v%d" % ({80: 28, 81: 29, 82: 30}.get(int(m.group(1)), int(m.group(1)) - 56) if int(m.group(1)) >= 72 else int(m.group(1))), i.text); i.parse()
    return out + [2] + tail
def act5():
    o = hw.s7_act()
    k = [n for n, i in enumerate(o) if not isinstance(i, int) and i.text.startswith("s_or_b32 s64, s86")][0]
    o[k] = I(f"s_or_b32 s64, s31, s{K.sWAVE}")
    k = [n for n, i in enumerate(o) if not isinstance(i, int) and i.text.startswith("s_mov_b32 s64, %d" % WS_SEL)][0]
    o[k:k + 1] = L(f"s_lshl_b32 s64, s{sH}, 7\ns_add_u32 s64, s64, {WS_SEL}")
    return o
def down5():
    pre = hw.s8_down()[0]
    ms = []
    for m in range(7):
        b = 16 + 2 * (m & 1); nb = 16 + 2 * (1 - (m & 1))
        ms.append([I(f"v_mfma_f32_16x16x16_bf16 a[192:195], a[{176+2*m}:{177+2*m}], v[{b}:{b+1}], {'a[192:195]' if m else '0'}")] +
                  ([I(f"v_mov_b32 v{nb + e}, v{b + e} row_shr:2 row_mask:0xf bank_mask:0xf bound_ctrl:0") for e in range(2)] if m < 6 else []))
    adr = L(f"""
    v_and_b32 v29, 1, v0
    v_mul_u32_u24 v30, 1792, v29
    v_lshrrev_b32 v31, 4, v0
    v_lshl_add_u32 v30, v31, 4, v30
    v_bfe_u32 v29, v0, 1, 3
    v_lshl_add_u32 v30, v29, 6, v30
    v_add_u32 v29, 1, v29
    v_lshrrev_b32 v29, 3, v29
    v_lshl_or_b32 v30, v29, 29, v30
    v_or_b32 v30, s{hw.sMK}, v30
    s_mul_i32 s89, s{hw.sFS}, 3584
    s_mul_i32 s64, s{K.sWAVE}, 448
    s_add_u32 s89, s89, s64
    s_add_u32 s89, s89, {WS_Y}
    buffer_store_dwordx4 a[192:195], v30, {WSR}, s89 offen sc1
    """)
    return pre, ms, adr
def front(c, vt):
    frags = [kvq.rd_c(0, 0, 0, 0), kvq.rd_c(0, 0, 0, 1)] + kv5.rd_w_unit(0, 0, 0) + kv5.rd_w_unit(0, 1, 1)
    rt, ht = int(opt['rt']) == vt, int(opt['ht']) == vt
    side.sJ = hw.sJ = 31; rl = (r5_loads() if RW else side.r4_loads()) if rt else []; side.sJ = sJ
    out = L(f"s_and_b32 s31, s{sJ}, 7") + (side.z_store()[:-3] + rl + side.z_store()[-3:] if vt == 0 else rl) + kv5.unit_w(2) + kv5.unit_c(1)
    out += wev('a', [f"kv{vt}{p}" for p in range(1, min(1 + int(opt["na"]), 12 + vt))])
    out += [WAITV([("W", 1), ("C", 0), ("W", 0)], lgkm0=True), I("s_barrier")] + stamp(26) + frags
    if rt and not RW: out += side.r4_compute()
    out += [NEED(R("a", kv5.wfrag(0, 0, 0), 8), R("a", 160, 8))]
    tQ = int(opt["tQ"])
    xl = {}; uq = {u: 0 for u in range(8)}
    def items(spec, sep=0):
        o = []
        for n, seg in enumerate(spec.split("@")):
            if n:
                k, seg = seg.split(":"); o.append(At(int(k)))
            for ch in seg:
                if ch in 'abcdefg': o += kv5.x_dma(ord(ch) - 97)
                elif ch in 'ABCDEFG': o += kv5.x_read(ord(ch) - 65, xl)
                else:
                    u = int(ch); d = kv5.wq_dma(u, uq[u]); uq[u] += 1
                    o += [Sep(max(sep - 2, 0))] + d
        return o
    for t in range(15):
        dma = kv5.kv_dma(t)
        if ht and t == 2:
            hpre, uns = hw.s1_weights()
            if opt['hmap'] == '1':
                k = [n for n, i in enumerate(hpre) if i.text.startswith(f"s_mul_i32 s{hw.sLD},")][0]
                hpre = L(f"""s_and_b32 s64, s{sH}, 7
                s_min_u32 s65, s64, 4
                s_mul_i32 s{hw.sFS}, s64, 12
                s_lshl_b32 s65, s65, 2
                s_add_u32 s{hw.sFS}, s{hw.sFS}, s65
                s_and_b32 s65, s{sH}, 8
                s_add_u32 s65, s65, s31
                s_add_u32 s{hw.sFS}, s{hw.sFS}, s65
                s_and_b32 s64, s64, 4
                s_sub_u32 s64, 15, s64
                s_sub_u32 s64, s64, s65
                s_and_b32 s{hw.sMK}, s64, {OOB}
                s_min_u32 s{hw.sFS}, s{hw.sFS}, 111""") + hpre[k:]
        if ht and 3 <= t <= 6: dma[1] = dma[1] + uns[2 * (t - 3):2 * (t - 2)]
        if ht and t == 10:
            dpre, un = hw.s6_down_dma(); dma[1] = dma[1] + [un]
        tR = int(opt['tR'])
        if RELAY and not ht:
            if t == tR:
                side.sJ = 31; wpre, wun = side.wo2_dma(); wrd = side.wo2_reads(); side.sJ = sJ
            if t in (tR, tR + 1): dma[1] = dma[1] + [wun[t - tR]]
        late = t >= 12
        g = kv5.kv_tile(t, vt, [dma[0] if t == 12 else [], []] if late else dma)
        def fit(ins, k, pace=0):
            k, left = kvq.seq_fit(g, ins, k, pace); assert not left, (t, len(left)); return k
        def mm(ms, k):
            k |= 1
            for m in ms: g.put(k, m)
            return k
        tch = []
        if t == 12: xs_at = fit(kv5.x_setup(), 1) + 1; assert xs_at < 40
        if t in ints('tcq'): tch += side.c_touch(32, ints('tcq').index(t) + 1)
        if t == 0: fit(L("v_lshlrev_b32 v26, 7, v0\nv_and_b32 v27, 48, v0\nv_lshl_add_u32 v26, v27, 24, v26"), 100)
        if t == 1 and rt and RW: assert fit(r5_compute(), 2) < 108
        if t == 1 and vt == 0: fit(side.z_signal(), 112)
        if t == 2 and rt: assert fit(side.rg4_store(), 4, 1) < 42
        if t == 8 and "ab"[vt] in opt['idle']: out += L("s_sleep 32")
        if t == 3: fit(side.z_load(), 50)
        if t == 4:
            k = fit(side.z_check(vt), 112)
            if rt: fit(side.key4_store(), k + 1)
        if t == 5 and not RELAY: fit(L(f"""s_mul_i32 s64, s{sH}, {256 * 896}
            s_add_u32 s72, s90, s64
            s_addc_u32 s73, s91, 0
            s_sub_u32 s75, {4096 * 896}, s64
            {srd(S_WO, 72, "s75")}"""), 4)
        if RELAY and not ht:
            if t == tR: assert fit(L(srd(60, 90, 4096 * 896)) + wpre, 30) < 80
            if t == tR + 2: g.sc[110][0].tag = g.sc[110][0].tag + ["WO"]
            if t == tR + 3: assert fit(wrd, 2, 2) < 108
            if t in (tR + 4, tR + 5, tR + 6): fit([x for s_ in side.wo2_stores()[{0: 0, 1: 3, 2: 5}[t - tR - 4]:{0: 3, 1: 5, 2: 7}[t - tR - 4]] for x in s_ + [24]], 20)
        if not ht:
            pre_, tl = side.q_touch3(K.S_WQ)
            if t == tQ: fit(pre_, 60)
            if 0 <= t - tQ < len(tl): tch += tl[t - tQ]
        else:
            if t == 2: fit(hpre, 42)
            if t == 6: fit(hw.s2_keys(), 64)
            if t == 7: assert fit(hw.s3_top2(), 10, 1) < 108
            if t == 8: fit(hw.s4_sel(), 4, 1)
            if t == 9:
                (r0, m0), (r1, m1) = hw.s5_gemm()
                k = fit([WAITV("HW")] + r0, 50); k = mm(m0, max(k + 6, 78)); k = fit(r1, k + 1); mm(m1, max(k + 6, 110))
            if t == 10: assert fit(dpre, 4) < 44
            if t == 11: fit(act5(), 2, 1)
            if t == 12:
                pre, ms, yadr = down5()
                k = fit(pre, xs_at)
                for m in ms: k = mm([m[0]], k + 2); k = fit(m[1:], k + 1)
                fit(yadr, k + 1)
        thin = lambda srd_, so: [side.touch(26, srd_, f"s{so}", nt=False)] + L(f"s_add_u32 s{so}, s{so}, 2048")
        if str(t) == opt['tH']:
            fit(L(f"""s_lshl_b32 s26, s2, 2
            s_add_u32 s26, s26, s{K.sWAVE}
            s_sub_u32 s25, s26, 448
            s_cselect_b32 s25, s26, s25
            s_cselect_b64 s[72:73], s[80:81], s[82:83]
            s_mul_i32 s25, s25, 3584
            {srd(32, 72, 448 * 3584)}
            v_lshlrev_b32 v27, 7, v0
            v_add_u32 v28, 4, v0
            v_lshrrev_b32 v28, 5, v28
            v_lshl_or_b32 v27, v28, 29, v27""") + [side.touch(27, 32, "s25", nt=False)], int(opt['tHg']))
        if str(t) == opt['tlb'][0]:
            tl_ = L(f"v_lshlrev_b32 v27, 21, v0\nv_min_u32 v28, 2, v0\nv_lshrrev_b32 v28, 1, v28\nv_lshl_or_b32 v27, v28, 29, v27")
            if 'x' in opt['tlb']: tl_ += [side.touch(27, K.S_X, f"s{K.sXOFF}", nt=False)]
            if 'q' in opt['tlb']: tl_ += [side.touch(27, K.S_WQ, 0, nt=False)]
            if 'k' in opt['tlb']: tl_ += L(f"s_mul_i32 s26, s{sH}, {HS}\nv_lshlrev_b32 v27, 24, v0\nv_min_u32 v28, 3, v0\nv_add_u32 v28, 1, v28\nv_lshrrev_b32 v28, 2, v28\nv_lshl_or_b32 v27, v28, 29, v27") + [side.touch(27, K.S_WS, "s26", nt=False)]
            fit(tl_, 60)
        xt = [int(x) for x in opt['tX'].split(",") if x]
        if xt and t == xt[0] // 2:
            assert fit(L(f"""s_lshl_b32 s26, s{sJ}, 1
            s_lshr_b32 s27, s{sH}, 3
            s_add_u32 s26, s26, s27
            s_lshl_b32 s26, s26, 2
            s_add_u32 s26, s26, s{K.sWAVE}
            s_mul_i32 s26, s26, 14336"""), 20) < 46
        if 2 * t in xt: fit(thin(K.S_X, 26), 48)
        if 2 * t + 1 in xt: tch += thin(K.S_X, 26)
        wt = [int(x) for x in opt['tW'].split(",") if x]
        if wt and not ht:
            if t == wt[0]: fit(L(f"""s_and_b32 s27, s{sJ}, 7
                s_lshl_b32 s64, s{sH}, 3
                s_add_u32 s27, s27, s64
                s_lshl_b32 s27, s27, 2
                s_add_u32 s27, s27, s{K.sWAVE}
                s_mul_i32 s27, s27, 7168
                {srd(60, 90, 4096 * 896)}"""), 20)
            if t in wt: fit(thin(60, 27), int(opt['twg']))
        if str(t) in opt['tc'].split(','): tch += [side.touch(26, 76, 's95', nt=False)]
        if late:
            s = Sched(g); xr = int(opt['xr'])
            fl = lambda us: [i for u in us for i in u]
            if t == 12: s.add(items("a") + fl(dma[1]) + [By(110)], 49, 106, vmd=2)
            if t == 13:
                s.add(items("b") + fl(dma[0]) + [By(46)], 1, 42, vmd=2).add(items("c") + fl(dma[1]) + [At(72)] + items("0000") + [By(110)], 49, 106, vmd=2)
                s.add(kv5.q_setup() + [By(70)], 48, 68)
                s.add(items("A") + [By(44), At(xr)] + items("B") + [By(108)], xr - 64, 100, asap=True)
            if t == 14:
                s.add(items("d") + fl(dma[0]) + items("0001") + [By(46)], 1, 42, vmd=2).add(items("ef1111") + [By(110)], 49, 106, vmd=2)
                s.add(items("C") + [By(44), At(xr)] + items("D") + [By(108)], xr - 64, 100, asap=True)
                s.add(kv5.q_setup2(), 50, 80)
            s.run()
        fit(tch, int(opt['tg']) - (10 if len(tch) > 8 else 0))
        out += g.flat()
        for ev in opt['te1'].split(","):
            te, p0, p1 = [int(x) for x in ev.split(":")]
            if t == te: out += wev('b', [f"kv{vt}{p}" for p in range(p0, min(p1, 12 + vt))])
        if t in (0, 1, 11, 14) or '1' in opt['fine']: out += stampa()
    g = kv5.kv_tile(15, vt, [[], []], endtags=[("U", 0), ("U", 1)])
    ks = KVStore(vt)
    lastw = {}
    for m in g.m:
        for r in m.writes: lastw[r] = m
    done_at = lambda n: max(p[0] * 16 + p[1] * 2 + 1 for p in ks.prs[n][:2]) + 4
    packs = {}
    for n, (ta, tb, off) in enumerate(ks.prs):
        ins, reg = kvq.pack(kacc(*ta), kacc(*tb), K.vT + (4 * (n & 1) if vt else 0))
        seen = set()
        for i in ins:
            for r in i.reads:
                if r in lastw and r not in seen: i.extra.setdefault("raw", {})[r] = lastw[r]
            seen |= set(i.writes)
        packs[n] = ins; ks.reg[n] = R("v", reg, 4); ks.src[n] = ins[-4:]
    qp = QPhase([32 + 4 * f for f in range(7)], [kacc(y, x)[1] for y in (3, 5) for x in range(8)] if vt else [kacc(y, x)[1] for y in (2, 3, 4, 5) for x in (1, 3, 5, 7)])
    qp.place_reads(g, 0, 112)
    g.put_s(127, qp.need(0, 0, 4))
    s = Sched(g)
    lo, hi = ints('s15'); st1 = []; cur = None
    for n in range(8):
        pg = ks.prs[n][2] >> 12
        st1 += [At(max(done_at(n), lo + n * (hi - lo) // 8 - 6))] + packs[n] + ks.st(n, "KV1", newpage=pg != cur); cur = pg
    s.add(st1 + [By(110)], 0, hi, asap=True)
    s.add(items("g112222") + [By(46)], 1, 42, vmd=2).add(items("2223"), 49, 90)
    s.add(items("E") + [At(50)] + items("F") + [At(96)] + items("G") + [By(106)], 30, 100, asap=True)
    s.add([x for n in range(8, 32) for x in [At(done_at(n))] + packs[n]], 0, 127, asap=True)
    left = s.run(spill=True); assert not any(left[:4]), left
    carry = left[4]
    if '6' in opt['fine']:
        for k in range(31, 127, 32): g.ve[k] += stampa()
    out += g.flat() + fs('2')
    g = Gaps(qp.mfmas(xl))
    LV = {1: [("U", 2), ("U", 3)], 2: [("U", 4), ("U", 5)], 3: [("U", 6), ("U", 7)], 4: [("T", KSLOT[0])]}
    l2 = int(opt['l2']) if vt else 3
    LV[l2] = LV[l2] + ["KV2"]
    g.put_s(2, qp.need(0, 4, 7))
    for n in range(32):
        if n < 31: qp.place_reads(g, n + 1, 14 * n)
        else: put_batch(g, rd_batch(KSLOT[0], 0), 14 * n); g.put_s(14 * n + 13, need_batch(0))
        if n % 8 == 6:
            g.put_s(14 * n + 12, WAITV(LV[n // 8 + 1], lgkm0=True)); g.put_s(14 * n + 13, I("s_barrier"))
        elif n < 31:
            g.put_s(14 * n + 13, qp.need(n + 1, 0, 4)); g.put_s(14 * n + 16, qp.need(n + 1, 4, 7))
    QB = lambda x: 112 * x - 14
    setup = kv5.q_bank(1) + side.lane0_wave0(A.vF0) + L(f"""
    v_min_u32 v9, 15, v0
    v_lshlrev_b32 v9, 7, v9
    s_sub_u32 s66, 15, s{sJ}
    s_max_u32 s67, s66, s{sJ}
    s_min_u32 s66, s66, s{sJ}
    s_mul_i32 s{A.sK}, s{sH}, {HS}
    s_lshl_b32 s64, s67, 16
    s_add_u32 s{A.sQ}, s{A.sK}, s64
    s_lshl_b32 s64, s{A.sWAVE}, 14
    s_add_u32 s{A.sQ}, s{A.sQ}, s64
    s_add_u32 s{A.sQ}, s{A.sQ}, {WS_Q}
    s_sub_u32 s64, s{sJ}, {JH + 1}
    s_and_b32 s{sNC}, s64, {OOB}
    v_or_b32 v6, s{sNC}, v{A.vL16}
    """) + [By(80)] + L(f"""
    s_lshl_b32 s{A.sM0}, s{A.sWAVE}, 13
    v_add_u32 v{A.vRD1}, 0x10000, v{A.vL16}
    v_add_u32 v{A.vDM0}, s{A.sM0}, v{A.vL16}
    v_add_u32 v{A.vDM1}, 0x1000, v{A.vDM0}
    s_lshl_b32 s64, s{sJ}, 16
    s_add_u32 s{A.sKn1}, s{A.sK}, s64
    s_add_u32 s{sVD}, s{A.sKn1}, {WS_V}
    s_add_u32 s{A.sV}, s{A.sK}, {WS_V}
    {f'''s_min_u32 s{A.sIT}, s{sJ}, {JH}
    s_lshl_b32 s{A.sKcnt}, s{A.sIT}, 1
    s_sub_u32 s{A.sKcnt}, s{A.sKcnt}, 1
    s_sub_u32 s{A.sIT}, s{A.sIT}, 2''' if vt else f'''s_mov_b32 s{A.sKcnt}, 0x7fff
    s_sub_u32 s{A.sIT}, s{sJ}, 1
    s_cmp_eq_u32 s{sJ}, 0
    s_cselect_b32 s64, 32768, 0
    s_add_u32 s{A.sV}, s{A.sV}, s64'''}
    s_mov_b32 s{A.sTHR}, {hex(f2u(float(opt['thr'])))}
    s_mov_b32 s{A.sLOW}, {hex(f2u(float(opt['low'])))}
    s_lshl_b32 s47, s66, 7
    s_add_u32 s47, s47, s46
    s_lshl_b32 s64, s{A.sWAVE}, 5
    s_add_u32 s47, s47, s64
    s_add_u32 s47, s47, 2048
    s_lshl_b32 s65, s{sH}, 3
    s_add_u32 s65, s65, s66
    s_mul_i32 s{A.sPO}, s65, {PO_STRIDE}
    s_add_u32 s{A.sPO}, s{A.sPO}, {WS_PO}
    s_lshl_b32 s65, s{sJ}, 4
    s_add_u32 s65, s65, s{sH}
    s_mul_i32 s{A.sOP}, s65, {OP_HEAD}
    s_mul_i32 s65, s{A.sWAVE}, 28672
    s_add_u32 s{A.sOP}, s{A.sOP}, s65
    s_add_u32 s{A.sOP}, s{A.sOP}, {WS_OP}
    {f's_or_b32 s{A.sOP}, s{A.sOP}, {OOB}' if ('k' in opt['wi'] and not vt) or ('v' in opt['wi'] and vt) else ''}
    s_mov_b32 s{A.sREQ}, 0
    s_mov_b32 s{A.sCHK}, {vt}
    s_mov_b32 s{sMODE}, 1
    s_cmp_eq_u32 s{A.sWAVE}, 0
    s_cselect_b32 s{sMLD}, {6 if vt else 7}, 0
    {f'''s_cmp_eq_u32 s{sJ}, 8
    s_cselect_b32 s64, {int(opt['w8'])}, 0
    s_or_b32 s{sMLD}, s{sMLD}, s64''' if vt else f'''s_lshl_b32 s64, s{sH}, 1
    s_add_u32 s64, s64, s{A.sWAVE}
    s_cmp_lt_u32 s64, 30
    s_cselect_b32 s64, {15 << TY}, 0
    s_cmp_ge_u32 s{A.sWAVE}, 2
    s_cselect_b32 s64, s64, 0
    s_cmp_eq_u32 s{sJ}, {JY}
    s_cselect_b32 s64, s64, 0
    s_or_b32 s{sMLD}, s{sMLD}, s64'''}
    s_mov_b64 s[60:61], s[76:77]
    s_mov_b32 s62, s78
    s_mov_b32 s63, 0x20000
    v_lshrrev_b32 v24, 4, v0
    v_lshlrev_b32 v24, 2, v24
    v_and_b32 v25, 15, v0
    v_sub_u32 v24, v24, v25
    """) + [I(f"v_cmp_lt_i32 s[{A.sTRI[e]}:{A.sTRI[e]+1}], {-e}, v24") for e in range(4)] + side.code_addr(0, 25) + selm(24) + [By(int(opt['fl']) - 6)]
    dq = items(opt['q0'], int(opt['qsep'])) + L(f"v_mov_b32 v{A.vNEG}, 0xff800000")
    assert all(v == 7 for v in uq.values())
    W1 = f"buffer_load_dword v{A.vRL}, v31, {WSR}, s46 offen offset:4 sc1"
    wchk = lambda n, half: L(f"v_cmp_ne_u32 vcc, 1, v{A.vRL}\ns_nop 0\ns_cmp_lg_u32 vcc_{half}, 0\ns_cbranch_scc1 L_ws{n}\nL_wr{n}:")
    WSPIN[f"q{vt}"] = (W1, "lo"); WSPIN[f"r{vt}"] = (W1, "hi")
    dq2 = [At(int(opt['fl']) - 4)] + L(f"v_lshrrev_b32 v31, 6, v{A.vL16}\nv_bfe_u32 v28, v{A.vL16}, 4, 2\nv_lshlrev_b32 v31, 5, v31\nv_add_lshl_u32 v31, v31, v28, 2\n{W1}") + [At(int(opt['fc']))] + wchk(f"q{vt}", "lo") + dma_flat(KSLOT[0], A.sK) + adv_k()
    k1 = dma_flat(KSLOT[1], A.sK)
    dq2 += [At(QB(3))] + k1[:3] + L(W1) + k1[3:] + adv_k() + [At(int(opt['fv']))] + wchk(f"r{vt}", "hi") + dma_flat(4, A.sV) + adv_v()
    qout = []; qsts = []
    def qst(qb, kq): return [I(f"s_add_u32 s30, s{A.sQ}, {(qb * 8 + kq) >> 2 << 12}"), I(f"buffer_store_dwordx4 a[{Qreg(qb, kq)}:{Qreg(qb, kq)+3}], v6, {WSR}, s30 offen offset:{(kq & 3) * 1024} sc1", tag="QST")] if vt and opt['nost'] != '1' else []
    for cg in range(4):
        for p2 in range(2):
            for qb in range(2):
                if (cg, p2) == (3, 1): continue
                ins, k = qp.out(cg, p2, qb, Qreg(qb, 2 * cg + p2))
                qout += [At(k + 4)] + ins
                qsts.append((ins[-1], qst(qb, 2 * cg + p2)))
                if qsts[-1][1]: dep(qsts[-1][1][-1], *ins[-4:])
    qlast = lambda: qp.out(3, 1, 0, Qreg(0, 7))[0] + [By(4), At(1)] + qp.out(3, 1, 1, Qreg(1, 7))[0] + [By(12)] + [x for k, i in qsts[nq:] for x in i] + qst(0, 7) + qst(1, 7)
    lo, hi = ints('sq')
    s = Sched(g)
    s.add(carry, 0, 40, asap=True)
    s.add(dq, 0, 240, asap=True, vmd=2).add(dq2, 0, 430, asap=True, vmd=int(opt['kvd']))
    kq = 8 + sum(int(x, 16) for x in opt['qk']); kw = ints('kw'); assert kq + sum(kw) == 32 and kw[2] <= 8
    plan = [int(x, 16) for x in opt['qv' if vt else 'qk']]; pos = ints('qp'); sts = []; n0 = 8
    for m, k in zip(plan, pos):
        sts += [At(k)] + [x for i in ks.many(range(n0, n0 + m), lambda n: "KV2" if n < 16 else "KV4") for x in ([Sep(int(opt['ssep'])), i] if i.kind != 'vst' else [i])]; n0 += m
    assert n0 == (16 if vt else kq)
    s.add(sts, 0, 447, asap=True)
    s.add(qout, 0, 447, asap=True)
    qd = ints('qd'); nq = qd[4]
    s.add([x for n, (k, i) in enumerate(qsts[:nq]) for x in [At(qd[n // 4]), Sep(int(opt['ssep'])), After(k)] + i], 0, 447, asap=True)
    s.add(setup, 20, int(opt['fl']) - 20)
    w1 = L(f"""s_mul_i32 s72, s{sH}, {FSTR}
    s_add_u32 s46, s72, {WS_FL}
    s_lshl_b32 s{sFL}, s{sJ}, 7
    s_add_u32 s{sFL}, s{sFL}, s46
    s_lshl_b32 s72, s{A.sWAVE}, 2
    s_add_u32 s72, s72, s{sFL}
    v_min_u32 v29, 1, v0
    v_lshlrev_b32 v29, 29, v29
    v_mov_b32 v30, 1""") + [At(int(opt['l1'])), WAITV("KV1"), I(f"buffer_store_dword v30, v29, {WSR}, s72 offen offset:4 sc1")]
    s.add(w1 + [At(QB(l2))] + level(2, 30), 0, 447, asap=True)
    s.run()
    if '6' in opt['fine']:
        for k in range(27, 447, 28): g.ve[k] += stampa()
    if '8' in opt['fine']:
        for k in range(213, 447, 14): g.ve[k].append(I("s_nop 0 ; us"))
    if '7' in opt['fine']:
        for x in range(1, 5): g.ve[QB(x) - 3] += stampa(); g.ve[QB(x) - 1] += stampa()
    out += g.flat() + stamp(26) + (EXIT() if opt['kvonly'] == '2' else [])
    init = lambda: [I(f"v_mov_b32 v{r}, 0") for r in [A.vLS, A.vLS + 1] + list(range(A.vNM, A.vNM + 8))]
    rd2 = lambda: L(f"v_add_u32 v16, 0x20000, v{A.vL16}")
    g = Gaps(qk_mfmas(0, C0, asc0=True))
    tile_reads(g, lambda b: rd_batch(KSLOT[0], b), rd_batch(KSLOT[1], 0), [("T", KSLOT[1])])
    s = Sched(g).add(qlast(), 0, 20, asap=True).add(dma_flat(VSLOT[1], A.sV) + adv_v(), 10, ints('dh')[0]).add(rd2(), 30, 63)
    if vt:
        a, b = ints('vq'); n0 = 16 + a + b; assert n0 <= 24
        qf = int(opt['qf'])
        qflag = L(f"v_min_u32 v17, 1, v{A.vL16}\nv_lshlrev_b32 v17, 29, v17\nv_mov_b32 v15, 1\ns_add_u32 s84, s47, 16") + [At(qf % 64), WAITV("QST"), side.flag_store(84, 17, 15), By(62)]
        s.add((qflag if qf < 64 else []) + ks.many(range(16, 16 + a), "KV4"), ints('sw')[0], 62, asap=True)
        def park(ns):
            o = [I(f"v_accvgpr_write_b32 a{128 + 4 * (n - 16) + e}, v{int(ks.reg[n][2:ks.reg[n].index(':')]) + e}") for n in ns for e in range(4)]
            for i in o: dep(i, *[p for n in ns for p in ks.src[n]])
            return o
    else:
        km = kq + kw[0]
        s.add(ks.many(range(kq, km), "KV4"), *ints('sw'))
    s.run()
    grp, early = groups_first(0)
    sched_sm(g, grp, 12, 62, early=early)
    if '8' in opt['fine']:
        for k in (0, 16, 32): g.ve[k].append(I("s_nop 0 ; us"))
    qk0 = g.flat() + stampa() + (L("s_sleep 32") if str(vt) in opt['idle'] else [])
    if vt:
        w1, left = win_qk1(4, 16, "v1", lambda s: s.add(ks.many(range(16 + a, n0), "KV4") + [By(60)], *ints('sw')).add(qflag if 64 <= qf < 128 else [], 0, 60, asap=True).add(park(range(n0, 24)) + [By(58)], 0, 56))
        vp = ints('vp'); assert n0 + sum(vp) == 32
        later = lambda m: (lambda s: s.add(ks.many(range(n0 + sum(vp[:m]), n0 + sum(vp[:m + 1])), "KV4", lambda n: R("a", 128 + 4 * (n - 16), 4)), *ints('sw')))
        def pv0x(s): s.add(park(range(24, 32)) + [By(28)], 0, 28).add(qflag if qf >= 128 else [], 30, 60, asap=True); later(0)(s)
        c.block("kv1", "L_kv1:", out, qk0, w1, win_pv0(4, 16, pv0x), fs('3'), win_qk(1, "v2", later(1)), win_pv(1, later(2)), fs('3'),
                win_qk(0, "v3", later(3)), win_pv(0, later(4)), "s_branch L_loop_top")
    else:
        c.block("kv0", "L_kv0:", out, f"s_cmp_eq_u32 s{sJ}, 0\ns_cbranch_scc1 L_j0")
        c.block("k1", qk0, win_qk1(4, 16, "k1", lambda s: s.add(ks.many(range(km, km + kw[1]), "KV4") + [By(60)], *ints('sw')))[0],
                win_pv0(4, 16, lambda s: s.add(ks.many(range(km + kw[1], 32), "KV4") + [By(28)], 4, 28)), f"s_cmp_lg_u32 s{A.sIT}, 0\ns_cbranch_scc1 L_loop_top\ns_branch L_d1s")
        g = Gaps(qk_mfmas(0, lambda kb, qb: R("v", Sreg(0, kb, 0), 4) if qb == 0 else "0", order=(1, 0), asc0=True))
        tile_reads(g, lambda b: rd_batch(KSLOT[0], b), rd_batch(KSLOT[1], 0), [("T", KSLOT[1])])
        ql = qp.out(3, 1, 1, Qreg(1, 7))[0] + [By(5)] + qp.out(3, 1, 0, Qreg(0, 7))[0] + [By(12)]
        pr = presets(False, zero=True)
        LSPIN["j0"] = (2, 17)
        s = Sched(g).add([At(1)] + ql, 0, 20, asap=True).add([x for kb in range(4) for x in pr[kb] + [By(16 * kb + 6)]], 0, 50)
        s.add(L(f"s_mov_b32 s{A.sV}, s{sVD}") + dma_flat(VSLOT[0], A.sV) + L(f"v_min_u32 v17, {7 << 7}, v9\nbuffer_load_dword v{A.vRL}, v17, {WSR}, s46 offen sc1"), 14, 44)
        s.add(init(), 0, 63).add(ks.many(range(kq, 32), "KV4"), 16, 62, vmd=2).run()
        grp, early = groups_first(0, (1, 0))
        sched_sm(g, grp, 12, 62, early=early)
        ucheck = L(f"v_mov_b32 v{A.vX}, v{A.vSUM}\nv_mov_b32 v{A.vX+1}, v{A.vSUM+1}") + [i for p in zip(xlane("v_max_f32", A.vX, A.vX + 2), xlane("v_max_f32", A.vX + 1, A.vX + 3)) for i in p] + L(f"""
            v_min_f32 v{A.vX}, v{A.vX}, v{A.vX+1}
            v_cmp_gt_f32 vcc, s{A.sLOW}, v{A.vX}
            s_cbranch_vccnz L_stj0
            L_rtj0:""")
        zz = [I(f"v_mov_b32 v{A.vP1 + e}, 0") for e in range(4)]
        rest = [i for p in presets(True) for i in p]
        c.block("j0", "L_j0:", g.flat(), stampa(), zz, HELPER_K(), PBASE(), lcheck(2, "j0"), mix(ucheck[:-2], dma_flat(KSLOT[0], A.sK) + adv_k(), 1), ucheck[-2:], zero_O_mfma(rest, A.vP1), "s_branch L_d3h")

def build_att(c):
    X.update(nodma=0, nobar=0, rp=0, dp=0)
    c.block("loop_top", "L_loop_top:" if WARM else ".p2align 6\nL_loop_top:", fs('3'), att.win_qk(1, "L_st1", "L_rt1", extra=[side.touch(0, 60, 0, nt=False)])[0], att.win_pv(1))
    c.block("loop_mid", fs('3'), att.win_qk(0, "L_st0", "L_rt0", head=L(f"s_bitcmp1_b32 s{sMLD}, s{A.sCHK}\ns_cbranch_scc1 L_fll\nL_fllr:"))[0],
            att.win_pv(0, tail=L(f"s_sub_u32 s{A.sIT}, s{A.sIT}, 1\ns_cmp_lg_u32 s{A.sIT}, 0\ns_cbranch_scc1 L_loop_top"),
                       chk=L(f"""v_cmp_gt_u32 vcc, s{A.sREQ}, v{A.vRL}
                       s_cbranch_vccnz L_fls0
                       L_flr0:
                       s_mov_b32 s{A.sREQ}, 0
                       s_add_u32 s{A.sCHK}, s{A.sCHK}, 1""")))
    c.block("p1", f"s_cmp_eq_u32 s{sMODE}, 0\ns_cbranch_scc1 L_final_h")
    g = Gaps(qk_mfmas(0, lambda kb, qb: R("v", Sreg(0, kb, 0), 4) if qb == 0 else NMq(1), order=(1, 0)))
    tile_reads(g, lambda b: rd_batch(KSLOT[0], b), rd_batch(VSLOT[1], 0), [("T", VSLOT[1])])
    pr = presets(False)
    Sched(g).add([x for kb in range(4) for x in pr[kb] + [By(16 * kb + 6)]], 0, 50).add(
        L(f"s_mov_b32 s{A.sV}, s{sVD}\nv_min_u32 v17, {7 << 7}, v9\nbuffer_load_dword v{A.vRL}, v17, {WSR}, s46 offen sc1") + dma_flat(VSLOT[0], A.sV) + adv_v() + dma_flat(4, A.sV, 0, 4), 1, 60).add(PBASE(), 30, 62).run()
    put_tail(g, sched_sm(g, softmax_groups(1, 1), 0, 56), check(1, "L_std1"))
    c.block("d1", "L_d1s:", stampa(), g.flat(), "L_rtd1:", fs('4'), f"s_cmp_lt_u32 s{sJ}, {15 - JH}\ns_cbranch_scc1 L_d2h")
    wq = ints('rq' if RELAY else 'wq')
    if RELAY: opt['d3w'] = opt['r3w']; opt['five'] = opt['rfive']
    class WoQ:
        def __init__(self, slots): self.slots, self.n = slots, 0
        def take(self, m):
            o = []
            while m and self.n < 56:
                t, i = divmod(self.n, 8); k = min(m, 8 - i)
                o += wo_dma(self.slots[t], i, i + k); self.n += k; m -= k
            return o
    def d2(nxt):
        g = Gaps(pv_mfmas(1))
        tile_reads(g, lambda b: rd_batch(VSLOT[1], b), rd_batch(KSLOT[1], 0), [("T", KSLOT[1])])
        Sched(g).add(dma_flat(4, A.sV, 4, 8) + nxt, 1, 60).add([i for p in presets(True) for i in p] + [By(61)], 4, 60).run()
        sched_sm(g, softmax_groups(0, 0), 0, 62, add_l(1))
        return g.flat() + fs('4')
    P8 = [0, 0, 1, 1, 2, 2, 3, 3]
    def d3(stub, extra):
        g = Gaps(qk_mfmas(1, lambda kb, qb: R("v", Sreg(1, kb, 1), 4), order=(1,)))
        tile_reads(g, lambda b: rd_batch(KSLOT[1], b), rd_batch(VSLOT[0], 0), [("T", VSLOT[0])], per=8, pat=P8)
        Sched(g).add(L(f"v_add_u32 v{A.vNEG}, 0x20000, v{A.vL16}") + extra, 4, 30, asap=True).run()
        put_tail(g, sched_sm(g, softmax_groups(0, 1), 0, 30), check(0, f"L_st{stub}"))
        return g.flat() + L(f"L_rt{stub}:") + fs('4')
    def d4(stub, s1, s2, lo2, hi2, pub=False, hi1=60, asap=False):
        g = Gaps(pv_mfmas(0))
        tile_reads(g, lambda b: rd_batch(VSLOT[0], b), rd_batch(4, 0, A.vNEG), [("T", 4)] + (["KV4"] if pub else []))
        Sched(g).add(s2, lo2, hi2, vmd=2, asap=asap).add(s1, 1, hi1, vmd=2).add(level(4, A.vX + 5) if pub else [], 48, 52, asap=True).run()
        put_tail(g, sched_sm(g, groups_b(), 0, 60, add_l(0)), check_b(f"L_st{stub}"))
        return g.flat() + L(f"L_rt{stub}:") + fs('4')
    addb = lambda: L(f"v_add_f32 v{A.vLS + 1}, v{A.vSUM + 3}, v{A.vLS + 1}")
    wo = WoQ([3, 1, 2, 0, 4, 3, 1] if opt['five'] == '1' else [3, 1, 2, 0, 3, 1, 2])
    c.block("d2n", d2(wo_setup(A.vX + 4) + wo.take(wq[0])))
    LC = opt['lc'] == '1'; NRM = False
    c.block("d3n", d3("d3n", wo.take(int(opt['d3w'])) + ([] if LC else [At(int(opt['fpl'])), FP_LOAD()])))
    pl = L(f"v_or_b32 v9, s{sNC}, v{A.vL16}\nv_cmp_ne_u32 vcc, 1, v{A.vRL + 1}\ns_cbranch_vccnz L_fps\nL_fpr:") + [I(f"buffer_load_dwordx4 v[{A.vX+4}:{A.vX+7}], v9, {WSR}, s90 offen sc1")]
    for kq in range(8):
        for qb in (1, 0):
            n = qb * 8 + kq
            pl.append(I(f"buffer_load_dwordx4 a[{A.aX + 4*n}:{A.aX + 4*n + 3}], v9, {WSR}, s{86 + n // 4} offen offset:{(n & 3) * 1024} sc1"))
    ctest = lambda: L(f"""
    v_cmp_neq_f32 vcc, v{A.vNM}, v{A.vX+4}
    v_cmp_neq_f32 s[64:65], v{A.vNM+4}, v{A.vX+5}
    s_cmp_eq_u32 s{sNC}, 0
    s_cselect_b64 s[66:67], -1, 0
    s_or_b64 vcc, vcc, s[64:65]
    s_and_b64 vcc, vcc, s[66:67]
    s_cbranch_vccnz L_stc
    L_rtc:""")
    pn = lambda k0: NEED(*[R("a", A.aX + (qb * 8 + kq) * 4, 4) for kq in (k0, k0 + 1) for qb in range(2)])
    l2 = lambda: L(f"v_add_f32 v{A.vLS}, v{A.vX+6}, v{A.vLS}\nv_add_f32 v{A.vLS+1}, v{A.vX+7}, v{A.vLS+1}")
    if not LC:
        c.block("d4n", d4("d4n", wo.take(wq[1]), pl, int(opt['fpc']), int(opt['pl'])))
        g = Gaps(pvb_mfmas(True))
        tile_reads(g, lambda b: rd_batch(4, b, A.vNEG), rd_wo(3, 0), [("T", 3)], npat=None if RELAY else RP16)
        for k, k0 in ((1, 0), (14, 2), (30, 4), (45, 6)): g.put_s(k, pn(k0))
        cv = [x for kq in range(8) for qb in (1, 0) for x in [At(8 * kq + 11 - qb)] + cvt_ctx(kq, qb)]
        left = Sched(g).add(oa_setup(A.vX + 4) + [By(46)], 20, 44).add(l2() + addb() + lfin2() + [By(19)], 0, 18).add(wo.take(wq[2]), 2, 40).add(cv, 0, 63, asap=True).run(spill=True)
        c.block("d5n", NEED(R("v", A.vX + 4, 4)), ctest(), g.flat(), [i for l in left for i in l], stampa())
    else:
        n4 = 5 + int(opt['n4'])
        c.block("d4n", d4("d4n", wo.take(wq[1]) + [By(int(opt['fpc']) - 2)], [At(int(opt['fpl'])), FP_LOAD(), At(int(opt['fpc']))] + pl[:n4] + [By(60)], 0, 60, hi1=int(opt['fpc']) - 4, asap=True))
        g = Gaps(pvb_mfmas() + comb_mfmas())
        tile_reads(g, lambda b: rd_batch(4, b, A.vNEG), None, [("T", 3)], per=8, pat=P8)
        put_batch(g, rd_wo(3, 0), 40); g.put_s(62, need_batch(0))
        ct = ctest()
        for i in [pn(0)] + ct[-2:]: g.put_s(31, i)
        for k, k0 in ((39, 2), (47, 4), (55, 6)): g.put_s(k, pn(k0))
        cv = [x for kq in range(8) for qb in (1, 0) for x in [At(32 + 4 * kq + 7 - 2 * qb)] + cvt_ctx(kq, qb)]
        lf = l2() + lfin2()
        left = Sched(g).add(pl[n4:] + [By(30)] + wo.take(wq[2]), 0, 40, asap=True, vmd=1).add(addb() + oa_setup(A.vX) + [By(22), At(24)] + ct[:-2] + [By(30), At(32)] + lf[:2] + [By(34)], 4, 30).add(cv + lf[2:], 0, 63, asap=True).run(spill=True)
        c.block("d5n", g.flat(), [i for l in left for i in l], stampa())
    def op_out(j, split=False, mul=True):
        b = j & 1
        ins = L(f"s_add_u32 s{A.sT0}, s{A.sOP}, {2 * j * 1024}\ns_add_u32 s{A.sT1}, s{A.sOP}, {14336 + 2 * j * 1024}")
        for pp in range(2):
            for qb in range(2):
                if split: ins.append(At(32 * pp + 27 + 8 * qb))
                a, d = Sreg(b, 2 * pp, qb), Sreg(b, 2 * pp + 1, qb)
                if mul: ins += [I(f"v_mul_f32 v{r + e}, v{A.vRL + qb}, v{r + e}") for r in (a, d) for e in range(4)]
                ins += kvq.pack(("v", a), ("v", d), 0)[0]
                ins.append(I(f"buffer_store_dwordx4 v[{a}:{a+3}], v{A.vL16}, {WSR}, s{A.sT0 + qb} offen offset:{pp * 1024} sc1", tag=("OP", j)))
        return ins
    fop = lambda: L(f"""
    s_sub_u32 s64, 15, s{sJ}
    s_min_u32 s64, s64, s{sJ}
    s_mul_i32 s{sFL}, s64, {2 * FSTR}
    s_lshl_b32 s64, s{sH}, 2
    s_add_u32 s{sFL}, s{sFL}, s64
    s_lshl_b32 s64, s{A.sWAVE}, 8
    s_add_u32 s{sFL}, s{sFL}, s64
    s_add_u32 s{sFL}, s{sFL}, {WS_FOP}
    s_mov_b32 s64, 1024
    s_mov_b32 s66, {FSTR - 256}
    s_cmp_lt_u32 s{sJ}, 8
    s_cselect_b32 s64, {FSTR}, s64
    s_cselect_b32 s65, 0, 64
    s_cselect_b32 s66, {OOB}, s66
    s_add_u32 s3, s{sFL}, s64
    s_add_u32 s{sFL}, s{sFL}, s65
    v_lshrrev_b32 v{A.vX + 7}, 5, v{A.vL16}
    v_min_u32 v{A.vX + 5}, 1, v{A.vX + 7}
    v_lshlrev_b32 v{A.vX + 4}, 3, v{A.vL16}
    v_lshl_or_b32 v{A.vX + 6}, v{A.vX + 5}, 29, v{A.vX + 4}
    v_cmp_eq_u32 vcc, 1, v{A.vX + 7}
    v_add_u32 v{A.vX + 4}, s66, v{A.vX + 4}
    v_mov_b32 v{A.vX + 5}, 1
    v_cndmask_b32 v{A.vX + 7}, v{A.vX + 6}, v{A.vX + 4}, vcc
    """)
    def outproj(wo, quota, ctx, first=(), extra0=(), prep=False):
        ow = []; sl = wo.slots
        for j in range(7):
            g = Gaps(qk_mfmas(j & 1, C0, breg=ctx))
            tile_reads(g, lambda b: rd_wo(sl[j], b), rd_wo(sl[j + 1], 0) if j < 6 else None, [("T", sl[j + 1])] if j < 6 else None)
            s = Sched(g)
            if j < len(quota): s.add(wo.take(quota[j]), 1, int(opt['odh']), vmd=2)
            if j == 0: s.add(list(first) + fop() + list(extra0) + [I(f"v_add_u32 v{vOA[2] + x}, 0x20000, v{A.vL16 if RELAY else vOA[0] + x}") for x in range(1 if RELAY else 4)], 0, 40, asap=True)
            jv = (side5.NE - 1) // 2 + 2
            if j == 5 or (j == jv and prep):
                sel = L(f"s_cmp_{'lt' if j == 5 else 'ge'}_u32 s{sJ}, 8\ns_cselect_b32 s84, s{sFL}, {OOB}") if prep and jv != 5 else L(f"s_mov_b32 s84, s{sFL}")
                s.add(sel + [At(int(opt['efg'])), WAITV([("OP", j - 2)]), I(f"buffer_store_dword v{A.vX + 5}, v{A.vX + 7}, {WSR}, s84 offen sc1")], 40, 60, asap=True)
            if j == int(opt['pv1']): s.add(side5.red_v1(A.vL16) if prep else side5.red_k1(A.vL16), 0, 60)
            if prep and j == int(opt['pv2']): s.add(side5.red_v2() + [By(60)], 4, 56)
            if j > 0: s.add(op_out(j - 1, mul=not (prep and NRM)) + (op_out(6, True, not (prep and NRM)) if j == 6 else []), int(opt['olo']), 62 if j < 6 else 63, asap=j == 6, vmd=2)
            left = s.run(spill=j == 6)
            ow += g.flat() + fs('5')
        assert wo.n == 56
        return ow + stampa() + [i for l in left for i in l] + L(side5.FOP_LOAD) + [WAITV([("OP", 6)]), I(f"buffer_store_dword v{A.vX + 5}, v{A.vX + 6}, {WSR}, s3 offen sc1")] + stampa()
    c.block("opn", outproj(wo, wq[3:], lambda qb, ks: R("v", Oreg(2 * ks, qb), 4), prep=True), f"s_cmp_lt_u32 s{sJ}, 8\ns_cbranch_scc1 L_red")
    c.block("end1", side5.red_main_v(stampa, int(opt['lagv'])), EXIT())
    LSPIN["h2"] = (2, 17); LSPIN["h4"] = 2
    c.block("d2h", "L_d2h:", d2(HELPER_K() + lcheck(2, "h2") + dma_flat(KSLOT[0], A.sK) + adv_k()))
    c.block("d3h", "L_d3h:", d3("d3h", [FL_LOAD(), I(f"buffer_load_dword v{A.vRL + 1}, off, {WSR}, s47 offset:16 sc1")]))
    ql = L(f"v_cmp_ne_u32 vcc, 1, v{A.vRL + 1}\ns_cbranch_vccnz L_fqs\nL_fqr:") + L(f"s_add_u32 s73, s{A.sQ}, 4096\ns_add_u32 s74, s{A.sQ}, 8192\ns_add_u32 s75, s{A.sQ}, 12288")
    ql += [I(f"buffer_load_dwordx4 a[{4*n}:{4*n+3}], v{A.vL16}, {WSR}, s{72 + n // 4 if n >= 4 else A.sQ} offen offset:{(n & 3) * 1024} sc1") for n in range(16)]
    c.block("d4h", d4("d4h", [], ql + lcheck(2, "h4") + [By(58)], 0, 54, True))
    g = Gaps(pvb_mfmas() + qk_mfmas(0, C0))
    tile_reads(g, lambda b: rd_batch(4, b, A.vNEG), rd_batch(KSLOT[0], 0), [("T", KSLOT[0])], per=8, pat=P8)
    tile_reads(g, lambda b: rd_batch(KSLOT[0], b), rd_batch(KSLOT[1], 0), [("T", KSLOT[1])], base=32)
    g.put_s(29, NEED(R("a", 0, 64)))
    def cpk(kq, qb): return link(cvt_ctx(kq, qb) + [I(f"v_accvgpr_write_b32 a{A.aX + (qb * 8 + kq) * 4 + e}, v{Oreg(2 * kq, qb) + e}") for e in range(4)])
    order = [(0, 0), (1, 0)] + [x for kq in range(6) for x in ((kq, 1), (kq + 2, 0))] + [(6, 1), (7, 1)]
    cp = {k: cpk(*k) for k in order}
    s = Sched(g).add(dma_flat(KSLOT[1], A.sK) + adv_k() + L(f"s_mul_i32 s{A.sV}, s{sH}, {HS}\ns_add_u32 s{A.sV}, s{A.sV}, {WS_V + NO * 32768}") + dma_flat(VSLOT[0], A.sV) + adv_v() + dma_flat(VSLOT[1], A.sV, 0, 4), 2, 92)
    s.add(addb() + lfin2() + L(f"v_accvgpr_write_b32 a192, v{A.vRL}\nv_accvgpr_write_b32 a193, v{A.vRL + 1}") + [I(f"v_mov_b32 v{r}, 0") for r in [A.vLS, A.vLS + 1] + list(range(A.vNM, A.vNM + 8))], 0, 40).run()
    grp, early = groups_first(0, base=32)
    sched_sm(g, grp, 44, 94, early=early)
    left = Sched(g).add([x for k in order for x in ([At(4 * k[0] + 7)] if k[1] else []) + cp[k]], 0, 95, asap=True).run(spill=True)[0]
    w5 = g.flat() + fs('4')
    g = Gaps(qk_mfmas(1, C0))
    tile_reads(g, lambda b: rd_batch(KSLOT[1], b), rd_batch(VSLOT[0], 0), [("T", VSLOT[0])])
    Sched(g).add(dma_flat(KSLOT[0], A.sK) + adv_k() + dma_flat(VSLOT[1], A.sV, 4, 8) + adv_v(), 1, 56).run()
    k = sched_sm(g, softmax_groups(0, 1), 0, 54)
    tail = check_first("L_sth1")
    ids = {id(i) for i in left}
    Sched(g).add(left + [By(57)], 0, 57).run()
    put_tail(g, max(k, 57), tail)
    w6 = g.flat() + L("L_rth1:")
    c.block("d5h", w5, w6, stampa(), win_pv0(VSLOT[0], None, lambda s: s.add(L(f"""s_mov_b32 s{sMODE}, 0
            s_mov_b32 s{A.sCHK}, 0
            s_and_b32 s{sMLD}, s{sMLD}, 2
            s_sub_u32 s{A.sIT}, {15 - JH - 1}, s{sJ}"""), 10, 30)), f"s_cmp_lg_u32 s{A.sIT}, 0\ns_cbranch_scc1 L_loop_top")
    wo = WoQ([3, 2, 0, 4, 1, 3, 2] if opt['five'] == '1' else [3, 2, 0, 1, 3, 2, 0]); wh = ints('wh')
    if RELAY: wo.n = 16; wh = [ints('rh')[0], 0] + ints('rh')[1:]
    pst = lambda kq, qb: [I(f"buffer_store_dwordx4 v[{Oreg(2*kq, qb)}:{Oreg(2*kq, qb)+3}], v{A.vL16}, {WSR}, s{86 + (qb*8+kq) // 4} offen offset:{(kq & 3) * 1024} sc1", tag="PST")]
    g = Gaps(pv_mfmas(1))
    tile_reads(g, lambda b: rd_batch(VSLOT[1], b), rd_wo(3, 0), [("T", 3)], npat=None if RELAY else RP16)
    w0 = wo_setup(A.vX + 4, 2 if RELAY else 0) + wo.take(wh[0]); nv = 0 if RELAY else 7
    left = Sched(g).add(oa_setup(A.vX + 4) + [By(46)], 0, 10).add([x for kq in range(8) for qb in range(2) for x in [At(8 * kq + 9 + 2 * qb)] + cvt_ctx(kq, qb) + pst(kq, qb)], 0, 63, asap=True, vmd=1).add(
        wo.take(wh[1]), 0, 12, vmd=1).run(spill=True)
    c.block("final_h", "L_final_h:", stampa(), WAITV([("T", VSLOT[1])], lgkm0=True), "s_barrier", rd_batch(VSLOT[1], 0), w0[:nv], mix(softmax_half(1, 1), w0[nv:], 1), check(1, "L_stfh"), "L_rtfh:", add_l(1), f"""
    v_mov_b32 v{A.vX}, v{A.vNM}
    v_mov_b32 v{A.vX+1}, v{A.vNM+4}
    v_mov_b32 v{A.vX+2}, v{A.vLS}
    v_mov_b32 v{A.vX+3}, v{A.vLS+1}
    """, I(f"buffer_store_dwordx4 v[{A.vX}:{A.vX+3}], v{A.vL16}, {WSR}, s90 offen sc1", tag="PST"), need_batch(0), fs('4'), g.flat(), left[1], left[2], stampa())
    assert not left[0]
    pflag = L(f"v_min_u32 v{A.vX}, 1, v{A.vL16}\nv_lshlrev_b32 v{A.vX}, 29, v{A.vX}") + [At(int(opt['pfg'])), WAITV("PST"), side.flag_store(47, A.vX, A.vX + 5)]
    c.block("oph", outproj(wo, wh[2:], lambda qb, ks: R("a", A.aX + (qb * 8 + ks) * 4, 4), L(f"v_accvgpr_read_b32 v{A.vRL}, a192\nv_accvgpr_read_b32 v{A.vRL + 1}, a193"), pflag))
    rm = side5.red_main(A.vL16, stampa, int(opt['lag']), int(opt['lag2']))
    c.block("red0", "L_red:", side5.red_k1(A.vL16), side5.FOP_LOAD, "s_branch L_red1")
    c.block("red", "L_red1:", f's_or_b32 s77, s77, {OOB}' if 'r' in opt['wi'] else '', f's_or_b32 s78, s78, {OOB}' if 's' in opt['wi'] else '', rm, EXIT())
    c.block("rpoll", side5.red_poll())
    stubs = ""
    for n, f in (("0", "slow0"), ("1", "slow1"), ("v1", "slowf"), ("k1", "slowf"), ("h1", "slowf"), ("j0", "slowj"), ("v2", "slow1"), ("v3", "slow0"), ("d1", "slow1"),
                 ("d3n", "slow0"), ("d3h", "slow0"), ("d4n", "slowb"), ("d4h", "slowb"), ("fh", "slow1n"), ("c", "comb")):
        stubs += f"L_x{n}:\ns_call_b64 s[{A.sRET}:{A.sRET+1}], L_{f}\ns_branch L_rt{n}\n".replace("L_x", "L_st")
    return stubs

def mid_blocks(c, stubs):
    c.block("stubs", stubs)
    c.block("slow", att.slow_sub(0), att.slow_sub(1), att.slow_sub(1, False), slow_first("L_slowf", True), slow_first("L_slowj", False), slow_b(), comb_slow(opt['lc'] == '1'))
    sp = []
    for n, v in LSPIN.items():
        ld = FL_LOAD().text
        if isinstance(v, tuple): v, ld = v[0], ld.replace("v9", "v%d" % v[1])
        sp += side.spin_stub(f"L_ls{n}", f"L_lr{n}", ld, A.vRL, 91, f"v_cmp_gt_u32 vcc, {v}, v{{vt}}")
    for n, (ld, half) in WSPIN.items():
        sp += side.spin_stub(f"L_ws{n}", f"L_wr{n}", ld, A.vRL, 91, f"v_cmp_ne_u32 vcc, 1, v{{vt}}\ns_nop 0\ns_mov_b32 vcc_{'hi' if half == 'lo' else 'lo'}, 0")
    c.block("spins", side.z_stub(0), side.z_stub(1), hw.key_stub(), sp, f"""
    L_fll:
    s_cmp_eq_u32 s{sJ}, 8
    s_cbranch_scc1 L_fl8
    L_fl0:
    s_cmp_lg_u32 s{A.sWAVE}, 0
    s_cbranch_scc1 L_fl3
    s_lshr_b32 s64, s{sJ}, 3
    s_cmp_eq_u32 s{A.sCHK}, s64
    s_cbranch_scc0 L_fl1
    v_mov_b32 v{A.vX + 5}, 4
    {side.flag_store(sFL, A.vF0, A.vX + 5).text}
    L_fl1:
    s_cmp_eq_u32 s{A.sCHK}, 0
    s_cbranch_scc1 L_fllr
    s_and_b32 s64, s{A.sCHK}, s{sMODE}
    s_cselect_b32 s64, 0x380, -1
    v_min_u32 v{A.vX + 7}, s64, v9
    s_mov_b32 s{A.sREQ}, 4
    buffer_load_dword v{A.vRL}, v{A.vX + 7}, {WSR}, s46 offen sc1
    s_branch L_fllr
    L_fl8:
    s_mul_i32 s64, s{A.sWAVE}, 57344
    s_sub_u32 s65, s{A.sCHK}, 1
    s_lshl_b32 s65, s65, 14
    s_add_u32 s64, s64, s65
    s_add_u32 s65, s64, 8192
    v_lshlrev_b32 v11, 3, v{A.vL16}
    s_bitcmp1_b32 {int(opt['w8'])}, s{A.sCHK}
    s_cbranch_scc0 L_fl0
    {side.touch(11, S_WO, "s64", nt=False).text}
    {side.touch(11, S_WO, "s65", nt=False).text}
    s_cmp_gt_u32 s{A.sCHK}, 2
    s_cbranch_scc1 L_fllr
    s_cmp_lg_u32 s{A.sWAVE}, 0
    s_cbranch_scc1 L_fllr
    s_branch L_fl0
    L_fl3:
    s_cmp_eq_u32 s{A.sCHK}, {TY}
    s_cbranch_scc1 L_y2
    s_cmp_eq_u32 s{A.sCHK}, {TY + 1}
    s_cbranch_scc1 L_y3
    s_cmp_eq_u32 s{A.sCHK}, {TY + 2}
    s_cbranch_scc1 L_y4
    s_branch L_y5
    s_waitcnt vmcnt(0)
    L_fps:
    s_cmp_lg_u32 s{sNC}, 0
    s_cbranch_scc1 L_fpr
    """, side.spin_stub("L_fps2", "L_fpr", FP_LOAD().text, A.vRL + 1, 91),
            side.spin_stub("L_fqs", "L_fqr", f"buffer_load_dword v{A.vRL + 1}, off, {WSR}, s47 offset:16 sc1", A.vRL + 1, 91),
            side.spin_stub("L_fls0", "L_flr0", FL_LOAD().text.replace("v9", f"v{A.vX + 7}"), A.vRL, 91, f"v_cmp_gt_u32 vcc, s{A.sREQ}, v{{vt}}"))
    c.block("ystubs", side5.y_stubs("L_fllr", int(opt['ht'])))

def paths(c):
    lp = ["loop_top", "loop_mid"]
    n = ["d1", "d2n", "d3n", "d4n", "d5n", "opn"]
    c.path("entry", "kv1", *lp, *lp, *lp, "p1", *n, "end1")
    c.path("entry", "kv0", "k1", *lp, *lp, *lp, "p1", *n, "red0", "red")
    for own in (["j0"], ["k1", "d1", "d2h"], ["k1", *lp, "p1", "d1", "d2h"], ["k1", *lp, *lp, *lp, "p1", "d1", "d2h"]):
        for nh in (0, 1, 2, 3):
            c.path("entry", "kv0", *own, "d3h", "d4h", "d5h", *(lp * nh), *(["p1"] if nh else []), "final_h", "oph", "red")
    for b in ("rpoll", "stubs", "slow", "moe", "spins", "ystubs"): c.path(b)

def check_tiles(c):
    size = dict(U=7, T=8, W=4, C=4, X=4)
    for path in c.paths:
        cnt = {}
        for b in path:
            for i in c.blocks[b]:
                if i.kind == "dma" and isinstance(i.tag, tuple): cnt[i.tag] = cnt.get(i.tag, 0) + 1
                if i.op == "WAITV":
                    for t in (i.tag if isinstance(i.tag, list) else [i.tag]):
                        if isinstance(t, tuple) and t[0] in size:
                            n = cnt.pop(t, 0)
                            assert (n or b in ("final_h", "oph")) and n % size[t[0]] == 0, (path, b, t, n)
def ustamps(c):
    names = ["start"]
    for spec in [x for x in opt['us'].split(",") if x]:
        b, lo, hi = (spec.split(":") + ["0", "999"])[:3]
        o = []; pend = None; nb = 0
        def rec(n):
            r = L(f"v_accvgpr_write_b32 a255, v10\nv_accvgpr_read_b32 v10, a254\nv_writelane_b32 v10, s98, {n}\nv_accvgpr_write_b32 a254, v10\nv_accvgpr_read_b32 v10, a255")
            for i in r: i.extra["ghost"] = True
            return r
        for i in c.blocks[b]:
            if pend is not None and (i.op in ("s_endpgm", "s_call_b64") or i.kind == "branch" and i is c.blocks[b][-1]): o += rec(pend); pend = None
            o.append(i)
            if pend is not None and i.op in ("NEED", "WAITV"): o += rec(pend); pend = None
            if i.op == "s_barrier" or i.text.endswith("; us"):
                nb += 1
                if int(lo) <= nb <= int(hi):
                    pend = len(names); names.append(f"{b}.{nb}"); o.append(I("s_memtime s[98:99]"))
        if pend is not None: o += rec(pend)
        c.blocks[b] = o
    assert len(names) <= 64
    return names
def ipref(c):
    n = 0
    for b in [x for x in opt['ip'].split(",") if x]:
        o = []; q = b not in ("kv0", "kv1")
        for i in c.blocks[b]:
            o.append(i)
            if i.text.startswith("s_mov_b64 s[60:61], s[76:77]"): q = True
            if i.op == "s_barrier":
                n += 1
                o += [I("s_getpc_b64 s[100:101]"), I(f"s_load_dword s94, s[100:101], {opt['ipd']} ; ignore")]
        c.blocks[b] = o
SHORT = [("v_mfma_f32_16x16x32_bf16", "M", 4), ("ds_read_b128", "R", 0), ("ds_read_b64_tr_b16", "T", 0), ("v_cvt_pk_bf16_f32", "C", 3), ("v_exp_f32", "E", 2),
         ("v_accvgpr_write_b32", "W", 2), ("v_accvgpr_read_b32", "G", 2), ("v_add_f32", "AF", 3), ("v_mul_f32", "MF", 3), ("s_add_u32", "SA", 3)]
def compress(body):
    hdr = []; out = []
    for full, sh, n in SHORT:
        if n: hdr.append(f".macro {sh} " + ", ".join("abcd"[:n]) + f"\n{full} " + ", ".join("\\" + x for x in "abcd"[:n]) + "\n.endm")
        else: hdr.append(f".macro {sh} a, b, c\n{full} \\a, \\b offset:\\c\n.endm")
    for ln in body.split("\n"):
        ln = ln.strip()
        for full, sh, n in SHORT:
            if ln.startswith(full + " ") and "row_" not in ln and (n or " offset:" in ln):
                ln = sh + " " + ln[len(full) + 1:].replace(" offset:", ",").replace(", ", ","); break
        out.append(ln)
    return "\n".join(hdr), "\n".join(out)

if __name__ == "__main__":
    c = CFG(verbose=int(opt["v"]))
    entry(c); front(c, 0); front(c, 1)
    stubs = build_att(c)
    n0 = len(c.order)
    mid_blocks(c, stubs); c.block("moe", side5.red_moe())
    k = c.order.index("loop_top")
    c.order = c.order[:k] + c.order[n0:-1] + c.order[k:n0] + c.order[-1:]
    c.order.remove("red0"); c.order.append("red0")
    paths(c); check_tiles(c); names = ustamps(c); ipref(c)
    txt = c.finalize(); ldscheck.check(c)
    if int(opt['v']):
        for b in c.order:
            m = c.mat[b]; bad = sum(1 for x, y in zip(m, m[1:]) if x.kind in ("valu", "trans") and y.kind in ("dsr", "dsw", "dma", "vld", "vst"))
            if any(i.kind == "mfma" for i in m): sys.stderr.write(f"; {b}: valu->mem {bad}\n")
    for spec in [x for x in opt['fl_'].split(",") if x]:
        r, f = spec.split(":")
        for b in c.order:
            for i in c.mat[b]:
                if i.kind == "dma" and f"s[{r}:" in i.text: i.text = i.text.replace(" nt", "").replace(" sc1", "").replace(" lds", " " + f.replace("+", " ") + " lds")
    if opt['dbg'] != '-':
        for b in c.order:
            for i in c.mat[b]:
                if "s[12:15]" in i.text and i.op in ("buffer_store_dword", "buffer_load_dword") and "v17" in i.text: i.text = i.text.replace("offen", "offen offset:64")
    if WARM: txt = warm.place(c, ("kv0", "kv1", "loop_top"))
    hdr, body = compress(txt)
    kn = NAME + "_kernel"
    print("; Fused MLA-style attention + gated MoD block for gfx950; generated by dev/gen5.py (hand-written generator)")
    if opt['us']: print("; sites " + " ".join(names))
    print("; @launch grid=(256,1,1) block=(256,1,1) lds=163840")
    print('.amdgcn_target "amdgcn-amd-amdhsa--gfx950"\n.text')
    print(hdr)
    print(kernel_header(kn))
    print(body)
    print("L_code_end:")
    print('.section .rodata,"a"\n.p2align 6')
    print(kernel_desc(kn, sgpr=102))
```

```python
from common import *
from side import S_WS, sWAVE, sH, sJ, WS, OOB, poll_flags
sI0, sI1 = 92, 94
FINE = False
NAT = True
COL = lambda: "v_bfe_u32 v34, v32, 4, 1\nv_lshlrev_b32 v34, 1, v34\nv_lshrrev_b32 v35, 5, v32\nv_add_u32 v34, v34, v35" if NAT else "v_lshrrev_b32 v34, 4, v32"
NE = 6
FOP_LOAD = f"buffer_load_dword v9, v33, {WS}, s46 offen sc1"
aSEL = 244
RS = [dict(row=37, off=38, g=39, x=48, b=64, acc=96, n=2, col=75), dict(row=29, off=28, g=26, x=44, b=80, acc=112, n=1, col=79),
      dict(row=29, off=28, g=26, x=44, b=48, acc=56, n=1, col=79)]
def red_k1(vl16):
    out = L(f"""
    v_lshrrev_b32 v32, 4, v{vl16}
    s_lshr_b32 s74, s{sH}, 3
    s_lshl_b32 s64, s{sJ}, 1
    s_add_u32 s46, s64, s74
    s_mul_i32 s46, s46, {FSTR}
    s_and_b32 s72, s{sH}, 7
    s_lshl_b32 s65, s72, 7
    s_add_u32 s46, s46, s65
    s_add_u32 s46, s46, {WS_FOP}
    v_and_b32 v33, 31, v32
    v_lshlrev_b32 v33, 2, v33
    s_lshl_b32 s65, s{sH}, 7
    s_add_u32 s65, s65, {WS_SEL}
    buffer_load_dword v31, v33, {WS}, s65 offen sc1
    {COL()}
    {srd(52, 96, 2048*896)}
    s_mul_i32 s77, s{sJ}, {16 * OP_HEAD}
    s_mul_i32 s78, s72, 14336
    s_add_u32 s77, s77, s78
    s_add_u32 s77, s77, {WS_OP}
    s_lshl_b32 s79, s74, {2 if NE == 8 else 1}
    s_add_u32 s79, s79, s{sWAVE}
    s_lshl_b32 s71, s74, 1
    s_add_u32 s71, s71, {3 if NE == 8 else 1}
    s_sub_u32 s71, s71, s{sWAVE}
    s_and_b32 s71, s71, {OOB}
    s_sub_u32 s64, 15, s64
    s_sub_u32 s78, s64, 1
    s_mul_i32 s78, s78, {16 * OP_HEAD}
    s_add_u32 s78, s78, s77
    s_lshl_b32 s65, s79, 10
    s_add_u32 s78, s78, s65
    s_add_u32 s78, s78, s71
    s_lshl_b32 s79, s79, 6
    s_or_b32 s79, s79, s71
    s_mul_i32 s67, s74, -2
    s_lshl_b32 s74, s74, 3
    s_add_u32 s74, s74, s{sWAVE}
    s_lshl_b32 s75, s74, 6
    s_add_u32 s76, s75, 256
    s_add_u32 s67, s67, 3
    s_sub_u32 s67, s67, s{sWAVE}
    s_and_b32 s67, s67, {OOB}
    s_or_b32 s76, s76, s67
    v_or_b32 v27, s67, v{vl16}
    v_add_u32 v27, 4096, v27
    s_lshl_b32 s65, s74, 10
    s_add_u32 s77, s77, s65
    s_lshl_b32 s64, s64, 7
    s_lshr_b32 s73, s72, 1
    s_sub_u32 s65, 7, s73
    s_bitcmp1_b32 s72, 0
    s_cselect_b32 s73, s65, s73
    s_lshl_b32 s73, s73, 4
    s_lshl_b32 s65, s{sJ}, 7
    s_add_u32 s73, s73, s65
    v_and_b32 v37, 15, v32
    v_add_u32 v37, s73, v37
    v_add_u32 v29, s64, v37
    s_mov_b32 s64, {WS_RG + 64}
    """)
    for r in RS[:2]:
        out += L(f"""
        v_mul_u32_u24 v{r['off']}, 896, v{r['row']}
        v_lshl_add_u32 v{r['off']}, v34, 4, v{r['off']}
        v_lshrrev_b32 v35, 4, v{r['row']}
        v_lshlrev_b32 v35, 5, v35
        v_and_b32 v36, 15, v{r['row']}
        v_add_lshl_u32 v35, v35, v36, 2
        buffer_load_dword v{r['g']}, v35, {WS}, s64 offen sc1
        """) + [I(f"buffer_load_dwordx4 v[{r['x']+4*u}:{r['x']+4*u+3}], v{r['off']}, s[56:59], s{r['col']+u} offen") for u in range(r['n'])]
    return out
def red_b(t):
    r = RS[t]; n = r['n']
    return L(f"v_readlane_b32 s{sI0}, v31, 0\nv_readlane_b32 s{sI1}, v31, 1" if t == 0 else "") + [i for w in range(4 * n) for i in L(f"v_lshlrev_b32 v{r['b']+2*w}, 16, v{r['x']+w}\nv_and_b32 v{r['b']+1+2*w}, 0xffff0000, v{r['x']+w}")] + L(f"""
    v_sub_f32 v30, 1.0, v{r['g']}
    v_cmp_eq_u32 s[80:81], s{sI0}, v{r['row']}
    v_cmp_eq_u32 s[82:83], s{sI1}, v{r['row']}
    s_or_b64 vcc, s[80:81], s[82:83]
    s_cbranch_vccnz L_moe{t}
    L_moe_ret{t}:
    """) + [I(f"v_mul_f32 v{r['b']+e}, v30, v{r['b']+e}") for e in range(8 * n)]
def red_fin(t, note=""):
    r = RS[t]; o = []
    o += [I(f"v_permlane16_swap_b32 v{r['acc']+8*u+e}, v{r['acc']+8*u+4+e}") for u in range(r['n']) for e in range(4) if NAT]
    for u in range(r['n']):
        o += [I(f"v_fmac_f32 v{r['b']+8*u+e}, v{r['g']}, v{r['acc']+8*u+e}") for e in range(8)]
        o += [I(f"v_cvt_pk_bf16_f32 v{r['x']+4*u+w}, v{r['b']+8*u+2*w}, v{r['b']+1+8*u+2*w}") for w in range(4)]
        o.append(I(f"buffer_store_dwordx4 v[{r['x']+4*u}:{r['x']+3+4*u}], v{r['off']}, s[52:55], s{r['col']+u} offen sc1{note}"))
    return o
def adds(t, reg, first):
    o = []
    for u in range(RS[t]['n']):
        for hf in range(2):
            d = R("v", RS[t]['acc'] + 8 * u + 4 * hf, 4)
            o.append(mfma(d, R("a", aSEL + 2 - 2 * hf, 4), R("v", reg + 4 * u, 4), "0" if first else d))
    return o
RING = [16, 17, 18, 19, 48, 49, 50, 51, 21, 22, 23, 24, 25, 26, 27, 28]
def pick(lab, base, regs, vas, so=72):
    return L(f"""s_cmp_lg_u32 s70, 0
    s_cbranch_scc1 {lab}
    s_call_b64 s[36:37], L_rpoll
    {lab}:
    s_ff1_i32_b32 s71, s70
    s_bitset0_b32 s70, s71
    s_mul_i32 s71, s71, {OP_HEAD}
    s_add_u32 s{so}, s71, s{base}""") + [I(f"buffer_load_dwordx4 v[{r}:{r+3}], v{a}, {WS}, s{so} offen sc1") for r, a in zip(regs, vas)]
def red_main(vl16, st=lambda: [], lag=5, lag2=11):
    out = L(f"""
    v_cmp_eq_u32 vcc, 1, v9
    s_mov_b32 s91, {SPIN_MAX}
    s_mov_b32 s69, 0xffff
    s_and_b32 s70, vcc_lo, s69
    s_mov_b32 s68, s70
    """)
    reg = lambda k: 128 + 8 * (k % 8) if k < 16 else 192 + 4 * (k - 16)
    done = 0
    for k in range(32):
        if k == 16: out += L("v_cmp_eq_u32 vcc, 1, v8\ns_mov_b32 s69, 0xffff0000\ns_and_b32 s70, vcc_lo, s69\ns_mov_b32 s68, s70")
        out += pick(f"L_rk{k}", 77, [reg(k), reg(k) + 4], [vl16, 27]) if k < 16 else pick(f"L_rk{k}", 78, [reg(k)], [vl16])
        if k == PK: out += L(FOP_LOAD.replace("v9", "v8"))
        if k in (lag - 1, lag): out += red_b(k - lag + 1)
        if k == 31 or (FINE and k % 3 == 0): out += st()
        while done <= k - (lag if done < 16 else lag2):
            out += adds(done // 16, reg(done), done % 16 == 0); done += 1
            if done == 16: out += red_fin(0)
    while done < 32: out += adds(1, reg(done), False); done += 1
    return out + st() + red_fin(1)
PK = 12
def red_v1(vl16):
    return L(f"""
    v_lshrrev_b32 v32, 4, v{vl16}
    s_lshr_b32 s74, s{sH}, 3
    s_sub_u32 s64, 15, s{sJ}
    s_mul_i32 s46, s64, {2 * FSTR}
    s_and_b32 s72, s{sH}, 7
    s_lshl_b32 s65, s72, 7
    s_add_u32 s46, s46, s65
    s_add_u32 s46, s46, {WS_FOP + 1024}
    v_and_b32 v33, 31, v32
    v_lshlrev_b32 v33, 2, v33
    s_lshl_b32 s65, s{sH}, 7
    s_add_u32 s65, s65, {WS_SEL}
    buffer_load_dword v31, v33, {WS}, s65 offen sc1
    {COL()}
    {srd(52, 96, 2048*896)}
    s_mul_i32 s77, s{sJ}, {16 * OP_HEAD}
    s_mul_i32 s78, s72, 14336
    s_add_u32 s77, s77, s78
    s_add_u32 s77, s77, {WS_OP}
    s_lshl_b32 s79, s74, 2
    s_add_u32 s79, s79, s{sWAVE}
    s_add_u32 s79, s79, {NE}
    s_sub_u32 s67, 13, s79
    s_and_b32 s67, s67, {OOB}
    s_lshl_b32 s78, s79, 10
    s_add_u32 s78, s78, s77
    s_lshl_b32 s79, s79, 6
    s_or_b32 s79, s79, s67
    v_or_b32 v27, s67, v{vl16}
    s_lshr_b32 s73, s72, 1
    s_sub_u32 s65, 7, s73
    s_bitcmp1_b32 s72, 0
    s_cselect_b32 s73, s65, s73
    s_lshl_b32 s73, s73, 4
    s_lshl_b32 s65, s{sJ}, 7
    s_add_u32 s73, s73, s65
    v_and_b32 v29, 15, v32
    v_add_u32 v29, s73, v29
    s_mov_b32 s64, {WS_RG + 64}
    v_mul_u32_u24 v28, 896, v29
    v_lshl_add_u32 v28, v34, 4, v28
    v_lshrrev_b32 v35, 4, v29
    v_lshlrev_b32 v35, 5, v35
    v_and_b32 v36, 15, v29
    v_add_lshl_u32 v35, v35, v36, 2
    buffer_load_dword v26, v35, {WS}, s64 offen sc1
    buffer_load_dwordx4 v[44:47], v28, s[56:59], s79 offen
    """)
def red_v2():
    return L(f"""
    v_readlane_b32 s{sI0}, v31, 0
    v_readlane_b32 s{sI1}, v31, 1
    v_sub_f32 v30, 1.0, v26
    """) + [i for w in range(4) for i in L(f"v_lshlrev_b32 v{48+2*w}, 16, v{44+w}\nv_and_b32 v{49+2*w}, 0xffff0000, v{44+w}")] + L(f"""
    v_cmp_eq_u32 s[80:81], s{sI0}, v29
    v_cmp_eq_u32 s[82:83], s{sI1}, v29
    """)
def red_main_v(st=lambda: [], lag=8, sent=False):
    out = L(f"""
    v_cmp_eq_u32 vcc, 1, v9
    s_mov_b32 s91, {SPIN_MAX}
    s_lshl_b32 s70, 1, s{sH}
    s_mov_b32 s69, 0xffff
    s_or_b32 s70, s70, vcc_lo
    s_mov_b32 s68, s70
    s_barrier
    """); far = []
    for k in range(16 + lag):
        if k < 16: out += pick(f"L_vk{k}", 78, [128 + 4 * k], [27], RING[k])
        if k == 7: out += L("""
            s_or_b64 vcc, s[80:81], s[82:83]
            s_cbranch_vccnz L_moe2
            L_moe_ret2:
            """) + [I(f"v_mul_f32 v{48+e}, v30, v{48+e}") for e in range(8)]
        if k == 15: out += st()
        if k >= lag:
            n = k - lag; r = 128 + 4 * n
            if sent:
                tst = f"v_max3_u32 v10, v{r}, v{r+1}, v{r+2}\nv_max_u32 v10, v10, v{r+3}\nv_cmp_eq_u32 vcc, -1, v10"
                out += L(f"{tst}\ns_cbranch_vccnz L_vz{n}\nL_vw{n}:")
                far.extend(L(f"""L_vz{n}:
                buffer_load_dwordx4 v[{r}:{r+3}], v27, {WS}, s{RING[n]} offen sc1
                s_sub_u32 s91, s91, 1
                s_cbranch_scc1 L_vx{n}
                s_waitcnt vmcnt(0)
                {tst}
                s_cbranch_vccnz L_vz{n}
                L_vx{n}:
                s_waitcnt vmcnt(0)
                s_branch L_vw{n}"""))
            out += adds(2, r, k == lag)
    return out + st() + red_fin(2), far
def red_poll():
    return L(f"""
    L_rpoll0:
    s_sleep 1
    L_rpoll:
    {FOP_LOAD}
    s_waitcnt vmcnt(0)
    v_cmp_eq_u32 vcc, 1, v9
    s_sub_u32 s91, s91, 1
    s_cselect_b32 s70, -1, 0
    s_or_b32 s70, s70, vcc_lo
    s_and_b32 s70, s70, s69
    s_andn2_b32 s70, s70, s68
    s_cbranch_scc0 L_rpoll0
    s_or_b32 s68, s68, s70
    s_setpc_b64 s[36:37]
    """)
def red_moe():
    out = []
    for n, t in enumerate((0, 1, 2)):
        out += L(f"L_moe{n}:\ns_lshl_b32 s88, s{RS[t]['col']}, 1\ns_call_b64 s[36:37], L_moe") + [I(f"v_add_f32 v{RS[t]['b']+e}, v{2+e if e < 4 else 6+e}, v{RS[t]['b']+e}") for e in range(8 * RS[t]['n'])] + L(f"s_mov_b64 exec, -1\ns_branch L_moe_ret{n}")
    out += L(f"""
    L_moe:
    v_min_u32 v0, 27, v32
    v_lshlrev_b32 v0, 2, v0
    s_mov_b32 s64, {WS_FH + 512}
    """) + poll_flags(64, 64, "L_pfy", 1, 0, 65) + L(f"""
    s_or_b64 exec, s[80:81], s[82:83]
    v_mov_b32 v0, 1792
    v_cndmask_b32 v0, v0, 0, s[80:81]
    v_lshl_add_u32 v0, v34, 5, v0
    s_add_u32 s88, s88, {WS_YF}
    buffer_load_dwordx4 v[2:5], v0, {WS}, s88 offen sc1
    buffer_load_dwordx4 v[10:13], v0, {WS}, s88 offen offset:16 sc1
    buffer_load_dwordx4 v[14:17], v0, {WS}, s88 offen offset:512 sc1
    buffer_load_dwordx4 v[18:21], v0, {WS}, s88 offen offset:528 sc1
    s_waitcnt vmcnt(0)
    s_setpc_b64 s[36:37]
    """)
    return out
def y_stubs(ret, ht):
    adr = f"""
    v_lshrrev_b32 v11, 7, v7
    v_mul_u32_u24 v11, {FSTR}, v11
    v_and_b32 v12, 0x70, v7
    v_lshl_add_u32 v11, v12, 3, v11
    s_mov_b32 s64, {WS_FL + 1024 * ht}
    s_mov_b32 s65, {WS_FL + 8 * FSTR + 1024 * ht}
    """
    ld = f"buffer_load_dword a128, v11, {WS}, s64 offen sc1\nbuffer_load_dword a129, v11, {WS}, s65 offen sc1"
    un = f"s_lshl_b32 s66, s{sH}, 1\ns_add_u32 s66, s66, s{sWAVE}\ns_sub_u32 s66, s66, 2"
    out = L(f"""
    L_y2:
    {adr}
    {ld}
    s_branch {ret}
    s_waitcnt vmcnt(0)
    L_y3:
    s_mov_b32 s91, {SPIN_MAX}
    L_y3c:
    v_accvgpr_read_b32 v12, a128
    v_accvgpr_read_b32 v13, a129
    v_min_u32 v12, v12, v13
    v_cmp_gt_u32 vcc, 2, v12
    s_sub_u32 s91, s91, 1
    s_cbranch_scc1 L_y3x
    s_cbranch_vccz L_y3x
    {adr}
    {ld}
    s_waitcnt vmcnt(0)
    s_branch L_y3c
    L_y3x:
    {un}
    s_cmp_lt_u32 s66, 14
    s_cselect_b32 s64, 8, 12
    s_add_u32 s64, s64, {WS_SEL}
    buffer_load_dword a130, off, {WS}, s64 sc1
    v_lshrrev_b32 v11, 7, v7
    v_mul_u32_u24 v11, 3584, v11
    v_and_b32 v12, 0x70, v7
    v_add_u32 v11, v12, v11
    s_lshl_b32 s65, s66, 7
    s_add_u32 s65, s65, {WS_Y}
    """)
    for n in range(14):
        out += L(f"buffer_load_dwordx4 a[{132+4*n}:{135+4*n}], v11, {WS}, s65 offen sc1\ns_add_u32 s65, s65, {8 * 3584}")
    out += L(f"s_branch {ret}\ns_waitcnt vmcnt(0)\nL_y4:")
    acc = [12 + e for e in range(4)]
    out += [I(f"v_accvgpr_read_b32 v{a}, a{132 + e}") for e, a in enumerate(acc)]
    for n in range(1, 14):
        for h in range(2):
            out += [I(f"v_accvgpr_read_b32 v{16 + e}, a{132 + 4 * n + 2 * h + e}") for e in range(2)] + [I(f"v_add_f32 v{12 + 2 * h + e}, v{16 + e}, v{12 + 2 * h + e}") for e in range(2)]
    out += [I(f"v_add_f32 v{a}, v{a}, v{a} row_ror:8 row_mask:0xf bank_mask:0xf") for a in acc]
    for sw in ("v_permlane16_swap_b32", "v_permlane32_swap_b32"):
        for a in acc: out += L(f"v_mov_b32 v11, v{a}\n{sw} v11, v{a}\nv_add_f32 v{a}, v11, v{a}")
    out += L("v_accvgpr_read_b32 v16, a130")
    for rep in range(2):
        for p in (12, 14):
            out += L(f"v_cvt_pk_bf16_f32 v11, v{p}, v{p+1}\nv_lshlrev_b32 v{p}, 16, v11\nv_and_b32 v{p+1}, 0xffff0000, v11")
        if rep == 0: out += [I(f"v_mul_f32 v{a}, v16, v{a}") for a in acc]
    out += L(f"""
    {un}
    s_lshl_b32 s65, s66, 7
    s_add_u32 s65, s65, {WS_YF}
    s_mov_b64 exec, 0xff
    buffer_store_dwordx4 v[12:15], v7, {WS}, s65 offen sc1
    s_mov_b64 exec, -1
    s_nop 1
    s_branch {ret}
    L_y5:
    {un}
    s_lshl_b32 s66, s66, 2
    s_add_u32 s66, s66, {WS_FH + 512}
    v_mov_b32 v11, 1
    s_mov_b64 exec, 1
    buffer_store_dword v11, off, {WS}, s66 sc1
    s_mov_b64 exec, -1
    s_branch {ret}
    """)
    return out
```

```python
import sys, re
from att5 import *
import warm, ldscheck, att, att5, kvq, kv5, side, side5, hw, asmlib
from kv5 import K, QR, QPhase, kacc
opt = dict(stamp="0", v="1", thr=str(2.0 ** 24), low=str(2.0 ** -24), fine="0", no="18", hpad="0", vpad="0", opad="0", kvonly="0", xl="0040", nr="8", noadd="0", tl="1", nochk="0", rd="0", rdg="60", ct0="13", wn="2,3,4,5", wh1="6,7", wh2="8,9,10,11", pg="50", sent="0", half="1", mkg="40,60", dbg="-", r3w="0", rfive="0", relay="0", tR="4", rq="8,0,12,12,8,8,8", rh="8,8,8,8,8", rw="0", w8="0", fl_="", hmap="0", tH="-", tHg="90", hnt="nt", ne="6", efg="52", idle="", lc="0", n4="8", share="0", pv2="6", nrm="0", pv1="4", tidy="1", pk="12", olo="2", d3w="4", five="1", tlb="-", kvd="6", warm="a", na="8", te1="6:5:13", ip="", ipd="2048", dr="3,44,51,108,0", twg="80", us="", wi="", rt="1", ht="0", xr="100", nost="0",
           tg="113", tcq="99", tc="", tQ="6", lag="2", lag2="11", lagv="8", ke="27", q0="3333334444444555@99:55556666666777@211:7777", qsep="5", tX="", tW="1,2,3,4", kw="3,3,2", sw="34,60", dh="30,30,30", l2="4", qf="176", qd="0,0,0,0,14", qk="4444", qv="4400", qp="36,140,240,380", ssep="6", n15="8,8",
           fl="200", fc="240", fv="395", s15="12,90", sq="2,400", sqv="200", vq="0,0", vp="3,3,3,4,3", l1="20", pfg="30", wq="8,0,12,16,8,8", wh="8,4,16,16,12", tw="9", odh="45", fpl="20", fpc="0", pl="56")
for a in sys.argv[1:]:
    k, v = a.split("="); assert k in opt, k; opt[k] = v
STAMP = opt["stamp"] in "12"; LIGHT = opt["stamp"] == "2"
ints = lambda k: [int(x) for x in opt[k].split(",")]
kv5.DR[:] = ints("dr")
asmlib.TIDY = opt["tidy"] == "1"
pairs = lambda k: [tuple(int(y) for y in x.split(':')) for x in opt[k].split(',') if x]
asmlib.SHARE = {"0": (), "1": ("dma", "vld"), "2": ("dma", "vld", "vst")}[opt["share"]]
side5.NE = int(opt["ne"])
side5.FINE = "9" in opt["fine"]
side5.PK = int(opt["pk"])
hw.HNT = opt["hnt"]
RELAY = att5.RELAY = opt["relay"] == "1"; side5.NAT = not RELAY
if RELAY: opt["tW"] = ""
side.NTT = ""; side.RNT = ""
X.update(wide=1, ls=1, r3=0, r3x='-')
sMODE, sH, sJ, sVD, sSTK, sFL = 40, 41, 42, 43, 44, 45
sKV, sMLD, sNC = 45, 39, 35
NO = int(opt['no']); assert NO % 2 == 0
JH = NO // 2
aST = 250
SENT = opt['sent'] == '1'; HALF = opt['half'] == '1'
RW = opt['rw'] == '1'
JY = 7 if NO == 16 else 6; TY = JY - 5
WARM = opt['warm'] != '0'
def wev(key, names):
    return warm.event(A.sWAVE, warm.spread(names)) if WARM and key in opt['warm'] else []
wsite = lambda n: warm.site(n) if WARM else []
OOB = side.OOB
def stamp(t=16, force=False):
    if not STAMP or (LIGHT and not force): return []
    return L(f"""s_memrealtime s[36:37]
    s_memtime s[98:99]
    v_accvgpr_read_b32 v{t}, a{aST}
    v_accvgpr_read_b32 v{t+1}, a{aST+1}
    s_mov_b32 s100, m0
    s_mov_b32 m0, s{sSTK}
    s_waitcnt lgkmcnt(0)
    v_writelane_b32 v{t}, s98, m0
    v_writelane_b32 v{t+1}, s36, m0
    s_add_u32 s{sSTK}, s{sSTK}, 1
    s_mov_b32 m0, s100
    v_accvgpr_write_b32 a{aST}, v{t}
    v_accvgpr_write_b32 a{aST+1}, v{t+1}""")
def stampa():
    if not STAMP or LIGHT: return []
    o = L("s_cselect_b32 s101, 1, 0\nv_accvgpr_write_b32 a252, v10\nv_accvgpr_write_b32 a253, v11") + stamp(10) + L("v_accvgpr_read_b32 v10, a252\nv_accvgpr_read_b32 v11, a253\ns_cmp_lg_u32 s101, 0")
    for i in o: i.extra["ghost"] = True
    return o
fs = lambda c: stampa() if c in opt['fine'] else []
def stamp0(t=26):
    if not STAMP: return []
    return L(f"""s_waitcnt lgkmcnt(0)
    v_mov_b32 v{t}, 0
    v_mov_b32 v{t+1}, 0
    v_writelane_b32 v{t}, s38, 0
    v_writelane_b32 v{t+1}, s46, 0
    s_mov_b32 s{sSTK}, 1
    v_accvgpr_write_b32 a254, v{t}
    v_accvgpr_write_b32 a{aST}, v{t}
    v_accvgpr_write_b32 a{aST+1}, v{t+1}""")
def fin():
    if not STAMP: return []
    return L("s_mov_b64 exec, -1\ns_waitcnt vmcnt(0) lgkmcnt(0)") + stamp(30, True) + L(f"""
        s_lshl_b32 s29, s2, 2
        s_add_u32 s29, s29, s{A.sWAVE}
        s_lshl_b32 s29, s29, 9
        s_add_u32 s29, s29, {WS_STAMP}
        v_lshrrev_b32 v10, 1, v{A.vL16}
        buffer_store_dwordx2 a[{aST}:{aST+1}], v10, {WSR}, s29 offen
        s_add_u32 s29, s29, {1 << 20}
        buffer_store_dword a254, v10, {WSR}, s29 offen
        """)
def dbg_out():
    if opt['dbg'] == '-': return []
    return L(f"""
    s_load_dwordx2 s[4:5], s[0:1], {A_DBG}
    v_accvgpr_read_b32 v11, a{aST+1}
    v_lshrrev_b32 v12, 4, v{A.vL16}
    v_not_b32 v13, v11
    v_cmp_eq_u32 vcc, 0, v12
    v_mov_b32 v14, s36
    s_nop 0
    v_cndmask_b32 v11, v11, v13, vcc
    v_cmp_eq_u32 vcc, 15, v12
    s_nop 1
    v_cndmask_b32 v11, v11, v14, vcc
    v_lshlrev_b32 v12, 2, v12
    s_waitcnt lgkmcnt(0)
    {srd(12, 4, 64)}
    s_cmp_eq_u32 s{sJ}, {opt['dbg']}
    s_cselect_b32 exec_lo, 0xffff, 0
    s_or_b32 exec_lo, exec_lo, 0x8001
    s_mov_b32 exec_hi, 0
    buffer_atomic_umax v11, v12, s[12:15], 0 offen
    """)
EXIT = lambda: fin() + dbg_out() + L("s_endpgm")

def entry(c):
    c.block("entry", f"""
    s_cmp_lt_u32 s2, 256
    s_cbranch_scc1 L_go
    s_endpgm
    L_go:
    {"s_memrealtime s[46:47]" + chr(10) + "s_memtime s[38:39]" if STAMP else ""}
    s_load_dwordx8 s[80:87], s[0:1], {A_X}
    s_load_dwordx4 s[88:91], s[0:1], {A_WUV}
    s_getpc_b64 s[76:77]
    L_pc0:
    s_lshr_b32 s{sJ}, s2, 3
    s_mov_b32 s79, 0x20000
    s_lshl_b32 s67, s{sJ}, 13
    s_mov_b32 s78, L_code_end-L_pc0
    s_and_b32 s77, s77, 0xffff
    v_lshl_add_u32 v31, v0, 5, s67
    """, side.touch(31, 76, 0, nt=False), f"""
    v_lshrrev_b32 v24, 6, v0
    v_and_b32 v0, 63, v0
    s_and_b32 s{sH}, s2, 7
    v_readfirstlane_b32 s{K.sWAVE}, v24
    s_lshr_b32 s64, s2, 7
    v_and_b32 v24, 15, v0
    v_lshrrev_b32 v25, 4, v0
    s_lshl_b32 s64, s64, 3
    s_add_u32 s{sH}, s{sH}, s64
    s_and_b32 s{sJ}, s{sJ}, 15
    s_lshr_b32 s{sKV}, s{sJ}, 3
    v_lshlrev_b32 v28, 1, v25
    v_xor_b32 v28, v28, v24
    v_and_b32 v29, 8, v28
    v_and_b32 v28, 7, v28
    v_lshlrev_b32 v28, 4, v28
    v_lshl_add_u32 v28, v29, 5, v28
    v_lshl_add_u32 v28, v25, 13, v28
    s_lshl_b32 s64, s{K.sWAVE}, 17
    v_add_u32 v{K.vWD}, s64, v28
    v_xor_b32 v28, 0x100, v{K.vWD}
    v_add_u32 v{K.vWD+1}, {4*8192 - 1024}, v{K.vWD}
    v_add_u32 v{K.vWD+2}, {8*8192 - 2048}, v28
    v_add_u32 v{K.vWD+3}, {12*8192 - 3072}, v28
    s_and_b32 s65, s{K.sWAVE}, 1
    s_lshr_b32 s66, s{K.sWAVE}, 1
    v_and_b32 v29, 7, v0
    v_xor_b32 v28, v25, v29
    v_lshlrev_b32 v28, 4, v28
    v_lshrrev_b32 v29, 3, v0
    v_lshl_add_u32 v30, v29, 11, v28
    s_lshl_b32 s64, s66, 19
    s_lshl_b32 s67, s65, 21
    s_add_u32 s64, s64, s67
    v_add_u32 v{K.vCD}, s64, v30
    v_xor_b32 v30, 64, v{K.vCD}
    v_add_u32 v{K.vCD+2}, {16*2048 - 2048}, v{K.vCD}
    v_add_u32 v{K.vCD+1}, {8*2048 - 1024}, v30
    v_add_u32 v{K.vCD+3}, {24*2048 - 3072}, v30
    s_mov_b32 s{K.sWOFF}, 0
    s_mov_b32 s{K.sCOFF}, 0
    s_lshl_b32 s{K.sM0W}, s{K.sWAVE}, 12
    s_add_u32 s{K.sM0C}, s{K.sM0W}, 65536
    s_lshl_b32 s74, s{sH}, 9
    s_sub_u32 s{K.S_W+2}, {1024*8192}, s74
    s_mov_b32 s{K.S_W+3}, 0x20000
    s_and_b32 s64, s{sJ}, 7
    s_lshl_b32 s64, s64, 16
    s_sub_u32 s{K.S_C+2}, {2048*2048}, s64
    s_mov_b32 s{K.S_C+3}, 0x20000
    s_cmp_eq_u32 s{sKV}, 0
    s_cselect_b32 s72, s86, s88
    s_cselect_b32 s73, s87, s89
    s_add_u32 s{K.S_W}, s72, s74
    s_addc_u32 s73, s73, 0
    s_and_b32 s{K.S_W+1}, s73, 0xffff
    s_add_u32 s{K.S_C}, s82, s64
    s_addc_u32 s73, s83, 0
    s_and_b32 s{K.S_C+1}, s73, 0xffff
    """, kv5.unit_w(0), kv5.unit_c(0), kv5.unit_w(1), f"""
    s_load_dwordx2 s[92:93], s[0:1], {A_WR}
    s_load_dwordx2 s[94:95], s[0:1], {A_GW}
    s_load_dwordx4 s[4:7], s[0:1], {A_DBG}
    """, stamp0(28), stamp(28), f"v_lshlrev_b32 v{K.vST}, 4, v0", kvq.addr_rd(), f"""
    {srd(K.S_X, 80, 2048*896)}
    {srd(60, 92, 896)}
    {srd(68, 94, 896)}
    s_lshl_b32 s95, s{K.sWAVE}, 11
    s_lshr_b32 s64, s2, 3
    s_lshl_b32 s64, s64, 13
    s_add_u32 s95, s95, s64
    {srd(K.S_WS, 6, 1 << 28)}
    {srd(K.S_DBG, 4, 256)}
    s_add_u32 s72, s84, s74
    s_addc_u32 s73, s85, 0
    s_sub_u32 s75, {448*8192}, s74
    {srd(K.S_WQ, 72, "s75")}
    s_mul_i32 s{K.sXOFF}, s{sJ}, {128*896}
    s_mov_b32 s{K.sSC}, {hex(f2u(LOG2E_16))}
    s_mul_i32 s72, s{sKV}, {WS_V}
    s_mul_i32 s73, s{sH}, {HS}
    s_add_u32 s72, s72, s73
    s_bfe_u32 s64, s{sJ}, 0x20001
    s_lshl_b32 s64, s64, 15
    s_add_u32 s72, s72, s64
    s_lshl_b32 s64, s66, 17
    s_add_u32 s72, s72, s64
    s_and_b32 s67, s{sJ}, 1
    s_cmp_eq_u32 s{sKV}, 0
    s_cselect_b32 s64, 12, 14
    s_cselect_b32 s75, 14, 10
    s_lshl_b32 s67, s67, s75
    s_add_u32 s72, s72, s67
    s_lshl_b32 s64, s65, s64
    s_add_u32 s{K.sOOFF}, s72, s64
    """, side.h_touch_srd(), f"s_load_dwordx2 s[96:97], s[0:1], {A_OUT}", f"s_cmp_eq_u32 s{sKV}, 0\ns_cbranch_scc0 L_kv1" + ("\ns_branch L_kv0" if WARM else ""))

FL_LOAD = lambda: I(f"buffer_load_dword v{A.vRL}, v9, {WSR}, s46 offen sc1")
FP_LOAD = lambda: I(f"buffer_load_dword v{A.vRL + 1}, off, {WSR}, s47 sc1")
def level(val, t): return L(f"v_mov_b32 v{t}, {val}") + [side.flag_store(sFL, A.vF0, t)]
def lcheck(val, n): return L(f"v_cmp_gt_u32 vcc, {val}, v{A.vRL}\ns_cbranch_vccnz L_ls{n}\nL_lr{n}:")
LSPIN = {}; WSPIN = {}
PBASE = lambda: L(f"""
    s_lshl_b32 s86, s{A.sWAVE}, 14
    s_add_u32 s86, s86, s{A.sPO}
    s_add_u32 s87, s86, 4096
    s_add_u32 s88, s86, 8192
    s_add_u32 s89, s86, 12288
    s_lshl_b32 s90, s{A.sWAVE}, 10
    s_add_u32 s90, s90, s{A.sPO}
    s_add_u32 s90, s90, 65536
    """)

class KVStore:
    def __init__(self, vt):
        self.prs = kv5.kv_pairs(vt); self.reg = {}; self.src = {}
    def st(self, n, tag, reg=None, newpage=True):
        off = self.prs[n][2]
        s = I(f"buffer_store_dwordx4 {reg or self.reg[n]}, v{K.vST}, {WSR}, s3 offen offset:{off & 0xfff} sc1", tag=tag)
        if not reg: dep(s, *self.src[n])
        if opt['nost'] == '1': return []
        if opt['nost'] == '2': s.text = s.text.replace(" sc1", "")
        return ([I(f"s_add_u32 s3, s{K.sOOFF}, {off & ~0xfff}")] if newpage else []) + [s]
    def many(self, ns, tag, regf=None):
        out = []; cur = None
        for n in ns:
            pg = self.prs[n][2] >> 12
            out += self.st(n, tag(n) if callable(tag) else tag, regf(n) if regf else None, pg != cur); cur = pg
        return out

def win_qk1(vslot, v4, stub, extra=lambda s: None, tags=(), post=()):
    g = Gaps(qk_mfmas(1, C0))
    tile_reads(g, lambda b: rd_batch(KSLOT[1], b), rd_batch(vslot, 0, v4), [("T", vslot)] + list(tags))
    s = Sched(g).add(dma_flat(KSLOT[0], A.sK) + adv_k(), 1, ints('dh')[1])
    if post: s.add(post, 48, 52, asap=True)
    s.add([I(f"v_mov_b32 v{r}, 0") for r in [A.vLS, A.vLS + 1] + list(range(A.vNM, A.vNM + 8))] + [By(56)], 4, 50)
    extra(s); s.run()
    put_tail(g, sched_sm(g, softmax_groups(0, 1), 0, 54), check_first(f"L_st{stub}"))
    return g.flat() + L(f"L_rt{stub}:"), None
def win_pv0(vslot, v4, extra=lambda s: None, tags=(), post=()):
    g = Gaps(pv_mfmas(0, zero=True))
    tile_reads(g, lambda b: rd_batch(vslot, b, v4), rd_batch(KSLOT[0], 0), [("T", KSLOT[0])] + list(tags))
    s = Sched(g).add(dma_flat(KSLOT[1], A.sK) + adv_k(), 1, ints('dh')[2])
    if post: s.add(post, 48, 52, asap=True)
    extra(s); s.run()
    sched_sm(g, softmax_groups(1, 0), 0, 60, add_l(0))
    return g.flat()
def win_qk(b, stub, extra=lambda s: None, tags=(), post=()):
    g = Gaps(qk_mfmas(1 - b, lambda kb, qb: NMq(qb)))
    tile_reads(g, lambda n: rd_batch(KSLOT[1 - b], n), rd_batch(VSLOT[b], 0), [("T", VSLOT[b])] + list(tags))
    s = Sched(g).add(dma_flat(VSLOT[1 - b], A.sV) + adv_v(), 1, ints('dh')[2])
    if post: s.add(post, 48, 52, asap=True)
    extra(s); s.run()
    put_tail(g, sched_sm(g, softmax_groups(b, 1), 0, 56), check(b, f"L_st{stub}"))
    return g.flat() + L(f"L_rt{stub}:")
def win_pv(b, extra=lambda s: None, tags=(), post=()):
    g = Gaps(pv_mfmas(b))
    tile_reads(g, lambda n: rd_batch(VSLOT[b], n), rd_batch(KSLOT[b], 0), [("T", KSLOT[b])] + list(tags))
    s = Sched(g).add(dma_flat(KSLOT[1 - b], A.sK) + adv_k(), 1, ints('dh')[2])
    if post: s.add(post, 48, 52, asap=True)
    extra(s); s.run()
    sched_sm(g, softmax_groups(1 - b, 0), 0, 60, add_l(b))
    return g.flat()
HELPER_K = lambda: L(f"""
    s_mul_i32 s{A.sK}, s{sH}, {HS}
    s_add_u32 s{A.sK}, s{A.sK}, {NO * 32768}
    s_lshl_b32 s84, s{sJ}, 1
    s_sub_u32 s{A.sKcnt}, {30 - NO - 1}, s84
    {f's_lshl_b32 s{A.sKn1}, s{sH}, 18' + chr(10) + f's_add_u32 s{A.sKn1}, s{A.sKn1}, {WS_WO}' if RELAY else f's_mov_b32 s{A.sKn1}, {OOB}'}
    """)

def r5_loads():
    o = side.r4_loads()
    for i in o:
        m = re.match(r"buffer_load_dwordx4 v\[(\d+):", i.text)
        if m: i.text = i.text.replace(f"v[{m.group(1)}:{int(m.group(1)) + 3}]", f"a[{int(m.group(1)) + 136}:{int(m.group(1)) + 139}]"); i.parse()
    return o
def r5_compute():
    out = [I(f"v_mov_b32 v{16+r}, 0") for r in range(8)]
    for w in range(4):
        out += L(f"v_accvgpr_read_b32 v28, a{192+w}\nv_accvgpr_read_b32 v29, a{196+w}")
        for r in (0, 2):
            out += L(f"""v_accvgpr_read_b32 v30, a{176+4*r+w}
            v_accvgpr_read_b32 v31, a{180+4*r+w}
            v_dot2c_f32_bf16 v{16+r}, v30, v28
            v_dot2c_f32_bf16 v{20+r}, v30, v29
            v_dot2c_f32_bf16 v{17+r}, v31, v28
            v_dot2c_f32_bf16 v{21+r}, v31, v29""")
    tail = side.r4_compute()[40:]
    for i in tail:
        i.text = re.sub(r"v(\d+)", lambda m: "v%d" % ({80: 28, 81: 29, 82: 30}.get(int(m.group(1)), int(m.group(1)) - 56) if int(m.group(1)) >= 72 else int(m.group(1))), i.text); i.parse()
    return out + [2] + tail
def act5():
    o = hw.s7_act()
    k = [n for n, i in enumerate(o) if not isinstance(i, int) and i.text.startswith("s_or_b32 s64, s86")][0]
    o[k] = I(f"s_or_b32 s64, s31, s{K.sWAVE}")
    k = [n for n, i in enumerate(o) if not isinstance(i, int) and i.text.startswith("s_mov_b32 s64, %d" % WS_SEL)][0]
    o[k:k + 1] = L(f"s_lshl_b32 s64, s{sH}, 7\ns_add_u32 s64, s64, {WS_SEL}")
    return o
def down5():
    pre = hw.s8_down()[0]
    ms = []
    for m in range(7):
        b = 16 + 2 * (m & 1); nb = 16 + 2 * (1 - (m & 1))
        ms.append([I(f"v_mfma_f32_16x16x16_bf16 a[192:195], a[{176+2*m}:{177+2*m}], v[{b}:{b+1}], {'a[192:195]' if m else '0'}")] +
                  ([I(f"v_mov_b32 v{nb + e}, v{b + e} row_shr:2 row_mask:0xf bank_mask:0xf bound_ctrl:0") for e in range(2)] if m < 6 else []))
    adr = L(f"""
    v_and_b32 v29, 1, v0
    v_mul_u32_u24 v30, 1792, v29
    v_lshrrev_b32 v31, 4, v0
    v_lshl_add_u32 v30, v31, 4, v30
    v_bfe_u32 v29, v0, 1, 3
    v_lshl_add_u32 v30, v29, 6, v30
    v_add_u32 v29, 1, v29
    v_lshrrev_b32 v29, 3, v29
    v_lshl_or_b32 v30, v29, 29, v30
    v_or_b32 v30, s{hw.sMK}, v30
    s_mul_i32 s89, s{hw.sFS}, 3584
    s_mul_i32 s64, s{K.sWAVE}, 448
    s_add_u32 s89, s89, s64
    s_add_u32 s89, s89, {WS_Y}
    buffer_store_dwordx4 a[192:195], v30, {WSR}, s89 offen sc1
    """)
    return pre, ms, adr
def front(c, vt):
    frags = [kvq.rd_c(0, 0, 0, 0), kvq.rd_c(0, 0, 0, 1)] + kv5.rd_w_unit(0, 0, 0) + kv5.rd_w_unit(0, 1, 1)
    rt, ht = int(opt['rt']) == vt, int(opt['ht']) == vt
    side.sJ = hw.sJ = 31; rl = (r5_loads() if RW else side.r4_loads()) if rt else []; side.sJ = sJ
    RD = int(opt['rd']) if RW else 0
    rl_late = rl if RD else []
    if RD: rl = []
    out = L(f"s_and_b32 s31, s{sJ}, 7") + (side.z_store()[:-3] + rl + side.z_store()[-3:] if vt == 0 else rl) + kv5.unit_w(2) + kv5.unit_c(1)
    out += wev('a', [f"kv{vt}{p}" for p in range(1, min(1 + int(opt["na"]), 12 + vt))])
    out += [WAITV([("W", 1), ("C", 0), ("W", 0)], lgkm0=True), I("s_barrier")] + stamp(26) + frags
    if rt and not RW: out += side.r4_compute()
    out += [NEED(R("a", kv5.wfrag(0, 0, 0), 8), R("a", 160, 8))]
    tQ = int(opt["tQ"])
    xl = {}; uq = {u: 0 for u in range(8)}
    def items(spec, sep=0):
        o = []
        for n, seg in enumerate(spec.split("@")):
            if n:
                k, seg = seg.split(":"); o.append(At(int(k)))
            for ch in seg:
                if ch in 'abcdefg': o += kv5.x_dma(ord(ch) - 97)
                elif ch in 'ABCDEFG': o += kv5.x_read(ord(ch) - 65, xl)
                else:
                    u = int(ch); d = kv5.wq_dma(u, uq[u]); uq[u] += 1
                    o += [Sep(max(sep - 2, 0))] + d
        return o
    for t in range(15):
        dma = kv5.kv_dma(t)
        if ht and t == 2:
            hpre, uns = hw.s1_weights()
            if opt['hmap'] == '1':
                k = [n for n, i in enumerate(hpre) if i.text.startswith(f"s_mul_i32 s{hw.sLD},")][0]
                hpre = L(f"""s_and_b32 s64, s{sH}, 7
                s_min_u32 s65, s64, 4
                s_mul_i32 s{hw.sFS}, s64, 12
                s_lshl_b32 s65, s65, 2
                s_add_u32 s{hw.sFS}, s{hw.sFS}, s65
                s_and_b32 s65, s{sH}, 8
                s_add_u32 s65, s65, s31
                s_add_u32 s{hw.sFS}, s{hw.sFS}, s65
                s_and_b32 s64, s64, 4
                s_sub_u32 s64, 15, s64
                s_sub_u32 s64, s64, s65
                s_and_b32 s{hw.sMK}, s64, {OOB}
                s_min_u32 s{hw.sFS}, s{hw.sFS}, 111""") + hpre[k:]
        if ht and 3 <= t <= 6: dma[1] = dma[1] + uns[2 * (t - 3):2 * (t - 2)]
        if ht and t == 10:
            dpre, un = hw.s6_down_dma(); dma[1] = dma[1] + [un]
        tR = int(opt['tR'])
        if RELAY and not ht:
            if t == tR:
                side.sJ = 31; wpre, wun = side.wo2_dma(); wrd = side.wo2_reads(); side.sJ = sJ
            if t in (tR, tR + 1): dma[1] = dma[1] + [wun[t - tR]]
        late = t >= 12
        g = kv5.kv_tile(t, vt, [dma[0] if t == 12 else [], []] if late else dma)
        def fit(ins, k, pace=0):
            k, left = kvq.seq_fit(g, ins, k, pace); assert not left, (t, len(left)); return k
        def mm(ms, k):
            k |= 1
            for m in ms: g.put(k, m)
            return k
        tch = []
        if t == 12: xs_at = fit(kv5.x_setup(), 1) + 1; assert xs_at < 40
        if t in ints('tcq'): tch += side.c_touch(32, ints('tcq').index(t) + 1)
        if t == 0: fit(L("v_lshlrev_b32 v26, 7, v0\nv_and_b32 v27, 48, v0\nv_lshl_add_u32 v26, v27, 24, v26"), 50)
        if t == RD - 1 and rt and RD:
            for i in rl_late: i.text = i.text.replace("v32", "v27"); i.parse()
            fit(rl_late, int(opt['rdg']), 2)
        if t == 1 + RD and rt and RW: assert fit(r5_compute(), 2) < 108
        if t == 1 and vt == 0: fit(side.z_signal(), 112)
        if t == 2 + RD and rt: KS_AT = fit(side.rg4_store(), 4, 1); assert KS_AT < 42
        if t == 8 and "ab"[vt] in opt['idle']: out += L("s_sleep 32")
        if t == 3: fit(side.z_load(), 50)
        if t == 4:
            k = fit(side.z_check(vt), 112)
            if rt: fit(side.key4_store(), k + 1)
        if t == 5 and not RELAY: fit(L(f"""s_mul_i32 s64, s{sH}, {256 * 896}
            s_add_u32 s72, s90, s64
            s_addc_u32 s73, s91, 0
            s_sub_u32 s75, {4096 * 896}, s64
            {srd(S_WO, 72, "s75")}"""), 4)
        if RELAY and not ht:
            if t == tR: assert fit(L(srd(60, 90, 4096 * 896)) + wpre, 30) < 80
            if t == tR + 2: g.sc[110][0].tag = g.sc[110][0].tag + ["WO"]
            if t == tR + 3: assert fit(wrd, 2, 2) < 108
            if t in (tR + 4, tR + 5, tR + 6): fit([x for s_ in side.wo2_stores()[{0: 0, 1: 3, 2: 5}[t - tR - 4]:{0: 3, 1: 5, 2: 7}[t - tR - 4]] for x in s_ + [24]], 20)
        if not ht:
            pre_, tl = side.q_touch3(K.S_WQ)
            if t == tQ: fit(pre_, 60)
            if 0 <= t - tQ < len(tl): tch += tl[t - tQ]
        else:
            if t == 2: fit(hpre, 42)
            if t == 6: fit(hw.s2_keys(), 64)
            if t == 7: assert fit(hw.s3_top2(), 10, 1) < 108
            if t == 8: fit(hw.s4_sel(), 4, 1)
            if t == 9:
                (r0, m0), (r1, m1) = hw.s5_gemm()
                k = fit([WAITV("HW")] + r0, 50); k = mm(m0, max(k + 6, 78)); k = fit(r1, k + 1); mm(m1, max(k + 6, 110))
            if t == 10: assert fit(dpre, 4) < 44
            if t == 11: fit(act5(), 2, 1)
            if t == 12:
                pre, ms, yadr = down5()
                k = fit(pre, xs_at)
                for m in ms: k = mm([m[0]], k + 2); k = fit(m[1:], k + 1)
                fit(yadr, k + 1)
        thin = lambda srd_, so: [side.touch(26, srd_, f"s{so}", nt=False)] + L(f"s_add_u32 s{so}, s{so}, 2048")
        if str(t) == opt['tH']:
            fit(L(f"""s_lshl_b32 s26, s2, 2
            s_add_u32 s26, s26, s{K.sWAVE}
            s_sub_u32 s25, s26, 448
            s_cselect_b32 s25, s26, s25
            s_cselect_b64 s[72:73], s[80:81], s[82:83]
            s_mul_i32 s25, s25, 3584
            {srd(32, 72, 448 * 3584)}
            v_lshlrev_b32 v27, 7, v0
            v_add_u32 v28, 4, v0
            v_lshrrev_b32 v28, 5, v28
            v_lshl_or_b32 v27, v28, 29, v27""") + [side.touch(27, 32, "s25", nt=False)], int(opt['tHg']))
        if str(t) == opt['tlb'][0]:
            tl_ = L(f"v_lshlrev_b32 v27, 21, v0\nv_min_u32 v28, 2, v0\nv_lshrrev_b32 v28, 1, v28\nv_lshl_or_b32 v27, v28, 29, v27")
            if 'x' in opt['tlb']: tl_ += [side.touch(27, K.S_X, f"s{K.sXOFF}", nt=False)]
            if 'q' in opt['tlb']: tl_ += [side.touch(27, K.S_WQ, 0, nt=False)]
            if 'k' in opt['tlb']: tl_ += L(f"s_mul_i32 s26, s{sH}, {HS}\nv_lshlrev_b32 v27, 24, v0\nv_min_u32 v28, 3, v0\nv_add_u32 v28, 1, v28\nv_lshrrev_b32 v28, 2, v28\nv_lshl_or_b32 v27, v28, 29, v27") + [side.touch(27, K.S_WS, "s26", nt=False)]
            fit(tl_, 60)
        xt = [int(x) for x in opt['tX'].split(",") if x]
        if xt and t == xt[0] // 2:
            assert fit(L(f"""s_lshl_b32 s26, s{sJ}, 1
            s_lshr_b32 s27, s{sH}, 3
            s_add_u32 s26, s26, s27
            s_lshl_b32 s26, s26, 2
            s_add_u32 s26, s26, s{K.sWAVE}
            s_mul_i32 s26, s26, 14336"""), 20) < 46
        if 2 * t in xt: fit(thin(K.S_X, 26), 48)
        if 2 * t + 1 in xt: tch += thin(K.S_X, 26)
        wt = [int(x) for x in opt['tW'].split(",") if x]
        if wt and not ht:
            if t == wt[0]: fit(L(f"""s_and_b32 s27, s{sJ}, 7
                s_lshl_b32 s64, s{sH}, 3
                s_add_u32 s27, s27, s64
                s_lshl_b32 s27, s27, 2
                s_add_u32 s27, s27, s{K.sWAVE}
                s_mul_i32 s27, s27, 7168
                {srd(60, 90, 4096 * 896)}"""), 20)
            if t in wt: fit(thin(60, 27), int(opt['twg']))
        if str(t) in opt['tc'].split(','): tch += [side.touch(26, 76, 's95', nt=False)]
        if late:
            s = Sched(g); xr = int(opt['xr'])
            fl = lambda us: [i for u in us for i in u]
            if t == 12: s.add(items("a") + fl(dma[1]) + [By(110)], 49, 106, vmd=2)
            if t == 13:
                s.add(items("b") + fl(dma[0]) + [By(46)], 1, 42, vmd=2).add(items("c") + fl(dma[1]) + [At(72)] + items("0000") + [By(110)], 49, 106, vmd=2)
                s.add(kv5.q_setup() + [By(70)], 48, 68)
                s.add(items("A") + [By(44), At(xr)] + items("B") + [By(108)], xr - 64, 100, asap=True)
            if t == 14:
                s.add(items("d") + fl(dma[0]) + items("0001") + [By(46)], 1, 42, vmd=2).add(items("ef1111") + [By(110)], 49, 106, vmd=2)
                s.add(items("C") + [By(44), At(xr)] + items("D") + [By(108)], xr - 64, 100, asap=True)
                s.add(kv5.q_setup2(), 50, 80)
            s.run()
        fit(tch, int(opt['tg']) - (10 if len(tch) > 8 else 0))
        out += g.flat()
        for ev in opt['te1'].split(","):
            te, p0, p1 = [int(x) for x in ev.split(":")]
            if t == te: out += wev('b', [f"kv{vt}{p}" for p in range(p0, min(p1, 12 + vt))])
        if t in (0, 1, 11, 14) or '1' in opt['fine']: out += stampa()
    g = kv5.kv_tile(15, vt, [[], []], endtags=[("U", 0), ("U", 1)])
    ks = KVStore(vt)
    lastw = {}
    for m in g.m:
        for r in m.writes: lastw[r] = m
    done_at = lambda n: max(p[0] * 16 + p[1] * 2 + 1 for p in ks.prs[n][:2]) + 4
    packs = {}
    for n, (ta, tb, off) in enumerate(ks.prs):
        ins, reg = kvq.pack(kacc(*ta), kacc(*tb), K.vT + (4 * (n & 1) if vt else 0))
        seen = set()
        for i in ins:
            for r in i.reads:
                if r in lastw and r not in seen: i.extra.setdefault("raw", {})[r] = lastw[r]
            seen |= set(i.writes)
        packs[n] = ins; ks.reg[n] = R("v", reg, 4); ks.src[n] = ins[-4:]
    qp = QPhase([32 + 4 * f for f in range(7)], [kacc(y, x)[1] for y in (3, 5) for x in range(8)] if vt else [kacc(y, x)[1] for y in (2, 3, 4, 5) for x in (1, 3, 5, 7)])
    qp.place_reads(g, 0, 112)
    g.put_s(127, qp.need(0, 0, 4))
    s = Sched(g)
    lo, hi = ints('s15'); st1 = []; cur = None
    for n in range(8):
        pg = ks.prs[n][2] >> 12
        st1 += [At(max(done_at(n), lo + n * (hi - lo) // 8 - 6))] + packs[n] + ks.st(n, "KV1", newpage=pg != cur); cur = pg
    s.add(st1 + [By(110)], 0, hi, asap=True)
    s.add(items("g112222") + [By(46)], 1, 42, vmd=2).add(items("2223"), 49, 90)
    s.add(items("E") + [At(50)] + items("F") + [At(96)] + items("G") + [By(106)], 30, 100, asap=True)
    s.add([x for n in range(8, 32) for x in [At(done_at(n))] + packs[n]], 0, 127, asap=True)
    left = s.run(spill=True); assert not any(left[:4]), left
    carry = left[4]
    if '6' in opt['fine']:
        for k in range(31, 127, 32): g.ve[k] += stampa()
    out += g.flat() + fs('2')
    g = Gaps(qp.mfmas(xl))
    LV = {1: [("U", 2), ("U", 3)], 2: [("U", 4), ("U", 5)], 3: [("U", 6), ("U", 7)], 4: [("T", KSLOT[0])]}
    l2 = int(opt['l2']) if vt else 3
    LV[l2] = LV[l2] + ["KV2"]
    g.put_s(2, qp.need(0, 4, 7))
    for n in range(32):
        if n < 31: qp.place_reads(g, n + 1, 14 * n)
        else: put_batch(g, rd_batch(KSLOT[0], 0), 14 * n); g.put_s(14 * n + 13, need_batch(0))
        if n % 8 == 6:
            g.put_s(14 * n + 12, WAITV(LV[n // 8 + 1], lgkm0=True)); g.put_s(14 * n + 13, I("s_barrier"))
        elif n < 31:
            g.put_s(14 * n + 13, qp.need(n + 1, 0, 4)); g.put_s(14 * n + 16, qp.need(n + 1, 4, 7))
    QB = lambda x: 112 * x - 14
    setup = kv5.q_bank(1) + side.lane0_wave0(A.vF0) + L(f"""
    v_min_u32 v9, 15, v0
    v_lshlrev_b32 v9, 7, v9
    s_sub_u32 s66, 15, s{sJ}
    s_max_u32 s67, s66, s{sJ}
    s_min_u32 s66, s66, s{sJ}
    s_mul_i32 s{A.sK}, s{sH}, {HS}
    s_lshl_b32 s64, s67, 16
    s_add_u32 s{A.sQ}, s{A.sK}, s64
    s_lshl_b32 s64, s{A.sWAVE}, 14
    s_add_u32 s{A.sQ}, s{A.sQ}, s64
    s_add_u32 s{A.sQ}, s{A.sQ}, {WS_Q}
    s_sub_u32 s64, s{sJ}, {JH + 1}
    s_and_b32 s{sNC}, s64, {OOB}
    v_or_b32 v6, s{sNC}, v{A.vL16}
    """) + [By(80)] + L(f"""
    s_lshl_b32 s{A.sM0}, s{A.sWAVE}, 13
    v_add_u32 v{A.vRD1}, 0x10000, v{A.vL16}
    v_add_u32 v{A.vDM0}, s{A.sM0}, v{A.vL16}
    v_add_u32 v{A.vDM1}, 0x1000, v{A.vDM0}
    s_lshl_b32 s64, s{sJ}, 16
    s_add_u32 s{A.sKn1}, s{A.sK}, s64
    s_add_u32 s{sVD}, s{A.sKn1}, {WS_V}
    s_add_u32 s{A.sV}, s{A.sK}, {WS_V}
    {f'''s_min_u32 s{A.sIT}, s{sJ}, {JH}
    s_lshl_b32 s{A.sKcnt}, s{A.sIT}, 1
    s_sub_u32 s{A.sKcnt}, s{A.sKcnt}, 1
    s_sub_u32 s{A.sIT}, s{A.sIT}, 2''' if vt else f'''s_mov_b32 s{A.sKcnt}, 0x7fff
    s_sub_u32 s{A.sIT}, s{sJ}, 1
    s_cmp_eq_u32 s{sJ}, 0
    s_cselect_b32 s64, 32768, 0
    s_add_u32 s{A.sV}, s{A.sV}, s64'''}
    s_mov_b32 s{A.sTHR}, {hex(f2u(float(opt['thr'])))}
    s_mov_b32 s{A.sLOW}, {hex(f2u(float(opt['low'])))}
    s_lshl_b32 s47, s66, 7
    s_add_u32 s47, s47, s46
    s_lshl_b32 s64, s{A.sWAVE}, 5
    s_add_u32 s47, s47, s64
    s_add_u32 s47, s47, 2048
    s_lshl_b32 s65, s{sH}, 3
    s_add_u32 s65, s65, s66
    s_mul_i32 s{A.sPO}, s65, {PO_STRIDE}
    s_add_u32 s{A.sPO}, s{A.sPO}, {WS_PO}
    s_lshl_b32 s65, s{sJ}, 4
    s_add_u32 s65, s65, s{sH}
    s_mul_i32 s{A.sOP}, s65, {OP_HEAD}
    s_mul_i32 s65, s{A.sWAVE}, 28672
    s_add_u32 s{A.sOP}, s{A.sOP}, s65
    s_add_u32 s{A.sOP}, s{A.sOP}, {WS_OP}
    {f's_or_b32 s{A.sOP}, s{A.sOP}, {OOB}' if ('k' in opt['wi'] and not vt) or ('v' in opt['wi'] and vt) else ''}
    s_mov_b32 s{A.sREQ}, 0
    s_mov_b32 s{A.sCHK}, {vt}
    s_mov_b32 s{sMODE}, 1
    s_cmp_eq_u32 s{A.sWAVE}, 0
    s_cselect_b32 s{sMLD}, {6 if vt else 7}, 0
    {f'''s_cmp_eq_u32 s{sJ}, 8
    s_cselect_b32 s64, {int(opt['w8'])}, 0
    s_or_b32 s{sMLD}, s{sMLD}, s64''' if vt else f'''s_lshl_b32 s64, s{sH}, 1
    s_add_u32 s64, s64, s{A.sWAVE}
    s_cmp_lt_u32 s64, 30
    s_cselect_b32 s64, {15 << TY}, 0
    s_cmp_ge_u32 s{A.sWAVE}, 2
    s_cselect_b32 s64, s64, 0
    s_cmp_eq_u32 s{sJ}, {JY}
    s_cselect_b32 s64, s64, 0
    s_or_b32 s{sMLD}, s{sMLD}, s64'''}
    s_mov_b64 s[60:61], s[76:77]
    s_mov_b32 s62, s78
    s_mov_b32 s63, 0x20000
    v_lshrrev_b32 v24, 4, v0
    v_lshlrev_b32 v24, 2, v24
    v_and_b32 v25, 15, v0
    v_sub_u32 v24, v24, v25
    """) + [I(f"v_cmp_lt_i32 s[{A.sTRI[e]}:{A.sTRI[e]+1}], {-e}, v24") for e in range(4)] + side.code_addr(0, 25) + selm(24) + [By(int(opt['fl']) - 6)]
    dq = items(opt['q0'], int(opt['qsep'])) + L(f"v_mov_b32 v{A.vNEG}, 0xff800000")
    assert all(v == 7 for v in uq.values())
    W1 = f"buffer_load_dword v{A.vRL}, v31, {WSR}, s46 offen offset:4 sc1"
    wchk = lambda n, half: L(f"v_cmp_ne_u32 vcc, 1, v{A.vRL}\ns_nop 0\ns_cmp_lg_u32 vcc_{half}, 0\ns_cbranch_scc1 L_ws{n}\nL_wr{n}:")
    WSPIN[f"q{vt}"] = (W1, "lo"); WSPIN[f"r{vt}"] = (W1, "hi")
    dq2 = [At(int(opt['fl']) - 4)] + L(f"v_lshrrev_b32 v31, 6, v{A.vL16}\nv_bfe_u32 v28, v{A.vL16}, 4, 2\nv_lshlrev_b32 v31, 5, v31\nv_add_lshl_u32 v31, v31, v28, 2\n{W1}") + [At(int(opt['fc']))] + wchk(f"q{vt}", "lo") + dma_flat(KSLOT[0], A.sK) + adv_k()
    k1 = dma_flat(KSLOT[1], A.sK)
    dq2 += [At(QB(3))] + k1[:3] + L(W1) + k1[3:] + adv_k() + [At(int(opt['fv']))] + wchk(f"r{vt}", "hi") + dma_flat(4, A.sV) + adv_v()
    qout = []; qsts = []
    def qst(qb, kq): return [I(f"s_add_u32 s30, s{A.sQ}, {(qb * 8 + kq) >> 2 << 12}"), I(f"buffer_store_dwordx4 a[{Qreg(qb, kq)}:{Qreg(qb, kq)+3}], v6, {WSR}, s30 offen offset:{(kq & 3) * 1024} sc1", tag="QST")] if vt and opt['nost'] != '1' else []
    for cg in range(4):
        for p2 in range(2):
            for qb in range(2):
                if (cg, p2) == (3, 1): continue
                ins, k = qp.out(cg, p2, qb, Qreg(qb, 2 * cg + p2))
                qout += [At(k + 4)] + ins
                qsts.append((ins[-1], qst(qb, 2 * cg + p2)))
                if qsts[-1][1]: dep(qsts[-1][1][-1], *ins[-4:])
    qlast = lambda: qp.out(3, 1, 0, Qreg(0, 7))[0] + [By(4), At(1)] + qp.out(3, 1, 1, Qreg(1, 7))[0] + [By(12)] + [x for k, i in qsts[nq:] for x in i] + qst(0, 7) + qst(1, 7)
    lo, hi = ints('sq')
    s = Sched(g)
    s.add(carry, 0, 40, asap=True)
    s.add(dq, 0, 240, asap=True, vmd=2).add(dq2, 0, 430, asap=True, vmd=int(opt['kvd']))
    kq = 8 + sum(int(x, 16) for x in opt['qk']); kw = ints('kw'); assert kq + sum(kw) == 32 and kw[2] <= 8
    plan = [int(x, 16) for x in opt['qv' if vt else 'qk']]; pos = ints('qp'); sts = []; n0 = 8
    for m, k in zip(plan, pos):
        sts += [At(k)] + [x for i in ks.many(range(n0, n0 + m), lambda n: "KV2" if n < 16 else "KV4") for x in ([Sep(int(opt['ssep'])), i] if i.kind != 'vst' else [i])]; n0 += m
    assert n0 == (16 if vt else kq)
    s.add(sts, 0, 447, asap=True)
    s.add(qout, 0, 447, asap=True)
    qd = ints('qd'); nq = qd[4]
    s.add([x for n, (k, i) in enumerate(qsts[:nq]) for x in [At(qd[n // 4]), Sep(int(opt['ssep'])), After(k)] + i], 0, 447, asap=True)
    s.add(setup, 20, int(opt['fl']) - 20)
    w1 = L(f"""s_mul_i32 s72, s{sH}, {FSTR}
    s_add_u32 s46, s72, {WS_FL}
    s_lshl_b32 s{sFL}, s{sJ}, 7
    s_add_u32 s{sFL}, s{sFL}, s46
    s_lshl_b32 s72, s{A.sWAVE}, 2
    s_add_u32 s72, s72, s{sFL}
    v_min_u32 v29, 1, v0
    v_lshlrev_b32 v29, 29, v29
    v_mov_b32 v30, 1""") + [At(int(opt['l1'])), WAITV("KV1"), I(f"buffer_store_dword v30, v29, {WSR}, s72 offen offset:4 sc1")]
    s.add(w1 + [At(QB(l2))] + level(2, 30), 0, 447, asap=True)
    s.run()
    if '6' in opt['fine']:
        for k in range(27, 447, 28): g.ve[k] += stampa()
    if '8' in opt['fine']:
        for k in range(213, 447, 14): g.ve[k].append(I("s_nop 0 ; us"))
    if '7' in opt['fine']:
        for x in range(1, 5): g.ve[QB(x) - 3] += stampa(); g.ve[QB(x) - 1] += stampa()
    out += g.flat() + stamp(26) + (EXIT() if opt['kvonly'] == '2' else [])
    init = lambda: [I(f"v_mov_b32 v{r}, 0") for r in [A.vLS, A.vLS + 1] + list(range(A.vNM, A.vNM + 8))]
    rd2 = lambda: L(f"v_add_u32 v16, 0x20000, v{A.vL16}")
    g = Gaps(qk_mfmas(0, C0, asc0=True))
    tile_reads(g, lambda b: rd_batch(KSLOT[0], b), rd_batch(KSLOT[1], 0), [("T", KSLOT[1])])
    s = Sched(g).add(qlast(), 0, 20, asap=True).add(dma_flat(VSLOT[1], A.sV) + adv_v(), 10, ints('dh')[0]).add(rd2(), 30, 63)
    if vt:
        a, b = ints('vq'); n0 = 16 + a + b; assert n0 <= 24
        qf = int(opt['qf'])
        qflag = L(f"v_min_u32 v17, 1, v{A.vL16}\nv_lshlrev_b32 v17, 29, v17\nv_mov_b32 v15, 1\ns_add_u32 s84, s47, 16") + [At(qf % 64), WAITV("QST"), side.flag_store(84, 17, 15), By(62)]
        s.add((qflag if qf < 64 else []) + ks.many(range(16, 16 + a), "KV4"), ints('sw')[0], 62, asap=True)
        def park(ns):
            o = [I(f"v_accvgpr_write_b32 a{128 + 4 * (n - 16) + e}, v{int(ks.reg[n][2:ks.reg[n].index(':')]) + e}") for n in ns for e in range(4)]
            for i in o: dep(i, *[p for n in ns for p in ks.src[n]])
            return o
    else:
        km = kq + kw[0]
        s.add(ks.many(range(kq, km), "KV4"), *ints('sw'))
    s.run()
    grp, early = groups_first(0)
    sched_sm(g, grp, 12, 62, early=early)
    if '8' in opt['fine']:
        for k in (0, 16, 32): g.ve[k].append(I("s_nop 0 ; us"))
    qk0 = g.flat() + stampa() + (L("s_sleep 32") if str(vt) in opt['idle'] else [])
    if vt:
        w1, left = win_qk1(4, 16, "v1", lambda s: s.add(ks.many(range(16 + a, n0), "KV4") + [By(60)], *ints('sw')).add(qflag if 64 <= qf < 128 else [], 0, 60, asap=True).add(park(range(n0, 24)) + [By(58)], 0, 56))
        vp = ints('vp'); assert n0 + sum(vp) == 32
        later = lambda m: (lambda s: s.add(ks.many(range(n0 + sum(vp[:m]), n0 + sum(vp[:m + 1])), "KV4", lambda n: R("a", 128 + 4 * (n - 16), 4)), *ints('sw')))
        def pv0x(s): s.add(park(range(24, 32)) + [By(28)], 0, 28).add(qflag if qf >= 128 else [], 30, 60, asap=True); later(0)(s)
        c.block("kv1", "L_kv1:", out, qk0, w1, win_pv0(4, 16, pv0x), fs('3'), win_qk(1, "v2", later(1)), win_pv(1, later(2)), fs('3'),
                win_qk(0, "v3", later(3)), win_pv(0, later(4)), "s_branch L_loop_top")
    else:
        c.block("kv0", "L_kv0:", out, f"s_cmp_eq_u32 s{sJ}, 0\ns_cbranch_scc1 L_j0")
        c.block("k1", qk0, win_qk1(4, 16, "k1", lambda s: s.add(ks.many(range(km, km + kw[1]), "KV4") + [By(60)], *ints('sw')))[0],
                win_pv0(4, 16, lambda s: s.add(ks.many(range(km + kw[1], 32), "KV4") + [By(28)], 4, 28)), f"s_cmp_lg_u32 s{A.sIT}, 0\ns_cbranch_scc1 L_loop_top\ns_branch L_d1s")
        g = Gaps(qk_mfmas(0, lambda kb, qb: R("v", Sreg(0, kb, 0), 4) if qb == 0 else "0", order=(1, 0), asc0=True))
        tile_reads(g, lambda b: rd_batch(KSLOT[0], b), rd_batch(KSLOT[1], 0), [("T", KSLOT[1])])
        ql = qp.out(3, 1, 1, Qreg(1, 7))[0] + [By(5)] + qp.out(3, 1, 0, Qreg(0, 7))[0] + [By(12)]
        pr = presets(False, zero=True)
        LSPIN["j0"] = (2, 17)
        s = Sched(g).add([At(1)] + ql, 0, 20, asap=True).add([x for kb in range(4) for x in pr[kb] + [By(16 * kb + 6)]], 0, 50)
        s.add(L(f"s_mov_b32 s{A.sV}, s{sVD}") + dma_flat(VSLOT[0], A.sV) + L(f"v_min_u32 v17, {7 << 7}, v9\nbuffer_load_dword v{A.vRL}, v17, {WSR}, s46 offen sc1"), 14, 44)
        s.add(init(), 0, 63).add(ks.many(range(kq, 32), "KV4"), 16, 62, vmd=2).run()
        grp, early = groups_first(0, (1, 0))
        sched_sm(g, grp, 12, 62, early=early)
        ucheck = L(f"v_mov_b32 v{A.vX}, v{A.vSUM}\nv_mov_b32 v{A.vX+1}, v{A.vSUM+1}") + [i for p in zip(xlane("v_max_f32", A.vX, A.vX + 2), xlane("v_max_f32", A.vX + 1, A.vX + 3)) for i in p] + L(f"""
            v_min_f32 v{A.vX}, v{A.vX}, v{A.vX+1}
            v_cmp_gt_f32 vcc, s{A.sLOW}, v{A.vX}
            s_cbranch_vccnz L_stj0
            L_rtj0:""")
        zz = [I(f"v_mov_b32 v{A.vP1 + e}, 0") for e in range(4)]
        rest = [i for p in presets(True) for i in p]
        c.block("j0", "L_j0:", g.flat(), stampa(), zz, HELPER_K(), PBASE(), lcheck(2, "j0"), mix(ucheck[:-2], dma_flat(KSLOT[0], A.sK) + adv_k(), 1), ucheck[-2:], zero_O_mfma(rest, A.vP1), "s_branch L_d3h")

def build_att(c):
    X.update(nodma=int(opt['xl'][0]), nobar=int(opt['xl'][1]), rp=int(opt['xl'][2]), dp=int(opt['xl'][3])); att.WI.update(nr=int(opt['nr']), noadd=int(opt['noadd']))
    c.block("loop_top", "L_loop_top:" if WARM else ".p2align 6\nL_loop_top:", fs('3'), att.win_qk(1, "L_st1", "L_rt1", extra=[side.touch(0, 60, 0, nt=False)] if opt['tl'] == '1' else [])[0], att.win_pv(1))
    c.block("loop_mid", fs('3'), att.win_qk(0, "L_st0", "L_rt0", head=L(f"s_bitcmp1_b32 s{sMLD}, s{A.sCHK}\ns_cbranch_scc1 L_fll\nL_fllr:"))[0],
            att.win_pv(0, tail=L(f"s_sub_u32 s{A.sIT}, s{A.sIT}, 1\ns_cmp_lg_u32 s{A.sIT}, 0\ns_cbranch_scc1 L_loop_top"),
                       chk=L(f"""v_cmp_gt_u32 vcc, s{A.sREQ}, v{A.vRL}
                       s_cbranch_vccnz L_fls0
                       L_flr0:
                       s_mov_b32 s{A.sREQ}, 0
                       s_add_u32 s{A.sCHK}, s{A.sCHK}, 1""")))
    att.WI.update(nr=8, noadd=0); X.update(nodma=0, nobar=0)
    c.block("p1", f"s_cmp_eq_u32 s{sMODE}, 0\ns_cbranch_scc1 L_final_h")
    g = Gaps(qk_mfmas(0, lambda kb, qb: R("v", Sreg(0, kb, 0), 4) if qb == 0 else NMq(1), order=(1, 0)))
    tile_reads(g, lambda b: rd_batch(KSLOT[0], b), rd_batch(VSLOT[1], 0), [("T", VSLOT[1])])
    pr = presets(False)
    Sched(g).add([x for kb in range(4) for x in pr[kb] + [By(16 * kb + 6)]], 0, 50).add(
        L(f"s_mov_b32 s{A.sV}, s{sVD}\nv_min_u32 v17, {7 << 7}, v9\nbuffer_load_dword v{A.vRL}, v17, {WSR}, s46 offen sc1") + dma_flat(VSLOT[0], A.sV) + adv_v() + dma_flat(4, A.sV, 0, 4), 1, 60).add(PBASE(), 30, 62).run()
    put_tail(g, sched_sm(g, softmax_groups(1, 1), 0, 56), check(1, "L_std1"))
    c.block("d1", "L_d1s:", stampa(), g.flat(), "L_rtd1:", fs('4'), f"s_cmp_lt_u32 s{sJ}, {15 - JH}\ns_cbranch_scc1 L_d2h")
    pg = lambda k: [f"loop_top{p}" for p in ints(k)]
    wq = ints('rq' if RELAY else 'wq')
    if RELAY: opt['d3w'] = opt['r3w']; opt['five'] = opt['rfive']
    class WoQ:
        def __init__(self, slots): self.slots, self.n = slots, 0
        def take(self, m):
            o = []
            while m and self.n < 56:
                t, i = divmod(self.n, 8); k = min(m, 8 - i)
                o += wo_dma(self.slots[t], i, i + k); self.n += k; m -= k
            return o
    def d2(nxt):
        g = Gaps(pv_mfmas(1))
        tile_reads(g, lambda b: rd_batch(VSLOT[1], b), rd_batch(KSLOT[1], 0), [("T", KSLOT[1])])
        Sched(g).add(dma_flat(4, A.sV, 4, 8) + nxt, 1, 60).add([i for p in presets(True) for i in p] + [By(61)], 4, 60).run()
        sched_sm(g, softmax_groups(0, 0), 0, 62, add_l(1))
        return g.flat() + fs('4')
    P8 = [0, 0, 1, 1, 2, 2, 3, 3]
    def d3(stub, extra):
        g = Gaps(qk_mfmas(1, lambda kb, qb: R("v", Sreg(1, kb, 1), 4), order=(1,)))
        tile_reads(g, lambda b: rd_batch(KSLOT[1], b), rd_batch(VSLOT[0], 0), [("T", VSLOT[0])], per=8, pat=P8)
        Sched(g).add(L(f"v_add_u32 v{A.vNEG}, 0x20000, v{A.vL16}") + extra, 4, 30, asap=True).run()
        put_tail(g, sched_sm(g, softmax_groups(0, 1), 0, 30), check(0, f"L_st{stub}"))
        return g.flat() + L(f"L_rt{stub}:") + fs('4')
    def d4(stub, s1, s2, lo2, hi2, pub=False, hi1=60, asap=False):
        g = Gaps(pv_mfmas(0))
        tile_reads(g, lambda b: rd_batch(VSLOT[0], b), rd_batch(4, 0, A.vNEG), [("T", 4)] + (["KV4"] if pub else []))
        Sched(g).add(s2, lo2, hi2, vmd=2, asap=asap).add(s1, 1, hi1, vmd=2).add(level(4, A.vX + 5) if pub else [], 48, 52, asap=True).run()
        put_tail(g, sched_sm(g, groups_b(), 0, 60, add_l(0)), check_b(f"L_st{stub}"))
        return g.flat() + L(f"L_rt{stub}:") + fs('4')
    addb = lambda: L(f"v_add_f32 v{A.vLS + 1}, v{A.vSUM + 3}, v{A.vLS + 1}")
    wo = WoQ([3, 1, 2, 0, 4, 3, 1] if opt['five'] == '1' else [3, 1, 2, 0, 3, 1, 2])
    c.block("d2n", wev('n', pg('wn')), d2(wo_setup(A.vX + 4) + wo.take(wq[0])))
    LC = opt['lc'] == '1'; NRM = opt['nrm'] == '1'; assert not (LC and NRM)
    c.block("d3n", d3("d3n", wo.take(int(opt['d3w'])) + ([] if LC else [At(int(opt['fpl'])), FP_LOAD()])))
    pl = L(f"v_or_b32 v9, s{sNC}, v{A.vL16}\nv_cmp_ne_u32 vcc, 1, v{A.vRL + 1}\ns_cbranch_vccnz L_fps\nL_fpr:") + [I(f"buffer_load_dwordx4 v[{A.vX+4}:{A.vX+7}], v9, {WSR}, s90 offen sc1")]
    for kq in range(8):
        for qb in (1, 0):
            n = qb * 8 + kq
            pl.append(I(f"buffer_load_dwordx4 a[{A.aX + 4*n}:{A.aX + 4*n + 3}], v9, {WSR}, s{86 + n // 4} offen offset:{(n & 3) * 1024} sc1"))
    ctest = lambda: L(f"""
    v_cmp_neq_f32 vcc, v{A.vNM}, v{A.vX+4}
    v_cmp_neq_f32 s[64:65], v{A.vNM+4}, v{A.vX+5}
    s_cmp_eq_u32 s{sNC}, 0
    s_cselect_b64 s[66:67], -1, 0
    s_or_b64 vcc, vcc, s[64:65]
    s_and_b64 vcc, vcc, s[66:67]
    s_cbranch_vccnz L_stc
    L_rtc:""")
    pn = lambda k0: NEED(*[R("a", A.aX + (qb * 8 + kq) * 4, 4) for kq in (k0, k0 + 1) for qb in range(2)])
    l2 = lambda: L(f"v_add_f32 v{A.vLS}, v{A.vX+6}, v{A.vLS}\nv_add_f32 v{A.vLS+1}, v{A.vX+7}, v{A.vLS+1}")
    if not LC:
        c.block("d4n", d4("d4n", wo.take(wq[1]), pl, int(opt['fpc']), int(opt['pl'])))
        g = Gaps(pvb_mfmas(True))
        tile_reads(g, lambda b: rd_batch(4, b, A.vNEG), rd_wo(3, 0), [("T", 3)], npat=None if RELAY else RP16)
        for k, k0 in ((1, 0), (14, 2), (30, 4), (45, 6)): g.put_s(k, pn(k0))
        lf = l2() + addb() + lfin2()
        nrm = lambda kq, qb: [I(f"v_mul_f32 v{Oreg(2 * kq + h, qb) + e}, v{A.vRL + qb}, v{Oreg(2 * kq + h, qb) + e}") for h in range(2) for e in range(4)] if NRM else []
        cv = ([After(lf[-1])] if NRM else []) + [x for kq in range(8) for qb in (1, 0) for x in [At(8 * kq + 11 - qb)] + nrm(kq, qb) + cvt_ctx(kq, qb)]
        left = Sched(g).add(oa_setup(A.vX + 4) + [By(46)], 20, 44).add(lf + [By(19)], 0, 14 if NRM else 18).add(wo.take(wq[2]), 2, 40).add(cv, 0, 63, asap=True).run(spill=True)
        c.block("d5n", NEED(R("v", A.vX + 4, 4)), ctest(), g.flat(), [i for l in left for i in l], stampa())
    else:
        n4 = 5 + int(opt['n4'])
        c.block("d4n", d4("d4n", wo.take(wq[1]) + [By(int(opt['fpc']) - 2)], [At(int(opt['fpl'])), FP_LOAD(), At(int(opt['fpc']))] + pl[:n4] + [By(60)], 0, 60, hi1=int(opt['fpc']) - 4, asap=True))
        g = Gaps(pvb_mfmas() + comb_mfmas())
        tile_reads(g, lambda b: rd_batch(4, b, A.vNEG), None, [("T", 3)], per=8, pat=P8)
        put_batch(g, rd_wo(3, 0), 40); g.put_s(62, need_batch(0))
        ct = ctest()
        for i in [pn(0)] + ct[-2:]: g.put_s(31, i)
        for k, k0 in ((39, 2), (47, 4), (55, 6)): g.put_s(k, pn(k0))
        cv = [x for kq in range(8) for qb in (1, 0) for x in [At(32 + 4 * kq + 7 - 2 * qb)] + cvt_ctx(kq, qb)]
        lf = l2() + lfin2()
        left = Sched(g).add(pl[n4:] + [By(30)] + wo.take(wq[2]), 0, 40, asap=True, vmd=1).add(addb() + oa_setup(A.vX) + [By(22), At(24)] + ct[:-2] + [By(30), At(32)] + lf[:2] + [By(34)], 4, 30).add(cv + lf[2:], 0, 63, asap=True).run(spill=True)
        c.block("d5n", g.flat(), [i for l in left for i in l], stampa())
    def op_out(j, split=False, mul=True, pps=(0, 1)):
        b = j & 1
        ins = L(f"s_add_u32 s{A.sT0}, s{A.sOP}, {2 * j * 1024}\ns_add_u32 s{A.sT1}, s{A.sOP}, {14336 + 2 * j * 1024}") if 0 in pps else []
        for pp in pps:
            for qb in range(2):
                if split: ins.append(At(32 * pp + 27 + 8 * qb))
                a, d = Sreg(b, 2 * pp, qb), Sreg(b, 2 * pp + 1, qb)
                if mul: ins += [I(f"v_mul_f32 v{r + e}, v{A.vRL + qb}, v{r + e}") for r in (a, d) for e in range(4)]
                ins += kvq.pack(("v", a), ("v", d), 0)[0]
                ins.append(I(f"buffer_store_dwordx4 v[{a}:{a+3}], v{A.vL16}, {WSR}, s{A.sT0 + qb} offen offset:{pp * 1024} sc1", tag=("OP", j)))
        return ins
    fop = lambda: L(f"""
    s_sub_u32 s64, 15, s{sJ}
    s_min_u32 s64, s64, s{sJ}
    s_mul_i32 s{sFL}, s64, {2 * FSTR}
    s_lshl_b32 s64, s{sH}, 2
    s_add_u32 s{sFL}, s{sFL}, s64
    s_lshl_b32 s64, s{A.sWAVE}, 8
    s_add_u32 s{sFL}, s{sFL}, s64
    s_add_u32 s{sFL}, s{sFL}, {WS_FOP}
    s_mov_b32 s64, 1024
    s_mov_b32 s66, {FSTR - 256}
    s_cmp_lt_u32 s{sJ}, 8
    s_cselect_b32 s64, {FSTR}, s64
    s_cselect_b32 s65, 0, 64
    s_cselect_b32 s66, {OOB}, s66
    s_add_u32 s3, s{sFL}, s64
    s_add_u32 s{sFL}, s{sFL}, s65
    v_lshrrev_b32 v{A.vX + 7}, 5, v{A.vL16}
    v_min_u32 v{A.vX + 5}, 1, v{A.vX + 7}
    v_lshlrev_b32 v{A.vX + 4}, 3, v{A.vL16}
    v_lshl_or_b32 v{A.vX + 6}, v{A.vX + 5}, 29, v{A.vX + 4}
    v_cmp_eq_u32 vcc, 1, v{A.vX + 7}
    v_add_u32 v{A.vX + 4}, s66, v{A.vX + 4}
    v_mov_b32 v{A.vX + 5}, 1
    v_cndmask_b32 v{A.vX + 7}, v{A.vX + 6}, v{A.vX + 4}, vcc
    """)
    def outproj(wo, quota, ctx, first=(), extra0=(), prep=False):
        ow = []; sl = wo.slots
        for j in range(7):
            g = Gaps(qk_mfmas(j & 1, C0, breg=ctx))
            tile_reads(g, lambda b: rd_wo(sl[j], b), rd_wo(sl[j + 1], 0) if j < 6 else None, [("T", sl[j + 1])] if j < 6 else None)
            s = Sched(g)
            if j < len(quota): s.add(wo.take(quota[j]), 1, int(opt['odh']), vmd=2)
            if j == 0: s.add(list(first) + fop() + list(extra0) + [I(f"v_add_u32 v{vOA[2] + x}, 0x20000, v{A.vL16 if RELAY else vOA[0] + x}") for x in range(1 if RELAY else 4)], 0, 40, asap=True)
            jv = (side5.NE - 1) // 2 + 2
            if j == 5 or (j == jv and prep):
                sel = L(f"s_cmp_{'lt' if j == 5 else 'ge'}_u32 s{sJ}, 8\ns_cselect_b32 s84, s{sFL}, {OOB}") if prep and jv != 5 else L(f"s_mov_b32 s84, s{sFL}")
                s.add(sel + [At(int(opt['efg'])), WAITV([("OP", j - 2)]), I(f"buffer_store_dword v{A.vX + 5}, v{A.vX + 7}, {WSR}, s84 offen sc1")], 40, 60, asap=True)
            if j == int(opt['pv1']): s.add(side5.red_v1(A.vL16) if prep else side5.red_k1(A.vL16), 0, 60)
            if prep and j == int(opt['pv2']): s.add(side5.red_v2() + [By(60)], 4, 56)
            if SENT and prep and j == 0:
                mk = [I(f"v_mov_b32 v{Sreg(1, 0, 0) + e}, -1") for e in range(4)] + L(f"s_sub_u32 s73, s{sJ}, 8\ns_and_b32 s73, s73, {OOB}\ns_add_u32 s73, s73, s{A.sOP}\ns_add_u32 s72, s73, 12288\ns_add_u32 s73, s73, {14336 + 12288}")
                s.add(mk + [I(f"buffer_store_dwordx4 v[{Sreg(1, 0, 0)}:{Sreg(1, 0, 0) + 3}], v{A.vL16}, {WSR}, s{72 + (n >> 1)} offen offset:{(n & 1) * 1024} sc1") for n in range(4)] + [By(60)], *ints('mkg'))
            if SENT and prep and j == 6: s.add([At(int(opt['pg']))] + L(side5.FOP_LOAD) + [By(62)], 0, 62, asap=True)
            mul = not (prep and NRM)
            if HALF: s.add((op_out(j - 1, mul=mul, pps=(1,)) if j else []) + op_out(j, True, mul, pps=(0,) if j < 6 else (0, 1)), int(opt['olo']), 63, asap=True, vmd=2)
            elif j > 0: s.add(op_out(j - 1) + (op_out(6, True) if j == 6 else []), int(opt['olo']), 62 if j < 6 else 63, asap=j == 6, vmd=2)
            left = s.run(spill=j == 6)
            ow += g.flat() + fs('5')
        assert wo.n == 56
        if SENT and prep:
            return ow + stampa() + L(f"s_cmp_lt_u32 s{sJ}, 8\ns_cselect_b32 s84, {OOB}, s3") + [WAITV([("OP", 5)]), I(f"buffer_store_dword v{A.vX + 5}, v{A.vX + 6}, {WSR}, s84 offen sc1")] + [i for l in left for i in l] + stampa()
        return ow + stampa() + [i for l in left for i in l] + L(side5.FOP_LOAD) + [WAITV([("OP", 6)]), I(f"buffer_store_dword v{A.vX + 5}, v{A.vX + 6}, {WSR}, s3 offen sc1")] + stampa()
    c.block("opn", outproj(wo, wq[3:], lambda qb, ks: R("v", Oreg(2 * ks, qb), 4), prep=True), f"s_cmp_lt_u32 s{sJ}, 8\ns_cbranch_scc1 L_red")
    rv, vfar = side5.red_main_v(stampa, int(opt['lagv']), SENT)
    c.block("end1", rv, EXIT()); c.block("vfar", vfar)
    LSPIN["h2"] = (2, 17); LSPIN["h4"] = 2
    c.block("d2h", "L_d2h:", wev('h', pg('wh1')), d2(HELPER_K() + lcheck(2, "h2") + dma_flat(KSLOT[0], A.sK) + adv_k()))
    c.block("d3h", "L_d3h:", d3("d3h", [FL_LOAD(), I(f"buffer_load_dword v{A.vRL + 1}, off, {WSR}, s47 offset:16 sc1")]))
    ql = L(f"v_cmp_ne_u32 vcc, 1, v{A.vRL + 1}\ns_cbranch_vccnz L_fqs\nL_fqr:") + L(f"s_add_u32 s73, s{A.sQ}, 4096\ns_add_u32 s74, s{A.sQ}, 8192\ns_add_u32 s75, s{A.sQ}, 12288")
    ql += [I(f"buffer_load_dwordx4 a[{4*n}:{4*n+3}], v{A.vL16}, {WSR}, s{72 + n // 4 if n >= 4 else A.sQ} offen offset:{(n & 3) * 1024} sc1") for n in range(16)]
    c.block("d4h", d4("d4h", [], ql + lcheck(2, "h4") + [By(58)], 0, 54, True))
    g = Gaps(pvb_mfmas() + qk_mfmas(0, C0))
    tile_reads(g, lambda b: rd_batch(4, b, A.vNEG), rd_batch(KSLOT[0], 0), [("T", KSLOT[0])], per=8, pat=P8)
    tile_reads(g, lambda b: rd_batch(KSLOT[0], b), rd_batch(KSLOT[1], 0), [("T", KSLOT[1])], base=32)
    g.put_s(29, NEED(R("a", 0, 64)))
    def cpk(kq, qb): return link(cvt_ctx(kq, qb) + [I(f"v_accvgpr_write_b32 a{A.aX + (qb * 8 + kq) * 4 + e}, v{Oreg(2 * kq, qb) + e}") for e in range(4)])
    order = [(0, 0), (1, 0)] + [x for kq in range(6) for x in ((kq, 1), (kq + 2, 0))] + [(6, 1), (7, 1)]
    cp = {k: cpk(*k) for k in order}
    s = Sched(g).add(dma_flat(KSLOT[1], A.sK) + adv_k() + L(f"s_mul_i32 s{A.sV}, s{sH}, {HS}\ns_add_u32 s{A.sV}, s{A.sV}, {WS_V + NO * 32768}") + dma_flat(VSLOT[0], A.sV) + adv_v() + dma_flat(VSLOT[1], A.sV, 0, 4), 2, 92)
    s.add(addb() + lfin2() + L(f"v_accvgpr_write_b32 a192, v{A.vRL}\nv_accvgpr_write_b32 a193, v{A.vRL + 1}") + [I(f"v_mov_b32 v{r}, 0") for r in [A.vLS, A.vLS + 1] + list(range(A.vNM, A.vNM + 8))], 0, 40).run()
    grp, early = groups_first(0, base=32)
    sched_sm(g, grp, 44, 94, early=early)
    left = Sched(g).add([x for k in order for x in ([At(4 * k[0] + 7)] if k[1] else []) + cp[k]], 0, 95, asap=True).run(spill=True)[0]
    w5 = g.flat() + fs('4')
    g = Gaps(qk_mfmas(1, C0))
    tile_reads(g, lambda b: rd_batch(KSLOT[1], b), rd_batch(VSLOT[0], 0), [("T", VSLOT[0])])
    Sched(g).add(dma_flat(KSLOT[0], A.sK) + adv_k() + dma_flat(VSLOT[1], A.sV, 4, 8) + adv_v(), 1, 56).run()
    k = sched_sm(g, softmax_groups(0, 1), 0, 54)
    tail = check_first("L_sth1")
    ids = {id(i) for i in left}
    Sched(g).add(left + [By(57)], 0, 57).run()
    put_tail(g, max(k, 57), tail)
    w6 = g.flat() + L("L_rth1:")
    c.block("d5h", w5, w6, stampa(), win_pv0(VSLOT[0], None, lambda s: s.add(L(f"""s_mov_b32 s{sMODE}, 0
            s_mov_b32 s{A.sCHK}, 0
            s_and_b32 s{sMLD}, s{sMLD}, 3
            s_sub_u32 s{A.sIT}, {15 - JH - 1}, s{sJ}"""), 10, 30)), f"s_cmp_lg_u32 s{A.sIT}, 0\ns_cbranch_scc1 L_loop_top")
    wo = WoQ([3, 2, 0, 4, 1, 3, 2] if opt['five'] == '1' else [3, 2, 0, 1, 3, 2, 0]); wh = ints('wh')
    if RELAY: wo.n = 16; wh = [ints('rh')[0], 0] + ints('rh')[1:]
    pst = lambda kq, qb: [I(f"buffer_store_dwordx4 v[{Oreg(2*kq, qb)}:{Oreg(2*kq, qb)+3}], v{A.vL16}, {WSR}, s{86 + (qb*8+kq) // 4} offen offset:{(kq & 3) * 1024} sc1", tag="PST")]
    g = Gaps(pv_mfmas(1))
    tile_reads(g, lambda b: rd_batch(VSLOT[1], b), rd_wo(3, 0), [("T", 3)], npat=None if RELAY else RP16)
    w0 = wo_setup(A.vX + 4, 2 if RELAY else 0) + wo.take(wh[0]); nv = 0 if RELAY else 7
    left = Sched(g).add(oa_setup(A.vX + 4) + [By(46)], 0, 10).add([x for kq in range(8) for qb in range(2) for x in [At(8 * kq + 9 + 2 * qb)] + cvt_ctx(kq, qb) + pst(kq, qb)], 0, 63, asap=True, vmd=1).add(
        wo.take(wh[1]), 0, 12, vmd=1).run(spill=True)
    c.block("final_h", "L_final_h:", stampa(), WAITV([("T", VSLOT[1])], lgkm0=True), "s_barrier", rd_batch(VSLOT[1], 0), wev('f', pg('wh2')), w0[:nv], mix(softmax_half(1, 1), w0[nv:], 1), check(1, "L_stfh"), "L_rtfh:", add_l(1), f"""
    v_mov_b32 v{A.vX}, v{A.vNM}
    v_mov_b32 v{A.vX+1}, v{A.vNM+4}
    v_mov_b32 v{A.vX+2}, v{A.vLS}
    v_mov_b32 v{A.vX+3}, v{A.vLS+1}
    """, I(f"buffer_store_dwordx4 v[{A.vX}:{A.vX+3}], v{A.vL16}, {WSR}, s90 offen sc1", tag="PST"), need_batch(0), fs('4'), g.flat(), left[1], left[2], stampa())
    assert not left[0]
    pflag = L(f"v_min_u32 v{A.vX}, 1, v{A.vL16}\nv_lshlrev_b32 v{A.vX}, 29, v{A.vX}") + [At(int(opt['pfg'])), WAITV("PST"), side.flag_store(47, A.vX, A.vX + 5)]
    c.block("oph", outproj(wo, wh[2:], lambda qb, ks: R("a", A.aX + (qb * 8 + ks) * 4, 4), L(f"v_accvgpr_read_b32 v{A.vRL}, a192\nv_accvgpr_read_b32 v{A.vRL + 1}, a193"), pflag))
    rm = side5.red_main(A.vL16, stampa, int(opt['lag']), int(opt['lag2']))
    c.block("red0", "L_red:", [WAITV([("OP", 6)]), I(f"buffer_store_dword v{A.vX + 5}, v{A.vX + 6}, {WSR}, s3 offen sc1")] if SENT else [], side5.red_k1(A.vL16), side5.FOP_LOAD, "s_branch L_red1")
    c.block("red", "L_red1:", f's_or_b32 s77, s77, {OOB}' if 'r' in opt['wi'] else '', f's_or_b32 s78, s78, {OOB}' if 's' in opt['wi'] else '', rm, EXIT())
    c.block("rpoll", side5.red_poll())
    stubs = ""
    for n, f in (("0", "slow0"), ("1", "slow1"), ("v1", "slowf"), ("k1", "slowf"), ("h1", "slowf"), ("j0", "slowj"), ("v2", "slow1"), ("v3", "slow0"), ("d1", "slow1"),
                 ("d3n", "slow0"), ("d3h", "slow0"), ("d4n", "slowb"), ("d4h", "slowb"), ("fh", "slow1n"), ("c", "comb")):
        stubs += f"L_x{n}:\ns_call_b64 s[{A.sRET}:{A.sRET+1}], L_{f}\ns_branch L_rt{n}\n".replace("L_x", "L_st")
    return stubs

def mid_blocks(c, stubs):
    c.block("stubs", stubs)
    c.block("slow", att.slow_sub(0), att.slow_sub(1), att.slow_sub(1, False), slow_first("L_slowf", True), slow_first("L_slowj", False), slow_b(), comb_slow(opt['lc'] == '1'))
    sp = []
    for n, v in LSPIN.items():
        ld = FL_LOAD().text
        if isinstance(v, tuple): v, ld = v[0], ld.replace("v9", "v%d" % v[1])
        sp += side.spin_stub(f"L_ls{n}", f"L_lr{n}", ld, A.vRL, 91, f"v_cmp_gt_u32 vcc, {v}, v{{vt}}")
    for n, (ld, half) in WSPIN.items():
        sp += side.spin_stub(f"L_ws{n}", f"L_wr{n}", ld, A.vRL, 91, f"v_cmp_ne_u32 vcc, 1, v{{vt}}\ns_nop 0\ns_mov_b32 vcc_{'hi' if half == 'lo' else 'lo'}, 0")
    c.block("spins", side.z_stub(0), side.z_stub(1), hw.key_stub(), sp, f"""
    L_fll:
    s_cmp_eq_u32 s{sJ}, 8
    s_cbranch_scc1 L_fl8
    L_fl0:
    s_cmp_lg_u32 s{A.sWAVE}, 0
    s_cbranch_scc1 L_fl3
    s_lshr_b32 s64, s{sJ}, 3
    s_cmp_eq_u32 s{A.sCHK}, s64
    s_cbranch_scc0 L_fl1
    v_mov_b32 v{A.vX + 5}, 4
    {side.flag_store(sFL, A.vF0, A.vX + 5).text}
    L_fl1:
    s_cmp_lt_u32 s{A.sCHK}, s{sMODE}
    s_cbranch_scc1 L_fllr
    s_cmp_eq_u32 s{A.sCHK}, s{sMODE}
    s_cselect_b32 s64, 0x380, -1
    v_min_u32 v{A.vX + 7}, s64, v9
    s_mov_b32 s{A.sREQ}, 4
    buffer_load_dword v{A.vRL}, v{A.vX + 7}, {WSR}, s46 offen sc1
    s_branch L_fllr
    L_fl8:
    s_mul_i32 s64, s{A.sWAVE}, 57344
    s_sub_u32 s65, s{A.sCHK}, 1
    s_lshl_b32 s65, s65, 14
    s_add_u32 s64, s64, s65
    s_add_u32 s65, s64, 8192
    v_lshlrev_b32 v11, 3, v{A.vL16}
    s_bitcmp1_b32 {int(opt['w8'])}, s{A.sCHK}
    s_cbranch_scc0 L_fl0
    {side.touch(11, S_WO, "s64", nt=False).text}
    {side.touch(11, S_WO, "s65", nt=False).text}
    s_cmp_gt_u32 s{A.sCHK}, 2
    s_cbranch_scc1 L_fllr
    s_cmp_lg_u32 s{A.sWAVE}, 0
    s_cbranch_scc1 L_fllr
    s_branch L_fl0
    L_fl3:
    s_cmp_eq_u32 s{A.sCHK}, {TY}
    s_cbranch_scc1 L_y2
    s_cmp_eq_u32 s{A.sCHK}, {TY + 1}
    s_cbranch_scc1 L_y3
    s_cmp_eq_u32 s{A.sCHK}, {TY + 2}
    s_cbranch_scc1 L_y4
    s_branch L_y5
    s_waitcnt vmcnt(0)
    L_fps:
    s_cmp_lg_u32 s{sNC}, 0
    s_cbranch_scc1 L_fpr
    """, side.spin_stub("L_fps2", "L_fpr", FP_LOAD().text, A.vRL + 1, 91),
            side.spin_stub("L_fqs", "L_fqr", f"buffer_load_dword v{A.vRL + 1}, off, {WSR}, s47 offset:16 sc1", A.vRL + 1, 91),
            side.spin_stub("L_fls0", "L_flr0", FL_LOAD().text.replace("v9", f"v{A.vX + 7}"), A.vRL, 91, f"v_cmp_gt_u32 vcc, s{A.sREQ}, v{{vt}}"))
    c.block("ystubs", side5.y_stubs("L_fllr", int(opt['ht'])))

def paths(c):
    lp = ["loop_top", "loop_mid"]
    n = ["d1", "d2n", "d3n", "d4n", "d5n", "opn"]
    c.path("entry", "kv1", *lp, *lp, *lp, "p1", *n, "end1")
    c.path("entry", "kv0", "k1", *lp, *lp, *lp, "p1", *n, "red0", "red")
    for own in (["j0"], ["k1", "d1", "d2h"], ["k1", *lp, "p1", "d1", "d2h"], ["k1", *lp, *lp, *lp, "p1", "d1", "d2h"]):
        for nh in (0, 1, 2, 3):
            c.path("entry", "kv0", *own, "d3h", "d4h", "d5h", *(lp * nh), *(["p1"] if nh else []), "final_h", "oph", "red")
    for b in ("rpoll", "vfar", "stubs", "slow", "moe", "spins", "ystubs"): c.path(b)

def check_tiles(c):
    size = dict(U=7, T=8, W=4, C=4, X=4)
    for path in c.paths:
        cnt = {}
        for b in path:
            for i in c.blocks[b]:
                if i.kind == "dma" and isinstance(i.tag, tuple): cnt[i.tag] = cnt.get(i.tag, 0) + 1
                if i.op == "WAITV":
                    for t in (i.tag if isinstance(i.tag, list) else [i.tag]):
                        if isinstance(t, tuple) and t[0] in size:
                            n = cnt.pop(t, 0)
                            assert (n or b in ("final_h", "oph")) and n % size[t[0]] == 0, (path, b, t, n)
def ustamps(c):
    names = ["start"]
    for spec in [x for x in opt['us'].split(",") if x]:
        b, lo, hi = (spec.split(":") + ["0", "999"])[:3]
        o = []; pend = None; nb = 0
        def rec(n):
            r = L(f"v_accvgpr_write_b32 a255, v10\nv_accvgpr_read_b32 v10, a254\nv_writelane_b32 v10, s98, {n}\nv_accvgpr_write_b32 a254, v10\nv_accvgpr_read_b32 v10, a255")
            for i in r: i.extra["ghost"] = True
            return r
        for i in c.blocks[b]:
            if pend is not None and (i.op in ("s_endpgm", "s_call_b64") or i.kind == "branch" and i is c.blocks[b][-1]): o += rec(pend); pend = None
            o.append(i)
            if pend is not None and i.op in ("NEED", "WAITV"): o += rec(pend); pend = None
            if i.op == "s_barrier" or i.text.endswith("; us"):
                nb += 1
                if int(lo) <= nb <= int(hi):
                    pend = len(names); names.append(f"{b}.{nb}"); o.append(I("s_memtime s[98:99]"))
        if pend is not None: o += rec(pend)
        c.blocks[b] = o
    assert len(names) <= 64
    return names
def ipref(c):
    n = 0
    for b in [x for x in opt['ip'].split(",") if x]:
        o = []; q = b not in ("kv0", "kv1")
        for i in c.blocks[b]:
            o.append(i)
            if i.text.startswith("s_mov_b64 s[60:61], s[76:77]"): q = True
            if i.op == "s_barrier":
                n += 1
                o += [I("s_getpc_b64 s[100:101]"), I(f"s_load_dword s94, s[100:101], {opt['ipd']} ; ignore")]
        c.blocks[b] = o
SHORT = [("v_mfma_f32_16x16x32_bf16", "M", 4), ("ds_read_b128", "R", 0), ("ds_read_b64_tr_b16", "T", 0), ("v_cvt_pk_bf16_f32", "C", 3), ("v_exp_f32", "E", 2),
         ("v_accvgpr_write_b32", "W", 2), ("v_accvgpr_read_b32", "G", 2), ("v_add_f32", "AF", 3), ("v_mul_f32", "MF", 3), ("s_add_u32", "SA", 3)]
def compress(body):
    hdr = []; out = []
    for full, sh, n in SHORT:
        if n: hdr.append(f".macro {sh} " + ", ".join("abcd"[:n]) + f"\n{full} " + ", ".join("\\" + x for x in "abcd"[:n]) + "\n.endm")
        else: hdr.append(f".macro {sh} a, b, c\n{full} \\a, \\b offset:\\c\n.endm")
    for ln in body.split("\n"):
        ln = ln.strip()
        for full, sh, n in SHORT:
            if ln.startswith(full + " ") and "row_" not in ln and (n or " offset:" in ln):
                ln = sh + " " + ln[len(full) + 1:].replace(" offset:", ",").replace(", ", ","); break
        out.append(ln)
    return "\n".join(hdr), "\n".join(out)

if __name__ == "__main__":
    c = CFG(verbose=int(opt["v"]))
    entry(c); front(c, 0); front(c, 1)
    stubs = build_att(c)
    n0 = len(c.order)
    mid_blocks(c, stubs); c.block("moe", side5.red_moe())
    k = c.order.index("loop_top")
    c.order = c.order[:k] + c.order[n0:-1] + c.order[k:n0] + c.order[-1:]
    c.order.remove("red0"); c.order.append("red0")
    paths(c); opt['nochk'] == '1' or check_tiles(c); names = ustamps(c); ipref(c)
    txt = c.finalize()
    if opt['nochk'] == '0': ldscheck.check(c)
    if int(opt['v']):
        for b in c.order:
            m = c.mat[b]; bad = sum(1 for x, y in zip(m, m[1:]) if x.kind in ("valu", "trans") and y.kind in ("dsr", "dsw", "dma", "vld", "vst"))
            if any(i.kind == "mfma" for i in m): sys.stderr.write(f"; {b}: valu->mem {bad}\n")
    for spec in [x for x in opt['fl_'].split(",") if x]:
        r, f = spec.split(":")
        for b in c.order:
            for i in c.mat[b]:
                if i.kind == "dma" and f"s[{r}:" in i.text: i.text = i.text.replace(" nt", "").replace(" sc1", "").replace(" lds", " " + f.replace("+", " ") + " lds")
    if opt['dbg'] != '-':
        for b in c.order:
            for i in c.mat[b]:
                if "s[12:15]" in i.text and i.op in ("buffer_store_dword", "buffer_load_dword") and "v17" in i.text: i.text = i.text.replace("offen", "offen offset:64")
    if WARM: txt = warm.place(c, ("kv0", "kv1", "loop_top"))
    hdr, body = compress(txt)
    kn = NAME + "_kernel"
    print("; Fused MLA-style attention + gated MoD block for gfx950; generated by dev/gen5.py (hand-written generator)")
    if opt['us']: print("; sites " + " ".join(names))
    print("; @launch grid=(256,1,1) block=(256,1,1) lds=163840")
    print('.amdgcn_target "amdgcn-amd-amdhsa--gfx950"\n.text')
    print(hdr)
    print(kernel_header(kn))
    print(body)
    print("L_code_end:")
    print('.section .rodata,"a"\n.p2align 6')
    print(kernel_desc(kn, sgpr=102))
```

```python
from common import *
from sched import *
import kvq
from kvq import K, kacc, rr, cfrag, rd_c, unit, weave_units, spread2, pack, WSLOT

def dep(cons, *prods):
    for p in prods:
        for r in p.writes:
            if r in cons.reads:
                cons.extra.setdefault("raw", {})[r] = p; cons.extra.setdefault("pin", set()).add(r)

def wfrag(buf, x, ks): return 32 + (buf ^ 1) * 64 + (x * 2 + ks) * 4
NTW = 'nt'
NC, CF, NW = 0, 'nt', 0
def unit_w(u):
    o = unit(K.sM0W, WSLOT[u & 3], K.vWD, K.S_W, K.sWOFF, 128 if u % 2 == 0 else 64 * 8192 - 128, ("W", u & 3))
    if u < NW:
        for i in o: i.text = i.text.replace(" nt", "")
    return o
def unit_c(u): return unit(K.sM0C, (u & 3) * 16384, K.vCD, K.S_C, K.sCOFF, 512 * 2048 if u % 2 == 0 else -(512 * 2048 - 128), ("C", u & 3), CF if u < NC else '')
QUART = [0, 2, 1, 3]
def rd_w(buf, slot, x, ks, j):
    r = wfrag(buf, x, ks) + 2 * j
    return I(f"ds_read_b64_tr_b16 a[{r}:{r+1}], v{K.vWR + (x & 3)} offset:{WSLOT[slot] + (32 * ks + 4 * j) * 256}")
def rd_w_unit(buf, slot, hx):
    return [rd_w(buf, slot, x, ks, j) for x in range(4 * hx, 4 * hx + 4) for ks in range(2) for j in range(2)]
def row_mfmas(y, wbuf, cbuf, vtype, first):
    ms = []
    for x in range(8):
        for n, ks in enumerate((0, 1) if x % 2 == 0 else (1, 0)):
            w = R("a", wfrag(wbuf, x, ks), 4); c = R("a", cfrag(cbuf, ks), 4)
            d = rr(kacc(y, x))
            cin = "0" if (first and n == 0) else d
            ms.append(mfma(d, c, w, cin) if vtype else mfma(d, w, c, cin))
    return ms
def kv_dma(t):
    out = []
    for u in (2 * t, 2 * t + 1):
        l = []
        if u + 3 < 32: l.append(unit_c(u + 3))
        if u + 5 < 32: l.append(unit_w(u + 5))
        out.append(l)
    return out
DR = [3, 44, 51, 108, 0]; T0 = 0
def kv_tile(t, vtype, dma, endtags=()):
    first = t == 0
    ms = []
    for y in range(8): ms += row_mfmas(y, t & 1, y & 1, vtype, first)
    g = Gaps(ms)
    for h in (1, 2):
        u = 2 * t + h
        k0 = (4 * h - 1) * 16 - 1
        tags = ([("C", u & 3)] if u < 32 else []) + ([("W", (u + 2) & 3)] if u + 2 < 32 else []) + (list(endtags) if h == 2 else [])
        g.put_s(k0 - 1, WAITV(tags, lgkm0=True))
        g.put_s(k0, I("s_barrier"))
    for y in range(8):
        ny = y + 1
        u = 2 * t + (ny >> 2)
        if u < 32:
            for ks in range(2): g.put(y * 16, rd_c(ny & 1, u & 3, ny & 3, ks))
            g.put_s(y * 16 + 13, NEED(R("a", cfrag(ny & 1, 0), 8)))
    if first and T0:
        for x in range(1, 8, 2): g.put_s(2 * x - 1, NEED(R("a", wfrag(0, x, 0), 16 if x < 7 else 8)))
        g.sc[46][0].tag = [("C", 1)]
        kb = T0
        g.put_s(kb - 1, WAITV([("W", 2), ("W", 3)], lgkm0=True)); g.put_s(kb, I("s_barrier"))
        spread2(g, rd_w_unit(1, 2, 0) + rd_w_unit(1, 3, 1), kb + 1, 106)
        (c3, w5), (c4, w6) = dma
        parts = [[unit_w(3), unit_c(2)], [unit_w(4), c3], [w5, c4], [w6]]
        link([i for p in parts for u_ in p for i in u_])
        weave_units(g, parts[0], 1, 30); weave_units(g, parts[1], 49, kb - 3); weave_units(g, parts[2], kb + 2, 108); weave_units(g, parts[3], 113, 126)
        return g
    if first:
        for x in range(1, 8, 2): g.put_s(2 * x - 1, NEED(R("a", wfrag(0, x, 0), 16 if x < 7 else 8)))
        g.put_s(14, WAITV([("W", 2)], lgkm0=True)); g.put_s(15, I("s_barrier"))
        spread2(g, rd_w_unit(1, 2, 0), 17, 42)
        spread2(g, rd_w_unit(1, 3, 1), 50, 106)
        a_, b_, c_ = [unit_w(3)], [unit_c(2), unit_w(4)], dma[0] + dma[1]
        link([i for u_ in a_ + b_ + c_ for i in u_])
        weave_units(g, a_, 1, 14); weave_units(g, b_, 17, 46); weave_units(g, c_, 49, 110)
        return g
    if t < 15:
        spread2(g, rd_w_unit((t + 1) & 1, (2 * t + 2) & 3, 0), 1, 42)
        spread2(g, rd_w_unit((t + 1) & 1, (2 * t + 3) & 3, 1), 50, 106)
    weave_units(g, dma[0], *DR[:2])
    weave_units(g, dma[1], DR[2], DR[3] + (DR[4] if len(dma[1]) > 2 else 0))
    return g
def kv_pairs(vtype):
    if not vtype:
        return [((y, 2 * xp), (y, 2 * xp + 1), QUART[y >> 1] * 262144 + (y & 1) * 8192 + xp * 1024) for y in range(8) for xp in range(4)]
    return [((2 * yp, x), (2 * yp + 1, x), QUART[yp] * 262144 + x * 2048) for yp in range(4) for x in range(8)]

class QR:
    vQD = 8
    vXD, vXR = 22, 20
    vRB = {2: 12, 0: 16, 1: 20}
    sW1K, sOFF, sXA, sXB = 4, 25, 29, 30
HALF = dict(w0=0, w1=16384, w2=32768, w3=49152, c0=65536, c1=81920, c2=98304, c3=114688, A=131072, B=147456)
def _locs(spec): return [HALF[p[:-2]] + 4096 * n for p in spec.split() for n in range(int(p[-2]), int(p[-1]))]
_L = [_locs("w004 w104 A04 B02"), _locs("w304 c204 c304 w202"), _locs("c004 c104 B24 A04"), _locs("w004 w104 w224 w304")]
ULOC = [l[7 * h:7 * h + 7] for l in _L for h in range(2)]
XLOC = [HALF[h] for h in "A B A B w2 c0 c1".split()]
def xreg(qb, ks): return (176 + (ks * 2 + qb) * 4) if ks < 8 else (96 + ((ks - 8) * 2 + qb) * 4)
def x_setup():
    return L(f"""
    v_lshrrev_b32 v28, 4, v0
    v_and_b32 v29, 7, v0
    v_xor_b32 v28, v28, v29
    v_lshlrev_b32 v28, 4, v28
    v_lshrrev_b32 v29, 3, v0
    v_mul_u32_u24 v29, 896, v29
    v_add_u32 v{QR.vXD}, v28, v29
    v_xor_b32 v28, 64, v28
    s_mul_i32 s64, s{K.sWAVE}, {16 * 896}
    s_sub_u32 s65, {7 * 16 * 896 - 2048}, s64
    s_add_u32 s{QR.sXB}, s{K.sXOFF}, s65
    s_add_u32 s{QR.sXA}, s{K.sXOFF}, s64
    v_add_u32 v29, {7168 - 1024}, v29
    v_add_u32 v{QR.vXD + 1}, v28, v29
    s_and_b32 s64, s{K.sWAVE}, 1
    s_lshl_b32 s64, s64, 12
    s_add_u32 s64, s64, 65536
    v_add_u32 v{QR.vXR}, s64, v{K.vCR}
    v_add_u32 v{QR.vXR + 1}, s64, v{K.vCR + 1}
    """)
def x_dma(kt):
    return ([I(f"s_add_u32 m0, s{K.sM0W}, {XLOC[kt]}")] +
            [I(f"buffer_load_dwordx4 v{QR.vXD + (j & 1)}, s[{K.S_X}:{K.S_X+3}], s{QR.sXA if j < 2 else QR.sXB} offen offset:{1024 * j} lds", tag=("X", kt), lds=(XLOC[kt], XLOC[kt] + 16384, "X!")) for j in range(4)] +
            L(f"s_add_u32 s{QR.sXA}, s{QR.sXA}, 128\ns_add_u32 s{QR.sXB}, s{QR.sXB}, 128"))
def x_read(kt, xl):
    base = 131072 if kt < 4 else 32768
    out = [WAITV([("X", kt)])]
    for k2 in range(2):
        for qb in range(2):
            r = xreg(qb, 2 * kt + k2)
            out.append(I(f"ds_read_b128 a[{r}:{r+3}], v{QR.vXR + k2} offset:{XLOC[kt] - base + qb * 2048}", lds=(XLOC[kt], XLOC[kt] + 16384, "X!"))); xl[(qb, 2 * kt + k2)] = out[-1]
    if kt == 3: out += [I(f"v_subrev_u32 v{QR.vXR + k2}, {131072 - 32768}, v{QR.vXR + k2}") for k2 in range(2)]
    return out
def q_setup():
    return L(f"""
    s_lshl_b32 s{QR.sW1K}, s{K.sWAVE}, 10
    v_bfe_u32 v28, v0, 3, 2
    v_lshrrev_b32 v29, 5, v0
    v_lshl_add_u32 v28, v29, 3, v28
    v_lshlrev_b32 v28, 13, v28
    v_lshrrev_b32 v29, 4, v0
    v_lshlrev_b32 v29, 1, v29
    v_and_b32 v30, 7, v0
    v_xor_b32 v29, v29, v30
    v_lshl_add_u32 v28, v29, 4, v28
    s_and_b32 s64, s{K.sWAVE}, 1
    s_lshl_b32 s64, s64, 17
    s_lshr_b32 s65, s{K.sWAVE}, 1
    s_lshl_b32 s65, s65, 15
    s_add_u32 s64, s64, s65
    v_add_u32 v{QR.vQD}, s64, v28
    """)
def tr_addr(dst, lane, t):
    return L(f"""
    v_lshrrev_b32 v{t}, 2, v{lane}
    v_lshlrev_b32 v{t}, 7, v{t}
    v_and_b32 v{t+1}, 3, v{lane}
    v_lshl_add_u32 v{t}, v{t+1}, 3, v{t}
    v_bfe_u32 v{t+1}, v{lane}, 3, 2
    v_lshl_add_u32 v{dst}, v{t+1}, 5, v{t}
    v_xor_b32 v{dst+1}, 32, v{dst}
    v_xor_b32 v{dst+2}, 64, v{dst}
    v_xor_b32 v{dst+3}, 0x60, v{dst}
    """)
def q_bank(b): return [I(f"v_add_u32 v{QR.vRB[b] + x}, {hex(b << 16)}, v{QR.vRB[0] + x}") for x in range(4)]
def q_setup2(): return tr_addr(QR.vRB[0], 0, 28) + q_bank(2)
def wq_dma(u, f):
    cg, ks = u >> 1, 7 * (u & 1) + f
    return [I(f"s_mov_b32 s{QR.sOFF}, {cg * 128 + ks * 32 * 8192}"), I(f"s_add_u32 m0, s{QR.sW1K}, {ULOC[u][f]}"),
            I(f"buffer_load_dwordx4 v{QR.vQD}, s[{K.S_WQ}:{K.S_WQ+3}], s{QR.sOFF} offen lds", tag=("U", u), lds=(ULOC[u][f], ULOC[u][f] + 4096, "U"))]
def wq_unit(u, lo=0, hi=7): return [i for f in range(lo, hi) for i in wq_dma(u, f)]
class QPhase:
    def __init__(self, vbuf, accq):
        self.vbuf, self.accq, self.lastm = vbuf, accq, {}
        self.rd = [self._reads(n) for n in range(32)]
    def frag(self, n, f):
        return ("v", self.vbuf[f]) if n % 2 == 0 else ("a", 144 + 4 * f)
    def acc(self, cg, x4, qb): return self.accq[(cg & 1) * 8 + x4 * 2 + qb]
    def _reads(self, n):
        u = n >> 2; out = []
        for f in range(7):
            k, r = self.frag(n, f)
            out += [I(f"ds_read_b64_tr_b16 {k}[{r + 2*j}:{r + 2*j + 1}], v{QR.vRB[ULOC[u][f] >> 16] + (n & 3)} offset:{(ULOC[u][f] & 0xffff) + j * 2048}", lds=(ULOC[u][f], ULOC[u][f] + 4096, "r")) for j in range(2)]
        return out
    def mfmas(self, xl):
        ms = []
        for n in range(32):
            cg, hf, x4 = n >> 3, (n >> 2) & 1, n & 3
            for qb in range(2):
                d = R("v", self.acc(cg, x4, qb), 4)
                for m, f in enumerate(range(7) if qb == 0 else range(6, -1, -1)):
                    k, r = self.frag(n, f)
                    i = mfma(d, R(k, r, 4), R("a", xreg(qb, 7 * hf + f), 4), "0" if hf == 0 and m == 0 else d)
                    dep(i, self.rd[n][2 * f], self.rd[n][2 * f + 1], xl[(qb, 7 * hf + f)])
                    ms.append(i); self.lastm[(cg, x4, qb)] = i
        return ms
    PAT = [0, 0, 2, 2, 3, 3, 5, 5, 6, 6, 8, 8, 9, 9]
    def place_reads(self, g, n, base, pat=None):
        for k, r in zip(pat or self.PAT, self.rd[n]): g.put(base + k, r)
    def need(self, n, lo, hi): return NEED(*[R(*self.frag(n, f), 4) for f in range(lo, hi)])
    def out(self, cg, p2, qb, qreg):
        a, b = self.acc(cg, 2 * p2, qb), self.acc(cg, 2 * p2 + 1, qb)
        ins = [I(f"v_mul_f32 v{r + e}, s{K.sSC}, v{r + e}") for r in (a, b) for e in range(4)]
        if (cg, p2) != (3, 1):
            for i in ins: dep(i, self.lastm[(cg, 2 * p2, qb)], self.lastm[(cg, 2 * p2 + 1, qb)])
        ins += pack(("v", a), ("v", b), 0)[0]
        ins += [I(f"v_accvgpr_write_b32 a{qreg + e}, v{a + e}") for e in range(4)]
        return ins, 14 * (8 * cg + 4 + 2 * p2 + 1) + 7 * qb + 6
```

```python
from common import *
from side import S_WS, sWAVE, sH, sJ, WS, OOB, poll_flags
sI0, sI1 = 92, 94
FINE = False
NAT = True
COL = lambda: "v_bfe_u32 v34, v32, 4, 1\nv_lshlrev_b32 v34, 1, v34\nv_lshrrev_b32 v35, 5, v32\nv_add_u32 v34, v34, v35" if NAT else "v_lshrrev_b32 v34, 4, v32"
NE = 6
FOP_LOAD = f"buffer_load_dword v9, v33, {WS}, s46 offen sc1"
aSEL = 244
RS = [dict(row=37, off=38, g=39, x=48, b=64, acc=96, n=2, col=75), dict(row=29, off=28, g=26, x=44, b=80, acc=112, n=1, col=79),
      dict(row=29, off=28, g=26, x=44, b=48, acc=56, n=1, col=79)]
def red_k1(vl16):
    out = L(f"""
    v_lshrrev_b32 v32, 4, v{vl16}
    s_lshr_b32 s74, s{sH}, 3
    s_lshl_b32 s64, s{sJ}, 1
    s_add_u32 s46, s64, s74
    s_mul_i32 s46, s46, {FSTR}
    s_and_b32 s72, s{sH}, 7
    s_lshl_b32 s65, s72, 7
    s_add_u32 s46, s46, s65
    s_add_u32 s46, s46, {WS_FOP}
    v_and_b32 v33, 31, v32
    v_lshlrev_b32 v33, 2, v33
    s_lshl_b32 s65, s{sH}, 7
    s_add_u32 s65, s65, {WS_SEL}
    buffer_load_dword v31, v33, {WS}, s65 offen sc1
    {COL()}
    {srd(52, 96, 2048*896)}
    s_mul_i32 s77, s{sJ}, {16 * OP_HEAD}
    s_mul_i32 s78, s72, 14336
    s_add_u32 s77, s77, s78
    s_add_u32 s77, s77, {WS_OP}
    s_lshl_b32 s79, s74, {2 if NE == 8 else 1}
    s_add_u32 s79, s79, s{sWAVE}
    s_lshl_b32 s71, s74, 1
    s_add_u32 s71, s71, {3 if NE == 8 else 1}
    s_sub_u32 s71, s71, s{sWAVE}
    s_and_b32 s71, s71, {OOB}
    s_sub_u32 s64, 15, s64
    s_sub_u32 s78, s64, 1
    s_mul_i32 s78, s78, {16 * OP_HEAD}
    s_add_u32 s78, s78, s77
    s_lshl_b32 s65, s79, 10
    s_add_u32 s78, s78, s65
    s_add_u32 s78, s78, s71
    s_lshl_b32 s79, s79, 6
    s_or_b32 s79, s79, s71
    s_mul_i32 s67, s74, -2
    s_lshl_b32 s74, s74, 3
    s_add_u32 s74, s74, s{sWAVE}
    s_lshl_b32 s75, s74, 6
    s_add_u32 s76, s75, 256
    s_add_u32 s67, s67, 3
    s_sub_u32 s67, s67, s{sWAVE}
    s_and_b32 s67, s67, {OOB}
    s_or_b32 s76, s76, s67
    v_or_b32 v27, s67, v{vl16}
    v_add_u32 v27, 4096, v27
    s_lshl_b32 s65, s74, 10
    s_add_u32 s77, s77, s65
    s_lshl_b32 s64, s64, 7
    s_lshr_b32 s73, s72, 1
    s_sub_u32 s65, 7, s73
    s_bitcmp1_b32 s72, 0
    s_cselect_b32 s73, s65, s73
    s_lshl_b32 s73, s73, 4
    s_lshl_b32 s65, s{sJ}, 7
    s_add_u32 s73, s73, s65
    v_and_b32 v37, 15, v32
    v_add_u32 v37, s73, v37
    v_add_u32 v29, s64, v37
    s_mov_b32 s64, {WS_RG + 64}
    """)
    for r in RS[:2]:
        out += L(f"""
        v_mul_u32_u24 v{r['off']}, 896, v{r['row']}
        v_lshl_add_u32 v{r['off']}, v34, 4, v{r['off']}
        v_lshrrev_b32 v35, 4, v{r['row']}
        v_lshlrev_b32 v35, 5, v35
        v_and_b32 v36, 15, v{r['row']}
        v_add_lshl_u32 v35, v35, v36, 2
        buffer_load_dword v{r['g']}, v35, {WS}, s64 offen sc1
        """) + [I(f"buffer_load_dwordx4 v[{r['x']+4*u}:{r['x']+4*u+3}], v{r['off']}, s[56:59], s{r['col']+u} offen") for u in range(r['n'])]
    return out
def red_b(t):
    r = RS[t]; n = r['n']
    return L(f"v_readlane_b32 s{sI0}, v31, 0\nv_readlane_b32 s{sI1}, v31, 1" if t == 0 else "") + [i for w in range(4 * n) for i in L(f"v_lshlrev_b32 v{r['b']+2*w}, 16, v{r['x']+w}\nv_and_b32 v{r['b']+1+2*w}, 0xffff0000, v{r['x']+w}")] + L(f"""
    v_sub_f32 v30, 1.0, v{r['g']}
    v_cmp_eq_u32 s[80:81], s{sI0}, v{r['row']}
    v_cmp_eq_u32 s[82:83], s{sI1}, v{r['row']}
    s_or_b64 vcc, s[80:81], s[82:83]
    s_cbranch_vccnz L_moe{t}
    L_moe_ret{t}:
    """) + [I(f"v_mul_f32 v{r['b']+e}, v30, v{r['b']+e}") for e in range(8 * n)]
def red_fin(t, note=""):
    r = RS[t]; o = []
    o += [I(f"v_permlane16_swap_b32 v{r['acc']+8*u+e}, v{r['acc']+8*u+4+e}") for u in range(r['n']) for e in range(4) if NAT]
    for u in range(r['n']):
        o += [I(f"v_fmac_f32 v{r['b']+8*u+e}, v{r['g']}, v{r['acc']+8*u+e}") for e in range(8)]
        o += [I(f"v_cvt_pk_bf16_f32 v{r['x']+4*u+w}, v{r['b']+8*u+2*w}, v{r['b']+1+8*u+2*w}") for w in range(4)]
        o.append(I(f"buffer_store_dwordx4 v[{r['x']+4*u}:{r['x']+3+4*u}], v{r['off']}, s[52:55], s{r['col']+u} offen sc1{note}"))
    return o
def adds(t, reg, first):
    o = []
    for u in range(RS[t]['n']):
        for hf in range(2):
            d = R("v", RS[t]['acc'] + 8 * u + 4 * hf, 4)
            o.append(mfma(d, R("a", aSEL + 2 - 2 * hf, 4), R("v", reg + 4 * u, 4), "0" if first else d))
    return o
RFL = ['sc1', 'sc1']
RING = [16, 17, 18, 19, 48, 49, 50, 51, 21, 22, 23, 24, 25, 26, 27, 28]
def pick(lab, base, regs, vas, so=72):
    return L(f"""s_cmp_lg_u32 s70, 0
    s_cbranch_scc1 {lab}
    s_call_b64 s[36:37], L_rpoll
    {lab}:
    s_ff1_i32_b32 s71, s70
    s_bitset0_b32 s70, s71
    s_mul_i32 s71, s71, {OP_HEAD}
    s_add_u32 s{so}, s71, s{base}""") + [I(f"buffer_load_dwordx4 v[{r}:{r+3}], v{a}, {WS}, s{so} offen {RFL[lab[2] == 'v']}") for r, a in zip(regs, vas)]
def red_main(vl16, st=lambda: [], lag=5, lag2=11):
    out = L(f"""
    v_cmp_eq_u32 vcc, 1, v9
    s_mov_b32 s91, {SPIN_MAX}
    s_mov_b32 s69, 0xffff
    s_and_b32 s70, vcc_lo, s69
    s_mov_b32 s68, s70
    """)
    reg = lambda k: 128 + 8 * (k % 8) if k < 16 else 192 + 4 * (k - 16)
    done = 0
    for k in range(32):
        if k == 16: out += L("v_cmp_eq_u32 vcc, 1, v8\ns_mov_b32 s69, 0xffff0000\ns_and_b32 s70, vcc_lo, s69\ns_mov_b32 s68, s70")
        out += pick(f"L_rk{k}", 77, [reg(k), reg(k) + 4], [vl16, 27]) if k < 16 else pick(f"L_rk{k}", 78, [reg(k)], [vl16])
        if k == PK: out += L(FOP_LOAD.replace("v9", "v8"))
        if k in (lag - 1, lag): out += red_b(k - lag + 1)
        if k == 31 or (FINE and k % 3 == 0): out += st()
        while done <= k - (lag if done < 16 else lag2):
            out += adds(done // 16, reg(done), done % 16 == 0); done += 1
            if done == 16: out += red_fin(0)
    while done < 32: out += adds(1, reg(done), False); done += 1
    return out + st() + red_fin(1)
PK = 12
def red_v1(vl16):
    return L(f"""
    v_lshrrev_b32 v32, 4, v{vl16}
    s_lshr_b32 s74, s{sH}, 3
    s_sub_u32 s64, 15, s{sJ}
    s_mul_i32 s46, s64, {2 * FSTR}
    s_and_b32 s72, s{sH}, 7
    s_lshl_b32 s65, s72, 7
    s_add_u32 s46, s46, s65
    s_add_u32 s46, s46, {WS_FOP + 1024}
    v_and_b32 v33, 31, v32
    v_lshlrev_b32 v33, 2, v33
    s_lshl_b32 s65, s{sH}, 7
    s_add_u32 s65, s65, {WS_SEL}
    buffer_load_dword v31, v33, {WS}, s65 offen sc1
    {COL()}
    {srd(52, 96, 2048*896)}
    s_mul_i32 s77, s{sJ}, {16 * OP_HEAD}
    s_mul_i32 s78, s72, 14336
    s_add_u32 s77, s77, s78
    s_add_u32 s77, s77, {WS_OP}
    s_lshl_b32 s79, s74, 2
    s_add_u32 s79, s79, s{sWAVE}
    s_add_u32 s79, s79, {NE}
    s_sub_u32 s67, 13, s79
    s_and_b32 s67, s67, {OOB}
    s_lshl_b32 s78, s79, 10
    s_add_u32 s78, s78, s77
    s_lshl_b32 s79, s79, 6
    s_or_b32 s79, s79, s67
    v_or_b32 v27, s67, v{vl16}
    s_lshr_b32 s73, s72, 1
    s_sub_u32 s65, 7, s73
    s_bitcmp1_b32 s72, 0
    s_cselect_b32 s73, s65, s73
    s_lshl_b32 s73, s73, 4
    s_lshl_b32 s65, s{sJ}, 7
    s_add_u32 s73, s73, s65
    v_and_b32 v29, 15, v32
    v_add_u32 v29, s73, v29
    s_mov_b32 s64, {WS_RG + 64}
    v_mul_u32_u24 v28, 896, v29
    v_lshl_add_u32 v28, v34, 4, v28
    v_lshrrev_b32 v35, 4, v29
    v_lshlrev_b32 v35, 5, v35
    v_and_b32 v36, 15, v29
    v_add_lshl_u32 v35, v35, v36, 2
    buffer_load_dword v26, v35, {WS}, s64 offen sc1
    buffer_load_dwordx4 v[44:47], v28, s[56:59], s79 offen
    """)
def red_v2():
    return L(f"""
    v_readlane_b32 s{sI0}, v31, 0
    v_readlane_b32 s{sI1}, v31, 1
    v_sub_f32 v30, 1.0, v26
    """) + [i for w in range(4) for i in L(f"v_lshlrev_b32 v{48+2*w}, 16, v{44+w}\nv_and_b32 v{49+2*w}, 0xffff0000, v{44+w}")] + L(f"""
    v_cmp_eq_u32 s[80:81], s{sI0}, v29
    v_cmp_eq_u32 s[82:83], s{sI1}, v29
    """)
def red_main_v(st=lambda: [], lag=8, sent=False):
    out = L(f"""
    v_cmp_eq_u32 vcc, 1, v9
    s_mov_b32 s91, {SPIN_MAX}
    s_lshl_b32 s70, 1, s{sH}
    s_mov_b32 s69, 0xffff
    s_or_b32 s70, s70, vcc_lo
    s_mov_b32 s68, s70
    s_barrier
    """); far = []
    for k in range(16 + lag):
        if k < 16: out += pick(f"L_vk{k}", 78, [128 + 4 * k], [27], RING[k])
        if k == 7: out += L("""
            s_or_b64 vcc, s[80:81], s[82:83]
            s_cbranch_vccnz L_moe2
            L_moe_ret2:
            """) + [I(f"v_mul_f32 v{48+e}, v30, v{48+e}") for e in range(8)]
        if k == 15: out += st()
        if k >= lag:
            n = k - lag; r = 128 + 4 * n
            if sent:
                tst = f"v_max3_u32 v10, v{r}, v{r+1}, v{r+2}\nv_max_u32 v10, v10, v{r+3}\nv_cmp_eq_u32 vcc, -1, v10"
                out += L(f"{tst}\ns_cbranch_vccnz L_vz{n}\nL_vw{n}:")
                far.extend(L(f"""L_vz{n}:
                buffer_load_dwordx4 v[{r}:{r+3}], v27, {WS}, s{RING[n]} offen sc1
                s_sub_u32 s91, s91, 1
                s_cbranch_scc1 L_vx{n}
                s_waitcnt vmcnt(0)
                {tst}
                s_cbranch_vccnz L_vz{n}
                L_vx{n}:
                s_waitcnt vmcnt(0)
                s_branch L_vw{n}"""))
            out += adds(2, r, k == lag)
    return out + st() + red_fin(2), far
POLL2 = 0
def red_poll():
    if POLL2: return L(f"""
    L_rpoll:
    {FOP_LOAD}
    L_rpoll0:
    s_sleep {POLL2}
    {FOP_LOAD.replace("v9", "v6")}
    s_waitcnt vmcnt(1)
    v_cmp_eq_u32 vcc, 1, v9
    s_sub_u32 s91, s91, 1
    s_cselect_b32 s70, -1, 0
    s_or_b32 s70, s70, vcc_lo
    s_and_b32 s70, s70, s69
    s_andn2_b32 s70, s70, s68
    s_cbranch_scc1 L_rpx
    s_sleep {POLL2}
    {FOP_LOAD}
    s_waitcnt vmcnt(1)
    v_cmp_eq_u32 vcc, 1, v6
    s_nop 0
    s_and_b32 s70, vcc_lo, s69
    s_andn2_b32 s70, s70, s68
    s_cbranch_scc0 L_rpoll0
    L_rpx:
    s_or_b32 s68, s68, s70
    s_setpc_b64 s[36:37]
    """)
    return L(f"""
    L_rpoll0:
    s_sleep 1
    L_rpoll:
    {FOP_LOAD}
    s_waitcnt vmcnt(0)
    v_cmp_eq_u32 vcc, 1, v9
    s_sub_u32 s91, s91, 1
    s_cselect_b32 s70, -1, 0
    s_or_b32 s70, s70, vcc_lo
    s_and_b32 s70, s70, s69
    s_andn2_b32 s70, s70, s68
    s_cbranch_scc0 L_rpoll0
    s_or_b32 s68, s68, s70
    s_setpc_b64 s[36:37]
    """)
def red_moe():
    out = []
    for n, t in enumerate((0, 1, 2)):
        out += L(f"L_moe{n}:\ns_lshl_b32 s88, s{RS[t]['col']}, 1\ns_call_b64 s[36:37], L_moe") + [I(f"v_add_f32 v{RS[t]['b']+e}, v{2+e if e < 4 else 6+e}, v{RS[t]['b']+e}") for e in range(8 * RS[t]['n'])] + L(f"s_mov_b64 exec, -1\ns_branch L_moe_ret{n}")
    out += L(f"""
    L_moe:
    v_min_u32 v0, 27, v32
    v_lshlrev_b32 v0, 2, v0
    s_mov_b32 s64, {WS_FH + 512}
    """) + poll_flags(64, 64, "L_pfy", 1, 0, 65) + L(f"""
    s_or_b64 exec, s[80:81], s[82:83]
    v_mov_b32 v0, 1792
    v_cndmask_b32 v0, v0, 0, s[80:81]
    v_lshl_add_u32 v0, v34, 5, v0
    s_add_u32 s88, s88, {WS_YF}
    buffer_load_dwordx4 v[2:5], v0, {WS}, s88 offen sc1
    buffer_load_dwordx4 v[10:13], v0, {WS}, s88 offen offset:16 sc1
    buffer_load_dwordx4 v[14:17], v0, {WS}, s88 offen offset:512 sc1
    buffer_load_dwordx4 v[18:21], v0, {WS}, s88 offen offset:528 sc1
    s_waitcnt vmcnt(0)
    s_setpc_b64 s[36:37]
    """)
    return out
def y_stubs(ret, ht):
    adr = f"""
    v_lshrrev_b32 v11, 7, v7
    v_mul_u32_u24 v11, {FSTR}, v11
    v_and_b32 v12, 0x70, v7
    v_lshl_add_u32 v11, v12, 3, v11
    s_mov_b32 s64, {WS_FL + 1024 * ht}
    s_mov_b32 s65, {WS_FL + 8 * FSTR + 1024 * ht}
    """
    ld = f"buffer_load_dword a128, v11, {WS}, s64 offen sc1\nbuffer_load_dword a129, v11, {WS}, s65 offen sc1"
    un = f"s_lshl_b32 s66, s{sH}, 1\ns_add_u32 s66, s66, s{sWAVE}\ns_sub_u32 s66, s66, 2"
    out = L(f"""
    L_y2:
    {adr}
    {ld}
    s_branch {ret}
    s_waitcnt vmcnt(0)
    L_y3:
    s_mov_b32 s91, {SPIN_MAX}
    L_y3c:
    v_accvgpr_read_b32 v12, a128
    v_accvgpr_read_b32 v13, a129
    v_min_u32 v12, v12, v13
    v_cmp_gt_u32 vcc, 2, v12
    s_sub_u32 s91, s91, 1
    s_cbranch_scc1 L_y3x
    s_cbranch_vccz L_y3x
    {adr}
    {ld}
    s_waitcnt vmcnt(0)
    s_branch L_y3c
    L_y3x:
    {un}
    s_cmp_lt_u32 s66, 14
    s_cselect_b32 s64, 8, 12
    s_add_u32 s64, s64, {WS_SEL}
    buffer_load_dword a130, off, {WS}, s64 sc1
    v_lshrrev_b32 v11, 7, v7
    v_mul_u32_u24 v11, 3584, v11
    v_and_b32 v12, 0x70, v7
    v_add_u32 v11, v12, v11
    s_lshl_b32 s65, s66, 7
    s_add_u32 s65, s65, {WS_Y}
    """)
    for n in range(14):
        out += L(f"buffer_load_dwordx4 a[{132+4*n}:{135+4*n}], v11, {WS}, s65 offen sc1\ns_add_u32 s65, s65, {8 * 3584}")
    out += L(f"s_branch {ret}\ns_waitcnt vmcnt(0)\nL_y4:")
    acc = [12 + e for e in range(4)]
    out += [I(f"v_accvgpr_read_b32 v{a}, a{132 + e}") for e, a in enumerate(acc)]
    for n in range(1, 14):
        for h in range(2):
            out += [I(f"v_accvgpr_read_b32 v{16 + e}, a{132 + 4 * n + 2 * h + e}") for e in range(2)] + [I(f"v_add_f32 v{12 + 2 * h + e}, v{16 + e}, v{12 + 2 * h + e}") for e in range(2)]
    out += [I(f"v_add_f32 v{a}, v{a}, v{a} row_ror:8 row_mask:0xf bank_mask:0xf") for a in acc]
    for sw in ("v_permlane16_swap_b32", "v_permlane32_swap_b32"):
        for a in acc: out += L(f"v_mov_b32 v11, v{a}\n{sw} v11, v{a}\nv_add_f32 v{a}, v11, v{a}")
    out += L("v_accvgpr_read_b32 v16, a130")
    for rep in range(2):
        for p in (12, 14):
            out += L(f"v_cvt_pk_bf16_f32 v11, v{p}, v{p+1}\nv_lshlrev_b32 v{p}, 16, v11\nv_and_b32 v{p+1}, 0xffff0000, v11")
        if rep == 0: out += [I(f"v_mul_f32 v{a}, v16, v{a}") for a in acc]
    out += L(f"""
    {un}
    s_lshl_b32 s65, s66, 7
    s_add_u32 s65, s65, {WS_YF}
    s_mov_b64 exec, 0xff
    buffer_store_dwordx4 v[12:15], v7, {WS}, s65 offen sc1
    s_mov_b64 exec, -1
    s_nop 1
    s_branch {ret}
    L_y5:
    {un}
    s_lshl_b32 s66, s66, 2
    s_add_u32 s66, s66, {WS_FH + 512}
    v_mov_b32 v11, 1
    s_mov_b64 exec, 1
    buffer_store_dword v11, off, {WS}, s66 sc1
    s_mov_b64 exec, -1
    s_branch {ret}
    """)
    return out
```

```python
import sys, re
from att5 import *
import warm, ldscheck, att, att5, kvq, kv5, side, side5, hw, asmlib
from kv5 import K, QR, QPhase, kacc
opt = dict(stamp="0", v="1", thr=str(2.0 ** 24), low=str(2.0 ** -24), fine="0", no="18", hpad="0", vpad="0", opad="0", kvonly="0", nc="0", cf="nt", nw="0", t0="79", wqg="41,9", idt="-", idq="-", qw="2,0,0,0,0,0,0", q0s="0", selq="1", rw2="10,60", skip="", hw="7,7,9,9,11,11,13", rgo="1", p2="0", p8="00112233", xl="0040", nr="8", noadd="0", tl="1", nochk="0", rd="0", rdg="60", ct0="13", wn="2,3,4,5", wh1="6,7", wh2="8,9,10,11", pg="50", sent="0", half="1", mkg="40,60", dbg="-", r3w="0", rfive="0", relay="0", tR="4", rq="8,0,12,12,8,8,8", rh="8,8,8,8,8", rw="2", w8="0", fl_="", hmap="0", tH="-", tHg="90", hnt="nt", ne="6", efg="52", idle="", lc="0", n4="8", share="0", pv2="6", nrm="0", pv1="4", tidy="1", pk="12", olo="2", d3w="4", five="1", tlb="-", kvd="6", warm="a", na="8", te1="6:5:13", ip="", ipd="2048", dr="3,44,51,108,0", twg="80", us="", wi="", rt="1", ht="0", xr="100", nost="0",
           tg="113", tcq="99", tc="", tQ="7", lag="3", lag2="11", lagv="8", ke="27", q0="3333334444444555@99:55556666666777@211:7777", qsep="5", tX="", tW="3,4,5,6", kw="3,3,2", sw="34,60", dh="30,30,30", l2="4", qf="176", qd="0,0,0,0,14", qk="4444", qv="4400", qp="36,140,240,380", ssep="6", n15="8,8",
           fl="200", fc="240", fv="395", s15="12,90", sq="2,400", sqv="200", vq="0,0", vp="3,3,3,4,3", l1="20", pfg="30", wq="8,0,12,16,8,8", wh="8,4,16,16,12", tw="9", odh="45", fpl="20", fpc="0", pl="56")
for a in sys.argv[1:]:
    k, v = a.split("="); assert k in opt, k; opt[k] = v
STAMP = opt["stamp"] in "12"; LIGHT = opt["stamp"] == "2"
ints = lambda k: [int(x) for x in opt[k].split(",")]
kv5.DR[:] = ints("dr")
asmlib.TIDY = opt["tidy"] == "1"
pairs = lambda k: [tuple(int(y) for y in x.split(':')) for x in opt[k].split(',') if x]
asmlib.SHARE = {"0": (), "1": ("dma", "vld"), "2": ("dma", "vld", "vst")}[opt["share"]]
side5.NE = int(opt["ne"])
side5.FINE = "9" in opt["fine"]
side5.PK = int(opt["pk"])
hw.HNT = opt["hnt"]
RELAY = att5.RELAY = opt["relay"] != "0"; side5.NAT = not RELAY; LATER = opt["relay"] == "2"
if RELAY and not LATER: opt["tW"] = ""
side5.POLL2 = int(opt["p2"])
kv5.T0 = int(opt["t0"])
kv5.NC, kv5.CF, kv5.NW = int(opt["nc"]), opt["cf"].replace("+", " "), int(opt["nw"])
side.NTT = ""; side.RNT = ""
X.update(wide=1, ls=1, r3=0, r3x='-')
sMODE, sH, sJ, sVD, sSTK, sFL = 40, 41, 42, 43, 44, 45
sKV, sMLD, sNC = 45, 39, 35
NO = int(opt['no']); assert NO % 2 == 0
JH = NO // 2
aST = 250
SENT = opt['sent'] == '1'; HALF = opt['half'] == '1'
RW = opt['rw'] != '0'
JY = 7 if NO == 16 else 6; TY = JY - 5
WARM = opt['warm'] != '0'
def wev(key, names):
    return warm.event(A.sWAVE, warm.spread(names)) if WARM and key in opt['warm'] else []
wsite = lambda n: warm.site(n) if WARM else []
OOB = side.OOB
def stamp(t=16, force=False):
    if not STAMP or (LIGHT and not force): return []
    return L(f"""s_memrealtime s[36:37]
    s_memtime s[98:99]
    v_accvgpr_read_b32 v{t}, a{aST}
    v_accvgpr_read_b32 v{t+1}, a{aST+1}
    s_mov_b32 s100, m0
    s_mov_b32 m0, s{sSTK}
    s_waitcnt lgkmcnt(0)
    v_writelane_b32 v{t}, s98, m0
    v_writelane_b32 v{t+1}, s36, m0
    s_add_u32 s{sSTK}, s{sSTK}, 1
    s_mov_b32 m0, s100
    v_accvgpr_write_b32 a{aST}, v{t}
    v_accvgpr_write_b32 a{aST+1}, v{t+1}""")
def stampa():
    if not STAMP or LIGHT: return []
    o = L("s_cselect_b32 s101, 1, 0\nv_accvgpr_write_b32 a252, v10\nv_accvgpr_write_b32 a253, v11") + stamp(10) + L("v_accvgpr_read_b32 v10, a252\nv_accvgpr_read_b32 v11, a253\ns_cmp_lg_u32 s101, 0")
    for i in o: i.extra["ghost"] = True
    return o
fs = lambda c: stampa() if c in opt['fine'] else []
def stamp0(t=26):
    if not STAMP: return []
    return L(f"""s_waitcnt lgkmcnt(0)
    v_mov_b32 v{t}, 0
    v_mov_b32 v{t+1}, 0
    v_writelane_b32 v{t}, s38, 0
    v_writelane_b32 v{t+1}, s46, 0
    s_mov_b32 s{sSTK}, 1
    v_accvgpr_write_b32 a254, v{t}
    v_accvgpr_write_b32 a{aST}, v{t}
    v_accvgpr_write_b32 a{aST+1}, v{t+1}""")
def fin():
    if not STAMP: return []
    return L("s_mov_b64 exec, -1\ns_waitcnt vmcnt(0) lgkmcnt(0)") + stamp(30, True) + L(f"""
        s_lshl_b32 s29, s2, 2
        s_add_u32 s29, s29, s{A.sWAVE}
        s_lshl_b32 s29, s29, 9
        s_add_u32 s29, s29, {WS_STAMP}
        v_lshrrev_b32 v10, 1, v{A.vL16}
        buffer_store_dwordx2 a[{aST}:{aST+1}], v10, {WSR}, s29 offen
        s_add_u32 s29, s29, {1 << 20}
        buffer_store_dword a254, v10, {WSR}, s29 offen
        """)
def dbg_out():
    if opt['dbg'] == '-': return []
    return L(f"""
    s_load_dwordx2 s[4:5], s[0:1], {A_DBG}
    v_accvgpr_read_b32 v11, a{aST+1}
    v_lshrrev_b32 v12, 4, v{A.vL16}
    v_not_b32 v13, v11
    v_cmp_eq_u32 vcc, 0, v12
    v_mov_b32 v14, s36
    s_nop 0
    v_cndmask_b32 v11, v11, v13, vcc
    v_cmp_eq_u32 vcc, 15, v12
    s_nop 1
    v_cndmask_b32 v11, v11, v14, vcc
    v_lshlrev_b32 v12, 2, v12
    s_waitcnt lgkmcnt(0)
    {srd(12, 4, 64)}
    s_cmp_eq_u32 s{sJ}, {opt['dbg']}
    s_cselect_b32 exec_lo, 0xffff, 0
    s_or_b32 exec_lo, exec_lo, 0x8001
    s_mov_b32 exec_hi, 0
    buffer_atomic_umax v11, v12, s[12:15], 0 offen
    """)
EXIT = lambda: fin() + dbg_out() + L("s_endpgm")

def entry(c):
    c.block("entry", f"""
    s_cmp_lt_u32 s2, 256
    s_cbranch_scc1 L_go
    s_endpgm
    L_go:
    {"s_memrealtime s[46:47]" + chr(10) + "s_memtime s[38:39]" if STAMP else ""}
    s_load_dwordx8 s[80:87], s[0:1], {A_X}
    s_load_dwordx4 s[88:91], s[0:1], {A_WUV}
    s_getpc_b64 s[76:77]
    L_pc0:
    s_lshr_b32 s{sJ}, s2, 3
    s_mov_b32 s79, 0x20000
    s_lshl_b32 s67, s{sJ}, 13
    s_mov_b32 s78, L_code_end-L_pc0
    s_and_b32 s77, s77, 0xffff
    v_lshl_add_u32 v31, v0, 5, s67
    """, side.touch(31, 76, 0, nt=False), f"""
    v_lshrrev_b32 v24, 6, v0
    v_and_b32 v0, 63, v0
    s_and_b32 s{sH}, s2, 7
    v_readfirstlane_b32 s{K.sWAVE}, v24
    s_lshr_b32 s64, s2, 7
    v_and_b32 v24, 15, v0
    v_lshrrev_b32 v25, 4, v0
    s_lshl_b32 s64, s64, 3
    s_add_u32 s{sH}, s{sH}, s64
    s_and_b32 s{sJ}, s{sJ}, 15
    s_lshr_b32 s{sKV}, s{sJ}, 3
    v_lshlrev_b32 v28, 1, v25
    v_xor_b32 v28, v28, v24
    v_and_b32 v29, 8, v28
    v_and_b32 v28, 7, v28
    v_lshlrev_b32 v28, 4, v28
    v_lshl_add_u32 v28, v29, 5, v28
    v_lshl_add_u32 v28, v25, 13, v28
    s_lshl_b32 s64, s{K.sWAVE}, 17
    v_add_u32 v{K.vWD}, s64, v28
    v_xor_b32 v28, 0x100, v{K.vWD}
    v_add_u32 v{K.vWD+1}, {4*8192 - 1024}, v{K.vWD}
    v_add_u32 v{K.vWD+2}, {8*8192 - 2048}, v28
    v_add_u32 v{K.vWD+3}, {12*8192 - 3072}, v28
    s_and_b32 s65, s{K.sWAVE}, 1
    s_lshr_b32 s66, s{K.sWAVE}, 1
    v_and_b32 v29, 7, v0
    v_xor_b32 v28, v25, v29
    v_lshlrev_b32 v28, 4, v28
    v_lshrrev_b32 v29, 3, v0
    v_lshl_add_u32 v30, v29, 11, v28
    s_lshl_b32 s64, s66, 19
    s_lshl_b32 s67, s65, 21
    s_add_u32 s64, s64, s67
    v_add_u32 v{K.vCD}, s64, v30
    v_xor_b32 v30, 64, v{K.vCD}
    v_add_u32 v{K.vCD+2}, {16*2048 - 2048}, v{K.vCD}
    v_add_u32 v{K.vCD+1}, {8*2048 - 1024}, v30
    v_add_u32 v{K.vCD+3}, {24*2048 - 3072}, v30
    s_mov_b32 s{K.sWOFF}, 0
    s_mov_b32 s{K.sCOFF}, 0
    s_lshl_b32 s{K.sM0W}, s{K.sWAVE}, 12
    s_add_u32 s{K.sM0C}, s{K.sM0W}, 65536
    s_lshl_b32 s74, s{sH}, 9
    s_sub_u32 s{K.S_W+2}, {1024*8192}, s74
    s_mov_b32 s{K.S_W+3}, 0x20000
    s_and_b32 s64, s{sJ}, 7
    s_lshl_b32 s64, s64, 16
    s_sub_u32 s{K.S_C+2}, {2048*2048}, s64
    s_mov_b32 s{K.S_C+3}, 0x20000
    s_cmp_eq_u32 s{sKV}, 0
    s_cselect_b32 s72, s86, s88
    s_cselect_b32 s73, s87, s89
    s_add_u32 s{K.S_W}, s72, s74
    s_addc_u32 s73, s73, 0
    s_and_b32 s{K.S_W+1}, s73, 0xffff
    s_add_u32 s{K.S_C}, s82, s64
    s_addc_u32 s73, s83, 0
    s_and_b32 s{K.S_C+1}, s73, 0xffff
    """, kv5.unit_w(0), kv5.unit_c(0), kv5.unit_w(1), f"""
    s_load_dwordx2 s[92:93], s[0:1], {A_WR}
    s_load_dwordx2 s[94:95], s[0:1], {A_GW}
    s_load_dwordx4 s[4:7], s[0:1], {A_DBG}
    """, stamp0(28), stamp(28), f"v_lshlrev_b32 v{K.vST}, 4, v0", kvq.addr_rd(), f"""
    {srd(K.S_X, 80, 2048*896)}
    {srd(60, 92, 896)}
    {srd(68, 94, 896)}
    s_lshl_b32 s95, s{K.sWAVE}, 11
    s_lshr_b32 s64, s2, 3
    s_lshl_b32 s64, s64, 13
    s_add_u32 s95, s95, s64
    {srd(K.S_WS, 6, 1 << 28)}
    {srd(K.S_DBG, 4, 256)}
    s_add_u32 s72, s84, s74
    s_addc_u32 s73, s85, 0
    s_sub_u32 s75, {448*8192}, s74
    {srd(K.S_WQ, 72, "s75")}
    s_mul_i32 s{K.sXOFF}, s{sJ}, {128*896}
    s_mov_b32 s{K.sSC}, {hex(f2u(LOG2E_16))}
    s_mul_i32 s72, s{sKV}, {WS_V}
    s_mul_i32 s73, s{sH}, {HS}
    s_add_u32 s72, s72, s73
    s_bfe_u32 s64, s{sJ}, 0x20001
    s_lshl_b32 s64, s64, 15
    s_add_u32 s72, s72, s64
    s_lshl_b32 s64, s66, 17
    s_add_u32 s72, s72, s64
    s_and_b32 s67, s{sJ}, 1
    s_cmp_eq_u32 s{sKV}, 0
    s_cselect_b32 s64, 12, 14
    s_cselect_b32 s75, 14, 10
    s_lshl_b32 s67, s67, s75
    s_add_u32 s72, s72, s67
    s_lshl_b32 s64, s65, s64
    s_add_u32 s{K.sOOFF}, s72, s64
    """, side.h_touch_srd(), f"s_load_dwordx2 s[96:97], s[0:1], {A_OUT}", f"s_cmp_eq_u32 s{sKV}, 0\ns_cbranch_scc0 L_kv1" + ("\ns_branch L_kv0" if WARM else ""))

FL_LOAD = lambda: I(f"buffer_load_dword v{A.vRL}, v9, {WSR}, s46 offen sc1")
FP_LOAD = lambda: I(f"buffer_load_dword v{A.vRL + 1}, off, {WSR}, s47 sc1")
def level(val, t): return L(f"v_mov_b32 v{t}, {val}") + [side.flag_store(sFL, A.vF0, t)]
def lcheck(val, n): return L(f"v_cmp_gt_u32 vcc, {val}, v{A.vRL}\ns_cbranch_vccnz L_ls{n}\nL_lr{n}:")
LSPIN = {}; WSPIN = {}
PBASE = lambda: L(f"""
    s_lshl_b32 s86, s{A.sWAVE}, 14
    s_add_u32 s86, s86, s{A.sPO}
    s_add_u32 s87, s86, 4096
    s_add_u32 s88, s86, 8192
    s_add_u32 s89, s86, 12288
    s_lshl_b32 s90, s{A.sWAVE}, 10
    s_add_u32 s90, s90, s{A.sPO}
    s_add_u32 s90, s90, 65536
    """)

class KVStore:
    def __init__(self, vt):
        self.prs = kv5.kv_pairs(vt); self.reg = {}; self.src = {}
    def st(self, n, tag, reg=None, newpage=True):
        off = self.prs[n][2]
        s = I(f"buffer_store_dwordx4 {reg or self.reg[n]}, v{K.vST}, {WSR}, s3 offen offset:{off & 0xfff} sc1", tag=tag)
        if not reg: dep(s, *self.src[n])
        if opt['nost'] == '1': return []
        if opt['nost'] == '2': s.text = s.text.replace(" sc1", "")
        return ([I(f"s_add_u32 s3, s{K.sOOFF}, {off & ~0xfff}")] if newpage else []) + [s]
    def many(self, ns, tag, regf=None):
        out = []; cur = None
        for n in ns:
            pg = self.prs[n][2] >> 12
            out += self.st(n, tag(n) if callable(tag) else tag, regf(n) if regf else None, pg != cur); cur = pg
        return out

def win_qk1(vslot, v4, stub, extra=lambda s: None, tags=(), post=()):
    g = Gaps(qk_mfmas(1, C0))
    tile_reads(g, lambda b: rd_batch(KSLOT[1], b), rd_batch(vslot, 0, v4), [("T", vslot)] + list(tags))
    s = Sched(g).add(dma_flat(KSLOT[0], A.sK) + adv_k(), 1, ints('dh')[1])
    if post: s.add(post, 48, 52, asap=True)
    s.add([I(f"v_mov_b32 v{r}, 0") for r in [A.vLS, A.vLS + 1] + list(range(A.vNM, A.vNM + 8))] + [By(56)], 4, 50)
    extra(s); s.run()
    put_tail(g, sched_sm(g, softmax_groups(0, 1), 0, 54), check_first(f"L_st{stub}"))
    return g.flat() + L(f"L_rt{stub}:"), None
def win_pv0(vslot, v4, extra=lambda s: None, tags=(), post=(), sel=True):
    g = Gaps(pv_mfmas(0, zero=True))
    tile_reads(g, lambda b: rd_batch(vslot, b, v4), rd_batch(KSLOT[0], 0), [("T", KSLOT[0])] + list(tags))
    s = Sched(g).add(dma_flat(KSLOT[1], A.sK) + adv_k(), 1, ints('dh')[2])
    if post: s.add(post, 48, 52, asap=True)
    if sel and opt['selq'] == '0': s.add(selm(A.vX + 1), 30, 62)
    extra(s); s.run()
    sched_sm(g, softmax_groups(1, 0), 0, 60, add_l(0))
    return g.flat()
def win_qk(b, stub, extra=lambda s: None, tags=(), post=(), dma2=()):
    g = Gaps(qk_mfmas(1 - b, lambda kb, qb: NMq(qb)))
    tile_reads(g, lambda n: rd_batch(KSLOT[1 - b], n), rd_batch(VSLOT[b], 0), [("T", VSLOT[b])] + list(tags))
    s = Sched(g).add(dma_flat(VSLOT[1 - b], A.sV) + adv_v() + list(dma2), 1, 60 if dma2 else ints('dh')[2])
    if post: s.add(post, 48, 52, asap=True)
    extra(s); s.run()
    put_tail(g, sched_sm(g, softmax_groups(b, 1), 0, 56), check(b, f"L_st{stub}"))
    return g.flat() + L(f"L_rt{stub}:")
def win_pv(b, extra=lambda s: None, tags=(), post=()):
    g = Gaps(pv_mfmas(b))
    tile_reads(g, lambda n: rd_batch(VSLOT[b], n), rd_batch(KSLOT[b], 0), [("T", KSLOT[b])] + list(tags))
    s = Sched(g).add(dma_flat(KSLOT[1 - b], A.sK) + adv_k(), 1, ints('dh')[2])
    if post: s.add(post, 48, 52, asap=True)
    extra(s); s.run()
    sched_sm(g, softmax_groups(1 - b, 0), 0, 60, add_l(b))
    return g.flat()
HELPER_K = lambda: L(f"""
    s_mul_i32 s{A.sK}, s{sH}, {HS}
    s_add_u32 s{A.sK}, s{A.sK}, {NO * 32768}
    s_lshl_b32 s84, s{sJ}, 1
    s_sub_u32 s{A.sKcnt}, {30 - NO - 1}, s84
    {f's_lshl_b32 s{A.sKn1}, s{sH}, 18' + chr(10) + f's_add_u32 s{A.sKn1}, s{A.sKn1}, {WS_WO}' if RELAY else f's_mov_b32 s{A.sKn1}, {OOB}'}
    """)

def r5_loads():
    o = side.r4_loads()
    for i in o:
        m = re.match(r"buffer_load_dwordx4 v\[(\d+):", i.text)
        if m: i.text = i.text.replace(f"v[{m.group(1)}:{int(m.group(1)) + 3}]", f"a[{int(m.group(1)) + 136}:{int(m.group(1)) + 139}]"); i.parse()
    return o
def r5_compute():
    out = [I(f"v_mov_b32 v{16+r}, 0") for r in range(8)]
    for w in range(4):
        out += L(f"v_accvgpr_read_b32 v28, a{192+w}\nv_accvgpr_read_b32 v29, a{196+w}")
        for r in (0, 2):
            out += L(f"""v_accvgpr_read_b32 v30, a{176+4*r+w}
            v_accvgpr_read_b32 v31, a{180+4*r+w}
            v_dot2c_f32_bf16 v{16+r}, v30, v28
            v_dot2c_f32_bf16 v{20+r}, v30, v29
            v_dot2c_f32_bf16 v{17+r}, v31, v28
            v_dot2c_f32_bf16 v{21+r}, v31, v29""")
    if opt['rw'] == '2':
        out = out[:8]
        for w in range(4):
            out += L(f"v_accvgpr_read_b32 v28, a{192+w}\nv_accvgpr_read_b32 v29, a{196+w}\nv_lshlrev_b32 v24, 16, v28\nv_lshlrev_b32 v25, 16, v29\nv_and_b32 v28, 0xffff0000, v28\nv_and_b32 v29, 0xffff0000, v29")
            for r in range(4):
                out += L(f"""v_accvgpr_read_b32 v30, a{176+4*r+w}
                v_lshlrev_b32 v31, 16, v30
                v_and_b32 v30, 0xffff0000, v30
                v_fmac_f32 v{16+r}, v31, v24
                v_fmac_f32 v{20+r}, v31, v25
                v_fmac_f32 v{16+r}, v30, v28
                v_fmac_f32 v{20+r}, v30, v29""")
    tail = side.r4_compute()[40:]
    for i in tail:
        i.text = re.sub(r"v(\d+)", lambda m: "v%d" % ({80: 28, 81: 29, 82: 30}.get(int(m.group(1)), int(m.group(1)) - 56) if int(m.group(1)) >= 72 else int(m.group(1))), i.text); i.parse()
    return out + [2] + tail
def act5():
    o = hw.s7_act()
    k = [n for n, i in enumerate(o) if not isinstance(i, int) and i.text.startswith("s_or_b32 s64, s86")][0]
    o[k] = I(f"s_or_b32 s64, s31, s{K.sWAVE}")
    k = [n for n, i in enumerate(o) if not isinstance(i, int) and i.text.startswith("s_mov_b32 s64, %d" % WS_SEL)][0]
    o[k:k + 1] = L(f"s_lshl_b32 s64, s{sH}, 7\ns_add_u32 s64, s64, {WS_SEL}")
    return o
def down5():
    pre = hw.s8_down()[0]
    ms = []
    for m in range(7):
        b = 16 + 2 * (m & 1); nb = 16 + 2 * (1 - (m & 1))
        ms.append([I(f"v_mfma_f32_16x16x16_bf16 a[192:195], a[{176+2*m}:{177+2*m}], v[{b}:{b+1}], {'a[192:195]' if m else '0'}")] +
                  ([I(f"v_mov_b32 v{nb + e}, v{b + e} row_shr:2 row_mask:0xf bank_mask:0xf bound_ctrl:0") for e in range(2)] if m < 6 else []))
    adr = L(f"""
    v_and_b32 v29, 1, v0
    v_mul_u32_u24 v30, 1792, v29
    v_lshrrev_b32 v31, 4, v0
    v_lshl_add_u32 v30, v31, 4, v30
    v_bfe_u32 v29, v0, 1, 3
    v_lshl_add_u32 v30, v29, 6, v30
    v_add_u32 v29, 1, v29
    v_lshrrev_b32 v29, 3, v29
    v_lshl_or_b32 v30, v29, 29, v30
    v_or_b32 v30, s{hw.sMK}, v30
    s_mul_i32 s89, s{hw.sFS}, 3584
    s_mul_i32 s64, s{K.sWAVE}, 448
    s_add_u32 s89, s89, s64
    s_add_u32 s89, s89, {WS_Y}
    buffer_store_dwordx4 a[192:195], v30, {WSR}, s89 offen sc1
    """)
    return pre, ms, adr
def front(c, vt):
    frags = [kvq.rd_c(0, 0, 0, 0), kvq.rd_c(0, 0, 0, 1)] + kv5.rd_w_unit(0, 0, 0) + kv5.rd_w_unit(0, 1, 1)
    rt, ht = int(opt['rt']) == vt, int(opt['ht']) == vt
    qt = not ht
    if 'h' in opt['skip']: ht = False
    if 'r' in opt['skip']: rt = False
    side.sJ = hw.sJ = 31; rl = (r5_loads() if RW else side.r4_loads()) if rt else []; side.sJ = sJ
    RD = int(opt['rd']) if RW else 0
    rl_late = rl if RD else []
    if RD: rl = []
    out = L(f"s_and_b32 s31, s{sJ}, 7") + (side.z_store()[:-3] + rl + side.z_store()[-3:] if vt == 0 else rl) + (kv5.unit_c(1) + kv5.unit_w(2) if kv5.T0 else kv5.unit_w(2) + kv5.unit_c(1))
    out += wev('a', [f"kv{vt}{p}" for p in range(1, min(1 + int(opt["na"]), 12 + vt))])
    out += [WAITV([("W", 1), ("C", 0), ("W", 0)], lgkm0=True), I("s_barrier")] + stamp(26) + frags
    if rt and not RW: out += side.r4_compute()
    out += [NEED(R("a", kv5.wfrag(0, 0, 0), 8), R("a", 160, 8))]
    tQ = int(opt["tQ"])
    xl = {}; uq = {u: 0 for u in range(8)}
    def items(spec, sep=0):
        o = []
        for n, seg in enumerate(spec.split("@")):
            if n:
                k, seg = seg.split(":"); o.append(At(int(k)))
            for ch in seg:
                if ch in 'abcdefg': o += kv5.x_dma(ord(ch) - 97)
                elif ch in 'ABCDEFG': o += kv5.x_read(ord(ch) - 65, xl)
                else:
                    u = int(ch); d = kv5.wq_dma(u, uq[u]); uq[u] += 1
                    o += [Sep(max(sep - 2, 0))] + d
        return o
    for t in range(15):
        dma = kv5.kv_dma(t)
        if ht and t == 2:
            hpre, uns = hw.s1_weights()
            if opt['hmap'] == '1':
                k = [n for n, i in enumerate(hpre) if i.text.startswith(f"s_mul_i32 s{hw.sLD},")][0]
                hpre = L(f"""s_and_b32 s64, s{sH}, 7
                s_min_u32 s65, s64, 4
                s_mul_i32 s{hw.sFS}, s64, 12
                s_lshl_b32 s65, s65, 2
                s_add_u32 s{hw.sFS}, s{hw.sFS}, s65
                s_and_b32 s65, s{sH}, 8
                s_add_u32 s65, s65, s31
                s_add_u32 s{hw.sFS}, s{hw.sFS}, s65
                s_and_b32 s64, s64, 4
                s_sub_u32 s64, 15, s64
                s_sub_u32 s64, s64, s65
                s_and_b32 s{hw.sMK}, s64, {OOB}
                s_min_u32 s{hw.sFS}, s{hw.sFS}, 111""") + hpre[k:]
        if ht and t >= 2:
            for w_ in range(2):
                for n_, u_ in enumerate(ints('hw')):
                    if u_ == 2 * t + w_: dma[w_] = dma[w_] + [uns[n_]]
        if ht and t == 10:
            dpre, un = hw.s6_down_dma(); dma[1] = dma[1] + [un]
        tR = int(opt['tR'])
        if RELAY and not LATER and not ht:
            if t == tR:
                side.sJ = 31; wpre, wun = side.wo2_dma(); wrd = side.wo2_reads(); side.sJ = sJ
            if t in (tR, tR + 1): dma[1] = dma[1] + [wun[t - tR]]
        late = t >= 12
        g = kv5.kv_tile(t, vt, [dma[0] if t == 12 else [], []] if late else dma)
        def fit(ins, k, pace=0):
            k, left = kvq.seq_fit(g, ins, k, pace); assert not left, (t, len(left)); return k
        def mm(ms, k):
            k |= 1
            for m in ms: g.put(k, m)
            return k
        tch = []
        if t == 12: xs_at = fit(kv5.x_setup(), 1) + 1; assert xs_at < 40
        if t in ints('tcq'): tch += side.c_touch(32, ints('tcq').index(t) + 1)
        if t == 0: fit(L("v_lshlrev_b32 v26, 7, v0\nv_and_b32 v27, 48, v0\nv_lshl_add_u32 v26, v27, 24, v26"), 50)
        if t == RD - 1 and rt and RD:
            for i in rl_late: i.text = i.text.replace("v32", "v27"); i.parse()
            fit(rl_late, int(opt['rdg']), 2)
        if t == 1 + RD and rt and opt['rw'] == '1': assert fit(r5_compute(), 2) < 108
        if rt and opt['rw'] == '2':
            if t == 1: rc = r5_compute(); fit(rc[:110], 2)
            if t == 2: assert fit(rc[110:], 2) < 108
        if t == 1 and vt == 0: fit(side.z_signal(), 112)
        if t == 2 + RD + (opt['rw'] == '2') and rt: KS_AT = fit(side.rg4_store(), 4, 1); assert KS_AT < 42
        if t == 8 and "ab"[vt] in opt['idle'] or str(t) == opt['idt']: out += L("s_sleep 32")
        if t == 3: fit(side.z_load(), 50)
        if t == 4:
            k = fit(side.z_check(vt), 112)
            if rt: fit(side.key4_store(), k + 1)
        if t == 5 and LATER: fit(L(srd(S_WO, 90, 4096 * 896)), 4)
        if t == 5 and not RELAY: fit(L(f"""s_mul_i32 s64, s{sH}, {256 * 896}
            s_add_u32 s72, s90, s64
            s_addc_u32 s73, s91, 0
            s_sub_u32 s75, {4096 * 896}, s64
            {srd(S_WO, 72, "s75")}"""), 4)
        if RELAY and not LATER and not ht:
            if t == tR: assert fit(L(srd(60, 90, 4096 * 896)) + wpre, 30) < 80
            if t == tR + 2: g.sc[110][0].tag = g.sc[110][0].tag + ["WO"]
            if t == tR + 3: assert fit(wrd, 2, 2) < 108
            if t in (tR + 4, tR + 5, tR + 6): fit([x for s_ in side.wo2_stores()[{0: 0, 1: 3, 2: 5}[t - tR - 4]:{0: 3, 1: 5, 2: 7}[t - tR - 4]] for x in s_ + [24]], 20)
        if qt:
            pre_, tl = side.q_touch3(K.S_WQ)
            if t == tQ: fit(pre_, 60)
            if 0 <= t - tQ < len(tl): tch += tl[t - tQ]
        if ht:
            if t == 2: fit(hpre, 42)
            if t == 6: fit(hw.s2_keys(), 64)
            if t == 7: assert fit(hw.s3_top2(), 10, 1) < 108
            if t == 8:
                sel = hw.s4_sel()
                k = [n for n, i in enumerate(sel) if not isinstance(i, int) and i.text.startswith(f"s_mov_b32 s64, {WS_RG}")][0]
                if opt['rgo'] == '1': sel[k:k + 1] = L(f"s_or_b32 s64, s31, s{K.sWAVE}\ns_min_u32 s64, s64, 1\ns_lshl_b32 s64, s64, 29\ns_add_u32 s64, s64, {WS_RG}")
                fit(sel, 4, 1)
            if t == 9:
                (r0, m0), (r1, m1) = hw.s5_gemm()
                k = fit([WAITV("HW")] + r0, 50); k = mm(m0, max(k + 6, 78)); k = fit(r1, k + 1); mm(m1, max(k + 6, 110))
            if t == 10: assert fit(dpre, 4) < 44
            if t == 11: fit(act5(), 2, 1)
            if t == 12:
                pre, ms, yadr = down5()
                k = fit(pre, xs_at)
                for m in ms: k = mm([m[0]], k + 2); k = fit(m[1:], k + 1)
                fit(yadr, k + 1)
        thin = lambda srd_, so: [side.touch(26, srd_, f"s{so}", nt=False)] + L(f"s_add_u32 s{so}, s{so}, 2048")
        if str(t) == opt['tH']:
            fit(L(f"""s_lshl_b32 s26, s2, 2
            s_add_u32 s26, s26, s{K.sWAVE}
            s_sub_u32 s25, s26, 448
            s_cselect_b32 s25, s26, s25
            s_cselect_b64 s[72:73], s[80:81], s[82:83]
            s_mul_i32 s25, s25, 3584
            {srd(32, 72, 448 * 3584)}
            v_lshlrev_b32 v27, 7, v0
            v_add_u32 v28, 4, v0
            v_lshrrev_b32 v28, 5, v28
            v_lshl_or_b32 v27, v28, 29, v27""") + [side.touch(27, 32, "s25", nt=False)], int(opt['tHg']))
        if str(t) == opt['tlb'][0]:
            tl_ = L(f"v_lshlrev_b32 v27, 21, v0\nv_min_u32 v28, 2, v0\nv_lshrrev_b32 v28, 1, v28\nv_lshl_or_b32 v27, v28, 29, v27")
            if 'x' in opt['tlb']: tl_ += [side.touch(27, K.S_X, f"s{K.sXOFF}", nt=False)]
            if 'q' in opt['tlb']: tl_ += [side.touch(27, K.S_WQ, 0, nt=False)]
            if 'k' in opt['tlb']: tl_ += L(f"s_mul_i32 s26, s{sH}, {HS}\nv_lshlrev_b32 v27, 24, v0\nv_min_u32 v28, 3, v0\nv_add_u32 v28, 1, v28\nv_lshrrev_b32 v28, 2, v28\nv_lshl_or_b32 v27, v28, 29, v27") + [side.touch(27, K.S_WS, "s26", nt=False)]
            fit(tl_, 60)
        xt = [int(x) for x in opt['tX'].split(",") if x]
        if xt and t == xt[0] // 2:
            assert fit(L(f"""s_lshl_b32 s26, s{sJ}, 1
            s_lshr_b32 s27, s{sH}, 3
            s_add_u32 s26, s26, s27
            s_lshl_b32 s26, s26, 2
            s_add_u32 s26, s26, s{K.sWAVE}
            s_mul_i32 s26, s26, 14336"""), 20) < 46
        if 2 * t in xt: fit(thin(K.S_X, 26), 48)
        if 2 * t + 1 in xt: tch += thin(K.S_X, 26)
        wt = [int(x) for x in opt['tW'].split(",") if x]
        if wt and qt:
            if t == wt[0]: fit(L(f"""s_and_b32 s27, s{sJ}, 7
                s_lshl_b32 s64, s{sH}, 3
                s_add_u32 s27, s27, s64
                s_lshl_b32 s27, s27, 2
                s_add_u32 s27, s27, s{K.sWAVE}
                s_mul_i32 s27, s27, 7168
                {srd(60, 90, 4096 * 896)}"""), 20)
            if t in wt: fit(thin(60, 27), int(opt['twg']))
        if str(t) in opt['tc'].split(','): tch += [side.touch(26, 76, 's95', nt=False)]
        if late:
            s = Sched(g); xr = int(opt['xr'])
            fl = lambda us: [i for u in us for i in u]
            if t == 12: s.add(items("a") + fl(dma[1]) + [By(110)], 49, 106, vmd=2)
            if t == 13:
                s.add(items("b") + fl(dma[0]) + [By(46)], 1, 42, vmd=2).add(items("c") + fl(dma[1]) + [At(72)] + items("0000") + [By(110)], 49, 106, vmd=2)
                s.add(kv5.q_setup() + [By(70)], 48, 68)
                s.add(items("A") + [By(44), At(xr)] + items("B") + [By(108)], xr - 64, 100, asap=True)
            if t == 14:
                s.add(items("d") + fl(dma[0]) + items("0001") + [By(46)], 1, 42, vmd=2).add(items("ef1111") + [By(110)], 49, 106, vmd=2)
                s.add(items("C") + [By(44), At(xr)] + items("D") + [By(108)], xr - 64, 100, asap=True)
                s.add(kv5.q_setup2(), 50, 80)
            s.run()
        fit(tch, int(opt['tg']) - (10 if len(tch) > 8 else 0))
        out += g.flat()
        for ev in opt['te1'].split(","):
            te, p0, p1 = [int(x) for x in ev.split(":")]
            if t == te: out += wev('b', [f"kv{vt}{p}" for p in range(p0, min(p1, 12 + vt))])
        if t in (0, 1, 11, 14) or '1' in opt['fine']: out += stampa()
    g = kv5.kv_tile(15, vt, [[], []], endtags=[("U", 0), ("U", 1)])
    ks = KVStore(vt)
    lastw = {}
    for m in g.m:
        for r in m.writes: lastw[r] = m
    done_at = lambda n: max(p[0] * 16 + p[1] * 2 + 1 for p in ks.prs[n][:2]) + 4
    packs = {}
    for n, (ta, tb, off) in enumerate(ks.prs):
        ins, reg = kvq.pack(kacc(*ta), kacc(*tb), K.vT + (4 * (n & 1) if vt else 0))
        seen = set()
        for i in ins:
            for r in i.reads:
                if r in lastw and r not in seen: i.extra.setdefault("raw", {})[r] = lastw[r]
            seen |= set(i.writes)
        packs[n] = ins; ks.reg[n] = R("v", reg, 4); ks.src[n] = ins[-4:]
    qp = QPhase([32 + 4 * f for f in range(7)], [kacc(y, x)[1] for y in (3, 5) for x in range(8)] if vt else [kacc(y, x)[1] for y in (2, 3, 4, 5) for x in (1, 3, 5, 7)])
    qp.place_reads(g, 0, 112)
    g.put_s(127, qp.need(0, 0, 4))
    s = Sched(g)
    lo, hi = ints('s15'); st1 = []; cur = None
    for n in range(8):
        pg = ks.prs[n][2] >> 12
        st1 += [At(max(done_at(n), lo + n * (hi - lo) // 8 - 6))] + packs[n] + ks.st(n, "KV1", newpage=pg != cur); cur = pg
    s.add(st1 + [By(110)], 0, hi, asap=True)
    s.add(items("g112222") + [By(46)], 1, 42, vmd=2).add(items("2223"), 49, 90)
    s.add(items("E") + [At(50)] + items("F") + [At(96)] + items("G") + [By(106)], 30, 100, asap=True)
    s.add([x for n in range(8, 32) for x in [At(done_at(n))] + packs[n]], 0, 127, asap=True)
    left = s.run(spill=True); assert not any(left[:4]), left
    carry = left[4]
    if '6' in opt['fine']:
        for k in range(31, 127, 32): g.ve[k] += stampa()
    out += g.flat() + fs('2')
    g = Gaps(qp.mfmas(xl))
    LV = {1: [("U", 2), ("U", 3)], 2: [("U", 4), ("U", 5)], 3: [("U", 6), ("U", 7)], 4: [("T", KSLOT[0])]}
    l2 = int(opt['l2']) if vt else 3
    LV[l2] = LV[l2] + ["KV2"]
    g.put_s(2, qp.need(0, 4, 7))
    for n in range(32):
        if n < 31: qp.place_reads(g, n + 1, 14 * n)
        else: put_batch(g, rd_batch(KSLOT[0], 0), 14 * n); g.put_s(14 * n + 13, need_batch(0))
        if n % 8 == 6:
            g.put_s(14 * n + 12, WAITV(LV[n // 8 + 1], lgkm0=True)); g.put_s(14 * n + 13, I("s_barrier"))
        elif n < 31:
            g.put_s(14 * n + 13, qp.need(n + 1, 0, 4)); g.put_s(14 * n + 16, qp.need(n + 1, 4, 7))
    QB = lambda x: 112 * x - 14
    setup = kv5.q_bank(1) + side.lane0_wave0(A.vF0) + L(f"""
    v_min_u32 v9, 15, v0
    v_lshlrev_b32 v9, 7, v9
    s_sub_u32 s66, 15, s{sJ}
    s_max_u32 s67, s66, s{sJ}
    s_min_u32 s66, s66, s{sJ}
    s_mul_i32 s{A.sK}, s{sH}, {HS}
    s_lshl_b32 s64, s67, 16
    s_add_u32 s{A.sQ}, s{A.sK}, s64
    s_lshl_b32 s64, s{A.sWAVE}, 14
    s_add_u32 s{A.sQ}, s{A.sQ}, s64
    s_add_u32 s{A.sQ}, s{A.sQ}, {WS_Q}
    s_sub_u32 s64, s{sJ}, {JH + 1}
    s_and_b32 s{sNC}, s64, {OOB}
    v_or_b32 v6, s{sNC}, v{A.vL16}
    """) + [By(80)] + L(f"""
    s_lshl_b32 s{A.sM0}, s{A.sWAVE}, 13
    v_add_u32 v{A.vRD1}, 0x10000, v{A.vL16}
    v_add_u32 v{A.vDM0}, s{A.sM0}, v{A.vL16}
    v_add_u32 v{A.vDM1}, 0x1000, v{A.vDM0}
    s_lshl_b32 s64, s{sJ}, 16
    s_add_u32 s{A.sKn1}, s{A.sK}, s64
    s_add_u32 s{sVD}, s{A.sKn1}, {WS_V}
    s_add_u32 s{A.sV}, s{A.sK}, {WS_V}
    {f'''s_min_u32 s{A.sIT}, s{sJ}, {JH}
    s_lshl_b32 s{A.sKcnt}, s{A.sIT}, 1
    s_sub_u32 s{A.sKcnt}, s{A.sKcnt}, 1
    s_sub_u32 s{A.sIT}, s{A.sIT}, 2''' if vt else f'''s_mov_b32 s{A.sKcnt}, 0x7fff
    s_sub_u32 s{A.sIT}, s{sJ}, 1
    s_cmp_eq_u32 s{sJ}, 0
    s_cselect_b32 s64, 32768, 0
    s_add_u32 s{A.sV}, s{A.sV}, s64'''}
    s_mov_b32 s{A.sTHR}, {hex(f2u(float(opt['thr'])))}
    s_mov_b32 s{A.sLOW}, {hex(f2u(float(opt['low'])))}
    s_lshl_b32 s47, s66, 7
    s_add_u32 s47, s47, s46
    s_lshl_b32 s64, s{A.sWAVE}, 5
    s_add_u32 s47, s47, s64
    s_add_u32 s47, s47, 2048
    s_lshl_b32 s65, s{sH}, 3
    s_add_u32 s65, s65, s66
    s_mul_i32 s{A.sPO}, s65, {PO_STRIDE}
    s_add_u32 s{A.sPO}, s{A.sPO}, {WS_PO}
    s_lshl_b32 s65, s{sJ}, 4
    s_add_u32 s65, s65, s{sH}
    s_mul_i32 s{A.sOP}, s65, {OP_HEAD}
    s_mul_i32 s65, s{A.sWAVE}, 28672
    s_add_u32 s{A.sOP}, s{A.sOP}, s65
    s_add_u32 s{A.sOP}, s{A.sOP}, {WS_OP}
    {f's_or_b32 s{A.sOP}, s{A.sOP}, {OOB}' if ('k' in opt['wi'] and not vt) or ('v' in opt['wi'] and vt) else ''}
    s_mov_b32 s{A.sREQ}, 0
    s_mov_b32 s{A.sCHK}, {vt}
    s_mov_b32 s{sMODE}, 1
    s_cmp_eq_u32 s{A.sWAVE}, 0
    s_cselect_b32 s{sMLD}, {6 if vt else 7}, 0
    {f'''s_cmp_eq_u32 s{sJ}, 8
    s_cselect_b32 s64, {int(opt['w8'])}, 0
    s_or_b32 s{sMLD}, s{sMLD}, s64''' if vt else f'''s_lshl_b32 s64, s{sH}, 1
    s_add_u32 s64, s64, s{A.sWAVE}
    s_cmp_lt_u32 s64, 30
    s_cselect_b32 s64, {0 if 'h' in opt['skip'] else 15 << TY}, 0
    s_cmp_ge_u32 s{A.sWAVE}, 2
    s_cselect_b32 s64, s64, 0
    s_cmp_eq_u32 s{sJ}, {JY}
    s_cselect_b32 s64, s64, 0
    s_or_b32 s{sMLD}, s{sMLD}, s64'''}
    s_mov_b64 s[60:61], s[76:77]
    s_mov_b32 s62, s78
    s_mov_b32 s63, 0x20000
    v_lshrrev_b32 v24, 4, v0
    v_lshlrev_b32 v24, 2, v24
    v_and_b32 v25, 15, v0
    v_sub_u32 v24, v24, v25
    """) + [I(f"v_cmp_lt_i32 s[{A.sTRI[e]}:{A.sTRI[e]+1}], {-e}, v24") for e in range(4)] + side.code_addr(0, 25) + (selm(24) if opt['selq'] == '1' else []) + [By(int(opt['fl']) - 6)]
    dq = items(opt['q0'], int(opt['qsep'])) + L(f"v_mov_b32 v{A.vNEG}, 0xff800000")
    assert all(v == 7 for v in uq.values())
    W1 = f"buffer_load_dword v{A.vRL}, v31, {WSR}, s46 offen offset:4 sc1"
    wchk = lambda n, half: L(f"v_cmp_ne_u32 vcc, 1, v{A.vRL}\ns_nop 0\ns_cmp_lg_u32 vcc_{half}, 0\ns_cbranch_scc1 L_ws{n}\nL_wr{n}:")
    WSPIN[f"q{vt}"] = (W1, "lo"); WSPIN[f"r{vt}"] = (W1, "hi")
    dq2 = [At(int(opt['fl']) - 4)] + L(f"v_lshrrev_b32 v31, 6, v{A.vL16}\nv_bfe_u32 v28, v{A.vL16}, 4, 2\nv_lshlrev_b32 v31, 5, v31\nv_add_lshl_u32 v31, v31, v28, 2\n{W1}") + [At(int(opt['fc']))] + wchk(f"q{vt}", "lo") + dma_flat(KSLOT[0], A.sK) + adv_k()
    k1 = dma_flat(KSLOT[1], A.sK)
    dq2 += [At(QB(3))] + k1[:3] + L(W1) + k1[3:] + adv_k() + [At(int(opt['fv']))] + wchk(f"r{vt}", "hi") + dma_flat(4, A.sV) + adv_v()
    qout = []; qsts = []
    def qst(qb, kq): return [I(f"s_add_u32 s30, s{A.sQ}, {(qb * 8 + kq) >> 2 << 12}"), I(f"buffer_store_dwordx4 a[{Qreg(qb, kq)}:{Qreg(qb, kq)+3}], v6, {WSR}, s30 offen offset:{(kq & 3) * 1024} sc1", tag="QST")] if vt and opt['nost'] != '1' else []
    for cg in range(4):
        for p2 in range(2):
            for qb in range(2):
                if (cg, p2) == (3, 1): continue
                ins, k = qp.out(cg, p2, qb, Qreg(qb, 2 * cg + p2))
                qout += [At(k + 4)] + ins
                qsts.append((ins[-1], qst(qb, 2 * cg + p2)))
                if qsts[-1][1]: dep(qsts[-1][1][-1], *ins[-4:])
    qlast = lambda: qp.out(3, 1, 0, Qreg(0, 7))[0] + [By(4), At(1)] + qp.out(3, 1, 1, Qreg(1, 7))[0] + [By(12)]
    nq = ints('qd')[4]
    qrest = [i for k, i in qsts[nq:]] + [qst(0, 7), qst(1, 7)]
    qw = ints('qw') if vt else [0] * 7; assert not vt or sum(qw) == len(qrest), len(qrest)
    qpart = lambda m: [x for i in qrest[sum(qw[:m]):sum(qw[:m + 1])] for x in i]
    lo, hi = ints('sq')
    s = Sched(g)
    s.add(carry, 0, 40, asap=True)
    s.add(dq, 0, 240, asap=True, vmd=2).add(dq2, 0, 430, asap=True, vmd=int(opt['kvd']))
    kq = 8 + sum(int(x, 16) for x in opt['qk']); kw = ints('kw'); assert kq + sum(kw) == 32 and kw[2] <= 8
    plan = [int(x, 16) for x in opt['qv' if vt else 'qk']]; pos = ints('qp'); sts = []; n0 = 8
    for m, k in zip(plan, pos):
        sts += [At(k)] + [x for i in ks.many(range(n0, n0 + m), lambda n: "KV2" if n < 16 else "KV4") for x in ([Sep(int(opt['ssep'])), i] if i.kind != 'vst' else [i])]; n0 += m
    assert n0 == (16 if vt else kq)
    s.add(sts, 0, 447, asap=True)
    s.add(qout, 0, 447, asap=True)
    qd = ints('qd'); nq = qd[4]
    s.add([x for n, (k, i) in enumerate(qsts[:nq]) for x in [At(qd[n // 4]), Sep(int(opt['ssep'])), After(k)] + i], 0, 447, asap=True)
    s.add(setup, 20, int(opt['fl']) - 20)
    w1 = L(f"""s_mul_i32 s72, s{sH}, {FSTR}
    s_add_u32 s46, s72, {WS_FL}
    s_lshl_b32 s{sFL}, s{sJ}, 7
    s_add_u32 s{sFL}, s{sFL}, s46
    s_lshl_b32 s72, s{A.sWAVE}, 2
    s_add_u32 s72, s72, s{sFL}
    v_min_u32 v29, 1, v0
    v_lshlrev_b32 v29, 29, v29
    v_mov_b32 v30, 1""") + [At(int(opt['l1'])), WAITV("KV1"), I(f"buffer_store_dword v30, v29, {WSR}, s72 offen offset:4 sc1")]
    s.add(w1 + [At(QB(l2))] + level(2, 30), 0, 447, asap=True)
    s.run()
    if '6' in opt['fine']:
        for k in range(27, 447, 28): g.ve[k] += stampa()
    if '8' in opt['fine']:
        for k in range(213, 447, 14): g.ve[k].append(I("s_nop 0 ; us"))
    if 'q' in opt['warm']:
        k, p0 = ints('wqg'); g.ve[k] += wev('q', [f"kv{vt}{p}" for p in range(p0, 12 + vt)] + ([] if vt else []))
    if opt['idq'] != '-': g.ve[int(opt['idq'])].append(I("s_sleep 32"))
    if '7' in opt['fine']:
        for x in range(1, 5): g.ve[QB(x) - 3] += stampa(); g.ve[QB(x) - 1] += stampa()
    out += g.flat() + stamp(26) + (EXIT() if opt['kvonly'] == '2' else [])
    init = lambda: [I(f"v_mov_b32 v{r}, 0") for r in [A.vLS, A.vLS + 1] + list(range(A.vNM, A.vNM + 8))]
    rd2 = lambda: L(f"v_add_u32 v16, 0x20000, v{A.vL16}")
    g = Gaps(qk_mfmas(0, C0, asc0=True))
    tile_reads(g, lambda b: rd_batch(KSLOT[0], b), rd_batch(KSLOT[1], 0), [("T", KSLOT[1])])
    s = Sched(g).add(qlast() + [x for i in qpart(0) for x in ([Sep(int(opt['q0s'])), i] if i.kind != 'vst' else [i])], 0, 20, asap=True).add(dma_flat(VSLOT[1], A.sV) + adv_v(), 10, ints('dh')[0]).add(rd2(), 30, 63)
    if vt:
        a, b = ints('vq'); n0 = 16 + a + b; assert n0 <= 24
        qf = int(opt['qf'])
        qflag = L(f"v_min_u32 v17, 1, v{A.vL16}\nv_lshlrev_b32 v17, 29, v17\nv_mov_b32 v15, 1\ns_add_u32 s84, s47, 16") + [At(qf % 64), WAITV("QST"), side.flag_store(84, 17, 15), By(62)]
        s.add((qflag if qf < 64 else []) + ks.many(range(16, 16 + a), "KV4"), ints('sw')[0], 62, asap=True)
        def park(ns):
            o = [I(f"v_accvgpr_write_b32 a{128 + 4 * (n - 16) + e}, v{int(ks.reg[n][2:ks.reg[n].index(':')]) + e}") for n in ns for e in range(4)]
            for i in o: dep(i, *[p for n in ns for p in ks.src[n]])
            return o
    else:
        km = kq + kw[0]
        s.add(ks.many(range(kq, km), "KV4"), *ints('sw'))
    s.run()
    grp, early = groups_first(0)
    sched_sm(g, grp, 12, 62, early=early)
    if '8' in opt['fine']:
        for k in (0, 16, 32): g.ve[k].append(I("s_nop 0 ; us"))
    qk0 = g.flat() + stampa() + (L("s_sleep 32") if str(vt) in opt['idle'] else [])
    if vt:
        w1, left = win_qk1(4, 16, "v1", lambda s: s.add(ks.many(range(16 + a, n0), "KV4") + [By(60)], *ints('sw')).add(qflag if 64 <= qf < 128 else [], 0, 60, asap=True).add(park(range(n0, 24)) + [By(58)], 0, 56).add(qpart(1), *ints('sw')))
        vp = ints('vp'); assert n0 + sum(vp) == 32
        later = lambda m: (lambda s: s.add(ks.many(range(n0 + sum(vp[:m]), n0 + sum(vp[:m + 1])), "KV4", lambda n: R("a", 128 + 4 * (n - 16), 4)), *ints('sw')).add(qpart(m + 2), *ints('sw')).add(qflag if qf // 64 == m + 2 else [], 30, 60, asap=True))
        def pv0x(s): s.add(park(range(24, 32)) + [By(28)], 0, 28); later(0)(s)
        ex = [[], [], []]
        if LATER:
            ex[0] = L(f"""s_and_b32 s66, s{sJ}, 7
            s_lshl_b32 s67, s{sH}, 3
            s_add_u32 s67, s66, s67
            s_lshl_b32 s67, s67, 2
            s_add_u32 s67, s67, s{K.sWAVE}
            s_mul_i32 s67, s67, 7168
            s_mul_i32 s86, s{K.sWAVE}, 7168
            s_add_u32 s86, s86, 131072""")
            for o_, n_ in ((0, 4), (4096, 3)):
                ex[0] += [I(f"s_add_u32 m0, s86, {o_}")] + [I(f"buffer_load_dwordx4 v7, s[{S_WO}:{S_WO+3}], s67 offen offset:{1024*q} lds", tag="WO", lds=(131072, 163840, "WO")) for q in range(n_)] + L("s_add_u32 s67, s67, 4096")
            ex[1] = L(f"""v_lshrrev_b32 v12, 6, v7
            v_mul_u32_u24 v12, 896, v12
            v_and_b32 v13, 48, v7
            s_lshr_b32 s67, s{K.sWAVE}, 1
            s_lshl_b32 s67, s67, 6
            s_and_b32 s86, s{K.sWAVE}, 1
            s_lshl_b32 s86, s86, 3
            s_add_u32 s67, s67, s86
            s_add_u32 s67, s67, 131072
            v_add3_u32 v12, v12, v13, s67
            s_lshl_b32 s94, s{sH}, 18
            s_lshl_b32 s66, s66, 10
            s_add_u32 s94, s94, s66
            s_lshl_b32 s66, s{K.sWAVE}, 13
            s_add_u32 s94, s94, s66
            s_add_u32 s94, s94, {WS_WO}""") + [I(f"ds_read_b64_tr_b16 a[{192+4*n+2*q}:{193+4*n+2*q}], v12 offset:{n*128 + q*14336}", lds=(131072, 163840, "r")) for n in range(7) for q in range(2)] + [By(44)]
            ex[2] = [x for n in range(7) for x in (I(f"s_add_u32 s30, s94, {n * 32768}"), I(f"buffer_store_dwordx4 a[{192+4*n}:{195+4*n}], v7, {WSR}, s30 offen sc1"))]
        both = lambda f, e, lo, hi: (lambda s: (f(s), s.add(e, lo, hi)))
        c.block("kv1", "L_kv1:", out, qk0, w1, win_pv0(4, 16, pv0x), fs('3'), win_qk(1, "v2", later(1), dma2=ex[0]), win_pv(1, later(2), tags=["WO"]), fs('3'),
                win_qk(0, "v3", both(later(3), ex[1], 0, 40)), win_pv(0, both(later(4), ex[2], *ints('rw2'))), "s_sleep 32" if 'v' in opt['idle'] else "", "s_branch L_loop_top")
    else:
        c.block("kv0", "L_kv0:", out, f"s_cmp_eq_u32 s{sJ}, 0\ns_cbranch_scc1 L_j0")
        c.block("k1", qk0, win_qk1(4, 16, "k1", lambda s: s.add(ks.many(range(km, km + kw[1]), "KV4") + [By(60)], *ints('sw')))[0],
                win_pv0(4, 16, lambda s: s.add(ks.many(range(km + kw[1], 32), "KV4") + [By(28)], 4, 28)), f"s_cmp_lg_u32 s{A.sIT}, 0\ns_cbranch_scc1 L_loop_top\ns_branch L_d1s")
        g = Gaps(qk_mfmas(0, lambda kb, qb: R("v", Sreg(0, kb, 0), 4) if qb == 0 else "0", order=(1, 0), asc0=True))
        tile_reads(g, lambda b: rd_batch(KSLOT[0], b), rd_batch(KSLOT[1], 0), [("T", KSLOT[1])])
        ql = qp.out(3, 1, 1, Qreg(1, 7))[0] + [By(5)] + qp.out(3, 1, 0, Qreg(0, 7))[0] + [By(12)]
        pr = presets(False, zero=True)
        LSPIN["j0"] = (2, 17)
        s = Sched(g).add([At(1)] + ql, 0, 20, asap=True).add([x for kb in range(4) for x in pr[kb] + [By(16 * kb + 6)]], 0, 50)
        s.add(L(f"s_mov_b32 s{A.sV}, s{sVD}") + dma_flat(VSLOT[0], A.sV) + L(f"v_min_u32 v17, {7 << 7}, v9\nbuffer_load_dword v{A.vRL}, v17, {WSR}, s46 offen sc1"), 14, 44)
        s.add(init(), 0, 63).add(ks.many(range(kq, 32), "KV4"), 16, 62, vmd=2).run()
        grp, early = groups_first(0, (1, 0))
        sched_sm(g, grp, 12, 62, early=early)
        ucheck = L(f"v_mov_b32 v{A.vX}, v{A.vSUM}\nv_mov_b32 v{A.vX+1}, v{A.vSUM+1}") + [i for p in zip(xlane("v_max_f32", A.vX, A.vX + 2), xlane("v_max_f32", A.vX + 1, A.vX + 3)) for i in p] + L(f"""
            v_min_f32 v{A.vX}, v{A.vX}, v{A.vX+1}
            v_cmp_gt_f32 vcc, s{A.sLOW}, v{A.vX}
            s_cbranch_vccnz L_stj0
            L_rtj0:""")
        zz = [I(f"v_mov_b32 v{A.vP1 + e}, 0") for e in range(4)]
        rest = [i for p in presets(True) for i in p]
        c.block("j0", "L_j0:", g.flat(), stampa(), zz, HELPER_K(), PBASE(), lcheck(2, "j0"), mix(ucheck[:-2], dma_flat(KSLOT[0], A.sK) + adv_k(), 1), ucheck[-2:], zero_O_mfma(rest, A.vP1), "s_branch L_d3h")

def build_att(c):
    X.update(nodma=int(opt['xl'][0]), nobar=int(opt['xl'][1]), rp=int(opt['xl'][2]), dp=int(opt['xl'][3])); att.WI.update(nr=int(opt['nr']), noadd=int(opt['noadd']))
    c.block("loop_top", "L_loop_top:" if WARM else ".p2align 6\nL_loop_top:", fs('3'), att.win_qk(1, "L_st1", "L_rt1", extra=[side.touch(0, 60, 0, nt=False)] if opt['tl'] == '1' else [])[0], att.win_pv(1))
    c.block("loop_mid", fs('3'), att.win_qk(0, "L_st0", "L_rt0", head=L(f"s_bitcmp1_b32 s{sMLD}, s{A.sCHK}\ns_cbranch_scc1 L_fll\nL_fllr:"))[0],
            att.win_pv(0, tail=L(f"s_sub_u32 s{A.sIT}, s{A.sIT}, 1\ns_cmp_lg_u32 s{A.sIT}, 0\ns_cbranch_scc1 L_loop_top"),
                       chk=L(f"""v_cmp_gt_u32 vcc, s{A.sREQ}, v{A.vRL}
                       s_cbranch_vccnz L_fls0
                       L_flr0:
                       s_mov_b32 s{A.sREQ}, 0
                       s_add_u32 s{A.sCHK}, s{A.sCHK}, 1""")))
    att.WI.update(nr=8, noadd=0); X.update(nodma=0, nobar=0)
    c.block("p1", f"s_cmp_eq_u32 s{sMODE}, 0\ns_cbranch_scc1 L_final_h")
    g = Gaps(qk_mfmas(0, lambda kb, qb: R("v", Sreg(0, kb, 0), 4) if qb == 0 else NMq(1), order=(1, 0)))
    tile_reads(g, lambda b: rd_batch(KSLOT[0], b), rd_batch(VSLOT[1], 0), [("T", VSLOT[1])])
    pr = presets(False)
    Sched(g).add([x for kb in range(4) for x in pr[kb] + [By(16 * kb + 6)]], 0, 50).add(
        L(f"s_mov_b32 s{A.sV}, s{sVD}\nv_min_u32 v17, {7 << 7}, v9\nbuffer_load_dword v{A.vRL}, v17, {WSR}, s46 offen sc1") + dma_flat(VSLOT[0], A.sV) + adv_v() + dma_flat(4, A.sV, 0, 4), 1, 60).add(PBASE(), 30, 62).run()
    put_tail(g, sched_sm(g, softmax_groups(1, 1), 0, 56), check(1, "L_std1"))
    c.block("d1", "L_d1s:", stampa(), g.flat(), "L_rtd1:", fs('4'), f"s_cmp_lt_u32 s{sJ}, {15 - JH}\ns_cbranch_scc1 L_d2h")
    pg = lambda k: [f"loop_top{p}" for p in ints(k)]
    wq = ints('rq' if RELAY else 'wq')
    if RELAY: opt['d3w'] = opt['r3w']; opt['five'] = opt['rfive']
    class WoQ:
        def __init__(self, slots): self.slots, self.n = slots, 0
        def take(self, m):
            o = []
            while m and self.n < 56:
                t, i = divmod(self.n, 8); k = min(m, 8 - i)
                o += wo_dma(self.slots[t], i, i + k); self.n += k; m -= k
            return o
    def d2(nxt):
        g = Gaps(pv_mfmas(1))
        tile_reads(g, lambda b: rd_batch(VSLOT[1], b), rd_batch(KSLOT[1], 0), [("T", KSLOT[1])])
        Sched(g).add(dma_flat(4, A.sV, 4, 8) + nxt, 1, 60).add([i for p in presets(True) for i in p] + [By(61)], 4, 60).run()
        sched_sm(g, softmax_groups(0, 0), 0, 62, add_l(1))
        return g.flat() + fs('4')
    P8 = [int(x) for x in opt['p8']]
    def d3(stub, extra):
        g = Gaps(qk_mfmas(1, lambda kb, qb: R("v", Sreg(1, kb, 1), 4), order=(1,)))
        tile_reads(g, lambda b: rd_batch(KSLOT[1], b), rd_batch(VSLOT[0], 0), [("T", VSLOT[0])], per=8, pat=P8)
        Sched(g).add(L(f"v_add_u32 v{A.vNEG}, 0x20000, v{A.vL16}") + extra, 4, 30, asap=True).run()
        put_tail(g, sched_sm(g, softmax_groups(0, 1), 0, 30), check(0, f"L_st{stub}"))
        return g.flat() + L(f"L_rt{stub}:") + fs('4')
    def d4(stub, s1, s2, lo2, hi2, pub=False, hi1=60, asap=False):
        g = Gaps(pv_mfmas(0))
        tile_reads(g, lambda b: rd_batch(VSLOT[0], b), rd_batch(4, 0, A.vNEG), [("T", 4)] + (["KV4"] if pub else []))
        Sched(g).add(s2, lo2, hi2, vmd=2, asap=asap).add(s1, 1, hi1, vmd=2).add(level(4, A.vX + 5) if pub else [], 48, 52, asap=True).run()
        put_tail(g, sched_sm(g, groups_b(), 0, 60, add_l(0)), check_b(f"L_st{stub}"))
        return g.flat() + L(f"L_rt{stub}:") + fs('4')
    addb = lambda: L(f"v_add_f32 v{A.vLS + 1}, v{A.vSUM + 3}, v{A.vLS + 1}")
    wo = WoQ([3, 1, 2, 0, 4, 3, 1] if opt['five'] == '1' else [3, 1, 2, 0, 3, 1, 2])
    c.block("d2n", "s_sleep 32" if 'n' in opt['idle'] else "", wev('n', pg('wn')), d2(wo_setup(A.vX + 4) + wo.take(wq[0])))
    LC = opt['lc'] == '1'; NRM = opt['nrm'] == '1'; assert not (LC and NRM)
    c.block("d3n", d3("d3n", wo.take(int(opt['d3w'])) + ([] if LC else [At(int(opt['fpl'])), FP_LOAD()])))
    pl = L(f"v_or_b32 v9, s{sNC}, v{A.vL16}\nv_cmp_ne_u32 vcc, 1, v{A.vRL + 1}\ns_cbranch_vccnz L_fps\nL_fpr:") + [I(f"buffer_load_dwordx4 v[{A.vX+4}:{A.vX+7}], v9, {WSR}, s90 offen sc1")]
    for kq in range(8):
        for qb in (1, 0):
            n = qb * 8 + kq
            pl.append(I(f"buffer_load_dwordx4 a[{A.aX + 4*n}:{A.aX + 4*n + 3}], v9, {WSR}, s{86 + n // 4} offen offset:{(n & 3) * 1024} sc1"))
    ctest = lambda: L(f"""
    v_cmp_neq_f32 vcc, v{A.vNM}, v{A.vX+4}
    v_cmp_neq_f32 s[64:65], v{A.vNM+4}, v{A.vX+5}
    s_cmp_eq_u32 s{sNC}, 0
    s_cselect_b64 s[66:67], -1, 0
    s_or_b64 vcc, vcc, s[64:65]
    s_and_b64 vcc, vcc, s[66:67]
    s_cbranch_vccnz L_stc
    L_rtc:""")
    pn = lambda k0: NEED(*[R("a", A.aX + (qb * 8 + kq) * 4, 4) for kq in (k0, k0 + 1) for qb in range(2)])
    l2 = lambda: L(f"v_add_f32 v{A.vLS}, v{A.vX+6}, v{A.vLS}\nv_add_f32 v{A.vLS+1}, v{A.vX+7}, v{A.vLS+1}")
    if not LC:
        c.block("d4n", d4("d4n", wo.take(wq[1]), pl, int(opt['fpc']), int(opt['pl'])))
        g = Gaps(pvb_mfmas(True))
        tile_reads(g, lambda b: rd_batch(4, b, A.vNEG), rd_wo(3, 0), [("T", 3)], npat=None if RELAY else RP16)
        for k, k0 in ((1, 0), (14, 2), (30, 4), (45, 6)): g.put_s(k, pn(k0))
        lf = l2() + addb() + lfin2()
        nrm = lambda kq, qb: [I(f"v_mul_f32 v{Oreg(2 * kq + h, qb) + e}, v{A.vRL + qb}, v{Oreg(2 * kq + h, qb) + e}") for h in range(2) for e in range(4)] if NRM else []
        cv = ([After(lf[-1])] if NRM else []) + [x for kq in range(8) for qb in (1, 0) for x in [At(8 * kq + 11 - qb)] + nrm(kq, qb) + cvt_ctx(kq, qb)]
        left = Sched(g).add(oa_setup(A.vX + 4) + [By(46)], 20, 44).add(lf + [By(19)], 0, 14 if NRM else 18).add(wo.take(wq[2]), 2, 40).add(cv, 0, 63, asap=True).run(spill=True)
        c.block("d5n", NEED(R("v", A.vX + 4, 4)), ctest(), g.flat(), [i for l in left for i in l], stampa())
    else:
        n4 = 5 + int(opt['n4'])
        c.block("d4n", d4("d4n", wo.take(wq[1]) + [By(int(opt['fpc']) - 2)], [At(int(opt['fpl'])), FP_LOAD(), At(int(opt['fpc']))] + pl[:n4] + [By(60)], 0, 60, hi1=int(opt['fpc']) - 4, asap=True))
        g = Gaps(pvb_mfmas() + comb_mfmas())
        tile_reads(g, lambda b: rd_batch(4, b, A.vNEG), None, [("T", 3)], per=8, pat=P8)
        put_batch(g, rd_wo(3, 0), 40); g.put_s(62, need_batch(0))
        ct = ctest()
        for i in [pn(0)] + ct[-2:]: g.put_s(31, i)
        for k, k0 in ((39, 2), (47, 4), (55, 6)): g.put_s(k, pn(k0))
        cv = [x for kq in range(8) for qb in (1, 0) for x in [At(32 + 4 * kq + 7 - 2 * qb)] + cvt_ctx(kq, qb)]
        lf = l2() + lfin2()
        left = Sched(g).add(pl[n4:] + [By(30)] + wo.take(wq[2]), 0, 40, asap=True, vmd=1).add(addb() + oa_setup(A.vX) + [By(22), At(24)] + ct[:-2] + [By(30), At(32)] + lf[:2] + [By(34)], 4, 30).add(cv + lf[2:], 0, 63, asap=True).run(spill=True)
        c.block("d5n", g.flat(), [i for l in left for i in l], stampa())
    def op_out(j, split=False, mul=True, pps=(0, 1)):
        b = j & 1
        ins = L(f"s_add_u32 s{A.sT0}, s{A.sOP}, {2 * j * 1024}\ns_add_u32 s{A.sT1}, s{A.sOP}, {14336 + 2 * j * 1024}") if 0 in pps else []
        for pp in pps:
            for qb in range(2):
                if split: ins.append(At(32 * pp + 27 + 8 * qb))
                a, d = Sreg(b, 2 * pp, qb), Sreg(b, 2 * pp + 1, qb)
                if mul: ins += [I(f"v_mul_f32 v{r + e}, v{A.vRL + qb}, v{r + e}") for r in (a, d) for e in range(4)]
                ins += kvq.pack(("v", a), ("v", d), 0)[0]
                ins.append(I(f"buffer_store_dwordx4 v[{a}:{a+3}], v{A.vL16}, {WSR}, s{A.sT0 + qb} offen offset:{pp * 1024} sc1", tag=("OP", j)))
        return ins
    fop = lambda: L(f"""
    s_sub_u32 s64, 15, s{sJ}
    s_min_u32 s64, s64, s{sJ}
    s_mul_i32 s{sFL}, s64, {2 * FSTR}
    s_lshl_b32 s64, s{sH}, 2
    s_add_u32 s{sFL}, s{sFL}, s64
    s_lshl_b32 s64, s{A.sWAVE}, 8
    s_add_u32 s{sFL}, s{sFL}, s64
    s_add_u32 s{sFL}, s{sFL}, {WS_FOP}
    s_mov_b32 s64, 1024
    s_mov_b32 s66, {FSTR - 256}
    s_cmp_lt_u32 s{sJ}, 8
    s_cselect_b32 s64, {FSTR}, s64
    s_cselect_b32 s65, 0, 64
    s_cselect_b32 s66, {OOB}, s66
    s_add_u32 s3, s{sFL}, s64
    s_add_u32 s{sFL}, s{sFL}, s65
    v_lshrrev_b32 v{A.vX + 7}, 5, v{A.vL16}
    v_min_u32 v{A.vX + 5}, 1, v{A.vX + 7}
    v_lshlrev_b32 v{A.vX + 4}, 3, v{A.vL16}
    v_lshl_or_b32 v{A.vX + 6}, v{A.vX + 5}, 29, v{A.vX + 4}
    v_cmp_eq_u32 vcc, 1, v{A.vX + 7}
    v_add_u32 v{A.vX + 4}, s66, v{A.vX + 4}
    v_mov_b32 v{A.vX + 5}, 1
    v_cndmask_b32 v{A.vX + 7}, v{A.vX + 6}, v{A.vX + 4}, vcc
    """)
    def outproj(wo, quota, ctx, first=(), extra0=(), prep=False):
        ow = []; sl = wo.slots
        for j in range(7):
            g = Gaps(qk_mfmas(j & 1, C0, breg=ctx))
            tile_reads(g, lambda b: rd_wo(sl[j], b), rd_wo(sl[j + 1], 0) if j < 6 else None, [("T", sl[j + 1])] if j < 6 else None)
            s = Sched(g)
            if j < len(quota): s.add(wo.take(quota[j]), 1, int(opt['odh']), vmd=2)
            if j == 0: s.add(list(first) + fop() + list(extra0) + [I(f"v_add_u32 v{vOA[2] + x}, 0x20000, v{A.vL16 if RELAY else vOA[0] + x}") for x in range(1 if RELAY else 4)], 0, 40, asap=True)
            jv = (side5.NE - 1) // 2 + 2
            if j == 5 or (j == jv and prep):
                sel = L(f"s_cmp_{'lt' if j == 5 else 'ge'}_u32 s{sJ}, 8\ns_cselect_b32 s84, s{sFL}, {OOB}") if prep and jv != 5 else L(f"s_mov_b32 s84, s{sFL}")
                s.add(sel + [At(int(opt['efg'])), WAITV([("OP", j - 2)]), I(f"buffer_store_dword v{A.vX + 5}, v{A.vX + 7}, {WSR}, s84 offen sc1")], 40, 60, asap=True)
            if j == int(opt['pv1']): s.add(side5.red_v1(A.vL16) if prep else side5.red_k1(A.vL16), 0, 60)
            if prep and j == int(opt['pv2']): s.add(side5.red_v2() + [By(60)], 4, 56)
            if SENT and prep and j == 0:
                mk = [I(f"v_mov_b32 v{Sreg(1, 0, 0) + e}, -1") for e in range(4)] + L(f"s_sub_u32 s73, s{sJ}, 8\ns_and_b32 s73, s73, {OOB}\ns_add_u32 s73, s73, s{A.sOP}\ns_add_u32 s72, s73, 12288\ns_add_u32 s73, s73, {14336 + 12288}")
                s.add(mk + [I(f"buffer_store_dwordx4 v[{Sreg(1, 0, 0)}:{Sreg(1, 0, 0) + 3}], v{A.vL16}, {WSR}, s{72 + (n >> 1)} offen offset:{(n & 1) * 1024} sc1") for n in range(4)] + [By(60)], *ints('mkg'))
            if SENT and prep and j == 6: s.add([At(int(opt['pg']))] + L(side5.FOP_LOAD) + [By(62)], 0, 62, asap=True)
            mul = not (prep and NRM)
            if HALF: s.add((op_out(j - 1, mul=mul, pps=(1,)) if j else []) + op_out(j, True, mul, pps=(0,) if j < 6 else (0, 1)), int(opt['olo']), 63, asap=True, vmd=2)
            elif j > 0: s.add(op_out(j - 1) + (op_out(6, True) if j == 6 else []), int(opt['olo']), 62 if j < 6 else 63, asap=j == 6, vmd=2)
            left = s.run(spill=j == 6)
            ow += g.flat() + fs('5')
        assert wo.n == 56
        if SENT and prep:
            return ow + stampa() + L(f"s_cmp_lt_u32 s{sJ}, 8\ns_cselect_b32 s84, {OOB}, s3") + [WAITV([("OP", 5)]), I(f"buffer_store_dword v{A.vX + 5}, v{A.vX + 6}, {WSR}, s84 offen sc1")] + [i for l in left for i in l] + stampa()
        return ow + stampa() + [i for l in left for i in l] + L(side5.FOP_LOAD) + [WAITV([("OP", 6)]), I(f"buffer_store_dword v{A.vX + 5}, v{A.vX + 6}, {WSR}, s3 offen sc1")] + stampa()
    c.block("opn", "s_sleep 32" if 'p' in opt['idle'] else "", outproj(wo, wq[3:], lambda qb, ks: R("v", Oreg(2 * ks, qb), 4), prep=True), f"s_cmp_lt_u32 s{sJ}, 8\ns_cbranch_scc1 L_red")
    rv, vfar = side5.red_main_v(stampa, int(opt['lagv']), SENT)
    if 'e' in opt['skip']: rv = []; vfar = []
    c.block("end1", rv, EXIT()); c.block("vfar", vfar)
    LSPIN["h2"] = (2, 17); LSPIN["h4"] = "s84"
    c.block("d2h", "L_d2h:", "s_sleep 32" if 'h' in opt['idle'] else "", wev('h', pg('wh1')), d2(HELPER_K() + lcheck(2, "h2") + dma_flat(KSLOT[0], A.sK) + adv_k()))
    c.block("d3h", "L_d3h:", d3("d3h", [FL_LOAD(), I(f"buffer_load_dword v{A.vRL + 1}, off, {WSR}, s47 offset:16 sc1")]))
    ql = L(f"v_cmp_ne_u32 vcc, 1, v{A.vRL + 1}\ns_cbranch_vccnz L_fqs\nL_fqr:") + L(f"s_add_u32 s73, s{A.sQ}, 4096\ns_add_u32 s74, s{A.sQ}, 8192\ns_add_u32 s75, s{A.sQ}, 12288")
    ql += [I(f"buffer_load_dwordx4 a[{4*n}:{4*n+3}], v{A.vL16}, {WSR}, s{72 + n // 4 if n >= 4 else A.sQ} offen offset:{(n & 3) * 1024} sc1") for n in range(16)]
    c.block("d4h", d4("d4h", [], ql + L(f"s_cmp_ge_u32 s{sJ}, 2\ns_cselect_b32 s84, 4, 2") + lcheck("s84", "h4") + [By(58)], 0, 54, True))
    g = Gaps(pvb_mfmas() + qk_mfmas(0, C0))
    tile_reads(g, lambda b: rd_batch(4, b, A.vNEG), rd_batch(KSLOT[0], 0), [("T", KSLOT[0])], per=8, pat=P8)
    tile_reads(g, lambda b: rd_batch(KSLOT[0], b), rd_batch(KSLOT[1], 0), [("T", KSLOT[1])], base=32)
    g.put_s(29, NEED(R("a", 0, 64)))
    def cpk(kq, qb): return link(cvt_ctx(kq, qb) + [I(f"v_accvgpr_write_b32 a{A.aX + (qb * 8 + kq) * 4 + e}, v{Oreg(2 * kq, qb) + e}") for e in range(4)])
    order = [(0, 0), (1, 0)] + [x for kq in range(6) for x in ((kq, 1), (kq + 2, 0))] + [(6, 1), (7, 1)]
    cp = {k: cpk(*k) for k in order}
    s = Sched(g).add(dma_flat(KSLOT[1], A.sK) + adv_k() + L(f"s_mul_i32 s{A.sV}, s{sH}, {HS}\ns_add_u32 s{A.sV}, s{A.sV}, {WS_V + NO * 32768}") + dma_flat(VSLOT[0], A.sV) + adv_v() + dma_flat(VSLOT[1], A.sV, 0, 4), 2, 92)
    s.add(addb() + lfin2() + L(f"v_accvgpr_write_b32 a192, v{A.vRL}\nv_accvgpr_write_b32 a193, v{A.vRL + 1}") + [I(f"v_mov_b32 v{r}, 0") for r in [A.vLS, A.vLS + 1] + list(range(A.vNM, A.vNM + 8))], 0, 40).run()
    grp, early = groups_first(0, base=32)
    sched_sm(g, grp, 44, 94, early=early)
    left = Sched(g).add([x for k in order for x in ([At(4 * k[0] + 7)] if k[1] else []) + cp[k]], 0, 95, asap=True).run(spill=True)[0]
    w5 = g.flat() + fs('4')
    g = Gaps(qk_mfmas(1, C0))
    tile_reads(g, lambda b: rd_batch(KSLOT[1], b), rd_batch(VSLOT[0], 0), [("T", VSLOT[0])])
    Sched(g).add(dma_flat(KSLOT[0], A.sK) + adv_k() + dma_flat(VSLOT[1], A.sV, 4, 8) + adv_v(), 1, 56).run()
    k = sched_sm(g, softmax_groups(0, 1), 0, 54)
    tail = check_first("L_sth1")
    ids = {id(i) for i in left}
    Sched(g).add(left + [By(57)], 0, 57).run()
    put_tail(g, max(k, 57), tail)
    w6 = g.flat() + L("L_rth1:")
    c.block("d5h", w5, w6, stampa(), win_pv0(VSLOT[0], None, lambda s: s.add(L(f"""s_mov_b32 s{sMODE}, 0
            s_mov_b32 s{A.sCHK}, 0
            s_and_b32 s{sMLD}, s{sMLD}, 3
            s_sub_u32 s{A.sIT}, {15 - JH - 1}, s{sJ}"""), 10, 30)), f"s_cmp_lg_u32 s{A.sIT}, 0\ns_cbranch_scc1 L_loop_top")
    wo = WoQ([3, 2, 0, 4, 1, 3, 2] if opt['five'] == '1' else [3, 2, 0, 1, 3, 2, 0]); wh = ints('wh')
    if RELAY: wo.n = 16; wh = [ints('rh')[0], 0] + ints('rh')[1:]
    pst = lambda kq, qb: [I(f"buffer_store_dwordx4 v[{Oreg(2*kq, qb)}:{Oreg(2*kq, qb)+3}], v{A.vL16}, {WSR}, s{86 + (qb*8+kq) // 4} offen offset:{(kq & 3) * 1024} sc1", tag="PST")]
    g = Gaps(pv_mfmas(1))
    tile_reads(g, lambda b: rd_batch(VSLOT[1], b), rd_wo(3, 0), [("T", 3)], npat=None if RELAY else RP16)
    w0 = wo_setup(A.vX + 4, 2 if RELAY else 0) + wo.take(wh[0]); nv = 0 if RELAY else 7
    left = Sched(g).add(oa_setup(A.vX + 4) + [By(46)], 0, 10).add([x for kq in range(8) for qb in range(2) for x in [At(8 * kq + 9 + 2 * qb)] + cvt_ctx(kq, qb) + pst(kq, qb)], 0, 63, asap=True, vmd=1).add(
        wo.take(wh[1]), 0, 12, vmd=1).run(spill=True)
    c.block("final_h", "L_final_h:", stampa(), WAITV([("T", VSLOT[1])], lgkm0=True), "s_barrier", rd_batch(VSLOT[1], 0), wev('f', pg('wh2')), w0[:nv], mix(softmax_half(1, 1), w0[nv:], 1), check(1, "L_stfh"), "L_rtfh:", add_l(1), f"""
    v_mov_b32 v{A.vX}, v{A.vNM}
    v_mov_b32 v{A.vX+1}, v{A.vNM+4}
    v_mov_b32 v{A.vX+2}, v{A.vLS}
    v_mov_b32 v{A.vX+3}, v{A.vLS+1}
    """, I(f"buffer_store_dwordx4 v[{A.vX}:{A.vX+3}], v{A.vL16}, {WSR}, s90 offen sc1", tag="PST"), need_batch(0), fs('4'), g.flat(), left[1], left[2], stampa())
    assert not left[0]
    pflag = L(f"v_min_u32 v{A.vX}, 1, v{A.vL16}\nv_lshlrev_b32 v{A.vX}, 29, v{A.vX}") + [At(int(opt['pfg'])), WAITV("PST"), side.flag_store(47, A.vX, A.vX + 5)]
    c.block("oph", "s_sleep 32" if 'o' in opt['idle'] else "", outproj(wo, wh[2:], lambda qb, ks: R("a", A.aX + (qb * 8 + ks) * 4, 4), L(f"v_accvgpr_read_b32 v{A.vRL}, a192\nv_accvgpr_read_b32 v{A.vRL + 1}, a193"), pflag))
    rm = side5.red_main(A.vL16, stampa, int(opt['lag']), int(opt['lag2']))
    if 'e' in opt['skip']: rm = []
    c.block("red0", "L_red:", [WAITV([("OP", 6)]), I(f"buffer_store_dword v{A.vX + 5}, v{A.vX + 6}, {WSR}, s3 offen sc1")] if SENT else [], side5.red_k1(A.vL16), side5.FOP_LOAD, "s_branch L_red1")
    c.block("red", "L_red1:", f's_or_b32 s77, s77, {OOB}' if 'r' in opt['wi'] else '', f's_or_b32 s78, s78, {OOB}' if 's' in opt['wi'] else '', rm, EXIT())
    c.block("rpoll", side5.red_poll())
    stubs = ""
    for n, f in (("0", "slow0"), ("1", "slow1"), ("v1", "slowf"), ("k1", "slowf"), ("h1", "slowf"), ("j0", "slowj"), ("v2", "slow1"), ("v3", "slow0"), ("d1", "slow1"),
                 ("d3n", "slow0"), ("d3h", "slow0"), ("d4n", "slowb"), ("d4h", "slowb"), ("fh", "slow1n"), ("c", "comb")):
        stubs += f"L_x{n}:\ns_call_b64 s[{A.sRET}:{A.sRET+1}], L_{f}\ns_branch L_rt{n}\n".replace("L_x", "L_st")
    return stubs

def mid_blocks(c, stubs):
    c.block("stubs", stubs)
    c.block("slow", att.slow_sub(0), att.slow_sub(1), att.slow_sub(1, False), slow_first("L_slowf", True), slow_first("L_slowj", False), slow_b(), comb_slow(opt['lc'] == '1'))
    sp = []
    for n, v in LSPIN.items():
        ld = FL_LOAD().text
        if isinstance(v, tuple): v, ld = v[0], ld.replace("v9", "v%d" % v[1])
        sp += side.spin_stub(f"L_ls{n}", f"L_lr{n}", ld, A.vRL, 91, f"v_cmp_gt_u32 vcc, {v}, v{{vt}}")
    for n, (ld, half) in WSPIN.items():
        sp += side.spin_stub(f"L_ws{n}", f"L_wr{n}", ld, A.vRL, 91, f"v_cmp_ne_u32 vcc, 1, v{{vt}}\ns_nop 0\ns_mov_b32 vcc_{'hi' if half == 'lo' else 'lo'}, 0")
    c.block("spins", side.z_stub(0), side.z_stub(1), hw.key_stub(), sp, f"""
    L_fll:
    s_cmp_eq_u32 s{sJ}, 8
    s_cbranch_scc1 L_fl8
    L_fl0:
    s_cmp_lg_u32 s{A.sWAVE}, 0
    s_cbranch_scc1 L_fl3
    s_lshr_b32 s64, s{sJ}, 3
    s_cmp_eq_u32 s{A.sCHK}, s64
    s_cbranch_scc0 L_fl1
    v_mov_b32 v{A.vX + 5}, 4
    {side.flag_store(sFL, A.vF0, A.vX + 5).text}
    L_fl1:
    s_cmp_lt_u32 s{A.sCHK}, s{sMODE}
    s_cbranch_scc1 L_fllr
    s_cmp_eq_u32 s{A.sCHK}, s{sMODE}
    s_cselect_b32 s64, 0x380, -1
    v_min_u32 v{A.vX + 7}, s64, v9
    s_mov_b32 s{A.sREQ}, 4
    buffer_load_dword v{A.vRL}, v{A.vX + 7}, {WSR}, s46 offen sc1
    s_branch L_fllr
    L_fl8:
    s_mul_i32 s64, s{A.sWAVE}, 57344
    s_sub_u32 s65, s{A.sCHK}, 1
    s_lshl_b32 s65, s65, 14
    s_add_u32 s64, s64, s65
    s_add_u32 s65, s64, 8192
    v_lshlrev_b32 v11, 3, v{A.vL16}
    s_bitcmp1_b32 {int(opt['w8'])}, s{A.sCHK}
    s_cbranch_scc0 L_fl0
    {side.touch(11, S_WO, "s64", nt=False).text}
    {side.touch(11, S_WO, "s65", nt=False).text}
    s_cmp_gt_u32 s{A.sCHK}, 2
    s_cbranch_scc1 L_fllr
    s_cmp_lg_u32 s{A.sWAVE}, 0
    s_cbranch_scc1 L_fllr
    s_branch L_fl0
    L_fl3:
    s_cmp_eq_u32 s{A.sCHK}, {TY}
    s_cbranch_scc1 L_y2
    s_cmp_eq_u32 s{A.sCHK}, {TY + 1}
    s_cbranch_scc1 L_y3
    s_cmp_eq_u32 s{A.sCHK}, {TY + 2}
    s_cbranch_scc1 L_y4
    s_branch L_y5
    s_waitcnt vmcnt(0)
    L_fps:
    s_cmp_lg_u32 s{sNC}, 0
    s_cbranch_scc1 L_fpr
    """, side.spin_stub("L_fps2", "L_fpr", FP_LOAD().text, A.vRL + 1, 91),
            side.spin_stub("L_fqs", "L_fqr", f"buffer_load_dword v{A.vRL + 1}, off, {WSR}, s47 offset:16 sc1", A.vRL + 1, 91),
            side.spin_stub("L_fls0", "L_flr0", FL_LOAD().text.replace("v9", f"v{A.vX + 7}"), A.vRL, 91, f"v_cmp_gt_u32 vcc, s{A.sREQ}, v{{vt}}"))
    c.block("ystubs", side5.y_stubs("L_fllr", int(opt['ht'])))

def paths(c):
    lp = ["loop_top", "loop_mid"]
    n = ["d1", "d2n", "d3n", "d4n", "d5n", "opn"]
    c.path("entry", "kv1", *lp, *lp, *lp, "p1", *n, "end1")
    c.path("entry", "kv0", "k1", *lp, *lp, *lp, "p1", *n, "red0", "red")
    for own in (["j0"], ["k1", "d1", "d2h"], ["k1", *lp, "p1", "d1", "d2h"], ["k1", *lp, *lp, *lp, "p1", "d1", "d2h"]):
        for nh in (0, 1, 2, 3):
            c.path("entry", "kv0", *own, "d3h", "d4h", "d5h", *(lp * nh), *(["p1"] if nh else []), "final_h", "oph", "red")
    for b in ("rpoll", "vfar", "stubs", "slow", "moe", "spins", "ystubs"): c.path(b)

def check_tiles(c):
    size = dict(U=7, T=8, W=4, C=4, X=4)
    for path in c.paths:
        cnt = {}
        for b in path:
            for i in c.blocks[b]:
                if i.kind == "dma" and isinstance(i.tag, tuple): cnt[i.tag] = cnt.get(i.tag, 0) + 1
                if i.op == "WAITV":
                    for t in (i.tag if isinstance(i.tag, list) else [i.tag]):
                        if isinstance(t, tuple) and t[0] in size:
                            n = cnt.pop(t, 0)
                            assert (n or b in ("final_h", "oph")) and n % size[t[0]] == 0, (path, b, t, n)
def ustamps(c):
    names = ["start"]
    for spec in [x for x in opt['us'].split(",") if x]:
        b, lo, hi = (spec.split(":") + ["0", "999"])[:3]
        o = []; pend = None; nb = 0
        def rec(n):
            r = L(f"v_accvgpr_write_b32 a255, v10\nv_accvgpr_read_b32 v10, a254\nv_writelane_b32 v10, s98, {n}\nv_accvgpr_write_b32 a254, v10\nv_accvgpr_read_b32 v10, a255")
            for i in r: i.extra["ghost"] = True
            return r
        for i in c.blocks[b]:
            if pend is not None and (i.op in ("s_endpgm", "s_call_b64") or i.kind == "branch" and i is c.blocks[b][-1]): o += rec(pend); pend = None
            o.append(i)
            if pend is not None and i.op in ("NEED", "WAITV"): o += rec(pend); pend = None
            if i.op == "s_barrier" or i.text.endswith("; us"):
                nb += 1
                if int(lo) <= nb <= int(hi):
                    pend = len(names); names.append(f"{b}.{nb}"); o.append(I("s_memtime s[98:99]"))
        if pend is not None: o += rec(pend)
        c.blocks[b] = o
    assert len(names) <= 64
    return names
def ipref(c):
    n = 0
    for b in [x for x in opt['ip'].split(",") if x]:
        o = []; q = b not in ("kv0", "kv1")
        for i in c.blocks[b]:
            o.append(i)
            if i.text.startswith("s_mov_b64 s[60:61], s[76:77]"): q = True
            if i.op == "s_barrier":
                n += 1
                o += [I("s_getpc_b64 s[100:101]"), I(f"s_load_dword s94, s[100:101], {opt['ipd']} ; ignore")]
        c.blocks[b] = o
SHORT = [("v_mfma_f32_16x16x32_bf16", "M", 4), ("ds_read_b128", "R", 0), ("ds_read_b64_tr_b16", "T", 0), ("v_cvt_pk_bf16_f32", "C", 3), ("v_exp_f32", "E", 2),
         ("v_accvgpr_write_b32", "W", 2), ("v_accvgpr_read_b32", "G", 2), ("v_add_f32", "AF", 3), ("v_mul_f32", "MF", 3), ("s_add_u32", "SA", 3)]
def compress(body):
    hdr = []; out = []
    for full, sh, n in SHORT:
        if n: hdr.append(f".macro {sh} " + ", ".join("abcd"[:n]) + f"\n{full} " + ", ".join("\\" + x for x in "abcd"[:n]) + "\n.endm")
        else: hdr.append(f".macro {sh} a, b, c\n{full} \\a, \\b offset:\\c\n.endm")
    for ln in body.split("\n"):
        ln = ln.strip()
        for full, sh, n in SHORT:
            if ln.startswith(full + " ") and "row_" not in ln and (n or " offset:" in ln):
                ln = sh + " " + ln[len(full) + 1:].replace(" offset:", ",").replace(", ", ","); break
        out.append(ln)
    return "\n".join(hdr), "\n".join(out)

if __name__ == "__main__":
    c = CFG(verbose=int(opt["v"]))
    entry(c); front(c, 0); front(c, 1)
    stubs = build_att(c)
    n0 = len(c.order)
    mid_blocks(c, stubs); c.block("moe", side5.red_moe() if 'e' not in opt['skip'] else [], "L_hr:\ns_endpgm" if 'h' in opt['skip'] else "")
    k = c.order.index("loop_top")
    c.order = c.order[:k] + c.order[n0:-1] + c.order[k:n0] + c.order[-1:]
    c.order.remove("red0"); c.order.append("red0")
    paths(c); opt['nochk'] == '1' or check_tiles(c); names = ustamps(c); ipref(c)
    txt = c.finalize()
    if opt['nochk'] == '0': ldscheck.check(c)
    if int(opt['v']):
        for b in c.order:
            m = c.mat[b]; bad = sum(1 for x, y in zip(m, m[1:]) if x.kind in ("valu", "trans") and y.kind in ("dsr", "dsw", "dma", "vld", "vst"))
            if any(i.kind == "mfma" for i in m): sys.stderr.write(f"; {b}: valu->mem {bad}\n")
    for spec in [x for x in opt['fl_'].split(",") if x]:
        r, f = spec.split(":")
        for b in c.order:
            for i in c.mat[b]:
                if i.kind == "dma" and f"s[{r}:" in i.text: i.text = i.text.replace(" nt", "").replace(" sc1", "").replace(" lds", " " + f.replace("+", " ") + " lds")
    if opt['dbg'] != '-':
        for b in c.order:
            for i in c.mat[b]:
                if "s[12:15]" in i.text and i.op in ("buffer_store_dword", "buffer_load_dword") and "v17" in i.text: i.text = i.text.replace("offen", "offen offset:64")
    if 'h' in opt['skip']:
        for b in c.order:
            for i in c.mat[b]:
                if i.text.startswith("s_cbranch_vccnz L_moe"): i.text = "s_nop 0"
    if WARM: txt = warm.place(c, ("kv0", "kv1", "loop_top"))
    hdr, body = compress(txt)
    kn = NAME + "_kernel"
    print("; Fused MLA-style attention + gated MoD block for gfx950; generated by dev/gen5.py (hand-written generator)")
    if opt['us']: print("; sites " + " ".join(names))
    print("; @launch grid=(256,1,1) block=(256,1,1) lds=163840")
    print('.amdgcn_target "amdgcn-amd-amdhsa--gfx950"\n.text')
    print(hdr)
    print(kernel_header(kn))
    print(body)
    print("L_code_end:")
    print('.section .rodata,"a"\n.p2align 6')
    print(kernel_desc(kn, sgpr=102))
```

```python
import re

TRANS = ("v_exp_f32", "v_log_f32", "v_rcp_f32", "v_rsq_f32", "v_sqrt_f32", "v_sin_f32", "v_cos_f32")
_REG = re.compile(r"^(-?)(?:abs\()?([vas])(?:(\d+)|\[(\d+):(\d+)\])\)?$")


def regs_of(tok):
    tok = tok.strip()
    if tok in ("vcc", "exec", "m0", "scc"):
        return [tok]
    if tok in ("vcc_lo", "vcc_hi"):
        return ["vcc"]
    if tok in ("exec_lo", "exec_hi"):
        return ["exec"]
    m = _REG.match(tok.replace("|", ""))
    if not m:
        return []
    k = m.group(2)
    if m.group(3) is not None:
        return [k + m.group(3)]
    return [k + str(i) for i in range(int(m.group(4)), int(m.group(5)) + 1)]


def R(kind, lo, n=1):
    return f"{kind}{lo}" if n == 1 else f"{kind}[{lo}:{lo + n - 1}]"


BARX = True
VM2 = True


_SEQ = [0]


class Inst:
    __slots__ = ("text", "op", "kind", "reads", "writes", "tag", "srcc", "srcab", "extra")

    def __init__(self, text, tag=None, **extra):
        self.text = text.strip()
        self.tag = tag
        self.extra = extra
        self.srcc = []
        self.srcab = []
        _SEQ[0] += 1
        self.extra["seq"] = _SEQ[0]
        self.parse()

    def parse(self):
        t = self.text.split(";")[0].strip()
        if t.endswith(":") or t.startswith("."):
            self.op, self.kind, self.reads, self.writes = t, "label", [], []
            return
        parts = t.split(None, 1)
        op = parts[0]
        self.op = op
        ops = []
        mods = ""
        if len(parts) > 1:
            depth = 0
            cur = ""
            for ch in parts[1]:
                if ch in "[(":
                    depth += 1
                if ch in "])":
                    depth -= 1
                if ch == "," and depth == 0:
                    ops.append(cur.strip())
                    cur = ""
                else:
                    cur += ch
            last = cur.strip().split(None, 1)
            if last:
                ops.append(last[0])
                mods = last[1] if len(last) > 1 else ""
        rd, wr = [], []
        allr = [regs_of(o) for o in ops]
        flat = lambda ls: [r for l in ls for r in l]
        if op.startswith("v_mfma"):
            kind = "mfma"
            wr = allr[0]
            self.srcab = allr[1] + allr[2]
            self.srcc = allr[3]
            rd = flat(allr[1:])
        elif op.startswith("ds_read") or op.startswith("ds_bpermute") or op.startswith("ds_swizzle") or op.startswith("ds_permute"):
            kind = "dsr"
            wr = allr[0]
            rd = flat(allr[1:])
        elif op.startswith("ds_"):
            kind = "dsw"
            rd = flat(allr)
        elif op.startswith("buffer_load") or op.startswith("global_load"):
            if " lds" in " " + mods or "_lds_" in op:
                kind = "dma"
                rd = flat(allr) + ["m0"]
            else:
                kind = "vld"
                wr = allr[0]
                rd = flat(allr[1:])
        elif op.startswith("buffer_store") or op.startswith("global_store"):
            kind = "vst"
            rd = flat(allr)
        elif op.startswith("buffer_atomic") or op.startswith("global_atomic"):
            if "sc0" in mods:
                kind = "vld"
                wr = allr[0]
                rd = flat(allr)
            else:
                kind = "vst"
                rd = flat(allr)
        elif op in ("buffer_inv", "buffer_wbl2"):
            kind = "vst"
        elif op.startswith("s_load") or op in ("s_memtime", "s_memrealtime"):
            kind = "smem"
            wr = allr[0]
            rd = flat(allr[1:])
        elif op.startswith("v_"):
            base = op.replace("_e32", "").replace("_e64", "").replace("_dpp", "").replace("_sdwa", "")
            kind = "trans" if base in TRANS else "valu"
            wr = list(allr[0])
            rd = flat(allr[1:])
            if base.startswith("v_permlane") and "swap" in base:
                wr = allr[0] + allr[1]
                rd = allr[0] + allr[1]
            if base in ("v_fmac_f32", "v_dot2c_f32_bf16", "v_writelane_b32", "v_pk_fmac_f16") or "row_" in mods or "quad_perm" in mods:
                rd = rd + allr[0]
            if base in ("v_add_co_u32", "v_sub_co_u32", "v_addc_co_u32"):
                wr = allr[0] + allr[1]
                rd = flat(allr[2:])
            if base.startswith("v_cmpx"):
                wr = wr + ["exec"]
            self.extra["dpp"] = ("row_" in mods or "quad_perm" in mods)
        elif op in ("s_waitcnt", "s_nop", "s_barrier", "s_sleep", "s_setprio", "s_endpgm"):
            kind = "sctl"
        elif op.startswith("s_cbranch") or op in ("s_branch", "s_setpc_b64", "s_swappc_b64", "s_call_b64"):
            kind = "branch"
            rd = flat(allr)
            if "vcc" in op:
                rd = rd + ["vcc"]
            if op == "s_swappc_b64":
                wr = allr[0]
        elif op.startswith("s_cmp") or op.startswith("s_bitcmp"):
            kind = "salu"
            rd = flat(allr)
        elif op.startswith("s_"):
            kind = "salu"
            wr = allr[0] if allr else []
            rd = flat(allr[1:])
            if "saveexec" in op:
                wr = wr + ["exec"]
                rd = rd + ["exec"]
            if op in ("s_addk_i32", "s_mulk_i32"):
                rd = rd + wr
        elif op in ("NEED", "WAITV"):
            kind = "pseudo"
            rd = []
            self.extra["regs"] = flat(allr)
        else:
            raise ValueError("cannot parse: " + self.text)
        self.kind, self.reads, self.writes = kind, rd, wr

    def slots(self):
        if self.kind in ("label", "mfma"):
            return (0, 0)
        if self.kind == "trans" or self.op.startswith("v_permlane") or (VM2 and self.kind in ("dma", "vld", "vst")):
            return (2, 0)
        if self.kind in ("valu", "dsr", "dsw", "dma", "vld", "vst"):
            return (1, 0)
        return (0, 1)

    def __repr__(self):
        return self.text


def I(text, **kw):
    return Inst(text, **kw)


def NEED(*regtexts):
    return Inst("NEED " + ", ".join(regtexts))


def WAITV(tag, lgkm0=False):
    i = Inst("WAITV")
    i.tag = tag
    i.extra["lgkm0"] = lgkm0
    return i


_NO_SCC = ("s_mov", "s_mul_i32", "s_cselect", "s_getpc", "s_movk", "s_getreg", "s_mul_hi", "s_cmov", "s_ff1", "s_bitset")
def writes_scc(i):
    return i.kind == "salu" and not i.op.startswith(_NO_SCC)
def reads_scc(i):
    return i.op.startswith(("s_cselect", "s_cbranch_scc", "s_addc", "s_subb", "s_cmov"))


def L(text):
    out = []
    last = None
    for line in text.split("\n"):
        line = line.strip()
        if line and not line.startswith(";"):
            i = Inst(line)
            if reads_scc(i) and last is not None:
                i.extra["scc"] = last
            if writes_scc(i):
                last = i
            out.append(i)
    return out


def link(ins):
    last = {}
    for i in ins:
        if not isinstance(i, Inst):
            continue
        for r in i.reads:
            if r in last and r not in i.extra.get("pin", ()):
                i.extra.setdefault("raw", {})[r] = last[r]
        for r in i.writes:
            last[r] = i
    return ins


def check_raw(insts, name):
    last = {}
    for i in insts:
        if i.extra.get("ghost"): continue
        for r, src in i.extra.get("raw", {}).items():
            assert last.get(r) is src, f"{name}: {i.text} reads {r} from {last.get(r)} instead of {src.text}"
        for r in i.writes:
            last[r] = i


def check_order(insts, name):
    writers = {}
    for p, i in enumerate(insts):
        for r in i.writes: writers.setdefault(r, []).append((i.extra["seq"], p, i))
    for w in writers.values(): w.sort(key=lambda t: t[0])
    bad = []
    for p, i in enumerate(insts):
        if i.kind not in ("dma", "vld", "vst", "dsr", "dsw") or i.extra.get("ghost"): continue
        for r in i.reads:
            if r == "m0" or r in i.extra.get("raw", {}): continue
            prev = [w for w in writers.get(r, []) if w[0] < i.extra["seq"]]
            if prev and prev[-1][1] > p: bad.append((name, i.text, r, prev[-1][2].text))
    return bad


def check_scc(insts, name):
    last = None
    for i in insts:
        if i.extra.get("ghost"): continue
        if reads_scc(i):
            src = i.extra.get("scc")
            if src is not None:
                assert last is src, f"SCC clobbered in {name}: {i.text} expects {src.text}, got {last.text if last else None}"
            else:
                assert last is not None and last.op.startswith(("s_cmp", "s_bitcmp", "s_and_b32")), f"SCC source unclear in {name}: {i.text} after {last}"
        if writes_scc(i):
            last = i


TIDY = False
SHARE = ()
def mem_first(ve):
    out = []
    for i in ve:
        p = len(out)
        if i.kind in ("dsr", "dsw", "dma", "vld", "vst"):
            while p and out[p - 1].kind in ("valu", "trans") and not (set(out[p - 1].writes) & set(i.reads + i.writes)) and not (set(out[p - 1].reads) & set(i.writes)):
                p -= 1
        out.insert(p, i)
    return out


class Gaps:
    def __init__(self, mfmas):
        self.m = list(mfmas)
        self.n = len(self.m)
        self.sc = [[] for _ in range(self.n)]
        self.ve = [[] for _ in range(self.n)]
        self.pre = []

    def used(self, k):
        if BARX and any(i.op == "s_barrier" for i in self.sc[k]):
            return 2
        v = sum(max(i.slots()) for i in self.ve[k])
        s = len([i for i in self.sc[k] if i.kind != 'label'])
        return v + max(0, s - 1)

    def fits(self, k, inst):
        u = self.used(k)
        if u + max(inst.slots()) <= 2: return True
        ve = self.ve[k]
        return (SHARE and inst.kind == "valu" and u == 2 and len(ve) == 1 and ve[0].kind in SHARE and not set(ve[0].reads) & set(inst.writes))

    def vm_near(self, k, d=3):
        return any(i.kind in ("dma", "vld", "vst") and "x4" in i.op for j in range(max(0, k - d), min(self.n, k + d + 1)) for i in self.ve[j])

    def vm_slot(self, k, inst, reach=10):
        if inst.kind in ("dma", "vld", "vst") and "x4" in inst.op:
            for d in (3, 2, 1):
                for j in range(k, min(self.n, k + reach)):
                    if self.used(j) + max(inst.slots()) <= 2 and not self.vm_near(j, d):
                        return j
        return k

    def put_s(self, k, inst):
        self.sc[k].append(inst)

    def put(self, k, inst):
        self.ve[k].append(inst)

    def fit(self, k, inst, lim=None):
        need = max(inst.slots())
        j = k
        while j < self.n and self.used(j) + need > 2:
            j += 1
        if j >= self.n or (lim is not None and j > lim):
            j = min(self.n - 1, k if lim is None else lim)
        self.ve[j].append(inst)
        return j

    def fit_s(self, k, inst, lim=None):
        j = k
        while j < self.n and len(self.sc[j]) >= 1:
            j += 1
        if j >= self.n or (lim is not None and j > lim):
            j = min(self.n - 1, k if lim is None else lim)
        self.sc[j].append(inst)
        return j

    def spread(self, insts, lo, hi):
        n = len(insts)
        last = lo
        for x, ins in enumerate(insts):
            k = max(last, lo + (x * (hi - lo)) // max(n, 1))
            last = self.fit(k, ins)

    def flat(self):
        last = self.n - 1
        if self.ve[last] and self.sc[last] and self.sc[last][-1].kind == "branch":
            self.ve[last].append(self.sc[last].pop())
        assert not any(i.kind == "branch" for i in self.sc[last][:-1])
        out = list(self.pre)
        prev_full = False
        for k in range(self.n):
            ve = mem_first(self.ve[k]) if TIDY else self.ve[k]
            out.append(self.m[k])
            out += self.sc[k]
            if (TIDY and len(ve) > 1 and ve[0].op == ve[1].op == "ds_read_b64_tr_b16" and not prev_full
                    and not any(i.kind not in ("label", "pseudo") for i in self.sc[k])):
                out.append(Inst("s_nop 0"))
            out += ve
            prev_full = sum(2 if i.kind == "trans" else 1 for i in ve if i.kind in ("valu", "trans", "dsr")) >= 2
        return out


def est_cycles(insts):
    t = 0
    vfree = 0
    mfree = 0
    nm = 0
    ta = 0
    for i in insts:
        if i.kind in ("label", "pseudo"):
            continue
        if i.kind == "mfma":
            t = max(t, vfree, mfree)
            mfree = t + 16
            vfree = t + 8
            t += 4
            nm += 1
        elif i.kind in ("valu", "dsr", "dsw", "dma", "vld", "vst", "trans"):
            t = max(t, vfree)
            if i.kind in ("dma", "vld", "vst"):
                t = max(t, ta - 64)
                ta = max(ta, t) + (64 if "x4" in i.op else 16)
            t += 8 if i.kind in ("trans", "dma", "vld", "vst") else 4
            vfree = t
        elif i.op == "s_nop":
            t += 4 * (int(i.text.split()[1]) + 1)
        else:
            t += 4
    return max(t, mfree), nm


class State:
    def __init__(self):
        self.lg = []
        self.vm = []
        self.smem = set()

    def copy(self):
        s = State()
        s.lg = list(self.lg)
        s.vm = list(self.vm)
        s.smem = set(self.smem)
        return s

    def key(self):
        return (tuple(tuple(sorted(x)) for x in self.lg), tuple((tuple(sorted(w)), str(t)) for w, t in self.vm))


def _parse_wait(text):
    v = re.search(r"vmcnt\((\d+)\)", text)
    l = re.search(r"lgkmcnt\((\d+)\)", text)
    return (int(v.group(1)) if v else None, int(l.group(1)) if l else None)


def wait_text(v, l):
    p = []
    if v is not None:
        p.append(f"vmcnt({min(v, 63)})")
    if l is not None:
        p.append(f"lgkmcnt({min(l, 15)})")
    return "s_waitcnt " + " ".join(p)


def wait_pass(insts, st, forced=None, log=None):
    st = st.copy()
    waits = {}

    def apply(v, l):
        if v is not None:
            v = min(v, 63)
            st.vm = st.vm[len(st.vm) - v:] if v < len(st.vm) and v > 0 else ([] if v == 0 else st.vm)
        if l is not None:
            l = min(l, 15)
            st.lg = st.lg[len(st.lg) - l:] if l < len(st.lg) and l > 0 else ([] if l == 0 else st.lg)
            if l == 0:
                st.smem = set()

    for idx, ins in enumerate(insts):
        if "ignore" in ins.text:
            continue
        v = l = None
        if forced and idx in forced:
            v, l = forced[idx]
        touch = set(ins.reads) | set(ins.writes)
        if ins.op == "NEED":
            touch = set(ins.extra["regs"])
        if touch:
            for p in range(len(st.lg) - 1, -1, -1):
                if st.lg[p] & touch:
                    n = len(st.lg) - 1 - p
                    if st.smem:
                        n = 0
                    l = n if l is None else min(l, n)
                    break
            for p in range(len(st.vm) - 1, -1, -1):
                if st.vm[p][0] & touch:
                    n = len(st.vm) - 1 - p
                    v = n if v is None else min(v, n)
                    break
            if st.smem & touch:
                l = 0
        if ins.op == "WAITV":
            tags = ins.tag if isinstance(ins.tag, list) else [ins.tag]
            for p in range(len(st.vm) - 1, -1, -1):
                if st.vm[p][1] in tags:
                    n = len(st.vm) - 1 - p
                    v = n if v is None else min(v, n)
                    break
            if ins.extra.get("lgkm0") and (st.lg or st.smem):
                l = 0
        if v is not None or l is not None:
            waits[idx] = (v, l)
            if log is not None and ins.kind != "pseudo" and not (forced and idx in forced):
                log.append((idx, ins.text, v, l))
            apply(v, l)
        if ins.op == "s_waitcnt":
            apply(*_parse_wait(ins.text))
        elif ins.kind == "dsr":
            st.lg.append(set(ins.writes))
        elif ins.kind == "dsw":
            st.lg.append(set())
        elif ins.kind in ("vld",):
            st.vm.append((set() if ins.tag == "TOUCH" else set(ins.writes), ins.tag))
        elif ins.kind in ("dma", "vst"):
            if "nocount" not in ins.text:
                st.vm.append((set(), ins.tag))
        elif ins.kind == "smem":
            st.smem |= set(ins.writes)
    return waits, st


def materialize(insts, waits):
    out = []
    for idx, ins in enumerate(insts):
        if idx in waits:
            out.append(Inst(wait_text(*waits[idx])))
        if ins.kind != "pseudo":
            out.append(ins)
    return out


def is_v(r):
    return r[0] in "va" and r not in ("vcc",)


def hazard_need(prod, cons):
    need = 0
    pw, pr = set(prod.writes), set(prod.reads)
    cr, cw = set(cons.reads), set(cons.writes)
    pvalu = prod.kind in ("valu", "trans")
    cvalu = cons.kind in ("valu", "trans")
    cmem = cons.kind in ("dsr", "dsw", "vld", "vst", "dma")
    if prod.kind == "mfma":
        passes = 4 if "16x16" in prod.op else 8
        big = {4: 8, 8: 12}[passes]
        if cons.kind == "mfma":
            if pw & set(cons.srcab):
                need = max(need, big)
            if pw & set(cons.srcc):
                if not (list(prod.writes) == list(cons.srcc) and prod.op == cons.op):
                    need = max(need, {4: 6, 8: 10}[passes])
            if pw & cw and not (pw & set(cons.srcc)):
                need = max(need, {4: 6, 8: 10}[passes])
        elif cvalu:
            if pw & (cr | cw):
                need = max(need, big)
            if set(prod.srcc) & cw:
                need = max(need, {4: 3, 8: 7}[passes])
        elif cmem:
            if pw & (cr | cw):
                need = max(need, big)
    if pvalu:
        vw = {r for r in pw if is_v(r)}
        sw = pw - vw
        if cons.kind == "mfma":
            if vw & cr:
                need = max(need, 2)
            if "exec" in pw:
                need = max(need, 4)
        if cvalu:
            if prod.kind == "trans" and vw & cr:
                need = max(need, 1)
            if cons.op.startswith("v_permlane") and vw & cr:
                need = max(need, 2)
            if cons.extra.get("dpp") and vw & cr:
                need = max(need, 2)
            if cons.extra.get("dpp") and "exec" in pw:
                need = max(need, 5)
            if (cons.op.startswith("v_readlane") or cons.op.startswith("v_readfirstlane")) and vw & cr:
                need = max(need, 1)
            if (cons.op.startswith("v_readlane") or cons.op.startswith("v_writelane")) and sw & cr:
                need = max(need, 4)
            if (cons.op.startswith("v_readlane") or cons.op.startswith("v_writelane") or cons.op.startswith("v_readfirstlane") or cons.op.startswith("v_permlane")) and "exec" in pw:
                need = max(need, 4)
            if sw & cr:
                need = max(need, 2)
            if ("sdwa" in prod.text or "_sel:" in prod.text) and not prod.op.startswith("v_pk_") and vw & (cr | cw):
                need = max(need, 1)
            if prod.op.startswith("v_dot") and vw & (cr | cw) and prod.op != cons.op:
                need = max(need, 3)
        if prod.op.startswith("v_dot") and (cmem or cons.kind == "mfma") and vw & cr:
            need = max(need, 3)
        if cons.kind in ("vld", "vst", "dma") and sw & cr:
            need = max(need, 5)
        if prod.kind == "trans" and cmem and vw & cr:
            need = max(need, 1)
        if cons.kind in ("salu", "branch") and sw & cr:
            need = max(need, 1)
    if prod.kind == "vst" and ("x4" in prod.op or "x3" in prod.op):
        data = {r for r in pr if is_v(r)}
        if data & cw:
            need = max(need, 2)
    if prod.kind == "salu" and "m0" in pw and (cons.kind == "dma" or "m0" in cr):
        need = max(need, 1)
    return need


def states_of(ins):
    if ins.kind in ("label", "pseudo"):
        return 0
    if ins.op == "s_nop":
        return int(ins.text.split()[1]) + 1
    return 1


def hazard_pass(insts, history=None, log=None):
    hist = list(history or [])
    out = []
    for ins in insts:
        if ins.kind in ("label", "pseudo"):
            out.append(ins)
            continue
        dist = 0
        pad = 0
        for p in reversed(hist):
            if dist >= 12:
                break
            nd = hazard_need(p, ins)
            if nd > dist:
                pad = max(pad, nd - dist)
                if log is not None:
                    log.append((p.text, ins.text, nd, dist))
            dist += states_of(p)
        if pad:
            nop = Inst(f"s_nop {pad - 1}")
            out.append(nop)
            hist.append(nop)
        out.append(ins)
        hist.append(ins)
        hist = hist[-16:]
    return out


class Prog:
    def __init__(self, verbose=False):
        self.out = []
        self.st = State()
        self.verbose = verbose
        self.hist = []

    def _report(self, name, wl, hl, insts):
        if self.verbose:
            c, nm = est_cycles(insts)
            print(f"; [{name}] insts={len(insts)} mfma={nm} est_cycles={c} (ideal {nm * 16}) auto_waits={len(wl)} pads={len(hl)}")
            if self.verbose > 1:
                for w in wl:
                    print(";   auto wait before", w)
                for h in hl:
                    print(";   pad", h)

    def add(self, insts, name="seq"):
        if isinstance(insts, str):
            insts = L(insts)
        if isinstance(insts, Inst):
            insts = [insts]
        wl, hl = [], []
        waits, self.st = wait_pass(insts, self.st, log=wl)
        m = materialize(insts, waits)
        m = hazard_pass(m, self.hist, log=hl)
        self.hist = (self.hist + [i for i in m if i.kind != "label"])[-16:]
        self.out += m
        if any(i.kind == "mfma" for i in m):
            self._report(name, wl, hl, m)

    def loop(self, body, name="loop"):
        wl, hl = [], []
        w1, s1 = wait_pass(body, self.st, log=wl)
        forced = dict(w1)
        for _ in range(4):
            w2, s2 = wait_pass(body, s1, forced=forced, log=wl)
            same = (w2 == forced) and s2.key() == s1.key()
            forced = w2
            _, s1n = wait_pass(body, self.st, forced=forced)
            s1 = s2
            if same:
                break
        _, sa = wait_pass(body, self.st, forced=forced)
        if sa.key() != s1.key():
            if self.verbose:
                print(f"; note: loop {name}: first-trip exit state differs from steady state")
        m = materialize(body, forced)
        m = hazard_pass(m, self.hist, log=hl)
        m2 = hazard_pass(m, [i for i in m if i.kind != "label"][-16:], log=hl)
        self.hist = [i for i in m2 if i.kind != "label"][-16:]
        self.out += m2
        self.st = s1
        self._report(name, wl, hl, m2)

    def reset(self):
        self.st = State()
        self.hist = []

    def raw(self, text):
        self.out.append(Inst(".raw"))
        self.out[-1].text = text

    def text(self):
        return "\n".join(("" if i.kind == "label" else "  ") + i.text for i in self.out)


class CFG:
    def __init__(self, verbose=1):
        self.blocks = {}
        self.order = []
        self.paths = []
        self.verbose = verbose

    def block(self, name, *parts):
        ins = []
        for p in parts:
            if isinstance(p, str):
                ins += L(p)
            elif isinstance(p, Inst):
                ins.append(p)
            else:
                for q in p:
                    ins += L(q) if isinstance(q, str) else [q]
        assert name not in self.blocks, name
        self.blocks[name] = ins
        self.order.append(name)

    def path(self, *names):
        self.paths.append(list(names))

    def finalize(self):
        import sys
        forced = {n: {} for n in self.blocks}
        logs = {n: [] for n in self.blocks}
        seen = set()
        cache = {}
        ver = {n: 0 for n in self.blocks}
        for _ in range(10):
            changed = False
            for path in self.paths:
                st = State()
                for n in path:
                    seen.add(n)
                    key = (n, ver[n], st.key(), tuple(sorted(st.smem)))
                    if key in cache:
                        st = cache[key]
                        continue
                    w, st = wait_pass(self.blocks[n], st, forced=forced[n], log=logs[n])
                    if w != forced[n]:
                        forced[n] = w
                        ver[n] += 1
                        changed = True
                    else:
                        cache[key] = st
            if not changed:
                break
        else:
            raise RuntimeError("wait analysis did not converge")
        for n in self.blocks:
            assert n in seen, f"block {n} is on no path"
        mat = {n: materialize(self.blocks[n], forced[n]) for n in self.blocks}
        for n in mat: check_scc(mat[n], n)
        for path in self.paths: check_raw([i for n in path for i in mat[n]], path[-1])
        hl = {n: [] for n in self.blocks}
        for n in mat:
            mat[n] = hazard_pass(mat[n], [], log=hl[n])
        for _ in range(2):
            for path in self.paths:
                hist = []
                for n in path:
                    mat[n] = hazard_pass(mat[n][:24], hist, log=hl[n]) + mat[n][24:]
                    hist = (hist + [i for i in mat[n][-24:] if i.kind != "label"])[-16:]
        for n in self.order:
            if self.verbose:
                c, nm = est_cycles(mat[n])
                sys.stderr.write(f"; [{n}] insts={len(mat[n])} mfma={nm} est={c} ideal={nm * 16} auto_waits={len(logs[n])} pads={len(hl[n])}\n")
                if self.verbose > 1 and nm:
                    for w in logs[n]:
                        sys.stderr.write(f";    auto wait {w}\n")
                    for h in hl[n]:
                        sys.stderr.write(f";    pad {h}\n")
        self.mat = mat
        out = []
        for n in self.order:
            out.append(f"; ---- {n}")
            out += [("" if i.kind == "label" else "  ") + i.text for i in mat[n]]
        return "\n".join(out)
```

```python
from common import *

class AttRegs:
    S_WS = 8
    S_DBG = 12
    sWAVE = 20
    sK, sKcnt, sKn1, sKc1, sKn2 = 21, 22, 23, 24, 25
    sV, sIT, sM0, sT0, sT1 = 26, 27, 28, 29, 30
    sTHR, sQ, sOP, sPO, sDQ = 31, 32, 33, 34, 35
    sRET = 36
    sVn = 38
    sREQ, sCHK = 6, 7
    sTRI = (16, 18, 48, 50)
    vRD0, vRD1, vDM0, vDM1, vL16 = 7, 2, 3, 4, 7
    vF0 = 1
    vRL = 5
    vNEG = 8
    vX = 10
    vT = 18
    vSUM = 26
    vLS = 30
    vNM = 32
    vP0, vP1 = 40, 56
    vS, vO = 64, 128
    aQ, aF, aX = 0, 64, 128
A = AttRegs
KSLOT = {0: 3, 1: 1}
VSLOT = {0: 2, 1: 0}

def Sreg(b, kb, qb): return A.vS + 32 * b + (kb * 2 + qb) * 4
def Oreg(db, qb): return A.vO + (db * 2 + qb) * 4
def Preg(b, kp, qb): return (A.vP0 + 8 * b + 4 * qb) if kp == 0 else (A.vP1 + 4 * qb)
def Qreg(qb, ks): return A.aQ + (qb * 8 + ks) * 4
def Freg(batch, f): return A.aF + (batch & 1) * 32 + f * 4

WI = dict(nr=8, nd=8, noadd=0)
def rd_batch(slot, batch):
    va = A.vRD1 if slot >= 2 else A.vRD0
    return [I(f"ds_read_b128 a[{Freg(batch, f)}:{Freg(batch, f)+3}], v{va} offset:{(slot & 1) * 32768 + batch * 8192 + f * 1024}") for f in range(WI['nr'])]

DFL = "sc1"
def dma_tile(slot, soff, flags=None):
    flags = DFL
    out = []
    for j in range(WI['nd']):
        pre = I(f"s_add_u32 m0, s{A.sM0}, {slot * 32768 + (j >> 2) * 4096}") if j % 4 == 0 else None
        v = A.vDM0 if j < 4 else A.vDM1
        out.append((pre, I(f"buffer_load_dwordx4 v{v}, s[{A.S_WS}:{A.S_WS+3}], s{soff} offen offset:{(j & 3) * 1024} {flags} lds", tag=("T", slot))))
    return out
def dma_flat(slot, soff):
    out = []
    for pre, d in dma_tile(slot, soff):
        if pre: out.append(pre)
        out.append(d)
    return out
def adv_k():
    return L(f"""
    s_add_u32 s{A.sK}, s{A.sK}, 32768
    s_sub_u32 s{A.sKcnt}, s{A.sKcnt}, 1
    s_cmp_eq_u32 s{A.sKcnt}, 0
    s_cselect_b32 s{A.sK}, s{A.sKn1}, s{A.sK}
    s_cselect_b32 s{A.sKcnt}, s{A.sKc1}, s{A.sKcnt}
    s_cselect_b32 s{A.sKn1}, s{A.sKn2}, s{A.sKn1}
    s_cselect_b32 s{A.sKc1}, 0x7fff, s{A.sKc1}
    """)
def adv_v(): return L(f"s_add_u32 s{A.sV}, s{A.sV}, 32768")

X = dict(nodma=0, nobar=0, rp=0, dp=0, wide=1, ls=1, r3=1, r3x='-')
RPAT = {0: [0, 1, 3, 4, 6, 7, 9, 10], 1: [0, 1, 2, 4, 5, 6, 8, 9], 2: [0, 1, 4, 5, 8, 9, 12, 13], 3: [0, 0, 2, 2, 4, 4, 6, 6], 4: [0, 2, 4, 6, 8, 10, 12, 14], 5: [0, 0, 3, 3, 6, 6, 9, 9], 6: [0, 1, 2, 3, 5, 6, 7, 8]}
def weave_dma(g, slot, soff, post, lo=1, hi=45):
    t = dma_tile(slot, soff)
    link([i for p in t for i in p if i] + list(post))
    step = (hi - lo) / 8.0
    kk = lo
    for j, (pre, d) in enumerate(t):
        k = max(kk, int(lo + j * step))
        if pre:
            k = g.fit_s(max(k - 1, kk if j else 0), pre) + 1
        if X["dp"] == 1:
            while g.used(k) != 1: k += 1
        if X["dp"] == 2:
            while g.used(k) != 0: k += 1
        kk = k if X["nodma"] else g.fit(k, d)
    k = kk + 1
    for ins in post:
        k = g.fit_s(k, ins) + 1
    return k

def weave_reads(g, slot, nslot, wait_tags, base=0):
    pat = RPAT[X["rp"]]; late = pat[-1] > 10
    if late: g.put_s(base + 3, NEED(R("a", Freg(0, 4), 16)))
    for b in range(1, 4):
        rs = rd_batch(slot, b)
        p = pat if (b < 3 or not late) else RPAT[X['r3']]
        if b == 3 and X['r3x'] != '-': p = RPAT[int(X['r3x'])]
        for f, r in enumerate(rs):
            g.put(base + (b - 1) * 16 + p[f], r)
        if b < 3:
            g.put_s(base + b * 16 - 1, NEED(R("a", Freg(b, 0), 16 if late else 32)))
            if late: g.put_s(base + b * 16 + 3, NEED(R("a", Freg(b, 4), 16)))
    g.put_s(base + 46, WAITV(wait_tags, lgkm0=True))
    if not X["nobar"]: g.put_s(base + 47, I("s_barrier"))
    if nslot is not None:
        for f, r in enumerate(rd_batch(nslot, 0)):
            g.put(base + 48 + pat[f], r)
        g.put_s(base + 62, NEED(R("a", Freg(0, 0), 16 if late else 32)))

def qk_mfmas(b, cmode, breg=None, kbs=range(4)):
    ms = []
    for kb in kbs:
        for m, qb in enumerate((1, 0) if QKS and kb & 1 else (0, 1)):
            d = R("v", Sreg(b, kb, qb), 4)
            order = range(8) if m == 0 else range(7, -1, -1)
            for n, ks in enumerate(order):
                c = d if n else {"nm": R("v", A.vNM + 4 * qb, 4), "self": d, "zero": "0", "mask": R("v", A.vNM + 4, 4) if (kb, qb) == (0, 1) else d}[cmode]
                bq = breg(qb, ks) if breg else R("a", Qreg(qb, ks), 4)
                ms.append(mfma(d, R("a", Freg(kb, ks), 4), bq, c))
    return ms
QKS = False
PVS = False
def pv_mfmas(b):
    ms = []
    for db in range(16):
        for m, qb in enumerate((1, 0) if PVS and db & 1 else (0, 1)):
            d = R("v", Oreg(db, qb), 4)
            for kp in ((0, 1) if m == 0 else (1, 0)):
                ms.append(mfma(d, R("a", Freg(db >> 2, (db & 3) * 2 + kp), 4), R("v", Preg(b, kp, qb), 4), d))
    return ms

def softmax_groups(b, kp):
    groups = []
    n = 0
    for qb in range(2):
        for kk in range(2):
            for pr in range(2):
                s = Sreg(b, 2 * kp + kk, qb) + 2 * pr
                t0, t1 = A.vT + (n % 4) * 2, A.vT + (n % 4) * 2 + 1
                sm = A.vSUM + 2 * b + qb
                ex = [I(f"v_exp_f32 v{t0}, v{s}"), I(f"v_exp_f32 v{t1}, v{s+1}")]
                if kp == 0 and kk == 0 and pr == 0:
                    post = [I(f"v_add_f32 v{sm}, v{t0}, v{t1}")]
                else:
                    post = [I(f"v_add_f32 v{sm}, v{t0}, v{sm}"), I(f"v_add_f32 v{sm}, v{t1}, v{sm}")]
                if WI['noadd']: post = post[:0]
                post.insert(1, I(f"v_cvt_pk_bf16_f32 v{Preg(b, kp, qb) + 2 * kk + pr}, v{t0}, v{t1}"))
                groups.append((ex, post))
                n += 1
    return groups
def softmax_half(b, kp):
    out = []
    prev = []
    for ex, post in softmax_groups(b, kp):
        out.append(ex[0]); out += prev[:2]; out.append(ex[1]); out += prev[2:]
        prev = post
    out += prev
    return out
def sched_softmax(g, b, kp, lo, hi, pre=()):
    grp = softmax_groups(b, kp)
    link(list(pre) + [i for e, p in grp for i in e + p])
    ex = [(n, i) for n, (e, p) in enumerate(grp) for i in e]
    po = [(-1, i) for i in pre] + [(n, i) for n, (e, p) in enumerate(grp) for i in p]
    done_e = {}; last = lo; ne = 0
    for k in range(lo, g.n):
        empty_left = sum(1 for q in range(k, hi) if g.used(q) == 0)
        if ex and g.used(k) == 0:
            n = ex[0][0]
            free = not any(m <= n - 4 for m, _ in po)
            due = k >= lo + ne * (hi - lo) // 16 or empty_left <= len(ex)
            if free and due:
                g.put(k, ex.pop(0)[1]); done_e[n] = (done_e.get(n, (0, 0))[0] + 1, k); ne += 1; last = k
                continue
        keep = ex and g.used(k) == 0 and empty_left <= len(ex) and not any(m <= ex[0][0] - 4 for m, _ in po)
        while po and g.used(k) < 2 and not keep:
            n = po[0][0]
            if n >= 0 and not (done_e.get(n, (0, 0))[0] == 2 and done_e[n][1] < k): break
            g.put(k, po.pop(0)[1]); last = k
    if ex or po:
        last = g.n - 1
        for n in range(-1, 8):
            for m, i in ex:
                if m == n: g.put(last, i)
            for m, i in po:
                if m == n: g.put(last, i)
    return last

def check(b, label):
    return [I(f"v_max_f32 v{A.vX}, v{A.vSUM + 2*b}, v{A.vSUM + 2*b + 1}"),
            I(f"v_cmp_lt_f32 vcc, s{A.sTHR}, v{A.vX}"),
            I(f"s_cbranch_vccnz {label}")]
def add_l(b):
    return [I(f"v_add_f32 v{A.vLS + q}, v{A.vSUM + 2*b + q}, v{A.vLS + q}") for q in range(2)]

def xlane(op, r, t):
    return L(f"""
    v_mov_b32 v{t}, v{r}
    v_permlane16_swap_b32 v{t}, v{r}
    {op} v{r}, v{t}, v{r}
    v_mov_b32 v{t}, v{r}
    v_permlane32_swap_b32 v{t}, v{r}
    {op} v{r}, v{t}, v{r}
    """)
def rowmax(b):
    ins = []
    for qb in range(2):
        vals = [Sreg(b, kb, qb) + e for kb in range(4) for e in range(4)]
        m = A.vX + qb
        ins.append(I(f"v_max3_f32 v{m}, v{vals[0]}, v{vals[1]}, v{vals[2]}"))
        for x in range(3, 15, 2):
            ins.append(I(f"v_max3_f32 v{m}, v{vals[x]}, v{vals[x+1]}, v{m}"))
        ins.append(I(f"v_max_f32 v{m}, v{vals[15]}, v{m}"))
    a, c = xlane("v_max_f32", A.vX, A.vX + 2), xlane("v_max_f32", A.vX + 1, A.vX + 3)
    for x, y in zip(a, c): ins += [x, y]
    ins += [I(f"v_ceil_f32 v{A.vX + q}, v{A.vX + q}") for q in range(2)]
    return ins
def sub_S(b):
    return [I(f"v_sub_f32 v{Sreg(b, kb, qb) + e}, v{Sreg(b, kb, qb) + e}, v{A.vX + qb}") for kb in range(4) for qb in range(2) for e in range(4)]
def init_softmax(b):
    ins = rowmax(b)
    ins += [I(f"v_sub_f32 v{A.vNM + 4*q + e}, 0, v{A.vX + q}") for q in range(2) for e in range(4)]
    ins += sub_S(b)
    ins += [I(f"v_mov_b32 v{A.vLS + q}, 0") for q in range(2)]
    ins += softmax_half(b, 0)
    return ins
def rescale_state():
    ins = [I(f"v_sub_f32 v{A.vNM + 4*q + e}, v{A.vNM + 4*q + e}, v{A.vX + q}") for q in range(2) for e in range(4)]
    ins += [I(f"v_exp_f32 v{A.vX + 2 + q}, -v{A.vX + q}") for q in range(2)]
    ins += [I(f"v_mul_f32 v{A.vLS + q}, v{A.vX + 2 + q}, v{A.vLS + q}") for q in range(2)]
    ins += [I(f"v_mul_f32 v{Oreg(db, q) + e}, v{A.vX + 2 + q}, v{Oreg(db, q) + e}") for db in range(16) for q in range(2) for e in range(4)]
    return ins
def slow_sub(b, other=True):
    ins = [I(f"L_slow{b}{'' if other else 'n'}:"), I("s_nop 7"), I("s_nop 3")]
    ins += rowmax(b)
    ins += [I(f"v_max_f32 v{A.vX + q}, 0, v{A.vX + q}") for q in range(2)]
    ins += sub_S(b) + (sub_S(1 - b) if other else [])
    ins += rescale_state()
    ins += softmax_half(b, 0) + softmax_half(b, 1)
    ins += [I("s_nop 3"), I(f"s_setpc_b64 s[{A.sRET}:{A.sRET+1}]")]
    return ins

def fill_valu(g, ins, lo, hi):
    tot = sum(max(i.slots()) for i in link(ins))
    k = lo; acc = 0
    for i in ins:
        tgt = lo + int(acc * (hi - lo) / max(tot, 1))
        k = g.fit(g.vm_slot(max(k, tgt), i, 4), i)
        acc += max(i.slots())
    return k

def mask_regs(wa):
    out = f"""
    s_cmp_eq_u32 s{A.sWAVE}, {wa}
    s_cselect_b64 s[64:65], -1, 0
    s_cmp_eq_u32 s{A.sWAVE}, {wa + 1}
    s_cselect_b64 s[84:85], -1, 0
    s_or_b64 s[66:67], s[64:65], s[84:85]
    """
    for e in range(4):
        t = A.sTRI[e]
        out += f"""s_and_b64 s[{68+2*e}:{69+2*e}], s[{t}:{t+1}], s[64:65]
        s_and_b64 s[{76+2*e}:{77+2*e}], s[{t}:{t+1}], s[84:85]
        s_or_b64 s[{76+2*e}:{77+2*e}], s[{76+2*e}:{77+2*e}], s[64:65]
        """
    return L(out)
def mask_blk(b, kb, qb, inplace=False):
    kind = {(0, 0): 1, (1, 0): 2, (1, 1): 1, (2, 0): 3, (2, 1): 2, (3, 0): 4, (3, 1): 3}.get((kb, qb))
    if kind is None: return []
    out = []
    for e in range(4):
        m = {1: 68 + 2 * e, 2: 64, 3: 76 + 2 * e, 4: 66}[kind]
        d = Sreg(b, kb, qb) + e
        out.append(I(f"v_cndmask_b32 v{d}, v{d if inplace else A.vNM + 4 * qb}, v{A.vNEG}, s[{m}:{m+1}]"))
    return out

def put_groups(g, groups, lo, hi):
    k = lo
    link([i for grp in groups for i in grp])
    for n, grp in enumerate(groups):
        k = max(k, lo + n * (hi - lo) // len(groups))
        for i in grp:
            if i.slots()[0] == 0:
                q = k + 1
                while q < g.n - 1 and (g.sc[q] or q in getattr(g, "nos", ())): q += 1
                if q < g.n - 1: g.put_s(q, i); k = q
                else: k = g.n - 1; g.put(k, i)
            else: k = g.fit(g.vm_slot(k, i, 5), i)
    return k
def win_qk(b, slowlabel, retlabel, extra=(), masked=False, cmode="nm", breg=None, spare=(), groups=(), head=(), pre_done=False, ghi=58, scal=()):
    g = Gaps(qk_mfmas(1 - b, "mask" if masked else cmode, breg))
    weave_reads(g, KSLOT[1 - b], VSLOT[b], [("T", VSLOT[b])])
    for e in extra: g.fit(0, e)
    hk = -1
    for e in head:
        if e.kind != 'label': hk += 1
        g.put_s(hk, e)
    if masked:
        if not pre_done: g.pre = mask_blk(1 - b, 0, 0)
        for blk in range(2, 8):
            k = max(0, 8 * blk - 16)
            for i in mask_blk(1 - b, blk >> 1, blk & 1):
                while g.used(k) != 1 and k < 8 * blk - 5: k += 1
                k = g.fit(k, i)
            assert k <= 8 * blk - 2, (blk, k)
    weave_dma(g, VSLOT[1 - b], A.sV, adv_v(), lo=hk + 2, hi=64 if (len(groups) >= 4 and X['wide']) else 45)
    k = 2
    for i in scal: k = g.fit_s(k, i) + 1
    if groups: put_groups(g, groups, 2, ghi)
    k = sched_softmax(g, b, 1, 0, 56) if X['ls'] else fill_valu(g, softmax_half(b, 1), 0, 50 if masked or groups else 53)
    c = check(b, slowlabel)
    if k <= 59:
        k = g.fit(max(k + 1, 58), c[0], lim=61); k = g.fit(k + 1, c[1], lim=62)
        g.put_s(63, c[2])
    else:
        for i in c: g.put(63, i)
    spare = list(spare)
    for k in range(63):
        while spare and g.used(k) < 2: g.put(k, spare.pop(0))
    return g.flat() + [I(retlabel + ":")], spare
def win_pv(b, tail=(), chk=None, post=(), valu=None, spare=(), lo=0, groups=(), tags=(), scal=(), ghi=32, glo=2, nowide=False):
    g = Gaps(pv_mfmas(b))
    weave_reads(g, VSLOT[b], KSLOT[b], [("T", KSLOT[b])] + list(tags))
    wide = len(groups) >= 4 and X["wide"] and not nowide
    k = weave_dma(g, KSLOT[1 - b], A.sK, adv_k(), hi=58 if wide else 38)
    if wide:
        glo = 4; g.nos = set(range(k - 9, k))
    if groups: put_groups(g, groups, glo, ghi)
    if scal:
        import kvq
        g.lock = set(range(k - 9, k))
        assert not kvq.seq_fit(g, list(scal), 1)[1]
    assert k <= (61 if wide else 53), k
    if chk:
        g.put(50, chk[0]); g.put_s(53, chk[1]); g.put_s(53, chk[2])
        ck = 53
        for i in chk[3:]:
            if i.kind != 'label': ck += 1
            g.put_s(ck, i)
        assert ck < 60
    k = 49
    for i in post: k = g.fit(k, i)
    if valu is None and X['ls']: sched_softmax(g, 1 - b, 0, 0, 59, add_l(b))
    elif valu is None: fill_valu(g, add_l(b) + softmax_half(1 - b, 0), 0, 60)
    else: valu(g)
    k = lo; left = []
    for i in link(list(spare)):
        if left: left.append(i); continue
        if i.slots()[0] == 0:
            k += 1
            while k < 60 and g.sc[k]: k += 1
            if k >= 60: left.append(i)
            else: g.put_s(k, i)
            continue
        while k < 63 and g.used(k) + max(i.slots()) > 2: k += 1
        if k >= 63: left.append(i)
        else: g.put(k, i)
    for n, ins in enumerate(tail):
        g.put_s(64 - len(tail) + n - (1 if n < len(tail) - 1 else 0), ins)
    assert not (tail and left)
    return g.flat() + left

def zero_O_mfma(ins, z):
    out = []; step = max(len(ins) // 9, 1); n = 0
    for k, i in enumerate(ins):
        out.append(i)
        if k % step == step - 1 and n < 8:
            out.append(I(f"v_mfma_f32_32x32x16_bf16 v[{A.vO + 16*n}:{A.vO + 16*n + 15}], v[{z}:{z+3}], v[{z}:{z+3}], 0")); n += 1
    assert n == 8
    return out
def q_from_lds(dst, flip=0):
    pre = L(f"""
    s_lshr_b32 s64, s{A.sWAVE}, 1
    s_add_u32 s64, s64, {flip}
    s_lshl_b32 s64, s64, {17 - flip}
    s_and_b32 s65, s{A.sWAVE}, 1
    s_lshl_b32 s65, s65, 14
    s_add_u32 s64, s64, s65
    v_add_u32 v{A.vX}, s64, v{A.vL16}
    """)
    return pre + [I(f"ds_read_b128 a[{dst + 4*n}:{dst + 4*n + 3}], v{A.vX} offset:{n * 1024}") for n in range(16)]
def zero_O(): return [I(f"v_mov_b32 v{A.vO + r}, 0") for r in range(128)]
def load_Q():
    out = []
    for j in range(16):
        if j % 4 == 0: out.append(I(f"s_add_u32 s{A.sT1}, s{A.sQ}, {j * 1024}"))
        out.append(I(f"buffer_load_dwordx4 a[{A.aQ + 4*j}:{A.aQ + 4*j + 3}], v{A.vL16}, s[{A.S_WS}:{A.S_WS+3}], s{A.sT1} offen offset:{(j & 3) * 1024} sc1"))
    return out
def cvt_ctx(ks, qb):
    a, c = Oreg(2 * ks, qb), Oreg(2 * ks + 1, qb)
    return L(f"""v_cvt_pk_bf16_f32 v{a}, v{a}, v{a+1}
    v_cvt_pk_bf16_f32 v{a+1}, v{a+2}, v{a+3}
    v_cvt_pk_bf16_f32 v{a+2}, v{c}, v{c+1}
    v_cvt_pk_bf16_f32 v{a+3}, v{c+2}, v{c+3}""")

def mix(valu, mem, lo=0, hi=None):
    hi = len(valu) if hi is None else hi
    link(valu); link(mem)
    groups = []; cur = []
    for i in mem:
        cur.append(i)
        if i.slots()[0]: groups.append(cur); cur = []
    tail = cur
    out = []; n = 0
    for k, i in enumerate(valu):
        while n < len(groups) and k >= lo + n * (hi - lo) // len(groups):
            g_ = groups[n]; n += 1
            if len(g_) > 1 and out and out[-1].kind in ("valu", "trans"):
                last = out.pop(); out += g_[:-1] + [last, g_[-1]]
            else: out += g_
            if n == len(groups): out += tail
        out.append(i)
    assert n == len(groups)
    return out
```

```python
from common import *
from sched import *
import att
from att import A, Sreg, Oreg, Preg, Qreg, Freg, RPAT, X, xlane, add_l, cvt_ctx, softmax_groups, softmax_half, rowmax, sub_S, rescale_state, mix, zero_O_mfma
from kv5 import dep, tr_addr
KSLOT, VSLOT = att.KSLOT, att.VSLOT
KSLOT.update({0: 3, 1: 2}); VSLOT.update({0: 0, 1: 1})
WSR = f"s[{A.S_WS}:{A.S_WS+3}]"
S_WO = 12
sWO = 38
vWO = 0
vOA = (18, 22, 40)
aSEL = 244
def adv_k():
    return L(f"""
    s_add_u32 s{A.sK}, s{A.sK}, 32768
    s_sub_u32 s{A.sKcnt}, s{A.sKcnt}, 1
    s_cselect_b32 s{A.sK}, s{A.sKn1}, s{A.sK}
    """)
att.adv_k = adv_k
adv_v = att.adv_v
def dma_flat(slot, soff, lo=0, hi=8):
    out = []
    for j, (pre, d) in enumerate(att.dma_tile(slot, soff)):
        if not lo <= j < hi: continue
        if j == lo and not pre: pre = I(f"s_add_u32 m0, s{A.sM0}, {slot * 32768 + (j >> 2) * 4096}")
        if pre: out.append(pre)
        out.append(d)
    return out
def rd_batch(slot, batch, v4=None):
    if slot < 4: return att.rd_batch(slot, batch)
    return [I(f"ds_read_b128 a[{Freg(batch, f)}:{Freg(batch, f)+3}], v{v4} offset:{batch * 8192 + f * 1024}", lds=(131072, 163840, "r")) for f in range(8)]
RELAY = False
def rd_wo(slot, mb):
    if RELAY: return rd_batch(slot, mb, vOA[2])
    return [I(f"ds_read_b64_tr_b16 a[{Freg(mb, ks) + 2*j}:{Freg(mb, ks) + 2*j + 1}], v{vOA[slot >> 1] + mb} offset:{(slot & 1) * 32768 + ks * 4096 + j * 2048}", lds=(slot * 32768, slot * 32768 + 32768, "r")) for ks in range(8) for j in range(2)]
def wo_dma(slot, lo=0, hi=8):
    if RELAY: return dma_flat(slot, sWO, lo, hi) + (L(f"s_add_u32 s{sWO}, s{sWO}, 32768") if hi == 8 else [])
    out = []
    for i in range(lo, hi):
        if i % 4 == 0 or i == lo: out.append(I(f"s_add_u32 m0, s{A.sM0}, {slot * 32768 + (i >> 2) * 4096}"))
        out.append(I(f"s_add_u32 s85, s{sWO}, {i * 7168 - (i & 3) * 1024}"))
        out.append(I(f"buffer_load_dwordx4 v{vWO}, s[{S_WO}:{S_WO+3}], s85 offen offset:{(i & 3) * 1024} lds", tag=("T", slot)))
    if hi == 8: out.append(I(f"s_add_u32 s{sWO}, s{sWO}, 128"))
    return out
def wo_setup(t, skip=0):
    if RELAY: return L(f"s_lshl_b32 s{sWO}, s41, 18\ns_add_u32 s{sWO}, s{sWO}, {WS_WO + skip * 32768}")
    return L(f"""
    v_lshrrev_b32 v{t}, 7, v{A.vL16}
    v_mul_u32_u24 v{t}, 896, v{t}
    v_lshrrev_b32 v{t+1}, 8, v{A.vL16}
    v_lshlrev_b32 v{t+1}, 5, v{t+1}
    v_xor_b32 v{t+1}, v{t+1}, v{A.vL16}
    v_and_b32 v{t+1}, 0x70, v{t+1}
    v_add_u32 v{vWO}, v{t}, v{t+1}
    s_mul_i32 s{sWO}, s{A.sWAVE}, {64 * 896}
    """)
def oa_setup(t):
    if RELAY: return []
    return L(f"v_lshrrev_b32 v{t+2}, 4, v{A.vL16}") + tr_addr(vOA[0], t + 2, t) + [I(f"v_add_u32 v{vOA[1] + x}, 0x10000, v{vOA[0] + x}") for x in range(4)]

RP8 = [0, 0, 3, 3, 6, 6, 9, 9]
RP16 = [0, 0, 1, 1, 3, 3, 4, 4, 6, 6, 7, 7, 9, 9, 10, 10]
def put_batch(g, reads, base, per=16, pat=None):
    pat = pat or (RP8 if len(reads) == 8 else RP16)
    for k, r in zip(pat, reads): g.put(base + k, r)
def need_batch(b, lo=0, n=32): return NEED(R("a", Freg(b, 0) + lo, n))
def tile_reads(g, rdf, nxt, tags, base=0, per=16, pat=None, npat=None):
    for b in range(1, 4):
        put_batch(g, rdf(b), base + (b - 1) * per, per, pat)
        if b < 3: g.put_s(base + b * per - 1, need_batch(b))
    if tags is None: g.put_s(base + 3 * per - 1, need_batch(3))
    else:
        g.put_s(base + 3 * per - 2, WAITV(tags, lgkm0=True))
        g.put_s(base + 3 * per - 1, I("s_barrier"))
    if nxt:
        put_batch(g, nxt, base + 3 * per, per, npat or pat)
        g.put_s(base + 4 * per - 2, need_batch(0))

QKS = PVS = False
def qk_mfmas(b, cf, order=(0, 1), breg=None, asc0=False, alt=False):
    ms = []
    for kb in range(4):
        for m, qb in enumerate(order[::-1] if alt and QKS and kb & 1 else order):
            d = R("v", Sreg(b, kb, qb), 4)
            for n, ks in enumerate(range(8) if m == 0 or (asc0 and kb == 0) else range(7, -1, -1)):
                bq = breg(qb, ks) if breg else R("a", Qreg(qb, ks), 4)
                ms.append(mfma(d, R("a", Freg(kb, ks), 4), bq, d if n else cf(kb, qb)))
    return ms
C0 = lambda kb, qb: "0"
NMq = lambda qb: R("v", A.vNM + 4 * qb, 4)
def pv_mfmas(b, zero=False, alt=True):
    ms = []
    for db in range(16):
        for m, qb in enumerate((1, 0) if alt and PVS and db & 1 else (0, 1)):
            d = R("v", Oreg(db, qb), 4)
            for n, kp in enumerate((0, 1) if m == 0 else (1, 0)):
                ms.append(mfma(d, R("a", Freg(db >> 2, (db & 3) * 2 + kp), 4), R("v", Preg(b, kp, qb), 4), "0" if zero and n == 0 else d))
    return ms
def Pb(kp): return Preg(1, 0, 1 - kp)
def comb_mfmas():
    return [mfma(R("v", Oreg(db, qb), 4), R("a", aSEL + 2 - 2 * (db & 1), 4), R("a", A.aX + (qb * 8 + (db >> 1)) * 4, 4), R("v", Oreg(db, qb), 4))
            for kq in range(8) for qb in (1, 0) for db in (2 * kq, 2 * kq + 1)]
def pvb_mfmas(comb=False):
    ms = []
    for db in range(16):
        d = R("v", Oreg(db, 1), 4)
        for kp in range(2): ms.append(mfma(d, R("a", Freg(db >> 2, (db & 3) * 2 + kp), 4), R("v", Pb(kp), 4), d))
        if comb:
            for qb in (1, 0):
                d = R("v", Oreg(db, qb), 4)
                ms.append(mfma(d, R("a", aSEL + 2 - 2 * (db & 1), 4), R("a", A.aX + (qb * 8 + (db >> 1)) * 4, 4), d))
    return ms
def groups_b():
    out = []; sm = A.vSUM + 3
    for n in range(8):
        kb, pr = n >> 1, n & 1
        s = Sreg(1, kb, 1) + 2 * pr
        t0, t1 = A.vT + (n % 4) * 2, A.vT + (n % 4) * 2 + 1
        ex = [I(f"v_exp_f32 v{t0}, v{s}"), I(f"v_exp_f32 v{t1}, v{s+1}")]
        post = [I(f"v_add_f32 v{sm}, v{t0}, v{t1}")] if n == 0 else [I(f"v_add_f32 v{sm}, v{t0}, v{sm}"), I(f"v_add_f32 v{sm}, v{t1}, v{sm}")]
        post.insert(1, I(f"v_cvt_pk_bf16_f32 v{Pb(kb >> 1) + 2 * (kb & 1) + pr}, v{t0}, v{t1}"))
        out.append((ex, post))
    return out
def groups_first(b, order=(0, 1), base=0):
    out = []; n = 0; early = []
    for kk in range(2):
        for m, qb in enumerate(order):
            for pr in range(2):
                s = Sreg(b, kk, qb) + 2 * pr
                t0, t1 = A.vT + (n % 4) * 2, A.vT + (n % 4) * 2 + 1
                sm = A.vSUM + 2 * b + qb
                ex = [I(f"v_exp_f32 v{t0}, v{s}"), I(f"v_exp_f32 v{t1}, v{s+1}")]
                post = [I(f"v_add_f32 v{sm}, v{t0}, v{t1}")] if kk == 0 and pr == 0 else [I(f"v_add_f32 v{sm}, v{t0}, v{sm}"), I(f"v_add_f32 v{sm}, v{t1}, v{sm}")]
                post.insert(1, I(f"v_cvt_pk_bf16_f32 v{Preg(b, 0, qb) + 2 * kk + pr}, v{t0}, v{t1}"))
                out.append((ex, post)); early.append(base + 16 * kk + 8 * m + 7 + 5); n += 1
    return out, early
def flat_groups(grp):
    out = []; prev = []
    for ex, post in grp:
        out.append(ex[0]); out += prev[:2]; out.append(ex[1]); out += prev[2:]
        prev = post
    return out + prev
def sched_sm(g, grp, lo, hi, pre=(), early=None):
    link(list(pre) + [i for e, p in grp for i in e + p])
    ex = [(n, i) for n, (e, p) in enumerate(grp) for i in e]
    po = [(-1, i) for i in pre] + [(n, i) for n, (e, p) in enumerate(grp) for i in p]
    done_e = {}; last = lo; ne = 0; tot = len(ex)
    for k in range(lo, g.n):
        empty_left = sum(1 for q in range(k, hi) if g.used(q) == 0)
        if ex and g.used(k) == 0 and not (early and early[ex[0][0]] > k):
            n = ex[0][0]
            free = not any(m <= n - 4 for m, _ in po)
            due = k >= lo + ne * (hi - lo) // tot or empty_left <= len(ex)
            if free and due:
                g.put(k, ex.pop(0)[1]); done_e[n] = (done_e.get(n, (0, 0))[0] + 1, k); ne += 1; last = k
                continue
        keep = ex and g.used(k) == 0 and empty_left <= len(ex) and not any(m <= ex[0][0] - 4 for m, _ in po) and not (early and early[ex[0][0]] > k)
        while po and g.fits(k, po[0][1]) and not keep:
            n = po[0][0]
            if n >= 0 and not (done_e.get(n, (0, 0))[0] == 2 and done_e[n][1] < k): break
            g.put(k, po.pop(0)[1]); last = k
    if ex or po:
        last = g.n - 1
        for n in range(-1, len(grp) + 1):
            for m, i in ex:
                if m == n: g.put(last, i)
            for m, i in po:
                if m == n - 1: g.put(last, i)
    return last
def put_tail(g, k, ins):
    if k <= g.n - 2 - len(ins):
        k = max(k + 1, g.n - 3 - len(ins))
        for i in ins[:-1]: k = g.fit(k, i, lim=g.n - 2) + 1
        g.put_s(g.n - 1, ins[-1])
    else:
        for i in ins: g.put(g.n - 1, i)
def check(b, label): return att.check(b, label)
def check_first(label):
    return L(f"""v_max_f32 v{A.vX}, v{A.vSUM}, v{A.vSUM + 1}
    v_min_f32 v{A.vX + 1}, v{A.vSUM}, v{A.vSUM + 1}
    v_cmp_lt_f32 vcc, s{A.sTHR}, v{A.vX}
    v_cmp_gt_f32 s[64:65], s{A.sLOW}, v{A.vX + 1}
    s_or_b64 vcc, vcc, s[64:65]
    s_cbranch_vccnz {label}""")
A.sLOW = 24
def check_b(label):
    return L(f"v_cmp_lt_f32 vcc, s{A.sTHR}, v{A.vSUM + 3}\ns_cbranch_vccnz {label}")
def presets(second, zero=False):
    out = []
    b, qb = (1, 1) if second else (0, 0)
    for kb in range(4):
        m = 66 + 8 * (kb & 1)
        ins = L(f"""s_cmp_{'gt' if second else 'lt'}_u32 s{A.sWAVE}, {3 - kb if second else kb}
        s_cselect_b64 s[82:83], -1, 0
        s_cmp_eq_u32 s{A.sWAVE}, {3 - kb if second else kb}
        """ + "\n".join(f"s_cselect_b64 s[{m+2*e}:{m+2*e+1}], s[{A.sTRI[e]}:{A.sTRI[e]+1}], s[82:83]" for e in range(4)))
        ins += [I(f"v_cndmask_b32 v{Sreg(b, kb, qb) + e}, {'0' if zero else 'v%d' % (A.vNM + 4 * qb)}, v{A.vNEG}, s[{m+2*e}:{m+2*e+1}]") for e in range(4)]
        out.append(ins)
    return out

RET = lambda: [I("s_nop 3"), I(f"s_setpc_b64 s[{A.sRET}:{A.sRET+1}]")]
def slow_first(name, other):
    ins = [I(name + ":"), I("s_nop 7"), I("s_nop 3")] + rowmax(0) + sub_S(0) + (sub_S(1) if other else [])
    ins += [I(f"v_sub_f32 v{A.vNM + 4*q + e}, v{A.vNM + 4*q + e}, v{A.vX + q}") for q in range(2) for e in range(4)]
    return ins + softmax_half(0, 0) + (softmax_half(0, 1) if other else []) + RET()
def rescale_b():
    return [I(f"v_sub_f32 v{Sreg(1, kb, 1) + e}, v{Sreg(1, kb, 1) + e}, v{A.vX + 1}") for kb in range(4) for e in range(4)] + rescale_state() + flat_groups(groups_b())
def slow_b():
    vals = [Sreg(1, kb, 1) + e for kb in range(4) for e in range(4)]
    m = A.vX + 1
    ins = [I("L_slowb:"), I("s_nop 7"), I("s_nop 3"), I(f"v_max3_f32 v{m}, v{vals[0]}, v{vals[1]}, v{vals[2]}")]
    ins += [I(f"v_max3_f32 v{m}, v{vals[x]}, v{vals[x+1]}, v{m}") for x in range(3, 15, 2)] + [I(f"v_max_f32 v{m}, v{vals[15]}, v{m}")]
    ins += xlane("v_max_f32", m, A.vX + 3) + L(f"v_ceil_f32 v{m}, v{m}\nv_max_f32 v{m}, 0, v{m}\nv_mov_b32 v{A.vX}, 0")
    return ins + rescale_b() + RET()
def comb_slow(late=False):
    ins = L(f"""L_comb:
    s_waitcnt vmcnt(0)
    s_nop 7
    v_sub_f32 v{A.vX}, v{A.vNM}, v{A.vX+4}
    v_sub_f32 v{A.vX+1}, v{A.vNM+4}, v{A.vX+5}
    v_max_f32 v{A.vX}, 0, v{A.vX}
    v_max_f32 v{A.vX+1}, 0, v{A.vX+1}
    """) + (rescale_state() if late else rescale_b()) + L(f"""
    v_sub_f32 v{A.vX}, v{A.vNM}, v{A.vX+4}
    v_sub_f32 v{A.vX+1}, v{A.vNM+4}, v{A.vX+5}
    v_exp_f32 v{A.vX}, v{A.vX}
    v_exp_f32 v{A.vX+1}, v{A.vX+1}
    s_nop 0
    v_mul_f32 v{A.vX+6}, v{A.vX}, v{A.vX+6}
    v_mul_f32 v{A.vX+7}, v{A.vX+1}, v{A.vX+7}
    """)
    for qb in range(2):
        for n in range(32):
            a = A.aX + qb * 32 + n; t = Sreg(0, 0, 0) + 2 * (n % 8)
            ins += L(f"""v_accvgpr_read_b32 v{t}, a{a}
            v_and_b32 v{t+1}, 0xffff0000, v{t}
            v_lshlrev_b32 v{t}, 16, v{t}
            v_mul_f32 v{t}, v{A.vX + qb}, v{t}
            v_mul_f32 v{t+1}, v{A.vX + qb}, v{t+1}
            v_cvt_pk_bf16_f32 v{t}, v{t}, v{t+1}
            v_accvgpr_write_b32 a{a}, v{t}""")
    return ins + RET()
def lfin(): return xlane("v_add_f32", A.vLS, A.vX) + xlane("v_add_f32", A.vLS + 1, A.vX + 1) + L(f"v_rcp_f32 v{A.vRL}, v{A.vLS}\nv_rcp_f32 v{A.vRL+1}, v{A.vLS+1}")
def lfin2():
    a, c = xlane("v_add_f32", A.vLS, A.vX), xlane("v_add_f32", A.vLS + 1, A.vX + 1)
    out = []
    for x, y in zip(a, c): out += [x, y]
    return out + L(f"v_rcp_f32 v{A.vRL}, v{A.vLS}\nv_rcp_f32 v{A.vRL+1}, v{A.vLS+1}")
def selm(t):
    return L(f"""
    v_mov_b32 v{t}, 0x3f80
    v_lshrrev_b32 v{t+1}, 8, v{A.vL16}
    v_bfe_u32 v{t+2}, v{A.vL16}, 6, 2
    v_and_b32 v{t+3}, 16, v{A.vL16}
    v_lshlrev_b32 v{t+3}, v{t+3}, v{t}
    v_cmp_eq_u32 vcc, v{t+1}, v{t+2}
    v_and_b32 v{t+4}, 32, v{A.vL16}
    v_accvgpr_write_b32 a{aSEL}, 0
    v_cndmask_b32 v{t+3}, 0, v{t+3}, vcc
    v_cmp_eq_u32 vcc, 0, v{t+4}
    v_accvgpr_write_b32 a{aSEL+1}, 0
    v_accvgpr_write_b32 a{aSEL+4}, 0
    v_cndmask_b32 v{t+1}, 0, v{t+3}, vcc
    v_sub_u32 v{t+2}, v{t+3}, v{t+1}
    v_accvgpr_write_b32 a{aSEL+5}, 0
    v_accvgpr_write_b32 a{aSEL+2}, v{t+1}
    v_accvgpr_write_b32 a{aSEL+3}, v{t+2}
    """)
```

```python
from common import *
from sched import *
import kvq
from kvq import K, kacc, rr, cfrag, rd_c, unit, weave_units, spread2, pack, WSLOT

def dep(cons, *prods):
    for p in prods:
        for r in p.writes:
            if r in cons.reads:
                cons.extra.setdefault("raw", {})[r] = p; cons.extra.setdefault("pin", set()).add(r)

def wfrag(buf, x, ks): return 32 + (buf ^ 1) * 64 + (x * 2 + ks) * 4
NTW = 'nt'
NC, CF, NW = 0, 'nt', 0
def unit_w(u):
    o = unit(K.sM0W, WSLOT[u & 3], K.vWD, K.S_W, K.sWOFF, 128 if u % 2 == 0 else 64 * 8192 - 128, ("W", u & 3))
    if u < NW:
        for i in o: i.text = i.text.replace(" nt", "")
    return o
def unit_c(u): return unit(K.sM0C, (u & 3) * 16384, K.vCD, K.S_C, K.sCOFF, 512 * 2048 if u % 2 == 0 else -(512 * 2048 - 128), ("C", u & 3), CF if u < NC else '')
QUART = [0, 2, 1, 3]
def rd_w(buf, slot, x, ks, j):
    r = wfrag(buf, x, ks) + 2 * j
    return I(f"ds_read_b64_tr_b16 a[{r}:{r+1}], v{K.vWR + (x & 3)} offset:{WSLOT[slot] + (32 * ks + 4 * j) * 256}")
def rd_w_unit(buf, slot, hx):
    return [rd_w(buf, slot, x, ks, j) for x in range(4 * hx, 4 * hx + 4) for ks in range(2) for j in range(2)]
XSN = False
def row_mfmas(y, wbuf, cbuf, vtype, first, flip=True):
    ms = []
    for m, x in enumerate(range(7, -1, -1) if XSN and y & 1 and flip else range(8)):
        for n, ks in enumerate((0, 1) if m % 2 == 0 else (1, 0)):
            w = R("a", wfrag(wbuf, x, ks), 4); c = R("a", cfrag(cbuf, ks), 4)
            d = rr(kacc(y, x))
            cin = "0" if (first and n == 0) else d
            ms.append(mfma(d, c, w, cin) if vtype else mfma(d, w, c, cin))
    return ms
def kv_dma(t):
    out = []
    for u in (2 * t, 2 * t + 1):
        l = []
        if u + 3 < 32: l.append(unit_c(u + 3))
        if u + 5 < 32: l.append(unit_w(u + 5))
        out.append(l)
    return out
DR = [3, 44, 51, 108, 0]; T0 = 0
def kv_tile(t, vtype, dma, endtags=()):
    first = t == 0
    ms = []
    for y in range(8): ms += row_mfmas(y, t & 1, y & 1, vtype, first, 0 < t < 15)
    g = Gaps(ms)
    for h in (1, 2):
        u = 2 * t + h
        k0 = (4 * h - 1) * 16 - 1
        tags = ([("C", u & 3)] if u < 32 else []) + ([("W", (u + 2) & 3)] if u + 2 < 32 else []) + (list(endtags) if h == 2 else [])
        g.put_s(k0 - 1, WAITV(tags, lgkm0=True))
        g.put_s(k0, I("s_barrier"))
    for y in range(8):
        ny = y + 1
        u = 2 * t + (ny >> 2)
        if u < 32:
            for ks in range(2): g.put(y * 16, rd_c(ny & 1, u & 3, ny & 3, ks))
            g.put_s(y * 16 + 13, NEED(R("a", cfrag(ny & 1, 0), 8)))
    if first and T0:
        for x in range(1, 8, 2): g.put_s(2 * x - 1, NEED(R("a", wfrag(0, x, 0), 16 if x < 7 else 8)))
        g.sc[46][0].tag = [("C", 1)]
        kb = T0
        g.put_s(kb - 1, WAITV([("W", 2), ("W", 3)], lgkm0=True)); g.put_s(kb, I("s_barrier"))
        spread2(g, rd_w_unit(1, 2, 0) + rd_w_unit(1, 3, 1), kb + 1, 106)
        (c3, w5), (c4, w6) = dma
        parts = [[unit_w(3), unit_c(2)], [unit_w(4), c3], [w5, c4], [w6]]
        link([i for p in parts for u_ in p for i in u_])
        weave_units(g, parts[0], 1, 30); weave_units(g, parts[1], 49, kb - 3); weave_units(g, parts[2], kb + 2, 108); weave_units(g, parts[3], 113, 126)
        return g
    if first:
        for x in range(1, 8, 2): g.put_s(2 * x - 1, NEED(R("a", wfrag(0, x, 0), 16 if x < 7 else 8)))
        g.put_s(14, WAITV([("W", 2)], lgkm0=True)); g.put_s(15, I("s_barrier"))
        spread2(g, rd_w_unit(1, 2, 0), 17, 42)
        spread2(g, rd_w_unit(1, 3, 1), 50, 106)
        a_, b_, c_ = [unit_w(3)], [unit_c(2), unit_w(4)], dma[0] + dma[1]
        link([i for u_ in a_ + b_ + c_ for i in u_])
        weave_units(g, a_, 1, 14); weave_units(g, b_, 17, 46); weave_units(g, c_, 49, 110)
        return g
    if t < 15:
        spread2(g, rd_w_unit((t + 1) & 1, (2 * t + 2) & 3, 0), 1, 42)
        spread2(g, rd_w_unit((t + 1) & 1, (2 * t + 3) & 3, 1), 50, 106)
    weave_units(g, dma[0], *DR[:2])
    weave_units(g, dma[1], DR[2], DR[3] + (DR[4] if len(dma[1]) > 2 else 0))
    return g
def kv_pairs(vtype):
    if not vtype:
        return [((y, 2 * xp), (y, 2 * xp + 1), QUART[y >> 1] * 262144 + (y & 1) * 8192 + xp * 1024) for y in range(8) for xp in range(4)]
    return [((2 * yp, x), (2 * yp + 1, x), QUART[yp] * 262144 + x * 2048) for yp in range(4) for x in range(8)]

class QR:
    vQD = 8
    vXD, vXR = 22, 20
    vRB = {2: 12, 0: 16, 1: 20}
    sW1K, sOFF, sXA, sXB = 4, 25, 29, 30
HALF = dict(w0=0, w1=16384, w2=32768, w3=49152, c0=65536, c1=81920, c2=98304, c3=114688, A=131072, B=147456)
def _locs(spec): return [HALF[p[:-2]] + 4096 * n for p in spec.split() for n in range(int(p[-2]), int(p[-1]))]
_L = [_locs("w004 w104 A04 B02"), _locs("w304 c204 c304 w202"), _locs("c004 c104 B24 A04"), _locs("w004 w104 w224 w304")]
ULOC = [l[7 * h:7 * h + 7] for l in _L for h in range(2)]
XLOC = [HALF[h] for h in "A B A B w2 c0 c1".split()]
def xreg(qb, ks): return (176 + (ks * 2 + qb) * 4) if ks < 8 else (96 + ((ks - 8) * 2 + qb) * 4)
def x_setup():
    return L(f"""
    v_lshrrev_b32 v28, 4, v0
    v_and_b32 v29, 7, v0
    v_xor_b32 v28, v28, v29
    v_lshlrev_b32 v28, 4, v28
    v_lshrrev_b32 v29, 3, v0
    v_mul_u32_u24 v29, 896, v29
    v_add_u32 v{QR.vXD}, v28, v29
    v_xor_b32 v28, 64, v28
    s_mul_i32 s64, s{K.sWAVE}, {16 * 896}
    s_sub_u32 s65, {7 * 16 * 896 - 2048}, s64
    s_add_u32 s{QR.sXB}, s{K.sXOFF}, s65
    s_add_u32 s{QR.sXA}, s{K.sXOFF}, s64
    v_add_u32 v29, {7168 - 1024}, v29
    v_add_u32 v{QR.vXD + 1}, v28, v29
    s_and_b32 s64, s{K.sWAVE}, 1
    s_lshl_b32 s64, s64, 12
    s_add_u32 s64, s64, 65536
    v_add_u32 v{QR.vXR}, s64, v{K.vCR}
    v_add_u32 v{QR.vXR + 1}, s64, v{K.vCR + 1}
    """)
def x_dma(kt):
    return ([I(f"s_add_u32 m0, s{K.sM0W}, {XLOC[kt]}")] +
            [I(f"buffer_load_dwordx4 v{QR.vXD + (j & 1)}, s[{K.S_X}:{K.S_X+3}], s{QR.sXA if j < 2 else QR.sXB} offen offset:{1024 * j} lds", tag=("X", kt), lds=(XLOC[kt], XLOC[kt] + 16384, "X!")) for j in range(4)] +
            L(f"s_add_u32 s{QR.sXA}, s{QR.sXA}, 128\ns_add_u32 s{QR.sXB}, s{QR.sXB}, 128"))
def x_read(kt, xl):
    base = 131072 if kt < 4 else 32768
    out = [WAITV([("X", kt)])]
    for k2 in range(2):
        for qb in range(2):
            r = xreg(qb, 2 * kt + k2)
            out.append(I(f"ds_read_b128 a[{r}:{r+3}], v{QR.vXR + k2} offset:{XLOC[kt] - base + qb * 2048}", lds=(XLOC[kt], XLOC[kt] + 16384, "X!"))); xl[(qb, 2 * kt + k2)] = out[-1]
    if kt == 3: out += [I(f"v_subrev_u32 v{QR.vXR + k2}, {131072 - 32768}, v{QR.vXR + k2}") for k2 in range(2)]
    return out
def q_setup():
    return L(f"""
    s_lshl_b32 s{QR.sW1K}, s{K.sWAVE}, 10
    v_bfe_u32 v28, v0, 3, 2
    v_lshrrev_b32 v29, 5, v0
    v_lshl_add_u32 v28, v29, 3, v28
    v_lshlrev_b32 v28, 13, v28
    v_lshrrev_b32 v29, 4, v0
    v_lshlrev_b32 v29, 1, v29
    v_and_b32 v30, 7, v0
    v_xor_b32 v29, v29, v30
    v_lshl_add_u32 v28, v29, 4, v28
    s_and_b32 s64, s{K.sWAVE}, 1
    s_lshl_b32 s64, s64, 17
    s_lshr_b32 s65, s{K.sWAVE}, 1
    s_lshl_b32 s65, s65, 15
    s_add_u32 s64, s64, s65
    v_add_u32 v{QR.vQD}, s64, v28
    """)
def tr_addr(dst, lane, t):
    return L(f"""
    v_lshrrev_b32 v{t}, 2, v{lane}
    v_lshlrev_b32 v{t}, 7, v{t}
    v_and_b32 v{t+1}, 3, v{lane}
    v_lshl_add_u32 v{t}, v{t+1}, 3, v{t}
    v_bfe_u32 v{t+1}, v{lane}, 3, 2
    v_lshl_add_u32 v{dst}, v{t+1}, 5, v{t}
    v_xor_b32 v{dst+1}, 32, v{dst}
    v_xor_b32 v{dst+2}, 64, v{dst}
    v_xor_b32 v{dst+3}, 0x60, v{dst}
    """)
def q_bank(b): return [I(f"v_add_u32 v{QR.vRB[b] + x}, {hex(b << 16)}, v{QR.vRB[0] + x}") for x in range(4)]
def q_setup2(): return tr_addr(QR.vRB[0], 0, 28) + q_bank(2)
def wq_dma(u, f):
    cg, ks = u >> 1, 7 * (u & 1) + f
    return [I(f"s_mov_b32 s{QR.sOFF}, {cg * 128 + ks * 32 * 8192}"), I(f"s_add_u32 m0, s{QR.sW1K}, {ULOC[u][f]}"),
            I(f"buffer_load_dwordx4 v{QR.vQD}, s[{K.S_WQ}:{K.S_WQ+3}], s{QR.sOFF} offen lds", tag=("U", u), lds=(ULOC[u][f], ULOC[u][f] + 4096, "U"))]
def wq_unit(u, lo=0, hi=7): return [i for f in range(lo, hi) for i in wq_dma(u, f)]
class QPhase:
    def __init__(self, vbuf, accq):
        self.vbuf, self.accq, self.lastm = vbuf, accq, {}
        self.rd = [self._reads(n) for n in range(32)]
    def frag(self, n, f):
        return ("v", self.vbuf[f]) if n % 2 == 0 else ("a", 144 + 4 * f)
    def acc(self, cg, x4, qb): return self.accq[(cg & 1) * 8 + x4 * 2 + qb]
    XM = False
    def dec(self, n): return (n >> 3, n & 1, (n >> 1) & 3) if self.XM else (n >> 3, (n >> 2) & 1, n & 3)
    def _reads(self, n):
        cg, hf, x4 = self.dec(n); u = 2 * cg + hf; out = []
        for f in range(7):
            k, r = self.frag(n, f)
            out += [I(f"ds_read_b64_tr_b16 {k}[{r + 2*j}:{r + 2*j + 1}], v{QR.vRB[ULOC[u][f] >> 16] + x4} offset:{(ULOC[u][f] & 0xffff) + j * 2048}", lds=(ULOC[u][f], ULOC[u][f] + 4096, "r")) for j in range(2)]
        return out
    def mfmas(self, xl):
        ms = []
        for n in range(32):
            cg, hf, x4 = self.dec(n)
            for o, qb in enumerate((1, 0) if self.XM and hf else (0, 1)):
                d = R("v", self.acc(cg, x4, qb), 4)
                for m, f in enumerate(range(7) if o == 0 else range(6, -1, -1)):
                    k, r = self.frag(n, f)
                    i = mfma(d, R(k, r, 4), R("a", xreg(qb, 7 * hf + f), 4), "0" if hf == 0 and m == 0 else d)
                    dep(i, self.rd[n][2 * f], self.rd[n][2 * f + 1], xl[(qb, 7 * hf + f)])
                    ms.append(i); self.lastm[(cg, x4, qb)] = i
        return ms
    PAT = [0, 0, 2, 2, 3, 3, 5, 5, 6, 6, 8, 8, 9, 9]
    def place_reads(self, g, n, base, pat=None):
        for k, r in zip(pat or self.PAT, self.rd[n]): g.put(base + k, r)
    def need(self, n, lo, hi): return NEED(*[R(*self.frag(n, f), 4) for f in range(lo, hi)])
    def out(self, cg, p2, qb, qreg):
        a, b = self.acc(cg, 2 * p2, qb), self.acc(cg, 2 * p2 + 1, qb)
        ins = [I(f"v_mul_f32 v{r + e}, s{K.sSC}, v{r + e}") for r in (a, b) for e in range(4)]
        if (cg, p2) != (3, 1):
            for i in ins: dep(i, self.lastm[(cg, 2 * p2, qb)], self.lastm[(cg, 2 * p2 + 1, qb)])
        ins += pack(("v", a), ("v", b), 0)[0]
        ins += [I(f"v_accvgpr_write_b32 a{qreg + e}, v{a + e}") for e in range(4)]
        if self.XM: return ins, 14 * (8 * cg + 4 * p2 + 3) + 7 * (1 - qb) + 6
        return ins, 14 * (8 * cg + 4 + 2 * p2 + 1) + 7 * qb + 6
```

```python
import sys, re
from att5 import *
import warm, ldscheck, att, att5, kvq, kv5, side, side5, hw, asmlib
from kv5 import K, QR, QPhase, kacc
opt = dict(stamp="0", v="1", thr=str(2.0 ** 24), low=str(2.0 ** -24), fine="0", no="18", hpad="0", vpad="0", opad="0", kvonly="0", xm="0", qks="1", pvs="1", xsn="1", uw=",0000,ef0001,g111111,2222", jit="0", eo="1", rfl="sc1,sc1", ofl="sc1", emu="0", nc="0", cf="nt", nw="0", t0="79", wqg="41,9", idt="-", idq="-", qw="2,0,0,0,0,0,0", q0s="0", selq="1", rw2="10,60", skip="", hw="7,7,9,9,11,11,13", rgo="1", p2="0", p8="00112233", xl="0040", nr="8", noadd="0", tl="1", nochk="0", rd="0", rdg="60", ct0="13", wn="2,3,4,5", wh1="6,7", wh2="8,9,10,11", pg="50", sent="0", half="1", mkg="40,60", dbg="-", r3w="0", rfive="0", relay="0", tR="4", rq="8,0,12,12,8,8,8", rh="8,8,8,8,8", rw="2", w8="0", fl_="", hmap="0", tH="-", tHg="90", hnt="nt", ne="6", efg="52", idle="", lc="0", n4="8", share="0", pv2="6", nrm="0", pv1="4", tidy="1", pk="12", olo="2", d3w="4", five="1", tlb="-", kvd="6", warm="a", na="8", te1="6:5:13", ip="", ipd="2048", dr="3,44,51,108,0", twg="80", us="", wi="", rt="1", ht="0", xr="100", nost="0",
           tg="113", tcq="99", tc="", tQ="7", lag="3", lag2="11", lagv="8", ke="27", q0="2223333333444444455@99:555556666666777@211:7777", qsep="4", tX="", tW="3,4,5,6", kw="3,3,2", sw="10,60", dh="30,30,30", l2="4", qf="176", qd="0,0,0,0,14", qk="4444", qv="3320", qp="14,122,234,346", ssep="24", n15="8,8",
           fl="200", fc="240", fv="395", s15="12,90", sq="2,400", sqv="200", vq="0,0", vp="3,3,3,4,3", l1="20", pfg="30", wq="8,0,12,16,8,8", wh="8,4,16,16,12", tw="9", odh="45", fpl="20", fpc="0", pl="56")
for a in sys.argv[1:]:
    k, v = a.split("="); assert k in opt, k; opt[k] = v
STAMP = opt["stamp"] in "12"; LIGHT = opt["stamp"] == "2"
ints = lambda k: [int(x) for x in opt[k].split(",")]
kv5.DR[:] = ints("dr")
asmlib.TIDY = opt["tidy"] == "1"
pairs = lambda k: [tuple(int(y) for y in x.split(':')) for x in opt[k].split(',') if x]
asmlib.SHARE = {"0": (), "1": ("dma", "vld"), "2": ("dma", "vld", "vst")}[opt["share"]]
side5.NE = int(opt["ne"])
side5.FINE = "9" in opt["fine"]
side5.PK = int(opt["pk"])
hw.HNT = opt["hnt"]
RELAY = att5.RELAY = opt["relay"] != "0"; side5.NAT = not RELAY; LATER = opt["relay"] == "2"
if RELAY and not LATER: opt["tW"] = ""
side5.POLL2 = int(opt["p2"])
kv5.T0 = int(opt["t0"])
kv5.NC, kv5.CF, kv5.NW = int(opt["nc"]), opt["cf"].replace("+", " "), int(opt["nw"])
side5.RFL = opt["rfl"].replace("+", " ").split(",")
att.PVS = opt["pvs"] == "1"; kv5.XSN = opt["xsn"] == "1"
att.QKS = att5.QKS = opt["qks"] == "1"; att5.PVS = att.PVS = opt["pvs"] == "1"
QPhase.XM = XM = opt["xm"] == "1"; QO = (1, 0) if XM else (0, 1)
side.NTT = ""; side.RNT = ""
X.update(wide=1, ls=1, r3=0, r3x='-')
sMODE, sH, sJ, sVD, sSTK, sFL = 40, 41, 42, 43, 44, 45
sKV, sMLD, sNC = 45, 39, 35
NO = int(opt['no']); assert NO % 2 == 0
JH = NO // 2
aST = 250
UW = opt['uw'].split(',')
SENT = opt['sent'] == '1'; HALF = opt['half'] == '1'
RW = opt['rw'] != '0'
JY = 7 if NO == 16 else 6; TY = JY - 5
WARM = opt['warm'] != '0'
def wev(key, names):
    return warm.event(A.sWAVE, warm.spread(names)) if WARM and key in opt['warm'] else []
wsite = lambda n: warm.site(n) if WARM else []
OOB = side.OOB
def stamp(t=16, force=False):
    if not STAMP or (LIGHT and not force): return []
    return L(f"""s_memrealtime s[36:37]
    s_memtime s[98:99]
    v_accvgpr_read_b32 v{t}, a{aST}
    v_accvgpr_read_b32 v{t+1}, a{aST+1}
    s_mov_b32 s100, m0
    s_mov_b32 m0, s{sSTK}
    s_waitcnt lgkmcnt(0)
    v_writelane_b32 v{t}, s98, m0
    v_writelane_b32 v{t+1}, s36, m0
    s_add_u32 s{sSTK}, s{sSTK}, 1
    s_mov_b32 m0, s100
    v_accvgpr_write_b32 a{aST}, v{t}
    v_accvgpr_write_b32 a{aST+1}, v{t+1}""")
def stampa():
    if not STAMP or LIGHT: return []
    o = L("s_cselect_b32 s101, 1, 0\nv_accvgpr_write_b32 a252, v10\nv_accvgpr_write_b32 a253, v11") + stamp(10) + L("v_accvgpr_read_b32 v10, a252\nv_accvgpr_read_b32 v11, a253\ns_cmp_lg_u32 s101, 0")
    for i in o: i.extra["ghost"] = True
    return o
fs = lambda c: stampa() if c in opt['fine'] else []
def stamp0(t=26):
    if not STAMP: return []
    return L(f"""s_waitcnt lgkmcnt(0)
    v_mov_b32 v{t}, 0
    v_mov_b32 v{t+1}, 0
    v_writelane_b32 v{t}, s38, 0
    v_writelane_b32 v{t+1}, s46, 0
    s_mov_b32 s{sSTK}, 1
    v_accvgpr_write_b32 a254, v{t}
    v_accvgpr_write_b32 a{aST}, v{t}
    v_accvgpr_write_b32 a{aST+1}, v{t+1}""")
def fin():
    if not STAMP: return []
    return L("s_mov_b64 exec, -1\ns_waitcnt vmcnt(0) lgkmcnt(0)") + stamp(30, True) + L(f"""
        s_lshl_b32 s29, s2, 2
        s_add_u32 s29, s29, s{A.sWAVE}
        s_lshl_b32 s29, s29, 9
        s_add_u32 s29, s29, {WS_STAMP}
        v_lshrrev_b32 v10, 1, v{A.vL16}
        buffer_store_dwordx2 a[{aST}:{aST+1}], v10, {WSR}, s29 offen
        s_add_u32 s29, s29, {1 << 20}
        buffer_store_dword a254, v10, {WSR}, s29 offen
        """)
def dbg_out():
    if opt['dbg'] == '-': return []
    return L(f"""
    s_load_dwordx2 s[4:5], s[0:1], {A_DBG}
    v_accvgpr_read_b32 v11, a{aST+1}
    v_lshrrev_b32 v12, 4, v{A.vL16}
    v_not_b32 v13, v11
    v_cmp_eq_u32 vcc, 0, v12
    v_mov_b32 v14, s36
    s_nop 0
    v_cndmask_b32 v11, v11, v13, vcc
    v_cmp_eq_u32 vcc, 15, v12
    s_nop 1
    v_cndmask_b32 v11, v11, v14, vcc
    v_lshlrev_b32 v12, 2, v12
    s_waitcnt lgkmcnt(0)
    {srd(12, 4, 64)}
    s_cmp_eq_u32 s{sJ}, {opt['dbg']}
    s_cselect_b32 exec_lo, 0xffff, 0
    s_or_b32 exec_lo, exec_lo, 0x8001
    s_mov_b32 exec_hi, 0
    buffer_atomic_umax v11, v12, s[12:15], 0 offen
    """)
EXIT = lambda: fin() + dbg_out() + L("s_endpgm")

_jn = [0]
def jitter():
    if opt['jit'] == '0': return []
    _jn[0] += 1; n = _jn[0]
    a = (int(opt['jit']) * 40503 + n * 2654435761) & 0xffff | 1
    o = L(f"""s_mul_i32 s98, s2, {a}
    s_mul_i32 s99, s{A.sWAVE}, {(a * 7 + 3) & 0xff if n & 1 else 0}
    s_add_u32 s98, s98, s99
    s_bfe_u32 s98, s98, 0x20005
    s_cmp_lg_u32 s98, 0
    s_cbranch_scc1 L_jt{n}
    s_sleep 120
    L_jt{n}:""")
    return o
def entry(c):
    c.block("entry", f"""
    s_cmp_lt_u32 s2, 256
    s_cbranch_scc1 L_go
    s_endpgm
    L_go:
    {"s_memrealtime s[46:47]" + chr(10) + "s_memtime s[38:39]" if STAMP else ""}
    s_load_dwordx8 s[80:87], s[0:1], {A_X}
    s_load_dwordx4 s[88:91], s[0:1], {A_WUV}
    s_getpc_b64 s[76:77]
    L_pc0:
    s_lshr_b32 s{sJ}, s2, 3
    s_mov_b32 s79, 0x20000
    s_lshl_b32 s67, s{sJ}, 13
    s_mov_b32 s78, L_code_end-L_pc0
    s_and_b32 s77, s77, 0xffff
    v_lshl_add_u32 v31, v0, 5, s67
    """, side.touch(31, 76, 0, nt=False), f"""
    v_lshrrev_b32 v24, 6, v0
    v_and_b32 v0, 63, v0
    s_and_b32 s{sH}, s2, 7
    v_readfirstlane_b32 s{K.sWAVE}, v24
    s_lshr_b32 s64, s2, 4
    v_and_b32 v24, 15, v0
    v_lshrrev_b32 v25, 4, v0
    s_and_b32 s64, s64, 8
    s_or_b32 s{sH}, s{sH}, s64
    v_lshlrev_b32 v28, 1, v25
    v_xor_b32 v28, v28, v24
    v_and_b32 v29, 8, v28
    v_and_b32 v28, 7, v28
    v_lshlrev_b32 v28, 4, v28
    v_lshl_add_u32 v28, v29, 5, v28
    v_lshl_add_u32 v28, v25, 13, v28
    s_lshl_b32 s64, s{K.sWAVE}, 17
    v_add_u32 v{K.vWD}, s64, v28
    v_xor_b32 v28, 0x100, v{K.vWD}
    v_add_u32 v{K.vWD+1}, {4*8192 - 1024}, v{K.vWD}
    v_add_u32 v{K.vWD+2}, {8*8192 - 2048}, v28
    v_add_u32 v{K.vWD+3}, {12*8192 - 3072}, v28
    s_mov_b32 s{K.sWOFF}, 0
    s_lshl_b32 s{K.sM0W}, s{K.sWAVE}, 12
    s_lshl_b32 s74, s{sH}, 9
    s_sub_u32 s{K.S_W+2}, {1024*8192}, s74
    s_mov_b32 s{K.S_W+3}, s79
    s_bitcmp0_b32 s2, 6
    s_cselect_b64 s[72:73], s[86:87], s[88:89]
    s_add_u32 s{K.S_W}, s72, s74
    s_addc_u32 s73, s73, 0
    s_and_b32 s{K.S_W+1}, s73, 0xffff
    """, kv5.unit_w(0), f"""
    s_and_b32 s{sJ}, s{sJ}, 15
    s_lshr_b32 s{sKV}, s{sJ}, 3
    s_and_b32 s65, s{K.sWAVE}, 1
    s_lshr_b32 s66, s{K.sWAVE}, 1
    v_and_b32 v29, 7, v0
    v_xor_b32 v28, v25, v29
    v_lshlrev_b32 v28, 4, v28
    v_lshrrev_b32 v29, 3, v0
    v_lshl_add_u32 v30, v29, 11, v28
    s_lshl_b32 s64, s66, 19
    s_lshl_b32 s67, s65, 21
    s_add_u32 s64, s64, s67
    v_add_u32 v{K.vCD}, s64, v30
    v_xor_b32 v30, 64, v{K.vCD}
    v_add_u32 v{K.vCD+2}, {16*2048 - 2048}, v{K.vCD}
    v_add_u32 v{K.vCD+1}, {8*2048 - 1024}, v30
    v_add_u32 v{K.vCD+3}, {24*2048 - 3072}, v30
    s_mov_b32 s{K.sCOFF}, 0
    s_add_u32 s{K.sM0C}, s{K.sM0W}, 65536
    s_and_b32 s64, s{sJ}, 7
    s_lshl_b32 s64, s64, 16
    s_sub_u32 s{K.S_C+2}, {2048*2048}, s64
    s_mov_b32 s{K.S_C+3}, s79
    s_add_u32 s{K.S_C}, s82, s64
    s_addc_u32 s73, s83, 0
    s_and_b32 s{K.S_C+1}, s73, 0xffff
    """, *((kv5.unit_w(1), kv5.unit_c(0)) if opt['eo'] == '1' else (kv5.unit_c(0), kv5.unit_w(1))), f"""
    s_load_dwordx2 s[92:93], s[0:1], {A_WR}
    s_load_dwordx2 s[94:95], s[0:1], {A_GW}
    s_load_dwordx4 s[4:7], s[0:1], {A_DBG}
    """, stamp0(28), stamp(28), f"v_lshlrev_b32 v{K.vST}, 4, v0", kvq.addr_rd(), f"""
    {srd(K.S_X, 80, 2048*896)}
    {srd(60, 92, 896)}
    {srd(68, 94, 896)}
    s_lshl_b32 s95, s{K.sWAVE}, 11
    s_lshr_b32 s64, s2, 3
    s_lshl_b32 s64, s64, 13
    s_add_u32 s95, s95, s64
    {srd(K.S_WS, 6, 1 << 28)}
    {srd(K.S_DBG, 4, 256)}
    s_add_u32 s72, s84, s74
    s_addc_u32 s73, s85, 0
    s_sub_u32 s75, {448*8192}, s74
    {srd(K.S_WQ, 72, "s75")}
    s_mul_i32 s{K.sXOFF}, s{sJ}, {128*896}
    s_mov_b32 s{K.sSC}, {hex(f2u(LOG2E_16))}
    s_mul_i32 s72, s{sKV}, {WS_V}
    s_mul_i32 s73, s{sH}, {HS}
    s_add_u32 s72, s72, s73
    s_bfe_u32 s64, s{sJ}, 0x20001
    s_lshl_b32 s64, s64, 15
    s_add_u32 s72, s72, s64
    s_lshl_b32 s64, s66, 17
    s_add_u32 s72, s72, s64
    s_and_b32 s67, s{sJ}, 1
    s_cmp_eq_u32 s{sKV}, 0
    s_cselect_b32 s64, 12, 14
    s_cselect_b32 s75, 14, 10
    s_lshl_b32 s67, s67, s75
    s_add_u32 s72, s72, s67
    s_lshl_b32 s64, s65, s64
    s_add_u32 s{K.sOOFF}, s72, s64
    """, side.h_touch_srd(), f"s_load_dwordx2 s[96:97], s[0:1], {A_OUT}", f"s_cmp_eq_u32 s{sKV}, 0\ns_cbranch_scc0 L_kv1" + ("\ns_branch L_kv0" if WARM else ""))

FL_LOAD = lambda: I(f"buffer_load_dword v{A.vRL}, v9, {WSR}, s46 offen sc1")
FP_LOAD = lambda: I(f"buffer_load_dword v{A.vRL + 1}, off, {WSR}, s47 sc1")
def level(val, t): return L(f"v_mov_b32 v{t}, {val}") + [side.flag_store(sFL, A.vF0, t)]
def lcheck(val, n): return L(f"v_cmp_gt_u32 vcc, {val}, v{A.vRL}\ns_cbranch_vccnz L_ls{n}\nL_lr{n}:")
LSPIN = {}; WSPIN = {}
PBASE = lambda: L(f"""
    s_lshl_b32 s86, s{A.sWAVE}, 14
    s_add_u32 s86, s86, s{A.sPO}
    s_add_u32 s87, s86, 4096
    s_add_u32 s88, s86, 8192
    s_add_u32 s89, s86, 12288
    s_lshl_b32 s90, s{A.sWAVE}, 10
    s_add_u32 s90, s90, s{A.sPO}
    s_add_u32 s90, s90, 65536
    """)

class KVStore:
    def __init__(self, vt):
        self.prs = kv5.kv_pairs(vt); self.reg = {}; self.src = {}
    def st(self, n, tag, reg=None, newpage=True):
        off = self.prs[n][2]
        s = I(f"buffer_store_dwordx4 {reg or self.reg[n]}, v{K.vST}, {WSR}, s3 offen offset:{off & 0xfff} sc1", tag=tag)
        if not reg: dep(s, *self.src[n])
        if opt['nost'] == '1': return []
        if opt['nost'] == '2': s.text = s.text.replace(" sc1", "")
        return ([I(f"s_add_u32 s3, s{K.sOOFF}, {off & ~0xfff}")] if newpage else []) + [s]
    def many(self, ns, tag, regf=None):
        out = []; cur = None
        for n in ns:
            pg = self.prs[n][2] >> 12
            out += self.st(n, tag(n) if callable(tag) else tag, regf(n) if regf else None, pg != cur); cur = pg
        return out

def win_qk1(vslot, v4, stub, extra=lambda s: None, tags=(), post=()):
    g = Gaps(qk_mfmas(1, C0, alt=True))
    tile_reads(g, lambda b: rd_batch(KSLOT[1], b), rd_batch(vslot, 0, v4), [("T", vslot)] + list(tags))
    s = Sched(g).add(dma_flat(KSLOT[0], A.sK) + adv_k(), 1, ints('dh')[1])
    if post: s.add(post, 48, 52, asap=True)
    s.add([I(f"v_mov_b32 v{r}, 0") for r in [A.vLS, A.vLS + 1] + list(range(A.vNM, A.vNM + 8))] + [By(56)], 4, 50)
    extra(s); s.run()
    put_tail(g, sched_sm(g, softmax_groups(0, 1), 0, 54), check_first(f"L_st{stub}"))
    return g.flat() + L(f"L_rt{stub}:"), None
def win_pv0(vslot, v4, extra=lambda s: None, tags=(), post=(), sel=True):
    g = Gaps(pv_mfmas(0, zero=True))
    tile_reads(g, lambda b: rd_batch(vslot, b, v4), rd_batch(KSLOT[0], 0), [("T", KSLOT[0])] + list(tags))
    s = Sched(g).add(dma_flat(KSLOT[1], A.sK) + adv_k(), 1, ints('dh')[2])
    if post: s.add(post, 48, 52, asap=True)
    if sel and opt['selq'] == '0': s.add(selm(A.vX + 1), 30, 62)
    extra(s); s.run()
    sched_sm(g, softmax_groups(1, 0), 0, 60, add_l(0))
    return g.flat()
def win_qk(b, stub, extra=lambda s: None, tags=(), post=(), dma2=()):
    g = Gaps(qk_mfmas(1 - b, lambda kb, qb: NMq(qb), alt=True))
    tile_reads(g, lambda n: rd_batch(KSLOT[1 - b], n), rd_batch(VSLOT[b], 0), [("T", VSLOT[b])] + list(tags))
    s = Sched(g).add(dma_flat(VSLOT[1 - b], A.sV) + adv_v() + list(dma2), 1, 60 if dma2 else ints('dh')[2])
    if post: s.add(post, 48, 52, asap=True)
    extra(s); s.run()
    put_tail(g, sched_sm(g, softmax_groups(b, 1), 0, 56), check(b, f"L_st{stub}"))
    return g.flat() + L(f"L_rt{stub}:")
def win_pv(b, extra=lambda s: None, tags=(), post=()):
    g = Gaps(pv_mfmas(b))
    tile_reads(g, lambda n: rd_batch(VSLOT[b], n), rd_batch(KSLOT[b], 0), [("T", KSLOT[b])] + list(tags))
    s = Sched(g).add(dma_flat(KSLOT[1 - b], A.sK) + adv_k(), 1, ints('dh')[2])
    if post: s.add(post, 48, 52, asap=True)
    extra(s); s.run()
    sched_sm(g, softmax_groups(1 - b, 0), 0, 60, add_l(b))
    return g.flat()
HELPER_K = lambda: L(f"""
    s_mul_i32 s{A.sK}, s{sH}, {HS}
    s_add_u32 s{A.sK}, s{A.sK}, {NO * 32768}
    s_lshl_b32 s84, s{sJ}, 1
    s_sub_u32 s{A.sKcnt}, {30 - NO - 1}, s84
    {f's_lshl_b32 s{A.sKn1}, s{sH}, 18' + chr(10) + f's_add_u32 s{A.sKn1}, s{A.sKn1}, {WS_WO}' if RELAY else f's_mov_b32 s{A.sKn1}, {OOB}'}
    """)

def r5_loads():
    o = side.r4_loads()
    for i in o:
        m = re.match(r"buffer_load_dwordx4 v\[(\d+):", i.text)
        if m: i.text = i.text.replace(f"v[{m.group(1)}:{int(m.group(1)) + 3}]", f"a[{int(m.group(1)) + 136}:{int(m.group(1)) + 139}]"); i.parse()
    return o
def r5_compute():
    out = [I(f"v_mov_b32 v{16+r}, 0") for r in range(8)]
    for w in range(4):
        out += L(f"v_accvgpr_read_b32 v28, a{192+w}\nv_accvgpr_read_b32 v29, a{196+w}")
        for r in (0, 2):
            out += L(f"""v_accvgpr_read_b32 v30, a{176+4*r+w}
            v_accvgpr_read_b32 v31, a{180+4*r+w}
            v_dot2c_f32_bf16 v{16+r}, v30, v28
            v_dot2c_f32_bf16 v{20+r}, v30, v29
            v_dot2c_f32_bf16 v{17+r}, v31, v28
            v_dot2c_f32_bf16 v{21+r}, v31, v29""")
    if opt['rw'] == '2':
        out = out[:8]
        for w in range(4):
            out += L(f"v_accvgpr_read_b32 v28, a{192+w}\nv_accvgpr_read_b32 v29, a{196+w}\nv_lshlrev_b32 v24, 16, v28\nv_lshlrev_b32 v25, 16, v29\nv_and_b32 v28, 0xffff0000, v28\nv_and_b32 v29, 0xffff0000, v29")
            for r in range(4):
                out += L(f"""v_accvgpr_read_b32 v30, a{176+4*r+w}
                v_lshlrev_b32 v31, 16, v30
                v_and_b32 v30, 0xffff0000, v30
                v_fmac_f32 v{16+r}, v31, v24
                v_fmac_f32 v{20+r}, v31, v25
                v_fmac_f32 v{16+r}, v30, v28
                v_fmac_f32 v{20+r}, v30, v29""")
    tail = side.r4_compute()[40:]
    for i in tail:
        i.text = re.sub(r"v(\d+)", lambda m: "v%d" % ({80: 28, 81: 29, 82: 30}.get(int(m.group(1)), int(m.group(1)) - 56) if int(m.group(1)) >= 72 else int(m.group(1))), i.text); i.parse()
    return out + [2] + tail
def act5():
    o = hw.s7_act()
    k = [n for n, i in enumerate(o) if not isinstance(i, int) and i.text.startswith("s_or_b32 s64, s86")][0]
    o[k] = I(f"s_or_b32 s64, s31, s{K.sWAVE}")
    k = [n for n, i in enumerate(o) if not isinstance(i, int) and i.text.startswith("s_mov_b32 s64, %d" % WS_SEL)][0]
    o[k:k + 1] = L(f"s_lshl_b32 s64, s{sH}, 7\ns_add_u32 s64, s64, {WS_SEL}")
    return o
def down5():
    pre = hw.s8_down()[0]
    ms = []
    for m in range(7):
        b = 16 + 2 * (m & 1); nb = 16 + 2 * (1 - (m & 1))
        ms.append([I(f"v_mfma_f32_16x16x16_bf16 a[192:195], a[{176+2*m}:{177+2*m}], v[{b}:{b+1}], {'a[192:195]' if m else '0'}")] +
                  ([I(f"v_mov_b32 v{nb + e}, v{b + e} row_shr:2 row_mask:0xf bank_mask:0xf bound_ctrl:0") for e in range(2)] if m < 6 else []))
    adr = L(f"""
    v_and_b32 v29, 1, v0
    v_mul_u32_u24 v30, 1792, v29
    v_lshrrev_b32 v31, 4, v0
    v_lshl_add_u32 v30, v31, 4, v30
    v_bfe_u32 v29, v0, 1, 3
    v_lshl_add_u32 v30, v29, 6, v30
    v_add_u32 v29, 1, v29
    v_lshrrev_b32 v29, 3, v29
    v_lshl_or_b32 v30, v29, 29, v30
    v_or_b32 v30, s{hw.sMK}, v30
    s_mul_i32 s89, s{hw.sFS}, 3584
    s_mul_i32 s64, s{K.sWAVE}, 448
    s_add_u32 s89, s89, s64
    s_add_u32 s89, s89, {WS_Y}
    buffer_store_dwordx4 a[192:195], v30, {WSR}, s89 offen sc1
    """)
    return pre, ms, adr
def front(c, vt):
    frags = [kvq.rd_c(0, 0, 0, 0), kvq.rd_c(0, 0, 0, 1)] + kv5.rd_w_unit(0, 0, 0) + kv5.rd_w_unit(0, 1, 1)
    rt, ht = int(opt['rt']) == vt, int(opt['ht']) == vt
    qt = not ht
    if 'h' in opt['skip']: ht = False
    if 'r' in opt['skip']: rt = False
    side.sJ = hw.sJ = 31; rl = (r5_loads() if RW else side.r4_loads()) if rt else []; side.sJ = sJ
    RD = int(opt['rd']) if RW else 0
    rl_late = rl if RD else []
    if RD: rl = []
    out = L(f"s_and_b32 s31, s{sJ}, 7") + (side.z_store()[:-3] + rl + side.z_store()[-3:] if vt == 0 else rl) + (kv5.unit_c(1) + kv5.unit_w(2) if kv5.T0 else kv5.unit_w(2) + kv5.unit_c(1))
    out += jitter() + wev('a', [f"kv{vt}{p}" for p in range(1, min(1 + int(opt["na"]), 12 + vt))])
    out += [WAITV([("W", 1), ("C", 0), ("W", 0)], lgkm0=True), I("s_barrier")] + stamp(26) + frags
    if rt and not RW: out += side.r4_compute()
    out += [NEED(R("a", kv5.wfrag(0, 0, 0), 8), R("a", 160, 8))]
    tQ = int(opt["tQ"])
    xl = {}; uq = {u: 0 for u in range(8)}
    def items(spec, sep=0):
        o = []
        for n, seg in enumerate(spec.split("@")):
            if n:
                k, seg = seg.split(":"); o.append(At(int(k)))
            for ch in seg:
                if ch in 'abcdefg': o += kv5.x_dma(ord(ch) - 97)
                elif ch in 'ABCDEFG': o += kv5.x_read(ord(ch) - 65, xl)
                else:
                    u = int(ch); d = kv5.wq_dma(u, uq[u]); uq[u] += 1
                    o += [Sep(max(sep - 2, 0))] + d
        return o
    for t in range(15):
        dma = kv5.kv_dma(t)
        if ht and t == 2:
            hpre, uns = hw.s1_weights()
            if opt['hmap'] == '1':
                k = [n for n, i in enumerate(hpre) if i.text.startswith(f"s_mul_i32 s{hw.sLD},")][0]
                hpre = L(f"""s_and_b32 s64, s{sH}, 7
                s_min_u32 s65, s64, 4
                s_mul_i32 s{hw.sFS}, s64, 12
                s_lshl_b32 s65, s65, 2
                s_add_u32 s{hw.sFS}, s{hw.sFS}, s65
                s_and_b32 s65, s{sH}, 8
                s_add_u32 s65, s65, s31
                s_add_u32 s{hw.sFS}, s{hw.sFS}, s65
                s_and_b32 s64, s64, 4
                s_sub_u32 s64, 15, s64
                s_sub_u32 s64, s64, s65
                s_and_b32 s{hw.sMK}, s64, {OOB}
                s_min_u32 s{hw.sFS}, s{hw.sFS}, 111""") + hpre[k:]
        if ht and t >= 2:
            for w_ in range(2):
                for n_, u_ in enumerate(ints('hw')):
                    if u_ == 2 * t + w_: dma[w_] = dma[w_] + [uns[n_]]
        if ht and t == 10:
            dpre, un = hw.s6_down_dma(); dma[1] = dma[1] + [un]
        tR = int(opt['tR'])
        if RELAY and not LATER and not ht:
            if t == tR:
                side.sJ = 31; wpre, wun = side.wo2_dma(); wrd = side.wo2_reads(); side.sJ = sJ
            if t in (tR, tR + 1): dma[1] = dma[1] + [wun[t - tR]]
        late = t >= 12
        g = kv5.kv_tile(t, vt, [dma[0] if t == 12 else [], []] if late else dma)
        def fit(ins, k, pace=0):
            k, left = kvq.seq_fit(g, ins, k, pace); assert not left, (t, len(left)); return k
        def mm(ms, k):
            k |= 1
            for m in ms: g.put(k, m)
            return k
        tch = []
        if t == 12: xs_at = fit(kv5.x_setup(), 1) + 1; assert xs_at < 40
        if t in ints('tcq'): tch += side.c_touch(32, ints('tcq').index(t) + 1)
        if t == 0: fit(L("v_lshlrev_b32 v26, 7, v0\nv_and_b32 v27, 48, v0\nv_lshl_add_u32 v26, v27, 24, v26"), 50)
        if t == RD - 1 and rt and RD:
            for i in rl_late: i.text = i.text.replace("v32", "v27"); i.parse()
            fit(rl_late, int(opt['rdg']), 2)
        if t == 1 + RD and rt and opt['rw'] == '1': assert fit(r5_compute(), 2) < 108
        if rt and opt['rw'] == '2':
            if t == 1: rc = r5_compute(); fit(rc[:110], 2)
            if t == 2: assert fit(rc[110:], 2) < 108
        if t == 1 and vt == 0: fit(side.z_signal(), 112)
        if t == 2 + RD + (opt['rw'] == '2') and rt: KS_AT = fit(side.rg4_store(), 4, 1); assert KS_AT < 42
        if t == 8 and "ab"[vt] in opt['idle'] or str(t) == opt['idt']: out += L("s_sleep 32")
        if t == 3: fit(side.z_load(), 50)
        if t == 4:
            k = fit(side.z_check(vt), 112)
            if rt: fit(side.key4_store(), k + 1)
        if t == 5 and LATER: fit(L(srd(S_WO, 90, 4096 * 896)), 4)
        if t == 5 and not RELAY: fit(L(f"""s_mul_i32 s64, s{sH}, {256 * 896}
            s_add_u32 s72, s90, s64
            s_addc_u32 s73, s91, 0
            s_sub_u32 s75, {4096 * 896}, s64
            {srd(S_WO, 72, "s75")}"""), 4)
        if RELAY and not LATER and not ht:
            if t == tR: assert fit(L(srd(60, 90, 4096 * 896)) + wpre, 30) < 80
            if t == tR + 2: g.sc[110][0].tag = g.sc[110][0].tag + ["WO"]
            if t == tR + 3: assert fit(wrd, 2, 2) < 108
            if t in (tR + 4, tR + 5, tR + 6): fit([x for s_ in side.wo2_stores()[{0: 0, 1: 3, 2: 5}[t - tR - 4]:{0: 3, 1: 5, 2: 7}[t - tR - 4]] for x in s_ + [24]], 20)
        if qt:
            pre_, tl = side.q_touch3(K.S_WQ)
            if t == tQ: fit(pre_, 60)
            if 0 <= t - tQ < len(tl): tch += tl[t - tQ]
        if ht:
            if t == 2: fit(hpre, 42)
            if t == 6: fit(hw.s2_keys(), 64)
            if t == 7: assert fit(hw.s3_top2(), 10, 1) < 108
            if t == 8:
                sel = hw.s4_sel()
                k = [n for n, i in enumerate(sel) if not isinstance(i, int) and i.text.startswith(f"s_mov_b32 s64, {WS_RG}")][0]
                if opt['rgo'] == '1': sel[k:k + 1] = L(f"s_or_b32 s64, s31, s{K.sWAVE}\ns_min_u32 s64, s64, 1\ns_lshl_b32 s64, s64, 29\ns_add_u32 s64, s64, {WS_RG}")
                fit(sel, 4, 1)
            if t == 9:
                (r0, m0), (r1, m1) = hw.s5_gemm()
                k = fit([WAITV("HW")] + r0, 50); k = mm(m0, max(k + 6, 78)); k = fit(r1, k + 1); mm(m1, max(k + 6, 110))
            if t == 10: assert fit(dpre, 4) < 44
            if t == 11: fit(act5(), 2, 1)
            if t == 12:
                pre, ms, yadr = down5()
                k = fit(pre, xs_at)
                for m in ms: k = mm([m[0]], k + 2); k = fit(m[1:], k + 1)
                fit(yadr, k + 1)
        thin = lambda srd_, so: [side.touch(26, srd_, f"s{so}", nt=False)] + L(f"s_add_u32 s{so}, s{so}, 2048")
        if str(t) == opt['tH']:
            fit(L(f"""s_lshl_b32 s26, s2, 2
            s_add_u32 s26, s26, s{K.sWAVE}
            s_sub_u32 s25, s26, 448
            s_cselect_b32 s25, s26, s25
            s_cselect_b64 s[72:73], s[80:81], s[82:83]
            s_mul_i32 s25, s25, 3584
            {srd(32, 72, 448 * 3584)}
            v_lshlrev_b32 v27, 7, v0
            v_add_u32 v28, 4, v0
            v_lshrrev_b32 v28, 5, v28
            v_lshl_or_b32 v27, v28, 29, v27""") + [side.touch(27, 32, "s25", nt=False)], int(opt['tHg']))
        if str(t) == opt['tlb'][0]:
            tl_ = L(f"v_lshlrev_b32 v27, 21, v0\nv_min_u32 v28, 2, v0\nv_lshrrev_b32 v28, 1, v28\nv_lshl_or_b32 v27, v28, 29, v27")
            if 'x' in opt['tlb']: tl_ += [side.touch(27, K.S_X, f"s{K.sXOFF}", nt=False)]
            if 'q' in opt['tlb']: tl_ += [side.touch(27, K.S_WQ, 0, nt=False)]
            if 'k' in opt['tlb']: tl_ += L(f"s_mul_i32 s26, s{sH}, {HS}\nv_lshlrev_b32 v27, 24, v0\nv_min_u32 v28, 3, v0\nv_add_u32 v28, 1, v28\nv_lshrrev_b32 v28, 2, v28\nv_lshl_or_b32 v27, v28, 29, v27") + [side.touch(27, K.S_WS, "s26", nt=False)]
            fit(tl_, 60)
        xt = [int(x) for x in opt['tX'].split(",") if x]
        if xt and t == xt[0] // 2:
            assert fit(L(f"""s_lshl_b32 s26, s{sJ}, 1
            s_lshr_b32 s27, s{sH}, 3
            s_add_u32 s26, s26, s27
            s_lshl_b32 s26, s26, 2
            s_add_u32 s26, s26, s{K.sWAVE}
            s_mul_i32 s26, s26, 14336"""), 20) < 46
        if 2 * t in xt: fit(thin(K.S_X, 26), 48)
        if 2 * t + 1 in xt: tch += thin(K.S_X, 26)
        wt = [int(x) for x in opt['tW'].split(",") if x]
        if wt and qt:
            if t == wt[0]: fit(L(f"""s_and_b32 s27, s{sJ}, 7
                s_lshl_b32 s64, s{sH}, 3
                s_add_u32 s27, s27, s64
                s_lshl_b32 s27, s27, 2
                s_add_u32 s27, s27, s{K.sWAVE}
                s_mul_i32 s27, s27, 7168
                {srd(60, 90, 4096 * 896)}"""), 20)
            if t in wt: fit(thin(60, 27), int(opt['twg']))
        if str(t) in opt['tc'].split(','): tch += [side.touch(26, 76, 's95', nt=False)]
        if late:
            s = Sched(g); xr = int(opt['xr'])
            fl = lambda us: [i for u in us for i in u]
            if t == 12: s.add(items("a") + fl(dma[1]) + [By(110)], 49, 106, vmd=2)
            if t == 13:
                s.add(items("b") + fl(dma[0]) + [By(46)], 1, 42, vmd=2).add(items("c") + fl(dma[1]) + [At(72)] + items(UW[0]) + [By(110)], 49, 106, vmd=2)
                s.add(kv5.q_setup() + [By(70)], 48, 68)
                s.add(items("A") + [By(44), At(xr)] + items("B") + [By(108)], xr - 64, 100, asap=True)
            if t == 14:
                s.add(items("d") + fl(dma[0]) + items(UW[1]) + [By(46)], 1, 42, vmd=2).add(items(UW[2]) + [By(110)], 49, 106, vmd=2)
                s.add(items("C") + [By(44), At(xr)] + items("D") + [By(108)], xr - 64, 100, asap=True)
                s.add(kv5.q_setup2(), 50, 80)
            s.run()
        fit(tch, int(opt['tg']) - (10 if len(tch) > 8 else 0))
        out += g.flat()
        for ev in opt['te1'].split(","):
            te, p0, p1 = [int(x) for x in ev.split(":")]
            if t == te: out += wev('b', [f"kv{vt}{p}" for p in range(p0, min(p1, 12 + vt))])
        if t in (0, 1, 11, 14) or '1' in opt['fine']: out += stampa()
        if t in (0, 3, 5, 9, 14): out += jitter()
    g = kv5.kv_tile(15, vt, [[], []], endtags=[("U", 0), ("U", 1)])
    ks = KVStore(vt)
    lastw = {}
    for m in g.m:
        for r in m.writes: lastw[r] = m
    done_at = lambda n: max(p[0] * 16 + p[1] * 2 + 1 for p in ks.prs[n][:2]) + 4
    packs = {}
    for n, (ta, tb, off) in enumerate(ks.prs):
        ins, reg = kvq.pack(kacc(*ta), kacc(*tb), K.vT + (4 * (n & 1) if vt else 0))
        seen = set()
        for i in ins:
            for r in i.reads:
                if r in lastw and r not in seen: i.extra.setdefault("raw", {})[r] = lastw[r]
            seen |= set(i.writes)
        packs[n] = ins; ks.reg[n] = R("v", reg, 4); ks.src[n] = ins[-4:]
    qp = QPhase([32 + 4 * f for f in range(7)], [kacc(y, x)[1] for y in (3, 5) for x in range(8)] if vt else [kacc(y, x)[1] for y in (2, 3, 4, 5) for x in (1, 3, 5, 7)])
    qp.place_reads(g, 0, 112)
    g.put_s(127, qp.need(0, 0, 4))
    s = Sched(g)
    lo, hi = ints('s15'); st1 = []; cur = None
    for n in range(8):
        pg = ks.prs[n][2] >> 12
        st1 += [At(max(done_at(n), lo + n * (hi - lo) // 8 - 6))] + packs[n] + ks.st(n, "KV1", newpage=pg != cur); cur = pg
    s.add(st1 + [By(110)], 0, hi, asap=True)
    s.add(items(UW[3]) + [By(46)], 1, 42, vmd=2).add(items(UW[4]) + [By(108)], 49, 90)
    s.add(items("E") + [At(50)] + items("F") + [At(96)] + items("G") + [By(106)], 30, 100, asap=True)
    s.add([x for n in range(8, 32) for x in [At(done_at(n))] + packs[n]], 0, 127, asap=True)
    left = s.run(spill=True); assert not any(left[:4]), left
    carry = left[4]
    if '6' in opt['fine']:
        for k in range(31, 127, 32): g.ve[k] += stampa()
    out += g.flat() + fs('2')
    g = Gaps(qp.mfmas(xl))
    LV = {1: [("U", 2), ("U", 3)], 2: [("U", 4), ("U", 5)], 3: [("U", 6), ("U", 7)], 4: [("T", KSLOT[0])]}
    l2 = int(opt['l2']) if vt else 3
    LV[l2] = LV[l2] + ["KV2"]
    g.put_s(2, qp.need(0, 4, 7))
    for n in range(32):
        if n < 31: qp.place_reads(g, n + 1, 14 * n)
        else: put_batch(g, rd_batch(KSLOT[0], 0), 14 * n); g.put_s(14 * n + 13, need_batch(0))
        if n % 8 == 6:
            g.put_s(14 * n + 12, WAITV(LV[n // 8 + 1], lgkm0=True)); g.put_s(14 * n + 13, I("s_barrier"))
        elif n < 31:
            g.put_s(14 * n + 13, qp.need(n + 1, 0, 4)); g.put_s(14 * n + 16, qp.need(n + 1, 4, 7))
    QB = lambda x: 112 * x - 14
    setup = kv5.q_bank(1) + [By(90)] + side.lane0_wave0(A.vF0) + L(f"""
    v_min_u32 v9, 15, v0
    v_lshlrev_b32 v9, 7, v9
    s_sub_u32 s66, 15, s{sJ}
    s_max_u32 s67, s66, s{sJ}
    s_min_u32 s66, s66, s{sJ}
    s_mul_i32 s{A.sK}, s{sH}, {HS}
    s_lshl_b32 s64, s67, 16
    s_add_u32 s{A.sQ}, s{A.sK}, s64
    s_lshl_b32 s64, s{A.sWAVE}, 14
    s_add_u32 s{A.sQ}, s{A.sQ}, s64
    s_add_u32 s{A.sQ}, s{A.sQ}, {WS_Q}
    s_sub_u32 s64, s{sJ}, {JH + 1}
    s_and_b32 s{sNC}, s64, {OOB}
    v_or_b32 v6, s{sNC}, v{A.vL16}
    """) + [By(80)] + L(f"""
    s_lshl_b32 s{A.sM0}, s{A.sWAVE}, 13
    v_add_u32 v{A.vRD1}, 0x10000, v{A.vL16}
    v_add_u32 v{A.vDM0}, s{A.sM0}, v{A.vL16}
    v_add_u32 v{A.vDM1}, 0x1000, v{A.vDM0}
    s_lshl_b32 s64, s{sJ}, 16
    s_add_u32 s{A.sKn1}, s{A.sK}, s64
    s_add_u32 s{sVD}, s{A.sKn1}, {WS_V}
    s_add_u32 s{A.sV}, s{A.sK}, {WS_V}
    {f'''s_min_u32 s{A.sIT}, s{sJ}, {JH}
    s_lshl_b32 s{A.sKcnt}, s{A.sIT}, 1
    s_sub_u32 s{A.sKcnt}, s{A.sKcnt}, 1
    s_sub_u32 s{A.sIT}, s{A.sIT}, 2''' if vt else f'''s_mov_b32 s{A.sKcnt}, 0x7fff
    s_sub_u32 s{A.sIT}, s{sJ}, 1
    s_cmp_eq_u32 s{sJ}, 0
    s_cselect_b32 s64, 32768, 0
    s_add_u32 s{A.sV}, s{A.sV}, s64'''}
    s_mov_b32 s{A.sTHR}, {hex(f2u(float(opt['thr'])))}
    s_mov_b32 s{A.sLOW}, {hex(f2u(float(opt['low'])))}
    s_lshl_b32 s47, s66, 7
    s_add_u32 s47, s47, s46
    s_lshl_b32 s64, s{A.sWAVE}, 5
    s_add_u32 s47, s47, s64
    s_add_u32 s47, s47, 2048
    s_lshl_b32 s65, s{sH}, 3
    s_add_u32 s65, s65, s66
    s_mul_i32 s{A.sPO}, s65, {PO_STRIDE}
    s_add_u32 s{A.sPO}, s{A.sPO}, {WS_PO}
    s_lshl_b32 s65, s{sJ}, 4
    s_add_u32 s65, s65, s{sH}
    s_mul_i32 s{A.sOP}, s65, {OP_HEAD}
    s_mul_i32 s65, s{A.sWAVE}, 28672
    s_add_u32 s{A.sOP}, s{A.sOP}, s65
    s_add_u32 s{A.sOP}, s{A.sOP}, {WS_OP}
    {f's_or_b32 s{A.sOP}, s{A.sOP}, {OOB}' if ('k' in opt['wi'] and not vt) or ('v' in opt['wi'] and vt) else ''}
    s_mov_b32 s{A.sREQ}, 0
    s_mov_b32 s{A.sCHK}, {vt}
    s_mov_b32 s{sMODE}, 1
    s_cmp_eq_u32 s{A.sWAVE}, 0
    s_cselect_b32 s{sMLD}, {6 if vt else 7}, 4
    {'' if vt else f'''s_lshl_b32 s64, s{sH}, 1
    s_add_u32 s64, s64, s{A.sWAVE}
    s_cmp_lt_u32 s64, 30
    s_cselect_b32 s64, {0 if 'h' in opt['skip'] else (15 << TY) | (1 << 15)}, 0
    s_cmp_ge_u32 s{A.sWAVE}, 2
    s_cselect_b32 s64, s64, 0
    s_cmp_eq_u32 s{sJ}, {JY}
    s_cselect_b32 s64, s64, 0
    s_or_b32 s{sMLD}, s{sMLD}, s64'''}
    s_mov_b64 s[60:61], s[76:77]
    s_mov_b32 s62, s78
    s_mov_b32 s63, 0x20000
    v_lshrrev_b32 v24, 4, v0
    v_lshlrev_b32 v24, 2, v24
    v_and_b32 v25, 15, v0
    v_sub_u32 v24, v24, v25
    """) + [I(f"v_cmp_lt_i32 s[{A.sTRI[e]}:{A.sTRI[e]+1}], {-e}, v24") for e in range(4)] + side.code_addr(0, 25) + (selm(24) if opt['selq'] == '1' else []) + [By(int(opt['fl']) - 6)]
    dq = items(opt['q0'], int(opt['qsep'])) + L(f"v_mov_b32 v{A.vNEG}, 0xff800000")
    assert all(v == 7 for v in uq.values())
    W1 = f"buffer_load_dword v{A.vRL}, v31, {WSR}, s46 offen offset:4 sc1"
    wchk = lambda n, half: L(f"v_cmp_ne_u32 vcc, 1, v{A.vRL}\ns_nop 0\ns_cmp_lg_u32 vcc_{half}, 0\ns_cbranch_scc1 L_ws{n}\nL_wr{n}:")
    WSPIN[f"q{vt}"] = (W1, "lo"); WSPIN[f"r{vt}"] = (W1, "hi")
    dq2 = [At(int(opt['fl']) - 4)] + L(f"v_lshrrev_b32 v31, 6, v{A.vL16}\nv_bfe_u32 v28, v{A.vL16}, 4, 2\nv_lshlrev_b32 v31, 5, v31\nv_add_lshl_u32 v31, v31, v28, 2\n{W1}") + [At(int(opt['fc']))] + wchk(f"q{vt}", "lo") + dma_flat(KSLOT[0], A.sK) + adv_k()
    k1 = dma_flat(KSLOT[1], A.sK)
    dq2 += [At(QB(3))] + k1[:3] + L(W1) + k1[3:] + adv_k() + [At(int(opt['fv']))] + wchk(f"r{vt}", "hi") + dma_flat(4, A.sV) + adv_v()
    qout = []; qsts = []
    def qst(qb, kq): return [I(f"s_add_u32 s30, s{A.sQ}, {(qb * 8 + kq) >> 2 << 12}"), I(f"buffer_store_dwordx4 a[{Qreg(qb, kq)}:{Qreg(qb, kq)+3}], v6, {WSR}, s30 offen offset:{(kq & 3) * 1024} sc1", tag="QST")] if vt and opt['nost'] != '1' else []
    for cg in range(4):
        for p2 in range(2):
            for qb in QO:
                if (cg, p2) == (3, 1): continue
                ins, k = qp.out(cg, p2, qb, Qreg(qb, 2 * cg + p2))
                qout += [At(k + 4)] + ins
                qsts.append((ins[-1], qst(qb, 2 * cg + p2)))
                if qsts[-1][1]: dep(qsts[-1][1][-1], *ins[-4:])
    qlast = lambda: qp.out(3, 1, QO[0], Qreg(QO[0], 7))[0] + [By(4), At(1)] + qp.out(3, 1, QO[1], Qreg(QO[1], 7))[0] + [By(12)]
    nq = ints('qd')[4]
    qrest = [i for k, i in qsts[nq:]] + [qst(QO[0], 7), qst(QO[1], 7)]
    qw = ints('qw') if vt else [0] * 7; assert not vt or sum(qw) == len(qrest), len(qrest)
    qpart = lambda m: [x for i in qrest[sum(qw[:m]):sum(qw[:m + 1])] for x in i]
    uq_at = 82
    s = Sched(g)
    s.add(carry, 0, 40, asap=True)
    s.add(dq, 0, 240, asap=True, vmd=2).add(dq2, 0, 430, asap=True, vmd=int(opt['kvd']))
    kq = 8 + sum(int(x, 16) for x in opt['qk']); kw = ints('kw'); assert kq + sum(kw) == 32 and kw[2] <= 8
    plan = [int(x, 16) for x in opt['qv' if vt else 'qk']]; pos = ints('qp'); sts = []; n0 = 8
    for m, k in zip(plan, pos):
        sts += [At(k)] + [x for i in ks.many(range(n0, n0 + m), lambda n: "KV2" if n < 16 else "KV4") for x in ([Sep(int(opt['ssep'])), i] if i.kind != 'vst' else [i])]; n0 += m
    assert n0 == (16 if vt else kq)
    s.add(sts, 0, 447, asap=True)
    s.add(qout, 0, 447, asap=True)
    qd = ints('qd'); nq = qd[4]
    ready = [i for i in setup if isinstance(i, Inst) and i.text.startswith("v_or_b32 v6,")][0]
    for k, i in qsts:
        if i: dep(i[1], ready); dep(i[0], [x for x in setup if isinstance(x, Inst) and f"s{A.sQ}" in x.writes][-1])
    s.add([At(uq_at)] + [x for n, (k, i) in enumerate(qsts[:nq]) for x in [At(qd[n // 4]), Sep(int(opt['ssep'])), After(k)] + i], 0, 447, asap=True)
    s.add(setup, 20, int(opt['fl']) - 20)
    w1 = L(f"""s_mul_i32 s72, s{sH}, {FSTR}
    s_add_u32 s46, s72, {WS_FL}
    s_lshl_b32 s{sFL}, s{sJ}, 7
    s_add_u32 s{sFL}, s{sFL}, s46
    s_lshl_b32 s72, s{A.sWAVE}, 2
    s_add_u32 s72, s72, s{sFL}
    v_min_u32 v29, 1, v0
    v_lshlrev_b32 v29, 29, v29
    v_mov_b32 v30, 1""") + [At(int(opt['l1'])), WAITV("KV1"), I(f"buffer_store_dword v30, v29, {WSR}, s72 offen offset:4 sc1")]
    s.add(w1 + [At(QB(l2))] + level(2, 30), 0, 447, asap=True)
    s.run()
    if '6' in opt['fine']:
        for k in range(27, 447, 28): g.ve[k] += stampa()
    if '8' in opt['fine']:
        for k in range(213, 447, 14): g.ve[k].append(I("s_nop 0 ; us"))
    if 'q' in opt['warm']:
        k, p0 = ints('wqg'); g.ve[k] += wev('q', [f"kv{vt}{p}" for p in range(p0, 12 + vt)] + ([] if vt else []))
    if opt['idq'] != '-': g.ve[int(opt['idq'])].append(I("s_sleep 32"))
    if '7' in opt['fine']:
        for x in range(1, 5): g.ve[QB(x) - 3] += stampa(); g.ve[QB(x) - 1] += stampa()
    out += g.flat() + stamp(26) + (EXIT() if opt['kvonly'] == '2' else []) + jitter()
    init = lambda: [I(f"v_mov_b32 v{r}, 0") for r in [A.vLS, A.vLS + 1] + list(range(A.vNM, A.vNM + 8))]
    rd2 = lambda: L(f"v_add_u32 v16, 0x20000, v{A.vL16}")
    g = Gaps(qk_mfmas(0, C0, order=QO, asc0=True))
    tile_reads(g, lambda b: rd_batch(KSLOT[0], b), rd_batch(KSLOT[1], 0), [("T", KSLOT[1])])
    s = Sched(g).add(qlast() + [x for i in qpart(0) for x in ([Sep(int(opt['q0s'])), i] if i.kind != 'vst' else [i])], 0, 20, asap=True).add(dma_flat(VSLOT[1], A.sV) + adv_v(), 10, ints('dh')[0]).add(rd2(), 30, 63)
    if vt:
        a, b = ints('vq'); n0 = 16 + a + b; assert n0 <= 24
        qf = int(opt['qf'])
        qflag = L(f"v_min_u32 v17, 1, v{A.vL16}\nv_lshlrev_b32 v17, 29, v17\nv_mov_b32 v15, 1\ns_add_u32 s84, s47, 16") + [At(qf % 64), WAITV("QST"), side.flag_store(84, 17, 15), By(62)]
        s.add((qflag if qf < 64 else []) + ks.many(range(16, 16 + a), "KV4"), ints('sw')[0], 62, asap=True)
        def park(ns):
            o = [I(f"v_accvgpr_write_b32 a{128 + 4 * (n - 16) + e}, v{int(ks.reg[n][2:ks.reg[n].index(':')]) + e}") for n in ns for e in range(4)]
            for i in o: dep(i, *[p for n in ns for p in ks.src[n]])
            return o
    else:
        km = kq + kw[0]
        s.add(ks.many(range(kq, km), "KV4"), *ints('sw'))
    s.run()
    grp, early = groups_first(0, QO)
    sched_sm(g, grp, 12, 62, early=early)
    if '8' in opt['fine']:
        for k in (0, 16, 32): g.ve[k].append(I("s_nop 0 ; us"))
    qk0 = g.flat() + jitter() + stampa() + (L("s_sleep 32") if str(vt) in opt['idle'] else [])
    if vt:
        w1, left = win_qk1(4, 16, "v1", lambda s: s.add(ks.many(range(16 + a, n0), "KV4") + [By(60)], *ints('sw')).add(qflag if 64 <= qf < 128 else [], 0, 60, asap=True).add(park(range(n0, 24)) + [By(58)], 0, 56).add(qpart(1), *ints('sw')))
        vp = ints('vp'); assert n0 + sum(vp) == 32
        later = lambda m: (lambda s: s.add(ks.many(range(n0 + sum(vp[:m]), n0 + sum(vp[:m + 1])), "KV4", lambda n: R("a", 128 + 4 * (n - 16), 4)), *ints('sw')).add(qpart(m + 2), *ints('sw')).add(qflag if qf // 64 == m + 2 else [], 30, 60, asap=True))
        def pv0x(s): s.add(park(range(24, 32)) + [By(28)], 0, 28); later(0)(s)
        ex = [[], [], []]
        if LATER:
            ex[0] = L(f"""s_and_b32 s66, s{sJ}, 7
            s_lshl_b32 s67, s{sH}, 3
            s_add_u32 s67, s66, s67
            s_lshl_b32 s67, s67, 2
            s_add_u32 s67, s67, s{K.sWAVE}
            s_mul_i32 s67, s67, 7168
            s_mul_i32 s86, s{K.sWAVE}, 7168
            s_add_u32 s86, s86, 131072""")
            for o_, n_ in ((0, 4), (4096, 3)):
                ex[0] += [I(f"s_add_u32 m0, s86, {o_}")] + [I(f"buffer_load_dwordx4 v7, s[{S_WO}:{S_WO+3}], s67 offen offset:{1024*q} lds", tag="WO", lds=(131072, 163840, "WO")) for q in range(n_)] + L("s_add_u32 s67, s67, 4096")
            ex[1] = L(f"""v_lshrrev_b32 v12, 6, v7
            v_mul_u32_u24 v12, 896, v12
            v_and_b32 v13, 48, v7
            s_lshr_b32 s67, s{K.sWAVE}, 1
            s_lshl_b32 s67, s67, 6
            s_and_b32 s86, s{K.sWAVE}, 1
            s_lshl_b32 s86, s86, 3
            s_add_u32 s67, s67, s86
            s_add_u32 s67, s67, 131072
            v_add3_u32 v12, v12, v13, s67
            s_lshl_b32 s94, s{sH}, 18
            s_lshl_b32 s66, s66, 10
            s_add_u32 s94, s94, s66
            s_lshl_b32 s66, s{K.sWAVE}, 13
            s_add_u32 s94, s94, s66
            s_add_u32 s94, s94, {WS_WO}""") + [I(f"ds_read_b64_tr_b16 a[{192+4*n+2*q}:{193+4*n+2*q}], v12 offset:{n*128 + q*14336}", lds=(131072, 163840, "r")) for n in range(7) for q in range(2)] + [By(44)]
            ex[2] = [x for n in range(7) for x in (I(f"s_add_u32 s30, s94, {n * 32768}"), I(f"buffer_store_dwordx4 a[{192+4*n}:{195+4*n}], v7, {WSR}, s30 offen sc1"))]
        both = lambda f, e, lo, hi: (lambda s: (f(s), s.add(e, lo, hi)))
        c.block("kv1", "L_kv1:", out, qk0, w1, win_pv0(4, 16, pv0x), jitter(), fs('3'), win_qk(1, "v2", later(1), dma2=ex[0]), win_pv(1, later(2), tags=["WO"]), fs('3'),
                win_qk(0, "v3", both(later(3), ex[1], 0, 40)), win_pv(0, both(later(4), ex[2], *ints('rw2'))), "s_sleep 32" if 'v' in opt['idle'] else "", jitter(), "s_branch L_loop_top")
    else:
        c.block("kv0", "L_kv0:", out, f"s_cmp_eq_u32 s{sJ}, 0\ns_cbranch_scc1 L_j0")
        c.block("k1", qk0, win_qk1(4, 16, "k1", lambda s: s.add(ks.many(range(km, km + kw[1]), "KV4") + [By(60)], *ints('sw')))[0],
                win_pv0(4, 16, lambda s: s.add(ks.many(range(km + kw[1], 32), "KV4") + [By(28)], 4, 28)), f"s_cmp_lg_u32 s{A.sIT}, 0\ns_cbranch_scc1 L_loop_top\ns_branch L_d1s")
        g = Gaps(qk_mfmas(0, lambda kb, qb: R("v", Sreg(0, kb, 0), 4) if qb == 0 else "0", order=(1, 0), asc0=True))
        tile_reads(g, lambda b: rd_batch(KSLOT[0], b), rd_batch(KSLOT[1], 0), [("T", KSLOT[1])])
        ql = qp.out(3, 1, 1, Qreg(1, 7))[0] + [By(5)] + qp.out(3, 1, 0, Qreg(0, 7))[0] + [By(12)]
        pr = presets(False, zero=True)
        LSPIN["j0"] = (2, 17)
        s = Sched(g).add([At(1)] + ql, 0, 20, asap=True).add([x for kb in range(4) for x in pr[kb] + [By(16 * kb + 6)]], 0, 50)
        s.add(L(f"s_mov_b32 s{A.sV}, s{sVD}") + dma_flat(VSLOT[0], A.sV) + L(f"v_min_u32 v17, {7 << 7}, v9\nbuffer_load_dword v{A.vRL}, v17, {WSR}, s46 offen sc1"), 14, 44)
        s.add(init(), 0, 63).add(ks.many(range(kq, 32), "KV4"), 16, 62, vmd=2).run()
        grp, early = groups_first(0, (1, 0))
        sched_sm(g, grp, 12, 62, early=early)
        ucheck = L(f"v_mov_b32 v{A.vX}, v{A.vSUM}\nv_mov_b32 v{A.vX+1}, v{A.vSUM+1}") + [i for p in zip(xlane("v_max_f32", A.vX, A.vX + 2), xlane("v_max_f32", A.vX + 1, A.vX + 3)) for i in p] + L(f"""
            v_min_f32 v{A.vX}, v{A.vX}, v{A.vX+1}
            v_cmp_gt_f32 vcc, s{A.sLOW}, v{A.vX}
            s_cbranch_vccnz L_stj0
            L_rtj0:""")
        zz = [I(f"v_mov_b32 v{A.vP1 + e}, 0") for e in range(4)]
        rest = [i for p in presets(True) for i in p]
        c.block("j0", "L_j0:", g.flat(), stampa(), zz, HELPER_K(), PBASE(), lcheck(2, "j0"), mix(ucheck[:-2], dma_flat(KSLOT[0], A.sK) + adv_k(), 1), ucheck[-2:], zero_O_mfma(rest, A.vP1), "s_branch L_d3h")

def build_att(c):
    X.update(nodma=int(opt['xl'][0]), nobar=int(opt['xl'][1]), rp=int(opt['xl'][2]), dp=int(opt['xl'][3])); att.WI.update(nr=int(opt['nr']), noadd=int(opt['noadd']))
    c.block("loop_top", "L_loop_top:" if WARM else ".p2align 6\nL_loop_top:", fs('3'), att.win_qk(1, "L_st1", "L_rt1", extra=[side.touch(0, 60, 0, nt=False)] if opt['tl'] == '1' else [])[0], att.win_pv(1))
    c.block("loop_mid", fs('3'), att.win_qk(0, "L_st0", "L_rt0", head=L(f"s_bitcmp1_b32 s{sMLD}, s{A.sCHK}\ns_cbranch_scc1 L_fll\nL_fllr:"))[0],
            att.win_pv(0, tail=L(f"s_sub_u32 s{A.sIT}, s{A.sIT}, 1\ns_cmp_lg_u32 s{A.sIT}, 0\ns_cbranch_scc1 L_loop_top"),
                       chk=L(f"""v_cmp_gt_u32 vcc, s{A.sREQ}, v{A.vRL}
                       s_cbranch_vccnz L_fls0
                       L_flr0:
                       s_mov_b32 s{A.sREQ}, 0
                       s_add_u32 s{A.sCHK}, s{A.sCHK}, 1""")))
    if opt['emu'] != '0':
        for b in ("loop_top", "loop_mid"):
            o = []; n = 0; nb = 0; nw = 0; nm = 0
            for i in c.blocks[b]:
                if i.kind == "mfma": nm += 1
                if i.kind == "dma" and f"s{A.sV} offen" in i.text:
                    i = I(i.text.replace("dwordx4 v", f"dwordx4 a[{192 + 4 * n}:{195 + 4 * n}], v").replace(" lds", ""), tag="TOUCH"); n += 1
                if i.op == "s_barrier":
                    nb += 1
                    if nb == 1: continue
                if i.kind == "dsr" and ", v7 " in i.text:
                    f = int(re.search(r"offset:(\d+)", i.text).group(1)) // 1024 % 8
                    if f >= 3:
                        if f == 4 and nw < 4: o.append(I(f"ds_write_b128 v2, v[{40 + 4 * nw}:{43 + 4 * nw}] offset:{61440 + 1024 * nw}")); nw += 1
                        continue
                o.append(i)
            c.blocks[b] = o
    att.WI.update(nr=8, noadd=0); X.update(nodma=0, nobar=0)
    c.block("p1", f"s_cmp_eq_u32 s{sMODE}, 0\ns_cbranch_scc1 L_final_h")
    g = Gaps(qk_mfmas(0, lambda kb, qb: R("v", Sreg(0, kb, 0), 4) if qb == 0 else NMq(1), order=(1, 0)))
    tile_reads(g, lambda b: rd_batch(KSLOT[0], b), rd_batch(VSLOT[1], 0), [("T", VSLOT[1])])
    pr = presets(False)
    Sched(g).add([x for kb in range(4) for x in pr[kb] + [By(16 * kb + 6)]], 0, 50).add(
        L(f"s_mov_b32 s{A.sV}, s{sVD}\nv_min_u32 v17, {7 << 7}, v9\nbuffer_load_dword v{A.vRL}, v17, {WSR}, s46 offen sc1") + dma_flat(VSLOT[0], A.sV) + adv_v() + dma_flat(4, A.sV, 0, 4), 1, 60).add(PBASE(), 30, 62).run()
    put_tail(g, sched_sm(g, softmax_groups(1, 1), 0, 56), check(1, "L_std1"))
    c.block("d1", "L_d1s:", stampa(), g.flat(), "L_rtd1:", fs('4'), f"s_cmp_lt_u32 s{sJ}, {15 - JH}\ns_cbranch_scc1 L_d2h")
    pg = lambda k: [f"loop_top{p}" for p in ints(k)]
    wq = ints('rq' if RELAY else 'wq')
    if RELAY: opt['d3w'] = opt['r3w']; opt['five'] = opt['rfive']
    class WoQ:
        def __init__(self, slots): self.slots, self.n = slots, 0
        def take(self, m):
            o = []
            while m and self.n < 56:
                t, i = divmod(self.n, 8); k = min(m, 8 - i)
                o += wo_dma(self.slots[t], i, i + k); self.n += k; m -= k
            return o
    def d2(nxt):
        g = Gaps(pv_mfmas(1))
        tile_reads(g, lambda b: rd_batch(VSLOT[1], b), rd_batch(KSLOT[1], 0), [("T", KSLOT[1])])
        Sched(g).add(dma_flat(4, A.sV, 4, 8) + nxt, 1, 60).add([i for p in presets(True) for i in p] + [By(61)], 4, 60).run()
        sched_sm(g, softmax_groups(0, 0), 0, 62, add_l(1))
        return g.flat() + fs('4')
    P8 = [int(x) for x in opt['p8']]
    def d3(stub, extra):
        g = Gaps(qk_mfmas(1, lambda kb, qb: R("v", Sreg(1, kb, 1), 4), order=(1,)))
        tile_reads(g, lambda b: rd_batch(KSLOT[1], b), rd_batch(VSLOT[0], 0), [("T", VSLOT[0])], per=8, pat=P8)
        Sched(g).add(L(f"v_add_u32 v{A.vNEG}, 0x20000, v{A.vL16}") + extra, 4, 30, asap=True).run()
        put_tail(g, sched_sm(g, softmax_groups(0, 1), 0, 30), check(0, f"L_st{stub}"))
        return g.flat() + L(f"L_rt{stub}:") + fs('4')
    def d4(stub, s1, s2, lo2, hi2, pub=False, hi1=60, asap=False):
        g = Gaps(pv_mfmas(0))
        tile_reads(g, lambda b: rd_batch(VSLOT[0], b), rd_batch(4, 0, A.vNEG), [("T", 4)] + (["KV4"] if pub else []))
        Sched(g).add(s2, lo2, hi2, vmd=2, asap=asap).add(s1, 1, hi1, vmd=2).add(level(4, A.vX + 5) if pub else [], 48, 52, asap=True).run()
        put_tail(g, sched_sm(g, groups_b(), 0, 60, add_l(0)), check_b(f"L_st{stub}"))
        return g.flat() + L(f"L_rt{stub}:") + fs('4')
    addb = lambda: L(f"v_add_f32 v{A.vLS + 1}, v{A.vSUM + 3}, v{A.vLS + 1}")
    wo = WoQ([3, 1, 2, 0, 4, 3, 1] if opt['five'] == '1' else [3, 1, 2, 0, 3, 1, 2])
    c.block("d2n", jitter(), "s_sleep 32" if 'n' in opt['idle'] else "", wev('n', pg('wn')), d2(wo_setup(A.vX + 4) + wo.take(wq[0])))
    LC = opt['lc'] == '1'; NRM = opt['nrm'] == '1'; assert not (LC and NRM)
    c.block("d3n", d3("d3n", wo.take(int(opt['d3w'])) + ([] if LC else [At(int(opt['fpl'])), FP_LOAD()])))
    pl = L(f"v_or_b32 v9, s{sNC}, v{A.vL16}\nv_cmp_ne_u32 vcc, 1, v{A.vRL + 1}\ns_cbranch_vccnz L_fps\nL_fpr:") + [I(f"buffer_load_dwordx4 v[{A.vX+4}:{A.vX+7}], v9, {WSR}, s90 offen sc1")]
    for kq in range(8):
        for qb in (1, 0):
            n = qb * 8 + kq
            pl.append(I(f"buffer_load_dwordx4 a[{A.aX + 4*n}:{A.aX + 4*n + 3}], v9, {WSR}, s{86 + n // 4} offen offset:{(n & 3) * 1024} sc1"))
    ctest = lambda: L(f"""
    v_cmp_neq_f32 vcc, v{A.vNM}, v{A.vX+4}
    v_cmp_neq_f32 s[64:65], v{A.vNM+4}, v{A.vX+5}
    s_cmp_eq_u32 s{sNC}, 0
    s_cselect_b64 s[66:67], -1, 0
    s_or_b64 vcc, vcc, s[64:65]
    s_and_b64 vcc, vcc, s[66:67]
    s_cbranch_vccnz L_stc
    L_rtc:""")
    pn = lambda k0: NEED(*[R("a", A.aX + (qb * 8 + kq) * 4, 4) for kq in (k0, k0 + 1) for qb in range(2)])
    l2 = lambda: L(f"v_add_f32 v{A.vLS}, v{A.vX+6}, v{A.vLS}\nv_add_f32 v{A.vLS+1}, v{A.vX+7}, v{A.vLS+1}")
    if not LC:
        c.block("d4n", d4("d4n", wo.take(wq[1]), pl, int(opt['fpc']), int(opt['pl'])))
        g = Gaps(pvb_mfmas(True))
        tile_reads(g, lambda b: rd_batch(4, b, A.vNEG), rd_wo(3, 0), [("T", 3)], npat=None if RELAY else RP16)
        for k, k0 in ((1, 0), (14, 2), (30, 4), (45, 6)): g.put_s(k, pn(k0))
        lf = l2() + addb() + lfin2()
        nrm = lambda kq, qb: [I(f"v_mul_f32 v{Oreg(2 * kq + h, qb) + e}, v{A.vRL + qb}, v{Oreg(2 * kq + h, qb) + e}") for h in range(2) for e in range(4)] if NRM else []
        cv = ([After(lf[-1])] if NRM else []) + [x for kq in range(8) for qb in (1, 0) for x in [At(8 * kq + 11 - qb)] + nrm(kq, qb) + cvt_ctx(kq, qb)]
        left = Sched(g).add(oa_setup(A.vX + 4) + [By(46)], 20, 44).add(lf + [By(19)], 0, 14 if NRM else 18).add(wo.take(wq[2]), 2, 40).add(cv, 0, 63, asap=True).run(spill=True)
        c.block("d5n", NEED(R("v", A.vX + 4, 4)), ctest(), g.flat(), [i for l in left for i in l], stampa())
    else:
        n4 = 5 + int(opt['n4'])
        c.block("d4n", d4("d4n", wo.take(wq[1]) + [By(int(opt['fpc']) - 2)], [At(int(opt['fpl'])), FP_LOAD(), At(int(opt['fpc']))] + pl[:n4] + [By(60)], 0, 60, hi1=int(opt['fpc']) - 4, asap=True))
        g = Gaps(pvb_mfmas() + comb_mfmas())
        tile_reads(g, lambda b: rd_batch(4, b, A.vNEG), None, [("T", 3)], per=8, pat=P8)
        put_batch(g, rd_wo(3, 0), 40); g.put_s(62, need_batch(0))
        ct = ctest()
        for i in [pn(0)] + ct[-2:]: g.put_s(31, i)
        for k, k0 in ((39, 2), (47, 4), (55, 6)): g.put_s(k, pn(k0))
        cv = [x for kq in range(8) for qb in (1, 0) for x in [At(32 + 4 * kq + 7 - 2 * qb)] + cvt_ctx(kq, qb)]
        lf = l2() + lfin2()
        left = Sched(g).add(pl[n4:] + [By(30)] + wo.take(wq[2]), 0, 40, asap=True, vmd=1).add(addb() + oa_setup(A.vX) + [By(22), At(24)] + ct[:-2] + [By(30), At(32)] + lf[:2] + [By(34)], 4, 30).add(cv + lf[2:], 0, 63, asap=True).run(spill=True)
        c.block("d5n", g.flat(), [i for l in left for i in l], stampa())
    def op_out(j, split=False, mul=True, pps=(0, 1)):
        b = j & 1
        ins = L(f"s_add_u32 s{A.sT0}, s{A.sOP}, {2 * j * 1024}\ns_add_u32 s{A.sT1}, s{A.sOP}, {14336 + 2 * j * 1024}") if 0 in pps else []
        for pp in pps:
            for qb in range(2):
                if split: ins.append(At(32 * pp + 27 + 8 * qb))
                a, d = Sreg(b, 2 * pp, qb), Sreg(b, 2 * pp + 1, qb)
                if mul: ins += [I(f"v_mul_f32 v{r + e}, v{A.vRL + qb}, v{r + e}") for r in (a, d) for e in range(4)]
                ins += kvq.pack(("v", a), ("v", d), 0)[0]
                ins.append(I(f"buffer_store_dwordx4 v[{a}:{a+3}], v{A.vL16}, {WSR}, s{A.sT0 + qb} offen offset:{pp * 1024} {opt['ofl'].replace('+', ' ')}", tag=("OP", j)))
        return ins
    fop = lambda: L(f"""
    s_sub_u32 s64, 15, s{sJ}
    s_min_u32 s64, s64, s{sJ}
    s_mul_i32 s{sFL}, s64, {2 * FSTR}
    s_lshl_b32 s64, s{sH}, 2
    s_add_u32 s{sFL}, s{sFL}, s64
    s_lshl_b32 s64, s{A.sWAVE}, 8
    s_add_u32 s{sFL}, s{sFL}, s64
    s_add_u32 s{sFL}, s{sFL}, {WS_FOP}
    s_mov_b32 s64, 1024
    s_mov_b32 s66, {FSTR - 256}
    s_cmp_lt_u32 s{sJ}, 8
    s_cselect_b32 s64, {FSTR}, s64
    s_cselect_b32 s65, 0, 64
    s_cselect_b32 s66, {OOB}, s66
    s_add_u32 s3, s{sFL}, s64
    s_add_u32 s{sFL}, s{sFL}, s65
    v_lshrrev_b32 v{A.vX + 7}, 5, v{A.vL16}
    v_min_u32 v{A.vX + 5}, 1, v{A.vX + 7}
    v_lshlrev_b32 v{A.vX + 4}, 3, v{A.vL16}
    v_lshl_or_b32 v{A.vX + 6}, v{A.vX + 5}, 29, v{A.vX + 4}
    v_cmp_eq_u32 vcc, 1, v{A.vX + 7}
    v_add_u32 v{A.vX + 4}, s66, v{A.vX + 4}
    v_mov_b32 v{A.vX + 5}, 1
    v_cndmask_b32 v{A.vX + 7}, v{A.vX + 6}, v{A.vX + 4}, vcc
    """)
    def outproj(wo, quota, ctx, first=(), extra0=(), prep=False):
        ow = []; sl = wo.slots
        for j in range(7):
            g = Gaps(qk_mfmas(j & 1, C0, breg=ctx))
            tile_reads(g, lambda b: rd_wo(sl[j], b), rd_wo(sl[j + 1], 0) if j < 6 else None, [("T", sl[j + 1])] if j < 6 else None)
            s = Sched(g)
            if j < len(quota): s.add(wo.take(quota[j]), 1, int(opt['odh']), vmd=2)
            if j == 0: s.add(list(first) + fop() + list(extra0) + [I(f"v_add_u32 v{vOA[2] + x}, 0x20000, v{A.vL16 if RELAY else vOA[0] + x}") for x in range(1 if RELAY else 4)], 0, 40, asap=True)
            jv = (side5.NE - 1) // 2 + 2
            if j == 5 or (j == jv and prep):
                sel = L(f"s_cmp_{'lt' if j == 5 else 'ge'}_u32 s{sJ}, 8\ns_cselect_b32 s84, s{sFL}, {OOB}") if prep and jv != 5 else L(f"s_mov_b32 s84, s{sFL}")
                s.add(sel + [At(int(opt['efg'])), WAITV([("OP", j - 2)]), I(f"buffer_store_dword v{A.vX + 5}, v{A.vX + 7}, {WSR}, s84 offen sc1")], 40, 60, asap=True)
            if j == int(opt['pv1']): s.add(side5.red_v1(A.vL16) if prep else side5.red_k1(A.vL16), 0, 60)
            if prep and j == int(opt['pv2']): s.add(side5.red_v2() + [By(60)], 4, 56)
            if SENT and prep and j == 0:
                mk = [I(f"v_mov_b32 v{Sreg(1, 0, 0) + e}, -1") for e in range(4)] + L(f"s_sub_u32 s73, s{sJ}, 8\ns_and_b32 s73, s73, {OOB}\ns_add_u32 s73, s73, s{A.sOP}\ns_add_u32 s72, s73, 12288\ns_add_u32 s73, s73, {14336 + 12288}")
                s.add(mk + [I(f"buffer_store_dwordx4 v[{Sreg(1, 0, 0)}:{Sreg(1, 0, 0) + 3}], v{A.vL16}, {WSR}, s{72 + (n >> 1)} offen offset:{(n & 1) * 1024} sc1") for n in range(4)] + [By(60)], *ints('mkg'))
            if SENT and prep and j == 6: s.add([At(int(opt['pg']))] + L(side5.FOP_LOAD) + [By(62)], 0, 62, asap=True)
            mul = not (prep and NRM)
            if HALF: s.add((op_out(j - 1, mul=mul, pps=(1,)) if j else []) + op_out(j, True, mul, pps=(0,) if j < 6 else (0, 1)), int(opt['olo']), 63, asap=True, vmd=2)
            elif j > 0: s.add(op_out(j - 1) + (op_out(6, True) if j == 6 else []), int(opt['olo']), 62 if j < 6 else 63, asap=j == 6, vmd=2)
            left = s.run(spill=j == 6)
            ow += g.flat() + fs('5')
        assert wo.n == 56
        if SENT and prep:
            return ow + stampa() + L(f"s_cmp_lt_u32 s{sJ}, 8\ns_cselect_b32 s84, {OOB}, s3") + [WAITV([("OP", 5)]), I(f"buffer_store_dword v{A.vX + 5}, v{A.vX + 6}, {WSR}, s84 offen sc1")] + [i for l in left for i in l] + stampa()
        return ow + stampa() + [i for l in left for i in l] + L(side5.FOP_LOAD) + [WAITV([("OP", 6)]), I(f"buffer_store_dword v{A.vX + 5}, v{A.vX + 6}, {WSR}, s3 offen sc1")] + stampa()
    c.block("opn", jitter(), "s_sleep 32" if 'p' in opt['idle'] else "", outproj(wo, wq[3:], lambda qb, ks: R("v", Oreg(2 * ks, qb), 4), prep=True), f"s_cmp_lt_u32 s{sJ}, 8\ns_cbranch_scc1 L_red")
    rv, vfar = side5.red_main_v(stampa, int(opt['lagv']), SENT)
    if 'e' in opt['skip']: rv = []; vfar = []
    c.block("end1", jitter(), rv, EXIT()); c.block("vfar", vfar)
    LSPIN["h2"] = (2, 17); LSPIN["h4"] = "s84"
    c.block("d2h", "L_d2h:", jitter(), "s_sleep 32" if 'h' in opt['idle'] else "", wev('h', pg('wh1')), d2(HELPER_K() + lcheck(2, "h2") + dma_flat(KSLOT[0], A.sK) + adv_k()))
    c.block("d3h", "L_d3h:", d3("d3h", [FL_LOAD(), I(f"buffer_load_dword v{A.vRL + 1}, off, {WSR}, s47 offset:16 sc1")]))
    ql = L(f"v_cmp_ne_u32 vcc, 1, v{A.vRL + 1}\ns_cbranch_vccnz L_fqs\nL_fqr:") + L(f"s_add_u32 s73, s{A.sQ}, 4096\ns_add_u32 s74, s{A.sQ}, 8192\ns_add_u32 s75, s{A.sQ}, 12288")
    ql += [I(f"buffer_load_dwordx4 a[{4*n}:{4*n+3}], v{A.vL16}, {WSR}, s{72 + n // 4 if n >= 4 else A.sQ} offen offset:{(n & 3) * 1024} sc1") for n in range(16)]
    c.block("d4h", d4("d4h", [], ql + L(f"s_cmp_ge_u32 s{sJ}, 2\ns_cselect_b32 s84, 4, 2") + lcheck("s84", "h4") + [By(58)], 0, 54, True))
    g = Gaps(pvb_mfmas() + qk_mfmas(0, C0))
    tile_reads(g, lambda b: rd_batch(4, b, A.vNEG), rd_batch(KSLOT[0], 0), [("T", KSLOT[0])], per=8, pat=P8)
    tile_reads(g, lambda b: rd_batch(KSLOT[0], b), rd_batch(KSLOT[1], 0), [("T", KSLOT[1])], base=32)
    g.put_s(29, NEED(R("a", 0, 64)))
    def cpk(kq, qb): return link(cvt_ctx(kq, qb) + [I(f"v_accvgpr_write_b32 a{A.aX + (qb * 8 + kq) * 4 + e}, v{Oreg(2 * kq, qb) + e}") for e in range(4)])
    order = [(0, 0), (1, 0)] + [x for kq in range(6) for x in ((kq, 1), (kq + 2, 0))] + [(6, 1), (7, 1)]
    cp = {k: cpk(*k) for k in order}
    s = Sched(g).add(dma_flat(KSLOT[1], A.sK) + adv_k() + L(f"s_mul_i32 s{A.sV}, s{sH}, {HS}\ns_add_u32 s{A.sV}, s{A.sV}, {WS_V + NO * 32768}") + dma_flat(VSLOT[0], A.sV) + adv_v() + dma_flat(VSLOT[1], A.sV, 0, 4), 2, 92)
    s.add(addb() + lfin2() + L(f"v_accvgpr_write_b32 a192, v{A.vRL}\nv_accvgpr_write_b32 a193, v{A.vRL + 1}") + [I(f"v_mov_b32 v{r}, 0") for r in [A.vLS, A.vLS + 1] + list(range(A.vNM, A.vNM + 8))], 0, 40).run()
    grp, early = groups_first(0, base=32)
    sched_sm(g, grp, 44, 94, early=early)
    left = Sched(g).add([x for k in order for x in ([At(4 * k[0] + 7)] if k[1] else []) + cp[k]], 0, 95, asap=True).run(spill=True)[0]
    w5 = g.flat() + fs('4')
    g = Gaps(qk_mfmas(1, C0, alt=True))
    tile_reads(g, lambda b: rd_batch(KSLOT[1], b), rd_batch(VSLOT[0], 0), [("T", VSLOT[0])])
    Sched(g).add(dma_flat(KSLOT[0], A.sK) + adv_k() + dma_flat(VSLOT[1], A.sV, 4, 8) + adv_v(), 1, 56).run()
    k = sched_sm(g, softmax_groups(0, 1), 0, 54)
    tail = check_first("L_sth1")
    ids = {id(i) for i in left}
    Sched(g).add(left + [By(57)], 0, 57).run()
    put_tail(g, max(k, 57), tail)
    w6 = g.flat() + L("L_rth1:")
    c.block("d5h", w5, w6, stampa(), win_pv0(VSLOT[0], None, lambda s: s.add(L(f"""s_mov_b32 s{sMODE}, 0
            s_mov_b32 s{A.sCHK}, 0
            s_and_b32 s{sMLD}, s{sMLD}, 1
            s_or_b32 s{sMLD}, s{sMLD}, 2
            s_sub_u32 s{A.sIT}, {15 - JH - 1}, s{sJ}"""), 10, 30)), f"s_cmp_lg_u32 s{A.sIT}, 0\ns_cbranch_scc1 L_loop_top")
    wo = WoQ([3, 2, 0, 4, 1, 3, 2] if opt['five'] == '1' else [3, 2, 0, 1, 3, 2, 0]); wh = ints('wh')
    if RELAY: wo.n = 16; wh = [ints('rh')[0], 0] + ints('rh')[1:]
    pst = lambda kq, qb: [I(f"buffer_store_dwordx4 v[{Oreg(2*kq, qb)}:{Oreg(2*kq, qb)+3}], v{A.vL16}, {WSR}, s{86 + (qb*8+kq) // 4} offen offset:{(kq & 3) * 1024} sc1", tag="PST")]
    g = Gaps(pv_mfmas(1, alt=False))
    tile_reads(g, lambda b: rd_batch(VSLOT[1], b), rd_wo(3, 0), [("T", 3)], npat=None if RELAY else RP16)
    w0 = wo_setup(A.vX + 4, 2 if RELAY else 0) + wo.take(wh[0]); nv = 0 if RELAY else 7
    left = Sched(g).add(oa_setup(A.vX + 4) + [By(46)], 0, 10).add([x for kq in range(8) for qb in range(2) for x in [At(8 * kq + 9 + 2 * qb)] + cvt_ctx(kq, qb) + pst(kq, qb)], 0, 63, asap=True, vmd=1).add(
        wo.take(wh[1]), 0, 12, vmd=1).run(spill=True)
    c.block("final_h", "L_final_h:", jitter(), stampa(), WAITV([("T", VSLOT[1])], lgkm0=True), "s_barrier", rd_batch(VSLOT[1], 0), wev('f', pg('wh2')), w0[:nv], mix(softmax_half(1, 1), w0[nv:], 1), check(1, "L_stfh"), "L_rtfh:", add_l(1), f"""
    v_mov_b32 v{A.vX}, v{A.vNM}
    v_mov_b32 v{A.vX+1}, v{A.vNM+4}
    v_mov_b32 v{A.vX+2}, v{A.vLS}
    v_mov_b32 v{A.vX+3}, v{A.vLS+1}
    """, I(f"buffer_store_dwordx4 v[{A.vX}:{A.vX+3}], v{A.vL16}, {WSR}, s90 offen sc1", tag="PST"), need_batch(0), fs('4'), g.flat(), left[1], left[2], stampa())
    assert not left[0]
    pflag = L(f"v_min_u32 v{A.vX}, 1, v{A.vL16}\nv_lshlrev_b32 v{A.vX}, 29, v{A.vX}") + [At(int(opt['pfg'])), WAITV("PST"), side.flag_store(47, A.vX, A.vX + 5)]
    c.block("oph", jitter(), "s_sleep 32" if 'o' in opt['idle'] else "", outproj(wo, wh[2:], lambda qb, ks: R("a", A.aX + (qb * 8 + ks) * 4, 4), L(f"v_accvgpr_read_b32 v{A.vRL}, a192\nv_accvgpr_read_b32 v{A.vRL + 1}, a193"), pflag))
    rm = side5.red_main(A.vL16, stampa, int(opt['lag']), int(opt['lag2']))
    if 'e' in opt['skip']: rm = []
    c.block("red0", "L_red:", [WAITV([("OP", 6)]), I(f"buffer_store_dword v{A.vX + 5}, v{A.vX + 6}, {WSR}, s3 offen sc1")] if SENT else [], side5.red_k1(A.vL16), side5.FOP_LOAD, "s_branch L_red1")
    c.block("red", "L_red1:", jitter(), f's_or_b32 s77, s77, {OOB}' if 'r' in opt['wi'] else '', f's_or_b32 s78, s78, {OOB}' if 's' in opt['wi'] else '', rm, EXIT())
    c.block("rpoll", side5.red_poll())
    stubs = ""
    for n, f in (("0", "slow0"), ("1", "slow1"), ("v1", "slowf"), ("k1", "slowf"), ("h1", "slowf"), ("j0", "slowj"), ("v2", "slow1"), ("v3", "slow0"), ("d1", "slow1"),
                 ("d3n", "slow0"), ("d3h", "slow0"), ("d4n", "slowb"), ("d4h", "slowb"), ("fh", "slow1n"), ("c", "comb")):
        stubs += f"L_x{n}:\ns_call_b64 s[{A.sRET}:{A.sRET+1}], L_{f}\ns_branch L_rt{n}\n".replace("L_x", "L_st")
    return stubs

def mid_blocks(c, stubs):
    c.block("stubs", stubs)
    c.block("slow", att.slow_sub(0), att.slow_sub(1), att.slow_sub(1, False), slow_first("L_slowf", True), slow_first("L_slowj", False), slow_b(), comb_slow(opt['lc'] == '1'))
    sp = []
    for n, v in LSPIN.items():
        ld = FL_LOAD().text
        if isinstance(v, tuple): v, ld = v[0], ld.replace("v9", "v%d" % v[1])
        sp += side.spin_stub(f"L_ls{n}", f"L_lr{n}", ld, A.vRL, 91, f"v_cmp_gt_u32 vcc, {v}, v{{vt}}")
    for n, (ld, half) in WSPIN.items():
        sp += side.spin_stub(f"L_ws{n}", f"L_wr{n}", ld, A.vRL, 91, f"v_cmp_ne_u32 vcc, 1, v{{vt}}\ns_nop 0\ns_mov_b32 vcc_{'hi' if half == 'lo' else 'lo'}, 0")
    c.block("spins", side.z_stub(0), side.z_stub(1), hw.key_stub(), sp, f"""
    L_fll:
    s_sub_u32 s65, s{A.sCHK}, s{sMODE}
    s_mov_b32 s64, -1
    s_cmp_eq_u32 s65, 1
    s_cbranch_scc1 L_fl2
    s_cmp_lg_u32 s{A.sWAVE}, 0
    s_cbranch_scc1 L_fl3
    s_lshr_b32 s64, s{sJ}, 3
    s_cmp_eq_u32 s{A.sCHK}, s64
    s_cbranch_scc0 L_fl1
    v_mov_b32 v{A.vX + 5}, 4
    {side.flag_store(sFL, A.vF0, A.vX + 5).text}
    L_fl1:
    s_cmp_lg_u32 s65, 0
    s_cbranch_scc1 L_fllr
    s_movk_i32 s64, 0x380
    L_fl2:
    v_min_u32 v{A.vX + 7}, s64, v9
    s_mov_b32 s{A.sREQ}, 4
    buffer_load_dword v{A.vRL}, v{A.vX + 7}, {WSR}, s46 offen sc1
    s_bitcmp1_b32 s{sMLD}, 15
    s_cbranch_scc0 L_fllr
    L_fl3:
    s_cmp_eq_u32 s{A.sCHK}, {TY}
    s_cbranch_scc1 L_y2
    s_cmp_eq_u32 s{A.sCHK}, {TY + 1}
    s_cbranch_scc1 L_y3
    s_cmp_eq_u32 s{A.sCHK}, {TY + 2}
    s_cbranch_scc1 L_y4
    s_branch L_y5
    s_waitcnt vmcnt(0)
    L_fps:
    s_cmp_lg_u32 s{sNC}, 0
    s_cbranch_scc1 L_fpr
    """, side.spin_stub("L_fps2", "L_fpr", FP_LOAD().text, A.vRL + 1, 91),
            side.spin_stub("L_fqs", "L_fqr", f"buffer_load_dword v{A.vRL + 1}, off, {WSR}, s47 offset:16 sc1", A.vRL + 1, 91),
            side.spin_stub("L_fls0", "L_flr0", FL_LOAD().text.replace("v9", f"v{A.vX + 7}"), A.vRL, 91, f"v_cmp_gt_u32 vcc, s{A.sREQ}, v{{vt}}"))
    c.block("ystubs", side5.y_stubs("L_fllr", int(opt['ht'])))

def paths(c):
    lp = ["loop_top", "loop_mid"]
    n = ["d1", "d2n", "d3n", "d4n", "d5n", "opn"]
    c.path("entry", "kv1", *lp, *lp, *lp, "p1", *n, "end1")
    c.path("entry", "kv0", "k1", *lp, *lp, *lp, "p1", *n, "red0", "red")
    for own in (["j0"], ["k1", "d1", "d2h"], ["k1", *lp, "p1", "d1", "d2h"], ["k1", *lp, *lp, *lp, "p1", "d1", "d2h"]):
        for nh in (0, 1, 2, 3):
            c.path("entry", "kv0", *own, "d3h", "d4h", "d5h", *(lp * nh), *(["p1"] if nh else []), "final_h", "oph", "red")
    for b in ("rpoll", "vfar", "stubs", "slow", "moe", "spins", "ystubs"): c.path(b)

def check_tiles(c):
    size = dict(U=7, T=8, W=4, C=4, X=4)
    for path in c.paths:
        cnt = {}; waited = set()
        for b in path:
            for i in c.blocks[b]:
                if i.kind == "vst": assert i.tag not in waited, (path, b, i.text, i.tag)
                if i.op == "WAITV": waited |= set(i.tag if isinstance(i.tag, list) else [i.tag])
                if i.kind == "dma" and isinstance(i.tag, tuple): cnt[i.tag] = cnt.get(i.tag, 0) + 1
                if i.op == "WAITV":
                    for t in (i.tag if isinstance(i.tag, list) else [i.tag]):
                        if isinstance(t, tuple) and t[0] in size:
                            n = cnt.pop(t, 0)
                            assert (n or b in ("final_h", "oph")) and n % size[t[0]] == 0, (path, b, t, n)
def ustamps(c):
    names = ["start"]
    for spec in [x for x in opt['us'].split(",") if x]:
        b, lo, hi = (spec.split(":") + ["0", "999"])[:3]
        o = []; pend = None; nb = 0
        def rec(n):
            r = L(f"v_accvgpr_write_b32 a255, v10\nv_accvgpr_read_b32 v10, a254\nv_writelane_b32 v10, s98, {n}\nv_accvgpr_write_b32 a254, v10\nv_accvgpr_read_b32 v10, a255")
            for i in r: i.extra["ghost"] = True
            return r
        for i in c.blocks[b]:
            if pend is not None and (i.op in ("s_endpgm", "s_call_b64") or i.kind == "branch" and i is c.blocks[b][-1]): o += rec(pend); pend = None
            o.append(i)
            if pend is not None and i.op in ("NEED", "WAITV"): o += rec(pend); pend = None
            if i.op == "s_barrier" or i.text.endswith("; us"):
                nb += 1
                if int(lo) <= nb <= int(hi):
                    pend = len(names); names.append(f"{b}.{nb}"); o.append(I("s_memtime s[98:99]"))
        if pend is not None: o += rec(pend)
        c.blocks[b] = o
    assert len(names) <= 64
    return names
def ipref(c):
    n = 0
    for b in [x for x in opt['ip'].split(",") if x]:
        o = []; q = b not in ("kv0", "kv1")
        for i in c.blocks[b]:
            o.append(i)
            if i.text.startswith("s_mov_b64 s[60:61], s[76:77]"): q = True
            if i.op == "s_barrier":
                n += 1
                o += [I("s_getpc_b64 s[100:101]"), I(f"s_load_dword s94, s[100:101], {opt['ipd']} ; ignore")]
        c.blocks[b] = o
SHORT = [("v_mfma_f32_16x16x32_bf16", "M", 4), ("ds_read_b128", "R", 0), ("ds_read_b64_tr_b16", "T", 0), ("v_cvt_pk_bf16_f32", "C", 3), ("v_exp_f32", "E", 2),
         ("v_accvgpr_write_b32", "W", 2), ("v_accvgpr_read_b32", "G", 2), ("v_add_f32", "AF", 3), ("v_mul_f32", "MF", 3), ("s_add_u32", "SA", 3)]
def compress(body):
    hdr = []; out = []
    for full, sh, n in SHORT:
        if n: hdr.append(f".macro {sh} " + ", ".join("abcd"[:n]) + f"\n{full} " + ", ".join("\\" + x for x in "abcd"[:n]) + "\n.endm")
        else: hdr.append(f".macro {sh} a, b, c\n{full} \\a, \\b offset:\\c\n.endm")
    for ln in body.split("\n"):
        ln = ln.strip()
        for full, sh, n in SHORT:
            if ln.startswith(full + " ") and "row_" not in ln and (n or " offset:" in ln):
                ln = sh + " " + ln[len(full) + 1:].replace(" offset:", ",").replace(", ", ","); break
        out.append(ln)
    return "\n".join(hdr), "\n".join(out)

if __name__ == "__main__":
    c = CFG(verbose=int(opt["v"]))
    entry(c); front(c, 0); front(c, 1)
    stubs = build_att(c)
    n0 = len(c.order)
    mid_blocks(c, stubs); c.block("moe", side5.red_moe() if 'e' not in opt['skip'] else [], "L_hr:\ns_endpgm" if 'h' in opt['skip'] else "")
    k = c.order.index("loop_top")
    c.order = c.order[:k] + c.order[n0:-1] + c.order[k:n0] + c.order[-1:]
    c.order.remove("red0"); c.order.append("red0")
    paths(c); opt['nochk'] == '1' or check_tiles(c); names = ustamps(c); ipref(c)
    txt = c.finalize()
    if opt['nochk'] == '0':
        ldscheck.check(c)
        bad = [x for b in c.order for x in check_order(c.mat[b], b) if not b.startswith("loop") and not (" lds" in x[1] and ("s[16:19]" in x[1] or "s[48:51]" in x[1]))]
        assert not bad, bad[:5]
    if int(opt['v']):
        for b in c.order:
            m = c.mat[b]; bad = sum(1 for x, y in zip(m, m[1:]) if x.kind in ("valu", "trans") and y.kind in ("dsr", "dsw", "dma", "vld", "vst"))
            if any(i.kind == "mfma" for i in m): sys.stderr.write(f"; {b}: valu->mem {bad}\n")
    for spec in [x for x in opt['fl_'].split(",") if x]:
        r, f = spec.split(":")
        for b in c.order:
            for i in c.mat[b]:
                if i.kind == "dma" and f"s[{r}:" in i.text: i.text = i.text.replace(" nt", "").replace(" sc1", "").replace(" lds", " " + f.replace("+", " ") + " lds")
    if opt['dbg'] != '-':
        for b in c.order:
            for i in c.mat[b]:
                if "s[12:15]" in i.text and i.op in ("buffer_store_dword", "buffer_load_dword") and "v17" in i.text: i.text = i.text.replace("offen", "offen offset:64")
    if 'h' in opt['skip']:
        for b in c.order:
            for i in c.mat[b]:
                if i.text.startswith("s_cbranch_vccnz L_moe"): i.text = "s_nop 0"
    if WARM: txt = warm.place(c, ("kv0", "kv1", "loop_top"))
    hdr, body = compress(txt)
    kn = NAME + "_kernel"
    print("; Fused MLA-style attention + gated MoD block for gfx950; generated by dev/gen5.py (hand-written generator)")
    if opt['us']: print("; sites " + " ".join(names))
    print("; @launch grid=(256,1,1) block=(256,1,1) lds=163840")
    print('.amdgcn_target "amdgcn-amd-amdhsa--gfx950"\n.text')
    print(hdr)
    print(kernel_header(kn))
    print(body)
    print("L_code_end:")
    print('.section .rodata,"a"\n.p2align 6')
    print(kernel_desc(kn, sgpr=102))
```

```python
from common import *
from side import sWAVE, sH, WS, OOB, sigmoid
import hw
from hw import LB, LX, sFS, sLD, sMK, merge, rnd2
WS_HP = WS_R + (3 << 20)
WS_FA = WS_FH + 1024
sJ7 = 31
def a_setup():
    return L(f"""
    s_and_b32 s{sFS}, s{sH}, 7
    s_mul_i32 s{sFS}, s{sFS}, 14
    s_lshr_b32 s64, s{sH}, 3
    s_mul_i32 s64, s64, 7
    s_add_u32 s{sFS}, s{sFS}, s64
    s_min_u32 s64, s{sJ7}, 6
    s_add_u32 s{sFS}, s{sFS}, s64
    s_sub_u32 s64, 6, s{sJ7}
    s_and_b32 s{sMK}, s64, {OOB}
    s_mul_i32 s{sLD}, s{sWAVE}, 7168
    s_add_u32 s{sLD}, s{sLD}, {LB}
    s_cmp_lt_u32 s{sWAVE}, 2
    s_cselect_b64 s[72:73], s[80:81], s[82:83]
    {srd(60, 72, 448*3584)}
    {srd(68, 84, 1792*896)}
    s_and_b32 s64, s{sFS}, 3
    s_lshl_b32 s64, s64, 1
    s_and_b32 s65, s{sWAVE}, 1
    s_add_u32 s64, s64, s65
    s_mul_i32 s89, s64, {56 * 3584}
    s_lshr_b32 s64, s{sFS}, 2
    s_lshl_b32 s64, s64, 7
    s_add_u32 s89, s89, s64
    v_lshrrev_b32 v28, 3, v0
    v_mul_u32_u24 v28, 3584, v28
    v_lshrrev_b32 v29, 4, v0
    v_lshlrev_b32 v29, 1, v29
    v_and_b32 v30, 7, v0
    v_xor_b32 v29, v29, v30
    v_lshl_add_u32 v25, v29, 4, v28
    v_or_b32 v25, s{sMK}, v25
    """)
def a_units(fl):
    return [hw.unit(1024 * n, 1, 60, 89, "HW", 8 * 3584, 25, fl) for n in range(7)]
def sel():
    out = L(f"v_mov_b32 v28, {LX}\nds_read_b128 v[16:19], v28\nds_read_b128 v[20:23], v28 offset:16") + [8]
    out += merge(16, 17, 18, 19, 28) + merge(20, 21, 22, 23, 29) + merge(16, 17, 20, 21, 28)
    out += L(f"""
    v_and_b32 v28, 1, v0
    v_cmp_eq_u32 vcc, 0, v28
    v_and_b32 v28, 4, v0
    s_and_b32 s64, s{sFS}, 3
    v_cndmask_b32 v24, v17, v16, vcc
    v_cmp_eq_u32 vcc, 0, v28
    v_and_b32 v24, 0x7ff, v24
    v_sub_u32 v24, 2047, v24
    v_cndmask_b32 v28, v17, v16, vcc
    v_and_b32 v28, 0x7ff, v28
    v_sub_u32 v28, 2047, v28
    s_mul_i32 s64, s64, 224
    v_mul_u32_u24 v28, 896, v28
    v_lshrrev_b32 v29, 4, v0
    v_lshl_add_u32 v28, v29, 3, v28
    v_and_b32 v30, 3, v0
    v_lshl_or_b32 v28, v30, 27, v28
    """) + [I(f"buffer_load_dwordx2 a[{208+2*k}:{209+2*k}], v28, s[56:59], s64 offen offset:{32*k}") for k in range(7)] + L(f"""
    v_lshrrev_b32 v28, 4, v24
    v_lshlrev_b32 v28, 5, v28
    v_and_b32 v30, 15, v24
    v_add_lshl_u32 v28, v28, v30, 2
    v_lshrrev_b32 v30, 1, v0
    v_min_u32 v30, 1, v30
    v_lshl_or_b32 v28, v30, 29, v28
    s_or_b32 s64, s{sJ7}, s{sWAVE}
    s_min_u32 s64, s64, 1
    s_lshl_b32 s64, s64, 29
    s_add_u32 s64, s64, {WS_RG}
    buffer_load_dword v27, v28, {WS}, s64 offen sc1
    v_lshrrev_b32 v28, 2, v0
    v_lshlrev_b32 v28, 7, v28
    v_and_b32 v30, 3, v0
    v_lshl_add_u32 v28, v30, 3, v28
    v_bfe_u32 v30, v0, 3, 2
    s_and_b32 s64, s{sWAVE}, 1
    s_lshl_b32 s64, s64, 1
    v_xor_b32 v30, s64, v30
    v_lshl_add_u32 v28, v30, 5, v28
    s_lshr_b32 s64, s{sWAVE}, 1
    s_mul_i32 s64, s64, 14336
    s_add_u32 s64, s64, {LB}
    v_add_u32 v30, s64, v28
    v_xor_b32 v31, 32, v30
    """)
    return out
def gemm():
    rounds = []
    for b in range(2):
        rd = [I(f"ds_read_b64_tr_b16 a[{176+14*b+2*k}:{177+14*b+2*k}], v{30+b} offset:{k*2048}") for k in range(7)]
        d = R("v", 16 + 4 * b, 4)
        mm = [I(f"v_mfma_f32_16x16x16_bf16 {d}, a[{208+2*k}:{209+2*k}], a[{176+14*b+2*k}:{177+14*b+2*k}], {d if k else '0'}") for k in range(7)]
        rounds.append((rd, mm))
    st = L(f"""
    v_cmp_gt_u32 vcc, 32, v0
    v_bfe_u32 v28, v0, 4, 1
    v_mul_u32_u24 v28, 7168, v28
    v_lshrrev_b32 v29, 5, v0
    v_lshl_add_u32 v28, v29, 6, v28
    v_and_b32 v29, 15, v0
    v_lshl_add_u32 v28, v29, 2, v28
    v_or_b32 v28, s{sMK}, v28
    s_and_b32 s64, s{sFS}, 3
    s_lshl_b32 s64, s64, 1
    s_lshr_b32 s65, s{sWAVE}, 1
    s_add_u32 s64, s64, s65
    s_mul_i32 s64, s64, 14336
    s_lshr_b32 s65, s{sFS}, 2
    s_lshl_b32 s65, s65, 1
    s_and_b32 s89, s{sWAVE}, 1
    s_add_u32 s65, s65, s89
    s_lshl_b32 s65, s65, 7
    s_add_u32 s64, s64, s65
    s_add_u32 s64, s64, {WS_HP}
    v_cndmask_b32 v16, v20, v16, vcc
    """) + [I(f"buffer_store_dword v16, v28, {WS}, s64 offen sc1", tag="HP")]
    return rounds, st
def a_flag():
    return L(f"""
    v_or_b32 v28, s{sWAVE}, v0
    v_min_u32 v28, 1, v28
    v_lshlrev_b32 v28, 29, v28
    v_or_b32 v28, s{sMK}, v28
    v_mov_b32 v29, 1
    s_lshl_b32 s64, s{sFS}, 2
    s_add_u32 s64, s64, {WS_FA}
    buffer_store_dword v29, v28, {WS}, s64 offen sc1
    """)
FA_LOAD = f"buffer_load_dword v16, v17, {WS}, s89 offen sc1"
def b_poll():
    return L(f"""
    v_min_u32 v17, 3, v0
    v_lshlrev_b32 v17, 2, v17
    s_and_b32 s89, s{sFS}, -4
    s_lshl_b32 s89, s89, 2
    s_add_u32 s89, s89, {WS_FA}
    {FA_LOAD}
    """)
def b_load():
    return L(f"""
    v_cmp_ne_u32 vcc, 1, v16
    v_bfe_u32 v28, v0, 1, 2
    v_mul_u32_u24 v28, 28672, v28
    s_cbranch_vccnz L_has
    L_har:
    v_and_b32 v29, 1, v0
    v_mul_u32_u24 v29, 7168, v29
    v_lshrrev_b32 v30, 4, v0
    v_lshl_add_u32 v29, v30, 4, v29
    v_bfe_u32 v30, v0, 3, 1
    v_lshl_or_b32 v29, v30, 29, v29
    v_add_u32 v28, v28, v29
    s_lshl_b32 s64, s{sFS}, 6
    s_add_u32 s64, s64, {WS_HP}
    s_add_u32 s65, s64, 14336
    buffer_load_dwordx4 v[16:19], v28, {WS}, s64 offen sc1
    buffer_load_dwordx4 v[24:27], v28, {WS}, s65 offen sc1
    """)
def down_dma():
    pre = L(f"""
    s_mul_i32 s67, s{sFS}, {16 * 896}
    s_mul_i32 s64, s{sWAVE}, 224
    s_add_u32 s67, s67, s64
    v_lshrrev_b32 v28, 4, v0
    v_mul_u32_u24 v28, 896, v28
    v_and_b32 v29, 15, v0
    v_lshl_add_u32 v28, v29, 4, v28
    v_add_u32 v29, 2, v29
    v_lshrrev_b32 v29, 4, v29
    v_lshl_or_b32 v28, v29, 29, v28
    v_add_u32 v29, {4 * 896 - 1024}, v28
    v_add_u32 v30, {2 * (4 * 896 - 1024)}, v28
    v_add_u32 v31, {3 * (4 * 896 - 1024)}, v28
    """)
    return pre, hw.unit(0, 4, 68, 67, "HD", 0)
def sel_store():
    return L(f"""
    v_cvt_pk_bf16_f32 v27, v27, v27
    v_and_b32 v27, 0xffff0000, v27
    """) + sigmoid(27, 28) + L(f"""
    s_or_b32 s64, s{sJ7}, s{sWAVE}
    s_min_u32 s64, s64, 1
    s_lshl_b32 s64, s64, 29
    v_lshrrev_b32 v28, 1, v0
    v_min_u32 v28, 1, v28
    v_lshlrev_b32 v28, 29, v28
    v_lshl_or_b32 v28, v0, 2, v28
    v_or_b32 v28, s64, v28
    v_cvt_pk_bf16_f32 v27, v27, v27
    v_and_b32 v27, 0xffff0000, v27
    s_lshl_b32 s64, s{sH}, 7
    s_add_u32 s64, s64, {WS_SEL}
    buffer_store_dword v24, v28, {WS}, s64 offen sc1
    buffer_store_dword v27, v28, {WS}, s64 offen offset:8 sc1
    """)
def down_reads():
    return L(f"""
    v_lshrrev_b32 v28, 2, v0
    v_lshlrev_b32 v28, 8, v28
    v_and_b32 v29, 3, v0
    v_lshl_add_u32 v28, v29, 3, v28
    v_add_u32 v28, s{sLD}, v28
    """) + [WAITV("HD")] + [I(f"ds_read_b64_tr_b16 a[{208+2*m}:{209+2*m}], v28 offset:{32*m}") for m in range(7)]
def act():
    out = []
    for sh in (4, 2): out += [I(f"v_add_f32 v{r}, v{r}, v{r} row_shl:{sh} row_mask:0xf bank_mask:0xf bound_ctrl:0") for r in (16, 17, 18, 19, 24, 25, 26, 27)]
    out += rnd2(16, 17, 28) + rnd2(18, 19, 29) + rnd2(24, 25, 30) + rnd2(26, 27, 31)
    out += [I(f"v_mul_f32 v{28+e}, 0xbfb8aa3b, v{16+e}") for e in range(4)]
    out += [I(f"v_exp_f32 v{28+e}, v{28+e}") for e in range(4)]
    out += [I(f"v_add_f32 v{28+e}, 1.0, v{28+e}") for e in range(4)]
    out += [I(f"v_rcp_f32 v{28+e}, v{28+e}") for e in range(4)]
    out += [I(f"v_mul_f32 v{16+e}, v{28+e}, v{16+e}") for e in range(4)]
    out += rnd2(16, 17, 28) + rnd2(18, 19, 29)
    out += [I(f"v_mul_f32 v{16+e}, v{24+e}, v{16+e}") for e in range(4)]
    out += L("v_and_b32 v25, 14, v0\nv_cvt_pk_bf16_f32 v16, v16, v17\nv_cmp_eq_u32 vcc, 0, v25\nv_cvt_pk_bf16_f32 v17, v18, v19\ns_nop 0\nv_cndmask_b32 v16, 0, v16, vcc\nv_cndmask_b32 v17, 0, v17, vcc")
    return out
```

```python
import sys, re
from att5 import *
import hw2, warm, ldscheck, att, att5, kvq, kv5, side, side5, hw, asmlib
from kv5 import K, QR, QPhase, kacc
opt = dict(stamp="0", v="1", thr=str(2.0 ** 24), low=str(2.0 ** -24), fine="0", no="18", hpad="0", vpad="0", opad="0", kvonly="0", thin="0", h2="0", hk="20", hg="50,100,70,50", xm="0", qks="1", pvs="1", xsn="1", uw=",0000,ef0001,g111111,2222", jit="0", eo="1", rfl="sc1,sc1", ofl="sc1", emu="0", nc="0", cf="nt", nw="0", t0="79", wqg="41,9", idt="-", idq="-", qw="2,0,0,0,0,0,0", q0s="0", selq="1", rw2="10,60", skip="", hw="6,8,10,12,14,16,17", rgo="1", p2="0", p8="00112233", xl="0040", nr="8", noadd="0", tl="1", nochk="0", rd="0", rdg="60", ct0="13", wn="2,3,4,5", wh1="6,7", wh2="8,9,10,11", pg="50", sent="0", half="1", mkg="40,60", dbg="-", r3w="0", rfive="0", relay="0", tR="4", rq="8,0,12,12,8,8,8", rh="8,8,8,8,8", rw="2", w8="0", fl_="", hmap="0", tH="-", tHg="90", hnt="nt", ne="6", efg="52", idle="", lc="0", n4="8", share="0", pv2="6", nrm="0", pv1="4", tidy="1", pk="12", olo="2", d3w="4", five="1", tlb="-", kvd="6", warm="a", na="8", te1="6:5:13", ip="", ipd="2048", dr="3,44,51,108,0", twg="80", us="", wi="", rt="1", ht="0", xr="100", nost="0",
           tg="113", tcq="99", tc="", tQ="7", lag="3", lag2="11", lagv="8", ke="27", q0="2223333333444444455@99:555556666666777@211:7777", qsep="4", tX="", tW="3,4,5,6", kw="3,3,2", sw="10,60", dh="30,30,30", l2="4", qf="176", qd="0,0,0,0,14", qk="4444", qv="3320", qp="14,122,234,346", ssep="24", n15="8,8",
           fl="200", fc="240", fv="395", s15="12,90", sq="2,400", sqv="200", vq="0,0", vp="3,3,3,4,3", l1="20", pfg="30", wq="8,0,12,16,8,8", wh="8,4,16,16,12", tw="9", odh="45", fpl="20", fpc="0", pl="56")
for a in sys.argv[1:]:
    k, v = a.split("="); assert k in opt, k; opt[k] = v
STAMP = opt["stamp"] in "12"; LIGHT = opt["stamp"] == "2"
ints = lambda k: [int(x) for x in opt[k].split(",")]
kv5.DR[:] = ints("dr")
asmlib.TIDY = opt["tidy"] == "1"
pairs = lambda k: [tuple(int(y) for y in x.split(':')) for x in opt[k].split(',') if x]
asmlib.SHARE = {"0": (), "1": ("dma", "vld"), "2": ("dma", "vld", "vst")}[opt["share"]]
side5.NE = int(opt["ne"])
side5.FINE = "9" in opt["fine"]
side5.PK = int(opt["pk"])
hw.HNT = opt["hnt"]
RELAY = att5.RELAY = opt["relay"] != "0"; side5.NAT = not RELAY; LATER = opt["relay"] == "2"
if RELAY and not LATER: opt["tW"] = ""
side5.POLL2 = int(opt["p2"])
kv5.T0 = int(opt["t0"])
kv5.NC, kv5.CF, kv5.NW = int(opt["nc"]), opt["cf"].replace("+", " "), int(opt["nw"])
side5.RFL = opt["rfl"].replace("+", " ").split(",")
att.PVS = opt["pvs"] == "1"; kv5.XSN = opt["xsn"] == "1"
att.QKS = att5.QKS = opt["qks"] == "1"; att5.PVS = att.PVS = opt["pvs"] == "1"
QPhase.XM = XM = opt["xm"] == "1"; QO = (1, 0) if XM else (0, 1)
side.NTT = ""; side.RNT = ""
X.update(wide=1, ls=1, r3=0, r3x='-')
sMODE, sH, sJ, sVD, sSTK, sFL = 40, 41, 42, 43, 44, 45
sKV, sMLD, sNC = 45, 39, 35
NO = int(opt['no']); assert NO % 2 == 0
JH = NO // 2
aST = 250
THIN = opt['thin'] == '1'
H2 = int(opt['h2'])
UW = opt['uw'].split(',')
SENT = opt['sent'] == '1'; HALF = opt['half'] == '1'
RW = opt['rw'] != '0'
JY = 7 if NO == 16 else 6; TY = JY - 5
WARM = opt['warm'] != '0'
def wev(key, names):
    return warm.event(A.sWAVE, warm.spread(names)) if WARM and key in opt['warm'] else []
wsite = lambda n: warm.site(n) if WARM else []
OOB = side.OOB
def stamp(t=16, force=False):
    if not STAMP or (LIGHT and not force): return []
    return L(f"""s_memrealtime s[36:37]
    s_memtime s[98:99]
    v_accvgpr_read_b32 v{t}, a{aST}
    v_accvgpr_read_b32 v{t+1}, a{aST+1}
    s_mov_b32 s100, m0
    s_mov_b32 m0, s{sSTK}
    s_waitcnt lgkmcnt(0)
    v_writelane_b32 v{t}, s98, m0
    v_writelane_b32 v{t+1}, s36, m0
    s_add_u32 s{sSTK}, s{sSTK}, 1
    s_mov_b32 m0, s100
    v_accvgpr_write_b32 a{aST}, v{t}
    v_accvgpr_write_b32 a{aST+1}, v{t+1}""")
def stampa():
    if not STAMP or LIGHT: return []
    o = L("s_cselect_b32 s101, 1, 0\nv_accvgpr_write_b32 a252, v10\nv_accvgpr_write_b32 a253, v11") + stamp(10) + L("v_accvgpr_read_b32 v10, a252\nv_accvgpr_read_b32 v11, a253\ns_cmp_lg_u32 s101, 0")
    for i in o: i.extra["ghost"] = True
    return o
fs = lambda c: stampa() if c in opt['fine'] else []
def stamp0(t=26):
    if not STAMP: return []
    return L(f"""s_waitcnt lgkmcnt(0)
    v_mov_b32 v{t}, 0
    v_mov_b32 v{t+1}, 0
    v_writelane_b32 v{t}, s38, 0
    v_writelane_b32 v{t+1}, s46, 0
    s_mov_b32 s{sSTK}, 1
    v_accvgpr_write_b32 a254, v{t}
    v_accvgpr_write_b32 a{aST}, v{t}
    v_accvgpr_write_b32 a{aST+1}, v{t+1}""")
def fin():
    if not STAMP: return []
    return L("s_mov_b64 exec, -1\ns_waitcnt vmcnt(0) lgkmcnt(0)") + stamp(30, True) + L(f"""
        s_lshl_b32 s29, s2, 2
        s_add_u32 s29, s29, s{A.sWAVE}
        s_lshl_b32 s29, s29, 9
        s_add_u32 s29, s29, {WS_STAMP}
        v_lshrrev_b32 v10, 1, v{A.vL16}
        buffer_store_dwordx2 a[{aST}:{aST+1}], v10, {WSR}, s29 offen
        s_add_u32 s29, s29, {1 << 20}
        buffer_store_dword a254, v10, {WSR}, s29 offen
        """)
def dbg_out():
    if opt['dbg'] == '-': return []
    return L(f"""
    s_load_dwordx2 s[4:5], s[0:1], {A_DBG}
    v_accvgpr_read_b32 v11, a{aST+1}
    v_lshrrev_b32 v12, 4, v{A.vL16}
    v_not_b32 v13, v11
    v_cmp_eq_u32 vcc, 0, v12
    v_mov_b32 v14, s36
    s_nop 0
    v_cndmask_b32 v11, v11, v13, vcc
    v_cmp_eq_u32 vcc, 15, v12
    s_nop 1
    v_cndmask_b32 v11, v11, v14, vcc
    v_lshlrev_b32 v12, 2, v12
    s_waitcnt lgkmcnt(0)
    {srd(12, 4, 64)}
    s_cmp_eq_u32 s{sJ}, {opt['dbg']}
    s_cselect_b32 exec_lo, 0xffff, 0
    s_or_b32 exec_lo, exec_lo, 0x8001
    s_mov_b32 exec_hi, 0
    buffer_atomic_umax v11, v12, s[12:15], 0 offen
    """)
EXIT = lambda: fin() + dbg_out() + L("s_endpgm")

_jn = [0]
def jitter():
    if opt['jit'] == '0': return []
    _jn[0] += 1; n = _jn[0]
    a = (int(opt['jit']) * 40503 + n * 2654435761) & 0xffff | 1
    o = L(f"""s_mul_i32 s98, s2, {a}
    s_mul_i32 s99, s{A.sWAVE}, {(a * 7 + 3) & 0xff if n & 1 else 0}
    s_add_u32 s98, s98, s99
    s_bfe_u32 s98, s98, 0x20005
    s_cmp_lg_u32 s98, 0
    s_cbranch_scc1 L_jt{n}
    s_sleep 120
    L_jt{n}:""")
    return o
def entry(c):
    c.block("entry", f"""
    s_cmp_lt_u32 s2, 256
    s_cbranch_scc1 L_go
    s_endpgm
    L_go:
    {"s_memrealtime s[46:47]" + chr(10) + "s_memtime s[38:39]" if STAMP else ""}
    s_load_dwordx8 s[80:87], s[0:1], {A_X}
    s_load_dwordx4 s[88:91], s[0:1], {A_WUV}
    s_getpc_b64 s[76:77]
    L_pc0:
    s_lshr_b32 s{sJ}, s2, 3
    s_mov_b32 s79, 0x20000
    s_lshl_b32 s67, s{sJ}, 13
    s_mov_b32 s78, L_code_end-L_pc0
    s_and_b32 s77, s77, 0xffff
    v_lshl_add_u32 v31, v0, 5, s67
    """, side.touch(31, 76, 0, nt=False), f"""
    v_lshrrev_b32 v24, 6, v0
    v_and_b32 v0, 63, v0
    s_and_b32 s{sH}, s2, 7
    v_readfirstlane_b32 s{K.sWAVE}, v24
    s_lshr_b32 s64, s2, 4
    v_and_b32 v24, 15, v0
    v_lshrrev_b32 v25, 4, v0
    s_and_b32 s64, s64, 8
    s_or_b32 s{sH}, s{sH}, s64
    v_lshlrev_b32 v28, 1, v25
    v_xor_b32 v28, v28, v24
    v_and_b32 v29, 8, v28
    v_and_b32 v28, 7, v28
    v_lshlrev_b32 v28, 4, v28
    v_lshl_add_u32 v28, v29, 5, v28
    v_lshl_add_u32 v28, v25, 13, v28
    s_lshl_b32 s64, s{K.sWAVE}, 17
    v_add_u32 v{K.vWD}, s64, v28
    v_xor_b32 v28, 0x100, v{K.vWD}
    v_add_u32 v{K.vWD+1}, {4*8192 - 1024}, v{K.vWD}
    v_add_u32 v{K.vWD+2}, {8*8192 - 2048}, v28
    v_add_u32 v{K.vWD+3}, {12*8192 - 3072}, v28
    s_mov_b32 s{K.sWOFF}, 0
    s_lshl_b32 s{K.sM0W}, s{K.sWAVE}, 12
    s_lshl_b32 s74, s{sH}, 9
    s_sub_u32 s{K.S_W+2}, {1024*8192}, s74
    s_mov_b32 s{K.S_W+3}, s79
    s_bitcmp0_b32 s2, 6
    s_cselect_b64 s[72:73], s[86:87], s[88:89]
    s_add_u32 s{K.S_W}, s72, s74
    s_addc_u32 s73, s73, 0
    s_and_b32 s{K.S_W+1}, s73, 0xffff
    """, kv5.unit_w(0), f"""
    s_and_b32 s{sJ}, s{sJ}, 15
    s_lshr_b32 s{sKV}, s{sJ}, 3
    s_and_b32 s65, s{K.sWAVE}, 1
    s_lshr_b32 s66, s{K.sWAVE}, 1
    v_and_b32 v29, 7, v0
    v_xor_b32 v28, v25, v29
    v_lshlrev_b32 v28, 4, v28
    v_lshrrev_b32 v29, 3, v0
    v_lshl_add_u32 v30, v29, 11, v28
    s_lshl_b32 s64, s66, 19
    s_lshl_b32 s67, s65, 21
    s_add_u32 s64, s64, s67
    v_add_u32 v{K.vCD}, s64, v30
    v_xor_b32 v30, 64, v{K.vCD}
    v_add_u32 v{K.vCD+2}, {16*2048 - 2048}, v{K.vCD}
    v_add_u32 v{K.vCD+1}, {8*2048 - 1024}, v30
    v_add_u32 v{K.vCD+3}, {24*2048 - 3072}, v30
    s_mov_b32 s{K.sCOFF}, 0
    s_add_u32 s{K.sM0C}, s{K.sM0W}, 65536
    s_and_b32 s64, s{sJ}, 7
    s_lshl_b32 s64, s64, 16
    s_sub_u32 s{K.S_C+2}, {2048*2048}, s64
    s_mov_b32 s{K.S_C+3}, s79
    s_add_u32 s{K.S_C}, s82, s64
    s_addc_u32 s73, s83, 0
    s_and_b32 s{K.S_C+1}, s73, 0xffff
    """, *((kv5.unit_w(1), kv5.unit_c(0)) if opt['eo'] == '1' else (kv5.unit_c(0), kv5.unit_w(1))), f"""
    s_load_dwordx2 s[92:93], s[0:1], {A_WR}
    s_load_dwordx2 s[94:95], s[0:1], {A_GW}
    s_load_dwordx4 s[4:7], s[0:1], {A_DBG}
    """, stamp0(28), stamp(28), f"v_lshlrev_b32 v{K.vST}, 4, v0", kvq.addr_rd(), f"""
    {srd(K.S_X, 80, 2048*896)}
    {srd(60, 92, 896)}
    {srd(68, 94, 896)}
    s_lshl_b32 s95, s{K.sWAVE}, 11
    s_lshr_b32 s64, s2, 3
    s_lshl_b32 s64, s64, 13
    s_add_u32 s95, s95, s64
    {srd(K.S_WS, 6, 1 << 28)}
    {srd(K.S_DBG, 4, 256)}
    s_add_u32 s72, s84, s74
    s_addc_u32 s73, s85, 0
    s_sub_u32 s75, {448*8192}, s74
    {srd(K.S_WQ, 72, "s75")}
    s_mul_i32 s{K.sXOFF}, s{sJ}, {128*896}
    s_mov_b32 s{K.sSC}, {hex(f2u(LOG2E_16))}
    s_mul_i32 s72, s{sKV}, {WS_V}
    s_mul_i32 s73, s{sH}, {HS}
    s_add_u32 s72, s72, s73
    s_bfe_u32 s64, s{sJ}, 0x20001
    s_lshl_b32 s64, s64, 15
    s_add_u32 s72, s72, s64
    s_lshl_b32 s64, s66, 17
    s_add_u32 s72, s72, s64
    s_and_b32 s67, s{sJ}, 1
    s_cmp_eq_u32 s{sKV}, 0
    s_cselect_b32 s64, 12, 14
    s_cselect_b32 s75, 14, 10
    s_lshl_b32 s67, s67, s75
    s_add_u32 s72, s72, s67
    s_lshl_b32 s64, s65, s64
    s_add_u32 s{K.sOOFF}, s72, s64
    """, side.h_touch_srd(), f"s_load_dwordx2 s[96:97], s[0:1], {A_OUT}", f"s_cmp_eq_u32 s{sKV}, 0\ns_cbranch_scc0 L_kv1" + ("\ns_branch L_kv0" if WARM else ""))

FL_LOAD = lambda: I(f"buffer_load_dword v{A.vRL}, v9, {WSR}, s46 offen sc1")
FP_LOAD = lambda: I(f"buffer_load_dword v{A.vRL + 1}, off, {WSR}, s47 sc1")
def level(val, t): return L(f"v_mov_b32 v{t}, {val}") + [side.flag_store(sFL, A.vF0, t)]
def lcheck(val, n): return L(f"v_cmp_gt_u32 vcc, {val}, v{A.vRL}\ns_cbranch_vccnz L_ls{n}\nL_lr{n}:")
LSPIN = {}; WSPIN = {}
PBASE = lambda: L(f"""
    s_lshl_b32 s86, s{A.sWAVE}, 14
    s_add_u32 s86, s86, s{A.sPO}
    s_add_u32 s87, s86, 4096
    s_add_u32 s88, s86, 8192
    s_add_u32 s89, s86, 12288
    s_lshl_b32 s90, s{A.sWAVE}, 10
    s_add_u32 s90, s90, s{A.sPO}
    s_add_u32 s90, s90, 65536
    """)

class KVStore:
    def __init__(self, vt):
        self.prs = kv5.kv_pairs(vt); self.reg = {}; self.src = {}
    def st(self, n, tag, reg=None, newpage=True):
        off = self.prs[n][2]
        s = I(f"buffer_store_dwordx4 {reg or self.reg[n]}, v{K.vST}, {WSR}, s3 offen offset:{off & 0xfff} sc1", tag=tag)
        if not reg: dep(s, *self.src[n])
        if opt['nost'] == '1': return []
        if opt['nost'] == '2': s.text = s.text.replace(" sc1", "")
        return ([I(f"s_add_u32 s3, s{K.sOOFF}, {off & ~0xfff}")] if newpage else []) + [s]
    def many(self, ns, tag, regf=None):
        out = []; cur = None
        for n in ns:
            pg = self.prs[n][2] >> 12
            out += self.st(n, tag(n) if callable(tag) else tag, regf(n) if regf else None, pg != cur); cur = pg
        return out

def win_qk1(vslot, v4, stub, extra=lambda s: None, tags=(), post=()):
    g = Gaps(qk_mfmas(1, C0, alt=True))
    tile_reads(g, lambda b: rd_batch(KSLOT[1], b), rd_batch(vslot, 0, v4), [("T", vslot)] + list(tags))
    s = Sched(g).add(dma_flat(KSLOT[0], A.sK) + adv_k(), 1, ints('dh')[1])
    if post: s.add(post, 48, 52, asap=True)
    s.add([I(f"v_mov_b32 v{r}, 0") for r in [A.vLS, A.vLS + 1] + list(range(A.vNM, A.vNM + 8))] + [By(56)], 4, 50)
    extra(s); s.run()
    put_tail(g, sched_sm(g, softmax_groups(0, 1), 0, 54), check_first(f"L_st{stub}"))
    return g.flat() + L(f"L_rt{stub}:"), None
def win_pv0(vslot, v4, extra=lambda s: None, tags=(), post=(), sel=True):
    g = Gaps(pv_mfmas(0, zero=True))
    tile_reads(g, lambda b: rd_batch(vslot, b, v4), rd_batch(KSLOT[0], 0), [("T", KSLOT[0])] + list(tags))
    s = Sched(g).add(dma_flat(KSLOT[1], A.sK) + adv_k(), 1, ints('dh')[2])
    if post: s.add(post, 48, 52, asap=True)
    if sel and opt['selq'] == '0': s.add(selm(A.vX + 1), 30, 62)
    extra(s); s.run()
    sched_sm(g, softmax_groups(1, 0), 0, 60, add_l(0))
    return g.flat()
def win_qk(b, stub, extra=lambda s: None, tags=(), post=(), dma2=()):
    g = Gaps(qk_mfmas(1 - b, lambda kb, qb: NMq(qb), alt=True))
    tile_reads(g, lambda n: rd_batch(KSLOT[1 - b], n), rd_batch(VSLOT[b], 0), [("T", VSLOT[b])] + list(tags))
    s = Sched(g).add(dma_flat(VSLOT[1 - b], A.sV) + adv_v() + list(dma2), 1, 60 if dma2 else ints('dh')[2])
    if post: s.add(post, 48, 52, asap=True)
    extra(s); s.run()
    put_tail(g, sched_sm(g, softmax_groups(b, 1), 0, 56), check(b, f"L_st{stub}"))
    return g.flat() + L(f"L_rt{stub}:")
def win_pv(b, extra=lambda s: None, tags=(), post=()):
    g = Gaps(pv_mfmas(b))
    tile_reads(g, lambda n: rd_batch(VSLOT[b], n), rd_batch(KSLOT[b], 0), [("T", KSLOT[b])] + list(tags))
    s = Sched(g).add(dma_flat(KSLOT[1 - b], A.sK) + adv_k(), 1, ints('dh')[2])
    if post: s.add(post, 48, 52, asap=True)
    extra(s); s.run()
    sched_sm(g, softmax_groups(1 - b, 0), 0, 60, add_l(b))
    return g.flat()
HELPER_K = lambda: L(f"""
    s_mul_i32 s{A.sK}, s{sH}, {HS}
    s_add_u32 s{A.sK}, s{A.sK}, {NO * 32768}
    s_lshl_b32 s84, s{sJ}, 1
    s_sub_u32 s{A.sKcnt}, {30 - NO - 1}, s84
    {f's_lshl_b32 s{A.sKn1}, s{sH}, 18' + chr(10) + f's_add_u32 s{A.sKn1}, s{A.sKn1}, {WS_WO}' if RELAY else f's_mov_b32 s{A.sKn1}, {OOB}'}
    """)

def r5_loads():
    o = side.r4_loads()
    for i in o:
        m = re.match(r"buffer_load_dwordx4 v\[(\d+):", i.text)
        if m: i.text = i.text.replace(f"v[{m.group(1)}:{int(m.group(1)) + 3}]", f"a[{int(m.group(1)) + 136}:{int(m.group(1)) + 139}]"); i.parse()
    return o
def r5_compute():
    out = [I(f"v_mov_b32 v{16+r}, 0") for r in range(8)]
    for w in range(4):
        out += L(f"v_accvgpr_read_b32 v28, a{192+w}\nv_accvgpr_read_b32 v29, a{196+w}")
        for r in (0, 2):
            out += L(f"""v_accvgpr_read_b32 v30, a{176+4*r+w}
            v_accvgpr_read_b32 v31, a{180+4*r+w}
            v_dot2c_f32_bf16 v{16+r}, v30, v28
            v_dot2c_f32_bf16 v{20+r}, v30, v29
            v_dot2c_f32_bf16 v{17+r}, v31, v28
            v_dot2c_f32_bf16 v{21+r}, v31, v29""")
    if opt['rw'] == '2':
        out = out[:8]
        for w in range(4):
            out += L(f"v_accvgpr_read_b32 v28, a{192+w}\nv_accvgpr_read_b32 v29, a{196+w}\nv_lshlrev_b32 v24, 16, v28\nv_lshlrev_b32 v25, 16, v29\nv_and_b32 v28, 0xffff0000, v28\nv_and_b32 v29, 0xffff0000, v29")
            for r in range(4):
                out += L(f"""v_accvgpr_read_b32 v30, a{176+4*r+w}
                v_lshlrev_b32 v31, 16, v30
                v_and_b32 v30, 0xffff0000, v30
                v_fmac_f32 v{16+r}, v31, v24
                v_fmac_f32 v{20+r}, v31, v25
                v_fmac_f32 v{16+r}, v30, v28
                v_fmac_f32 v{20+r}, v30, v29""")
    tail = side.r4_compute()[40:]
    for i in tail:
        i.text = re.sub(r"v(\d+)", lambda m: "v%d" % ({80: 28, 81: 29, 82: 30}.get(int(m.group(1)), int(m.group(1)) - 56) if int(m.group(1)) >= 72 else int(m.group(1))), i.text); i.parse()
    return out + [2] + tail
def act5():
    o = hw.s7_act()
    k = [n for n, i in enumerate(o) if not isinstance(i, int) and i.text.startswith("s_or_b32 s64, s86")][0]
    o[k] = I(f"s_or_b32 s64, s31, s{K.sWAVE}")
    k = [n for n, i in enumerate(o) if not isinstance(i, int) and i.text.startswith("s_mov_b32 s64, %d" % WS_SEL)][0]
    o[k:k + 1] = L(f"s_lshl_b32 s64, s{sH}, 7\ns_add_u32 s64, s64, {WS_SEL}")
    return o
def down5(ra=176, rd=192):
    pre = hw.s8_down()[0]
    ms = []
    for m in range(7):
        b = 16 + 2 * (m & 1); nb = 16 + 2 * (1 - (m & 1))
        ms.append([I(f"v_mfma_f32_16x16x16_bf16 a[{rd}:{rd+3}], a[{ra+2*m}:{ra+1+2*m}], v[{b}:{b+1}], {R('a', rd, 4) if m else '0'}")] +
                  ([I(f"v_mov_b32 v{nb + e}, v{b + e} row_shr:2 row_mask:0xf bank_mask:0xf bound_ctrl:0") for e in range(2)] if m < 6 else []))
    adr = L(f"""
    v_and_b32 v29, 1, v0
    v_mul_u32_u24 v30, 1792, v29
    v_lshrrev_b32 v31, 4, v0
    v_lshl_add_u32 v30, v31, 4, v30
    v_bfe_u32 v29, v0, 1, 3
    v_lshl_add_u32 v30, v29, 6, v30
    v_add_u32 v29, 1, v29
    v_lshrrev_b32 v29, 3, v29
    v_lshl_or_b32 v30, v29, 29, v30
    v_or_b32 v30, s{hw.sMK}, v30
    s_mul_i32 s89, s{hw.sFS}, 3584
    s_mul_i32 s64, s{K.sWAVE}, 448
    s_add_u32 s89, s89, s64
    s_add_u32 s89, s89, {WS_Y}
    buffer_store_dwordx4 a[{rd}:{rd+3}], v30, {WSR}, s89 offen sc1
    """)
    return pre, ms, adr
def front(c, vt):
    frags = [kvq.rd_c(0, 0, 0, 0), kvq.rd_c(0, 0, 0, 1)] + kv5.rd_w_unit(0, 0, 0) + kv5.rd_w_unit(0, 1, 1)
    rt, ht = int(opt['rt']) == vt, int(opt['ht']) == vt
    qt = not ht
    if 'h' in opt['skip']: ht = False
    if 'r' in opt['skip']: rt = False
    side.sJ = hw.sJ = 31; rl = (r5_loads() if RW else side.r4_loads()) if rt else []; side.sJ = sJ
    RD = int(opt['rd']) if RW else 0
    rl_late = rl if RD else []
    if RD: rl = []
    out = L(f"s_and_b32 s31, s{sJ}, 7") + (side.z_store()[:-3] + rl + side.z_store()[-3:] if vt == 0 else rl) + (kv5.unit_c(1) + kv5.unit_w(2) if kv5.T0 else kv5.unit_w(2) + kv5.unit_c(1))
    out += jitter() + wev('a', [f"kv{vt}{p}" for p in range(1, min(1 + int(opt["na"]), 12 + vt))])
    out += [WAITV([("W", 1), ("C", 0), ("W", 0)], lgkm0=True), I("s_barrier")] + stamp(26) + frags
    if rt and not RW: out += side.r4_compute()
    out += [NEED(R("a", kv5.wfrag(0, 0, 0), 8), R("a", 160, 8))]
    tQ = int(opt["tQ"])
    xl = {}; uq = {u: 0 for u in range(8)}
    def items(spec, sep=0):
        o = []
        for n, seg in enumerate(spec.split("@")):
            if n:
                k, seg = seg.split(":"); o.append(At(int(k)))
            for ch in seg:
                if ch in 'abcdefg': o += kv5.x_dma(ord(ch) - 97)
                elif ch in 'ABCDEFG': o += kv5.x_read(ord(ch) - 65, xl)
                else:
                    u = int(ch); d = kv5.wq_dma(u, uq[u]); uq[u] += 1
                    o += [Sep(max(sep - 2, 0))] + d
        return o
    for t in range(15):
        dma = kv5.kv_dma(t)
        if ht and t == 2 and H2: hpre, uns = hw2.a_setup(), hw2.a_units(opt['hnt'])
        if ht and t == 9 and H2:
            dpre, un = hw2.down_dma(); dma[1] = dma[1] + [un]
        if ht and t == 2 and not H2:
            hpre, uns = hw.s1_weights()
            if opt['hmap'] == '1':
                k = [n for n, i in enumerate(hpre) if i.text.startswith(f"s_mul_i32 s{hw.sLD},")][0]
                hpre = L(f"""s_and_b32 s64, s{sH}, 7
                s_min_u32 s65, s64, 4
                s_mul_i32 s{hw.sFS}, s64, 12
                s_lshl_b32 s65, s65, 2
                s_add_u32 s{hw.sFS}, s{hw.sFS}, s65
                s_and_b32 s65, s{sH}, 8
                s_add_u32 s65, s65, s31
                s_add_u32 s{hw.sFS}, s{hw.sFS}, s65
                s_and_b32 s64, s64, 4
                s_sub_u32 s64, 15, s64
                s_sub_u32 s64, s64, s65
                s_and_b32 s{hw.sMK}, s64, {OOB}
                s_min_u32 s{hw.sFS}, s{hw.sFS}, 111""") + hpre[k:]
        if ht and t >= 2:
            for w_ in range(2):
                for n_, u_ in enumerate(ints('hw')):
                    if u_ == 2 * t + w_: dma[w_] = dma[w_] + [uns[n_]]
        if ht and t == 10 and not H2:
            dpre, un = hw.s6_down_dma(); dma[1] = dma[1] + [un]
        tR = int(opt['tR'])
        if RELAY and not LATER and not ht:
            if t == tR:
                side.sJ = 31; wpre, wun = side.wo2_dma(); wrd = side.wo2_reads(); side.sJ = sJ
            if t in (tR, tR + 1): dma[1] = dma[1] + [wun[t - tR]]
        late = t >= 12
        g = kv5.kv_tile(t, vt, [dma[0] if t == 12 else [], []] if late else dma)
        def fit(ins, k, pace=0):
            k, left = kvq.seq_fit(g, ins, k, pace); assert not left, (t, len(left)); return k
        def mm(ms, k):
            k |= 1
            for m in ms: g.put(k, m)
            return k
        tch = []
        if t == 12: xs_at = fit(kv5.x_setup(), 1) + 1; assert xs_at < 40
        if t in ints('tcq'): tch += side.c_touch(32, ints('tcq').index(t) + 1)
        if t == 0: fit(L("v_lshlrev_b32 v26, 7, v0\nv_and_b32 v27, %d, v0\nv_lshl_add_u32 v26, v27, 24, v26" % (56 if THIN else 48)), 50)
        if t == RD - 1 and rt and RD:
            for i in rl_late: i.text = i.text.replace("v32", "v27"); i.parse()
            fit(rl_late, int(opt['rdg']), 2)
        if t == 1 + RD and rt and opt['rw'] == '1': assert fit(r5_compute(), 2) < 108
        if rt and opt['rw'] == '2':
            if t == 1: rc = r5_compute(); fit(rc[:110], 2)
            if t == 2: assert fit(rc[110:], 2) < 108
        if t == 1 and vt == 0: fit(side.z_signal(), 112)
        if t == 2 + RD + (opt['rw'] == '2') and rt: KS_AT = fit(side.rg4_store(), 4, 1); assert KS_AT < 42
        if t == 8 and "ab"[vt] in opt['idle'] or str(t) == opt['idt']: out += L("s_sleep 32")
        if t == 3 - H2: fit(side.z_load(), 112 if H2 else 50)
        if t == 4 - H2:
            k = fit(side.z_check(vt), 100 if H2 else 112)
            if rt: fit(side.key4_store(), k + 1)
        if t == 5 and LATER: fit(L(srd(S_WO, 90, 4096 * 896)), 4)
        if t == 5 and not RELAY: fit(L(f"""s_mul_i32 s64, s{sH}, {256 * 896}
            s_add_u32 s72, s90, s64
            s_addc_u32 s73, s91, 0
            s_sub_u32 s75, {4096 * 896}, s64
            {srd(S_WO, 72, "s75")}"""), 4)
        if RELAY and not LATER and not ht:
            if t == tR: assert fit(L(srd(60, 90, 4096 * 896)) + wpre, 30) < 80
            if t == tR + 2: g.sc[110][0].tag = g.sc[110][0].tag + ["WO"]
            if t == tR + 3: assert fit(wrd, 2, 2) < 108
            if t in (tR + 4, tR + 5, tR + 6): fit([x for s_ in side.wo2_stores()[{0: 0, 1: 3, 2: 5}[t - tR - 4]:{0: 3, 1: 5, 2: 7}[t - tR - 4]] for x in s_ + [24]], 20)
        if qt:
            pre_, tl = side.q_touch3(K.S_WQ)
            if THIN:
                for i in pre_: i.text = i.text.replace("v_and_b32 v28, 48, v0", "v_and_b32 v28, 56, v0"); i.parse()
                tl = [[side.touch(23, K.S_WQ, 0, nt=False), I(f"v_add_u32 v23, {2 * 8192}, v23")] for n in range(7)]
            if t == tQ: fit(pre_, 60)
            if 0 <= t - tQ < len(tl): tch += tl[t - tQ]
        if ht and H2:
            if t == 2: fit(hpre, 42)
            if t == 5: fit(hw.s2_keys(), int(opt['hk']))
            if t == 6: assert fit(hw.s3_top2(), 10, 1) < 108
            hg = ints('hg')
            if t == 7:
                fit(hw2.sel(), 2); g.sc[110][0].tag = g.sc[110][0].tag + ["HW"]
            if t == 8:
                ((r0, m0), (r1, m1)), hst = hw2.gemm()
                k = fit(r0 + r1, hg[0]); k = mm(m0, k + 6); k = mm(m1, k + 4); fit(hst, k + 4)
            if t == 9:
                g.sc[110][0].tag = g.sc[110][0].tag + ["HP"]
                assert fit(dpre, 4) < 44
                fit(hw2.a_flag(), 112)
            if t == 10:
                k = fit(hw2.sel_store(), 2); k = fit(hw2.down_reads(), max(k + 1, 70)); assert k < 108; fit(hw2.b_poll(), max(k + 1, hg[1]))
            if t == 11: fit(hw2.b_load(), hg[2])
            if t == 12: fit(hw2.act(), max(xs_at, hg[3]))
            if t == 13:
                pre, ms, yadr = down5(208, 224); k = 0
                for m in ms: k = mm([m[0]], k + 1); k = fit(m[1:], k + 1)
                assert fit(yadr, k + 1) < 47
        if ht and not H2:
            if t == 2: fit(hpre, 42)
            if t == 6: fit(hw.s2_keys(), 64)
            if t == 7: assert fit(hw.s3_top2(), 10, 1) < 108
            if t == 8:
                sel = hw.s4_sel()
                k = [n for n, i in enumerate(sel) if not isinstance(i, int) and i.text.startswith(f"s_mov_b32 s64, {WS_RG}")][0]
                if opt['rgo'] == '1': sel[k:k + 1] = L(f"s_or_b32 s64, s31, s{K.sWAVE}\ns_min_u32 s64, s64, 1\ns_lshl_b32 s64, s64, 29\ns_add_u32 s64, s64, {WS_RG}")
                fit(sel, 4, 1)
            if t == 9:
                (r0, m0), (r1, m1) = hw.s5_gemm()
                k = fit([WAITV("HW")] + r0, 50); k = mm(m0, max(k + 6, 78)); k = fit(r1, k + 1); mm(m1, max(k + 6, 110))
            if t == 10: assert fit(dpre, 4) < 44
            if t == 11: fit(act5(), 2, 1)
            if t == 12:
                pre, ms, yadr = down5()
                k = fit(pre, xs_at)
                for m in ms: k = mm([m[0]], k + 2); k = fit(m[1:], k + 1)
                fit(yadr, k + 1)
        thin = lambda srd_, so: [side.touch(26, srd_, f"s{so}", nt=False)] + L(f"s_add_u32 s{so}, s{so}, {1024 if THIN else 2048}")
        if str(t) == opt['tH']:
            fit(L(f"""s_lshl_b32 s26, s2, 2
            s_add_u32 s26, s26, s{K.sWAVE}
            s_sub_u32 s25, s26, 448
            s_cselect_b32 s25, s26, s25
            s_cselect_b64 s[72:73], s[80:81], s[82:83]
            s_mul_i32 s25, s25, 3584
            {srd(32, 72, 448 * 3584)}
            v_lshlrev_b32 v27, 7, v0
            v_add_u32 v28, 4, v0
            v_lshrrev_b32 v28, 5, v28
            v_lshl_or_b32 v27, v28, 29, v27""") + [side.touch(27, 32, "s25", nt=False)], int(opt['tHg']))
        if str(t) == opt['tlb'][0]:
            tl_ = L(f"v_lshlrev_b32 v27, 21, v0\nv_min_u32 v28, 2, v0\nv_lshrrev_b32 v28, 1, v28\nv_lshl_or_b32 v27, v28, 29, v27")
            if 'x' in opt['tlb']: tl_ += [side.touch(27, K.S_X, f"s{K.sXOFF}", nt=False)]
            if 'q' in opt['tlb']: tl_ += [side.touch(27, K.S_WQ, 0, nt=False)]
            if 'k' in opt['tlb']: tl_ += L(f"s_mul_i32 s26, s{sH}, {HS}\nv_lshlrev_b32 v27, 24, v0\nv_min_u32 v28, 3, v0\nv_add_u32 v28, 1, v28\nv_lshrrev_b32 v28, 2, v28\nv_lshl_or_b32 v27, v28, 29, v27") + [side.touch(27, K.S_WS, "s26", nt=False)]
            fit(tl_, 60)
        xt = [int(x) for x in opt['tX'].split(",") if x]
        if xt and t == xt[0] // 2:
            assert fit(L(f"""s_lshl_b32 s26, s{sJ}, 1
            s_lshr_b32 s27, s{sH}, 3
            s_add_u32 s26, s26, s27
            s_lshl_b32 s26, s26, 2
            s_add_u32 s26, s26, s{K.sWAVE}
            s_mul_i32 s26, s26, 14336"""), 20) < 46
        if 2 * t in xt: fit(thin(K.S_X, 26), 48)
        if 2 * t + 1 in xt: tch += thin(K.S_X, 26)
        wt = [int(x) for x in opt['tW'].split(",") if x]
        if wt and qt:
            if t == wt[0]: fit(L(f"""s_and_b32 s27, s{sJ}, 7
                s_lshl_b32 s64, s{sH}, 3
                s_add_u32 s27, s27, s64
                s_lshl_b32 s27, s27, 2
                s_add_u32 s27, s27, s{K.sWAVE}
                s_mul_i32 s27, s27, 7168
                {srd(60, 90, 4096 * 896)}"""), 20)
            if t in wt: fit(thin(60, 27), int(opt['twg']))
        if str(t) in opt['tc'].split(','): tch += [side.touch(26, 76, 's95', nt=False)]
        if late:
            s = Sched(g); xr = int(opt['xr'])
            fl = lambda us: [i for u in us for i in u]
            if t == 12: s.add(items("a") + fl(dma[1]) + [By(110)], 49, 106, vmd=2)
            if t == 13:
                s.add(items("b") + fl(dma[0]) + [By(46)], 1, 42, vmd=2).add(items("c") + fl(dma[1]) + [At(72)] + items(UW[0]) + [By(110)], 49, 106, vmd=2)
                s.add(kv5.q_setup() + [By(70)], 48, 68)
                s.add(items("A") + [By(44), At(xr)] + items("B") + [By(108)], xr - 64, 100, asap=True)
            if t == 14:
                s.add(items("d") + fl(dma[0]) + items(UW[1]) + [By(46)], 1, 42, vmd=2).add(items(UW[2]) + [By(110)], 49, 106, vmd=2)
                s.add(items("C") + [By(44), At(xr)] + items("D") + [By(108)], xr - 64, 100, asap=True)
                s.add(kv5.q_setup2(), 50, 80)
            s.run()
        fit(tch, int(opt['tg']) - (10 if len(tch) > 8 else 0))
        out += g.flat()
        for ev in opt['te1'].split(","):
            te, p0, p1 = [int(x) for x in ev.split(":")]
            if t == te: out += wev('b', [f"kv{vt}{p}" for p in range(p0, min(p1, 12 + vt))])
        if t in (0, 1, 11, 14) or '1' in opt['fine']: out += stampa()
        if t in (0, 3, 5, 9, 14): out += jitter()
    g = kv5.kv_tile(15, vt, [[], []], endtags=[("U", 0), ("U", 1)])
    ks = KVStore(vt)
    lastw = {}
    for m in g.m:
        for r in m.writes: lastw[r] = m
    done_at = lambda n: max(p[0] * 16 + p[1] * 2 + 1 for p in ks.prs[n][:2]) + 4
    packs = {}
    for n, (ta, tb, off) in enumerate(ks.prs):
        ins, reg = kvq.pack(kacc(*ta), kacc(*tb), K.vT + (4 * (n & 1) if vt else 0))
        seen = set()
        for i in ins:
            for r in i.reads:
                if r in lastw and r not in seen: i.extra.setdefault("raw", {})[r] = lastw[r]
            seen |= set(i.writes)
        packs[n] = ins; ks.reg[n] = R("v", reg, 4); ks.src[n] = ins[-4:]
    qp = QPhase([32 + 4 * f for f in range(7)], [kacc(y, x)[1] for y in (3, 5) for x in range(8)] if vt else [kacc(y, x)[1] for y in (2, 3, 4, 5) for x in (1, 3, 5, 7)])
    qp.place_reads(g, 0, 112)
    g.put_s(127, qp.need(0, 0, 4))
    s = Sched(g)
    lo, hi = ints('s15'); st1 = []; cur = None
    for n in range(8):
        pg = ks.prs[n][2] >> 12
        st1 += [At(max(done_at(n), lo + n * (hi - lo) // 8 - 6))] + packs[n] + ks.st(n, "KV1", newpage=pg != cur); cur = pg
    s.add(st1 + [By(110)], 0, hi, asap=True)
    s.add(items(UW[3]) + [By(46)], 1, 42, vmd=2).add(items(UW[4]) + [By(108)], 49, 90)
    s.add(items("E") + [At(50)] + items("F") + [At(96)] + items("G") + [By(106)], 30, 100, asap=True)
    s.add([x for n in range(8, 32) for x in [At(done_at(n))] + packs[n]], 0, 127, asap=True)
    left = s.run(spill=True); assert not any(left[:4]), left
    carry = left[4]
    if '6' in opt['fine']:
        for k in range(31, 127, 32): g.ve[k] += stampa()
    out += g.flat() + fs('2')
    g = Gaps(qp.mfmas(xl))
    LV = {1: [("U", 2), ("U", 3)], 2: [("U", 4), ("U", 5)], 3: [("U", 6), ("U", 7)], 4: [("T", KSLOT[0])]}
    l2 = int(opt['l2']) if vt else 3
    LV[l2] = LV[l2] + ["KV2"]
    g.put_s(2, qp.need(0, 4, 7))
    for n in range(32):
        if n < 31: qp.place_reads(g, n + 1, 14 * n)
        else: put_batch(g, rd_batch(KSLOT[0], 0), 14 * n); g.put_s(14 * n + 13, need_batch(0))
        if n % 8 == 6:
            g.put_s(14 * n + 12, WAITV(LV[n // 8 + 1], lgkm0=True)); g.put_s(14 * n + 13, I("s_barrier"))
        elif n < 31:
            g.put_s(14 * n + 13, qp.need(n + 1, 0, 4)); g.put_s(14 * n + 16, qp.need(n + 1, 4, 7))
    QB = lambda x: 112 * x - 14
    setup = kv5.q_bank(1) + [By(90)] + side.lane0_wave0(A.vF0) + L(f"""
    v_min_u32 v9, 15, v0
    v_lshlrev_b32 v9, 7, v9
    s_sub_u32 s66, 15, s{sJ}
    s_max_u32 s67, s66, s{sJ}
    s_min_u32 s66, s66, s{sJ}
    s_mul_i32 s{A.sK}, s{sH}, {HS}
    s_lshl_b32 s64, s67, 16
    s_add_u32 s{A.sQ}, s{A.sK}, s64
    s_lshl_b32 s64, s{A.sWAVE}, 14
    s_add_u32 s{A.sQ}, s{A.sQ}, s64
    s_add_u32 s{A.sQ}, s{A.sQ}, {WS_Q}
    s_sub_u32 s64, s{sJ}, {JH + 1}
    s_and_b32 s{sNC}, s64, {OOB}
    v_or_b32 v6, s{sNC}, v{A.vL16}
    """) + [By(80)] + L(f"""
    s_lshl_b32 s{A.sM0}, s{A.sWAVE}, 13
    v_add_u32 v{A.vRD1}, 0x10000, v{A.vL16}
    v_add_u32 v{A.vDM0}, s{A.sM0}, v{A.vL16}
    v_add_u32 v{A.vDM1}, 0x1000, v{A.vDM0}
    s_lshl_b32 s64, s{sJ}, 16
    s_add_u32 s{A.sKn1}, s{A.sK}, s64
    s_add_u32 s{sVD}, s{A.sKn1}, {WS_V}
    s_add_u32 s{A.sV}, s{A.sK}, {WS_V}
    {f'''s_min_u32 s{A.sIT}, s{sJ}, {JH}
    s_lshl_b32 s{A.sKcnt}, s{A.sIT}, 1
    s_sub_u32 s{A.sKcnt}, s{A.sKcnt}, 1
    s_sub_u32 s{A.sIT}, s{A.sIT}, 2''' if vt else f'''s_mov_b32 s{A.sKcnt}, 0x7fff
    s_sub_u32 s{A.sIT}, s{sJ}, 1
    s_cmp_eq_u32 s{sJ}, 0
    s_cselect_b32 s64, 32768, 0
    s_add_u32 s{A.sV}, s{A.sV}, s64'''}
    s_mov_b32 s{A.sTHR}, {hex(f2u(float(opt['thr'])))}
    s_mov_b32 s{A.sLOW}, {hex(f2u(float(opt['low'])))}
    s_lshl_b32 s47, s66, 7
    s_add_u32 s47, s47, s46
    s_lshl_b32 s64, s{A.sWAVE}, 5
    s_add_u32 s47, s47, s64
    s_add_u32 s47, s47, 2048
    s_lshl_b32 s65, s{sH}, 3
    s_add_u32 s65, s65, s66
    s_mul_i32 s{A.sPO}, s65, {PO_STRIDE}
    s_add_u32 s{A.sPO}, s{A.sPO}, {WS_PO}
    s_lshl_b32 s65, s{sJ}, 4
    s_add_u32 s65, s65, s{sH}
    s_mul_i32 s{A.sOP}, s65, {OP_HEAD}
    s_mul_i32 s65, s{A.sWAVE}, 28672
    s_add_u32 s{A.sOP}, s{A.sOP}, s65
    s_add_u32 s{A.sOP}, s{A.sOP}, {WS_OP}
    {f's_or_b32 s{A.sOP}, s{A.sOP}, {OOB}' if ('k' in opt['wi'] and not vt) or ('v' in opt['wi'] and vt) else ''}
    s_mov_b32 s{A.sREQ}, 0
    s_mov_b32 s{A.sCHK}, {vt}
    s_mov_b32 s{sMODE}, 1
    s_cmp_eq_u32 s{A.sWAVE}, 0
    s_cselect_b32 s{sMLD}, {6 if vt else 7}, 4
    {'' if vt else f'''s_lshl_b32 s64, s{sH}, 1
    s_add_u32 s64, s64, s{A.sWAVE}
    s_cmp_lt_u32 s64, 30
    s_cselect_b32 s64, {0 if 'h' in opt['skip'] else (15 << TY) | (1 << 15)}, 0
    s_cmp_ge_u32 s{A.sWAVE}, 2
    s_cselect_b32 s64, s64, 0
    s_cmp_eq_u32 s{sJ}, {JY}
    s_cselect_b32 s64, s64, 0
    s_or_b32 s{sMLD}, s{sMLD}, s64'''}
    s_mov_b64 s[60:61], s[76:77]
    s_mov_b32 s62, s78
    s_mov_b32 s63, 0x20000
    v_lshrrev_b32 v24, 4, v0
    v_lshlrev_b32 v24, 2, v24
    v_and_b32 v25, 15, v0
    v_sub_u32 v24, v24, v25
    """) + [I(f"v_cmp_lt_i32 s[{A.sTRI[e]}:{A.sTRI[e]+1}], {-e}, v24") for e in range(4)] + side.code_addr(0, 25) + (selm(24) if opt['selq'] == '1' else []) + [By(int(opt['fl']) - 6)]
    dq = items(opt['q0'], int(opt['qsep'])) + L(f"v_mov_b32 v{A.vNEG}, 0xff800000")
    assert all(v == 7 for v in uq.values())
    W1 = f"buffer_load_dword v{A.vRL}, v31, {WSR}, s46 offen offset:4 sc1"
    wchk = lambda n, half: L(f"v_cmp_ne_u32 vcc, 1, v{A.vRL}\ns_nop 0\ns_cmp_lg_u32 vcc_{half}, 0\ns_cbranch_scc1 L_ws{n}\nL_wr{n}:")
    WSPIN[f"q{vt}"] = (W1, "lo"); WSPIN[f"r{vt}"] = (W1, "hi")
    dq2 = [At(int(opt['fl']) - 4)] + L(f"v_lshrrev_b32 v31, 6, v{A.vL16}\nv_bfe_u32 v28, v{A.vL16}, 4, 2\nv_lshlrev_b32 v31, 5, v31\nv_add_lshl_u32 v31, v31, v28, 2\n{W1}") + [At(int(opt['fc']))] + wchk(f"q{vt}", "lo") + dma_flat(KSLOT[0], A.sK) + adv_k()
    k1 = dma_flat(KSLOT[1], A.sK)
    dq2 += [At(QB(3))] + k1[:3] + L(W1) + k1[3:] + adv_k() + [At(int(opt['fv']))] + wchk(f"r{vt}", "hi") + dma_flat(4, A.sV) + adv_v()
    qout = []; qsts = []
    def qst(qb, kq): return [I(f"s_add_u32 s30, s{A.sQ}, {(qb * 8 + kq) >> 2 << 12}"), I(f"buffer_store_dwordx4 a[{Qreg(qb, kq)}:{Qreg(qb, kq)+3}], v6, {WSR}, s30 offen offset:{(kq & 3) * 1024} sc1", tag="QST")] if vt and opt['nost'] != '1' else []
    for cg in range(4):
        for p2 in range(2):
            for qb in QO:
                if (cg, p2) == (3, 1): continue
                ins, k = qp.out(cg, p2, qb, Qreg(qb, 2 * cg + p2))
                qout += [At(k + 4)] + ins
                qsts.append((ins[-1], qst(qb, 2 * cg + p2)))
                if qsts[-1][1]: dep(qsts[-1][1][-1], *ins[-4:])
    qlast = lambda: qp.out(3, 1, QO[0], Qreg(QO[0], 7))[0] + [By(4), At(1)] + qp.out(3, 1, QO[1], Qreg(QO[1], 7))[0] + [By(12)]
    nq = ints('qd')[4]
    qrest = [i for k, i in qsts[nq:]] + [qst(QO[0], 7), qst(QO[1], 7)]
    qw = ints('qw') if vt else [0] * 7; assert not vt or sum(qw) == len(qrest), len(qrest)
    qpart = lambda m: [x for i in qrest[sum(qw[:m]):sum(qw[:m + 1])] for x in i]
    uq_at = 82
    s = Sched(g)
    s.add(carry, 0, 40, asap=True)
    s.add(dq, 0, 240, asap=True, vmd=2).add(dq2, 0, 430, asap=True, vmd=int(opt['kvd']))
    kq = 8 + sum(int(x, 16) for x in opt['qk']); kw = ints('kw'); assert kq + sum(kw) == 32 and kw[2] <= 8
    plan = [int(x, 16) for x in opt['qv' if vt else 'qk']]; pos = ints('qp'); sts = []; n0 = 8
    for m, k in zip(plan, pos):
        sts += [At(k)] + [x for i in ks.many(range(n0, n0 + m), lambda n: "KV2" if n < 16 else "KV4") for x in ([Sep(int(opt['ssep'])), i] if i.kind != 'vst' else [i])]; n0 += m
    assert n0 == (16 if vt else kq)
    s.add(sts, 0, 447, asap=True)
    s.add(qout, 0, 447, asap=True)
    qd = ints('qd'); nq = qd[4]
    ready = [i for i in setup if isinstance(i, Inst) and i.text.startswith("v_or_b32 v6,")][0]
    for k, i in qsts:
        if i: dep(i[1], ready); dep(i[0], [x for x in setup if isinstance(x, Inst) and f"s{A.sQ}" in x.writes][-1])
    s.add([At(uq_at)] + [x for n, (k, i) in enumerate(qsts[:nq]) for x in [At(qd[n // 4]), Sep(int(opt['ssep'])), After(k)] + i], 0, 447, asap=True)
    s.add(setup, 20, int(opt['fl']) - 20)
    w1 = L(f"""s_mul_i32 s72, s{sH}, {FSTR}
    s_add_u32 s46, s72, {WS_FL}
    s_lshl_b32 s{sFL}, s{sJ}, 7
    s_add_u32 s{sFL}, s{sFL}, s46
    s_lshl_b32 s72, s{A.sWAVE}, 2
    s_add_u32 s72, s72, s{sFL}
    v_min_u32 v29, 1, v0
    v_lshlrev_b32 v29, 29, v29
    v_mov_b32 v30, 1""") + [At(int(opt['l1'])), WAITV("KV1"), I(f"buffer_store_dword v30, v29, {WSR}, s72 offen offset:4 sc1")]
    s.add(w1 + [At(QB(l2))] + level(2, 30), 0, 447, asap=True)
    s.run()
    if '6' in opt['fine']:
        for k in range(27, 447, 28): g.ve[k] += stampa()
    if '8' in opt['fine']:
        for k in range(213, 447, 14): g.ve[k].append(I("s_nop 0 ; us"))
    if 'q' in opt['warm']:
        k, p0 = ints('wqg'); g.ve[k] += wev('q', [f"kv{vt}{p}" for p in range(p0, 12 + vt)] + ([] if vt else []))
    if opt['idq'] != '-': g.ve[int(opt['idq'])].append(I("s_sleep 32"))
    if '7' in opt['fine']:
        for x in range(1, 5): g.ve[QB(x) - 3] += stampa(); g.ve[QB(x) - 1] += stampa()
    out += g.flat() + stamp(26) + (EXIT() if opt['kvonly'] == '2' else []) + jitter()
    init = lambda: [I(f"v_mov_b32 v{r}, 0") for r in [A.vLS, A.vLS + 1] + list(range(A.vNM, A.vNM + 8))]
    rd2 = lambda: L(f"v_add_u32 v16, 0x20000, v{A.vL16}")
    g = Gaps(qk_mfmas(0, C0, order=QO, asc0=True))
    tile_reads(g, lambda b: rd_batch(KSLOT[0], b), rd_batch(KSLOT[1], 0), [("T", KSLOT[1])])
    s = Sched(g).add(qlast() + [x for i in qpart(0) for x in ([Sep(int(opt['q0s'])), i] if i.kind != 'vst' else [i])], 0, 20, asap=True).add(dma_flat(VSLOT[1], A.sV) + adv_v(), 10, ints('dh')[0]).add(rd2(), 30, 63)
    if vt:
        a, b = ints('vq'); n0 = 16 + a + b; assert n0 <= 24
        qf = int(opt['qf'])
        qflag = L(f"v_min_u32 v17, 1, v{A.vL16}\nv_lshlrev_b32 v17, 29, v17\nv_mov_b32 v15, 1\ns_add_u32 s84, s47, 16") + [At(qf % 64), WAITV("QST"), side.flag_store(84, 17, 15), By(62)]
        s.add((qflag if qf < 64 else []) + ks.many(range(16, 16 + a), "KV4"), ints('sw')[0], 62, asap=True)
        def park(ns):
            o = [I(f"v_accvgpr_write_b32 a{128 + 4 * (n - 16) + e}, v{int(ks.reg[n][2:ks.reg[n].index(':')]) + e}") for n in ns for e in range(4)]
            for i in o: dep(i, *[p for n in ns for p in ks.src[n]])
            return o
    else:
        km = kq + kw[0]
        s.add(ks.many(range(kq, km), "KV4"), *ints('sw'))
    s.run()
    grp, early = groups_first(0, QO)
    sched_sm(g, grp, 12, 62, early=early)
    if '8' in opt['fine']:
        for k in (0, 16, 32): g.ve[k].append(I("s_nop 0 ; us"))
    qk0 = g.flat() + jitter() + stampa() + (L("s_sleep 32") if str(vt) in opt['idle'] else [])
    if vt:
        w1, left = win_qk1(4, 16, "v1", lambda s: s.add(ks.many(range(16 + a, n0), "KV4") + [By(60)], *ints('sw')).add(qflag if 64 <= qf < 128 else [], 0, 60, asap=True).add(park(range(n0, 24)) + [By(58)], 0, 56).add(qpart(1), *ints('sw')))
        vp = ints('vp'); assert n0 + sum(vp) == 32
        later = lambda m: (lambda s: s.add(ks.many(range(n0 + sum(vp[:m]), n0 + sum(vp[:m + 1])), "KV4", lambda n: R("a", 128 + 4 * (n - 16), 4)), *ints('sw')).add(qpart(m + 2), *ints('sw')).add(qflag if qf // 64 == m + 2 else [], 30, 60, asap=True))
        def pv0x(s): s.add(park(range(24, 32)) + [By(28)], 0, 28); later(0)(s)
        ex = [[], [], []]
        if LATER:
            ex[0] = L(f"""s_and_b32 s66, s{sJ}, 7
            s_lshl_b32 s67, s{sH}, 3
            s_add_u32 s67, s66, s67
            s_lshl_b32 s67, s67, 2
            s_add_u32 s67, s67, s{K.sWAVE}
            s_mul_i32 s67, s67, 7168
            s_mul_i32 s86, s{K.sWAVE}, 7168
            s_add_u32 s86, s86, 131072""")
            for o_, n_ in ((0, 4), (4096, 3)):
                ex[0] += [I(f"s_add_u32 m0, s86, {o_}")] + [I(f"buffer_load_dwordx4 v7, s[{S_WO}:{S_WO+3}], s67 offen offset:{1024*q} lds", tag="WO", lds=(131072, 163840, "WO")) for q in range(n_)] + L("s_add_u32 s67, s67, 4096")
            ex[1] = L(f"""v_lshrrev_b32 v12, 6, v7
            v_mul_u32_u24 v12, 896, v12
            v_and_b32 v13, 48, v7
            s_lshr_b32 s67, s{K.sWAVE}, 1
            s_lshl_b32 s67, s67, 6
            s_and_b32 s86, s{K.sWAVE}, 1
            s_lshl_b32 s86, s86, 3
            s_add_u32 s67, s67, s86
            s_add_u32 s67, s67, 131072
            v_add3_u32 v12, v12, v13, s67
            s_lshl_b32 s94, s{sH}, 18
            s_lshl_b32 s66, s66, 10
            s_add_u32 s94, s94, s66
            s_lshl_b32 s66, s{K.sWAVE}, 13
            s_add_u32 s94, s94, s66
            s_add_u32 s94, s94, {WS_WO}""") + [I(f"ds_read_b64_tr_b16 a[{192+4*n+2*q}:{193+4*n+2*q}], v12 offset:{n*128 + q*14336}", lds=(131072, 163840, "r")) for n in range(7) for q in range(2)] + [By(44)]
            ex[2] = [x for n in range(7) for x in (I(f"s_add_u32 s30, s94, {n * 32768}"), I(f"buffer_store_dwordx4 a[{192+4*n}:{195+4*n}], v7, {WSR}, s30 offen sc1"))]
        both = lambda f, e, lo, hi: (lambda s: (f(s), s.add(e, lo, hi)))
        c.block("kv1", "L_kv1:", out, qk0, w1, win_pv0(4, 16, pv0x), jitter(), fs('3'), win_qk(1, "v2", later(1), dma2=ex[0]), win_pv(1, later(2), tags=["WO"]), fs('3'),
                win_qk(0, "v3", both(later(3), ex[1], 0, 40)), win_pv(0, both(later(4), ex[2], *ints('rw2'))), "s_sleep 32" if 'v' in opt['idle'] else "", jitter(), "s_branch L_loop_top")
    else:
        c.block("kv0", "L_kv0:", out, f"s_cmp_eq_u32 s{sJ}, 0\ns_cbranch_scc1 L_j0")
        c.block("k1", qk0, win_qk1(4, 16, "k1", lambda s: s.add(ks.many(range(km, km + kw[1]), "KV4") + [By(60)], *ints('sw')))[0],
                win_pv0(4, 16, lambda s: s.add(ks.many(range(km + kw[1], 32), "KV4") + [By(28)], 4, 28)), f"s_cmp_lg_u32 s{A.sIT}, 0\ns_cbranch_scc1 L_loop_top\ns_branch L_d1s")
        g = Gaps(qk_mfmas(0, lambda kb, qb: R("v", Sreg(0, kb, 0), 4) if qb == 0 else "0", order=(1, 0), asc0=True))
        tile_reads(g, lambda b: rd_batch(KSLOT[0], b), rd_batch(KSLOT[1], 0), [("T", KSLOT[1])])
        ql = qp.out(3, 1, 1, Qreg(1, 7))[0] + [By(5)] + qp.out(3, 1, 0, Qreg(0, 7))[0] + [By(12)]
        pr = presets(False, zero=True)
        LSPIN["j0"] = (2, 17)
        s = Sched(g).add([At(1)] + ql, 0, 20, asap=True).add([x for kb in range(4) for x in pr[kb] + [By(16 * kb + 6)]], 0, 50)
        s.add(L(f"s_mov_b32 s{A.sV}, s{sVD}") + dma_flat(VSLOT[0], A.sV) + L(f"v_min_u32 v17, {7 << 7}, v9\nbuffer_load_dword v{A.vRL}, v17, {WSR}, s46 offen sc1"), 14, 44)
        s.add(init(), 0, 63).add(ks.many(range(kq, 32), "KV4"), 16, 62, vmd=2).run()
        grp, early = groups_first(0, (1, 0))
        sched_sm(g, grp, 12, 62, early=early)
        ucheck = L(f"v_mov_b32 v{A.vX}, v{A.vSUM}\nv_mov_b32 v{A.vX+1}, v{A.vSUM+1}") + [i for p in zip(xlane("v_max_f32", A.vX, A.vX + 2), xlane("v_max_f32", A.vX + 1, A.vX + 3)) for i in p] + L(f"""
            v_min_f32 v{A.vX}, v{A.vX}, v{A.vX+1}
            v_cmp_gt_f32 vcc, s{A.sLOW}, v{A.vX}
            s_cbranch_vccnz L_stj0
            L_rtj0:""")
        zz = [I(f"v_mov_b32 v{A.vP1 + e}, 0") for e in range(4)]
        rest = [i for p in presets(True) for i in p]
        c.block("j0", "L_j0:", g.flat(), stampa(), zz, HELPER_K(), PBASE(), lcheck(2, "j0"), mix(ucheck[:-2], dma_flat(KSLOT[0], A.sK) + adv_k(), 1), ucheck[-2:], zero_O_mfma(rest, A.vP1), "s_branch L_d3h")

def build_att(c):
    X.update(nodma=int(opt['xl'][0]), nobar=int(opt['xl'][1]), rp=int(opt['xl'][2]), dp=int(opt['xl'][3])); att.WI.update(nr=int(opt['nr']), noadd=int(opt['noadd']))
    c.block("loop_top", "L_loop_top:" if WARM else ".p2align 6\nL_loop_top:", fs('3'), att.win_qk(1, "L_st1", "L_rt1", extra=[side.touch(0, 60, 0, nt=False)] if opt['tl'] == '1' else [])[0], att.win_pv(1))
    c.block("loop_mid", fs('3'), att.win_qk(0, "L_st0", "L_rt0", head=L(f"s_bitcmp1_b32 s{sMLD}, s{A.sCHK}\ns_cbranch_scc1 L_fll\nL_fllr:"))[0],
            att.win_pv(0, tail=L(f"s_sub_u32 s{A.sIT}, s{A.sIT}, 1\ns_cmp_lg_u32 s{A.sIT}, 0\ns_cbranch_scc1 L_loop_top"),
                       chk=L(f"""v_cmp_gt_u32 vcc, s{A.sREQ}, v{A.vRL}
                       s_cbranch_vccnz L_fls0
                       L_flr0:
                       s_mov_b32 s{A.sREQ}, 0
                       s_add_u32 s{A.sCHK}, s{A.sCHK}, 1""")))
    if opt['emu'] != '0':
        for b in ("loop_top", "loop_mid"):
            o = []; n = 0; nb = 0; nw = 0; nm = 0
            for i in c.blocks[b]:
                if i.kind == "mfma": nm += 1
                if i.kind == "dma" and f"s{A.sV} offen" in i.text:
                    i = I(i.text.replace("dwordx4 v", f"dwordx4 a[{192 + 4 * n}:{195 + 4 * n}], v").replace(" lds", ""), tag="TOUCH"); n += 1
                if i.op == "s_barrier":
                    nb += 1
                    if nb == 1: continue
                if i.kind == "dsr" and ", v7 " in i.text:
                    f = int(re.search(r"offset:(\d+)", i.text).group(1)) // 1024 % 8
                    if f >= 3:
                        if f == 4 and nw < 4: o.append(I(f"ds_write_b128 v2, v[{40 + 4 * nw}:{43 + 4 * nw}] offset:{61440 + 1024 * nw}")); nw += 1
                        continue
                o.append(i)
            c.blocks[b] = o
    att.WI.update(nr=8, noadd=0); X.update(nodma=0, nobar=0)
    c.block("p1", f"s_cmp_eq_u32 s{sMODE}, 0\ns_cbranch_scc1 L_final_h")
    g = Gaps(qk_mfmas(0, lambda kb, qb: R("v", Sreg(0, kb, 0), 4) if qb == 0 else NMq(1), order=(1, 0)))
    tile_reads(g, lambda b: rd_batch(KSLOT[0], b), rd_batch(VSLOT[1], 0), [("T", VSLOT[1])])
    pr = presets(False)
    Sched(g).add([x for kb in range(4) for x in pr[kb] + [By(16 * kb + 6)]], 0, 50).add(
        L(f"s_mov_b32 s{A.sV}, s{sVD}\nv_min_u32 v17, {7 << 7}, v9\nbuffer_load_dword v{A.vRL}, v17, {WSR}, s46 offen sc1") + dma_flat(VSLOT[0], A.sV) + adv_v() + dma_flat(4, A.sV, 0, 4), 1, 60).add(PBASE(), 30, 62).run()
    put_tail(g, sched_sm(g, softmax_groups(1, 1), 0, 56), check(1, "L_std1"))
    c.block("d1", "L_d1s:", stampa(), g.flat(), "L_rtd1:", fs('4'), f"s_cmp_lt_u32 s{sJ}, {15 - JH}\ns_cbranch_scc1 L_d2h")
    pg = lambda k: [f"loop_top{p}" for p in ints(k)]
    wq = ints('rq' if RELAY else 'wq')
    if RELAY: opt['d3w'] = opt['r3w']; opt['five'] = opt['rfive']
    class WoQ:
        def __init__(self, slots): self.slots, self.n = slots, 0
        def take(self, m):
            o = []
            while m and self.n < 56:
                t, i = divmod(self.n, 8); k = min(m, 8 - i)
                o += wo_dma(self.slots[t], i, i + k); self.n += k; m -= k
            return o
    def d2(nxt):
        g = Gaps(pv_mfmas(1))
        tile_reads(g, lambda b: rd_batch(VSLOT[1], b), rd_batch(KSLOT[1], 0), [("T", KSLOT[1])])
        Sched(g).add(dma_flat(4, A.sV, 4, 8) + nxt, 1, 60).add([i for p in presets(True) for i in p] + [By(61)], 4, 60).run()
        sched_sm(g, softmax_groups(0, 0), 0, 62, add_l(1))
        return g.flat() + fs('4')
    P8 = [int(x) for x in opt['p8']]
    def d3(stub, extra):
        g = Gaps(qk_mfmas(1, lambda kb, qb: R("v", Sreg(1, kb, 1), 4), order=(1,)))
        tile_reads(g, lambda b: rd_batch(KSLOT[1], b), rd_batch(VSLOT[0], 0), [("T", VSLOT[0])], per=8, pat=P8)
        Sched(g).add(L(f"v_add_u32 v{A.vNEG}, 0x20000, v{A.vL16}") + extra, 4, 30, asap=True).run()
        put_tail(g, sched_sm(g, softmax_groups(0, 1), 0, 30), check(0, f"L_st{stub}"))
        return g.flat() + L(f"L_rt{stub}:") + fs('4')
    def d4(stub, s1, s2, lo2, hi2, pub=False, hi1=60, asap=False):
        g = Gaps(pv_mfmas(0))
        tile_reads(g, lambda b: rd_batch(VSLOT[0], b), rd_batch(4, 0, A.vNEG), [("T", 4)] + (["KV4"] if pub else []))
        Sched(g).add(s2, lo2, hi2, vmd=2, asap=asap).add(s1, 1, hi1, vmd=2).add(level(4, A.vX + 5) if pub else [], 48, 52, asap=True).run()
        put_tail(g, sched_sm(g, groups_b(), 0, 60, add_l(0)), check_b(f"L_st{stub}"))
        return g.flat() + L(f"L_rt{stub}:") + fs('4')
    addb = lambda: L(f"v_add_f32 v{A.vLS + 1}, v{A.vSUM + 3}, v{A.vLS + 1}")
    wo = WoQ([3, 1, 2, 0, 4, 3, 1] if opt['five'] == '1' else [3, 1, 2, 0, 3, 1, 2])
    c.block("d2n", jitter(), "s_sleep 32" if 'n' in opt['idle'] else "", wev('n', pg('wn')), d2(wo_setup(A.vX + 4) + wo.take(wq[0])))
    LC = opt['lc'] == '1'; NRM = opt['nrm'] == '1'; assert not (LC and NRM)
    c.block("d3n", d3("d3n", wo.take(int(opt['d3w'])) + ([] if LC else [At(int(opt['fpl'])), FP_LOAD()])))
    pl = L(f"v_or_b32 v9, s{sNC}, v{A.vL16}\nv_cmp_ne_u32 vcc, 1, v{A.vRL + 1}\ns_cbranch_vccnz L_fps\nL_fpr:") + [I(f"buffer_load_dwordx4 v[{A.vX+4}:{A.vX+7}], v9, {WSR}, s90 offen sc1")]
    for kq in range(8):
        for qb in (1, 0):
            n = qb * 8 + kq
            pl.append(I(f"buffer_load_dwordx4 a[{A.aX + 4*n}:{A.aX + 4*n + 3}], v9, {WSR}, s{86 + n // 4} offen offset:{(n & 3) * 1024} sc1"))
    ctest = lambda: L(f"""
    v_cmp_neq_f32 vcc, v{A.vNM}, v{A.vX+4}
    v_cmp_neq_f32 s[64:65], v{A.vNM+4}, v{A.vX+5}
    s_cmp_eq_u32 s{sNC}, 0
    s_cselect_b64 s[66:67], -1, 0
    s_or_b64 vcc, vcc, s[64:65]
    s_and_b64 vcc, vcc, s[66:67]
    s_cbranch_vccnz L_stc
    L_rtc:""")
    pn = lambda k0: NEED(*[R("a", A.aX + (qb * 8 + kq) * 4, 4) for kq in (k0, k0 + 1) for qb in range(2)])
    l2 = lambda: L(f"v_add_f32 v{A.vLS}, v{A.vX+6}, v{A.vLS}\nv_add_f32 v{A.vLS+1}, v{A.vX+7}, v{A.vLS+1}")
    if not LC:
        c.block("d4n", d4("d4n", wo.take(wq[1]), pl, int(opt['fpc']), int(opt['pl'])))
        g = Gaps(pvb_mfmas(True))
        tile_reads(g, lambda b: rd_batch(4, b, A.vNEG), rd_wo(3, 0), [("T", 3)], npat=None if RELAY else RP16)
        for k, k0 in ((1, 0), (14, 2), (30, 4), (45, 6)): g.put_s(k, pn(k0))
        lf = l2() + addb() + lfin2()
        nrm = lambda kq, qb: [I(f"v_mul_f32 v{Oreg(2 * kq + h, qb) + e}, v{A.vRL + qb}, v{Oreg(2 * kq + h, qb) + e}") for h in range(2) for e in range(4)] if NRM else []
        cv = ([After(lf[-1])] if NRM else []) + [x for kq in range(8) for qb in (1, 0) for x in [At(8 * kq + 11 - qb)] + nrm(kq, qb) + cvt_ctx(kq, qb)]
        left = Sched(g).add(oa_setup(A.vX + 4) + [By(46)], 20, 44).add(lf + [By(19)], 0, 14 if NRM else 18).add(wo.take(wq[2]), 2, 40).add(cv, 0, 63, asap=True).run(spill=True)
        c.block("d5n", NEED(R("v", A.vX + 4, 4)), ctest(), g.flat(), [i for l in left for i in l], stampa())
    else:
        n4 = 5 + int(opt['n4'])
        c.block("d4n", d4("d4n", wo.take(wq[1]) + [By(int(opt['fpc']) - 2)], [At(int(opt['fpl'])), FP_LOAD(), At(int(opt['fpc']))] + pl[:n4] + [By(60)], 0, 60, hi1=int(opt['fpc']) - 4, asap=True))
        g = Gaps(pvb_mfmas() + comb_mfmas())
        tile_reads(g, lambda b: rd_batch(4, b, A.vNEG), None, [("T", 3)], per=8, pat=P8)
        put_batch(g, rd_wo(3, 0), 40); g.put_s(62, need_batch(0))
        ct = ctest()
        for i in [pn(0)] + ct[-2:]: g.put_s(31, i)
        for k, k0 in ((39, 2), (47, 4), (55, 6)): g.put_s(k, pn(k0))
        cv = [x for kq in range(8) for qb in (1, 0) for x in [At(32 + 4 * kq + 7 - 2 * qb)] + cvt_ctx(kq, qb)]
        lf = l2() + lfin2()
        left = Sched(g).add(pl[n4:] + [By(30)] + wo.take(wq[2]), 0, 40, asap=True, vmd=1).add(addb() + oa_setup(A.vX) + [By(22), At(24)] + ct[:-2] + [By(30), At(32)] + lf[:2] + [By(34)], 4, 30).add(cv + lf[2:], 0, 63, asap=True).run(spill=True)
        c.block("d5n", g.flat(), [i for l in left for i in l], stampa())
    def op_out(j, split=False, mul=True, pps=(0, 1)):
        b = j & 1
        ins = L(f"s_add_u32 s{A.sT0}, s{A.sOP}, {2 * j * 1024}\ns_add_u32 s{A.sT1}, s{A.sOP}, {14336 + 2 * j * 1024}") if 0 in pps else []
        for pp in pps:
            for qb in range(2):
                if split: ins.append(At(32 * pp + 27 + 8 * qb))
                a, d = Sreg(b, 2 * pp, qb), Sreg(b, 2 * pp + 1, qb)
                if mul: ins += [I(f"v_mul_f32 v{r + e}, v{A.vRL + qb}, v{r + e}") for r in (a, d) for e in range(4)]
                ins += kvq.pack(("v", a), ("v", d), 0)[0]
                ins.append(I(f"buffer_store_dwordx4 v[{a}:{a+3}], v{A.vL16}, {WSR}, s{A.sT0 + qb} offen offset:{pp * 1024} {opt['ofl'].replace('+', ' ')}", tag=("OP", j)))
        return ins
    fop = lambda: L(f"""
    s_sub_u32 s64, 15, s{sJ}
    s_min_u32 s64, s64, s{sJ}
    s_mul_i32 s{sFL}, s64, {2 * FSTR}
    s_lshl_b32 s64, s{sH}, 2
    s_add_u32 s{sFL}, s{sFL}, s64
    s_lshl_b32 s64, s{A.sWAVE}, 8
    s_add_u32 s{sFL}, s{sFL}, s64
    s_add_u32 s{sFL}, s{sFL}, {WS_FOP}
    s_mov_b32 s64, 1024
    s_mov_b32 s66, {FSTR - 256}
    s_cmp_lt_u32 s{sJ}, 8
    s_cselect_b32 s64, {FSTR}, s64
    s_cselect_b32 s65, 0, 64
    s_cselect_b32 s66, {OOB}, s66
    s_add_u32 s3, s{sFL}, s64
    s_add_u32 s{sFL}, s{sFL}, s65
    v_lshrrev_b32 v{A.vX + 7}, 5, v{A.vL16}
    v_min_u32 v{A.vX + 5}, 1, v{A.vX + 7}
    v_lshlrev_b32 v{A.vX + 4}, 3, v{A.vL16}
    v_lshl_or_b32 v{A.vX + 6}, v{A.vX + 5}, 29, v{A.vX + 4}
    v_cmp_eq_u32 vcc, 1, v{A.vX + 7}
    v_add_u32 v{A.vX + 4}, s66, v{A.vX + 4}
    v_mov_b32 v{A.vX + 5}, 1
    v_cndmask_b32 v{A.vX + 7}, v{A.vX + 6}, v{A.vX + 4}, vcc
    """)
    def outproj(wo, quota, ctx, first=(), extra0=(), prep=False):
        ow = []; sl = wo.slots
        for j in range(7):
            g = Gaps(qk_mfmas(j & 1, C0, breg=ctx))
            tile_reads(g, lambda b: rd_wo(sl[j], b), rd_wo(sl[j + 1], 0) if j < 6 else None, [("T", sl[j + 1])] if j < 6 else None)
            s = Sched(g)
            if j < len(quota): s.add(wo.take(quota[j]), 1, int(opt['odh']), vmd=2)
            if j == 0: s.add(list(first) + fop() + list(extra0) + [I(f"v_add_u32 v{vOA[2] + x}, 0x20000, v{A.vL16 if RELAY else vOA[0] + x}") for x in range(1 if RELAY else 4)], 0, 40, asap=True)
            jv = (side5.NE - 1) // 2 + 2
            if j == 5 or (j == jv and prep):
                sel = L(f"s_cmp_{'lt' if j == 5 else 'ge'}_u32 s{sJ}, 8\ns_cselect_b32 s84, s{sFL}, {OOB}") if prep and jv != 5 else L(f"s_mov_b32 s84, s{sFL}")
                s.add(sel + [At(int(opt['efg'])), WAITV([("OP", j - 2)]), I(f"buffer_store_dword v{A.vX + 5}, v{A.vX + 7}, {WSR}, s84 offen sc1")], 40, 60, asap=True)
            if j == int(opt['pv1']): s.add(side5.red_v1(A.vL16) if prep else side5.red_k1(A.vL16), 0, 60)
            if prep and j == int(opt['pv2']): s.add(side5.red_v2() + [By(60)], 4, 56)
            if SENT and prep and j == 0:
                mk = [I(f"v_mov_b32 v{Sreg(1, 0, 0) + e}, -1") for e in range(4)] + L(f"s_sub_u32 s73, s{sJ}, 8\ns_and_b32 s73, s73, {OOB}\ns_add_u32 s73, s73, s{A.sOP}\ns_add_u32 s72, s73, 12288\ns_add_u32 s73, s73, {14336 + 12288}")
                s.add(mk + [I(f"buffer_store_dwordx4 v[{Sreg(1, 0, 0)}:{Sreg(1, 0, 0) + 3}], v{A.vL16}, {WSR}, s{72 + (n >> 1)} offen offset:{(n & 1) * 1024} sc1") for n in range(4)] + [By(60)], *ints('mkg'))
            if SENT and prep and j == 6: s.add([At(int(opt['pg']))] + L(side5.FOP_LOAD) + [By(62)], 0, 62, asap=True)
            mul = not (prep and NRM)
            if HALF: s.add((op_out(j - 1, mul=mul, pps=(1,)) if j else []) + op_out(j, True, mul, pps=(0,) if j < 6 else (0, 1)), int(opt['olo']), 63, asap=True, vmd=2)
            elif j > 0: s.add(op_out(j - 1) + (op_out(6, True) if j == 6 else []), int(opt['olo']), 62 if j < 6 else 63, asap=j == 6, vmd=2)
            left = s.run(spill=j == 6)
            ow += g.flat() + fs('5')
        assert wo.n == 56
        if SENT and prep:
            return ow + stampa() + L(f"s_cmp_lt_u32 s{sJ}, 8\ns_cselect_b32 s84, {OOB}, s3") + [WAITV([("OP", 5)]), I(f"buffer_store_dword v{A.vX + 5}, v{A.vX + 6}, {WSR}, s84 offen sc1")] + [i for l in left for i in l] + stampa()
        return ow + stampa() + [i for l in left for i in l] + L(side5.FOP_LOAD) + [WAITV([("OP", 6)]), I(f"buffer_store_dword v{A.vX + 5}, v{A.vX + 6}, {WSR}, s3 offen sc1")] + stampa()
    c.block("opn", jitter(), "s_sleep 32" if 'p' in opt['idle'] else "", outproj(wo, wq[3:], lambda qb, ks: R("v", Oreg(2 * ks, qb), 4), prep=True), f"s_cmp_lt_u32 s{sJ}, 8\ns_cbranch_scc1 L_red")
    rv, vfar = side5.red_main_v(stampa, int(opt['lagv']), SENT)
    if 'e' in opt['skip']: rv = []; vfar = []
    c.block("end1", jitter(), rv, EXIT()); c.block("vfar", vfar)
    LSPIN["h2"] = (2, 17); LSPIN["h4"] = "s84"
    c.block("d2h", "L_d2h:", jitter(), "s_sleep 32" if 'h' in opt['idle'] else "", wev('h', pg('wh1')), d2(HELPER_K() + lcheck(2, "h2") + dma_flat(KSLOT[0], A.sK) + adv_k()))
    c.block("d3h", "L_d3h:", d3("d3h", [FL_LOAD(), I(f"buffer_load_dword v{A.vRL + 1}, off, {WSR}, s47 offset:16 sc1")]))
    ql = L(f"v_cmp_ne_u32 vcc, 1, v{A.vRL + 1}\ns_cbranch_vccnz L_fqs\nL_fqr:") + L(f"s_add_u32 s73, s{A.sQ}, 4096\ns_add_u32 s74, s{A.sQ}, 8192\ns_add_u32 s75, s{A.sQ}, 12288")
    ql += [I(f"buffer_load_dwordx4 a[{4*n}:{4*n+3}], v{A.vL16}, {WSR}, s{72 + n // 4 if n >= 4 else A.sQ} offen offset:{(n & 3) * 1024} sc1") for n in range(16)]
    c.block("d4h", d4("d4h", [], ql + L(f"s_cmp_ge_u32 s{sJ}, 2\ns_cselect_b32 s84, 4, 2") + lcheck("s84", "h4") + [By(58)], 0, 54, True))
    g = Gaps(pvb_mfmas() + qk_mfmas(0, C0))
    tile_reads(g, lambda b: rd_batch(4, b, A.vNEG), rd_batch(KSLOT[0], 0), [("T", KSLOT[0])], per=8, pat=P8)
    tile_reads(g, lambda b: rd_batch(KSLOT[0], b), rd_batch(KSLOT[1], 0), [("T", KSLOT[1])], base=32)
    g.put_s(29, NEED(R("a", 0, 64)))
    def cpk(kq, qb): return link(cvt_ctx(kq, qb) + [I(f"v_accvgpr_write_b32 a{A.aX + (qb * 8 + kq) * 4 + e}, v{Oreg(2 * kq, qb) + e}") for e in range(4)])
    order = [(0, 0), (1, 0)] + [x for kq in range(6) for x in ((kq, 1), (kq + 2, 0))] + [(6, 1), (7, 1)]
    cp = {k: cpk(*k) for k in order}
    s = Sched(g).add(dma_flat(KSLOT[1], A.sK) + adv_k() + L(f"s_mul_i32 s{A.sV}, s{sH}, {HS}\ns_add_u32 s{A.sV}, s{A.sV}, {WS_V + NO * 32768}") + dma_flat(VSLOT[0], A.sV) + adv_v() + dma_flat(VSLOT[1], A.sV, 0, 4), 2, 92)
    s.add(addb() + lfin2() + L(f"v_accvgpr_write_b32 a192, v{A.vRL}\nv_accvgpr_write_b32 a193, v{A.vRL + 1}") + [I(f"v_mov_b32 v{r}, 0") for r in [A.vLS, A.vLS + 1] + list(range(A.vNM, A.vNM + 8))], 0, 40).run()
    grp, early = groups_first(0, base=32)
    sched_sm(g, grp, 44, 94, early=early)
    left = Sched(g).add([x for k in order for x in ([At(4 * k[0] + 7)] if k[1] else []) + cp[k]], 0, 95, asap=True).run(spill=True)[0]
    w5 = g.flat() + fs('4')
    g = Gaps(qk_mfmas(1, C0, alt=True))
    tile_reads(g, lambda b: rd_batch(KSLOT[1], b), rd_batch(VSLOT[0], 0), [("T", VSLOT[0])])
    Sched(g).add(dma_flat(KSLOT[0], A.sK) + adv_k() + dma_flat(VSLOT[1], A.sV, 4, 8) + adv_v(), 1, 56).run()
    k = sched_sm(g, softmax_groups(0, 1), 0, 54)
    tail = check_first("L_sth1")
    ids = {id(i) for i in left}
    Sched(g).add(left + [By(57)], 0, 57).run()
    put_tail(g, max(k, 57), tail)
    w6 = g.flat() + L("L_rth1:")
    c.block("d5h", w5, w6, stampa(), win_pv0(VSLOT[0], None, lambda s: s.add(L(f"""s_mov_b32 s{sMODE}, 0
            s_mov_b32 s{A.sCHK}, 0
            s_and_b32 s{sMLD}, s{sMLD}, 1
            s_or_b32 s{sMLD}, s{sMLD}, 2
            s_sub_u32 s{A.sIT}, {15 - JH - 1}, s{sJ}"""), 10, 30)), f"s_cmp_lg_u32 s{A.sIT}, 0\ns_cbranch_scc1 L_loop_top")
    wo = WoQ([3, 2, 0, 4, 1, 3, 2] if opt['five'] == '1' else [3, 2, 0, 1, 3, 2, 0]); wh = ints('wh')
    if RELAY: wo.n = 16; wh = [ints('rh')[0], 0] + ints('rh')[1:]
    pst = lambda kq, qb: [I(f"buffer_store_dwordx4 v[{Oreg(2*kq, qb)}:{Oreg(2*kq, qb)+3}], v{A.vL16}, {WSR}, s{86 + (qb*8+kq) // 4} offen offset:{(kq & 3) * 1024} sc1", tag="PST")]
    g = Gaps(pv_mfmas(1, alt=False))
    tile_reads(g, lambda b: rd_batch(VSLOT[1], b), rd_wo(3, 0), [("T", 3)], npat=None if RELAY else RP16)
    w0 = wo_setup(A.vX + 4, 2 if RELAY else 0) + wo.take(wh[0]); nv = 0 if RELAY else 7
    left = Sched(g).add(oa_setup(A.vX + 4) + [By(46)], 0, 10).add([x for kq in range(8) for qb in range(2) for x in [At(8 * kq + 9 + 2 * qb)] + cvt_ctx(kq, qb) + pst(kq, qb)], 0, 63, asap=True, vmd=1).add(
        wo.take(wh[1]), 0, 12, vmd=1).run(spill=True)
    c.block("final_h", "L_final_h:", jitter(), stampa(), WAITV([("T", VSLOT[1])], lgkm0=True), "s_barrier", rd_batch(VSLOT[1], 0), wev('f', pg('wh2')), w0[:nv], mix(softmax_half(1, 1), w0[nv:], 1), check(1, "L_stfh"), "L_rtfh:", add_l(1), f"""
    v_mov_b32 v{A.vX}, v{A.vNM}
    v_mov_b32 v{A.vX+1}, v{A.vNM+4}
    v_mov_b32 v{A.vX+2}, v{A.vLS}
    v_mov_b32 v{A.vX+3}, v{A.vLS+1}
    """, I(f"buffer_store_dwordx4 v[{A.vX}:{A.vX+3}], v{A.vL16}, {WSR}, s90 offen sc1", tag="PST"), need_batch(0), fs('4'), g.flat(), left[1], left[2], stampa())
    assert not left[0]
    pflag = L(f"v_min_u32 v{A.vX}, 1, v{A.vL16}\nv_lshlrev_b32 v{A.vX}, 29, v{A.vX}") + [At(int(opt['pfg'])), WAITV("PST"), side.flag_store(47, A.vX, A.vX + 5)]
    c.block("oph", jitter(), "s_sleep 32" if 'o' in opt['idle'] else "", outproj(wo, wh[2:], lambda qb, ks: R("a", A.aX + (qb * 8 + ks) * 4, 4), L(f"v_accvgpr_read_b32 v{A.vRL}, a192\nv_accvgpr_read_b32 v{A.vRL + 1}, a193"), pflag))
    rm = side5.red_main(A.vL16, stampa, int(opt['lag']), int(opt['lag2']))
    if 'e' in opt['skip']: rm = []
    c.block("red0", "L_red:", [WAITV([("OP", 6)]), I(f"buffer_store_dword v{A.vX + 5}, v{A.vX + 6}, {WSR}, s3 offen sc1")] if SENT else [], side5.red_k1(A.vL16), side5.FOP_LOAD, "s_branch L_red1")
    c.block("red", "L_red1:", jitter(), f's_or_b32 s77, s77, {OOB}' if 'r' in opt['wi'] else '', f's_or_b32 s78, s78, {OOB}' if 's' in opt['wi'] else '', rm, EXIT())
    c.block("rpoll", side5.red_poll())
    stubs = ""
    for n, f in (("0", "slow0"), ("1", "slow1"), ("v1", "slowf"), ("k1", "slowf"), ("h1", "slowf"), ("j0", "slowj"), ("v2", "slow1"), ("v3", "slow0"), ("d1", "slow1"),
                 ("d3n", "slow0"), ("d3h", "slow0"), ("d4n", "slowb"), ("d4h", "slowb"), ("fh", "slow1n"), ("c", "comb")):
        stubs += f"L_x{n}:\ns_call_b64 s[{A.sRET}:{A.sRET+1}], L_{f}\ns_branch L_rt{n}\n".replace("L_x", "L_st")
    return stubs

def mid_blocks(c, stubs):
    c.block("stubs", stubs)
    c.block("slow", att.slow_sub(0), att.slow_sub(1), att.slow_sub(1, False), slow_first("L_slowf", True), slow_first("L_slowj", False), slow_b(), comb_slow(opt['lc'] == '1'))
    sp = []
    for n, v in LSPIN.items():
        ld = FL_LOAD().text
        if isinstance(v, tuple): v, ld = v[0], ld.replace("v9", "v%d" % v[1])
        sp += side.spin_stub(f"L_ls{n}", f"L_lr{n}", ld, A.vRL, 91, f"v_cmp_gt_u32 vcc, {v}, v{{vt}}")
    for n, (ld, half) in WSPIN.items():
        sp += side.spin_stub(f"L_ws{n}", f"L_wr{n}", ld, A.vRL, 91, f"v_cmp_ne_u32 vcc, 1, v{{vt}}\ns_nop 0\ns_mov_b32 vcc_{'hi' if half == 'lo' else 'lo'}, 0")
    c.block("spins", side.z_stub(0), side.z_stub(1), hw.key_stub(), side.spin_stub("L_has", "L_har", hw2.FA_LOAD, 16, 91) if H2 and 'h' not in opt['skip'] else [], sp, f"""
    L_fll:
    s_sub_u32 s65, s{A.sCHK}, s{sMODE}
    s_mov_b32 s64, -1
    s_cmp_eq_u32 s65, 1
    s_cbranch_scc1 L_fl2
    s_cmp_lg_u32 s{A.sWAVE}, 0
    s_cbranch_scc1 L_fl3
    s_lshr_b32 s64, s{sJ}, 3
    s_cmp_eq_u32 s{A.sCHK}, s64
    s_cbranch_scc0 L_fl1
    v_mov_b32 v{A.vX + 5}, 4
    {side.flag_store(sFL, A.vF0, A.vX + 5).text}
    L_fl1:
    s_cmp_lg_u32 s65, 0
    s_cbranch_scc1 L_fllr
    s_movk_i32 s64, 0x380
    L_fl2:
    v_min_u32 v{A.vX + 7}, s64, v9
    s_mov_b32 s{A.sREQ}, 4
    buffer_load_dword v{A.vRL}, v{A.vX + 7}, {WSR}, s46 offen sc1
    s_bitcmp1_b32 s{sMLD}, 15
    s_cbranch_scc0 L_fllr
    L_fl3:
    s_cmp_eq_u32 s{A.sCHK}, {TY}
    s_cbranch_scc1 L_y2
    s_cmp_eq_u32 s{A.sCHK}, {TY + 1}
    s_cbranch_scc1 L_y3
    s_cmp_eq_u32 s{A.sCHK}, {TY + 2}
    s_cbranch_scc1 L_y4
    s_branch L_y5
    s_waitcnt vmcnt(0)
    L_fps:
    s_cmp_lg_u32 s{sNC}, 0
    s_cbranch_scc1 L_fpr
    """, side.spin_stub("L_fps2", "L_fpr", FP_LOAD().text, A.vRL + 1, 91),
            side.spin_stub("L_fqs", "L_fqr", f"buffer_load_dword v{A.vRL + 1}, off, {WSR}, s47 offset:16 sc1", A.vRL + 1, 91),
            side.spin_stub("L_fls0", "L_flr0", FL_LOAD().text.replace("v9", f"v{A.vX + 7}"), A.vRL, 91, f"v_cmp_gt_u32 vcc, s{A.sREQ}, v{{vt}}"))
    c.block("ystubs", side5.y_stubs("L_fllr", int(opt['ht'])))

def paths(c):
    lp = ["loop_top", "loop_mid"]
    n = ["d1", "d2n", "d3n", "d4n", "d5n", "opn"]
    c.path("entry", "kv1", *lp, *lp, *lp, "p1", *n, "end1")
    c.path("entry", "kv0", "k1", *lp, *lp, *lp, "p1", *n, "red0", "red")
    for own in (["j0"], ["k1", "d1", "d2h"], ["k1", *lp, "p1", "d1", "d2h"], ["k1", *lp, *lp, *lp, "p1", "d1", "d2h"]):
        for nh in (0, 1, 2, 3):
            c.path("entry", "kv0", *own, "d3h", "d4h", "d5h", *(lp * nh), *(["p1"] if nh else []), "final_h", "oph", "red")
    for b in ("rpoll", "vfar", "stubs", "slow", "moe", "spins", "ystubs"): c.path(b)

def check_tiles(c):
    size = dict(U=7, T=8, W=4, C=4, X=4)
    for path in c.paths:
        cnt = {}; waited = set()
        for b in path:
            for i in c.blocks[b]:
                if i.kind == "vst": assert i.tag not in waited, (path, b, i.text, i.tag)
                if i.op == "WAITV": waited |= set(i.tag if isinstance(i.tag, list) else [i.tag])
                if i.kind == "dma" and isinstance(i.tag, tuple): cnt[i.tag] = cnt.get(i.tag, 0) + 1
                if i.op == "WAITV":
                    for t in (i.tag if isinstance(i.tag, list) else [i.tag]):
                        if isinstance(t, tuple) and t[0] in size:
                            n = cnt.pop(t, 0)
                            assert (n or b in ("final_h", "oph")) and n % size[t[0]] == 0, (path, b, t, n)
def ustamps(c):
    names = ["start"]
    for spec in [x for x in opt['us'].split(",") if x]:
        b, lo, hi = (spec.split(":") + ["0", "999"])[:3]
        o = []; pend = None; nb = 0
        def rec(n):
            r = L(f"v_accvgpr_write_b32 a255, v10\nv_accvgpr_read_b32 v10, a254\nv_writelane_b32 v10, s98, {n}\nv_accvgpr_write_b32 a254, v10\nv_accvgpr_read_b32 v10, a255")
            for i in r: i.extra["ghost"] = True
            return r
        for i in c.blocks[b]:
            if pend is not None and (i.op in ("s_endpgm", "s_call_b64") or i.kind == "branch" and i is c.blocks[b][-1]): o += rec(pend); pend = None
            o.append(i)
            if pend is not None and i.op in ("NEED", "WAITV"): o += rec(pend); pend = None
            if i.op == "s_barrier" or i.text.endswith("; us"):
                nb += 1
                if int(lo) <= nb <= int(hi):
                    pend = len(names); names.append(f"{b}.{nb}"); o.append(I("s_memtime s[98:99]"))
        if pend is not None: o += rec(pend)
        c.blocks[b] = o
    assert len(names) <= 64
    return names
def ipref(c):
    n = 0
    for b in [x for x in opt['ip'].split(",") if x]:
        o = []; q = b not in ("kv0", "kv1")
        for i in c.blocks[b]:
            o.append(i)
            if i.text.startswith("s_mov_b64 s[60:61], s[76:77]"): q = True
            if i.op == "s_barrier":
                n += 1
                o += [I("s_getpc_b64 s[100:101]"), I(f"s_load_dword s94, s[100:101], {opt['ipd']} ; ignore")]
        c.blocks[b] = o
SHORT = [("v_mfma_f32_16x16x32_bf16", "M", 4), ("ds_read_b128", "R", 0), ("ds_read_b64_tr_b16", "T", 0), ("v_cvt_pk_bf16_f32", "C", 3), ("v_exp_f32", "E", 2),
         ("v_accvgpr_write_b32", "W", 2), ("v_accvgpr_read_b32", "G", 2), ("v_add_f32", "AF", 3), ("v_mul_f32", "MF", 3), ("s_add_u32", "SA", 3)]
def compress(body):
    hdr = []; out = []
    for full, sh, n in SHORT:
        if n: hdr.append(f".macro {sh} " + ", ".join("abcd"[:n]) + f"\n{full} " + ", ".join("\\" + x for x in "abcd"[:n]) + "\n.endm")
        else: hdr.append(f".macro {sh} a, b, c\n{full} \\a, \\b offset:\\c\n.endm")
    for ln in body.split("\n"):
        ln = ln.strip()
        for full, sh, n in SHORT:
            if ln.startswith(full + " ") and "row_" not in ln and (n or " offset:" in ln):
                ln = sh + " " + ln[len(full) + 1:].replace(" offset:", ",").replace(", ", ","); break
        out.append(ln)
    return "\n".join(hdr), "\n".join(out)

if __name__ == "__main__":
    c = CFG(verbose=int(opt["v"]))
    entry(c); front(c, 0); front(c, 1)
    stubs = build_att(c)
    n0 = len(c.order)
    mid_blocks(c, stubs); c.block("moe", side5.red_moe() if 'e' not in opt['skip'] else [], "L_hr:\ns_endpgm" if 'h' in opt['skip'] else "")
    k = c.order.index("loop_top")
    c.order = c.order[:k] + c.order[n0:-1] + c.order[k:n0] + c.order[-1:]
    c.order.remove("red0"); c.order.append("red0")
    paths(c); opt['nochk'] == '1' or check_tiles(c); names = ustamps(c); ipref(c)
    txt = c.finalize()
    if opt['nochk'] == '0':
        ldscheck.check(c)
        bad = [x for b in c.order for x in check_order(c.mat[b], b) if not b.startswith("loop") and not (" lds" in x[1] and ("s[16:19]" in x[1] or "s[48:51]" in x[1]))]
        assert not bad, bad[:5]
    if int(opt['v']):
        for b in c.order:
            m = c.mat[b]; bad = sum(1 for x, y in zip(m, m[1:]) if x.kind in ("valu", "trans") and y.kind in ("dsr", "dsw", "dma", "vld", "vst"))
            if any(i.kind == "mfma" for i in m): sys.stderr.write(f"; {b}: valu->mem {bad}\n")
    for spec in [x for x in opt['fl_'].split(",") if x]:
        r, f = spec.split(":")
        for b in c.order:
            for i in c.mat[b]:
                if i.kind == "dma" and f"s[{r}:" in i.text: i.text = i.text.replace(" nt", "").replace(" sc1", "").replace(" lds", " " + f.replace("+", " ") + " lds")
    if opt['dbg'] != '-':
        for b in c.order:
            for i in c.mat[b]:
                if "s[12:15]" in i.text and i.op in ("buffer_store_dword", "buffer_load_dword") and "v17" in i.text: i.text = i.text.replace("offen", "offen offset:64")
    if 'h' in opt['skip']:
        for b in c.order:
            for i in c.mat[b]:
                if i.text.startswith("s_cbranch_vccnz L_moe"): i.text = "s_nop 0"
    if WARM: txt = warm.place(c, ("kv0", "kv1", "loop_top"))
    hdr, body = compress(txt)
    kn = NAME + "_kernel"
    print("; Fused MLA-style attention + gated MoD block for gfx950; generated by dev/gen5.py (hand-written generator)")
    if opt['us']: print("; sites " + " ".join(names))
    print("; @launch grid=(256,1,1) block=(256,1,1) lds=163840")
    print('.amdgcn_target "amdgcn-amd-amdhsa--gfx950"\n.text')
    print(hdr)
    print(kernel_header(kn))
    print(body)
    print("L_code_end:")
    print('.section .rodata,"a"\n.p2align 6')
    print(kernel_desc(kn, sgpr=102))
```

```python
import sys, re
from att5 import *
import hw2, warm, ldscheck, att, att5, kvq, kv5, side, side5, hw, asmlib
from kv5 import K, QR, QPhase, kacc
opt = dict(stamp="0", v="1", thr=str(2.0 ** 24), low=str(2.0 ** -24), fine="0", no="18", hpad="0", vpad="0", opad="0", kvonly="0", thin="0", h2="0", hk="20", hg="50,100,70,50", xm="0", qks="1", pvs="1", xsn="1", uw=",0000,ef0001,g111111,2222", jit="0", eo="1", rfl="sc1,sc1", ofl="sc1", emu="0", nc="0", cf="nt", nw="0", t0="79", wqg="41,9", idt="-", idq="-", qw="2,0,0,0,0,0,0", q0s="0", selq="1", rw2="10,60", skip="", hw="6,8,10,12,14,16,17", rgo="1", p2="0", p8="00112233", xl="0040", nr="8", noadd="0", tl="1", nochk="0", rd="0", rdg="60", ct0="13", wn="2,3,4,5", wh1="6,7", wh2="8,9,10,11", pg="50", sent="0", half="1", mkg="40,60", dbg="-", r3w="0", rfive="0", relay="0", tR="4", rq="8,0,12,12,8,8,8", rh="8,8,8,8,8", rw="2", w8="0", fl_="16:", hmap="0", tH="-", tHg="90", hnt="", ne="6", efg="52", idle="", lc="0", n4="8", share="0", pv2="6", nrm="0", pv1="4", tidy="1", pk="12", olo="2", d3w="4", five="1", tlb="-", kvd="6", warm="a", na="8", te1="6:5:13", ip="", ipd="2048", dr="3,44,51,108,0", twg="80", us="", wi="", rt="1", ht="0", xr="100", nost="0",
           tg="113", tcq="99", tc="", tQ="7", lag="3", lag2="11", lagv="8", ke="27", q0="2223333333444444455@99:555556666666777@211:7777", qsep="4", tX="", tW="3,4,5,6", kw="3,3,2", sw="10,60", dh="30,30,30", l2="4", qf="176", qd="0,0,0,0,14", qk="4444", qv="3320", qp="14,122,234,346", ssep="24", n15="8,8",
           fl="200", fc="240", fv="395", s15="12,90", sq="2,400", sqv="200", vq="0,0", vp="3,3,3,4,3", l1="20", pfg="30", wq="8,0,12,16,8,8", wh="8,4,16,16,12", tw="9", odh="45", fpl="20", fpc="0", pl="56")
for a in sys.argv[1:]:
    k, v = a.split("="); assert k in opt, k; opt[k] = v
STAMP = opt["stamp"] in "12"; LIGHT = opt["stamp"] == "2"
ints = lambda k: [int(x) for x in opt[k].split(",")]
kv5.DR[:] = ints("dr")
asmlib.TIDY = opt["tidy"] == "1"
pairs = lambda k: [tuple(int(y) for y in x.split(':')) for x in opt[k].split(',') if x]
asmlib.SHARE = {"0": (), "1": ("dma", "vld"), "2": ("dma", "vld", "vst")}[opt["share"]]
side5.NE = int(opt["ne"])
side5.FINE = "9" in opt["fine"]
side5.PK = int(opt["pk"])
hw.HNT = opt["hnt"]
RELAY = att5.RELAY = opt["relay"] != "0"; side5.NAT = not RELAY; LATER = opt["relay"] == "2"
if RELAY and not LATER: opt["tW"] = ""
side5.POLL2 = int(opt["p2"])
kv5.T0 = int(opt["t0"])
kv5.NC, kv5.CF, kv5.NW = int(opt["nc"]), opt["cf"].replace("+", " "), int(opt["nw"])
side5.RFL = opt["rfl"].replace("+", " ").split(",")
att.PVS = opt["pvs"] == "1"; kv5.XSN = opt["xsn"] == "1"
att.QKS = att5.QKS = opt["qks"] == "1"; att5.PVS = att.PVS = opt["pvs"] == "1"
QPhase.XM = XM = opt["xm"] == "1"; QO = (1, 0) if XM else (0, 1)
side.NTT = ""; side.RNT = ""
X.update(wide=1, ls=1, r3=0, r3x='-')
sMODE, sH, sJ, sVD, sSTK, sFL = 40, 41, 42, 43, 44, 45
sKV, sMLD, sNC = 45, 39, 35
NO = int(opt['no']); assert NO % 2 == 0
JH = NO // 2
aST = 250
THIN = opt['thin'] == '1'
H2 = int(opt['h2'])
UW = opt['uw'].split(',')
SENT = opt['sent'] == '1'; HALF = opt['half'] == '1'
RW = opt['rw'] != '0'
JY = 7 if NO == 16 else 6; TY = JY - 5
WARM = opt['warm'] != '0'
def wev(key, names):
    return warm.event(A.sWAVE, warm.spread(names)) if WARM and key in opt['warm'] else []
wsite = lambda n: warm.site(n) if WARM else []
OOB = side.OOB
def stamp(t=16, force=False):
    if not STAMP or (LIGHT and not force): return []
    return L(f"""s_memrealtime s[36:37]
    s_memtime s[98:99]
    v_accvgpr_read_b32 v{t}, a{aST}
    v_accvgpr_read_b32 v{t+1}, a{aST+1}
    s_mov_b32 s100, m0
    s_mov_b32 m0, s{sSTK}
    s_waitcnt lgkmcnt(0)
    v_writelane_b32 v{t}, s98, m0
    v_writelane_b32 v{t+1}, s36, m0
    s_add_u32 s{sSTK}, s{sSTK}, 1
    s_mov_b32 m0, s100
    v_accvgpr_write_b32 a{aST}, v{t}
    v_accvgpr_write_b32 a{aST+1}, v{t+1}""")
def stampa():
    if not STAMP or LIGHT: return []
    o = L("s_cselect_b32 s101, 1, 0\nv_accvgpr_write_b32 a252, v10\nv_accvgpr_write_b32 a253, v11") + stamp(10) + L("v_accvgpr_read_b32 v10, a252\nv_accvgpr_read_b32 v11, a253\ns_cmp_lg_u32 s101, 0")
    for i in o: i.extra["ghost"] = True
    return o
fs = lambda c: stampa() if c in opt['fine'] else []
def stamp0(t=26):
    if not STAMP: return []
    return L(f"""s_waitcnt lgkmcnt(0)
    v_mov_b32 v{t}, 0
    v_mov_b32 v{t+1}, 0
    v_writelane_b32 v{t}, s38, 0
    v_writelane_b32 v{t+1}, s46, 0
    s_mov_b32 s{sSTK}, 1
    v_accvgpr_write_b32 a254, v{t}
    v_accvgpr_write_b32 a{aST}, v{t}
    v_accvgpr_write_b32 a{aST+1}, v{t+1}""")
def fin():
    if not STAMP: return []
    return L("s_mov_b64 exec, -1\ns_waitcnt vmcnt(0) lgkmcnt(0)") + stamp(30, True) + L(f"""
        s_lshl_b32 s29, s2, 2
        s_add_u32 s29, s29, s{A.sWAVE}
        s_lshl_b32 s29, s29, 9
        s_add_u32 s29, s29, {WS_STAMP}
        v_lshrrev_b32 v10, 1, v{A.vL16}
        buffer_store_dwordx2 a[{aST}:{aST+1}], v10, {WSR}, s29 offen
        s_add_u32 s29, s29, {1 << 20}
        buffer_store_dword a254, v10, {WSR}, s29 offen
        """)
def dbg_out():
    if opt['dbg'] == '-': return []
    return L(f"""
    s_load_dwordx2 s[4:5], s[0:1], {A_DBG}
    v_accvgpr_read_b32 v11, a{aST+1}
    v_lshrrev_b32 v12, 4, v{A.vL16}
    v_not_b32 v13, v11
    v_cmp_eq_u32 vcc, 0, v12
    v_mov_b32 v14, s36
    s_nop 0
    v_cndmask_b32 v11, v11, v13, vcc
    v_cmp_eq_u32 vcc, 15, v12
    s_nop 1
    v_cndmask_b32 v11, v11, v14, vcc
    v_lshlrev_b32 v12, 2, v12
    s_waitcnt lgkmcnt(0)
    {srd(12, 4, 64)}
    s_cmp_eq_u32 s{sJ}, {opt['dbg']}
    s_cselect_b32 exec_lo, 0xffff, 0
    s_or_b32 exec_lo, exec_lo, 0x8001
    s_mov_b32 exec_hi, 0
    buffer_atomic_umax v11, v12, s[12:15], 0 offen
    """)
EXIT = lambda: fin() + dbg_out() + L("s_endpgm")

_jn = [0]
def jitter():
    if opt['jit'] == '0': return []
    _jn[0] += 1; n = _jn[0]
    a = (int(opt['jit']) * 40503 + n * 2654435761) & 0xffff | 1
    o = L(f"""s_mul_i32 s98, s2, {a}
    s_mul_i32 s99, s{A.sWAVE}, {(a * 7 + 3) & 0xff if n & 1 else 0}
    s_add_u32 s98, s98, s99
    s_bfe_u32 s98, s98, 0x20005
    s_cmp_lg_u32 s98, 0
    s_cbranch_scc1 L_jt{n}
    s_sleep 120
    L_jt{n}:""")
    return o
def entry(c):
    c.block("entry", f"""
    s_cmp_lt_u32 s2, 256
    s_cbranch_scc1 L_go
    s_endpgm
    L_go:
    {"s_memrealtime s[46:47]" + chr(10) + "s_memtime s[38:39]" if STAMP else ""}
    s_load_dwordx8 s[80:87], s[0:1], {A_X}
    s_load_dwordx4 s[88:91], s[0:1], {A_WUV}
    s_getpc_b64 s[76:77]
    L_pc0:
    s_lshr_b32 s{sJ}, s2, 3
    s_mov_b32 s79, 0x20000
    s_lshl_b32 s67, s{sJ}, 13
    s_mov_b32 s78, L_code_end-L_pc0
    s_and_b32 s77, s77, 0xffff
    v_lshl_add_u32 v31, v0, 5, s67
    """, side.touch(31, 76, 0, nt=False), f"""
    v_lshrrev_b32 v24, 6, v0
    v_and_b32 v0, 63, v0
    s_and_b32 s{sH}, s2, 7
    v_readfirstlane_b32 s{K.sWAVE}, v24
    s_lshr_b32 s64, s2, 4
    v_and_b32 v24, 15, v0
    v_lshrrev_b32 v25, 4, v0
    s_and_b32 s64, s64, 8
    s_or_b32 s{sH}, s{sH}, s64
    v_lshlrev_b32 v28, 1, v25
    v_xor_b32 v28, v28, v24
    v_and_b32 v29, 8, v28
    v_and_b32 v28, 7, v28
    v_lshlrev_b32 v28, 4, v28
    v_lshl_add_u32 v28, v29, 5, v28
    v_lshl_add_u32 v28, v25, 13, v28
    s_lshl_b32 s64, s{K.sWAVE}, 17
    v_add_u32 v{K.vWD}, s64, v28
    v_xor_b32 v28, 0x100, v{K.vWD}
    v_add_u32 v{K.vWD+1}, {4*8192 - 1024}, v{K.vWD}
    v_add_u32 v{K.vWD+2}, {8*8192 - 2048}, v28
    v_add_u32 v{K.vWD+3}, {12*8192 - 3072}, v28
    s_mov_b32 s{K.sWOFF}, 0
    s_lshl_b32 s{K.sM0W}, s{K.sWAVE}, 12
    s_lshl_b32 s74, s{sH}, 9
    s_sub_u32 s{K.S_W+2}, {1024*8192}, s74
    s_mov_b32 s{K.S_W+3}, s79
    s_bitcmp0_b32 s2, 6
    s_cselect_b64 s[72:73], s[86:87], s[88:89]
    s_add_u32 s{K.S_W}, s72, s74
    s_addc_u32 s73, s73, 0
    s_and_b32 s{K.S_W+1}, s73, 0xffff
    """, kv5.unit_w(0), f"""
    s_and_b32 s{sJ}, s{sJ}, 15
    s_lshr_b32 s{sKV}, s{sJ}, 3
    s_and_b32 s65, s{K.sWAVE}, 1
    s_lshr_b32 s66, s{K.sWAVE}, 1
    v_and_b32 v29, 7, v0
    v_xor_b32 v28, v25, v29
    v_lshlrev_b32 v28, 4, v28
    v_lshrrev_b32 v29, 3, v0
    v_lshl_add_u32 v30, v29, 11, v28
    s_lshl_b32 s64, s66, 19
    s_lshl_b32 s67, s65, 21
    s_add_u32 s64, s64, s67
    v_add_u32 v{K.vCD}, s64, v30
    v_xor_b32 v30, 64, v{K.vCD}
    v_add_u32 v{K.vCD+2}, {16*2048 - 2048}, v{K.vCD}
    v_add_u32 v{K.vCD+1}, {8*2048 - 1024}, v30
    v_add_u32 v{K.vCD+3}, {24*2048 - 3072}, v30
    s_mov_b32 s{K.sCOFF}, 0
    s_add_u32 s{K.sM0C}, s{K.sM0W}, 65536
    s_and_b32 s64, s{sJ}, 7
    s_lshl_b32 s64, s64, 16
    s_sub_u32 s{K.S_C+2}, {2048*2048}, s64
    s_mov_b32 s{K.S_C+3}, s79
    s_add_u32 s{K.S_C}, s82, s64
    s_addc_u32 s73, s83, 0
    s_and_b32 s{K.S_C+1}, s73, 0xffff
    """, *((kv5.unit_w(1), kv5.unit_c(0)) if opt['eo'] == '1' else (kv5.unit_c(0), kv5.unit_w(1))), f"""
    s_load_dwordx2 s[92:93], s[0:1], {A_WR}
    s_load_dwordx2 s[94:95], s[0:1], {A_GW}
    s_load_dwordx4 s[4:7], s[0:1], {A_DBG}
    """, stamp0(28), stamp(28), f"v_lshlrev_b32 v{K.vST}, 4, v0", kvq.addr_rd(), side.c_touch_setup() + L(srd(32, 82, 2048*2048)) if opt['tcq'] != '99' else [], f"""
    {srd(K.S_X, 80, 2048*896)}
    {srd(60, 92, 896)}
    {srd(68, 94, 896)}
    s_lshl_b32 s95, s{K.sWAVE}, 11
    s_lshr_b32 s64, s2, 3
    s_lshl_b32 s64, s64, 13
    s_add_u32 s95, s95, s64
    {srd(K.S_WS, 6, 1 << 28)}
    {srd(K.S_DBG, 4, 256)}
    s_add_u32 s72, s84, s74
    s_addc_u32 s73, s85, 0
    s_sub_u32 s75, {448*8192}, s74
    {srd(K.S_WQ, 72, "s75")}
    s_mul_i32 s{K.sXOFF}, s{sJ}, {128*896}
    s_mov_b32 s{K.sSC}, {hex(f2u(LOG2E_16))}
    s_mul_i32 s72, s{sKV}, {WS_V}
    s_mul_i32 s73, s{sH}, {HS}
    s_add_u32 s72, s72, s73
    s_bfe_u32 s64, s{sJ}, 0x20001
    s_lshl_b32 s64, s64, 15
    s_add_u32 s72, s72, s64
    s_lshl_b32 s64, s66, 17
    s_add_u32 s72, s72, s64
    s_and_b32 s67, s{sJ}, 1
    s_cmp_eq_u32 s{sKV}, 0
    s_cselect_b32 s64, 12, 14
    s_cselect_b32 s75, 14, 10
    s_lshl_b32 s67, s67, s75
    s_add_u32 s72, s72, s67
    s_lshl_b32 s64, s65, s64
    s_add_u32 s{K.sOOFF}, s72, s64
    """, side.h_touch_srd(), f"s_load_dwordx2 s[96:97], s[0:1], {A_OUT}", f"s_cmp_eq_u32 s{sKV}, 0\ns_cbranch_scc0 L_kv1" + ("\ns_branch L_kv0" if WARM else ""))

FL_LOAD = lambda: I(f"buffer_load_dword v{A.vRL}, v9, {WSR}, s46 offen sc1")
FP_LOAD = lambda: I(f"buffer_load_dword v{A.vRL + 1}, off, {WSR}, s47 sc1")
def level(val, t): return L(f"v_mov_b32 v{t}, {val}") + [side.flag_store(sFL, A.vF0, t)]
def lcheck(val, n): return L(f"v_cmp_gt_u32 vcc, {val}, v{A.vRL}\ns_cbranch_vccnz L_ls{n}\nL_lr{n}:")
LSPIN = {}; WSPIN = {}
PBASE = lambda: L(f"""
    s_lshl_b32 s86, s{A.sWAVE}, 14
    s_add_u32 s86, s86, s{A.sPO}
    s_add_u32 s87, s86, 4096
    s_add_u32 s88, s86, 8192
    s_add_u32 s89, s86, 12288
    s_lshl_b32 s90, s{A.sWAVE}, 10
    s_add_u32 s90, s90, s{A.sPO}
    s_add_u32 s90, s90, 65536
    """)

class KVStore:
    def __init__(self, vt):
        self.prs = kv5.kv_pairs(vt); self.reg = {}; self.src = {}
    def st(self, n, tag, reg=None, newpage=True):
        off = self.prs[n][2]
        s = I(f"buffer_store_dwordx4 {reg or self.reg[n]}, v{K.vST}, {WSR}, s3 offen offset:{off & 0xfff} sc1", tag=tag)
        if not reg: dep(s, *self.src[n])
        if opt['nost'] == '1': return []
        if opt['nost'] == '2': s.text = s.text.replace(" sc1", "")
        return ([I(f"s_add_u32 s3, s{K.sOOFF}, {off & ~0xfff}")] if newpage else []) + [s]
    def many(self, ns, tag, regf=None):
        out = []; cur = None
        for n in ns:
            pg = self.prs[n][2] >> 12
            out += self.st(n, tag(n) if callable(tag) else tag, regf(n) if regf else None, pg != cur); cur = pg
        return out

def win_qk1(vslot, v4, stub, extra=lambda s: None, tags=(), post=()):
    g = Gaps(qk_mfmas(1, C0, alt=True))
    tile_reads(g, lambda b: rd_batch(KSLOT[1], b), rd_batch(vslot, 0, v4), [("T", vslot)] + list(tags))
    s = Sched(g).add(dma_flat(KSLOT[0], A.sK) + adv_k(), 1, ints('dh')[1])
    if post: s.add(post, 48, 52, asap=True)
    s.add([I(f"v_mov_b32 v{r}, 0") for r in [A.vLS, A.vLS + 1] + list(range(A.vNM, A.vNM + 8))] + [By(56)], 4, 50)
    extra(s); s.run()
    put_tail(g, sched_sm(g, softmax_groups(0, 1), 0, 54), check_first(f"L_st{stub}"))
    return g.flat() + L(f"L_rt{stub}:"), None
def win_pv0(vslot, v4, extra=lambda s: None, tags=(), post=(), sel=True):
    g = Gaps(pv_mfmas(0, zero=True))
    tile_reads(g, lambda b: rd_batch(vslot, b, v4), rd_batch(KSLOT[0], 0), [("T", KSLOT[0])] + list(tags))
    s = Sched(g).add(dma_flat(KSLOT[1], A.sK) + adv_k(), 1, ints('dh')[2])
    if post: s.add(post, 48, 52, asap=True)
    if sel and opt['selq'] == '0': s.add(selm(A.vX + 1), 30, 62)
    extra(s); s.run()
    sched_sm(g, softmax_groups(1, 0), 0, 60, add_l(0))
    return g.flat()
def win_qk(b, stub, extra=lambda s: None, tags=(), post=(), dma2=()):
    g = Gaps(qk_mfmas(1 - b, lambda kb, qb: NMq(qb), alt=True))
    tile_reads(g, lambda n: rd_batch(KSLOT[1 - b], n), rd_batch(VSLOT[b], 0), [("T", VSLOT[b])] + list(tags))
    s = Sched(g).add(dma_flat(VSLOT[1 - b], A.sV) + adv_v() + list(dma2), 1, 60 if dma2 else ints('dh')[2])
    if post: s.add(post, 48, 52, asap=True)
    extra(s); s.run()
    put_tail(g, sched_sm(g, softmax_groups(b, 1), 0, 56), check(b, f"L_st{stub}"))
    return g.flat() + L(f"L_rt{stub}:")
def win_pv(b, extra=lambda s: None, tags=(), post=()):
    g = Gaps(pv_mfmas(b))
    tile_reads(g, lambda n: rd_batch(VSLOT[b], n), rd_batch(KSLOT[b], 0), [("T", KSLOT[b])] + list(tags))
    s = Sched(g).add(dma_flat(KSLOT[1 - b], A.sK) + adv_k(), 1, ints('dh')[2])
    if post: s.add(post, 48, 52, asap=True)
    extra(s); s.run()
    sched_sm(g, softmax_groups(1 - b, 0), 0, 60, add_l(b))
    return g.flat()
HELPER_K = lambda: L(f"""
    s_mul_i32 s{A.sK}, s{sH}, {HS}
    s_add_u32 s{A.sK}, s{A.sK}, {NO * 32768}
    s_lshl_b32 s84, s{sJ}, 1
    s_sub_u32 s{A.sKcnt}, {30 - NO - 1}, s84
    {f's_lshl_b32 s{A.sKn1}, s{sH}, 18' + chr(10) + f's_add_u32 s{A.sKn1}, s{A.sKn1}, {WS_WO}' if RELAY else f's_mov_b32 s{A.sKn1}, {OOB}'}
    """)

def r5_loads():
    o = side.r4_loads()
    for i in o:
        m = re.match(r"buffer_load_dwordx4 v\[(\d+):", i.text)
        if m: i.text = i.text.replace(f"v[{m.group(1)}:{int(m.group(1)) + 3}]", f"a[{int(m.group(1)) + 136}:{int(m.group(1)) + 139}]"); i.parse()
    return o
def r5_compute():
    out = [I(f"v_mov_b32 v{16+r}, 0") for r in range(8)]
    for w in range(4):
        out += L(f"v_accvgpr_read_b32 v28, a{192+w}\nv_accvgpr_read_b32 v29, a{196+w}")
        for r in (0, 2):
            out += L(f"""v_accvgpr_read_b32 v30, a{176+4*r+w}
            v_accvgpr_read_b32 v31, a{180+4*r+w}
            v_dot2c_f32_bf16 v{16+r}, v30, v28
            v_dot2c_f32_bf16 v{20+r}, v30, v29
            v_dot2c_f32_bf16 v{17+r}, v31, v28
            v_dot2c_f32_bf16 v{21+r}, v31, v29""")
    if opt['rw'] == '2':
        out = out[:8]
        for w in range(4):
            out += L(f"v_accvgpr_read_b32 v28, a{192+w}\nv_accvgpr_read_b32 v29, a{196+w}\nv_lshlrev_b32 v27, 16, v28\nv_lshlrev_b32 v25, 16, v29\nv_and_b32 v28, 0xffff0000, v28\nv_and_b32 v29, 0xffff0000, v29")
            for r in range(4):
                out += L(f"""v_accvgpr_read_b32 v30, a{176+4*r+w}
                v_lshlrev_b32 v31, 16, v30
                v_and_b32 v30, 0xffff0000, v30
                v_fmac_f32 v{16+r}, v31, v27
                v_fmac_f32 v{20+r}, v31, v25
                v_fmac_f32 v{16+r}, v30, v28
                v_fmac_f32 v{20+r}, v30, v29""")
    tail = side.r4_compute()[40:]
    for i in tail:
        i.text = re.sub(r"v(\d+)", lambda m: "v%d" % ({80: 28, 81: 29, 82: 30}.get(int(m.group(1)), int(m.group(1)) - 56) if int(m.group(1)) >= 72 else int(m.group(1))), i.text); i.parse()
    return out + [2] + tail
def act5():
    o = hw.s7_act()
    k = [n for n, i in enumerate(o) if not isinstance(i, int) and i.text.startswith("s_or_b32 s64, s86")][0]
    o[k] = I(f"s_or_b32 s64, s31, s{K.sWAVE}")
    k = [n for n, i in enumerate(o) if not isinstance(i, int) and i.text.startswith("s_mov_b32 s64, %d" % WS_SEL)][0]
    o[k:k + 1] = L(f"s_lshl_b32 s64, s{sH}, 7\ns_add_u32 s64, s64, {WS_SEL}")
    return o
def down5(ra=176, rd=192):
    pre = hw.s8_down()[0]
    ms = []
    for m in range(7):
        b = 16 + 2 * (m & 1); nb = 16 + 2 * (1 - (m & 1))
        ms.append([I(f"v_mfma_f32_16x16x16_bf16 a[{rd}:{rd+3}], a[{ra+2*m}:{ra+1+2*m}], v[{b}:{b+1}], {R('a', rd, 4) if m else '0'}")] +
                  ([I(f"v_mov_b32 v{nb + e}, v{b + e} row_shr:2 row_mask:0xf bank_mask:0xf bound_ctrl:0") for e in range(2)] if m < 6 else []))
    adr = L(f"""
    v_and_b32 v29, 1, v0
    v_mul_u32_u24 v30, 1792, v29
    v_lshrrev_b32 v31, 4, v0
    v_lshl_add_u32 v30, v31, 4, v30
    v_bfe_u32 v29, v0, 1, 3
    v_lshl_add_u32 v30, v29, 6, v30
    v_add_u32 v29, 1, v29
    v_lshrrev_b32 v29, 3, v29
    v_lshl_or_b32 v30, v29, 29, v30
    v_or_b32 v30, s{hw.sMK}, v30
    s_mul_i32 s89, s{hw.sFS}, 3584
    s_mul_i32 s64, s{K.sWAVE}, 448
    s_add_u32 s89, s89, s64
    s_add_u32 s89, s89, {WS_Y}
    buffer_store_dwordx4 a[{rd}:{rd+3}], v30, {WSR}, s89 offen sc1
    """)
    return pre, ms, adr
def front(c, vt):
    frags = [kvq.rd_c(0, 0, 0, 0), kvq.rd_c(0, 0, 0, 1)] + kv5.rd_w_unit(0, 0, 0) + kv5.rd_w_unit(0, 1, 1)
    rt, ht = int(opt['rt']) == vt, int(opt['ht']) == vt
    qt = not ht
    if 'h' in opt['skip']: ht = False
    if 'r' in opt['skip']: rt = False
    side.sJ = hw.sJ = 31; rl = (r5_loads() if RW else side.r4_loads()) if rt else []; side.sJ = sJ
    RD = int(opt['rd']) if RW else 0
    rl_late = rl if RD else []
    if RD: rl = []
    out = L(f"s_and_b32 s31, s{sJ}, 7") + (side.z_store()[:-3] + rl + side.z_store()[-3:] if vt == 0 else rl) + (kv5.unit_c(1) + kv5.unit_w(2) if kv5.T0 else kv5.unit_w(2) + kv5.unit_c(1))
    out += jitter() + wev('a', [f"kv{vt}{p}" for p in range(1, min(1 + int(opt["na"]), 12 + vt))])
    out += [WAITV([("W", 1), ("C", 0), ("W", 0)], lgkm0=True), I("s_barrier")] + stamp(26) + frags
    if rt and not RW: out += side.r4_compute()
    out += [NEED(R("a", kv5.wfrag(0, 0, 0), 8), R("a", 160, 8))]
    tQ = int(opt["tQ"])
    xl = {}; uq = {u: 0 for u in range(8)}
    def items(spec, sep=0):
        o = []
        for n, seg in enumerate(spec.split("@")):
            if n:
                k, seg = seg.split(":"); o.append(At(int(k)))
            for ch in seg:
                if ch in 'abcdefg': o += kv5.x_dma(ord(ch) - 97)
                elif ch in 'ABCDEFG': o += kv5.x_read(ord(ch) - 65, xl)
                else:
                    u = int(ch); d = kv5.wq_dma(u, uq[u]); uq[u] += 1
                    o += [Sep(max(sep - 2, 0))] + d
        return o
    for t in range(15):
        dma = kv5.kv_dma(t)
        if ht and t == 2 and H2: hpre, uns = hw2.a_setup(), hw2.a_units(opt['hnt'])
        if ht and t == 9 and H2:
            dpre, un = hw2.down_dma(); dma[1] = dma[1] + [un]
        if ht and t == 2 and not H2:
            hpre, uns = hw.s1_weights()
            if opt['hmap'] == '1':
                k = [n for n, i in enumerate(hpre) if i.text.startswith(f"s_mul_i32 s{hw.sLD},")][0]
                hpre = L(f"""s_and_b32 s64, s{sH}, 7
                s_min_u32 s65, s64, 4
                s_mul_i32 s{hw.sFS}, s64, 12
                s_lshl_b32 s65, s65, 2
                s_add_u32 s{hw.sFS}, s{hw.sFS}, s65
                s_and_b32 s65, s{sH}, 8
                s_add_u32 s65, s65, s31
                s_add_u32 s{hw.sFS}, s{hw.sFS}, s65
                s_and_b32 s64, s64, 4
                s_sub_u32 s64, 15, s64
                s_sub_u32 s64, s64, s65
                s_and_b32 s{hw.sMK}, s64, {OOB}
                s_min_u32 s{hw.sFS}, s{hw.sFS}, 111""") + hpre[k:]
        if ht and t >= 2:
            for w_ in range(2):
                for n_, u_ in enumerate(ints('hw')):
                    if u_ == 2 * t + w_: dma[w_] = dma[w_] + [uns[n_]]
        if ht and t == 10 and not H2:
            dpre, un = hw.s6_down_dma(); dma[1] = dma[1] + [un]
        tR = int(opt['tR'])
        if RELAY and not LATER and not ht:
            if t == tR:
                side.sJ = 31; wpre, wun = side.wo2_dma(); wrd = side.wo2_reads(); side.sJ = sJ
            if t in (tR, tR + 1): dma[1] = dma[1] + [wun[t - tR]]
        late = t >= 12
        g = kv5.kv_tile(t, vt, [dma[0] if t == 12 else [], []] if late else dma)
        def fit(ins, k, pace=0):
            k, left = kvq.seq_fit(g, ins, k, pace); assert not left, (t, len(left)); return k
        def mm(ms, k):
            k |= 1
            for m in ms: g.put(k, m)
            return k
        tch = []
        if t == 12: xs_at = fit(kv5.x_setup(), 1) + 1; assert xs_at < 40
        if t in ints('tcq'): tch += side.c_touch(32, ints('tcq').index(t) + 1)
        if t == 0: fit(L("v_lshlrev_b32 v26, 7, v0\nv_and_b32 v27, %d, v0\nv_lshl_add_u32 v26, v27, 24, v26" % (56 if THIN else 48)), 50)
        if t == RD - 1 and rt and RD:
            for i in rl_late: i.text = i.text.replace("v32", "v27"); i.parse()
            fit(rl_late, int(opt['rdg']), 2)
        if t == 1 + RD and rt and opt['rw'] == '1': assert fit(r5_compute(), 2) < 108
        if rt and opt['rw'] == '2':
            if t == 1: rc = r5_compute(); fit(rc[:110], 2)
            if t == 2: assert fit(rc[110:], 2) < 108
        if t == 1 and vt == 0: fit(side.z_signal(), 112)
        if t == 2 + RD + (opt['rw'] == '2') and rt: KS_AT = fit(side.rg4_store(), 4, 1); assert KS_AT < 42
        if t == 8 and "ab"[vt] in opt['idle'] or str(t) == opt['idt']: out += L("s_sleep 32")
        if t == 3 - H2: fit(side.z_load(), 112 if H2 else 50)
        if t == 4 - H2:
            k = fit(side.z_check(vt), 100 if H2 else 112)
            if rt: fit(side.key4_store(), k + 1)
        if t == 5 and LATER: fit(L(srd(S_WO, 90, 4096 * 896)), 4)
        if t == 5 and not RELAY: fit(L(f"""s_mul_i32 s64, s{sH}, {256 * 896}
            s_add_u32 s72, s90, s64
            s_addc_u32 s73, s91, 0
            s_sub_u32 s75, {4096 * 896}, s64
            {srd(S_WO, 72, "s75")}"""), 4)
        if RELAY and not LATER and not ht:
            if t == tR: assert fit(L(srd(60, 90, 4096 * 896)) + wpre, 30) < 80
            if t == tR + 2: g.sc[110][0].tag = g.sc[110][0].tag + ["WO"]
            if t == tR + 3: assert fit(wrd, 2, 2) < 108
            if t in (tR + 4, tR + 5, tR + 6): fit([x for s_ in side.wo2_stores()[{0: 0, 1: 3, 2: 5}[t - tR - 4]:{0: 3, 1: 5, 2: 7}[t - tR - 4]] for x in s_ + [24]], 20)
        if qt:
            pre_, tl = side.q_touch3(K.S_WQ)
            if THIN:
                for i in pre_: i.text = i.text.replace("v_and_b32 v28, 48, v0", "v_and_b32 v28, 56, v0"); i.parse()
                tl = [[side.touch(23, K.S_WQ, 0, nt=False), I(f"v_add_u32 v23, {2 * 8192}, v23")] for n in range(7)]
            if t == tQ: fit(pre_, 60)
            if 0 <= t - tQ < len(tl): tch += tl[t - tQ]
        if ht and H2:
            if t == 2: fit(hpre, 42)
            if t == 5: fit(hw.s2_keys(), int(opt['hk']))
            if t == 6: assert fit(hw.s3_top2(), 10, 1) < 108
            hg = ints('hg')
            if t == 7:
                fit(hw2.sel(), 2); g.sc[110][0].tag = g.sc[110][0].tag + ["HW"]
            if t == 8:
                ((r0, m0), (r1, m1)), hst = hw2.gemm()
                k = fit(r0 + r1, hg[0]); k = mm(m0, k + 6); k = mm(m1, k + 4); fit(hst, k + 4)
            if t == 9:
                g.sc[110][0].tag = g.sc[110][0].tag + ["HP"]
                assert fit(dpre, 4) < 44
                fit(hw2.a_flag(), 112)
            if t == 10:
                k = fit(hw2.sel_store(), 2); k = fit(hw2.down_reads(), max(k + 1, 70)); assert k < 108; fit(hw2.b_poll(), max(k + 1, hg[1]))
            if t == 11: fit(hw2.b_load(), hg[2])
            if t == 12: fit(hw2.act(), max(xs_at, hg[3]))
            if t == 13:
                pre, ms, yadr = down5(208, 224); k = 0
                for m in ms: k = mm([m[0]], k + 1); k = fit(m[1:], k + 1)
                assert fit(yadr, k + 1) < 47
        if ht and not H2:
            if t == 2: fit(hpre, 42)
            if t == 6: fit(hw.s2_keys(), 64)
            if t == 7: assert fit(hw.s3_top2(), 10, 1) < 108
            if t == 8:
                sel = hw.s4_sel()
                k = [n for n, i in enumerate(sel) if not isinstance(i, int) and i.text.startswith(f"s_mov_b32 s64, {WS_RG}")][0]
                if opt['rgo'] == '1': sel[k:k + 1] = L(f"s_or_b32 s64, s31, s{K.sWAVE}\ns_min_u32 s64, s64, 1\ns_lshl_b32 s64, s64, 29\ns_add_u32 s64, s64, {WS_RG}")
                fit(sel, 4, 1)
            if t == 9:
                (r0, m0), (r1, m1) = hw.s5_gemm()
                k = fit([WAITV("HW")] + r0, 50); k = mm(m0, max(k + 6, 78)); k = fit(r1, k + 1); mm(m1, max(k + 6, 110))
            if t == 10: assert fit(dpre, 4) < 44
            if t == 11: fit(act5(), 2, 1)
            if t == 12:
                pre, ms, yadr = down5()
                k = fit(pre, xs_at)
                for m in ms: k = mm([m[0]], k + 2); k = fit(m[1:], k + 1)
                fit(yadr, k + 1)
        thin = lambda srd_, so: [side.touch(26, srd_, f"s{so}", nt=False)] + L(f"s_add_u32 s{so}, s{so}, {1024 if THIN else 2048}")
        if str(t) == opt['tH']:
            fit(L(f"""s_lshl_b32 s26, s2, 2
            s_add_u32 s26, s26, s{K.sWAVE}
            s_sub_u32 s25, s26, 448
            s_cselect_b32 s25, s26, s25
            s_cselect_b64 s[72:73], s[80:81], s[82:83]
            s_mul_i32 s25, s25, 3584
            {srd(32, 72, 448 * 3584)}
            v_lshlrev_b32 v27, 7, v0
            v_add_u32 v28, 4, v0
            v_lshrrev_b32 v28, 5, v28
            v_lshl_or_b32 v27, v28, 29, v27""") + [side.touch(27, 32, "s25", nt=False)], int(opt['tHg']))
        if str(t) == opt['tlb'][0]:
            tl_ = L(f"v_lshlrev_b32 v27, 21, v0\nv_min_u32 v28, 2, v0\nv_lshrrev_b32 v28, 1, v28\nv_lshl_or_b32 v27, v28, 29, v27")
            if 'x' in opt['tlb']: tl_ += [side.touch(27, K.S_X, f"s{K.sXOFF}", nt=False)]
            if 'q' in opt['tlb']: tl_ += [side.touch(27, K.S_WQ, 0, nt=False)]
            if 'k' in opt['tlb']: tl_ += L(f"s_mul_i32 s26, s{sH}, {HS}\nv_lshlrev_b32 v27, 24, v0\nv_min_u32 v28, 3, v0\nv_add_u32 v28, 1, v28\nv_lshrrev_b32 v28, 2, v28\nv_lshl_or_b32 v27, v28, 29, v27") + [side.touch(27, K.S_WS, "s26", nt=False)]
            fit(tl_, 60)
        xt = [int(x) for x in opt['tX'].split(",") if x]
        if xt and t == xt[0] // 2:
            assert fit(L(f"""s_lshl_b32 s26, s{sJ}, 1
            s_lshr_b32 s27, s{sH}, 3
            s_add_u32 s26, s26, s27
            s_lshl_b32 s26, s26, 2
            s_add_u32 s26, s26, s{K.sWAVE}
            s_mul_i32 s26, s26, 14336"""), 20) < 46
        if 2 * t in xt: fit(thin(K.S_X, 26), 48)
        if 2 * t + 1 in xt: tch += thin(K.S_X, 26)
        wt = [int(x) for x in opt['tW'].split(",") if x]
        if wt and qt:
            if t == wt[0]: fit(L(f"""s_and_b32 s27, s{sJ}, 7
                s_lshl_b32 s64, s{sH}, 3
                s_add_u32 s27, s27, s64
                s_lshl_b32 s27, s27, 2
                s_add_u32 s27, s27, s{K.sWAVE}
                s_mul_i32 s27, s27, 7168
                {srd(60, 90, 4096 * 896)}"""), 20)
            if t in wt: fit(thin(60, 27), int(opt['twg']))
        if str(t) in opt['tc'].split(','): tch += [side.touch(26, 76, 's95', nt=False)]
        if late:
            s = Sched(g); xr = int(opt['xr'])
            fl = lambda us: [i for u in us for i in u]
            if t == 12: s.add(items("a") + fl(dma[1]) + [By(110)], 49, 106, vmd=2)
            if t == 13:
                s.add(items("b") + fl(dma[0]) + [By(46)], 1, 42, vmd=2).add(items("c") + fl(dma[1]) + [At(72)] + items(UW[0]) + [By(110)], 49, 106, vmd=2)
                s.add(kv5.q_setup() + [By(70)], 48, 68)
                s.add(items("A") + [By(44), At(xr)] + items("B") + [By(108)], xr - 64, 100, asap=True)
            if t == 14:
                s.add(items("d") + fl(dma[0]) + items(UW[1]) + [By(46)], 1, 42, vmd=2).add(items(UW[2]) + [By(110)], 49, 106, vmd=2)
                s.add(items("C") + [By(44), At(xr)] + items("D") + [By(108)], xr - 64, 100, asap=True)
                s.add(kv5.q_setup2(), 50, 80)
            s.run()
        fit(tch, int(opt['tg']) - (10 if len(tch) > 8 else 0))
        out += g.flat()
        for ev in opt['te1'].split(","):
            te, p0, p1 = [int(x) for x in ev.split(":")]
            if t == te: out += wev('b', [f"kv{vt}{p}" for p in range(p0, min(p1, 12 + vt))])
        if t in (0, 1, 11, 14) or '1' in opt['fine']: out += stampa()
        if t in (0, 3, 5, 9, 14): out += jitter()
    g = kv5.kv_tile(15, vt, [[], []], endtags=[("U", 0), ("U", 1)])
    ks = KVStore(vt)
    lastw = {}
    for m in g.m:
        for r in m.writes: lastw[r] = m
    done_at = lambda n: max(p[0] * 16 + p[1] * 2 + 1 for p in ks.prs[n][:2]) + 4
    packs = {}
    for n, (ta, tb, off) in enumerate(ks.prs):
        ins, reg = kvq.pack(kacc(*ta), kacc(*tb), K.vT + (4 * (n & 1) if vt else 0))
        seen = set()
        for i in ins:
            for r in i.reads:
                if r in lastw and r not in seen: i.extra.setdefault("raw", {})[r] = lastw[r]
            seen |= set(i.writes)
        packs[n] = ins; ks.reg[n] = R("v", reg, 4); ks.src[n] = ins[-4:]
    qp = QPhase([32 + 4 * f for f in range(7)], [kacc(y, x)[1] for y in (3, 5) for x in range(8)] if vt else [kacc(y, x)[1] for y in (2, 3, 4, 5) for x in (1, 3, 5, 7)])
    qp.place_reads(g, 0, 112)
    g.put_s(127, qp.need(0, 0, 4))
    s = Sched(g)
    lo, hi = ints('s15'); st1 = []; cur = None
    for n in range(8):
        pg = ks.prs[n][2] >> 12
        st1 += [At(max(done_at(n), lo + n * (hi - lo) // 8 - 6))] + packs[n] + ks.st(n, "KV1", newpage=pg != cur); cur = pg
    s.add(st1 + [By(110)], 0, hi, asap=True)
    s.add(items(UW[3]) + [By(46)], 1, 42, vmd=2).add(items(UW[4]) + [By(108)], 49, 90)
    s.add(items("E") + [At(50)] + items("F") + [At(96)] + items("G") + [By(106)], 30, 100, asap=True)
    s.add([x for n in range(8, 32) for x in [At(done_at(n))] + packs[n]], 0, 127, asap=True)
    left = s.run(spill=True); assert not any(left[:4]), left
    carry = left[4]
    if '6' in opt['fine']:
        for k in range(31, 127, 32): g.ve[k] += stampa()
    out += g.flat() + fs('2')
    g = Gaps(qp.mfmas(xl))
    LV = {1: [("U", 2), ("U", 3)], 2: [("U", 4), ("U", 5)], 3: [("U", 6), ("U", 7)], 4: [("T", KSLOT[0])]}
    l2 = int(opt['l2']) if vt else 3
    LV[l2] = LV[l2] + ["KV2"]
    g.put_s(2, qp.need(0, 4, 7))
    for n in range(32):
        if n < 31: qp.place_reads(g, n + 1, 14 * n)
        else: put_batch(g, rd_batch(KSLOT[0], 0), 14 * n); g.put_s(14 * n + 13, need_batch(0))
        if n % 8 == 6:
            g.put_s(14 * n + 12, WAITV(LV[n // 8 + 1], lgkm0=True)); g.put_s(14 * n + 13, I("s_barrier"))
        elif n < 31:
            g.put_s(14 * n + 13, qp.need(n + 1, 0, 4)); g.put_s(14 * n + 16, qp.need(n + 1, 4, 7))
    QB = lambda x: 112 * x - 14
    setup = kv5.q_bank(1) + [By(90)] + side.lane0_wave0(A.vF0) + L(f"""
    v_min_u32 v9, 15, v0
    v_lshlrev_b32 v9, 7, v9
    s_sub_u32 s66, 15, s{sJ}
    s_max_u32 s67, s66, s{sJ}
    s_min_u32 s66, s66, s{sJ}
    s_mul_i32 s{A.sK}, s{sH}, {HS}
    s_lshl_b32 s64, s67, 16
    s_add_u32 s{A.sQ}, s{A.sK}, s64
    s_lshl_b32 s64, s{A.sWAVE}, 14
    s_add_u32 s{A.sQ}, s{A.sQ}, s64
    s_add_u32 s{A.sQ}, s{A.sQ}, {WS_Q}
    s_sub_u32 s64, s{sJ}, {JH + 1}
    s_and_b32 s{sNC}, s64, {OOB}
    v_or_b32 v6, s{sNC}, v{A.vL16}
    """) + [By(80)] + L(f"""
    s_lshl_b32 s{A.sM0}, s{A.sWAVE}, 13
    v_add_u32 v{A.vRD1}, 0x10000, v{A.vL16}
    v_add_u32 v{A.vDM0}, s{A.sM0}, v{A.vL16}
    v_add_u32 v{A.vDM1}, 0x1000, v{A.vDM0}
    s_lshl_b32 s64, s{sJ}, 16
    s_add_u32 s{A.sKn1}, s{A.sK}, s64
    s_add_u32 s{sVD}, s{A.sKn1}, {WS_V}
    s_add_u32 s{A.sV}, s{A.sK}, {WS_V}
    {f'''s_min_u32 s{A.sIT}, s{sJ}, {JH}
    s_lshl_b32 s{A.sKcnt}, s{A.sIT}, 1
    s_sub_u32 s{A.sKcnt}, s{A.sKcnt}, 1
    s_sub_u32 s{A.sIT}, s{A.sIT}, 2''' if vt else f'''s_mov_b32 s{A.sKcnt}, 0x7fff
    s_sub_u32 s{A.sIT}, s{sJ}, 1
    s_cmp_eq_u32 s{sJ}, 0
    s_cselect_b32 s64, 32768, 0
    s_add_u32 s{A.sV}, s{A.sV}, s64'''}
    s_mov_b32 s{A.sTHR}, {hex(f2u(float(opt['thr'])))}
    s_mov_b32 s{A.sLOW}, {hex(f2u(float(opt['low'])))}
    s_lshl_b32 s47, s66, 7
    s_add_u32 s47, s47, s46
    s_lshl_b32 s64, s{A.sWAVE}, 5
    s_add_u32 s47, s47, s64
    s_add_u32 s47, s47, 2048
    s_lshl_b32 s65, s{sH}, 3
    s_add_u32 s65, s65, s66
    s_mul_i32 s{A.sPO}, s65, {PO_STRIDE}
    s_add_u32 s{A.sPO}, s{A.sPO}, {WS_PO}
    s_lshl_b32 s65, s{sJ}, 4
    s_add_u32 s65, s65, s{sH}
    s_mul_i32 s{A.sOP}, s65, {OP_HEAD}
    s_mul_i32 s65, s{A.sWAVE}, 28672
    s_add_u32 s{A.sOP}, s{A.sOP}, s65
    s_add_u32 s{A.sOP}, s{A.sOP}, {WS_OP}
    {f's_or_b32 s{A.sOP}, s{A.sOP}, {OOB}' if ('k' in opt['wi'] and not vt) or ('v' in opt['wi'] and vt) else ''}
    s_mov_b32 s{A.sREQ}, 0
    s_mov_b32 s{A.sCHK}, {vt}
    s_mov_b32 s{sMODE}, 1
    s_cmp_eq_u32 s{A.sWAVE}, 0
    s_cselect_b32 s{sMLD}, {6 if vt else 7}, 4
    {'' if vt else f'''s_lshl_b32 s64, s{sH}, 1
    s_add_u32 s64, s64, s{A.sWAVE}
    s_cmp_lt_u32 s64, 30
    s_cselect_b32 s64, {0 if 'h' in opt['skip'] else (15 << TY) | (1 << 15)}, 0
    s_cmp_ge_u32 s{A.sWAVE}, 2
    s_cselect_b32 s64, s64, 0
    s_cmp_eq_u32 s{sJ}, {JY}
    s_cselect_b32 s64, s64, 0
    s_or_b32 s{sMLD}, s{sMLD}, s64'''}
    s_mov_b64 s[60:61], s[76:77]
    s_mov_b32 s62, s78
    s_mov_b32 s63, 0x20000
    v_lshrrev_b32 v24, 4, v0
    v_lshlrev_b32 v24, 2, v24
    v_and_b32 v25, 15, v0
    v_sub_u32 v24, v24, v25
    """) + [I(f"v_cmp_lt_i32 s[{A.sTRI[e]}:{A.sTRI[e]+1}], {-e}, v24") for e in range(4)] + side.code_addr(0, 25) + (selm(24) if opt['selq'] == '1' else []) + [By(int(opt['fl']) - 6)]
    dq = items(opt['q0'], int(opt['qsep'])) + L(f"v_mov_b32 v{A.vNEG}, 0xff800000")
    assert all(v == 7 for v in uq.values())
    W1 = f"buffer_load_dword v{A.vRL}, v31, {WSR}, s46 offen offset:4 sc1"
    wchk = lambda n, half: L(f"v_cmp_ne_u32 vcc, 1, v{A.vRL}\ns_nop 0\ns_cmp_lg_u32 vcc_{half}, 0\ns_cbranch_scc1 L_ws{n}\nL_wr{n}:")
    WSPIN[f"q{vt}"] = (W1, "lo"); WSPIN[f"r{vt}"] = (W1, "hi")
    dq2 = [At(int(opt['fl']) - 4)] + L(f"v_lshrrev_b32 v31, 6, v{A.vL16}\nv_bfe_u32 v28, v{A.vL16}, 4, 2\nv_lshlrev_b32 v31, 5, v31\nv_add_lshl_u32 v31, v31, v28, 2\n{W1}") + [At(int(opt['fc']))] + wchk(f"q{vt}", "lo") + dma_flat(KSLOT[0], A.sK) + adv_k()
    k1 = dma_flat(KSLOT[1], A.sK)
    dq2 += [At(QB(3))] + k1[:3] + L(W1) + k1[3:] + adv_k() + [At(int(opt['fv']))] + wchk(f"r{vt}", "hi") + dma_flat(4, A.sV) + adv_v()
    qout = []; qsts = []
    def qst(qb, kq): return [I(f"s_add_u32 s30, s{A.sQ}, {(qb * 8 + kq) >> 2 << 12}"), I(f"buffer_store_dwordx4 a[{Qreg(qb, kq)}:{Qreg(qb, kq)+3}], v6, {WSR}, s30 offen offset:{(kq & 3) * 1024} sc1", tag="QST")] if vt and opt['nost'] != '1' else []
    for cg in range(4):
        for p2 in range(2):
            for qb in QO:
                if (cg, p2) == (3, 1): continue
                ins, k = qp.out(cg, p2, qb, Qreg(qb, 2 * cg + p2))
                qout += [At(k + 4)] + ins
                qsts.append((ins[-1], qst(qb, 2 * cg + p2)))
                if qsts[-1][1]: dep(qsts[-1][1][-1], *ins[-4:])
    qlast = lambda: qp.out(3, 1, QO[0], Qreg(QO[0], 7))[0] + [By(4), At(1)] + qp.out(3, 1, QO[1], Qreg(QO[1], 7))[0] + [By(12)]
    nq = ints('qd')[4]
    qrest = [i for k, i in qsts[nq:]] + [qst(QO[0], 7), qst(QO[1], 7)]
    qw = ints('qw') if vt else [0] * 7; assert not vt or sum(qw) == len(qrest), len(qrest)
    qpart = lambda m: [x for i in qrest[sum(qw[:m]):sum(qw[:m + 1])] for x in i]
    uq_at = 82
    s = Sched(g)
    s.add(carry, 0, 40, asap=True)
    s.add(dq, 0, 240, asap=True, vmd=2).add(dq2, 0, 430, asap=True, vmd=int(opt['kvd']))
    kq = 8 + sum(int(x, 16) for x in opt['qk']); kw = ints('kw'); assert kq + sum(kw) == 32 and kw[2] <= 8
    plan = [int(x, 16) for x in opt['qv' if vt else 'qk']]; pos = ints('qp'); sts = []; n0 = 8
    for m, k in zip(plan, pos):
        sts += [At(k)] + [x for i in ks.many(range(n0, n0 + m), lambda n: "KV2" if n < 16 else "KV4") for x in ([Sep(int(opt['ssep'])), i] if i.kind != 'vst' else [i])]; n0 += m
    assert n0 == (16 if vt else kq)
    s.add(sts, 0, 447, asap=True)
    s.add(qout, 0, 447, asap=True)
    qd = ints('qd'); nq = qd[4]
    ready = [i for i in setup if isinstance(i, Inst) and i.text.startswith("v_or_b32 v6,")][0]
    for k, i in qsts:
        if i: dep(i[1], ready); dep(i[0], [x for x in setup if isinstance(x, Inst) and f"s{A.sQ}" in x.writes][-1])
    s.add([At(uq_at)] + [x for n, (k, i) in enumerate(qsts[:nq]) for x in [At(qd[n // 4]), Sep(int(opt['ssep'])), After(k)] + i], 0, 447, asap=True)
    s.add(setup, 20, int(opt['fl']) - 20)
    w1 = L(f"""s_mul_i32 s72, s{sH}, {FSTR}
    s_add_u32 s46, s72, {WS_FL}
    s_lshl_b32 s{sFL}, s{sJ}, 7
    s_add_u32 s{sFL}, s{sFL}, s46
    s_lshl_b32 s72, s{A.sWAVE}, 2
    s_add_u32 s72, s72, s{sFL}
    v_min_u32 v29, 1, v0
    v_lshlrev_b32 v29, 29, v29
    v_mov_b32 v30, 1""") + [At(int(opt['l1'])), WAITV("KV1"), I(f"buffer_store_dword v30, v29, {WSR}, s72 offen offset:4 sc1")]
    s.add(w1 + [At(QB(l2))] + level(2, 30), 0, 447, asap=True)
    s.run()
    if '6' in opt['fine']:
        for k in range(27, 447, 28): g.ve[k] += stampa()
    if '8' in opt['fine']:
        for k in range(213, 447, 14): g.ve[k].append(I("s_nop 0 ; us"))
    if 'q' in opt['warm']:
        k, p0 = ints('wqg'); g.ve[k] += wev('q', [f"kv{vt}{p}" for p in range(p0, 12 + vt)] + ([] if vt else []))
    if opt['idq'] != '-': g.ve[int(opt['idq'])].append(I("s_sleep 32"))
    if '7' in opt['fine']:
        for x in range(1, 5): g.ve[QB(x) - 3] += stampa(); g.ve[QB(x) - 1] += stampa()
    out += g.flat() + stamp(26) + (EXIT() if opt['kvonly'] == '2' else []) + jitter()
    init = lambda: [I(f"v_mov_b32 v{r}, 0") for r in [A.vLS, A.vLS + 1] + list(range(A.vNM, A.vNM + 8))]
    rd2 = lambda: L(f"v_add_u32 v16, 0x20000, v{A.vL16}")
    g = Gaps(qk_mfmas(0, C0, order=QO, asc0=True))
    tile_reads(g, lambda b: rd_batch(KSLOT[0], b), rd_batch(KSLOT[1], 0), [("T", KSLOT[1])])
    s = Sched(g).add(qlast() + [x for i in qpart(0) for x in ([Sep(int(opt['q0s'])), i] if i.kind != 'vst' else [i])], 0, 20, asap=True).add(dma_flat(VSLOT[1], A.sV) + adv_v(), 10, ints('dh')[0]).add(rd2(), 30, 63)
    if vt:
        a, b = ints('vq'); n0 = 16 + a + b; assert n0 <= 24
        qf = int(opt['qf'])
        qflag = L(f"v_min_u32 v17, 1, v{A.vL16}\nv_lshlrev_b32 v17, 29, v17\nv_mov_b32 v15, 1\ns_add_u32 s84, s47, 16") + [At(qf % 64), WAITV("QST"), side.flag_store(84, 17, 15), By(62)]
        s.add((qflag if qf < 64 else []) + ks.many(range(16, 16 + a), "KV4"), ints('sw')[0], 62, asap=True)
        def park(ns):
            o = [I(f"v_accvgpr_write_b32 a{128 + 4 * (n - 16) + e}, v{int(ks.reg[n][2:ks.reg[n].index(':')]) + e}") for n in ns for e in range(4)]
            for i in o: dep(i, *[p for n in ns for p in ks.src[n]])
            return o
    else:
        km = kq + kw[0]
        s.add(ks.many(range(kq, km), "KV4"), *ints('sw'))
    s.run()
    grp, early = groups_first(0, QO)
    sched_sm(g, grp, 12, 62, early=early)
    if '8' in opt['fine']:
        for k in (0, 16, 32): g.ve[k].append(I("s_nop 0 ; us"))
    qk0 = g.flat() + jitter() + stampa() + (L("s_sleep 32") if str(vt) in opt['idle'] else [])
    if vt:
        w1, left = win_qk1(4, 16, "v1", lambda s: s.add(ks.many(range(16 + a, n0), "KV4") + [By(60)], *ints('sw')).add(qflag if 64 <= qf < 128 else [], 0, 60, asap=True).add(park(range(n0, 24)) + [By(58)], 0, 56).add(qpart(1), *ints('sw')))
        vp = ints('vp'); assert n0 + sum(vp) == 32
        later = lambda m: (lambda s: s.add(ks.many(range(n0 + sum(vp[:m]), n0 + sum(vp[:m + 1])), "KV4", lambda n: R("a", 128 + 4 * (n - 16), 4)), *ints('sw')).add(qpart(m + 2), *ints('sw')).add(qflag if qf // 64 == m + 2 else [], 30, 60, asap=True))
        def pv0x(s): s.add(park(range(24, 32)) + [By(28)], 0, 28); later(0)(s)
        ex = [[], [], []]
        if LATER:
            ex[0] = L(f"""s_and_b32 s66, s{sJ}, 7
            s_lshl_b32 s67, s{sH}, 3
            s_add_u32 s67, s66, s67
            s_lshl_b32 s67, s67, 2
            s_add_u32 s67, s67, s{K.sWAVE}
            s_mul_i32 s67, s67, 7168
            s_mul_i32 s86, s{K.sWAVE}, 7168
            s_add_u32 s86, s86, 131072""")
            for o_, n_ in ((0, 4), (4096, 3)):
                ex[0] += [I(f"s_add_u32 m0, s86, {o_}")] + [I(f"buffer_load_dwordx4 v7, s[{S_WO}:{S_WO+3}], s67 offen offset:{1024*q} lds", tag="WO", lds=(131072, 163840, "WO")) for q in range(n_)] + L("s_add_u32 s67, s67, 4096")
            ex[1] = L(f"""v_lshrrev_b32 v12, 6, v7
            v_mul_u32_u24 v12, 896, v12
            v_and_b32 v13, 48, v7
            s_lshr_b32 s67, s{K.sWAVE}, 1
            s_lshl_b32 s67, s67, 6
            s_and_b32 s86, s{K.sWAVE}, 1
            s_lshl_b32 s86, s86, 3
            s_add_u32 s67, s67, s86
            s_add_u32 s67, s67, 131072
            v_add3_u32 v12, v12, v13, s67
            s_lshl_b32 s94, s{sH}, 18
            s_lshl_b32 s66, s66, 10
            s_add_u32 s94, s94, s66
            s_lshl_b32 s66, s{K.sWAVE}, 13
            s_add_u32 s94, s94, s66
            s_add_u32 s94, s94, {WS_WO}""") + [I(f"ds_read_b64_tr_b16 a[{192+4*n+2*q}:{193+4*n+2*q}], v12 offset:{n*128 + q*14336}", lds=(131072, 163840, "r")) for n in range(7) for q in range(2)] + [By(44)]
            ex[2] = [x for n in range(7) for x in (I(f"s_add_u32 s30, s94, {n * 32768}"), I(f"buffer_store_dwordx4 a[{192+4*n}:{195+4*n}], v7, {WSR}, s30 offen sc1"))]
        both = lambda f, e, lo, hi: (lambda s: (f(s), s.add(e, lo, hi)))
        c.block("kv1", "L_kv1:", out, qk0, w1, win_pv0(4, 16, pv0x), jitter(), fs('3'), win_qk(1, "v2", later(1), dma2=ex[0]), win_pv(1, later(2), tags=["WO"]), fs('3'),
                win_qk(0, "v3", both(later(3), ex[1], 0, 40)), win_pv(0, both(later(4), ex[2], *ints('rw2'))), "s_sleep 32" if 'v' in opt['idle'] else "", jitter(), "s_branch L_loop_top")
    else:
        c.block("kv0", "L_kv0:", out, f"s_cmp_eq_u32 s{sJ}, 0\ns_cbranch_scc1 L_j0")
        c.block("k1", qk0, win_qk1(4, 16, "k1", lambda s: s.add(ks.many(range(km, km + kw[1]), "KV4") + [By(60)], *ints('sw')))[0],
                win_pv0(4, 16, lambda s: s.add(ks.many(range(km + kw[1], 32), "KV4") + [By(28)], 4, 28)), f"s_cmp_lg_u32 s{A.sIT}, 0\ns_cbranch_scc1 L_loop_top\ns_branch L_d1s")
        g = Gaps(qk_mfmas(0, lambda kb, qb: R("v", Sreg(0, kb, 0), 4) if qb == 0 else "0", order=(1, 0), asc0=True))
        tile_reads(g, lambda b: rd_batch(KSLOT[0], b), rd_batch(KSLOT[1], 0), [("T", KSLOT[1])])
        ql = qp.out(3, 1, 1, Qreg(1, 7))[0] + [By(5)] + qp.out(3, 1, 0, Qreg(0, 7))[0] + [By(12)]
        pr = presets(False, zero=True)
        LSPIN["j0"] = (2, 17)
        s = Sched(g).add([At(1)] + ql, 0, 20, asap=True).add([x for kb in range(4) for x in pr[kb] + [By(16 * kb + 6)]], 0, 50)
        s.add(L(f"s_mov_b32 s{A.sV}, s{sVD}") + dma_flat(VSLOT[0], A.sV) + L(f"v_min_u32 v17, {7 << 7}, v9\nbuffer_load_dword v{A.vRL}, v17, {WSR}, s46 offen sc1"), 14, 44)
        s.add(init(), 0, 63).add(ks.many(range(kq, 32), "KV4"), 16, 62, vmd=2).run()
        grp, early = groups_first(0, (1, 0))
        sched_sm(g, grp, 12, 62, early=early)
        ucheck = L(f"v_mov_b32 v{A.vX}, v{A.vSUM}\nv_mov_b32 v{A.vX+1}, v{A.vSUM+1}") + [i for p in zip(xlane("v_max_f32", A.vX, A.vX + 2), xlane("v_max_f32", A.vX + 1, A.vX + 3)) for i in p] + L(f"""
            v_min_f32 v{A.vX}, v{A.vX}, v{A.vX+1}
            v_cmp_gt_f32 vcc, s{A.sLOW}, v{A.vX}
            s_cbranch_vccnz L_stj0
            L_rtj0:""")
        zz = [I(f"v_mov_b32 v{A.vP1 + e}, 0") for e in range(4)]
        rest = [i for p in presets(True) for i in p]
        c.block("j0", "L_j0:", g.flat(), stampa(), zz, HELPER_K(), PBASE(), lcheck(2, "j0"), mix(ucheck[:-2], dma_flat(KSLOT[0], A.sK) + adv_k(), 1), ucheck[-2:], zero_O_mfma(rest, A.vP1), "s_branch L_d3h")

def build_att(c):
    X.update(nodma=int(opt['xl'][0]), nobar=int(opt['xl'][1]), rp=int(opt['xl'][2]), dp=int(opt['xl'][3])); att.WI.update(nr=int(opt['nr']), noadd=int(opt['noadd']))
    c.block("loop_top", "L_loop_top:" if WARM else ".p2align 6\nL_loop_top:", fs('3'), att.win_qk(1, "L_st1", "L_rt1", extra=[side.touch(0, 60, 0, nt=False)] if opt['tl'] == '1' else [])[0], att.win_pv(1))
    c.block("loop_mid", fs('3'), att.win_qk(0, "L_st0", "L_rt0", head=L(f"s_bitcmp1_b32 s{sMLD}, s{A.sCHK}\ns_cbranch_scc1 L_fll\nL_fllr:"))[0],
            att.win_pv(0, tail=L(f"s_sub_u32 s{A.sIT}, s{A.sIT}, 1\ns_cmp_lg_u32 s{A.sIT}, 0\ns_cbranch_scc1 L_loop_top"),
                       chk=L(f"""v_cmp_gt_u32 vcc, s{A.sREQ}, v{A.vRL}
                       s_cbranch_vccnz L_fls0
                       L_flr0:
                       s_mov_b32 s{A.sREQ}, 0
                       s_add_u32 s{A.sCHK}, s{A.sCHK}, 1""")))
    if opt['emu'] != '0':
        for b in ("loop_top", "loop_mid"):
            o = []; n = 0; nb = 0; nw = 0; nm = 0
            for i in c.blocks[b]:
                if i.kind == "mfma": nm += 1
                if i.kind == "dma" and f"s{A.sV} offen" in i.text:
                    i = I(i.text.replace("dwordx4 v", f"dwordx4 a[{192 + 4 * n}:{195 + 4 * n}], v").replace(" lds", ""), tag="TOUCH"); n += 1
                if i.op == "s_barrier":
                    nb += 1
                    if nb == 1: continue
                if i.kind == "dsr" and ", v7 " in i.text:
                    f = int(re.search(r"offset:(\d+)", i.text).group(1)) // 1024 % 8
                    if f >= 3:
                        if f == 4 and nw < 4: o.append(I(f"ds_write_b128 v2, v[{40 + 4 * nw}:{43 + 4 * nw}] offset:{61440 + 1024 * nw}")); nw += 1
                        continue
                o.append(i)
            c.blocks[b] = o
    att.WI.update(nr=8, noadd=0); X.update(nodma=0, nobar=0)
    c.block("p1", f"s_cmp_eq_u32 s{sMODE}, 0\ns_cbranch_scc1 L_final_h")
    g = Gaps(qk_mfmas(0, lambda kb, qb: R("v", Sreg(0, kb, 0), 4) if qb == 0 else NMq(1), order=(1, 0)))
    tile_reads(g, lambda b: rd_batch(KSLOT[0], b), rd_batch(VSLOT[1], 0), [("T", VSLOT[1])])
    pr = presets(False)
    Sched(g).add([x for kb in range(4) for x in pr[kb] + [By(16 * kb + 6)]], 0, 50).add(
        L(f"s_mov_b32 s{A.sV}, s{sVD}\nv_min_u32 v17, {7 << 7}, v9\nbuffer_load_dword v{A.vRL}, v17, {WSR}, s46 offen sc1") + dma_flat(VSLOT[0], A.sV) + adv_v() + dma_flat(4, A.sV, 0, 4), 1, 60).add(PBASE(), 30, 62).run()
    put_tail(g, sched_sm(g, softmax_groups(1, 1), 0, 56), check(1, "L_std1"))
    c.block("d1", "L_d1s:", stampa(), g.flat(), "L_rtd1:", fs('4'), f"s_cmp_lt_u32 s{sJ}, {15 - JH}\ns_cbranch_scc1 L_d2h")
    pg = lambda k: [f"loop_top{p}" for p in ints(k)]
    wq = ints('rq' if RELAY else 'wq')
    if RELAY: opt['d3w'] = opt['r3w']; opt['five'] = opt['rfive']
    class WoQ:
        def __init__(self, slots): self.slots, self.n = slots, 0
        def take(self, m):
            o = []
            while m and self.n < 56:
                t, i = divmod(self.n, 8); k = min(m, 8 - i)
                o += wo_dma(self.slots[t], i, i + k); self.n += k; m -= k
            return o
    def d2(nxt):
        g = Gaps(pv_mfmas(1))
        tile_reads(g, lambda b: rd_batch(VSLOT[1], b), rd_batch(KSLOT[1], 0), [("T", KSLOT[1])])
        Sched(g).add(dma_flat(4, A.sV, 4, 8) + nxt, 1, 60).add([i for p in presets(True) for i in p] + [By(61)], 4, 60).run()
        sched_sm(g, softmax_groups(0, 0), 0, 62, add_l(1))
        return g.flat() + fs('4')
    P8 = [int(x) for x in opt['p8']]
    def d3(stub, extra):
        g = Gaps(qk_mfmas(1, lambda kb, qb: R("v", Sreg(1, kb, 1), 4), order=(1,)))
        tile_reads(g, lambda b: rd_batch(KSLOT[1], b), rd_batch(VSLOT[0], 0), [("T", VSLOT[0])], per=8, pat=P8)
        Sched(g).add(L(f"v_add_u32 v{A.vNEG}, 0x20000, v{A.vL16}") + extra, 4, 30, asap=True).run()
        put_tail(g, sched_sm(g, softmax_groups(0, 1), 0, 30), check(0, f"L_st{stub}"))
        return g.flat() + L(f"L_rt{stub}:") + fs('4')
    def d4(stub, s1, s2, lo2, hi2, pub=False, hi1=60, asap=False):
        g = Gaps(pv_mfmas(0))
        tile_reads(g, lambda b: rd_batch(VSLOT[0], b), rd_batch(4, 0, A.vNEG), [("T", 4)] + (["KV4"] if pub else []))
        Sched(g).add(s2, lo2, hi2, vmd=2, asap=asap).add(s1, 1, hi1, vmd=2).add(level(4, A.vX + 5) if pub else [], 48, 52, asap=True).run()
        put_tail(g, sched_sm(g, groups_b(), 0, 60, add_l(0)), check_b(f"L_st{stub}"))
        return g.flat() + L(f"L_rt{stub}:") + fs('4')
    addb = lambda: L(f"v_add_f32 v{A.vLS + 1}, v{A.vSUM + 3}, v{A.vLS + 1}")
    wo = WoQ([3, 1, 2, 0, 4, 3, 1] if opt['five'] == '1' else [3, 1, 2, 0, 3, 1, 2])
    c.block("d2n", jitter(), "s_sleep 32" if 'n' in opt['idle'] else "", wev('n', pg('wn')), d2(wo_setup(A.vX + 4) + wo.take(wq[0])))
    LC = opt['lc'] == '1'; NRM = opt['nrm'] == '1'; assert not (LC and NRM)
    c.block("d3n", d3("d3n", wo.take(int(opt['d3w'])) + ([] if LC else [At(int(opt['fpl'])), FP_LOAD()])))
    pl = L(f"v_or_b32 v9, s{sNC}, v{A.vL16}\nv_cmp_ne_u32 vcc, 1, v{A.vRL + 1}\ns_cbranch_vccnz L_fps\nL_fpr:") + [I(f"buffer_load_dwordx4 v[{A.vX+4}:{A.vX+7}], v9, {WSR}, s90 offen sc1")]
    for kq in range(8):
        for qb in (1, 0):
            n = qb * 8 + kq
            pl.append(I(f"buffer_load_dwordx4 a[{A.aX + 4*n}:{A.aX + 4*n + 3}], v9, {WSR}, s{86 + n // 4} offen offset:{(n & 3) * 1024} sc1"))
    ctest = lambda: L(f"""
    v_cmp_neq_f32 vcc, v{A.vNM}, v{A.vX+4}
    v_cmp_neq_f32 s[64:65], v{A.vNM+4}, v{A.vX+5}
    s_cmp_eq_u32 s{sNC}, 0
    s_cselect_b64 s[66:67], -1, 0
    s_or_b64 vcc, vcc, s[64:65]
    s_and_b64 vcc, vcc, s[66:67]
    s_cbranch_vccnz L_stc
    L_rtc:""")
    pn = lambda k0: NEED(*[R("a", A.aX + (qb * 8 + kq) * 4, 4) for kq in (k0, k0 + 1) for qb in range(2)])
    l2 = lambda: L(f"v_add_f32 v{A.vLS}, v{A.vX+6}, v{A.vLS}\nv_add_f32 v{A.vLS+1}, v{A.vX+7}, v{A.vLS+1}")
    if not LC:
        c.block("d4n", d4("d4n", wo.take(wq[1]), pl, int(opt['fpc']), int(opt['pl'])))
        g = Gaps(pvb_mfmas(True))
        tile_reads(g, lambda b: rd_batch(4, b, A.vNEG), rd_wo(3, 0), [("T", 3)], npat=None if RELAY else RP16)
        for k, k0 in ((1, 0), (14, 2), (30, 4), (45, 6)): g.put_s(k, pn(k0))
        lf = l2() + addb() + lfin2()
        nrm = lambda kq, qb: [I(f"v_mul_f32 v{Oreg(2 * kq + h, qb) + e}, v{A.vRL + qb}, v{Oreg(2 * kq + h, qb) + e}") for h in range(2) for e in range(4)] if NRM else []
        cv = ([After(lf[-1])] if NRM else []) + [x for kq in range(8) for qb in (1, 0) for x in [At(8 * kq + 11 - qb)] + nrm(kq, qb) + cvt_ctx(kq, qb)]
        left = Sched(g).add(oa_setup(A.vX + 4) + [By(46)], 20, 44).add(lf + [By(19)], 0, 14 if NRM else 18).add(wo.take(wq[2]), 2, 40).add(cv, 0, 63, asap=True).run(spill=True)
        c.block("d5n", NEED(R("v", A.vX + 4, 4)), ctest(), g.flat(), [i for l in left for i in l], stampa())
    else:
        n4 = 5 + int(opt['n4'])
        c.block("d4n", d4("d4n", wo.take(wq[1]) + [By(int(opt['fpc']) - 2)], [At(int(opt['fpl'])), FP_LOAD(), At(int(opt['fpc']))] + pl[:n4] + [By(60)], 0, 60, hi1=int(opt['fpc']) - 4, asap=True))
        g = Gaps(pvb_mfmas() + comb_mfmas())
        tile_reads(g, lambda b: rd_batch(4, b, A.vNEG), None, [("T", 3)], per=8, pat=P8)
        put_batch(g, rd_wo(3, 0), 40); g.put_s(62, need_batch(0))
        ct = ctest()
        for i in [pn(0)] + ct[-2:]: g.put_s(31, i)
        for k, k0 in ((39, 2), (47, 4), (55, 6)): g.put_s(k, pn(k0))
        cv = [x for kq in range(8) for qb in (1, 0) for x in [At(32 + 4 * kq + 7 - 2 * qb)] + cvt_ctx(kq, qb)]
        lf = l2() + lfin2()
        left = Sched(g).add(pl[n4:] + [By(30)] + wo.take(wq[2]), 0, 40, asap=True, vmd=1).add(addb() + oa_setup(A.vX) + [By(22), At(24)] + ct[:-2] + [By(30), At(32)] + lf[:2] + [By(34)], 4, 30).add(cv + lf[2:], 0, 63, asap=True).run(spill=True)
        c.block("d5n", g.flat(), [i for l in left for i in l], stampa())
    def op_out(j, split=False, mul=True, pps=(0, 1)):
        b = j & 1
        ins = L(f"s_add_u32 s{A.sT0}, s{A.sOP}, {2 * j * 1024}\ns_add_u32 s{A.sT1}, s{A.sOP}, {14336 + 2 * j * 1024}") if 0 in pps else []
        for pp in pps:
            for qb in range(2):
                if split: ins.append(At(32 * pp + 27 + 8 * qb))
                a, d = Sreg(b, 2 * pp, qb), Sreg(b, 2 * pp + 1, qb)
                if mul: ins += [I(f"v_mul_f32 v{r + e}, v{A.vRL + qb}, v{r + e}") for r in (a, d) for e in range(4)]
                ins += kvq.pack(("v", a), ("v", d), 0)[0]
                ins.append(I(f"buffer_store_dwordx4 v[{a}:{a+3}], v{A.vL16}, {WSR}, s{A.sT0 + qb} offen offset:{pp * 1024} {opt['ofl'].replace('+', ' ')}", tag=("OP", j)))
        return ins
    fop = lambda: L(f"""
    s_sub_u32 s64, 15, s{sJ}
    s_min_u32 s64, s64, s{sJ}
    s_mul_i32 s{sFL}, s64, {2 * FSTR}
    s_lshl_b32 s64, s{sH}, 2
    s_add_u32 s{sFL}, s{sFL}, s64
    s_lshl_b32 s64, s{A.sWAVE}, 8
    s_add_u32 s{sFL}, s{sFL}, s64
    s_add_u32 s{sFL}, s{sFL}, {WS_FOP}
    s_mov_b32 s64, 1024
    s_mov_b32 s66, {FSTR - 256}
    s_cmp_lt_u32 s{sJ}, 8
    s_cselect_b32 s64, {FSTR}, s64
    s_cselect_b32 s65, 0, 64
    s_cselect_b32 s66, {OOB}, s66
    s_add_u32 s3, s{sFL}, s64
    s_add_u32 s{sFL}, s{sFL}, s65
    v_lshrrev_b32 v{A.vX + 7}, 5, v{A.vL16}
    v_min_u32 v{A.vX + 5}, 1, v{A.vX + 7}
    v_lshlrev_b32 v{A.vX + 4}, 3, v{A.vL16}
    v_lshl_or_b32 v{A.vX + 6}, v{A.vX + 5}, 29, v{A.vX + 4}
    v_cmp_eq_u32 vcc, 1, v{A.vX + 7}
    v_add_u32 v{A.vX + 4}, s66, v{A.vX + 4}
    v_mov_b32 v{A.vX + 5}, 1
    v_cndmask_b32 v{A.vX + 7}, v{A.vX + 6}, v{A.vX + 4}, vcc
    """)
    def outproj(wo, quota, ctx, first=(), extra0=(), prep=False):
        ow = []; sl = wo.slots
        for j in range(7):
            g = Gaps(qk_mfmas(j & 1, C0, breg=ctx))
            tile_reads(g, lambda b: rd_wo(sl[j], b), rd_wo(sl[j + 1], 0) if j < 6 else None, [("T", sl[j + 1])] if j < 6 else None)
            s = Sched(g)
            if j < len(quota): s.add(wo.take(quota[j]), 1, int(opt['odh']), vmd=2)
            if j == 0: s.add(list(first) + fop() + list(extra0) + [I(f"v_add_u32 v{vOA[2] + x}, 0x20000, v{A.vL16 if RELAY else vOA[0] + x}") for x in range(1 if RELAY else 4)], 0, 40, asap=True)
            jv = (side5.NE - 1) // 2 + 2
            if j == 5 or (j == jv and prep):
                sel = L(f"s_cmp_{'lt' if j == 5 else 'ge'}_u32 s{sJ}, 8\ns_cselect_b32 s84, s{sFL}, {OOB}") if prep and jv != 5 else L(f"s_mov_b32 s84, s{sFL}")
                s.add(sel + [At(int(opt['efg'])), WAITV([("OP", j - 2)]), I(f"buffer_store_dword v{A.vX + 5}, v{A.vX + 7}, {WSR}, s84 offen sc1")], 40, 60, asap=True)
            if j == int(opt['pv1']): s.add(side5.red_v1(A.vL16) if prep else side5.red_k1(A.vL16), 0, 60)
            if prep and j == int(opt['pv2']): s.add(side5.red_v2() + [By(60)], 4, 56)
            if SENT and prep and j == 0:
                mk = [I(f"v_mov_b32 v{Sreg(1, 0, 0) + e}, -1") for e in range(4)] + L(f"s_sub_u32 s73, s{sJ}, 8\ns_and_b32 s73, s73, {OOB}\ns_add_u32 s73, s73, s{A.sOP}\ns_add_u32 s72, s73, 12288\ns_add_u32 s73, s73, {14336 + 12288}")
                s.add(mk + [I(f"buffer_store_dwordx4 v[{Sreg(1, 0, 0)}:{Sreg(1, 0, 0) + 3}], v{A.vL16}, {WSR}, s{72 + (n >> 1)} offen offset:{(n & 1) * 1024} sc1") for n in range(4)] + [By(60)], *ints('mkg'))
            if SENT and prep and j == 6: s.add([At(int(opt['pg']))] + L(side5.FOP_LOAD) + [By(62)], 0, 62, asap=True)
            mul = not (prep and NRM)
            if HALF: s.add((op_out(j - 1, mul=mul, pps=(1,)) if j else []) + op_out(j, True, mul, pps=(0,) if j < 6 else (0, 1)), int(opt['olo']), 63, asap=True, vmd=2)
            elif j > 0: s.add(op_out(j - 1) + (op_out(6, True) if j == 6 else []), int(opt['olo']), 62 if j < 6 else 63, asap=j == 6, vmd=2)
            left = s.run(spill=j == 6)
            ow += g.flat() + fs('5')
        assert wo.n == 56
        if SENT and prep:
            return ow + stampa() + L(f"s_cmp_lt_u32 s{sJ}, 8\ns_cselect_b32 s84, {OOB}, s3") + [WAITV([("OP", 5)]), I(f"buffer_store_dword v{A.vX + 5}, v{A.vX + 6}, {WSR}, s84 offen sc1")] + [i for l in left for i in l] + stampa()
        return ow + stampa() + [i for l in left for i in l] + L(side5.FOP_LOAD) + [WAITV([("OP", 6)]), I(f"buffer_store_dword v{A.vX + 5}, v{A.vX + 6}, {WSR}, s3 offen sc1")] + stampa()
    c.block("opn", jitter(), "s_sleep 32" if 'p' in opt['idle'] else "", outproj(wo, wq[3:], lambda qb, ks: R("v", Oreg(2 * ks, qb), 4), prep=True), f"s_cmp_lt_u32 s{sJ}, 8\ns_cbranch_scc1 L_red")
    rv, vfar = side5.red_main_v(stampa, int(opt['lagv']), SENT)
    if 'e' in opt['skip']: rv = []; vfar = []
    c.block("end1", jitter(), rv, EXIT()); c.block("vfar", vfar)
    LSPIN["h2"] = (2, 17); LSPIN["h4"] = "s84"
    c.block("d2h", "L_d2h:", jitter(), "s_sleep 32" if 'h' in opt['idle'] else "", wev('h', pg('wh1')), d2(HELPER_K() + lcheck(2, "h2") + dma_flat(KSLOT[0], A.sK) + adv_k()))
    c.block("d3h", "L_d3h:", d3("d3h", [FL_LOAD(), I(f"buffer_load_dword v{A.vRL + 1}, off, {WSR}, s47 offset:16 sc1")]))
    ql = L(f"v_cmp_ne_u32 vcc, 1, v{A.vRL + 1}\ns_cbranch_vccnz L_fqs\nL_fqr:") + L(f"s_add_u32 s73, s{A.sQ}, 4096\ns_add_u32 s74, s{A.sQ}, 8192\ns_add_u32 s75, s{A.sQ}, 12288")
    ql += [I(f"buffer_load_dwordx4 a[{4*n}:{4*n+3}], v{A.vL16}, {WSR}, s{72 + n // 4 if n >= 4 else A.sQ} offen offset:{(n & 3) * 1024} sc1") for n in range(16)]
    c.block("d4h", d4("d4h", [], ql + L(f"s_cmp_ge_u32 s{sJ}, 2\ns_cselect_b32 s84, 4, 2") + lcheck("s84", "h4") + [By(58)], 0, 54, True))
    g = Gaps(pvb_mfmas() + qk_mfmas(0, C0))
    tile_reads(g, lambda b: rd_batch(4, b, A.vNEG), rd_batch(KSLOT[0], 0), [("T", KSLOT[0])], per=8, pat=P8)
    tile_reads(g, lambda b: rd_batch(KSLOT[0], b), rd_batch(KSLOT[1], 0), [("T", KSLOT[1])], base=32)
    g.put_s(29, NEED(R("a", 0, 64)))
    def cpk(kq, qb): return link(cvt_ctx(kq, qb) + [I(f"v_accvgpr_write_b32 a{A.aX + (qb * 8 + kq) * 4 + e}, v{Oreg(2 * kq, qb) + e}") for e in range(4)])
    order = [(0, 0), (1, 0)] + [x for kq in range(6) for x in ((kq, 1), (kq + 2, 0))] + [(6, 1), (7, 1)]
    cp = {k: cpk(*k) for k in order}
    s = Sched(g).add(dma_flat(KSLOT[1], A.sK) + adv_k() + L(f"s_mul_i32 s{A.sV}, s{sH}, {HS}\ns_add_u32 s{A.sV}, s{A.sV}, {WS_V + NO * 32768}") + dma_flat(VSLOT[0], A.sV) + adv_v() + dma_flat(VSLOT[1], A.sV, 0, 4), 2, 92)
    s.add(addb() + lfin2() + L(f"v_accvgpr_write_b32 a192, v{A.vRL}\nv_accvgpr_write_b32 a193, v{A.vRL + 1}") + [I(f"v_mov_b32 v{r}, 0") for r in [A.vLS, A.vLS + 1] + list(range(A.vNM, A.vNM + 8))], 0, 40).run()
    grp, early = groups_first(0, base=32)
    sched_sm(g, grp, 44, 94, early=early)
    left = Sched(g).add([x for k in order for x in ([At(4 * k[0] + 7)] if k[1] else []) + cp[k]], 0, 95, asap=True).run(spill=True)[0]
    w5 = g.flat() + fs('4')
    g = Gaps(qk_mfmas(1, C0, alt=True))
    tile_reads(g, lambda b: rd_batch(KSLOT[1], b), rd_batch(VSLOT[0], 0), [("T", VSLOT[0])])
    Sched(g).add(dma_flat(KSLOT[0], A.sK) + adv_k() + dma_flat(VSLOT[1], A.sV, 4, 8) + adv_v(), 1, 56).run()
    k = sched_sm(g, softmax_groups(0, 1), 0, 54)
    tail = check_first("L_sth1")
    ids = {id(i) for i in left}
    Sched(g).add(left + [By(57)], 0, 57).run()
    put_tail(g, max(k, 57), tail)
    w6 = g.flat() + L("L_rth1:")
    c.block("d5h", w5, w6, stampa(), win_pv0(VSLOT[0], None, lambda s: s.add(L(f"""s_mov_b32 s{sMODE}, 0
            s_mov_b32 s{A.sCHK}, 0
            s_and_b32 s{sMLD}, s{sMLD}, 1
            s_or_b32 s{sMLD}, s{sMLD}, 2
            s_sub_u32 s{A.sIT}, {15 - JH - 1}, s{sJ}"""), 10, 30)), f"s_cmp_lg_u32 s{A.sIT}, 0\ns_cbranch_scc1 L_loop_top")
    wo = WoQ([3, 2, 0, 4, 1, 3, 2] if opt['five'] == '1' else [3, 2, 0, 1, 3, 2, 0]); wh = ints('wh')
    if RELAY: wo.n = 16; wh = [ints('rh')[0], 0] + ints('rh')[1:]
    pst = lambda kq, qb: [I(f"buffer_store_dwordx4 v[{Oreg(2*kq, qb)}:{Oreg(2*kq, qb)+3}], v{A.vL16}, {WSR}, s{86 + (qb*8+kq) // 4} offen offset:{(kq & 3) * 1024} sc1", tag="PST")]
    g = Gaps(pv_mfmas(1, alt=False))
    tile_reads(g, lambda b: rd_batch(VSLOT[1], b), rd_wo(3, 0), [("T", 3)], npat=None if RELAY else RP16)
    w0 = wo_setup(A.vX + 4, 2 if RELAY else 0) + wo.take(wh[0]); nv = 0 if RELAY else 7
    left = Sched(g).add(oa_setup(A.vX + 4) + [By(46)], 0, 10).add([x for kq in range(8) for qb in range(2) for x in [At(8 * kq + 9 + 2 * qb)] + cvt_ctx(kq, qb) + pst(kq, qb)], 0, 63, asap=True, vmd=1).add(
        wo.take(wh[1]), 0, 12, vmd=1).run(spill=True)
    c.block("final_h", "L_final_h:", jitter(), stampa(), WAITV([("T", VSLOT[1])], lgkm0=True), "s_barrier", rd_batch(VSLOT[1], 0), wev('f', pg('wh2')), w0[:nv], mix(softmax_half(1, 1), w0[nv:], 1), check(1, "L_stfh"), "L_rtfh:", add_l(1), f"""
    v_mov_b32 v{A.vX}, v{A.vNM}
    v_mov_b32 v{A.vX+1}, v{A.vNM+4}
    v_mov_b32 v{A.vX+2}, v{A.vLS}
    v_mov_b32 v{A.vX+3}, v{A.vLS+1}
    """, I(f"buffer_store_dwordx4 v[{A.vX}:{A.vX+3}], v{A.vL16}, {WSR}, s90 offen sc1", tag="PST"), need_batch(0), fs('4'), g.flat(), left[1], left[2], stampa())
    assert not left[0]
    pflag = L(f"v_min_u32 v{A.vX}, 1, v{A.vL16}\nv_lshlrev_b32 v{A.vX}, 29, v{A.vX}") + [At(int(opt['pfg'])), WAITV("PST"), side.flag_store(47, A.vX, A.vX + 5)]
    c.block("oph", jitter(), "s_sleep 32" if 'o' in opt['idle'] else "", outproj(wo, wh[2:], lambda qb, ks: R("a", A.aX + (qb * 8 + ks) * 4, 4), L(f"v_accvgpr_read_b32 v{A.vRL}, a192\nv_accvgpr_read_b32 v{A.vRL + 1}, a193"), pflag))
    rm = side5.red_main(A.vL16, stampa, int(opt['lag']), int(opt['lag2']))
    if 'e' in opt['skip']: rm = []
    c.block("red0", "L_red:", [WAITV([("OP", 6)]), I(f"buffer_store_dword v{A.vX + 5}, v{A.vX + 6}, {WSR}, s3 offen sc1")] if SENT else [], side5.red_k1(A.vL16), side5.FOP_LOAD, "s_branch L_red1")
    c.block("red", "L_red1:", jitter(), f's_or_b32 s77, s77, {OOB}' if 'r' in opt['wi'] else '', f's_or_b32 s78, s78, {OOB}' if 's' in opt['wi'] else '', rm, EXIT())
    c.block("rpoll", side5.red_poll())
    stubs = ""
    for n, f in (("0", "slow0"), ("1", "slow1"), ("v1", "slowf"), ("k1", "slowf"), ("h1", "slowf"), ("j0", "slowj"), ("v2", "slow1"), ("v3", "slow0"), ("d1", "slow1"),
                 ("d3n", "slow0"), ("d3h", "slow0"), ("d4n", "slowb"), ("d4h", "slowb"), ("fh", "slow1n"), ("c", "comb")):
        stubs += f"L_x{n}:\ns_call_b64 s[{A.sRET}:{A.sRET+1}], L_{f}\ns_branch L_rt{n}\n".replace("L_x", "L_st")
    return stubs

def mid_blocks(c, stubs):
    c.block("stubs", stubs)
    c.block("slow", att.slow_sub(0), att.slow_sub(1), att.slow_sub(1, False), slow_first("L_slowf", True), slow_first("L_slowj", False), slow_b(), comb_slow(opt['lc'] == '1'))
    sp = []
    for n, v in LSPIN.items():
        ld = FL_LOAD().text
        if isinstance(v, tuple): v, ld = v[0], ld.replace("v9", "v%d" % v[1])
        sp += side.spin_stub(f"L_ls{n}", f"L_lr{n}", ld, A.vRL, 91, f"v_cmp_gt_u32 vcc, {v}, v{{vt}}")
    for n, (ld, half) in WSPIN.items():
        sp += side.spin_stub(f"L_ws{n}", f"L_wr{n}", ld, A.vRL, 91, f"v_cmp_ne_u32 vcc, 1, v{{vt}}\ns_nop 0\ns_mov_b32 vcc_{'hi' if half == 'lo' else 'lo'}, 0")
    c.block("spins", side.z_stub(0), side.z_stub(1), hw.key_stub(), side.spin_stub("L_has", "L_har", hw2.FA_LOAD, 16, 91) if H2 and 'h' not in opt['skip'] else [], sp, f"""
    L_fll:
    s_sub_u32 s65, s{A.sCHK}, s{sMODE}
    s_mov_b32 s64, -1
    s_cmp_eq_u32 s65, 1
    s_cbranch_scc1 L_fl2
    s_cmp_lg_u32 s{A.sWAVE}, 0
    s_cbranch_scc1 L_fl3
    s_lshr_b32 s64, s{sJ}, 3
    s_cmp_eq_u32 s{A.sCHK}, s64
    s_cbranch_scc0 L_fl1
    v_mov_b32 v{A.vX + 5}, 4
    {side.flag_store(sFL, A.vF0, A.vX + 5).text}
    L_fl1:
    s_cmp_lg_u32 s65, 0
    s_cbranch_scc1 L_fllr
    s_movk_i32 s64, 0x380
    L_fl2:
    v_min_u32 v{A.vX + 7}, s64, v9
    s_mov_b32 s{A.sREQ}, 4
    buffer_load_dword v{A.vRL}, v{A.vX + 7}, {WSR}, s46 offen sc1
    s_bitcmp1_b32 s{sMLD}, 15
    s_cbranch_scc0 L_fllr
    L_fl3:
    s_cmp_eq_u32 s{A.sCHK}, {TY}
    s_cbranch_scc1 L_y2
    s_cmp_eq_u32 s{A.sCHK}, {TY + 1}
    s_cbranch_scc1 L_y3
    s_cmp_eq_u32 s{A.sCHK}, {TY + 2}
    s_cbranch_scc1 L_y4
    s_branch L_y5
    s_waitcnt vmcnt(0)
    L_fps:
    s_cmp_lg_u32 s{sNC}, 0
    s_cbranch_scc1 L_fpr
    """, side.spin_stub("L_fps2", "L_fpr", FP_LOAD().text, A.vRL + 1, 91),
            side.spin_stub("L_fqs", "L_fqr", f"buffer_load_dword v{A.vRL + 1}, off, {WSR}, s47 offset:16 sc1", A.vRL + 1, 91),
            side.spin_stub("L_fls0", "L_flr0", FL_LOAD().text.replace("v9", f"v{A.vX + 7}"), A.vRL, 91, f"v_cmp_gt_u32 vcc, s{A.sREQ}, v{{vt}}"))
    c.block("ystubs", side5.y_stubs("L_fllr", int(opt['ht'])))

def paths(c):
    lp = ["loop_top", "loop_mid"]
    n = ["d1", "d2n", "d3n", "d4n", "d5n", "opn"]
    c.path("entry", "kv1", *lp, *lp, *lp, "p1", *n, "end1")
    c.path("entry", "kv0", "k1", *lp, *lp, *lp, "p1", *n, "red0", "red")
    for own in (["j0"], ["k1", "d1", "d2h"], ["k1", *lp, "p1", "d1", "d2h"], ["k1", *lp, *lp, *lp, "p1", "d1", "d2h"]):
        for nh in (0, 1, 2, 3):
            c.path("entry", "kv0", *own, "d3h", "d4h", "d5h", *(lp * nh), *(["p1"] if nh else []), "final_h", "oph", "red")
    for b in ("rpoll", "vfar", "stubs", "slow", "moe", "spins", "ystubs"): c.path(b)

def check_tiles(c):
    size = dict(U=7, T=8, W=4, C=4, X=4)
    for path in c.paths:
        cnt = {}; waited = set()
        for b in path:
            for i in c.blocks[b]:
                if i.kind == "vst": assert i.tag not in waited, (path, b, i.text, i.tag)
                if i.op == "WAITV": waited |= set(i.tag if isinstance(i.tag, list) else [i.tag])
                if i.kind == "dma" and isinstance(i.tag, tuple): cnt[i.tag] = cnt.get(i.tag, 0) + 1
                if i.op == "WAITV":
                    for t in (i.tag if isinstance(i.tag, list) else [i.tag]):
                        if isinstance(t, tuple) and t[0] in size:
                            n = cnt.pop(t, 0)
                            assert (n or b in ("final_h", "oph")) and n % size[t[0]] == 0, (path, b, t, n)
def ustamps(c):
    names = ["start"]
    for spec in [x for x in opt['us'].split(",") if x]:
        b, lo, hi = (spec.split(":") + ["0", "999"])[:3]
        o = []; pend = None; nb = 0
        def rec(n):
            r = L(f"v_accvgpr_write_b32 a255, v10\nv_accvgpr_read_b32 v10, a254\nv_writelane_b32 v10, s98, {n}\nv_accvgpr_write_b32 a254, v10\nv_accvgpr_read_b32 v10, a255")
            for i in r: i.extra["ghost"] = True
            return r
        for i in c.blocks[b]:
            if pend is not None and (i.op in ("s_endpgm", "s_call_b64") or i.kind == "branch" and i is c.blocks[b][-1]): o += rec(pend); pend = None
            o.append(i)
            if pend is not None and i.op in ("NEED", "WAITV"): o += rec(pend); pend = None
            if i.op == "s_barrier" or i.text.endswith("; us"):
                nb += 1
                if int(lo) <= nb <= int(hi):
                    pend = len(names); names.append(f"{b}.{nb}"); o.append(I("s_memtime s[98:99]"))
        if pend is not None: o += rec(pend)
        c.blocks[b] = o
    assert len(names) <= 64
    return names
def ipref(c):
    n = 0
    for b in [x for x in opt['ip'].split(",") if x]:
        o = []; q = b not in ("kv0", "kv1")
        for i in c.blocks[b]:
            o.append(i)
            if i.text.startswith("s_mov_b64 s[60:61], s[76:77]"): q = True
            if i.op == "s_barrier":
                n += 1
                o += [I("s_getpc_b64 s[100:101]"), I(f"s_load_dword s94, s[100:101], {opt['ipd']} ; ignore")]
        c.blocks[b] = o
SHORT = [("v_mfma_f32_16x16x32_bf16", "M", 4), ("ds_read_b128", "R", 0), ("ds_read_b64_tr_b16", "T", 0), ("v_cvt_pk_bf16_f32", "C", 3), ("v_exp_f32", "E", 2),
         ("v_accvgpr_write_b32", "W", 2), ("v_accvgpr_read_b32", "G", 2), ("v_add_f32", "AF", 3), ("v_mul_f32", "MF", 3), ("s_add_u32", "SA", 3)]
def compress(body):
    hdr = []; out = []
    for full, sh, n in SHORT:
        if n: hdr.append(f".macro {sh} " + ", ".join("abcd"[:n]) + f"\n{full} " + ", ".join("\\" + x for x in "abcd"[:n]) + "\n.endm")
        else: hdr.append(f".macro {sh} a, b, c\n{full} \\a, \\b offset:\\c\n.endm")
    for ln in body.split("\n"):
        ln = ln.strip()
        for full, sh, n in SHORT:
            if ln.startswith(full + " ") and "row_" not in ln and (n or " offset:" in ln):
                ln = sh + " " + ln[len(full) + 1:].replace(" offset:", ",").replace(", ", ","); break
        out.append(ln)
    return "\n".join(hdr), "\n".join(out)

if __name__ == "__main__":
    c = CFG(verbose=int(opt["v"]))
    entry(c); front(c, 0); front(c, 1)
    stubs = build_att(c)
    n0 = len(c.order)
    mid_blocks(c, stubs); c.block("moe", side5.red_moe() if 'e' not in opt['skip'] else [], "L_hr:\ns_endpgm" if 'h' in opt['skip'] else "")
    k = c.order.index("loop_top")
    c.order = c.order[:k] + c.order[n0:-1] + c.order[k:n0] + c.order[-1:]
    c.order.remove("red0"); c.order.append("red0")
    paths(c); opt['nochk'] == '1' or check_tiles(c); names = ustamps(c); ipref(c)
    txt = c.finalize()
    if opt['nochk'] == '0':
        ldscheck.check(c)
        bad = [x for b in c.order for x in check_order(c.mat[b], b) if not b.startswith("loop") and not (" lds" in x[1] and ("s[16:19]" in x[1] or "s[48:51]" in x[1]))]
        assert not bad, bad[:5]
    if int(opt['v']):
        for b in c.order:
            m = c.mat[b]; bad = sum(1 for x, y in zip(m, m[1:]) if x.kind in ("valu", "trans") and y.kind in ("dsr", "dsw", "dma", "vld", "vst"))
            if any(i.kind == "mfma" for i in m): sys.stderr.write(f"; {b}: valu->mem {bad}\n")
    for spec in [x for x in opt['fl_'].split(",") if x]:
        r, f = spec.split(":")
        for b in c.order:
            for i in c.mat[b]:
                if i.kind == "dma" and f"s[{r}:" in i.text: i.text = i.text.replace(" nt", "").replace(" sc1", "").replace(" lds", " " + f.replace("+", " ") + " lds")
    if opt['dbg'] != '-':
        for b in c.order:
            for i in c.mat[b]:
                if "s[12:15]" in i.text and i.op in ("buffer_store_dword", "buffer_load_dword") and "v17" in i.text: i.text = i.text.replace("offen", "offen offset:64")
    if 'h' in opt['skip']:
        for b in c.order:
            for i in c.mat[b]:
                if i.text.startswith("s_cbranch_vccnz L_moe"): i.text = "s_nop 0"
    if WARM: txt = warm.place(c, ("kv0", "kv1", "loop_top"))
    hdr, body = compress(txt)
    kn = NAME + "_kernel"
    print("; Fused MLA-style attention + gated MoD block for gfx950; generated by dev/gen5.py (hand-written generator)")
    if opt['us']: print("; sites " + " ".join(names))
    print("; @launch grid=(256,1,1) block=(256,1,1) lds=163840")
    print('.amdgcn_target "amdgcn-amd-amdhsa--gfx950"\n.text')
    print(hdr)
    print(kernel_header(kn))
    print(body)
    print("L_code_end:")
    print('.section .rodata,"a"\n.p2align 6')
    print(kernel_desc(kn, sgpr=102))
```

```python
import sys, re
from att5 import *
import hw2, warm, ldscheck, att, att5, kvq, kv5, side, side5, hw, asmlib
from kv5 import K, QR, QPhase, kacc
opt = dict(stamp="0", v="1", thr=str(2.0 ** 24), low=str(2.0 ** -24), fine="0", no="18", hpad="0", vpad="0", opad="0", kvonly="0", qpat="00223355668899", qnd="4,1", l1v="100", s15v="12,90", rcg="40", wpos="0", wso="0", probe="-", thin="0", h2="0", hk="20", hg="50,100,70,50", xm="0", qks="1", pvs="1", xsn="1", uw=",0000,ef0001,g111111,2222", jit="0", eo="1", rfl="sc1,sc1", ofl="sc1", emu="0", nc="0", cf="nt", nw="0", t0="79", wqg="41,9", idt="-", idq="-", qw="2,0,0,0,0,0,0", q0s="0", selq="1", rw2="10,60", skip="", hw="6,8,10,12,14,16,17", rgo="1", p2="0", p8="00112233", xl="0040", nr="8", noadd="0", tl="1", nochk="0", rd="0", rdg="60", ct0="13", wn="2,3,4,5", wh1="6,7", wh2="8,9,10,11", pg="50", sent="0", half="1", mkg="40,60", dbg="-", r3w="0", rfive="0", relay="0", tR="4", rq="8,0,12,12,8,8,8", rh="8,8,8,8,8", rw="2", w8="0", fl_="16:", hmap="0", tH="-", tHg="90", hnt="", ne="6", efg="52", idle="", lc="0", n4="8", share="0", pv2="6", nrm="0", pv1="4", tidy="1", pk="12", olo="2", d3w="0", five="1", tlb="-", kvd="4", warm="a", na="8", te1="6:5:13", ip="", ipd="2048", dr="3,44,51,108,0", twg="80", us="", wi="", rt="1", ht="0", xr="100", nost="0",
           tg="113", tcq="99", tc="", tQ="7", lag="3", lag2="11", lagv="8", ke="27", q0="2223333333444444455@99:555556666666777@211:7777", qsep="4", tX="", tW="3,4,5,6", kw="3,3,2", sw="10,60", dh="30,30,30", l2="4", qf="176", qd="0,0,0,0,14", qk="4444", qv="3320", qp="14,122,234,346", ssep="24", n15="8,8",
           fl="200", fc="240", fv="395", s15="12,90", sq="2,400", sqv="200", vq="0,0", vp="3,3,3,4,3", l1="20", pfg="30", wq="8,0,12,16,12,8", wh="8,4,16,16,12", tw="9", odh="45", fpl="20", fpc="0", pl="56")
for a in sys.argv[1:]:
    k, v = a.split("="); assert k in opt, k; opt[k] = v
STAMP = opt["stamp"] in "12"; LIGHT = opt["stamp"] == "2"
ints = lambda k: [int(x) for x in opt[k].split(",")]
kv5.DR[:] = ints("dr")
asmlib.TIDY = opt["tidy"] == "1"
pairs = lambda k: [tuple(int(y) for y in x.split(':')) for x in opt[k].split(',') if x]
asmlib.SHARE = {"0": (), "1": ("dma", "vld"), "2": ("dma", "vld", "vst")}[opt["share"]]
side5.NE = int(opt["ne"])
side5.FINE = "9" in opt["fine"]
side5.PK = int(opt["pk"])
hw.HNT = opt["hnt"]
RELAY = att5.RELAY = opt["relay"] != "0"; side5.NAT = not RELAY; LATER = opt["relay"] == "2"
if RELAY and not LATER: opt["tW"] = ""
side5.POLL2 = int(opt["p2"])
kv5.T0 = int(opt["t0"])
kv5.NC, kv5.CF, kv5.NW = int(opt["nc"]), opt["cf"].replace("+", " "), int(opt["nw"])
side5.RFL = opt["rfl"].replace("+", " ").split(",")
att.PVS = opt["pvs"] == "1"; kv5.XSN = opt["xsn"] == "1"
att.QKS = att5.QKS = opt["qks"] == "1"; att5.PVS = att.PVS = opt["pvs"] == "1"
QPhase.XM = XM = opt["xm"] == "1"; QO = (1, 0) if XM else (0, 1)
side.NTT = ""; side.RNT = ""
X.update(wide=1, ls=1, r3=0, r3x='-')
sMODE, sH, sJ, sVD, sSTK, sFL = 40, 41, 42, 43, 44, 45
sKV, sMLD, sNC = 45, 39, 35
NO = int(opt['no']); assert NO % 2 == 0
JH = NO // 2
aST = 250
WSO = int(opt['wso']) << 20
THIN = opt['thin'] == '1'
H2 = int(opt['h2'])
UW = opt['uw'].split(',')
SENT = opt['sent'] == '1'; HALF = opt['half'] == '1'
RW = opt['rw'] != '0'
JY = 7 if NO == 16 else 6; TY = JY - 5
WARM = opt['warm'] != '0'
def wev(key, names):
    return warm.event(A.sWAVE, warm.spread(names)) if WARM and key in opt['warm'] else []
wsite = lambda n: warm.site(n) if WARM else []
OOB = side.OOB
def stamp(t=16, force=False):
    if not STAMP or (LIGHT and not force): return []
    return L(f"""s_memrealtime s[36:37]
    s_memtime s[98:99]
    v_accvgpr_read_b32 v{t}, a{aST}
    v_accvgpr_read_b32 v{t+1}, a{aST+1}
    s_mov_b32 s100, m0
    s_mov_b32 m0, s{sSTK}
    s_waitcnt lgkmcnt(0)
    v_writelane_b32 v{t}, s98, m0
    v_writelane_b32 v{t+1}, s36, m0
    s_add_u32 s{sSTK}, s{sSTK}, 1
    s_mov_b32 m0, s100
    v_accvgpr_write_b32 a{aST}, v{t}
    v_accvgpr_write_b32 a{aST+1}, v{t+1}""")
def stampa():
    if not STAMP or LIGHT: return []
    o = L("s_cselect_b32 s101, 1, 0\nv_accvgpr_write_b32 a252, v10\nv_accvgpr_write_b32 a253, v11") + stamp(10) + L("v_accvgpr_read_b32 v10, a252\nv_accvgpr_read_b32 v11, a253\ns_cmp_lg_u32 s101, 0")
    for i in o: i.extra["ghost"] = True
    return o
fs = lambda c: stampa() if c in opt['fine'] else []
def stamp0(t=26):
    if not STAMP: return []
    return L(f"""s_waitcnt lgkmcnt(0)
    v_mov_b32 v{t}, 0
    v_mov_b32 v{t+1}, 0
    v_writelane_b32 v{t}, s38, 0
    v_writelane_b32 v{t+1}, s46, 0
    s_mov_b32 s{sSTK}, 1
    v_accvgpr_write_b32 a254, v{t}
    v_accvgpr_write_b32 a{aST}, v{t}
    v_accvgpr_write_b32 a{aST+1}, v{t+1}""")
def fin():
    if not STAMP: return []
    return L("s_mov_b64 exec, -1\ns_waitcnt vmcnt(0) lgkmcnt(0)") + stamp(30, True) + L(f"""
        s_lshl_b32 s29, s2, 2
        s_add_u32 s29, s29, s{A.sWAVE}
        s_lshl_b32 s29, s29, 9
        s_add_u32 s29, s29, {WS_STAMP - WSO if WSO <= WS_STAMP else WS_STAMP}
        v_lshrrev_b32 v10, 1, v{A.vL16}
        buffer_store_dwordx2 a[{aST}:{aST+1}], v10, {WSR}, s29 offen
        s_add_u32 s29, s29, {1 << 20}
        buffer_store_dword a254, v10, {WSR}, s29 offen
        """)
def dbg_out():
    if opt['dbg'] == '-': return []
    return L(f"""
    s_load_dwordx2 s[4:5], s[0:1], {A_DBG}
    v_accvgpr_read_b32 v11, a{aST+1}
    v_lshrrev_b32 v12, 4, v{A.vL16}
    v_not_b32 v13, v11
    v_cmp_eq_u32 vcc, 0, v12
    v_mov_b32 v14, s36
    s_nop 0
    v_cndmask_b32 v11, v11, v13, vcc
    v_cmp_eq_u32 vcc, 15, v12
    s_nop 1
    v_cndmask_b32 v11, v11, v14, vcc
    v_lshlrev_b32 v12, 2, v12
    s_waitcnt lgkmcnt(0)
    {srd(12, 4, 64)}
    s_cmp_eq_u32 s{sJ}, {opt['dbg']}
    s_cselect_b32 exec_lo, 0xffff, 0
    s_or_b32 exec_lo, exec_lo, 0x8001
    s_mov_b32 exec_hi, 0
    buffer_atomic_umax v11, v12, s[12:15], 0 offen
    """)
EXIT = lambda: fin() + dbg_out() + L("s_endpgm")

_jn = [0]
def jitter():
    if opt['jit'] == '0': return []
    _jn[0] += 1; n = _jn[0]
    a = (int(opt['jit']) * 40503 + n * 2654435761) & 0xffff | 1
    o = L(f"""s_mul_i32 s98, s2, {a}
    s_mul_i32 s99, s{A.sWAVE}, {(a * 7 + 3) & 0xff if n & 1 else 0}
    s_add_u32 s98, s98, s99
    s_bfe_u32 s98, s98, 0x20005
    s_cmp_lg_u32 s98, 0
    s_cbranch_scc1 L_jt{n}
    s_sleep 120
    L_jt{n}:""")
    return o
def probe():
    if opt['probe'] == '-': return ""
    arg, size, thr = ints('probe')
    o = f"""
    s_load_dwordx2 s[4:5], s[0:1], {A_DBG}
    s_load_dwordx2 s[6:7], s[0:1], {arg * 8}
    v_lshrrev_b32 v1, 6, v0
    s_waitcnt lgkmcnt(0)
    {srd(12, 4, 256)}
    {srd(16, 6, size)}
    v_readfirstlane_b32 s20, v1
    s_or_b32 s21, s20, s2
    s_cmp_eq_u32 s21, 0
    s_cbranch_scc0 L_pw
    s_mov_b32 s22, 0
    s_mov_b32 s23, 0
    L_pl:
    buffer_load_dword v2, off, s[16:19], s23
    s_waitcnt vmcnt(0)
    s_memtime s[24:25]
    s_waitcnt lgkmcnt(0)
    buffer_load_dword v2, off, s[16:19], s23 offset:2048
    s_waitcnt vmcnt(0)
    s_memtime s[26:27]
    s_waitcnt lgkmcnt(0)
    s_sub_u32 s26, s26, s24
    s_cmp_gt_u32 s26, {thr}
    s_cbranch_scc0 L_pf
    s_sleep 75
    L_pf:
    s_add_u32 s23, s23, {size // 16 // 128 * 128}
    s_add_u32 s22, s22, 1
    s_cmp_lt_u32 s22, 16
    s_cbranch_scc1 L_pl
    v_mov_b32 v2, 1
    s_mov_b32 s23, 240
    buffer_store_dword v2, off, s[12:15], s23 sc1
    L_pw:
    s_mov_b32 s23, 240
    s_mov_b32 s22, 20000
    L_pp:
    s_sleep 16
    buffer_load_dword v2, off, s[12:15], s23 sc1
    s_sub_u32 s22, s22, 1
    s_cbranch_scc1 L_px
    s_waitcnt vmcnt(0)
    v_cmp_ne_u32 vcc, 1, v2
    s_cbranch_vccnz L_pp
    L_px:
    s_waitcnt vmcnt(0)
    """
    return o
def entry(c):
    c.block("entry", f"""
    s_cmp_lt_u32 s2, 256
    s_cbranch_scc1 L_go
    s_endpgm
    L_go:
    {"s_memrealtime s[46:47]" + chr(10) + "s_memtime s[38:39]" if STAMP else ""}
    {probe()}
    s_load_dwordx8 s[80:87], s[0:1], {A_X}
    s_load_dwordx4 s[88:91], s[0:1], {A_WUV}
    s_getpc_b64 s[76:77]
    L_pc0:
    s_lshr_b32 s{sJ}, s2, 3
    s_mov_b32 s79, 0x20000
    s_lshl_b32 s67, s{sJ}, 13
    s_mov_b32 s78, L_code_end-L_pc0
    s_and_b32 s77, s77, 0xffff
    v_lshl_add_u32 v31, v0, 5, s67
    """, side.touch(31, 76, 0, nt=False), f"""
    v_lshrrev_b32 v24, 6, v0
    v_and_b32 v0, 63, v0
    s_and_b32 s{sH}, s2, 7
    v_readfirstlane_b32 s{K.sWAVE}, v24
    s_lshr_b32 s64, s2, 4
    v_and_b32 v24, 15, v0
    v_lshrrev_b32 v25, 4, v0
    s_and_b32 s64, s64, 8
    s_or_b32 s{sH}, s{sH}, s64
    v_lshlrev_b32 v28, 1, v25
    v_xor_b32 v28, v28, v24
    v_and_b32 v29, 8, v28
    v_and_b32 v28, 7, v28
    v_lshlrev_b32 v28, 4, v28
    v_lshl_add_u32 v28, v29, 5, v28
    v_lshl_add_u32 v28, v25, 13, v28
    s_lshl_b32 s64, s{K.sWAVE}, 17
    v_add_u32 v{K.vWD}, s64, v28
    v_xor_b32 v28, 0x100, v{K.vWD}
    v_add_u32 v{K.vWD+1}, {4*8192 - 1024}, v{K.vWD}
    v_add_u32 v{K.vWD+2}, {8*8192 - 2048}, v28
    v_add_u32 v{K.vWD+3}, {12*8192 - 3072}, v28
    s_mov_b32 s{K.sWOFF}, 0
    s_lshl_b32 s{K.sM0W}, s{K.sWAVE}, 12
    s_lshl_b32 s74, s{sH}, 9
    s_sub_u32 s{K.S_W+2}, {1024*8192}, s74
    s_mov_b32 s{K.S_W+3}, s79
    s_bitcmp0_b32 s2, 6
    s_cselect_b64 s[72:73], s[86:87], s[88:89]
    s_add_u32 s{K.S_W}, s72, s74
    s_addc_u32 s73, s73, 0
    s_and_b32 s{K.S_W+1}, s73, 0xffff
    """, kv5.unit_w(0), f"""
    s_and_b32 s{sJ}, s{sJ}, 15
    s_lshr_b32 s{sKV}, s{sJ}, 3
    s_and_b32 s65, s{K.sWAVE}, 1
    s_lshr_b32 s66, s{K.sWAVE}, 1
    v_and_b32 v29, 7, v0
    v_xor_b32 v28, v25, v29
    v_lshlrev_b32 v28, 4, v28
    v_lshrrev_b32 v29, 3, v0
    v_lshl_add_u32 v30, v29, 11, v28
    s_lshl_b32 s64, s66, 19
    s_lshl_b32 s67, s65, 21
    s_add_u32 s64, s64, s67
    v_add_u32 v{K.vCD}, s64, v30
    v_xor_b32 v30, 64, v{K.vCD}
    v_add_u32 v{K.vCD+2}, {16*2048 - 2048}, v{K.vCD}
    v_add_u32 v{K.vCD+1}, {8*2048 - 1024}, v30
    v_add_u32 v{K.vCD+3}, {24*2048 - 3072}, v30
    s_mov_b32 s{K.sCOFF}, 0
    s_add_u32 s{K.sM0C}, s{K.sM0W}, 65536
    s_and_b32 s64, s{sJ}, 7
    s_lshl_b32 s64, s64, 16
    s_sub_u32 s{K.S_C+2}, {2048*2048}, s64
    s_mov_b32 s{K.S_C+3}, s79
    s_add_u32 s{K.S_C}, s82, s64
    s_addc_u32 s73, s83, 0
    s_and_b32 s{K.S_C+1}, s73, 0xffff
    """, *((kv5.unit_w(1), kv5.unit_c(0)) if opt['eo'] == '1' else (kv5.unit_c(0), kv5.unit_w(1))), f"""
    s_load_dwordx2 s[92:93], s[0:1], {A_WR}
    s_load_dwordx2 s[94:95], s[0:1], {A_GW}
    s_load_dwordx4 s[4:7], s[0:1], {A_DBG}
    """, stamp0(28), stamp(28), f"v_lshlrev_b32 v{K.vST}, 4, v0", kvq.addr_rd(), side.c_touch_setup() + L(srd(32, 82, 2048*2048)) if opt['tcq'] != '99' else [], f"""
    {srd(K.S_X, 80, 2048*896)}
    {srd(60, 92, 896)}
    {srd(68, 94, 896)}
    s_lshl_b32 s95, s{K.sWAVE}, 11
    s_lshr_b32 s64, s2, 3
    s_lshl_b32 s64, s64, 13
    s_add_u32 s95, s95, s64
    {f's_add_u32 s6, s6, {WSO}' + chr(10) + 's_addc_u32 s7, s7, 0' if WSO else ''}
    {srd(K.S_WS, 6, (1 << 28) - WSO)}
    {srd(K.S_DBG, 4, 256)}
    s_add_u32 s72, s84, s74
    s_addc_u32 s73, s85, 0
    s_sub_u32 s75, {448*8192}, s74
    {srd(K.S_WQ, 72, "s75")}
    s_mul_i32 s{K.sXOFF}, s{sJ}, {128*896}
    s_mov_b32 s{K.sSC}, {hex(f2u(LOG2E_16))}
    s_mul_i32 s72, s{sKV}, {WS_V}
    s_mul_i32 s73, s{sH}, {HS}
    s_add_u32 s72, s72, s73
    s_bfe_u32 s64, s{sJ}, 0x20001
    s_lshl_b32 s64, s64, 15
    s_add_u32 s72, s72, s64
    s_lshl_b32 s64, s66, 17
    s_add_u32 s72, s72, s64
    s_and_b32 s67, s{sJ}, 1
    s_cmp_eq_u32 s{sKV}, 0
    s_cselect_b32 s64, 12, 14
    s_cselect_b32 s75, 14, 10
    s_lshl_b32 s67, s67, s75
    s_add_u32 s72, s72, s67
    s_lshl_b32 s64, s65, s64
    s_add_u32 s{K.sOOFF}, s72, s64
    """, side.h_touch_srd(), f"s_load_dwordx2 s[96:97], s[0:1], {A_OUT}", f"s_cmp_eq_u32 s{sKV}, 0\ns_cbranch_scc0 L_kv1" + ("\ns_branch L_kv0" if WARM else ""))

FL_LOAD = lambda: I(f"buffer_load_dword v{A.vRL}, v9, {WSR}, s46 offen sc1")
FP_LOAD = lambda: I(f"buffer_load_dword v{A.vRL + 1}, off, {WSR}, s47 sc1")
def level(val, t): return L(f"v_mov_b32 v{t}, {val}") + [side.flag_store(sFL, A.vF0, t)]
def lcheck(val, n): return L(f"v_cmp_gt_u32 vcc, {val}, v{A.vRL}\ns_cbranch_vccnz L_ls{n}\nL_lr{n}:")
LSPIN = {}; WSPIN = {}
PBASE = lambda: L(f"""
    s_lshl_b32 s86, s{A.sWAVE}, 14
    s_add_u32 s86, s86, s{A.sPO}
    s_add_u32 s87, s86, 4096
    s_add_u32 s88, s86, 8192
    s_add_u32 s89, s86, 12288
    s_lshl_b32 s90, s{A.sWAVE}, 10
    s_add_u32 s90, s90, s{A.sPO}
    s_add_u32 s90, s90, 65536
    """)

class KVStore:
    def __init__(self, vt):
        self.prs = kv5.kv_pairs(vt); self.reg = {}; self.src = {}
    def st(self, n, tag, reg=None, newpage=True):
        off = self.prs[n][2]
        s = I(f"buffer_store_dwordx4 {reg or self.reg[n]}, v{K.vST}, {WSR}, s3 offen offset:{off & 0xfff} sc1", tag=tag)
        if not reg: dep(s, *self.src[n])
        if opt['nost'] == '1': return []
        if opt['nost'] == '2': s.text = s.text.replace(" sc1", "")
        return ([I(f"s_add_u32 s3, s{K.sOOFF}, {off & ~0xfff}")] if newpage else []) + [s]
    def many(self, ns, tag, regf=None):
        out = []; cur = None
        for n in ns:
            pg = self.prs[n][2] >> 12
            out += self.st(n, tag(n) if callable(tag) else tag, regf(n) if regf else None, pg != cur); cur = pg
        return out

def win_qk1(vslot, v4, stub, extra=lambda s: None, tags=(), post=()):
    g = Gaps(qk_mfmas(1, C0, alt=True))
    tile_reads(g, lambda b: rd_batch(KSLOT[1], b), rd_batch(vslot, 0, v4), [("T", vslot)] + list(tags))
    s = Sched(g).add(dma_flat(KSLOT[0], A.sK) + adv_k(), 1, ints('dh')[1])
    if post: s.add(post, 48, 52, asap=True)
    s.add([I(f"v_mov_b32 v{r}, 0") for r in [A.vLS, A.vLS + 1] + list(range(A.vNM, A.vNM + 8))] + [By(56)], 4, 50)
    extra(s); s.run()
    put_tail(g, sched_sm(g, softmax_groups(0, 1), 0, 54), check_first(f"L_st{stub}"))
    return g.flat() + L(f"L_rt{stub}:"), None
def win_pv0(vslot, v4, extra=lambda s: None, tags=(), post=(), sel=True):
    g = Gaps(pv_mfmas(0, zero=True))
    tile_reads(g, lambda b: rd_batch(vslot, b, v4), rd_batch(KSLOT[0], 0), [("T", KSLOT[0])] + list(tags))
    s = Sched(g).add(dma_flat(KSLOT[1], A.sK) + adv_k(), 1, ints('dh')[2])
    if post: s.add(post, 48, 52, asap=True)
    if sel and opt['selq'] == '0': s.add(selm(A.vX + 1), 30, 62)
    extra(s); s.run()
    sched_sm(g, softmax_groups(1, 0), 0, 60, add_l(0))
    return g.flat()
def win_qk(b, stub, extra=lambda s: None, tags=(), post=(), dma2=()):
    g = Gaps(qk_mfmas(1 - b, lambda kb, qb: NMq(qb), alt=True))
    tile_reads(g, lambda n: rd_batch(KSLOT[1 - b], n), rd_batch(VSLOT[b], 0), [("T", VSLOT[b])] + list(tags))
    s = Sched(g).add(dma_flat(VSLOT[1 - b], A.sV) + adv_v() + list(dma2), 1, 60 if dma2 else ints('dh')[2])
    if post: s.add(post, 48, 52, asap=True)
    extra(s); s.run()
    put_tail(g, sched_sm(g, softmax_groups(b, 1), 0, 56), check(b, f"L_st{stub}"))
    return g.flat() + L(f"L_rt{stub}:")
def win_pv(b, extra=lambda s: None, tags=(), post=()):
    g = Gaps(pv_mfmas(b))
    tile_reads(g, lambda n: rd_batch(VSLOT[b], n), rd_batch(KSLOT[b], 0), [("T", KSLOT[b])] + list(tags))
    s = Sched(g).add(dma_flat(KSLOT[1 - b], A.sK) + adv_k(), 1, ints('dh')[2])
    if post: s.add(post, 48, 52, asap=True)
    extra(s); s.run()
    sched_sm(g, softmax_groups(1 - b, 0), 0, 60, add_l(b))
    return g.flat()
HELPER_K = lambda: L(f"""
    s_mul_i32 s{A.sK}, s{sH}, {HS}
    s_add_u32 s{A.sK}, s{A.sK}, {NO * 32768}
    s_lshl_b32 s84, s{sJ}, 1
    s_sub_u32 s{A.sKcnt}, {30 - NO - 1}, s84
    {f's_lshl_b32 s{A.sKn1}, s{sH}, 18' + chr(10) + f's_add_u32 s{A.sKn1}, s{A.sKn1}, {WS_WO}' if RELAY else f's_mov_b32 s{A.sKn1}, {OOB}'}
    """)

def r5_loads():
    o = side.r4_loads()
    for i in o:
        m = re.match(r"buffer_load_dwordx4 v\[(\d+):", i.text)
        if m: i.text = i.text.replace(f"v[{m.group(1)}:{int(m.group(1)) + 3}]", f"a[{int(m.group(1)) + 136}:{int(m.group(1)) + 139}]"); i.parse()
    return o
def r5_compute():
    out = [I(f"v_mov_b32 v{16+r}, 0") for r in range(8)]
    for w in range(4):
        out += L(f"v_accvgpr_read_b32 v28, a{192+w}\nv_accvgpr_read_b32 v29, a{196+w}")
        for r in (0, 2):
            out += L(f"""v_accvgpr_read_b32 v30, a{176+4*r+w}
            v_accvgpr_read_b32 v31, a{180+4*r+w}
            v_dot2c_f32_bf16 v{16+r}, v30, v28
            v_dot2c_f32_bf16 v{20+r}, v30, v29
            v_dot2c_f32_bf16 v{17+r}, v31, v28
            v_dot2c_f32_bf16 v{21+r}, v31, v29""")
    if opt['rw'] == '2':
        out = out[:8]
        for w in range(4):
            out += L(f"v_accvgpr_read_b32 v28, a{192+w}\nv_accvgpr_read_b32 v29, a{196+w}\nv_lshlrev_b32 v27, 16, v28\nv_lshlrev_b32 v25, 16, v29\nv_and_b32 v28, 0xffff0000, v28\nv_and_b32 v29, 0xffff0000, v29")
            for r in range(4):
                out += L(f"""v_accvgpr_read_b32 v30, a{176+4*r+w}
                v_lshlrev_b32 v31, 16, v30
                v_and_b32 v30, 0xffff0000, v30
                v_fmac_f32 v{16+r}, v31, v27
                v_fmac_f32 v{20+r}, v31, v25
                v_fmac_f32 v{16+r}, v30, v28
                v_fmac_f32 v{20+r}, v30, v29""")
    tail = side.r4_compute()[40:]
    for i in tail:
        i.text = re.sub(r"v(\d+)", lambda m: "v%d" % ({80: 28, 81: 29, 82: 30}.get(int(m.group(1)), int(m.group(1)) - 56) if int(m.group(1)) >= 72 else int(m.group(1))), i.text); i.parse()
    return out + [2] + tail
def act5():
    o = hw.s7_act()
    k = [n for n, i in enumerate(o) if not isinstance(i, int) and i.text.startswith("s_or_b32 s64, s86")][0]
    o[k] = I(f"s_or_b32 s64, s31, s{K.sWAVE}")
    k = [n for n, i in enumerate(o) if not isinstance(i, int) and i.text.startswith("s_mov_b32 s64, %d" % WS_SEL)][0]
    o[k:k + 1] = L(f"s_lshl_b32 s64, s{sH}, 7\ns_add_u32 s64, s64, {WS_SEL}")
    return o
def down5(ra=176, rd=192):
    pre = hw.s8_down()[0]
    ms = []
    for m in range(7):
        b = 16 + 2 * (m & 1); nb = 16 + 2 * (1 - (m & 1))
        ms.append([I(f"v_mfma_f32_16x16x16_bf16 a[{rd}:{rd+3}], a[{ra+2*m}:{ra+1+2*m}], v[{b}:{b+1}], {R('a', rd, 4) if m else '0'}")] +
                  ([I(f"v_mov_b32 v{nb + e}, v{b + e} row_shr:2 row_mask:0xf bank_mask:0xf bound_ctrl:0") for e in range(2)] if m < 6 else []))
    adr = L(f"""
    v_and_b32 v29, 1, v0
    v_mul_u32_u24 v30, 1792, v29
    v_lshrrev_b32 v31, 4, v0
    v_lshl_add_u32 v30, v31, 4, v30
    v_bfe_u32 v29, v0, 1, 3
    v_lshl_add_u32 v30, v29, 6, v30
    v_add_u32 v29, 1, v29
    v_lshrrev_b32 v29, 3, v29
    v_lshl_or_b32 v30, v29, 29, v30
    v_or_b32 v30, s{hw.sMK}, v30
    s_mul_i32 s89, s{hw.sFS}, 3584
    s_mul_i32 s64, s{K.sWAVE}, 448
    s_add_u32 s89, s89, s64
    s_add_u32 s89, s89, {WS_Y}
    buffer_store_dwordx4 a[{rd}:{rd+3}], v30, {WSR}, s89 offen sc1
    """)
    return pre, ms, adr
def front(c, vt):
    frags = [kvq.rd_c(0, 0, 0, 0), kvq.rd_c(0, 0, 0, 1)] + kv5.rd_w_unit(0, 0, 0) + kv5.rd_w_unit(0, 1, 1)
    rt, ht = int(opt['rt']) == vt, int(opt['ht']) == vt
    qt = not ht
    if 'h' in opt['skip']: ht = False
    if 'r' in opt['skip']: rt = False
    side.sJ = hw.sJ = 31; rl = (r5_loads() if RW else side.r4_loads()) if rt else []; side.sJ = sJ
    RD = int(opt['rd']) if RW else 0
    rl_late = rl if RD else []
    if RD: rl = []
    out = L(f"s_and_b32 s31, s{sJ}, 7") + (side.z_store()[:-3] + rl + side.z_store()[-3:] if vt == 0 else rl) + (kv5.unit_c(1) + kv5.unit_w(2) if kv5.T0 else kv5.unit_w(2) + kv5.unit_c(1))
    ev = wev('a', [f"kv{vt}{p}" for p in range(1, min(1 + int(opt["na"]), 12 + vt))])
    if opt['wpos'] == '1':
        k = max(n for n, i in enumerate(out) if i.text.startswith("s_add_u32 m0")) - 6
        out[k:k] = ev; ev = []
    out += jitter() + ev
    out += [WAITV([("W", 1), ("C", 0), ("W", 0)], lgkm0=True), I("s_barrier")] + stamp(26) + frags
    if rt and not RW: out += side.r4_compute()
    out += [NEED(R("a", kv5.wfrag(0, 0, 0), 8), R("a", 160, 8))]
    tQ = int(opt["tQ"])
    xl = {}; uq = {u: 0 for u in range(8)}
    def items(spec, sep=0):
        o = []
        for n, seg in enumerate(spec.split("@")):
            if n:
                k, seg = seg.split(":"); o.append(At(int(k)))
            for ch in seg:
                if ch in 'abcdefg': o += kv5.x_dma(ord(ch) - 97)
                elif ch in 'ABCDEFG': o += kv5.x_read(ord(ch) - 65, xl)
                else:
                    u = int(ch); d = kv5.wq_dma(u, uq[u]); uq[u] += 1
                    o += [Sep(max(sep - 2, 0))] + d
        return o
    for t in range(15):
        dma = kv5.kv_dma(t)
        if ht and t == 2 and H2: hpre, uns = hw2.a_setup(), hw2.a_units(opt['hnt'])
        if ht and t == 9 and H2:
            dpre, un = hw2.down_dma(); dma[1] = dma[1] + [un]
        if ht and t == 2 and not H2:
            hpre, uns = hw.s1_weights()
            if opt['hmap'] == '1':
                k = [n for n, i in enumerate(hpre) if i.text.startswith(f"s_mul_i32 s{hw.sLD},")][0]
                hpre = L(f"""s_and_b32 s64, s{sH}, 7
                s_min_u32 s65, s64, 4
                s_mul_i32 s{hw.sFS}, s64, 12
                s_lshl_b32 s65, s65, 2
                s_add_u32 s{hw.sFS}, s{hw.sFS}, s65
                s_and_b32 s65, s{sH}, 8
                s_add_u32 s65, s65, s31
                s_add_u32 s{hw.sFS}, s{hw.sFS}, s65
                s_and_b32 s64, s64, 4
                s_sub_u32 s64, 15, s64
                s_sub_u32 s64, s64, s65
                s_and_b32 s{hw.sMK}, s64, {OOB}
                s_min_u32 s{hw.sFS}, s{hw.sFS}, 111""") + hpre[k:]
        if ht and t >= 2:
            for w_ in range(2):
                for n_, u_ in enumerate(ints('hw')):
                    if u_ == 2 * t + w_: dma[w_] = dma[w_] + [uns[n_]]
        if ht and t == 10 and not H2:
            dpre, un = hw.s6_down_dma(); dma[1] = dma[1] + [un]
        tR = int(opt['tR'])
        if RELAY and not LATER and not ht:
            if t == tR:
                side.sJ = 31; wpre, wun = side.wo2_dma(); wrd = side.wo2_reads(); side.sJ = sJ
            if t in (tR, tR + 1): dma[1] = dma[1] + [wun[t - tR]]
        late = t >= 12
        g = kv5.kv_tile(t, vt, [dma[0] if t == 12 else [], []] if late else dma)
        def fit(ins, k, pace=0):
            k, left = kvq.seq_fit(g, ins, k, pace); assert not left, (t, len(left)); return k
        def mm(ms, k):
            k |= 1
            for m in ms: g.put(k, m)
            return k
        tch = []
        if t == 12: xs_at = fit(kv5.x_setup(), 1) + 1; assert xs_at < 40
        if t in ints('tcq'): tch += side.c_touch(32, ints('tcq').index(t) + 1)
        if t == 0: fit(L("v_lshlrev_b32 v26, 7, v0\nv_and_b32 v27, %d, v0\nv_lshl_add_u32 v26, v27, 24, v26" % (56 if THIN else 48)), 50)
        if t == RD - 1 and rt and RD:
            for i in rl_late: i.text = i.text.replace("v32", "v25"); i.parse()
            fit(rl_late, int(opt['rdg']), 2)
        if t == 1 + RD and rt and opt['rw'] == '1': assert fit(r5_compute(), 2) < 108
        if rt and opt['rw'] == '2':
            if t == 1: rc = r5_compute(); fit(rc[:110], 2 if not RD else int(opt['rcg']))
            if t == 2: assert fit(rc[110:], 2) < 108
        if t == 1 and vt == 0: fit(side.z_signal(), 112)
        if t == (3 if opt['rw'] == '2' else 2 + RD) and rt: KS_AT = fit(side.rg4_store(), 4, 1); assert KS_AT < 42
        if t == 8 and "ab"[vt] in opt['idle'] or str(t) == opt['idt']: out += L("s_sleep 32")
        if t == 3 - H2: fit(side.z_load(), 112 if H2 else 50)
        if t == 4 - H2:
            k = fit(side.z_check(vt), 100 if H2 else 112)
            if rt: fit(side.key4_store(), k + 1)
        if t == 5 and LATER: fit(L(srd(S_WO, 90, 4096 * 896)), 4)
        if t == 5 and not RELAY: fit(L(f"""s_mul_i32 s64, s{sH}, {256 * 896}
            s_add_u32 s72, s90, s64
            s_addc_u32 s73, s91, 0
            s_sub_u32 s75, {4096 * 896}, s64
            {srd(S_WO, 72, "s75")}"""), 4)
        if RELAY and not LATER and not ht:
            if t == tR: assert fit(L(srd(60, 90, 4096 * 896)) + wpre, 30) < 80
            if t == tR + 2: g.sc[110][0].tag = g.sc[110][0].tag + ["WO"]
            if t == tR + 3: assert fit(wrd, 2, 2) < 108
            if t in (tR + 4, tR + 5, tR + 6): fit([x for s_ in side.wo2_stores()[{0: 0, 1: 3, 2: 5}[t - tR - 4]:{0: 3, 1: 5, 2: 7}[t - tR - 4]] for x in s_ + [24]], 20)
        if qt:
            pre_, tl = side.q_touch3(K.S_WQ)
            if THIN:
                for i in pre_: i.text = i.text.replace("v_and_b32 v28, 48, v0", "v_and_b32 v28, 56, v0"); i.parse()
                tl = [[side.touch(23, K.S_WQ, 0, nt=False), I(f"v_add_u32 v23, {2 * 8192}, v23")] for n in range(7)]
            if t == tQ: fit(pre_, 60)
            if 0 <= t - tQ < len(tl): tch += tl[t - tQ]
        if ht and H2:
            if t == 2: fit(hpre, 42)
            if t == 5: fit(hw.s2_keys(), int(opt['hk']))
            if t == 6: assert fit(hw.s3_top2(), 10, 1) < 108
            hg = ints('hg')
            if t == 7:
                fit(hw2.sel(), 2); g.sc[110][0].tag = g.sc[110][0].tag + ["HW"]
            if t == 8:
                ((r0, m0), (r1, m1)), hst = hw2.gemm()
                k = fit(r0 + r1, hg[0]); k = mm(m0, k + 6); k = mm(m1, k + 4); fit(hst, k + 4)
            if t == 9:
                g.sc[110][0].tag = g.sc[110][0].tag + ["HP"]
                assert fit(dpre, 4) < 44
                fit(hw2.a_flag(), 112)
            if t == 10:
                k = fit(hw2.sel_store(), 2); k = fit(hw2.down_reads(), max(k + 1, 70)); assert k < 108; fit(hw2.b_poll(), max(k + 1, hg[1]))
            if t == 11: fit(hw2.b_load(), hg[2])
            if t == 12: fit(hw2.act(), max(xs_at, hg[3]))
            if t == 13:
                pre, ms, yadr = down5(208, 224); k = 0
                for m in ms: k = mm([m[0]], k + 1); k = fit(m[1:], k + 1)
                assert fit(yadr, k + 1) < 47
        if ht and not H2:
            if t == 2: fit(hpre, 42)
            if t == 6: fit(hw.s2_keys(), 64)
            if t == 7: assert fit(hw.s3_top2(), 10, 1) < 108
            if t == 8:
                sel = hw.s4_sel()
                k = [n for n, i in enumerate(sel) if not isinstance(i, int) and i.text.startswith(f"s_mov_b32 s64, {WS_RG}")][0]
                if opt['rgo'] == '1': sel[k:k + 1] = L(f"s_or_b32 s64, s31, s{K.sWAVE}\ns_min_u32 s64, s64, 1\ns_lshl_b32 s64, s64, 29\ns_add_u32 s64, s64, {WS_RG}")
                fit(sel, 4, 1)
            if t == 9:
                (r0, m0), (r1, m1) = hw.s5_gemm()
                k = fit([WAITV("HW")] + r0, 50); k = mm(m0, max(k + 6, 78)); k = fit(r1, k + 1); mm(m1, max(k + 6, 110))
            if t == 10: assert fit(dpre, 4) < 44
            if t == 11: fit(act5(), 2, 1)
            if t == 12:
                pre, ms, yadr = down5()
                k = fit(pre, xs_at)
                for m in ms: k = mm([m[0]], k + 2); k = fit(m[1:], k + 1)
                fit(yadr, k + 1)
        thin = lambda srd_, so: [side.touch(26, srd_, f"s{so}", nt=False)] + L(f"s_add_u32 s{so}, s{so}, {1024 if THIN else 2048}")
        if str(t) == opt['tH']:
            fit(L(f"""s_lshl_b32 s26, s2, 2
            s_add_u32 s26, s26, s{K.sWAVE}
            s_sub_u32 s25, s26, 448
            s_cselect_b32 s25, s26, s25
            s_cselect_b64 s[72:73], s[80:81], s[82:83]
            s_mul_i32 s25, s25, 3584
            {srd(32, 72, 448 * 3584)}
            v_lshlrev_b32 v27, 7, v0
            v_add_u32 v28, 4, v0
            v_lshrrev_b32 v28, 5, v28
            v_lshl_or_b32 v27, v28, 29, v27""") + [side.touch(27, 32, "s25", nt=False)], int(opt['tHg']))
        if str(t) == opt['tlb'][0]:
            tl_ = L(f"v_lshlrev_b32 v27, 21, v0\nv_min_u32 v28, 2, v0\nv_lshrrev_b32 v28, 1, v28\nv_lshl_or_b32 v27, v28, 29, v27")
            if 'x' in opt['tlb']: tl_ += [side.touch(27, K.S_X, f"s{K.sXOFF}", nt=False)]
            if 'q' in opt['tlb']: tl_ += [side.touch(27, K.S_WQ, 0, nt=False)]
            if 'k' in opt['tlb']: tl_ += L(f"s_mul_i32 s26, s{sH}, {HS}\nv_lshlrev_b32 v27, 24, v0\nv_min_u32 v28, 3, v0\nv_add_u32 v28, 1, v28\nv_lshrrev_b32 v28, 2, v28\nv_lshl_or_b32 v27, v28, 29, v27") + [side.touch(27, K.S_WS, "s26", nt=False)]
            fit(tl_, 60)
        xt = [int(x) for x in opt['tX'].split(",") if x]
        if xt and t == xt[0] // 2:
            assert fit(L(f"""s_lshl_b32 s26, s{sJ}, 1
            s_lshr_b32 s27, s{sH}, 3
            s_add_u32 s26, s26, s27
            s_lshl_b32 s26, s26, 2
            s_add_u32 s26, s26, s{K.sWAVE}
            s_mul_i32 s26, s26, 14336"""), 20) < 46
        if 2 * t in xt: fit(thin(K.S_X, 26), 48)
        if 2 * t + 1 in xt: tch += thin(K.S_X, 26)
        wt = [int(x) for x in opt['tW'].split(",") if x]
        if wt and qt:
            if t == wt[0]: fit(L(f"""s_and_b32 s27, s{sJ}, 7
                s_lshl_b32 s64, s{sH}, 3
                s_add_u32 s27, s27, s64
                s_lshl_b32 s27, s27, 2
                s_add_u32 s27, s27, s{K.sWAVE}
                s_mul_i32 s27, s27, 7168
                {srd(60, 90, 4096 * 896)}"""), 20)
            if t in wt: fit(thin(60, 27), int(opt['twg']))
        if str(t) in opt['tc'].split(','): tch += [side.touch(26, 76, 's95', nt=False)]
        if late:
            s = Sched(g); xr = int(opt['xr'])
            fl = lambda us: [i for u in us for i in u]
            if t == 12: s.add(items("a") + fl(dma[1]) + [By(110)], 49, 106, vmd=2)
            if t == 13:
                s.add(items("b") + fl(dma[0]) + [By(46)], 1, 42, vmd=2).add(items("c") + fl(dma[1]) + [At(72)] + items(UW[0]) + [By(110)], 49, 106, vmd=2)
                s.add(kv5.q_setup() + [By(70)], 48, 68)
                s.add(items("A") + [By(44), At(xr)] + items("B") + [By(108)], xr - 64, 100, asap=True)
            if t == 14:
                s.add(items("d") + fl(dma[0]) + items(UW[1]) + [By(46)], 1, 42, vmd=2).add(items(UW[2]) + [By(110)], 49, 106, vmd=2)
                s.add(items("C") + [By(44), At(xr)] + items("D") + [By(108)], xr - 64, 100, asap=True)
                s.add(kv5.q_setup2(), 50, 80)
            s.run()
        fit(tch, int(opt['tg']) - (10 if len(tch) > 8 else 0))
        out += g.flat()
        for ev in opt['te1'].split(","):
            te, p0, p1 = [int(x) for x in ev.split(":")]
            if t == te: out += wev('b', [f"kv{vt}{p}" for p in range(p0, min(p1, 12 + vt))])
        if t in (0, 1, 11, 14) or '1' in opt['fine']: out += stampa()
        if t in (0, 3, 5, 9, 14): out += jitter()
    g = kv5.kv_tile(15, vt, [[], []], endtags=[("U", 0), ("U", 1)])
    ks = KVStore(vt)
    lastw = {}
    for m in g.m:
        for r in m.writes: lastw[r] = m
    done_at = lambda n: max(p[0] * 16 + p[1] * 2 + 1 for p in ks.prs[n][:2]) + 4
    packs = {}
    for n, (ta, tb, off) in enumerate(ks.prs):
        ins, reg = kvq.pack(kacc(*ta), kacc(*tb), K.vT + (4 * (n & 1) if vt else 0))
        seen = set()
        for i in ins:
            for r in i.reads:
                if r in lastw and r not in seen: i.extra.setdefault("raw", {})[r] = lastw[r]
            seen |= set(i.writes)
        packs[n] = ins; ks.reg[n] = R("v", reg, 4); ks.src[n] = ins[-4:]
    qp = QPhase([32 + 4 * f for f in range(7)], [kacc(y, x)[1] for y in (3, 5) for x in range(8)] if vt else [kacc(y, x)[1] for y in (2, 3, 4, 5) for x in (1, 3, 5, 7)])
    qp.place_reads(g, 0, 112)
    g.put_s(127, qp.need(0, 0, 4))
    s = Sched(g)
    lo, hi = ints('s15v' if vt else 's15'); st1 = []; cur = None
    for n in range(8):
        pg = ks.prs[n][2] >> 12
        st1 += [At(max(done_at(n), lo + n * (hi - lo) // 8 - 6))] + packs[n] + ks.st(n, "KV1", newpage=pg != cur); cur = pg
    s.add(st1 + [By(110)], 0, hi, asap=True)
    s.add(items(UW[3]) + [By(46)], 1, 42, vmd=2).add(items(UW[4]) + [By(108)], 49, 90)
    s.add(items("E") + [At(50)] + items("F") + [At(96)] + items("G") + [By(106)], 30, 100, asap=True)
    s.add([x for n in range(8, 32) for x in [At(done_at(n))] + packs[n]], 0, 127, asap=True)
    left = s.run(spill=True); assert not any(left[:4]), left
    carry = left[4]
    if '6' in opt['fine']:
        for k in range(31, 127, 32): g.ve[k] += stampa()
    out += g.flat() + fs('2')
    g = Gaps(qp.mfmas(xl))
    LV = {1: [("U", 2), ("U", 3)], 2: [("U", 4), ("U", 5)], 3: [("U", 6), ("U", 7)], 4: [("T", KSLOT[0])]}
    l2 = int(opt['l2']) if vt else 3
    LV[l2] = LV[l2] + ["KV2"]
    g.put_s(2, qp.need(0, 4, 7))
    for n in range(32):
        if n < 31: qp.place_reads(g, n + 1, 14 * n, None if n % 8 == 6 else [int(x, 16) for x in opt['qpat']])
        else: put_batch(g, rd_batch(KSLOT[0], 0), 14 * n); g.put_s(14 * n + 13, need_batch(0))
        if n % 8 == 6:
            g.put_s(14 * n + 12, WAITV(LV[n // 8 + 1], lgkm0=True)); g.put_s(14 * n + 13, I("s_barrier"))
        elif n < 31:
            nd = ints('qnd'); g.put_s(14 * n + 13, qp.need(n + 1, 0, nd[0])); g.put_s(14 * n + 13 + nd[0] - nd[1], qp.need(n + 1, nd[0], 7))
    QB = lambda x: 112 * x - 14
    setup = kv5.q_bank(1) + [By(90)] + side.lane0_wave0(A.vF0) + L(f"""
    v_min_u32 v9, 15, v0
    v_lshlrev_b32 v9, 7, v9
    s_sub_u32 s66, 15, s{sJ}
    s_max_u32 s67, s66, s{sJ}
    s_min_u32 s66, s66, s{sJ}
    s_mul_i32 s{A.sK}, s{sH}, {HS}
    s_lshl_b32 s64, s67, 16
    s_add_u32 s{A.sQ}, s{A.sK}, s64
    s_lshl_b32 s64, s{A.sWAVE}, 14
    s_add_u32 s{A.sQ}, s{A.sQ}, s64
    s_add_u32 s{A.sQ}, s{A.sQ}, {WS_Q}
    s_sub_u32 s64, s{sJ}, {JH + 1}
    s_and_b32 s{sNC}, s64, {OOB}
    v_or_b32 v6, s{sNC}, v{A.vL16}
    """) + [By(80)] + L(f"""
    s_lshl_b32 s{A.sM0}, s{A.sWAVE}, 13
    v_add_u32 v{A.vRD1}, 0x10000, v{A.vL16}
    v_add_u32 v{A.vDM0}, s{A.sM0}, v{A.vL16}
    v_add_u32 v{A.vDM1}, 0x1000, v{A.vDM0}
    s_lshl_b32 s64, s{sJ}, 16
    s_add_u32 s{A.sKn1}, s{A.sK}, s64
    s_add_u32 s{sVD}, s{A.sKn1}, {WS_V}
    s_add_u32 s{A.sV}, s{A.sK}, {WS_V}
    {f'''s_min_u32 s{A.sIT}, s{sJ}, {JH}
    s_lshl_b32 s{A.sKcnt}, s{A.sIT}, 1
    s_sub_u32 s{A.sKcnt}, s{A.sKcnt}, 1
    s_sub_u32 s{A.sIT}, s{A.sIT}, 2''' if vt else f'''s_mov_b32 s{A.sKcnt}, 0x7fff
    s_sub_u32 s{A.sIT}, s{sJ}, 1
    s_cmp_eq_u32 s{sJ}, 0
    s_cselect_b32 s64, 32768, 0
    s_add_u32 s{A.sV}, s{A.sV}, s64'''}
    s_mov_b32 s{A.sTHR}, {hex(f2u(float(opt['thr'])))}
    s_mov_b32 s{A.sLOW}, {hex(f2u(float(opt['low'])))}
    s_lshl_b32 s47, s66, 7
    s_add_u32 s47, s47, s46
    s_lshl_b32 s64, s{A.sWAVE}, 5
    s_add_u32 s47, s47, s64
    s_add_u32 s47, s47, 2048
    s_lshl_b32 s65, s{sH}, 3
    s_add_u32 s65, s65, s66
    s_mul_i32 s{A.sPO}, s65, {PO_STRIDE}
    s_add_u32 s{A.sPO}, s{A.sPO}, {WS_PO}
    s_lshl_b32 s65, s{sJ}, 4
    s_add_u32 s65, s65, s{sH}
    s_mul_i32 s{A.sOP}, s65, {OP_HEAD}
    s_mul_i32 s65, s{A.sWAVE}, 28672
    s_add_u32 s{A.sOP}, s{A.sOP}, s65
    s_add_u32 s{A.sOP}, s{A.sOP}, {WS_OP}
    {f's_or_b32 s{A.sOP}, s{A.sOP}, {OOB}' if ('k' in opt['wi'] and not vt) or ('v' in opt['wi'] and vt) else ''}
    s_mov_b32 s{A.sREQ}, 0
    s_mov_b32 s{A.sCHK}, {vt}
    s_mov_b32 s{sMODE}, 1
    s_cmp_eq_u32 s{A.sWAVE}, 0
    s_cselect_b32 s{sMLD}, {6 if vt else 7}, 4
    {'' if vt else f'''s_lshl_b32 s64, s{sH}, 1
    s_add_u32 s64, s64, s{A.sWAVE}
    s_cmp_lt_u32 s64, 30
    s_cselect_b32 s64, {0 if 'h' in opt['skip'] else (15 << TY) | (1 << 15)}, 0
    s_cmp_ge_u32 s{A.sWAVE}, 2
    s_cselect_b32 s64, s64, 0
    s_cmp_eq_u32 s{sJ}, {JY}
    s_cselect_b32 s64, s64, 0
    s_or_b32 s{sMLD}, s{sMLD}, s64'''}
    s_mov_b64 s[60:61], s[76:77]
    s_mov_b32 s62, s78
    s_mov_b32 s63, 0x20000
    v_lshrrev_b32 v24, 4, v0
    v_lshlrev_b32 v24, 2, v24
    v_and_b32 v25, 15, v0
    v_sub_u32 v24, v24, v25
    """) + [I(f"v_cmp_lt_i32 s[{A.sTRI[e]}:{A.sTRI[e]+1}], {-e}, v24") for e in range(4)] + side.code_addr(0, 25) + (selm(24) if opt['selq'] == '1' else []) + [By(int(opt['fl']) - 6)]
    dq = items(opt['q0'], int(opt['qsep'])) + L(f"v_mov_b32 v{A.vNEG}, 0xff800000")
    assert all(v == 7 for v in uq.values())
    W1 = f"buffer_load_dword v{A.vRL}, v31, {WSR}, s46 offen offset:4 sc1"
    wchk = lambda n, half: L(f"v_cmp_ne_u32 vcc, 1, v{A.vRL}\ns_nop 0\ns_cmp_lg_u32 vcc_{half}, 0\ns_cbranch_scc1 L_ws{n}\nL_wr{n}:")
    WSPIN[f"q{vt}"] = (W1, "lo"); WSPIN[f"r{vt}"] = (W1, "hi")
    dq2 = [At(int(opt['fl']) - 4)] + L(f"v_lshrrev_b32 v31, 6, v{A.vL16}\nv_bfe_u32 v28, v{A.vL16}, 4, 2\nv_lshlrev_b32 v31, 5, v31\nv_add_lshl_u32 v31, v31, v28, 2\n{W1}") + [At(int(opt['fc']))] + wchk(f"q{vt}", "lo") + dma_flat(KSLOT[0], A.sK) + adv_k()
    k1 = dma_flat(KSLOT[1], A.sK)
    dq2 += [At(QB(3))] + k1[:3] + L(W1) + k1[3:] + adv_k() + [At(int(opt['fv']))] + wchk(f"r{vt}", "hi") + dma_flat(4, A.sV) + adv_v()
    qout = []; qsts = []
    def qst(qb, kq): return [I(f"s_add_u32 s30, s{A.sQ}, {(qb * 8 + kq) >> 2 << 12}"), I(f"buffer_store_dwordx4 a[{Qreg(qb, kq)}:{Qreg(qb, kq)+3}], v6, {WSR}, s30 offen offset:{(kq & 3) * 1024} sc1", tag="QST")] if vt and opt['nost'] != '1' else []
    for cg in range(4):
        for p2 in range(2):
            for qb in QO:
                if (cg, p2) == (3, 1): continue
                ins, k = qp.out(cg, p2, qb, Qreg(qb, 2 * cg + p2))
                qout += [At(k + 4)] + ins
                qsts.append((ins[-1], qst(qb, 2 * cg + p2)))
                if qsts[-1][1]: dep(qsts[-1][1][-1], *ins[-4:])
    qlast = lambda: qp.out(3, 1, QO[0], Qreg(QO[0], 7))[0] + [By(4), At(1)] + qp.out(3, 1, QO[1], Qreg(QO[1], 7))[0] + [By(12)]
    nq = ints('qd')[4]
    qrest = [i for k, i in qsts[nq:]] + [qst(QO[0], 7), qst(QO[1], 7)]
    qw = ints('qw') if vt else [0] * 7; assert not vt or sum(qw) == len(qrest), len(qrest)
    qpart = lambda m: [x for i in qrest[sum(qw[:m]):sum(qw[:m + 1])] for x in i]
    uq_at = 82
    s = Sched(g)
    s.add(carry, 0, 40, asap=True)
    s.add(dq, 0, 240, asap=True, vmd=2).add(dq2, 0, 430, asap=True, vmd=int(opt['kvd']))
    kq = 8 + sum(int(x, 16) for x in opt['qk']); kw = ints('kw'); assert kq + sum(kw) == 32 and kw[2] <= 8
    plan = [int(x, 16) for x in opt['qv' if vt else 'qk']]; pos = ints('qp'); sts = []; n0 = 8
    for m, k in zip(plan, pos):
        sts += [At(k)] + [x for i in ks.many(range(n0, n0 + m), lambda n: "KV2" if n < 16 else "KV4") for x in ([Sep(int(opt['ssep'])), i] if i.kind != 'vst' else [i])]; n0 += m
    assert n0 == (16 if vt else kq)
    s.add(sts, 0, 447, asap=True)
    s.add(qout, 0, 447, asap=True)
    qd = ints('qd'); nq = qd[4]
    ready = [i for i in setup if isinstance(i, Inst) and i.text.startswith("v_or_b32 v6,")][0]
    for k, i in qsts:
        if i: dep(i[1], ready); dep(i[0], [x for x in setup if isinstance(x, Inst) and f"s{A.sQ}" in x.writes][-1])
    s.add([At(uq_at)] + [x for n, (k, i) in enumerate(qsts[:nq]) for x in [At(qd[n // 4]), Sep(int(opt['ssep'])), After(k)] + i], 0, 447, asap=True)
    s.add(setup, 20, int(opt['fl']) - 20)
    w1 = L(f"""s_mul_i32 s72, s{sH}, {FSTR}
    s_add_u32 s46, s72, {WS_FL}
    s_lshl_b32 s{sFL}, s{sJ}, 7
    s_add_u32 s{sFL}, s{sFL}, s46
    s_lshl_b32 s72, s{A.sWAVE}, 2
    s_add_u32 s72, s72, s{sFL}
    v_min_u32 v29, 1, v0
    v_lshlrev_b32 v29, 29, v29
    v_mov_b32 v30, 1""") + [At(int(opt['l1v' if vt else 'l1'])), WAITV("KV1"), I(f"buffer_store_dword v30, v29, {WSR}, s72 offen offset:4 sc1")]
    s.add(w1 + [At(QB(l2))] + level(2, 30), 0, 447, asap=True)
    s.run()
    if '6' in opt['fine']:
        for k in range(27, 447, 28): g.ve[k] += stampa()
    if '8' in opt['fine']:
        for k in range(213, 447, 14): g.ve[k].append(I("s_nop 0 ; us"))
    if 'q' in opt['warm']:
        k, p0 = ints('wqg'); g.ve[k] += wev('q', [f"kv{vt}{p}" for p in range(p0, 12 + vt)] + ([] if vt else []))
    if opt['idq'] != '-': g.ve[int(opt['idq'])].append(I("s_sleep 32"))
    if '7' in opt['fine']:
        for x in range(1, 5): g.ve[QB(x) - 3] += stampa(); g.ve[QB(x) - 1] += stampa()
    out += g.flat() + stamp(26) + (EXIT() if opt['kvonly'] == '2' else []) + jitter()
    init = lambda: [I(f"v_mov_b32 v{r}, 0") for r in [A.vLS, A.vLS + 1] + list(range(A.vNM, A.vNM + 8))]
    rd2 = lambda: L(f"v_add_u32 v16, 0x20000, v{A.vL16}")
    g = Gaps(qk_mfmas(0, C0, order=QO, asc0=True))
    tile_reads(g, lambda b: rd_batch(KSLOT[0], b), rd_batch(KSLOT[1], 0), [("T", KSLOT[1])])
    s = Sched(g).add(qlast() + [x for i in qpart(0) for x in ([Sep(int(opt['q0s'])), i] if i.kind != 'vst' else [i])], 0, 20, asap=True).add(dma_flat(VSLOT[1], A.sV) + adv_v(), 10, ints('dh')[0]).add(rd2(), 30, 63)
    if vt:
        a, b = ints('vq'); n0 = 16 + a + b; assert n0 <= 24
        qf = int(opt['qf'])
        qflag = L(f"v_min_u32 v17, 1, v{A.vL16}\nv_lshlrev_b32 v17, 29, v17\nv_mov_b32 v15, 1\ns_add_u32 s84, s47, 16") + [At(qf % 64), WAITV("QST"), side.flag_store(84, 17, 15), By(62)]
        s.add((qflag if qf < 64 else []) + ks.many(range(16, 16 + a), "KV4"), ints('sw')[0], 62, asap=True)
        def park(ns):
            o = [I(f"v_accvgpr_write_b32 a{128 + 4 * (n - 16) + e}, v{int(ks.reg[n][2:ks.reg[n].index(':')]) + e}") for n in ns for e in range(4)]
            for i in o: dep(i, *[p for n in ns for p in ks.src[n]])
            return o
    else:
        km = kq + kw[0]
        s.add(ks.many(range(kq, km), "KV4"), *ints('sw'))
    s.run()
    grp, early = groups_first(0, QO)
    sched_sm(g, grp, 12, 62, early=early)
    if '8' in opt['fine']:
        for k in (0, 16, 32): g.ve[k].append(I("s_nop 0 ; us"))
    qk0 = g.flat() + jitter() + stampa() + (L("s_sleep 32") if str(vt) in opt['idle'] else [])
    if vt:
        w1, left = win_qk1(4, 16, "v1", lambda s: s.add(ks.many(range(16 + a, n0), "KV4") + [By(60)], *ints('sw')).add(qflag if 64 <= qf < 128 else [], 0, 60, asap=True).add(park(range(n0, 24)) + [By(58)], 0, 56).add(qpart(1), *ints('sw')))
        vp = ints('vp'); assert n0 + sum(vp) == 32
        later = lambda m: (lambda s: s.add(ks.many(range(n0 + sum(vp[:m]), n0 + sum(vp[:m + 1])), "KV4", lambda n: R("a", 128 + 4 * (n - 16), 4)), *ints('sw')).add(qpart(m + 2), *ints('sw')).add(qflag if qf // 64 == m + 2 else [], 30, 60, asap=True))
        def pv0x(s): s.add(park(range(24, 32)) + [By(28)], 0, 28); later(0)(s)
        ex = [[], [], []]
        if LATER:
            ex[0] = L(f"""s_and_b32 s66, s{sJ}, 7
            s_lshl_b32 s67, s{sH}, 3
            s_add_u32 s67, s66, s67
            s_lshl_b32 s67, s67, 2
            s_add_u32 s67, s67, s{K.sWAVE}
            s_mul_i32 s67, s67, 7168
            s_mul_i32 s86, s{K.sWAVE}, 7168
            s_add_u32 s86, s86, 131072""")
            for o_, n_ in ((0, 4), (4096, 3)):
                ex[0] += [I(f"s_add_u32 m0, s86, {o_}")] + [I(f"buffer_load_dwordx4 v7, s[{S_WO}:{S_WO+3}], s67 offen offset:{1024*q} lds", tag="WO", lds=(131072, 163840, "WO")) for q in range(n_)] + L("s_add_u32 s67, s67, 4096")
            ex[1] = L(f"""v_lshrrev_b32 v12, 6, v7
            v_mul_u32_u24 v12, 896, v12
            v_and_b32 v13, 48, v7
            s_lshr_b32 s67, s{K.sWAVE}, 1
            s_lshl_b32 s67, s67, 6
            s_and_b32 s86, s{K.sWAVE}, 1
            s_lshl_b32 s86, s86, 3
            s_add_u32 s67, s67, s86
            s_add_u32 s67, s67, 131072
            v_add3_u32 v12, v12, v13, s67
            s_lshl_b32 s94, s{sH}, 18
            s_lshl_b32 s66, s66, 10
            s_add_u32 s94, s94, s66
            s_lshl_b32 s66, s{K.sWAVE}, 13
            s_add_u32 s94, s94, s66
            s_add_u32 s94, s94, {WS_WO}""") + [I(f"ds_read_b64_tr_b16 a[{192+4*n+2*q}:{193+4*n+2*q}], v12 offset:{n*128 + q*14336}", lds=(131072, 163840, "r")) for n in range(7) for q in range(2)] + [By(44)]
            ex[2] = [x for n in range(7) for x in (I(f"s_add_u32 s30, s94, {n * 32768}"), I(f"buffer_store_dwordx4 a[{192+4*n}:{195+4*n}], v7, {WSR}, s30 offen sc1"))]
        both = lambda f, e, lo, hi: (lambda s: (f(s), s.add(e, lo, hi)))
        c.block("kv1", "L_kv1:", out, qk0, w1, win_pv0(4, 16, pv0x), jitter(), fs('3'), win_qk(1, "v2", later(1), dma2=ex[0]), win_pv(1, later(2), tags=["WO"]), fs('3'),
                win_qk(0, "v3", both(later(3), ex[1], 0, 40)), win_pv(0, both(later(4), ex[2], *ints('rw2'))), "s_sleep 32" if 'v' in opt['idle'] else "", jitter(), "s_branch L_loop_top")
    else:
        c.block("kv0", "L_kv0:", out, f"s_cmp_eq_u32 s{sJ}, 0\ns_cbranch_scc1 L_j0")
        c.block("k1", qk0, win_qk1(4, 16, "k1", lambda s: s.add(ks.many(range(km, km + kw[1]), "KV4") + [By(60)], *ints('sw')))[0],
                win_pv0(4, 16, lambda s: s.add(ks.many(range(km + kw[1], 32), "KV4") + [By(28)], 4, 28)), f"s_cmp_lg_u32 s{A.sIT}, 0\ns_cbranch_scc1 L_loop_top\ns_branch L_d1s")
        g = Gaps(qk_mfmas(0, lambda kb, qb: R("v", Sreg(0, kb, 0), 4) if qb == 0 else "0", order=(1, 0), asc0=True))
        tile_reads(g, lambda b: rd_batch(KSLOT[0], b), rd_batch(KSLOT[1], 0), [("T", KSLOT[1])])
        ql = qp.out(3, 1, 1, Qreg(1, 7))[0] + [By(5)] + qp.out(3, 1, 0, Qreg(0, 7))[0] + [By(12)]
        pr = presets(False, zero=True)
        LSPIN["j0"] = (2, 17)
        s = Sched(g).add([At(1)] + ql, 0, 20, asap=True).add([x for kb in range(4) for x in pr[kb] + [By(16 * kb + 6)]], 0, 50)
        s.add(L(f"s_mov_b32 s{A.sV}, s{sVD}") + dma_flat(VSLOT[0], A.sV) + L(f"v_min_u32 v17, {7 << 7}, v9\nbuffer_load_dword v{A.vRL}, v17, {WSR}, s46 offen sc1"), 14, 44)
        s.add(init(), 0, 63).add(ks.many(range(kq, 32), "KV4"), 16, 62, vmd=2).run()
        grp, early = groups_first(0, (1, 0))
        sched_sm(g, grp, 12, 62, early=early)
        ucheck = L(f"v_mov_b32 v{A.vX}, v{A.vSUM}\nv_mov_b32 v{A.vX+1}, v{A.vSUM+1}") + [i for p in zip(xlane("v_max_f32", A.vX, A.vX + 2), xlane("v_max_f32", A.vX + 1, A.vX + 3)) for i in p] + L(f"""
            v_min_f32 v{A.vX}, v{A.vX}, v{A.vX+1}
            v_cmp_gt_f32 vcc, s{A.sLOW}, v{A.vX}
            s_cbranch_vccnz L_stj0
            L_rtj0:""")
        zz = [I(f"v_mov_b32 v{A.vP1 + e}, 0") for e in range(4)]
        rest = [i for p in presets(True) for i in p]
        c.block("j0", "L_j0:", g.flat(), stampa(), zz, HELPER_K(), PBASE(), lcheck(2, "j0"), mix(ucheck[:-2], dma_flat(KSLOT[0], A.sK) + adv_k(), 1), ucheck[-2:], zero_O_mfma(rest, A.vP1), "s_branch L_d3h")

def build_att(c):
    X.update(nodma=int(opt['xl'][0]), nobar=int(opt['xl'][1]), rp=int(opt['xl'][2]), dp=int(opt['xl'][3])); att.WI.update(nr=int(opt['nr']), noadd=int(opt['noadd']))
    c.block("loop_top", "L_loop_top:" if WARM else ".p2align 6\nL_loop_top:", fs('3'), att.win_qk(1, "L_st1", "L_rt1", extra=[side.touch(0, 60, 0, nt=False)] if opt['tl'] == '1' else [])[0], att.win_pv(1))
    c.block("loop_mid", fs('3'), att.win_qk(0, "L_st0", "L_rt0", head=L(f"s_bitcmp1_b32 s{sMLD}, s{A.sCHK}\ns_cbranch_scc1 L_fll\nL_fllr:"))[0],
            att.win_pv(0, tail=L(f"s_sub_u32 s{A.sIT}, s{A.sIT}, 1\ns_cmp_lg_u32 s{A.sIT}, 0\ns_cbranch_scc1 L_loop_top"),
                       chk=L(f"""v_cmp_gt_u32 vcc, s{A.sREQ}, v{A.vRL}
                       s_cbranch_vccnz L_fls0
                       L_flr0:
                       s_mov_b32 s{A.sREQ}, 0
                       s_add_u32 s{A.sCHK}, s{A.sCHK}, 1""")))
    if opt['emu'] != '0':
        for b in ("loop_top", "loop_mid"):
            o = []; n = 0; nb = 0; nw = 0; nm = 0
            for i in c.blocks[b]:
                if i.kind == "mfma": nm += 1
                if i.kind == "dma" and f"s{A.sV} offen" in i.text:
                    i = I(i.text.replace("dwordx4 v", f"dwordx4 a[{192 + 4 * n}:{195 + 4 * n}], v").replace(" lds", ""), tag="TOUCH"); n += 1
                if i.op == "s_barrier":
                    nb += 1
                    if nb == 1: continue
                if i.kind == "dsr" and ", v7 " in i.text:
                    f = int(re.search(r"offset:(\d+)", i.text).group(1)) // 1024 % 8
                    if f >= 3:
                        if f == 4 and nw < 4: o.append(I(f"ds_write_b128 v2, v[{40 + 4 * nw}:{43 + 4 * nw}] offset:{61440 + 1024 * nw}")); nw += 1
                        continue
                o.append(i)
            c.blocks[b] = o
    att.WI.update(nr=8, noadd=0); X.update(nodma=0, nobar=0)
    c.block("p1", f"s_cmp_eq_u32 s{sMODE}, 0\ns_cbranch_scc1 L_final_h")
    g = Gaps(qk_mfmas(0, lambda kb, qb: R("v", Sreg(0, kb, 0), 4) if qb == 0 else NMq(1), order=(1, 0)))
    tile_reads(g, lambda b: rd_batch(KSLOT[0], b), rd_batch(VSLOT[1], 0), [("T", VSLOT[1])])
    pr = presets(False)
    Sched(g).add([x for kb in range(4) for x in pr[kb] + [By(16 * kb + 6)]], 0, 50).add(
        L(f"s_mov_b32 s{A.sV}, s{sVD}\nv_min_u32 v17, {7 << 7}, v9\nbuffer_load_dword v{A.vRL}, v17, {WSR}, s46 offen sc1") + dma_flat(VSLOT[0], A.sV) + adv_v() + dma_flat(4, A.sV, 0, 4), 1, 60).add(PBASE(), 30, 62).run()
    put_tail(g, sched_sm(g, softmax_groups(1, 1), 0, 56), check(1, "L_std1"))
    c.block("d1", "L_d1s:", stampa(), g.flat(), "L_rtd1:", fs('4'), f"s_cmp_lt_u32 s{sJ}, {15 - JH}\ns_cbranch_scc1 L_d2h")
    pg = lambda k: [f"loop_top{p}" for p in ints(k)]
    wq = ints('rq' if RELAY else 'wq')
    if RELAY: opt['d3w'] = opt['r3w']; opt['five'] = opt['rfive']
    class WoQ:
        def __init__(self, slots): self.slots, self.n = slots, 0
        def take(self, m):
            o = []
            while m and self.n < 56:
                t, i = divmod(self.n, 8); k = min(m, 8 - i)
                o += wo_dma(self.slots[t], i, i + k); self.n += k; m -= k
            return o
    def d2(nxt):
        g = Gaps(pv_mfmas(1))
        tile_reads(g, lambda b: rd_batch(VSLOT[1], b), rd_batch(KSLOT[1], 0), [("T", KSLOT[1])])
        Sched(g).add(dma_flat(4, A.sV, 4, 8) + nxt, 1, 60).add([i for p in presets(True) for i in p] + [By(61)], 4, 60).run()
        sched_sm(g, softmax_groups(0, 0), 0, 62, add_l(1))
        return g.flat() + fs('4')
    P8 = [int(x) for x in opt['p8']]
    def d3(stub, extra):
        g = Gaps(qk_mfmas(1, lambda kb, qb: R("v", Sreg(1, kb, 1), 4), order=(1,)))
        tile_reads(g, lambda b: rd_batch(KSLOT[1], b), rd_batch(VSLOT[0], 0), [("T", VSLOT[0])], per=8, pat=P8)
        Sched(g).add(L(f"v_add_u32 v{A.vNEG}, 0x20000, v{A.vL16}") + extra, 4, 30, asap=True).run()
        put_tail(g, sched_sm(g, softmax_groups(0, 1), 0, 30), check(0, f"L_st{stub}"))
        return g.flat() + L(f"L_rt{stub}:") + fs('4')
    def d4(stub, s1, s2, lo2, hi2, pub=False, hi1=60, asap=False):
        g = Gaps(pv_mfmas(0))
        tile_reads(g, lambda b: rd_batch(VSLOT[0], b), rd_batch(4, 0, A.vNEG), [("T", 4)] + (["KV4"] if pub else []))
        Sched(g).add(s2, lo2, hi2, vmd=2, asap=asap).add(s1, 1, hi1, vmd=2).add(level(4, A.vX + 5) if pub else [], 48, 52, asap=True).run()
        put_tail(g, sched_sm(g, groups_b(), 0, 60, add_l(0)), check_b(f"L_st{stub}"))
        return g.flat() + L(f"L_rt{stub}:") + fs('4')
    addb = lambda: L(f"v_add_f32 v{A.vLS + 1}, v{A.vSUM + 3}, v{A.vLS + 1}")
    wo = WoQ([3, 1, 2, 0, 4, 3, 1] if opt['five'] == '1' else [3, 1, 2, 0, 3, 1, 2])
    c.block("d2n", jitter(), "s_sleep 32" if 'n' in opt['idle'] else "", wev('n', pg('wn')), d2(wo_setup(A.vX + 4) + wo.take(wq[0])))
    LC = opt['lc'] == '1'; NRM = opt['nrm'] == '1'; assert not (LC and NRM)
    c.block("d3n", d3("d3n", wo.take(int(opt['d3w'])) + ([] if LC else [At(int(opt['fpl'])), FP_LOAD()])))
    pl = L(f"v_or_b32 v9, s{sNC}, v{A.vL16}\nv_cmp_ne_u32 vcc, 1, v{A.vRL + 1}\ns_cbranch_vccnz L_fps\nL_fpr:") + [I(f"buffer_load_dwordx4 v[{A.vX+4}:{A.vX+7}], v9, {WSR}, s90 offen sc1")]
    for kq in range(8):
        for qb in (1, 0):
            n = qb * 8 + kq
            pl.append(I(f"buffer_load_dwordx4 a[{A.aX + 4*n}:{A.aX + 4*n + 3}], v9, {WSR}, s{86 + n // 4} offen offset:{(n & 3) * 1024} sc1"))
    ctest = lambda: L(f"""
    v_cmp_neq_f32 vcc, v{A.vNM}, v{A.vX+4}
    v_cmp_neq_f32 s[64:65], v{A.vNM+4}, v{A.vX+5}
    s_cmp_eq_u32 s{sNC}, 0
    s_cselect_b64 s[66:67], -1, 0
    s_or_b64 vcc, vcc, s[64:65]
    s_and_b64 vcc, vcc, s[66:67]
    s_cbranch_vccnz L_stc
    L_rtc:""")
    pn = lambda k0: NEED(*[R("a", A.aX + (qb * 8 + kq) * 4, 4) for kq in (k0, k0 + 1) for qb in range(2)])
    l2 = lambda: L(f"v_add_f32 v{A.vLS}, v{A.vX+6}, v{A.vLS}\nv_add_f32 v{A.vLS+1}, v{A.vX+7}, v{A.vLS+1}")
    if not LC:
        c.block("d4n", d4("d4n", wo.take(wq[1]), pl, int(opt['fpc']), int(opt['pl'])))
        g = Gaps(pvb_mfmas(True))
        tile_reads(g, lambda b: rd_batch(4, b, A.vNEG), rd_wo(3, 0), [("T", 3)], npat=None if RELAY else RP16)
        for k, k0 in ((1, 0), (14, 2), (30, 4), (45, 6)): g.put_s(k, pn(k0))
        lf = l2() + addb() + lfin2()
        nrm = lambda kq, qb: [I(f"v_mul_f32 v{Oreg(2 * kq + h, qb) + e}, v{A.vRL + qb}, v{Oreg(2 * kq + h, qb) + e}") for h in range(2) for e in range(4)] if NRM else []
        cv = ([After(lf[-1])] if NRM else []) + [x for kq in range(8) for qb in (1, 0) for x in [At(8 * kq + 11 - qb)] + nrm(kq, qb) + cvt_ctx(kq, qb)]
        left = Sched(g).add(oa_setup(A.vX + 4) + [By(46)], 20, 44).add(lf + [By(19)], 0, 14 if NRM else 18).add(wo.take(wq[2]), 2, 40).add(cv, 0, 63, asap=True).run(spill=True)
        c.block("d5n", NEED(R("v", A.vX + 4, 4)), ctest(), g.flat(), [i for l in left for i in l], stampa())
    else:
        n4 = 5 + int(opt['n4'])
        c.block("d4n", d4("d4n", wo.take(wq[1]) + [By(int(opt['fpc']) - 2)], [At(int(opt['fpl'])), FP_LOAD(), At(int(opt['fpc']))] + pl[:n4] + [By(60)], 0, 60, hi1=int(opt['fpc']) - 4, asap=True))
        g = Gaps(pvb_mfmas() + comb_mfmas())
        tile_reads(g, lambda b: rd_batch(4, b, A.vNEG), None, [("T", 3)], per=8, pat=P8)
        put_batch(g, rd_wo(3, 0), 40); g.put_s(62, need_batch(0))
        ct = ctest()
        for i in [pn(0)] + ct[-2:]: g.put_s(31, i)
        for k, k0 in ((39, 2), (47, 4), (55, 6)): g.put_s(k, pn(k0))
        cv = [x for kq in range(8) for qb in (1, 0) for x in [At(32 + 4 * kq + 7 - 2 * qb)] + cvt_ctx(kq, qb)]
        lf = l2() + lfin2()
        left = Sched(g).add(pl[n4:] + [By(30)] + wo.take(wq[2]), 0, 40, asap=True, vmd=1).add(addb() + oa_setup(A.vX) + [By(22), At(24)] + ct[:-2] + [By(30), At(32)] + lf[:2] + [By(34)], 4, 30).add(cv + lf[2:], 0, 63, asap=True).run(spill=True)
        c.block("d5n", g.flat(), [i for l in left for i in l], stampa())
    def op_out(j, split=False, mul=True, pps=(0, 1)):
        b = j & 1
        ins = L(f"s_add_u32 s{A.sT0}, s{A.sOP}, {2 * j * 1024}\ns_add_u32 s{A.sT1}, s{A.sOP}, {14336 + 2 * j * 1024}") if 0 in pps else []
        for pp in pps:
            for qb in range(2):
                if split: ins.append(At(32 * pp + 27 + 8 * qb))
                a, d = Sreg(b, 2 * pp, qb), Sreg(b, 2 * pp + 1, qb)
                if mul: ins += [I(f"v_mul_f32 v{r + e}, v{A.vRL + qb}, v{r + e}") for r in (a, d) for e in range(4)]
                ins += kvq.pack(("v", a), ("v", d), 0)[0]
                ins.append(I(f"buffer_store_dwordx4 v[{a}:{a+3}], v{A.vL16}, {WSR}, s{A.sT0 + qb} offen offset:{pp * 1024} {opt['ofl'].replace('+', ' ')}", tag=("OP", j)))
        return ins
    fop = lambda: L(f"""
    s_sub_u32 s64, 15, s{sJ}
    s_min_u32 s64, s64, s{sJ}
    s_mul_i32 s{sFL}, s64, {2 * FSTR}
    s_lshl_b32 s64, s{sH}, 2
    s_add_u32 s{sFL}, s{sFL}, s64
    s_lshl_b32 s64, s{A.sWAVE}, 8
    s_add_u32 s{sFL}, s{sFL}, s64
    s_add_u32 s{sFL}, s{sFL}, {WS_FOP}
    s_mov_b32 s64, 1024
    s_mov_b32 s66, {FSTR - 256}
    s_cmp_lt_u32 s{sJ}, 8
    s_cselect_b32 s64, {FSTR}, s64
    s_cselect_b32 s65, 0, 64
    s_cselect_b32 s66, {OOB}, s66
    s_add_u32 s3, s{sFL}, s64
    s_add_u32 s{sFL}, s{sFL}, s65
    v_lshrrev_b32 v{A.vX + 7}, 5, v{A.vL16}
    v_min_u32 v{A.vX + 5}, 1, v{A.vX + 7}
    v_lshlrev_b32 v{A.vX + 4}, 3, v{A.vL16}
    v_lshl_or_b32 v{A.vX + 6}, v{A.vX + 5}, 29, v{A.vX + 4}
    v_cmp_eq_u32 vcc, 1, v{A.vX + 7}
    v_add_u32 v{A.vX + 4}, s66, v{A.vX + 4}
    v_mov_b32 v{A.vX + 5}, 1
    v_cndmask_b32 v{A.vX + 7}, v{A.vX + 6}, v{A.vX + 4}, vcc
    """)
    def outproj(wo, quota, ctx, first=(), extra0=(), prep=False):
        ow = []; sl = wo.slots
        for j in range(7):
            g = Gaps(qk_mfmas(j & 1, C0, breg=ctx))
            tile_reads(g, lambda b: rd_wo(sl[j], b), rd_wo(sl[j + 1], 0) if j < 6 else None, [("T", sl[j + 1])] if j < 6 else None)
            s = Sched(g)
            if j < len(quota): s.add(wo.take(quota[j]), 1, int(opt['odh']), vmd=2)
            if j == 0: s.add(list(first) + fop() + list(extra0) + [I(f"v_add_u32 v{vOA[2] + x}, 0x20000, v{A.vL16 if RELAY else vOA[0] + x}") for x in range(1 if RELAY else 4)], 0, 40, asap=True)
            jv = (side5.NE - 1) // 2 + 2
            if j == 5 or (j == jv and prep):
                sel = L(f"s_cmp_{'lt' if j == 5 else 'ge'}_u32 s{sJ}, 8\ns_cselect_b32 s84, s{sFL}, {OOB}") if prep and jv != 5 else L(f"s_mov_b32 s84, s{sFL}")
                s.add(sel + [At(int(opt['efg'])), WAITV([("OP", j - 2)]), I(f"buffer_store_dword v{A.vX + 5}, v{A.vX + 7}, {WSR}, s84 offen sc1")], 40, 60, asap=True)
            if j == int(opt['pv1']): s.add(side5.red_v1(A.vL16) if prep else side5.red_k1(A.vL16), 0, 60)
            if prep and j == int(opt['pv2']): s.add(side5.red_v2() + [By(60)], 4, 56)
            if SENT and prep and j == 0:
                mk = [I(f"v_mov_b32 v{Sreg(1, 0, 0) + e}, -1") for e in range(4)] + L(f"s_sub_u32 s73, s{sJ}, 8\ns_and_b32 s73, s73, {OOB}\ns_add_u32 s73, s73, s{A.sOP}\ns_add_u32 s72, s73, 12288\ns_add_u32 s73, s73, {14336 + 12288}")
                s.add(mk + [I(f"buffer_store_dwordx4 v[{Sreg(1, 0, 0)}:{Sreg(1, 0, 0) + 3}], v{A.vL16}, {WSR}, s{72 + (n >> 1)} offen offset:{(n & 1) * 1024} sc1") for n in range(4)] + [By(60)], *ints('mkg'))
            if SENT and prep and j == 6: s.add([At(int(opt['pg']))] + L(side5.FOP_LOAD) + [By(62)], 0, 62, asap=True)
            mul = not (prep and NRM)
            if HALF: s.add((op_out(j - 1, mul=mul, pps=(1,)) if j else []) + op_out(j, True, mul, pps=(0,) if j < 6 else (0, 1)), int(opt['olo']), 63, asap=True, vmd=2)
            elif j > 0: s.add(op_out(j - 1) + (op_out(6, True) if j == 6 else []), int(opt['olo']), 62 if j < 6 else 63, asap=j == 6, vmd=2)
            left = s.run(spill=j == 6)
            ow += g.flat() + fs('5')
        assert wo.n == 56
        if SENT and prep:
            return ow + stampa() + L(f"s_cmp_lt_u32 s{sJ}, 8\ns_cselect_b32 s84, {OOB}, s3") + [WAITV([("OP", 5)]), I(f"buffer_store_dword v{A.vX + 5}, v{A.vX + 6}, {WSR}, s84 offen sc1")] + [i for l in left for i in l] + stampa()
        return ow + stampa() + [i for l in left for i in l] + L(side5.FOP_LOAD) + [WAITV([("OP", 6)]), I(f"buffer_store_dword v{A.vX + 5}, v{A.vX + 6}, {WSR}, s3 offen sc1")] + stampa()
    c.block("opn", jitter(), "s_sleep 32" if 'p' in opt['idle'] else "", outproj(wo, wq[3:], lambda qb, ks: R("v", Oreg(2 * ks, qb), 4), prep=True), f"s_cmp_lt_u32 s{sJ}, 8\ns_cbranch_scc1 L_red")
    rv, vfar = side5.red_main_v(stampa, int(opt['lagv']), SENT)
    if 'e' in opt['skip']: rv = []; vfar = []
    c.block("end1", jitter(), rv, EXIT()); c.block("vfar", vfar)
    LSPIN["h2"] = (2, 17); LSPIN["h4"] = "s84"
    c.block("d2h", "L_d2h:", jitter(), "s_sleep 32" if 'h' in opt['idle'] else "", wev('h', pg('wh1')), d2(HELPER_K() + lcheck(2, "h2") + dma_flat(KSLOT[0], A.sK) + adv_k()))
    c.block("d3h", "L_d3h:", d3("d3h", [FL_LOAD(), I(f"buffer_load_dword v{A.vRL + 1}, off, {WSR}, s47 offset:16 sc1")]))
    ql = L(f"v_cmp_ne_u32 vcc, 1, v{A.vRL + 1}\ns_cbranch_vccnz L_fqs\nL_fqr:") + L(f"s_add_u32 s73, s{A.sQ}, 4096\ns_add_u32 s74, s{A.sQ}, 8192\ns_add_u32 s75, s{A.sQ}, 12288")
    ql += [I(f"buffer_load_dwordx4 a[{4*n}:{4*n+3}], v{A.vL16}, {WSR}, s{72 + n // 4 if n >= 4 else A.sQ} offen offset:{(n & 3) * 1024} sc1") for n in range(16)]
    c.block("d4h", d4("d4h", [], ql + L(f"s_cmp_ge_u32 s{sJ}, 2\ns_cselect_b32 s84, 4, 2") + lcheck("s84", "h4") + [By(58)], 0, 54, True))
    g = Gaps(pvb_mfmas() + qk_mfmas(0, C0))
    tile_reads(g, lambda b: rd_batch(4, b, A.vNEG), rd_batch(KSLOT[0], 0), [("T", KSLOT[0])], per=8, pat=P8)
    tile_reads(g, lambda b: rd_batch(KSLOT[0], b), rd_batch(KSLOT[1], 0), [("T", KSLOT[1])], base=32)
    g.put_s(29, NEED(R("a", 0, 64)))
    def cpk(kq, qb): return link(cvt_ctx(kq, qb) + [I(f"v_accvgpr_write_b32 a{A.aX + (qb * 8 + kq) * 4 + e}, v{Oreg(2 * kq, qb) + e}") for e in range(4)])
    order = [(0, 0), (1, 0)] + [x for kq in range(6) for x in ((kq, 1), (kq + 2, 0))] + [(6, 1), (7, 1)]
    cp = {k: cpk(*k) for k in order}
    s = Sched(g).add(dma_flat(KSLOT[1], A.sK) + adv_k() + L(f"s_mul_i32 s{A.sV}, s{sH}, {HS}\ns_add_u32 s{A.sV}, s{A.sV}, {WS_V + NO * 32768}") + dma_flat(VSLOT[0], A.sV) + adv_v() + dma_flat(VSLOT[1], A.sV, 0, 4), 2, 92)
    s.add(addb() + lfin2() + L(f"v_accvgpr_write_b32 a192, v{A.vRL}\nv_accvgpr_write_b32 a193, v{A.vRL + 1}") + [I(f"v_mov_b32 v{r}, 0") for r in [A.vLS, A.vLS + 1] + list(range(A.vNM, A.vNM + 8))], 0, 40).run()
    grp, early = groups_first(0, base=32)
    sched_sm(g, grp, 44, 94, early=early)
    left = Sched(g).add([x for k in order for x in ([At(4 * k[0] + 7)] if k[1] else []) + cp[k]], 0, 95, asap=True).run(spill=True)[0]
    w5 = g.flat() + fs('4')
    g = Gaps(qk_mfmas(1, C0, alt=True))
    tile_reads(g, lambda b: rd_batch(KSLOT[1], b), rd_batch(VSLOT[0], 0), [("T", VSLOT[0])])
    Sched(g).add(dma_flat(KSLOT[0], A.sK) + adv_k() + dma_flat(VSLOT[1], A.sV, 4, 8) + adv_v(), 1, 56).run()
    k = sched_sm(g, softmax_groups(0, 1), 0, 54)
    tail = check_first("L_sth1")
    ids = {id(i) for i in left}
    Sched(g).add(left + [By(57)], 0, 57).run()
    put_tail(g, max(k, 57), tail)
    w6 = g.flat() + L("L_rth1:")
    c.block("d5h", w5, w6, stampa(), win_pv0(VSLOT[0], None, lambda s: s.add(L(f"""s_mov_b32 s{sMODE}, 0
            s_mov_b32 s{A.sCHK}, 0
            s_and_b32 s{sMLD}, s{sMLD}, 1
            s_or_b32 s{sMLD}, s{sMLD}, 2
            s_sub_u32 s{A.sIT}, {15 - JH - 1}, s{sJ}"""), 10, 30)), f"s_cmp_lg_u32 s{A.sIT}, 0\ns_cbranch_scc1 L_loop_top")
    wo = WoQ([3, 2, 0, 4, 1, 3, 2] if opt['five'] == '1' else [3, 2, 0, 1, 3, 2, 0]); wh = ints('wh')
    if RELAY: wo.n = 16; wh = [ints('rh')[0], 0] + ints('rh')[1:]
    pst = lambda kq, qb: [I(f"buffer_store_dwordx4 v[{Oreg(2*kq, qb)}:{Oreg(2*kq, qb)+3}], v{A.vL16}, {WSR}, s{86 + (qb*8+kq) // 4} offen offset:{(kq & 3) * 1024} sc1", tag="PST")]
    g = Gaps(pv_mfmas(1, alt=False))
    tile_reads(g, lambda b: rd_batch(VSLOT[1], b), rd_wo(3, 0), [("T", 3)], npat=None if RELAY else RP16)
    w0 = wo_setup(A.vX + 4, 2 if RELAY else 0) + wo.take(wh[0]); nv = 0 if RELAY else 7
    left = Sched(g).add(oa_setup(A.vX + 4) + [By(46)], 0, 10).add([x for kq in range(8) for qb in range(2) for x in [At(8 * kq + 9 + 2 * qb)] + cvt_ctx(kq, qb) + pst(kq, qb)], 0, 63, asap=True, vmd=1).add(
        wo.take(wh[1]), 0, 12, vmd=1).run(spill=True)
    c.block("final_h", "L_final_h:", jitter(), stampa(), WAITV([("T", VSLOT[1])], lgkm0=True), "s_barrier", rd_batch(VSLOT[1], 0), wev('f', pg('wh2')), w0[:nv], mix(softmax_half(1, 1), w0[nv:], 1), check(1, "L_stfh"), "L_rtfh:", add_l(1), f"""
    v_mov_b32 v{A.vX}, v{A.vNM}
    v_mov_b32 v{A.vX+1}, v{A.vNM+4}
    v_mov_b32 v{A.vX+2}, v{A.vLS}
    v_mov_b32 v{A.vX+3}, v{A.vLS+1}
    """, I(f"buffer_store_dwordx4 v[{A.vX}:{A.vX+3}], v{A.vL16}, {WSR}, s90 offen sc1", tag="PST"), need_batch(0), fs('4'), g.flat(), left[1], left[2], stampa())
    assert not left[0]
    pflag = L(f"v_min_u32 v{A.vX}, 1, v{A.vL16}\nv_lshlrev_b32 v{A.vX}, 29, v{A.vX}") + [At(int(opt['pfg'])), WAITV("PST"), side.flag_store(47, A.vX, A.vX + 5)]
    c.block("oph", jitter(), "s_sleep 32" if 'o' in opt['idle'] else "", outproj(wo, wh[2:], lambda qb, ks: R("a", A.aX + (qb * 8 + ks) * 4, 4), L(f"v_accvgpr_read_b32 v{A.vRL}, a192\nv_accvgpr_read_b32 v{A.vRL + 1}, a193"), pflag))
    rm = side5.red_main(A.vL16, stampa, int(opt['lag']), int(opt['lag2']))
    if 'e' in opt['skip']: rm = []
    c.block("red0", "L_red:", [WAITV([("OP", 6)]), I(f"buffer_store_dword v{A.vX + 5}, v{A.vX + 6}, {WSR}, s3 offen sc1")] if SENT else [], side5.red_k1(A.vL16), side5.FOP_LOAD, "s_branch L_red1")
    c.block("red", "L_red1:", jitter(), f's_or_b32 s77, s77, {OOB}' if 'r' in opt['wi'] else '', f's_or_b32 s78, s78, {OOB}' if 's' in opt['wi'] else '', rm, EXIT())
    c.block("rpoll", side5.red_poll())
    stubs = ""
    for n, f in (("0", "slow0"), ("1", "slow1"), ("v1", "slowf"), ("k1", "slowf"), ("h1", "slowf"), ("j0", "slowj"), ("v2", "slow1"), ("v3", "slow0"), ("d1", "slow1"),
                 ("d3n", "slow0"), ("d3h", "slow0"), ("d4n", "slowb"), ("d4h", "slowb"), ("fh", "slow1n"), ("c", "comb")):
        stubs += f"L_x{n}:\ns_call_b64 s[{A.sRET}:{A.sRET+1}], L_{f}\ns_branch L_rt{n}\n".replace("L_x", "L_st")
    return stubs

def mid_blocks(c, stubs):
    c.block("stubs", stubs)
    c.block("slow", att.slow_sub(0), att.slow_sub(1), att.slow_sub(1, False), slow_first("L_slowf", True), slow_first("L_slowj", False), slow_b(), comb_slow(opt['lc'] == '1'))
    sp = []
    for n, v in LSPIN.items():
        ld = FL_LOAD().text
        if isinstance(v, tuple): v, ld = v[0], ld.replace("v9", "v%d" % v[1])
        sp += side.spin_stub(f"L_ls{n}", f"L_lr{n}", ld, A.vRL, 91, f"v_cmp_gt_u32 vcc, {v}, v{{vt}}")
    for n, (ld, half) in WSPIN.items():
        sp += side.spin_stub(f"L_ws{n}", f"L_wr{n}", ld, A.vRL, 91, f"v_cmp_ne_u32 vcc, 1, v{{vt}}\ns_nop 0\ns_mov_b32 vcc_{'hi' if half == 'lo' else 'lo'}, 0")
    c.block("spins", side.z_stub(0), side.z_stub(1), hw.key_stub(), side.spin_stub("L_has", "L_har", hw2.FA_LOAD, 16, 91) if H2 and 'h' not in opt['skip'] else [], sp, f"""
    L_fll:
    s_sub_u32 s65, s{A.sCHK}, s{sMODE}
    s_mov_b32 s64, -1
    s_cmp_eq_u32 s65, 1
    s_cbranch_scc1 L_fl2
    s_cmp_lg_u32 s{A.sWAVE}, 0
    s_cbranch_scc1 L_fl3
    s_lshr_b32 s64, s{sJ}, 3
    s_cmp_eq_u32 s{A.sCHK}, s64
    s_cbranch_scc0 L_fl1
    v_mov_b32 v{A.vX + 5}, 4
    {side.flag_store(sFL, A.vF0, A.vX + 5).text}
    L_fl1:
    s_cmp_lg_u32 s65, 0
    s_cbranch_scc1 L_fllr
    s_movk_i32 s64, 0x380
    L_fl2:
    v_min_u32 v{A.vX + 7}, s64, v9
    s_mov_b32 s{A.sREQ}, 4
    buffer_load_dword v{A.vRL}, v{A.vX + 7}, {WSR}, s46 offen sc1
    s_bitcmp1_b32 s{sMLD}, 15
    s_cbranch_scc0 L_fllr
    L_fl3:
    s_cmp_eq_u32 s{A.sCHK}, {TY}
    s_cbranch_scc1 L_y2
    s_cmp_eq_u32 s{A.sCHK}, {TY + 1}
    s_cbranch_scc1 L_y3
    s_cmp_eq_u32 s{A.sCHK}, {TY + 2}
    s_cbranch_scc1 L_y4
    s_branch L_y5
    s_waitcnt vmcnt(0)
    L_fps:
    s_cmp_lg_u32 s{sNC}, 0
    s_cbranch_scc1 L_fpr
    """, side.spin_stub("L_fps2", "L_fpr", FP_LOAD().text, A.vRL + 1, 91),
            side.spin_stub("L_fqs", "L_fqr", f"buffer_load_dword v{A.vRL + 1}, off, {WSR}, s47 offset:16 sc1", A.vRL + 1, 91),
            side.spin_stub("L_fls0", "L_flr0", FL_LOAD().text.replace("v9", f"v{A.vX + 7}"), A.vRL, 91, f"v_cmp_gt_u32 vcc, s{A.sREQ}, v{{vt}}"))
    c.block("ystubs", side5.y_stubs("L_fllr", int(opt['ht'])))

def paths(c):
    lp = ["loop_top", "loop_mid"]
    n = ["d1", "d2n", "d3n", "d4n", "d5n", "opn"]
    c.path("entry", "kv1", *lp, *lp, *lp, "p1", *n, "end1")
    c.path("entry", "kv0", "k1", *lp, *lp, *lp, "p1", *n, "red0", "red")
    for own in (["j0"], ["k1", "d1", "d2h"], ["k1", *lp, "p1", "d1", "d2h"], ["k1", *lp, *lp, *lp, "p1", "d1", "d2h"]):
        for nh in (0, 1, 2, 3):
            c.path("entry", "kv0", *own, "d3h", "d4h", "d5h", *(lp * nh), *(["p1"] if nh else []), "final_h", "oph", "red")
    for b in ("rpoll", "vfar", "stubs", "slow", "moe", "spins", "ystubs"): c.path(b)

def check_tiles(c):
    size = dict(U=7, T=8, W=4, C=4, X=4)
    for path in c.paths:
        cnt = {}; waited = set()
        for b in path:
            for i in c.blocks[b]:
                if i.kind == "vst": assert i.tag not in waited, (path, b, i.text, i.tag)
                if i.op == "WAITV": waited |= set(i.tag if isinstance(i.tag, list) else [i.tag])
                if i.kind == "dma" and isinstance(i.tag, tuple): cnt[i.tag] = cnt.get(i.tag, 0) + 1
                if i.op == "WAITV":
                    for t in (i.tag if isinstance(i.tag, list) else [i.tag]):
                        if isinstance(t, tuple) and t[0] in size:
                            n = cnt.pop(t, 0)
                            assert (n or b in ("final_h", "oph")) and n % size[t[0]] == 0, (path, b, t, n)
def ustamps(c):
    names = ["start"]
    for spec in [x for x in opt['us'].split(",") if x]:
        b, lo, hi = (spec.split(":") + ["0", "999"])[:3]
        o = []; pend = None; nb = 0
        def rec(n):
            r = L(f"v_accvgpr_write_b32 a255, v10\nv_accvgpr_read_b32 v10, a254\nv_writelane_b32 v10, s98, {n}\nv_accvgpr_write_b32 a254, v10\nv_accvgpr_read_b32 v10, a255")
            for i in r: i.extra["ghost"] = True
            return r
        for i in c.blocks[b]:
            if pend is not None and (i.op in ("s_endpgm", "s_call_b64") or i.kind == "branch" and i is c.blocks[b][-1]): o += rec(pend); pend = None
            o.append(i)
            if pend is not None and i.op in ("NEED", "WAITV"): o += rec(pend); pend = None
            if i.op == "s_barrier" or i.text.endswith("; us"):
                nb += 1
                if int(lo) <= nb <= int(hi):
                    pend = len(names); names.append(f"{b}.{nb}"); o.append(I("s_memtime s[98:99]"))
        if pend is not None: o += rec(pend)
        c.blocks[b] = o
    assert len(names) <= 64
    return names
def ipref(c):
    n = 0
    for b in [x for x in opt['ip'].split(",") if x]:
        o = []; q = b not in ("kv0", "kv1")
        for i in c.blocks[b]:
            o.append(i)
            if i.text.startswith("s_mov_b64 s[60:61], s[76:77]"): q = True
            if i.op == "s_barrier":
                n += 1
                o += [I("s_getpc_b64 s[100:101]"), I(f"s_load_dword s94, s[100:101], {opt['ipd']} ; ignore")]
        c.blocks[b] = o
SHORT = [("v_mfma_f32_16x16x32_bf16", "M", 4), ("ds_read_b128", "R", 0), ("ds_read_b64_tr_b16", "T", 0), ("v_cvt_pk_bf16_f32", "C", 3), ("v_exp_f32", "E", 2),
         ("v_accvgpr_write_b32", "W", 2), ("v_accvgpr_read_b32", "G", 2), ("v_add_f32", "AF", 3), ("v_mul_f32", "MF", 3), ("s_add_u32", "SA", 3)]
def compress(body):
    hdr = []; out = []
    for full, sh, n in SHORT:
        if n: hdr.append(f".macro {sh} " + ", ".join("abcd"[:n]) + f"\n{full} " + ", ".join("\\" + x for x in "abcd"[:n]) + "\n.endm")
        else: hdr.append(f".macro {sh} a, b, c\n{full} \\a, \\b offset:\\c\n.endm")
    for ln in body.split("\n"):
        ln = ln.strip()
        for full, sh, n in SHORT:
            if ln.startswith(full + " ") and "row_" not in ln and (n or " offset:" in ln):
                ln = sh + " " + ln[len(full) + 1:].replace(" offset:", ",").replace(", ", ","); break
        out.append(ln)
    return "\n".join(hdr), "\n".join(out)

if __name__ == "__main__":
    c = CFG(verbose=int(opt["v"]))
    entry(c); front(c, 0); front(c, 1)
    stubs = build_att(c)
    n0 = len(c.order)
    mid_blocks(c, stubs); c.block("moe", side5.red_moe() if 'e' not in opt['skip'] else [], "L_hr:\ns_endpgm" if 'h' in opt['skip'] else "")
    k = c.order.index("loop_top")
    c.order = c.order[:k] + c.order[n0:-1] + c.order[k:n0] + c.order[-1:]
    c.order.remove("red0"); c.order.append("red0")
    paths(c); opt['nochk'] == '1' or check_tiles(c); names = ustamps(c); ipref(c)
    txt = c.finalize()
    if opt['nochk'] == '0':
        ldscheck.check(c)
        bad = [x for b in c.order for x in check_order(c.mat[b], b) if not b.startswith("loop") and not (" lds" in x[1] and ("s[16:19]" in x[1] or "s[48:51]" in x[1]))]
        assert not bad, bad[:5]
    if int(opt['v']):
        for b in c.order:
            m = c.mat[b]; bad = sum(1 for x, y in zip(m, m[1:]) if x.kind in ("valu", "trans") and y.kind in ("dsr", "dsw", "dma", "vld", "vst"))
            if any(i.kind == "mfma" for i in m): sys.stderr.write(f"; {b}: valu->mem {bad}\n")
    for spec in [x for x in opt['fl_'].split(",") if x]:
        r, f = spec.split(":")
        for b in c.order:
            for i in c.mat[b]:
                if i.kind == "dma" and f"s[{r}:" in i.text: i.text = i.text.replace(" nt", "").replace(" sc1", "").replace(" lds", " " + f.replace("+", " ") + " lds")
    if opt['dbg'] != '-':
        for b in c.order:
            for i in c.mat[b]:
                if "s[12:15]" in i.text and i.op in ("buffer_store_dword", "buffer_load_dword") and "v17" in i.text: i.text = i.text.replace("offen", "offen offset:64")
    if 'h' in opt['skip']:
        for b in c.order:
            for i in c.mat[b]:
                if i.text.startswith("s_cbranch_vccnz L_moe"): i.text = "s_nop 0"
    if WARM: txt = warm.place(c, ("kv0", "kv1", "loop_top"))
    hdr, body = compress(txt)
    kn = NAME + "_kernel"
    print("; Fused MLA-style attention + gated MoD block for gfx950; generated by dev/gen5.py (hand-written generator)")
    if opt['us']: print("; sites " + " ".join(names))
    print("; @launch grid=(256,1,1) block=(256,1,1) lds=163840")
    print('.amdgcn_target "amdgcn-amd-amdhsa--gfx950"\n.text')
    print(hdr)
    print(kernel_header(kn))
    print(body)
    print("L_code_end:")
    print('.section .rodata,"a"\n.p2align 6')
    print(kernel_desc(kn, sgpr=102))
```

```python
import sys, re
from att5 import *
import hw2, warm, ldscheck, att, att5, kvq, kv5, side, side5, hw, asmlib
from kv5 import K, QR, QPhase, kacc
opt = dict(stamp="0", v="1", thr=str(2.0 ** 24), low=str(2.0 ** -24), fine="0", no="18", hpad="0", vpad="0", opad="0", kvonly="0", map="1", wA0="-1", wA1="-1", qpat="00223355668899", qnd="4,1", l1v="100", s15v="12,90", rcg="40", wpos="0", wso="0", probe="-", thin="0", h2="0", hk="20", hg="50,100,70,50", xm="0", qks="1", pvs="1", xsn="1", uw=",0000,ef0001,g111111,2222", jit="0", eo="1", rfl="sc1,sc1", ofl="sc1", emu="0", nc="0", cf="nt", nw="0", t0="79", wqg="41,9", idt="-", idq="-", qw="2,0,0,0,0,0,0", q0s="0", selq="1", rw2="10,60", skip="", hw="6,8,10,12,14,16,17", rgo="1", p2="0", p8="00112233", xl="0040", nr="8", noadd="0", tl="1", nochk="0", rd="0", rdg="60", ct0="13", wn="2,3,4,5", wh1="6,7", wh2="8,9,10,11", pg="50", sent="0", half="1", mkg="40,60", dbg="-", r3w="0", rfive="0", relay="0", tR="4", rq="8,0,12,12,8,8,8", rh="8,8,8,8,8", rw="2", w8="0", fl_="16:", hmap="1", tH="-", tHg="90", hnt="", ne="6", efg="52", idle="", lc="0", n4="8", share="0", pv2="6", nrm="0", pv1="4", tidy="1", pk="12", olo="2", d3w="0", five="1", tlb="-", kvd="4", warm="a", na="12", te1="6:5:13", ip="", ipd="2048", dr="3,44,51,108,0", twg="80", us="", wi="", rt="1", ht="0", xr="100", nost="0",
           tg="113", tcq="99", tc="", tQ="7", lag="3", lag2="11", lagv="8", ke="27", q0="2223333333444444455@99:555556666666777@211:7777", qsep="4", tX="", tW="3,4,5,6", kw="3,3,2", sw="10,60", dh="30,30,30", l2="4", qf="176", qd="0,0,0,0,14", qk="4444", qv="3320", qp="14,122,234,346", ssep="24", n15="8,8",
           fl="200", fc="240", fv="395", s15="12,90", sq="2,400", sqv="200", vq="0,0", vp="3,3,3,4,3", l1="20", pfg="30", wq="8,0,12,16,12,8", wh="8,4,16,16,12", tw="9", odh="45", fpl="20", fpc="0", pl="56")
for a in sys.argv[1:]:
    k, v = a.split("="); assert k in opt, k; opt[k] = v
STAMP = opt["stamp"] in "12"; LIGHT = opt["stamp"] == "2"
ints = lambda k: [int(x) for x in opt[k].split(",")]
kv5.DR[:] = ints("dr")
asmlib.TIDY = opt["tidy"] == "1"
pairs = lambda k: [tuple(int(y) for y in x.split(':')) for x in opt[k].split(',') if x]
asmlib.SHARE = {"0": (), "1": ("dma", "vld"), "2": ("dma", "vld", "vst")}[opt["share"]]
side5.NE = int(opt["ne"])
side5.FINE = "9" in opt["fine"]
side5.PK = int(opt["pk"])
hw.HNT = opt["hnt"]
RELAY = att5.RELAY = opt["relay"] != "0"; side5.NAT = not RELAY; LATER = opt["relay"] == "2"
if RELAY and not LATER: opt["tW"] = ""
side5.POLL2 = int(opt["p2"])
kv5.T0 = int(opt["t0"])
kv5.NC, kv5.CF, kv5.NW = int(opt["nc"]), opt["cf"].replace("+", " "), int(opt["nw"])
side5.RFL = opt["rfl"].replace("+", " ").split(",")
att.PVS = opt["pvs"] == "1"; kv5.XSN = opt["xsn"] == "1"
att.QKS = att5.QKS = opt["qks"] == "1"; att5.PVS = att.PVS = opt["pvs"] == "1"
QPhase.XM = XM = opt["xm"] == "1"; QO = (1, 0) if XM else (0, 1)
side.NTT = ""; side.RNT = ""
X.update(wide=1, ls=1, r3=0, r3x='-')
sMODE, sH, sJ, sVD, sSTK, sFL = 40, 41, 42, 43, 44, 45
sKV, sMLD, sNC = 45, 39, 35
NO = int(opt['no']); assert NO % 2 == 0
JH = NO // 2
aST = 250
MAP = int(opt['map'])
WSO = int(opt['wso']) << 20
THIN = opt['thin'] == '1'
H2 = int(opt['h2'])
UW = opt['uw'].split(',')
SENT = opt['sent'] == '1'; HALF = opt['half'] == '1'
RW = opt['rw'] != '0'
JY = 7 if NO == 16 else 6; TY = JY - 5
WARM = opt['warm'] != '0'
def wev(key, names):
    return warm.event(A.sWAVE, warm.spread(names)) if WARM and key in opt['warm'] else []
wsite = lambda n: warm.site(n) if WARM else []
OOB = side.OOB
def stamp(t=16, force=False):
    if not STAMP or (LIGHT and not force): return []
    return L(f"""s_memrealtime s[36:37]
    s_memtime s[98:99]
    v_accvgpr_read_b32 v{t}, a{aST}
    v_accvgpr_read_b32 v{t+1}, a{aST+1}
    s_mov_b32 s100, m0
    s_mov_b32 m0, s{sSTK}
    s_waitcnt lgkmcnt(0)
    v_writelane_b32 v{t}, s98, m0
    v_writelane_b32 v{t+1}, s36, m0
    s_add_u32 s{sSTK}, s{sSTK}, 1
    s_mov_b32 m0, s100
    v_accvgpr_write_b32 a{aST}, v{t}
    v_accvgpr_write_b32 a{aST+1}, v{t+1}""")
def stampa():
    if not STAMP or LIGHT: return []
    o = L("s_cselect_b32 s101, 1, 0\nv_accvgpr_write_b32 a252, v10\nv_accvgpr_write_b32 a253, v11") + stamp(10) + L("v_accvgpr_read_b32 v10, a252\nv_accvgpr_read_b32 v11, a253\ns_cmp_lg_u32 s101, 0")
    for i in o: i.extra["ghost"] = True
    return o
fs = lambda c: stampa() if c in opt['fine'] else []
def stamp0(t=26):
    if not STAMP: return []
    return L(f"""s_waitcnt lgkmcnt(0)
    v_mov_b32 v{t}, 0
    v_mov_b32 v{t+1}, 0
    v_writelane_b32 v{t}, s38, 0
    v_writelane_b32 v{t+1}, s46, 0
    s_mov_b32 s{sSTK}, 1
    v_accvgpr_write_b32 a254, v{t}
    v_accvgpr_write_b32 a{aST}, v{t}
    v_accvgpr_write_b32 a{aST+1}, v{t+1}""")
def fin():
    if not STAMP: return []
    return L("s_mov_b64 exec, -1\ns_waitcnt vmcnt(0) lgkmcnt(0)") + stamp(30, True) + L(f"""
        s_lshl_b32 s29, s2, 2
        s_add_u32 s29, s29, s{A.sWAVE}
        s_lshl_b32 s29, s29, 9
        s_add_u32 s29, s29, {WS_STAMP - WSO if WSO <= WS_STAMP else WS_STAMP}
        v_lshrrev_b32 v10, 1, v{A.vL16}
        buffer_store_dwordx2 a[{aST}:{aST+1}], v10, {WSR}, s29 offen
        s_add_u32 s29, s29, {1 << 20}
        buffer_store_dword a254, v10, {WSR}, s29 offen
        """)
def dbg_out():
    if opt['dbg'] == '-': return []
    return L(f"""
    s_load_dwordx2 s[4:5], s[0:1], {A_DBG}
    v_accvgpr_read_b32 v11, a{aST+1}
    v_lshrrev_b32 v12, 4, v{A.vL16}
    v_not_b32 v13, v11
    v_cmp_eq_u32 vcc, 0, v12
    v_mov_b32 v14, s36
    s_nop 0
    v_cndmask_b32 v11, v11, v13, vcc
    v_cmp_eq_u32 vcc, 15, v12
    s_nop 1
    v_cndmask_b32 v11, v11, v14, vcc
    v_lshlrev_b32 v12, 2, v12
    s_waitcnt lgkmcnt(0)
    {srd(12, 4, 64)}
    s_cmp_eq_u32 s{sJ}, {opt['dbg']}
    s_cselect_b32 exec_lo, 0xffff, 0
    s_or_b32 exec_lo, exec_lo, 0x8001
    s_mov_b32 exec_hi, 0
    buffer_atomic_umax v11, v12, s[12:15], 0 offen
    """)
EXIT = lambda: fin() + dbg_out() + L("s_endpgm")

_jn = [0]
def jitter():
    if opt['jit'] == '0': return []
    _jn[0] += 1; n = _jn[0]
    a = (int(opt['jit']) * 40503 + n * 2654435761) & 0xffff | 1
    o = L(f"""s_mul_i32 s98, s2, {a}
    s_mul_i32 s99, s{A.sWAVE}, {(a * 7 + 3) & 0xff if n & 1 else 0}
    s_add_u32 s98, s98, s99
    s_bfe_u32 s98, s98, 0x20005
    s_cmp_lg_u32 s98, 0
    s_cbranch_scc1 L_jt{n}
    s_sleep 120
    L_jt{n}:""")
    return o
def probe():
    if opt['probe'] == '-': return ""
    arg, size, thr = ints('probe')
    o = f"""
    s_load_dwordx2 s[4:5], s[0:1], {A_DBG}
    s_load_dwordx2 s[6:7], s[0:1], {arg * 8}
    v_lshrrev_b32 v1, 6, v0
    s_waitcnt lgkmcnt(0)
    {srd(12, 4, 256)}
    {srd(16, 6, size)}
    v_readfirstlane_b32 s20, v1
    s_or_b32 s21, s20, s2
    s_cmp_eq_u32 s21, 0
    s_cbranch_scc0 L_pw
    s_mov_b32 s22, 0
    s_mov_b32 s23, 0
    L_pl:
    buffer_load_dword v2, off, s[16:19], s23
    s_waitcnt vmcnt(0)
    s_memtime s[24:25]
    s_waitcnt lgkmcnt(0)
    buffer_load_dword v2, off, s[16:19], s23 offset:2048
    s_waitcnt vmcnt(0)
    s_memtime s[26:27]
    s_waitcnt lgkmcnt(0)
    s_sub_u32 s26, s26, s24
    s_cmp_gt_u32 s26, {thr}
    s_cbranch_scc0 L_pf
    s_sleep 75
    L_pf:
    s_add_u32 s23, s23, {size // 16 // 128 * 128}
    s_add_u32 s22, s22, 1
    s_cmp_lt_u32 s22, 16
    s_cbranch_scc1 L_pl
    v_mov_b32 v2, 1
    s_mov_b32 s23, 240
    buffer_store_dword v2, off, s[12:15], s23 sc1
    L_pw:
    s_mov_b32 s23, 240
    s_mov_b32 s22, 20000
    L_pp:
    s_sleep 16
    buffer_load_dword v2, off, s[12:15], s23 sc1
    s_sub_u32 s22, s22, 1
    s_cbranch_scc1 L_px
    s_waitcnt vmcnt(0)
    v_cmp_ne_u32 vcc, 1, v2
    s_cbranch_vccnz L_pp
    L_px:
    s_waitcnt vmcnt(0)
    """
    return o
def entry(c):
    c.block("entry", f"""
    s_cmp_lt_u32 s2, 256
    s_cbranch_scc1 L_go
    s_endpgm
    L_go:
    {"s_memrealtime s[46:47]" + chr(10) + "s_memtime s[38:39]" if STAMP else ""}
    {probe()}
    s_load_dwordx8 s[80:87], s[0:1], {A_X}
    s_load_dwordx4 s[88:91], s[0:1], {A_WUV}
    s_getpc_b64 s[76:77]
    L_pc0:
    s_lshr_b32 s{sJ}, s2, 3
    s_mov_b32 s79, 0x20000
    s_lshl_b32 s67, s{sJ}, 13
    s_mov_b32 s78, L_code_end-L_pc0
    s_and_b32 s77, s77, 0xffff
    v_lshl_add_u32 v31, v0, 5, s67
    """, side.touch(31, 76, 0, nt=False), f"""
    v_lshrrev_b32 v24, 6, v0
    v_and_b32 v0, 63, v0
    s_and_b32 s{sH}, s2, 7
    v_readfirstlane_b32 s{K.sWAVE}, v24
    s_lshr_b32 s64, s2, 4
    v_and_b32 v24, 15, v0
    v_lshrrev_b32 v25, 4, v0
    s_and_b32 s64, s64, 8
    s_or_b32 s{sH}, s{sH}, s64
    v_lshlrev_b32 v28, 1, v25
    v_xor_b32 v28, v28, v24
    v_and_b32 v29, 8, v28
    v_and_b32 v28, 7, v28
    v_lshlrev_b32 v28, 4, v28
    v_lshl_add_u32 v28, v29, 5, v28
    v_lshl_add_u32 v28, v25, 13, v28
    s_lshl_b32 s64, s{K.sWAVE}, 17
    v_add_u32 v{K.vWD}, s64, v28
    v_xor_b32 v28, 0x100, v{K.vWD}
    v_add_u32 v{K.vWD+1}, {4*8192 - 1024}, v{K.vWD}
    v_add_u32 v{K.vWD+2}, {8*8192 - 2048}, v28
    v_add_u32 v{K.vWD+3}, {12*8192 - 3072}, v28
    s_mov_b32 s{K.sWOFF}, 0
    s_lshl_b32 s{K.sM0W}, s{K.sWAVE}, 12
    s_lshl_b32 s74, s{sH}, 9
    s_sub_u32 s{K.S_W+2}, {1024*8192}, s74
    s_mov_b32 s{K.S_W+3}, s79
    s_bitcmp0_b32 s2, {[6, 3, 4][MAP]}
    s_cselect_b64 s[72:73], s[86:87], s[88:89]
    s_add_u32 s{K.S_W}, s72, s74
    s_addc_u32 s73, s73, 0
    s_and_b32 s{K.S_W+1}, s73, 0xffff
    """, kv5.unit_w(0), f"""
    {f'''s_bfe_u32 s{sKV}, s2, 0x10004
    s_and_b32 s65, s{sJ}, 1
    s_bfe_u32 s{sJ}, s2, 0x20005
    s_lshl_b32 s{sJ}, s{sJ}, 1
    s_or_b32 s{sJ}, s{sJ}, s65
    s_lshl_b32 s64, s{sKV}, 3
    s_or_b32 s{sJ}, s{sJ}, s64''' if MAP == 2 else f'''s_and_b32 s{sKV}, s{sJ}, 1
    s_bfe_u32 s{sJ}, s2, 0x30004
    s_lshl_b32 s64, s{sKV}, 3
    s_or_b32 s{sJ}, s{sJ}, s64''' if MAP else f'''s_and_b32 s{sJ}, s{sJ}, 15
    s_lshr_b32 s{sKV}, s{sJ}, 3'''}
    s_and_b32 s65, s{K.sWAVE}, 1
    s_lshr_b32 s66, s{K.sWAVE}, 1
    v_and_b32 v29, 7, v0
    v_xor_b32 v28, v25, v29
    v_lshlrev_b32 v28, 4, v28
    v_lshrrev_b32 v29, 3, v0
    v_lshl_add_u32 v30, v29, 11, v28
    s_lshl_b32 s64, s66, 19
    s_lshl_b32 s67, s65, 21
    s_add_u32 s64, s64, s67
    v_add_u32 v{K.vCD}, s64, v30
    v_xor_b32 v30, 64, v{K.vCD}
    v_add_u32 v{K.vCD+2}, {16*2048 - 2048}, v{K.vCD}
    v_add_u32 v{K.vCD+1}, {8*2048 - 1024}, v30
    v_add_u32 v{K.vCD+3}, {24*2048 - 3072}, v30
    s_mov_b32 s{K.sCOFF}, 0
    s_add_u32 s{K.sM0C}, s{K.sM0W}, 65536
    s_and_b32 s64, s{sJ}, 7
    s_lshl_b32 s64, s64, 16
    s_sub_u32 s{K.S_C+2}, {2048*2048}, s64
    s_mov_b32 s{K.S_C+3}, s79
    s_add_u32 s{K.S_C}, s82, s64
    s_addc_u32 s73, s83, 0
    s_and_b32 s{K.S_C+1}, s73, 0xffff
    """, *((kv5.unit_w(1), kv5.unit_c(0)) if opt['eo'] == '1' else (kv5.unit_c(0), kv5.unit_w(1))), f"""
    s_load_dwordx2 s[92:93], s[0:1], {A_WR}
    s_load_dwordx2 s[94:95], s[0:1], {A_GW}
    s_load_dwordx4 s[4:7], s[0:1], {A_DBG}
    """, stamp0(28), stamp(28), f"v_lshlrev_b32 v{K.vST}, 4, v0", kvq.addr_rd(), side.c_touch_setup() + L(srd(32, 82, 2048*2048)) if opt['tcq'] != '99' else [], f"""
    {srd(K.S_X, 80, 2048*896)}
    {srd(60, 92, 896)}
    {srd(68, 94, 896)}
    s_lshl_b32 s95, s{K.sWAVE}, 11
    s_lshr_b32 s64, s2, 3
    s_lshl_b32 s64, s64, 13
    s_add_u32 s95, s95, s64
    {f's_add_u32 s6, s6, {WSO}' + chr(10) + 's_addc_u32 s7, s7, 0' if WSO else ''}
    {srd(K.S_WS, 6, (1 << 28) - WSO)}
    {srd(K.S_DBG, 4, 256)}
    s_add_u32 s72, s84, s74
    s_addc_u32 s73, s85, 0
    s_sub_u32 s75, {448*8192}, s74
    {srd(K.S_WQ, 72, "s75")}
    s_mul_i32 s{K.sXOFF}, s{sJ}, {128*896}
    s_mov_b32 s{K.sSC}, {hex(f2u(LOG2E_16))}
    s_mul_i32 s72, s{sKV}, {WS_V}
    s_mul_i32 s73, s{sH}, {HS}
    s_add_u32 s72, s72, s73
    s_bfe_u32 s64, s{sJ}, 0x20001
    s_lshl_b32 s64, s64, 15
    s_add_u32 s72, s72, s64
    s_lshl_b32 s64, s66, 17
    s_add_u32 s72, s72, s64
    s_and_b32 s67, s{sJ}, 1
    s_cmp_eq_u32 s{sKV}, 0
    s_cselect_b32 s64, 12, 14
    s_cselect_b32 s75, 14, 10
    s_lshl_b32 s67, s67, s75
    s_add_u32 s72, s72, s67
    s_lshl_b32 s64, s65, s64
    s_add_u32 s{K.sOOFF}, s72, s64
    """, side.h_touch_srd(), f"s_load_dwordx2 s[96:97], s[0:1], {A_OUT}", f"s_cmp_eq_u32 s{sKV}, 0\ns_cbranch_scc0 L_kv1" + ("\ns_branch L_kv0" if WARM else ""))

FL_LOAD = lambda: I(f"buffer_load_dword v{A.vRL}, v9, {WSR}, s46 offen sc1")
FP_LOAD = lambda: I(f"buffer_load_dword v{A.vRL + 1}, off, {WSR}, s47 sc1")
def level(val, t): return L(f"v_mov_b32 v{t}, {val}") + [side.flag_store(sFL, A.vF0, t)]
def lcheck(val, n): return L(f"v_cmp_gt_u32 vcc, {val}, v{A.vRL}\ns_cbranch_vccnz L_ls{n}\nL_lr{n}:")
LSPIN = {}; WSPIN = {}
PBASE = lambda: L(f"""
    s_lshl_b32 s86, s{A.sWAVE}, 14
    s_add_u32 s86, s86, s{A.sPO}
    s_add_u32 s87, s86, 4096
    s_add_u32 s88, s86, 8192
    s_add_u32 s89, s86, 12288
    s_lshl_b32 s90, s{A.sWAVE}, 10
    s_add_u32 s90, s90, s{A.sPO}
    s_add_u32 s90, s90, 65536
    """)

class KVStore:
    def __init__(self, vt):
        self.prs = kv5.kv_pairs(vt); self.reg = {}; self.src = {}
    def st(self, n, tag, reg=None, newpage=True):
        off = self.prs[n][2]
        s = I(f"buffer_store_dwordx4 {reg or self.reg[n]}, v{K.vST}, {WSR}, s3 offen offset:{off & 0xfff} sc1", tag=tag)
        if not reg: dep(s, *self.src[n])
        if opt['nost'] == '1': return []
        if opt['nost'] == '2': s.text = s.text.replace(" sc1", "")
        return ([I(f"s_add_u32 s3, s{K.sOOFF}, {off & ~0xfff}")] if newpage else []) + [s]
    def many(self, ns, tag, regf=None):
        out = []; cur = None
        for n in ns:
            pg = self.prs[n][2] >> 12
            out += self.st(n, tag(n) if callable(tag) else tag, regf(n) if regf else None, pg != cur); cur = pg
        return out

def win_qk1(vslot, v4, stub, extra=lambda s: None, tags=(), post=()):
    g = Gaps(qk_mfmas(1, C0, alt=True))
    tile_reads(g, lambda b: rd_batch(KSLOT[1], b), rd_batch(vslot, 0, v4), [("T", vslot)] + list(tags))
    s = Sched(g).add(dma_flat(KSLOT[0], A.sK) + adv_k(), 1, ints('dh')[1])
    if post: s.add(post, 48, 52, asap=True)
    s.add([I(f"v_mov_b32 v{r}, 0") for r in [A.vLS, A.vLS + 1] + list(range(A.vNM, A.vNM + 8))] + [By(56)], 4, 50)
    extra(s); s.run()
    put_tail(g, sched_sm(g, softmax_groups(0, 1), 0, 54), check_first(f"L_st{stub}"))
    return g.flat() + L(f"L_rt{stub}:"), None
def win_pv0(vslot, v4, extra=lambda s: None, tags=(), post=(), sel=True):
    g = Gaps(pv_mfmas(0, zero=True))
    tile_reads(g, lambda b: rd_batch(vslot, b, v4), rd_batch(KSLOT[0], 0), [("T", KSLOT[0])] + list(tags))
    s = Sched(g).add(dma_flat(KSLOT[1], A.sK) + adv_k(), 1, ints('dh')[2])
    if post: s.add(post, 48, 52, asap=True)
    if sel and opt['selq'] == '0': s.add(selm(A.vX + 1), 30, 62)
    extra(s); s.run()
    sched_sm(g, softmax_groups(1, 0), 0, 60, add_l(0))
    return g.flat()
def win_qk(b, stub, extra=lambda s: None, tags=(), post=(), dma2=()):
    g = Gaps(qk_mfmas(1 - b, lambda kb, qb: NMq(qb), alt=True))
    tile_reads(g, lambda n: rd_batch(KSLOT[1 - b], n), rd_batch(VSLOT[b], 0), [("T", VSLOT[b])] + list(tags))
    s = Sched(g).add(dma_flat(VSLOT[1 - b], A.sV) + adv_v() + list(dma2), 1, 60 if dma2 else ints('dh')[2])
    if post: s.add(post, 48, 52, asap=True)
    extra(s); s.run()
    put_tail(g, sched_sm(g, softmax_groups(b, 1), 0, 56), check(b, f"L_st{stub}"))
    return g.flat() + L(f"L_rt{stub}:")
def win_pv(b, extra=lambda s: None, tags=(), post=()):
    g = Gaps(pv_mfmas(b))
    tile_reads(g, lambda n: rd_batch(VSLOT[b], n), rd_batch(KSLOT[b], 0), [("T", KSLOT[b])] + list(tags))
    s = Sched(g).add(dma_flat(KSLOT[1 - b], A.sK) + adv_k(), 1, ints('dh')[2])
    if post: s.add(post, 48, 52, asap=True)
    extra(s); s.run()
    sched_sm(g, softmax_groups(1 - b, 0), 0, 60, add_l(b))
    return g.flat()
HELPER_K = lambda: L(f"""
    s_mul_i32 s{A.sK}, s{sH}, {HS}
    s_add_u32 s{A.sK}, s{A.sK}, {NO * 32768}
    s_lshl_b32 s84, s{sJ}, 1
    s_sub_u32 s{A.sKcnt}, {30 - NO - 1}, s84
    {f's_lshl_b32 s{A.sKn1}, s{sH}, 18' + chr(10) + f's_add_u32 s{A.sKn1}, s{A.sKn1}, {WS_WO}' if RELAY else f's_mov_b32 s{A.sKn1}, {OOB}'}
    """)

def r5_loads():
    o = side.r4_loads()
    for i in o:
        m = re.match(r"buffer_load_dwordx4 v\[(\d+):", i.text)
        if m: i.text = i.text.replace(f"v[{m.group(1)}:{int(m.group(1)) + 3}]", f"a[{int(m.group(1)) + 136}:{int(m.group(1)) + 139}]"); i.parse()
    return o
def r5_compute():
    out = [I(f"v_mov_b32 v{16+r}, 0") for r in range(8)]
    for w in range(4):
        out += L(f"v_accvgpr_read_b32 v28, a{192+w}\nv_accvgpr_read_b32 v29, a{196+w}")
        for r in (0, 2):
            out += L(f"""v_accvgpr_read_b32 v30, a{176+4*r+w}
            v_accvgpr_read_b32 v31, a{180+4*r+w}
            v_dot2c_f32_bf16 v{16+r}, v30, v28
            v_dot2c_f32_bf16 v{20+r}, v30, v29
            v_dot2c_f32_bf16 v{17+r}, v31, v28
            v_dot2c_f32_bf16 v{21+r}, v31, v29""")
    if opt['rw'] == '2':
        out = out[:8]
        for w in range(4):
            out += L(f"v_accvgpr_read_b32 v28, a{192+w}\nv_accvgpr_read_b32 v29, a{196+w}\nv_lshlrev_b32 v27, 16, v28\nv_lshlrev_b32 v25, 16, v29\nv_and_b32 v28, 0xffff0000, v28\nv_and_b32 v29, 0xffff0000, v29")
            for r in range(4):
                out += L(f"""v_accvgpr_read_b32 v30, a{176+4*r+w}
                v_lshlrev_b32 v31, 16, v30
                v_and_b32 v30, 0xffff0000, v30
                v_fmac_f32 v{16+r}, v31, v27
                v_fmac_f32 v{20+r}, v31, v25
                v_fmac_f32 v{16+r}, v30, v28
                v_fmac_f32 v{20+r}, v30, v29""")
    tail = side.r4_compute()[40:]
    for i in tail:
        i.text = re.sub(r"v(\d+)", lambda m: "v%d" % ({80: 28, 81: 29, 82: 30}.get(int(m.group(1)), int(m.group(1)) - 56) if int(m.group(1)) >= 72 else int(m.group(1))), i.text); i.parse()
    return out + [2] + tail
def act5():
    o = hw.s7_act()
    k = [n for n, i in enumerate(o) if not isinstance(i, int) and i.text.startswith("s_or_b32 s64, s86")][0]
    o[k] = I(f"s_or_b32 s64, s31, s{K.sWAVE}")
    k = [n for n, i in enumerate(o) if not isinstance(i, int) and i.text.startswith("s_mov_b32 s64, %d" % WS_SEL)][0]
    o[k:k + 1] = L(f"s_lshl_b32 s64, s{sH}, 7\ns_add_u32 s64, s64, {WS_SEL}")
    return o
def down5(ra=176, rd=192):
    pre = hw.s8_down()[0]
    ms = []
    for m in range(7):
        b = 16 + 2 * (m & 1); nb = 16 + 2 * (1 - (m & 1))
        ms.append([I(f"v_mfma_f32_16x16x16_bf16 a[{rd}:{rd+3}], a[{ra+2*m}:{ra+1+2*m}], v[{b}:{b+1}], {R('a', rd, 4) if m else '0'}")] +
                  ([I(f"v_mov_b32 v{nb + e}, v{b + e} row_shr:2 row_mask:0xf bank_mask:0xf bound_ctrl:0") for e in range(2)] if m < 6 else []))
    adr = L(f"""
    v_and_b32 v29, 1, v0
    v_mul_u32_u24 v30, 1792, v29
    v_lshrrev_b32 v31, 4, v0
    v_lshl_add_u32 v30, v31, 4, v30
    v_bfe_u32 v29, v0, 1, 3
    v_lshl_add_u32 v30, v29, 6, v30
    v_add_u32 v29, 1, v29
    v_lshrrev_b32 v29, 3, v29
    v_lshl_or_b32 v30, v29, 29, v30
    v_or_b32 v30, s{hw.sMK}, v30
    s_mul_i32 s89, s{hw.sFS}, 3584
    s_mul_i32 s64, s{K.sWAVE}, 448
    s_add_u32 s89, s89, s64
    s_add_u32 s89, s89, {WS_Y}
    buffer_store_dwordx4 a[{rd}:{rd+3}], v30, {WSR}, s89 offen sc1
    """)
    return pre, ms, adr
def front(c, vt):
    frags = [kvq.rd_c(0, 0, 0, 0), kvq.rd_c(0, 0, 0, 1)] + kv5.rd_w_unit(0, 0, 0) + kv5.rd_w_unit(0, 1, 1)
    rt, ht = int(opt['rt']) == vt, int(opt['ht']) == vt
    qt = not ht
    if 'h' in opt['skip']: ht = False
    if 'r' in opt['skip']: rt = False
    side.sJ = hw.sJ = 31; rl = (r5_loads() if RW else side.r4_loads()) if rt else []; side.sJ = sJ
    RD = int(opt['rd']) if RW else 0
    rl_late = rl if RD else []
    if RD: rl = []
    out = L(f"s_and_b32 s31, s{sJ}, 7") + (side.z_store()[:-3] + rl + side.z_store()[-3:] if vt == 0 else rl) + (kv5.unit_c(1) + kv5.unit_w(2) if kv5.T0 else kv5.unit_w(2) + kv5.unit_c(1))
    ev = wev('a', [f"kv{vt}{p}" for p in range(1, min(1 + int(opt["na"]), 12 + vt))])
    if 'A' in opt['warm']:
        pg_ = [f"kv{vt}{p}" for p in range(1, 12 + vt)] + [f"loop_top{p}" for p in ints('wA' + str(vt)) if p >= 0]
        ev = L(f"s_bitcmp1_b32 s2, 5\ns_cbranch_scc1 L_evb{vt}") + wev('A', pg_[0::2]) + L(f"s_branch L_evc{vt}\nL_evb{vt}:") + wev('A', pg_[1::2]) + L(f"L_evc{vt}:")
        for i in ev: i.extra["evt"] = True
    if opt['wpos'] == '1':
        k = max(n for n, i in enumerate(out) if i.text.startswith("s_add_u32 m0")) - 6
        out[k:k] = ev; ev = []
    out += jitter() + ev
    out += [WAITV([("W", 1), ("C", 0), ("W", 0)], lgkm0=True), I("s_barrier")] + stamp(26) + frags
    if rt and not RW: out += side.r4_compute()
    out += [NEED(R("a", kv5.wfrag(0, 0, 0), 8), R("a", 160, 8))]
    tQ = int(opt["tQ"])
    xl = {}; uq = {u: 0 for u in range(8)}
    def items(spec, sep=0):
        o = []
        for n, seg in enumerate(spec.split("@")):
            if n:
                k, seg = seg.split(":"); o.append(At(int(k)))
            for ch in seg:
                if ch in 'abcdefg': o += kv5.x_dma(ord(ch) - 97)
                elif ch in 'ABCDEFG': o += kv5.x_read(ord(ch) - 65, xl)
                else:
                    u = int(ch); d = kv5.wq_dma(u, uq[u]); uq[u] += 1
                    o += [Sep(max(sep - 2, 0))] + d
        return o
    for t in range(15):
        dma = kv5.kv_dma(t)
        if ht and t == 2 and H2: hpre, uns = hw2.a_setup(), hw2.a_units(opt['hnt'])
        if ht and t == 9 and H2:
            dpre, un = hw2.down_dma(); dma[1] = dma[1] + [un]
        if ht and t == 2 and not H2:
            hpre, uns = hw.s1_weights()
            if opt['hmap'] == '1':
                k = [n for n, i in enumerate(hpre) if i.text.startswith(f"s_mul_i32 s{hw.sLD},")][0]
                hpre = L(f"""s_and_b32 s64, s{sH}, 7
                s_min_u32 s65, s64, 4
                s_mul_i32 s{hw.sFS}, s64, 12
                s_lshl_b32 s65, s65, 2
                s_add_u32 s{hw.sFS}, s{hw.sFS}, s65
                s_and_b32 s65, s{sH}, 8
                s_add_u32 s65, s65, s31
                s_add_u32 s{hw.sFS}, s{hw.sFS}, s65
                s_and_b32 s64, s64, 4
                s_sub_u32 s64, 15, s64
                s_sub_u32 s64, s64, s65
                s_and_b32 s{hw.sMK}, s64, {OOB}
                s_min_u32 s{hw.sFS}, s{hw.sFS}, 111""") + hpre[k:]
        if ht and t >= 2:
            for w_ in range(2):
                for n_, u_ in enumerate(ints('hw')):
                    if u_ == 2 * t + w_: dma[w_] = dma[w_] + [uns[n_]]
        if ht and t == 10 and not H2:
            dpre, un = hw.s6_down_dma(); dma[1] = dma[1] + [un]
        tR = int(opt['tR'])
        if RELAY and not LATER and not ht:
            if t == tR:
                side.sJ = 31; wpre, wun = side.wo2_dma(); wrd = side.wo2_reads(); side.sJ = sJ
            if t in (tR, tR + 1): dma[1] = dma[1] + [wun[t - tR]]
        late = t >= 12
        g = kv5.kv_tile(t, vt, [dma[0] if t == 12 else [], []] if late else dma)
        def fit(ins, k, pace=0):
            k, left = kvq.seq_fit(g, ins, k, pace); assert not left, (t, len(left)); return k
        def mm(ms, k):
            k |= 1
            for m in ms: g.put(k, m)
            return k
        tch = []
        if t == 12: xs_at = fit(kv5.x_setup(), 1) + 1; assert xs_at < 40
        if t in ints('tcq'): tch += side.c_touch(32, ints('tcq').index(t) + 1)
        if t == 0: fit(L("v_lshlrev_b32 v26, 7, v0\nv_and_b32 v27, %d, v0\nv_lshl_add_u32 v26, v27, 24, v26" % (56 if THIN else 48)), 50)
        if t == RD - 1 and rt and RD:
            for i in rl_late: i.text = i.text.replace("v32", "v25"); i.parse()
            fit(rl_late, int(opt['rdg']), 2)
        if t == 1 + RD and rt and opt['rw'] == '1': assert fit(r5_compute(), 2) < 108
        if rt and opt['rw'] == '2':
            if t == 1: rc = r5_compute(); fit(rc[:110], 2 if not RD else int(opt['rcg']))
            if t == 2: assert fit(rc[110:], 2) < 108
        if t == 1 and vt == 0: fit(side.z_signal(), 112)
        if t == (3 if opt['rw'] == '2' else 2 + RD) and rt: KS_AT = fit(side.rg4_store(), 4, 1); assert KS_AT < 42
        if t == 8 and "ab"[vt] in opt['idle'] or str(t) == opt['idt']: out += L("s_sleep 32")
        if t == 3 - H2: fit(side.z_load(), 112 if H2 else 50)
        if t == 4 - H2:
            k = fit(side.z_check(vt), 100 if H2 else 112)
            if rt: fit(side.key4_store(), k + 1)
        if t == 5 and LATER: fit(L(srd(S_WO, 90, 4096 * 896)), 4)
        if t == 5 and not RELAY: fit(L(f"""s_mul_i32 s64, s{sH}, {256 * 896}
            s_add_u32 s72, s90, s64
            s_addc_u32 s73, s91, 0
            s_sub_u32 s75, {4096 * 896}, s64
            {srd(S_WO, 72, "s75")}"""), 4)
        if RELAY and not LATER and not ht:
            if t == tR: assert fit(L(srd(60, 90, 4096 * 896)) + wpre, 30) < 80
            if t == tR + 2: g.sc[110][0].tag = g.sc[110][0].tag + ["WO"]
            if t == tR + 3: assert fit(wrd, 2, 2) < 108
            if t in (tR + 4, tR + 5, tR + 6): fit([x for s_ in side.wo2_stores()[{0: 0, 1: 3, 2: 5}[t - tR - 4]:{0: 3, 1: 5, 2: 7}[t - tR - 4]] for x in s_ + [24]], 20)
        if qt:
            pre_, tl = side.q_touch3(K.S_WQ)
            if THIN:
                for i in pre_: i.text = i.text.replace("v_and_b32 v28, 48, v0", "v_and_b32 v28, 56, v0"); i.parse()
                tl = [[side.touch(23, K.S_WQ, 0, nt=False), I(f"v_add_u32 v23, {2 * 8192}, v23")] for n in range(7)]
            if t == tQ: fit(pre_, 60)
            if 0 <= t - tQ < len(tl): tch += tl[t - tQ]
        if ht and H2:
            if t == 2: fit(hpre, 42)
            if t == 5: fit(hw.s2_keys(), int(opt['hk']))
            if t == 6: assert fit(hw.s3_top2(), 10, 1) < 108
            hg = ints('hg')
            if t == 7:
                fit(hw2.sel(), 2); g.sc[110][0].tag = g.sc[110][0].tag + ["HW"]
            if t == 8:
                ((r0, m0), (r1, m1)), hst = hw2.gemm()
                k = fit(r0 + r1, hg[0]); k = mm(m0, k + 6); k = mm(m1, k + 4); fit(hst, k + 4)
            if t == 9:
                g.sc[110][0].tag = g.sc[110][0].tag + ["HP"]
                assert fit(dpre, 4) < 44
                fit(hw2.a_flag(), 112)
            if t == 10:
                k = fit(hw2.sel_store(), 2); k = fit(hw2.down_reads(), max(k + 1, 70)); assert k < 108; fit(hw2.b_poll(), max(k + 1, hg[1]))
            if t == 11: fit(hw2.b_load(), hg[2])
            if t == 12: fit(hw2.act(), max(xs_at, hg[3]))
            if t == 13:
                pre, ms, yadr = down5(208, 224); k = 0
                for m in ms: k = mm([m[0]], k + 1); k = fit(m[1:], k + 1)
                assert fit(yadr, k + 1) < 47
        if ht and not H2:
            if t == 2: fit(hpre, 42)
            if t == 6: fit(hw.s2_keys(), 64)
            if t == 7: assert fit(hw.s3_top2(), 10, 1) < 108
            if t == 8:
                sel = hw.s4_sel()
                k = [n for n, i in enumerate(sel) if not isinstance(i, int) and i.text.startswith(f"s_mov_b32 s64, {WS_RG}")][0]
                if opt['rgo'] == '1': sel[k:k + 1] = L(f"s_or_b32 s64, s31, s{K.sWAVE}\ns_min_u32 s64, s64, 1\ns_lshl_b32 s64, s64, 29\ns_add_u32 s64, s64, {WS_RG}")
                fit(sel, 4, 1)
            if t == 9:
                (r0, m0), (r1, m1) = hw.s5_gemm()
                k = fit([WAITV("HW")] + r0, 50); k = mm(m0, max(k + 6, 78)); k = fit(r1, k + 1); mm(m1, max(k + 6, 110))
            if t == 10: assert fit(dpre, 4) < 44
            if t == 11: fit(act5(), 2, 1)
            if t == 12:
                pre, ms, yadr = down5()
                k = fit(pre, xs_at)
                for m in ms: k = mm([m[0]], k + 2); k = fit(m[1:], k + 1)
                fit(yadr, k + 1)
        thin = lambda srd_, so: [side.touch(26, srd_, f"s{so}", nt=False)] + L(f"s_add_u32 s{so}, s{so}, {1024 if THIN else 2048}")
        if str(t) == opt['tH']:
            fit(L(f"""s_lshl_b32 s26, s2, 2
            s_add_u32 s26, s26, s{K.sWAVE}
            s_sub_u32 s25, s26, 448
            s_cselect_b32 s25, s26, s25
            s_cselect_b64 s[72:73], s[80:81], s[82:83]
            s_mul_i32 s25, s25, 3584
            {srd(32, 72, 448 * 3584)}
            v_lshlrev_b32 v27, 7, v0
            v_add_u32 v28, 4, v0
            v_lshrrev_b32 v28, 5, v28
            v_lshl_or_b32 v27, v28, 29, v27""") + [side.touch(27, 32, "s25", nt=False)], int(opt['tHg']))
        if str(t) == opt['tlb'][0]:
            tl_ = L(f"v_lshlrev_b32 v27, 21, v0\nv_min_u32 v28, 2, v0\nv_lshrrev_b32 v28, 1, v28\nv_lshl_or_b32 v27, v28, 29, v27")
            if 'x' in opt['tlb']: tl_ += [side.touch(27, K.S_X, f"s{K.sXOFF}", nt=False)]
            if 'q' in opt['tlb']: tl_ += [side.touch(27, K.S_WQ, 0, nt=False)]
            if 'k' in opt['tlb']: tl_ += L(f"s_mul_i32 s26, s{sH}, {HS}\nv_lshlrev_b32 v27, 24, v0\nv_min_u32 v28, 3, v0\nv_add_u32 v28, 1, v28\nv_lshrrev_b32 v28, 2, v28\nv_lshl_or_b32 v27, v28, 29, v27") + [side.touch(27, K.S_WS, "s26", nt=False)]
            fit(tl_, 60)
        xt = [int(x) for x in opt['tX'].split(",") if x]
        if xt and t == xt[0] // 2:
            assert fit(L(f"""s_lshl_b32 s26, s{sJ}, 1
            s_lshr_b32 s27, s{sH}, 3
            s_add_u32 s26, s26, s27
            s_lshl_b32 s26, s26, 2
            s_add_u32 s26, s26, s{K.sWAVE}
            s_mul_i32 s26, s26, 14336"""), 20) < 46
        if 2 * t in xt: fit(thin(K.S_X, 26), 48)
        if 2 * t + 1 in xt: tch += thin(K.S_X, 26)
        wt = [int(x) for x in opt['tW'].split(",") if x]
        if wt and qt:
            if t == wt[0]: fit(L(f"""s_and_b32 s27, s{sJ}, 7
                s_lshl_b32 s64, s{sH}, 3
                s_add_u32 s27, s27, s64
                s_lshl_b32 s27, s27, 2
                s_add_u32 s27, s27, s{K.sWAVE}
                s_mul_i32 s27, s27, 7168
                {srd(60, 90, 4096 * 896)}"""), 20)
            if t in wt: fit(thin(60, 27), int(opt['twg']))
        if str(t) in opt['tc'].split(','): tch += [side.touch(26, 76, 's95', nt=False)]
        if late:
            s = Sched(g); xr = int(opt['xr'])
            fl = lambda us: [i for u in us for i in u]
            if t == 12: s.add(items("a") + fl(dma[1]) + [By(110)], 49, 106, vmd=2)
            if t == 13:
                s.add(items("b") + fl(dma[0]) + [By(46)], 1, 42, vmd=2).add(items("c") + fl(dma[1]) + [At(72)] + items(UW[0]) + [By(110)], 49, 106, vmd=2)
                s.add(kv5.q_setup() + [By(70)], 48, 68)
                s.add(items("A") + [By(44), At(xr)] + items("B") + [By(108)], xr - 64, 100, asap=True)
            if t == 14:
                s.add(items("d") + fl(dma[0]) + items(UW[1]) + [By(46)], 1, 42, vmd=2).add(items(UW[2]) + [By(110)], 49, 106, vmd=2)
                s.add(items("C") + [By(44), At(xr)] + items("D") + [By(108)], xr - 64, 100, asap=True)
                s.add(kv5.q_setup2(), 50, 80)
            s.run()
        fit(tch, int(opt['tg']) - (10 if len(tch) > 8 else 0))
        out += g.flat()
        for ev in opt['te1'].split(","):
            te, p0, p1 = [int(x) for x in ev.split(":")]
            if t == te: out += wev('b', [f"kv{vt}{p}" for p in range(p0, min(p1, 12 + vt))])
        if t in (0, 1, 11, 14) or '1' in opt['fine']: out += stampa()
        if t in (0, 3, 5, 9, 14): out += jitter()
    g = kv5.kv_tile(15, vt, [[], []], endtags=[("U", 0), ("U", 1)])
    ks = KVStore(vt)
    lastw = {}
    for m in g.m:
        for r in m.writes: lastw[r] = m
    done_at = lambda n: max(p[0] * 16 + p[1] * 2 + 1 for p in ks.prs[n][:2]) + 4
    packs = {}
    for n, (ta, tb, off) in enumerate(ks.prs):
        ins, reg = kvq.pack(kacc(*ta), kacc(*tb), K.vT + (4 * (n & 1) if vt else 0))
        seen = set()
        for i in ins:
            for r in i.reads:
                if r in lastw and r not in seen: i.extra.setdefault("raw", {})[r] = lastw[r]
            seen |= set(i.writes)
        packs[n] = ins; ks.reg[n] = R("v", reg, 4); ks.src[n] = ins[-4:]
    qp = QPhase([32 + 4 * f for f in range(7)], [kacc(y, x)[1] for y in (3, 5) for x in range(8)] if vt else [kacc(y, x)[1] for y in (2, 3, 4, 5) for x in (1, 3, 5, 7)])
    qp.place_reads(g, 0, 112)
    g.put_s(127, qp.need(0, 0, 4))
    s = Sched(g)
    lo, hi = ints('s15v' if vt else 's15'); st1 = []; cur = None
    for n in range(8):
        pg = ks.prs[n][2] >> 12
        st1 += [At(max(done_at(n), lo + n * (hi - lo) // 8 - 6))] + packs[n] + ks.st(n, "KV1", newpage=pg != cur); cur = pg
    s.add(st1 + [By(110)], 0, hi, asap=True)
    s.add(items(UW[3]) + [By(46)], 1, 42, vmd=2).add(items(UW[4]) + [By(108)], 49, 90)
    s.add(items("E") + [At(50)] + items("F") + [At(96)] + items("G") + [By(106)], 30, 100, asap=True)
    s.add([x for n in range(8, 32) for x in [At(done_at(n))] + packs[n]], 0, 127, asap=True)
    left = s.run(spill=True); assert not any(left[:4]), left
    carry = left[4]
    if '6' in opt['fine']:
        for k in range(31, 127, 32): g.ve[k] += stampa()
    out += g.flat() + fs('2')
    g = Gaps(qp.mfmas(xl))
    LV = {1: [("U", 2), ("U", 3)], 2: [("U", 4), ("U", 5)], 3: [("U", 6), ("U", 7)], 4: [("T", KSLOT[0])]}
    l2 = int(opt['l2']) if vt else 3
    LV[l2] = LV[l2] + ["KV2"]
    g.put_s(2, qp.need(0, 4, 7))
    for n in range(32):
        if n < 31: qp.place_reads(g, n + 1, 14 * n, None if n % 8 == 6 else [int(x, 16) for x in opt['qpat']])
        else: put_batch(g, rd_batch(KSLOT[0], 0), 14 * n); g.put_s(14 * n + 13, need_batch(0))
        if n % 8 == 6:
            g.put_s(14 * n + 12, WAITV(LV[n // 8 + 1], lgkm0=True)); g.put_s(14 * n + 13, I("s_barrier"))
        elif n < 31:
            nd = ints('qnd'); g.put_s(14 * n + 13, qp.need(n + 1, 0, nd[0])); g.put_s(14 * n + 13 + nd[0] - nd[1], qp.need(n + 1, nd[0], 7))
    QB = lambda x: 112 * x - 14
    setup = kv5.q_bank(1) + [By(90)] + side.lane0_wave0(A.vF0) + L(f"""
    v_min_u32 v9, 15, v0
    v_lshlrev_b32 v9, 7, v9
    s_sub_u32 s66, 15, s{sJ}
    s_max_u32 s67, s66, s{sJ}
    s_min_u32 s66, s66, s{sJ}
    s_mul_i32 s{A.sK}, s{sH}, {HS}
    s_lshl_b32 s64, s67, 16
    s_add_u32 s{A.sQ}, s{A.sK}, s64
    s_lshl_b32 s64, s{A.sWAVE}, 14
    s_add_u32 s{A.sQ}, s{A.sQ}, s64
    s_add_u32 s{A.sQ}, s{A.sQ}, {WS_Q}
    s_sub_u32 s64, s{sJ}, {JH + 1}
    s_and_b32 s{sNC}, s64, {OOB}
    v_or_b32 v6, s{sNC}, v{A.vL16}
    """) + [By(80)] + L(f"""
    s_lshl_b32 s{A.sM0}, s{A.sWAVE}, 13
    v_add_u32 v{A.vRD1}, 0x10000, v{A.vL16}
    v_add_u32 v{A.vDM0}, s{A.sM0}, v{A.vL16}
    v_add_u32 v{A.vDM1}, 0x1000, v{A.vDM0}
    s_lshl_b32 s64, s{sJ}, 16
    s_add_u32 s{A.sKn1}, s{A.sK}, s64
    s_add_u32 s{sVD}, s{A.sKn1}, {WS_V}
    s_add_u32 s{A.sV}, s{A.sK}, {WS_V}
    {f'''s_min_u32 s{A.sIT}, s{sJ}, {JH}
    s_lshl_b32 s{A.sKcnt}, s{A.sIT}, 1
    s_sub_u32 s{A.sKcnt}, s{A.sKcnt}, 1
    s_sub_u32 s{A.sIT}, s{A.sIT}, 2''' if vt else f'''s_mov_b32 s{A.sKcnt}, 0x7fff
    s_sub_u32 s{A.sIT}, s{sJ}, 1
    s_cmp_eq_u32 s{sJ}, 0
    s_cselect_b32 s64, 32768, 0
    s_add_u32 s{A.sV}, s{A.sV}, s64'''}
    s_mov_b32 s{A.sTHR}, {hex(f2u(float(opt['thr'])))}
    s_mov_b32 s{A.sLOW}, {hex(f2u(float(opt['low'])))}
    s_lshl_b32 s47, s66, 7
    s_add_u32 s47, s47, s46
    s_lshl_b32 s64, s{A.sWAVE}, 5
    s_add_u32 s47, s47, s64
    s_add_u32 s47, s47, 2048
    s_lshl_b32 s65, s{sH}, 3
    s_add_u32 s65, s65, s66
    s_mul_i32 s{A.sPO}, s65, {PO_STRIDE}
    s_add_u32 s{A.sPO}, s{A.sPO}, {WS_PO}
    s_lshl_b32 s65, s{sJ}, 4
    s_add_u32 s65, s65, s{sH}
    s_mul_i32 s{A.sOP}, s65, {OP_HEAD}
    s_mul_i32 s65, s{A.sWAVE}, 28672
    s_add_u32 s{A.sOP}, s{A.sOP}, s65
    s_add_u32 s{A.sOP}, s{A.sOP}, {WS_OP}
    {f's_or_b32 s{A.sOP}, s{A.sOP}, {OOB}' if ('k' in opt['wi'] and not vt) or ('v' in opt['wi'] and vt) else ''}
    s_mov_b32 s{A.sREQ}, 0
    s_mov_b32 s{A.sCHK}, {vt}
    s_mov_b32 s{sMODE}, 1
    s_cmp_eq_u32 s{A.sWAVE}, 0
    s_cselect_b32 s{sMLD}, {6 if vt else 7}, 4
    {'' if vt else f'''s_lshl_b32 s64, s{sH}, 1
    s_add_u32 s64, s64, s{A.sWAVE}
    s_cmp_lt_u32 s64, 30
    s_cselect_b32 s64, {0 if 'h' in opt['skip'] else (15 << TY) | (1 << 15)}, 0
    s_cmp_ge_u32 s{A.sWAVE}, 2
    s_cselect_b32 s64, s64, 0
    s_cmp_eq_u32 s{sJ}, {JY}
    s_cselect_b32 s64, s64, 0
    s_or_b32 s{sMLD}, s{sMLD}, s64'''}
    s_mov_b64 s[60:61], s[76:77]
    s_mov_b32 s62, s78
    s_mov_b32 s63, 0x20000
    v_lshrrev_b32 v24, 4, v0
    v_lshlrev_b32 v24, 2, v24
    v_and_b32 v25, 15, v0
    v_sub_u32 v24, v24, v25
    """) + [I(f"v_cmp_lt_i32 s[{A.sTRI[e]}:{A.sTRI[e]+1}], {-e}, v24") for e in range(4)] + side.code_addr(0, 25) + (selm(24) if opt['selq'] == '1' else []) + [By(int(opt['fl']) - 6)]
    dq = items(opt['q0'], int(opt['qsep'])) + L(f"v_mov_b32 v{A.vNEG}, 0xff800000")
    assert all(v == 7 for v in uq.values())
    W1 = f"buffer_load_dword v{A.vRL}, v31, {WSR}, s46 offen offset:4 sc1"
    wchk = lambda n, half: L(f"v_cmp_ne_u32 vcc, 1, v{A.vRL}\ns_nop 0\ns_cmp_lg_u32 vcc_{half}, 0\ns_cbranch_scc1 L_ws{n}\nL_wr{n}:")
    WSPIN[f"q{vt}"] = (W1, "lo"); WSPIN[f"r{vt}"] = (W1, "hi")
    dq2 = [At(int(opt['fl']) - 4)] + L(f"v_lshrrev_b32 v31, 6, v{A.vL16}\nv_bfe_u32 v28, v{A.vL16}, 4, 2\nv_lshlrev_b32 v31, 5, v31\nv_add_lshl_u32 v31, v31, v28, 2\n{W1}") + [At(int(opt['fc']))] + wchk(f"q{vt}", "lo") + dma_flat(KSLOT[0], A.sK) + adv_k()
    k1 = dma_flat(KSLOT[1], A.sK)
    dq2 += [At(QB(3))] + k1[:3] + L(W1) + k1[3:] + adv_k() + [At(int(opt['fv']))] + wchk(f"r{vt}", "hi") + dma_flat(4, A.sV) + adv_v()
    qout = []; qsts = []
    def qst(qb, kq): return [I(f"s_add_u32 s30, s{A.sQ}, {(qb * 8 + kq) >> 2 << 12}"), I(f"buffer_store_dwordx4 a[{Qreg(qb, kq)}:{Qreg(qb, kq)+3}], v6, {WSR}, s30 offen offset:{(kq & 3) * 1024} sc1", tag="QST")] if vt and opt['nost'] != '1' else []
    for cg in range(4):
        for p2 in range(2):
            for qb in QO:
                if (cg, p2) == (3, 1): continue
                ins, k = qp.out(cg, p2, qb, Qreg(qb, 2 * cg + p2))
                qout += [At(k + 4)] + ins
                qsts.append((ins[-1], qst(qb, 2 * cg + p2)))
                if qsts[-1][1]: dep(qsts[-1][1][-1], *ins[-4:])
    qlast = lambda: qp.out(3, 1, QO[0], Qreg(QO[0], 7))[0] + [By(4), At(1)] + qp.out(3, 1, QO[1], Qreg(QO[1], 7))[0] + [By(12)]
    nq = ints('qd')[4]
    qrest = [i for k, i in qsts[nq:]] + [qst(QO[0], 7), qst(QO[1], 7)]
    qw = ints('qw') if vt else [0] * 7; assert not vt or sum(qw) == len(qrest), len(qrest)
    qpart = lambda m: [x for i in qrest[sum(qw[:m]):sum(qw[:m + 1])] for x in i]
    uq_at = 82
    s = Sched(g)
    s.add(carry, 0, 40, asap=True)
    s.add(dq, 0, 240, asap=True, vmd=2).add(dq2, 0, 430, asap=True, vmd=int(opt['kvd']))
    kq = 8 + sum(int(x, 16) for x in opt['qk']); kw = ints('kw'); assert kq + sum(kw) == 32 and kw[2] <= 8
    plan = [int(x, 16) for x in opt['qv' if vt else 'qk']]; pos = ints('qp'); sts = []; n0 = 8
    for m, k in zip(plan, pos):
        sts += [At(k)] + [x for i in ks.many(range(n0, n0 + m), lambda n: "KV2" if n < 16 else "KV4") for x in ([Sep(int(opt['ssep'])), i] if i.kind != 'vst' else [i])]; n0 += m
    assert n0 == (16 if vt else kq)
    s.add(sts, 0, 447, asap=True)
    s.add(qout, 0, 447, asap=True)
    qd = ints('qd'); nq = qd[4]
    ready = [i for i in setup if isinstance(i, Inst) and i.text.startswith("v_or_b32 v6,")][0]
    for k, i in qsts:
        if i: dep(i[1], ready); dep(i[0], [x for x in setup if isinstance(x, Inst) and f"s{A.sQ}" in x.writes][-1])
    s.add([At(uq_at)] + [x for n, (k, i) in enumerate(qsts[:nq]) for x in [At(qd[n // 4]), Sep(int(opt['ssep'])), After(k)] + i], 0, 447, asap=True)
    s.add(setup, 20, int(opt['fl']) - 20)
    w1 = L(f"""s_mul_i32 s72, s{sH}, {FSTR}
    s_add_u32 s46, s72, {WS_FL}
    s_lshl_b32 s{sFL}, s{sJ}, 7
    s_add_u32 s{sFL}, s{sFL}, s46
    s_lshl_b32 s72, s{A.sWAVE}, 2
    s_add_u32 s72, s72, s{sFL}
    v_min_u32 v29, 1, v0
    v_lshlrev_b32 v29, 29, v29
    v_mov_b32 v30, 1""") + [At(int(opt['l1v' if vt else 'l1'])), WAITV("KV1"), I(f"buffer_store_dword v30, v29, {WSR}, s72 offen offset:4 sc1")]
    s.add(w1 + [At(QB(l2))] + level(2, 30), 0, 447, asap=True)
    s.run()
    if '6' in opt['fine']:
        for k in range(27, 447, 28): g.ve[k] += stampa()
    if '8' in opt['fine']:
        for k in range(213, 447, 14): g.ve[k].append(I("s_nop 0 ; us"))
    if 'q' in opt['warm']:
        k, p0 = ints('wqg'); g.ve[k] += wev('q', [f"kv{vt}{p}" for p in range(p0, 12 + vt)] + ([] if vt else []))
    if opt['idq'] != '-': g.ve[int(opt['idq'])].append(I("s_sleep 32"))
    if '7' in opt['fine']:
        for x in range(1, 5): g.ve[QB(x) - 3] += stampa(); g.ve[QB(x) - 1] += stampa()
    out += g.flat() + stamp(26) + (EXIT() if opt['kvonly'] == '2' else []) + jitter()
    init = lambda: [I(f"v_mov_b32 v{r}, 0") for r in [A.vLS, A.vLS + 1] + list(range(A.vNM, A.vNM + 8))]
    rd2 = lambda: L(f"v_add_u32 v16, 0x20000, v{A.vL16}")
    g = Gaps(qk_mfmas(0, C0, order=QO, asc0=True))
    tile_reads(g, lambda b: rd_batch(KSLOT[0], b), rd_batch(KSLOT[1], 0), [("T", KSLOT[1])])
    s = Sched(g).add(qlast() + [x for i in qpart(0) for x in ([Sep(int(opt['q0s'])), i] if i.kind != 'vst' else [i])], 0, 20, asap=True).add(dma_flat(VSLOT[1], A.sV) + adv_v(), 10, ints('dh')[0]).add(rd2(), 30, 63)
    if vt:
        a, b = ints('vq'); n0 = 16 + a + b; assert n0 <= 24
        qf = int(opt['qf'])
        qflag = L(f"v_min_u32 v17, 1, v{A.vL16}\nv_lshlrev_b32 v17, 29, v17\nv_mov_b32 v15, 1\ns_add_u32 s84, s47, 16") + [At(qf % 64), WAITV("QST"), side.flag_store(84, 17, 15), By(62)]
        s.add((qflag if qf < 64 else []) + ks.many(range(16, 16 + a), "KV4"), ints('sw')[0], 62, asap=True)
        def park(ns):
            o = [I(f"v_accvgpr_write_b32 a{128 + 4 * (n - 16) + e}, v{int(ks.reg[n][2:ks.reg[n].index(':')]) + e}") for n in ns for e in range(4)]
            for i in o: dep(i, *[p for n in ns for p in ks.src[n]])
            return o
    else:
        km = kq + kw[0]
        s.add(ks.many(range(kq, km), "KV4"), *ints('sw'))
    s.run()
    grp, early = groups_first(0, QO)
    sched_sm(g, grp, 12, 62, early=early)
    if '8' in opt['fine']:
        for k in (0, 16, 32): g.ve[k].append(I("s_nop 0 ; us"))
    qk0 = g.flat() + jitter() + stampa() + (L("s_sleep 32") if str(vt) in opt['idle'] else [])
    if vt:
        w1, left = win_qk1(4, 16, "v1", lambda s: s.add(ks.many(range(16 + a, n0), "KV4") + [By(60)], *ints('sw')).add(qflag if 64 <= qf < 128 else [], 0, 60, asap=True).add(park(range(n0, 24)) + [By(58)], 0, 56).add(qpart(1), *ints('sw')))
        vp = ints('vp'); assert n0 + sum(vp) == 32
        later = lambda m: (lambda s: s.add(ks.many(range(n0 + sum(vp[:m]), n0 + sum(vp[:m + 1])), "KV4", lambda n: R("a", 128 + 4 * (n - 16), 4)), *ints('sw')).add(qpart(m + 2), *ints('sw')).add(qflag if qf // 64 == m + 2 else [], 30, 60, asap=True))
        def pv0x(s): s.add(park(range(24, 32)) + [By(28)], 0, 28); later(0)(s)
        ex = [[], [], []]
        if LATER:
            ex[0] = L(f"""s_and_b32 s66, s{sJ}, 7
            s_lshl_b32 s67, s{sH}, 3
            s_add_u32 s67, s66, s67
            s_lshl_b32 s67, s67, 2
            s_add_u32 s67, s67, s{K.sWAVE}
            s_mul_i32 s67, s67, 7168
            s_mul_i32 s86, s{K.sWAVE}, 7168
            s_add_u32 s86, s86, 131072""")
            for o_, n_ in ((0, 4), (4096, 3)):
                ex[0] += [I(f"s_add_u32 m0, s86, {o_}")] + [I(f"buffer_load_dwordx4 v7, s[{S_WO}:{S_WO+3}], s67 offen offset:{1024*q} lds", tag="WO", lds=(131072, 163840, "WO")) for q in range(n_)] + L("s_add_u32 s67, s67, 4096")
            ex[1] = L(f"""v_lshrrev_b32 v12, 6, v7
            v_mul_u32_u24 v12, 896, v12
            v_and_b32 v13, 48, v7
            s_lshr_b32 s67, s{K.sWAVE}, 1
            s_lshl_b32 s67, s67, 6
            s_and_b32 s86, s{K.sWAVE}, 1
            s_lshl_b32 s86, s86, 3
            s_add_u32 s67, s67, s86
            s_add_u32 s67, s67, 131072
            v_add3_u32 v12, v12, v13, s67
            s_lshl_b32 s94, s{sH}, 18
            s_lshl_b32 s66, s66, 10
            s_add_u32 s94, s94, s66
            s_lshl_b32 s66, s{K.sWAVE}, 13
            s_add_u32 s94, s94, s66
            s_add_u32 s94, s94, {WS_WO}""") + [I(f"ds_read_b64_tr_b16 a[{192+4*n+2*q}:{193+4*n+2*q}], v12 offset:{n*128 + q*14336}", lds=(131072, 163840, "r")) for n in range(7) for q in range(2)] + [By(44)]
            ex[2] = [x for n in range(7) for x in (I(f"s_add_u32 s30, s94, {n * 32768}"), I(f"buffer_store_dwordx4 a[{192+4*n}:{195+4*n}], v7, {WSR}, s30 offen sc1"))]
        both = lambda f, e, lo, hi: (lambda s: (f(s), s.add(e, lo, hi)))
        c.block("kv1", "L_kv1:", out, qk0, w1, win_pv0(4, 16, pv0x), jitter(), fs('3'), win_qk(1, "v2", later(1), dma2=ex[0]), win_pv(1, later(2), tags=["WO"]), fs('3'),
                win_qk(0, "v3", both(later(3), ex[1], 0, 40)), win_pv(0, both(later(4), ex[2], *ints('rw2'))), "s_sleep 32" if 'v' in opt['idle'] else "", jitter(), "s_branch L_loop_top")
    else:
        c.block("kv0", "L_kv0:", out, f"s_cmp_eq_u32 s{sJ}, 0\ns_cbranch_scc1 L_j0")
        c.block("k1", qk0, win_qk1(4, 16, "k1", lambda s: s.add(ks.many(range(km, km + kw[1]), "KV4") + [By(60)], *ints('sw')))[0],
                win_pv0(4, 16, lambda s: s.add(ks.many(range(km + kw[1], 32), "KV4") + [By(28)], 4, 28)), f"s_cmp_lg_u32 s{A.sIT}, 0\ns_cbranch_scc1 L_loop_top\ns_branch L_d1s")
        g = Gaps(qk_mfmas(0, lambda kb, qb: R("v", Sreg(0, kb, 0), 4) if qb == 0 else "0", order=(1, 0), asc0=True))
        tile_reads(g, lambda b: rd_batch(KSLOT[0], b), rd_batch(KSLOT[1], 0), [("T", KSLOT[1])])
        ql = qp.out(3, 1, 1, Qreg(1, 7))[0] + [By(5)] + qp.out(3, 1, 0, Qreg(0, 7))[0] + [By(12)]
        pr = presets(False, zero=True)
        LSPIN["j0"] = (2, 17)
        s = Sched(g).add([At(1)] + ql, 0, 20, asap=True).add([x for kb in range(4) for x in pr[kb] + [By(16 * kb + 6)]], 0, 50)
        s.add(L(f"s_mov_b32 s{A.sV}, s{sVD}") + dma_flat(VSLOT[0], A.sV) + L(f"v_min_u32 v17, {7 << 7}, v9\nbuffer_load_dword v{A.vRL}, v17, {WSR}, s46 offen sc1"), 14, 44)
        s.add(init(), 0, 63).add(ks.many(range(kq, 32), "KV4"), 16, 62, vmd=2).run()
        grp, early = groups_first(0, (1, 0))
        sched_sm(g, grp, 12, 62, early=early)
        ucheck = L(f"v_mov_b32 v{A.vX}, v{A.vSUM}\nv_mov_b32 v{A.vX+1}, v{A.vSUM+1}") + [i for p in zip(xlane("v_max_f32", A.vX, A.vX + 2), xlane("v_max_f32", A.vX + 1, A.vX + 3)) for i in p] + L(f"""
            v_min_f32 v{A.vX}, v{A.vX}, v{A.vX+1}
            v_cmp_gt_f32 vcc, s{A.sLOW}, v{A.vX}
            s_cbranch_vccnz L_stj0
            L_rtj0:""")
        zz = [I(f"v_mov_b32 v{A.vP1 + e}, 0") for e in range(4)]
        rest = [i for p in presets(True) for i in p]
        c.block("j0", "L_j0:", g.flat(), stampa(), zz, HELPER_K(), PBASE(), lcheck(2, "j0"), mix(ucheck[:-2], dma_flat(KSLOT[0], A.sK) + adv_k(), 1), ucheck[-2:], zero_O_mfma(rest, A.vP1), "s_branch L_d3h")

def build_att(c):
    X.update(nodma=int(opt['xl'][0]), nobar=int(opt['xl'][1]), rp=int(opt['xl'][2]), dp=int(opt['xl'][3])); att.WI.update(nr=int(opt['nr']), noadd=int(opt['noadd']))
    c.block("loop_top", "L_loop_top:" if WARM else ".p2align 6\nL_loop_top:", fs('3'), att.win_qk(1, "L_st1", "L_rt1", extra=[side.touch(0, 60, 0, nt=False)] if opt['tl'] == '1' else [])[0], att.win_pv(1))
    c.block("loop_mid", fs('3'), att.win_qk(0, "L_st0", "L_rt0", head=L(f"s_bitcmp1_b32 s{sMLD}, s{A.sCHK}\ns_cbranch_scc1 L_fll\nL_fllr:"))[0],
            att.win_pv(0, tail=L(f"s_sub_u32 s{A.sIT}, s{A.sIT}, 1\ns_cmp_lg_u32 s{A.sIT}, 0\ns_cbranch_scc1 L_loop_top"),
                       chk=L(f"""v_cmp_gt_u32 vcc, s{A.sREQ}, v{A.vRL}
                       s_cbranch_vccnz L_fls0
                       L_flr0:
                       s_mov_b32 s{A.sREQ}, 0
                       s_add_u32 s{A.sCHK}, s{A.sCHK}, 1""")))
    if opt['emu'] == '2':
        for b, pb in (("loop_top", 1), ("loop_mid", 0)):
            o = []; nm = 0
            for i in c.blocks[b]:
                o.append(i)
                if i.kind == "mfma":
                    nm += 1
                    if nm == 60: o += [mfma("v[12:15]", R("a", aSEL, 4), R("v", Preg(pb, kp, qb), 4), "v[12:15]" if kp + qb else "0") for kp in range(2) for qb in range(2)]
            c.blocks[b] = o
    if opt['emu'] == '1':
        for b in ("loop_top", "loop_mid"):
            o = []; n = 0; nb = 0; nw = 0; nm = 0
            for i in c.blocks[b]:
                if i.kind == "mfma": nm += 1
                if i.kind == "dma" and f"s{A.sV} offen" in i.text:
                    i = I(i.text.replace("dwordx4 v", f"dwordx4 a[{192 + 4 * n}:{195 + 4 * n}], v").replace(" lds", ""), tag="TOUCH"); n += 1
                if i.op == "s_barrier":
                    nb += 1
                    if nb == 1: continue
                if i.kind == "dsr" and ", v7 " in i.text:
                    f = int(re.search(r"offset:(\d+)", i.text).group(1)) // 1024 % 8
                    if f >= 3:
                        if f == 4 and nw < 4: o.append(I(f"ds_write_b128 v2, v[{40 + 4 * nw}:{43 + 4 * nw}] offset:{61440 + 1024 * nw}")); nw += 1
                        continue
                o.append(i)
            c.blocks[b] = o
    att.WI.update(nr=8, noadd=0); X.update(nodma=0, nobar=0)
    c.block("p1", f"s_cmp_eq_u32 s{sMODE}, 0\ns_cbranch_scc1 L_final_h")
    g = Gaps(qk_mfmas(0, lambda kb, qb: R("v", Sreg(0, kb, 0), 4) if qb == 0 else NMq(1), order=(1, 0)))
    tile_reads(g, lambda b: rd_batch(KSLOT[0], b), rd_batch(VSLOT[1], 0), [("T", VSLOT[1])])
    pr = presets(False)
    Sched(g).add([x for kb in range(4) for x in pr[kb] + [By(16 * kb + 6)]], 0, 50).add(
        L(f"s_mov_b32 s{A.sV}, s{sVD}\nv_min_u32 v17, {7 << 7}, v9\nbuffer_load_dword v{A.vRL}, v17, {WSR}, s46 offen sc1") + dma_flat(VSLOT[0], A.sV) + adv_v() + dma_flat(4, A.sV, 0, 4), 1, 60).add(PBASE(), 30, 62).run()
    put_tail(g, sched_sm(g, softmax_groups(1, 1), 0, 56), check(1, "L_std1"))
    c.block("d1", "L_d1s:", stampa(), g.flat(), "L_rtd1:", fs('4'), f"s_cmp_lt_u32 s{sJ}, {15 - JH}\ns_cbranch_scc1 L_d2h")
    pg = lambda k: [f"loop_top{p}" for p in ints(k)]
    wq = ints('rq' if RELAY else 'wq')
    if RELAY: opt['d3w'] = opt['r3w']; opt['five'] = opt['rfive']
    class WoQ:
        def __init__(self, slots): self.slots, self.n = slots, 0
        def take(self, m):
            o = []
            while m and self.n < 56:
                t, i = divmod(self.n, 8); k = min(m, 8 - i)
                o += wo_dma(self.slots[t], i, i + k); self.n += k; m -= k
            return o
    def d2(nxt):
        g = Gaps(pv_mfmas(1))
        tile_reads(g, lambda b: rd_batch(VSLOT[1], b), rd_batch(KSLOT[1], 0), [("T", KSLOT[1])])
        Sched(g).add(dma_flat(4, A.sV, 4, 8) + nxt, 1, 60).add([i for p in presets(True) for i in p] + [By(61)], 4, 60).run()
        sched_sm(g, softmax_groups(0, 0), 0, 62, add_l(1))
        return g.flat() + fs('4')
    P8 = [int(x) for x in opt['p8']]
    def d3(stub, extra):
        g = Gaps(qk_mfmas(1, lambda kb, qb: R("v", Sreg(1, kb, 1), 4), order=(1,)))
        tile_reads(g, lambda b: rd_batch(KSLOT[1], b), rd_batch(VSLOT[0], 0), [("T", VSLOT[0])], per=8, pat=P8)
        Sched(g).add(L(f"v_add_u32 v{A.vNEG}, 0x20000, v{A.vL16}") + extra, 4, 30, asap=True).run()
        put_tail(g, sched_sm(g, softmax_groups(0, 1), 0, 30), check(0, f"L_st{stub}"))
        return g.flat() + L(f"L_rt{stub}:") + fs('4')
    def d4(stub, s1, s2, lo2, hi2, pub=False, hi1=60, asap=False):
        g = Gaps(pv_mfmas(0))
        tile_reads(g, lambda b: rd_batch(VSLOT[0], b), rd_batch(4, 0, A.vNEG), [("T", 4)] + (["KV4"] if pub else []))
        Sched(g).add(s2, lo2, hi2, vmd=2, asap=asap).add(s1, 1, hi1, vmd=2).add(level(4, A.vX + 5) if pub else [], 48, 52, asap=True).run()
        put_tail(g, sched_sm(g, groups_b(), 0, 60, add_l(0)), check_b(f"L_st{stub}"))
        return g.flat() + L(f"L_rt{stub}:") + fs('4')
    addb = lambda: L(f"v_add_f32 v{A.vLS + 1}, v{A.vSUM + 3}, v{A.vLS + 1}")
    wo = WoQ([3, 1, 2, 0, 4, 3, 1] if opt['five'] == '1' else [3, 1, 2, 0, 3, 1, 2])
    c.block("d2n", jitter(), "s_sleep 32" if 'n' in opt['idle'] else "", wev('n', pg('wn')), d2(wo_setup(A.vX + 4) + wo.take(wq[0])))
    LC = opt['lc'] == '1'; NRM = opt['nrm'] == '1'; assert not (LC and NRM)
    c.block("d3n", d3("d3n", wo.take(int(opt['d3w'])) + ([] if LC else [At(int(opt['fpl'])), FP_LOAD()])))
    pl = L(f"v_or_b32 v9, s{sNC}, v{A.vL16}\nv_cmp_ne_u32 vcc, 1, v{A.vRL + 1}\ns_cbranch_vccnz L_fps\nL_fpr:") + [I(f"buffer_load_dwordx4 v[{A.vX+4}:{A.vX+7}], v9, {WSR}, s90 offen sc1")]
    for kq in range(8):
        for qb in (1, 0):
            n = qb * 8 + kq
            pl.append(I(f"buffer_load_dwordx4 a[{A.aX + 4*n}:{A.aX + 4*n + 3}], v9, {WSR}, s{86 + n // 4} offen offset:{(n & 3) * 1024} sc1"))
    ctest = lambda: L(f"""
    v_cmp_neq_f32 vcc, v{A.vNM}, v{A.vX+4}
    v_cmp_neq_f32 s[64:65], v{A.vNM+4}, v{A.vX+5}
    s_cmp_eq_u32 s{sNC}, 0
    s_cselect_b64 s[66:67], -1, 0
    s_or_b64 vcc, vcc, s[64:65]
    s_and_b64 vcc, vcc, s[66:67]
    s_cbranch_vccnz L_stc
    L_rtc:""")
    pn = lambda k0: NEED(*[R("a", A.aX + (qb * 8 + kq) * 4, 4) for kq in (k0, k0 + 1) for qb in range(2)])
    l2 = lambda: L(f"v_add_f32 v{A.vLS}, v{A.vX+6}, v{A.vLS}\nv_add_f32 v{A.vLS+1}, v{A.vX+7}, v{A.vLS+1}")
    if not LC:
        c.block("d4n", d4("d4n", wo.take(wq[1]), pl, int(opt['fpc']), int(opt['pl'])))
        g = Gaps(pvb_mfmas(True))
        tile_reads(g, lambda b: rd_batch(4, b, A.vNEG), rd_wo(3, 0), [("T", 3)], npat=None if RELAY else RP16)
        for k, k0 in ((1, 0), (14, 2), (30, 4), (45, 6)): g.put_s(k, pn(k0))
        lf = l2() + addb() + lfin2()
        nrm = lambda kq, qb: [I(f"v_mul_f32 v{Oreg(2 * kq + h, qb) + e}, v{A.vRL + qb}, v{Oreg(2 * kq + h, qb) + e}") for h in range(2) for e in range(4)] if NRM else []
        cv = ([After(lf[-1])] if NRM else []) + [x for kq in range(8) for qb in (1, 0) for x in [At(8 * kq + 11 - qb)] + nrm(kq, qb) + cvt_ctx(kq, qb)]
        left = Sched(g).add(oa_setup(A.vX + 4) + [By(46)], 20, 44).add(lf + [By(19)], 0, 14 if NRM else 18).add(wo.take(wq[2]), 2, 40).add(cv, 0, 63, asap=True).run(spill=True)
        c.block("d5n", NEED(R("v", A.vX + 4, 4)), ctest(), g.flat(), [i for l in left for i in l], stampa())
    else:
        n4 = 5 + int(opt['n4'])
        c.block("d4n", d4("d4n", wo.take(wq[1]) + [By(int(opt['fpc']) - 2)], [At(int(opt['fpl'])), FP_LOAD(), At(int(opt['fpc']))] + pl[:n4] + [By(60)], 0, 60, hi1=int(opt['fpc']) - 4, asap=True))
        g = Gaps(pvb_mfmas() + comb_mfmas())
        tile_reads(g, lambda b: rd_batch(4, b, A.vNEG), None, [("T", 3)], per=8, pat=P8)
        put_batch(g, rd_wo(3, 0), 40); g.put_s(62, need_batch(0))
        ct = ctest()
        for i in [pn(0)] + ct[-2:]: g.put_s(31, i)
        for k, k0 in ((39, 2), (47, 4), (55, 6)): g.put_s(k, pn(k0))
        cv = [x for kq in range(8) for qb in (1, 0) for x in [At(32 + 4 * kq + 7 - 2 * qb)] + cvt_ctx(kq, qb)]
        lf = l2() + lfin2()
        left = Sched(g).add(pl[n4:] + [By(30)] + wo.take(wq[2]), 0, 40, asap=True, vmd=1).add(addb() + oa_setup(A.vX) + [By(22), At(24)] + ct[:-2] + [By(30), At(32)] + lf[:2] + [By(34)], 4, 30).add(cv + lf[2:], 0, 63, asap=True).run(spill=True)
        c.block("d5n", g.flat(), [i for l in left for i in l], stampa())
    def op_out(j, split=False, mul=True, pps=(0, 1)):
        b = j & 1
        ins = L(f"s_add_u32 s{A.sT0}, s{A.sOP}, {2 * j * 1024}\ns_add_u32 s{A.sT1}, s{A.sOP}, {14336 + 2 * j * 1024}") if 0 in pps else []
        for pp in pps:
            for qb in range(2):
                if split: ins.append(At(32 * pp + 27 + 8 * qb))
                a, d = Sreg(b, 2 * pp, qb), Sreg(b, 2 * pp + 1, qb)
                if mul: ins += [I(f"v_mul_f32 v{r + e}, v{A.vRL + qb}, v{r + e}") for r in (a, d) for e in range(4)]
                ins += kvq.pack(("v", a), ("v", d), 0)[0]
                ins.append(I(f"buffer_store_dwordx4 v[{a}:{a+3}], v{A.vL16}, {WSR}, s{A.sT0 + qb} offen offset:{pp * 1024} {opt['ofl'].replace('+', ' ')}", tag=("OP", j)))
        return ins
    fop = lambda: L(f"""
    s_sub_u32 s64, 15, s{sJ}
    s_min_u32 s64, s64, s{sJ}
    s_mul_i32 s{sFL}, s64, {2 * FSTR}
    s_lshl_b32 s64, s{sH}, 2
    s_add_u32 s{sFL}, s{sFL}, s64
    s_lshl_b32 s64, s{A.sWAVE}, 8
    s_add_u32 s{sFL}, s{sFL}, s64
    s_add_u32 s{sFL}, s{sFL}, {WS_FOP}
    s_mov_b32 s64, 1024
    s_mov_b32 s66, {FSTR - 256}
    s_cmp_lt_u32 s{sJ}, 8
    s_cselect_b32 s64, {FSTR}, s64
    s_cselect_b32 s65, 0, 64
    s_cselect_b32 s66, {OOB}, s66
    s_add_u32 s3, s{sFL}, s64
    s_add_u32 s{sFL}, s{sFL}, s65
    v_lshrrev_b32 v{A.vX + 7}, 5, v{A.vL16}
    v_min_u32 v{A.vX + 5}, 1, v{A.vX + 7}
    v_lshlrev_b32 v{A.vX + 4}, 3, v{A.vL16}
    v_lshl_or_b32 v{A.vX + 6}, v{A.vX + 5}, 29, v{A.vX + 4}
    v_cmp_eq_u32 vcc, 1, v{A.vX + 7}
    v_add_u32 v{A.vX + 4}, s66, v{A.vX + 4}
    v_mov_b32 v{A.vX + 5}, 1
    v_cndmask_b32 v{A.vX + 7}, v{A.vX + 6}, v{A.vX + 4}, vcc
    """)
    def outproj(wo, quota, ctx, first=(), extra0=(), prep=False):
        ow = []; sl = wo.slots
        for j in range(7):
            g = Gaps(qk_mfmas(j & 1, C0, breg=ctx))
            tile_reads(g, lambda b: rd_wo(sl[j], b), rd_wo(sl[j + 1], 0) if j < 6 else None, [("T", sl[j + 1])] if j < 6 else None)
            s = Sched(g)
            if j < len(quota): s.add(wo.take(quota[j]), 1, int(opt['odh']), vmd=2)
            if j == 0: s.add(list(first) + fop() + list(extra0) + [I(f"v_add_u32 v{vOA[2] + x}, 0x20000, v{A.vL16 if RELAY else vOA[0] + x}") for x in range(1 if RELAY else 4)], 0, 40, asap=True)
            jv = (side5.NE - 1) // 2 + 2
            if j == 5 or (j == jv and prep):
                sel = L(f"s_cmp_{'lt' if j == 5 else 'ge'}_u32 s{sJ}, 8\ns_cselect_b32 s84, s{sFL}, {OOB}") if prep and jv != 5 else L(f"s_mov_b32 s84, s{sFL}")
                s.add(sel + [At(int(opt['efg'])), WAITV([("OP", j - 2)]), I(f"buffer_store_dword v{A.vX + 5}, v{A.vX + 7}, {WSR}, s84 offen sc1")], 40, 60, asap=True)
            if j == int(opt['pv1']): s.add(side5.red_v1(A.vL16) if prep else side5.red_k1(A.vL16), 0, 60)
            if prep and j == int(opt['pv2']): s.add(side5.red_v2() + [By(60)], 4, 56)
            if SENT and prep and j == 0:
                mk = [I(f"v_mov_b32 v{Sreg(1, 0, 0) + e}, -1") for e in range(4)] + L(f"s_sub_u32 s73, s{sJ}, 8\ns_and_b32 s73, s73, {OOB}\ns_add_u32 s73, s73, s{A.sOP}\ns_add_u32 s72, s73, 12288\ns_add_u32 s73, s73, {14336 + 12288}")
                s.add(mk + [I(f"buffer_store_dwordx4 v[{Sreg(1, 0, 0)}:{Sreg(1, 0, 0) + 3}], v{A.vL16}, {WSR}, s{72 + (n >> 1)} offen offset:{(n & 1) * 1024} sc1") for n in range(4)] + [By(60)], *ints('mkg'))
            if SENT and prep and j == 6: s.add([At(int(opt['pg']))] + L(side5.FOP_LOAD) + [By(62)], 0, 62, asap=True)
            mul = not (prep and NRM)
            if HALF: s.add((op_out(j - 1, mul=mul, pps=(1,)) if j else []) + op_out(j, True, mul, pps=(0,) if j < 6 else (0, 1)), int(opt['olo']), 63, asap=True, vmd=2)
            elif j > 0: s.add(op_out(j - 1) + (op_out(6, True) if j == 6 else []), int(opt['olo']), 62 if j < 6 else 63, asap=j == 6, vmd=2)
            left = s.run(spill=j == 6)
            ow += g.flat() + fs('5')
        assert wo.n == 56
        if SENT and prep:
            return ow + stampa() + L(f"s_cmp_lt_u32 s{sJ}, 8\ns_cselect_b32 s84, {OOB}, s3") + [WAITV([("OP", 5)]), I(f"buffer_store_dword v{A.vX + 5}, v{A.vX + 6}, {WSR}, s84 offen sc1")] + [i for l in left for i in l] + stampa()
        return ow + stampa() + [i for l in left for i in l] + L(side5.FOP_LOAD) + [WAITV([("OP", 6)]), I(f"buffer_store_dword v{A.vX + 5}, v{A.vX + 6}, {WSR}, s3 offen sc1")] + stampa()
    c.block("opn", jitter(), "s_sleep 32" if 'p' in opt['idle'] else "", outproj(wo, wq[3:], lambda qb, ks: R("v", Oreg(2 * ks, qb), 4), prep=True), f"s_cmp_lt_u32 s{sJ}, 8\ns_cbranch_scc1 L_red")
    rv, vfar = side5.red_main_v(stampa, int(opt['lagv']), SENT)
    if 'e' in opt['skip']: rv = []; vfar = []
    c.block("end1", jitter(), rv, EXIT()); c.block("vfar", vfar)
    LSPIN["h2"] = (2, 17); LSPIN["h4"] = "s84"
    c.block("d2h", "L_d2h:", jitter(), "s_sleep 32" if 'h' in opt['idle'] else "", wev('h', pg('wh1')), d2(HELPER_K() + lcheck(2, "h2") + dma_flat(KSLOT[0], A.sK) + adv_k()))
    c.block("d3h", "L_d3h:", d3("d3h", [FL_LOAD(), I(f"buffer_load_dword v{A.vRL + 1}, off, {WSR}, s47 offset:16 sc1")]))
    ql = L(f"v_cmp_ne_u32 vcc, 1, v{A.vRL + 1}\ns_cbranch_vccnz L_fqs\nL_fqr:") + L(f"s_add_u32 s73, s{A.sQ}, 4096\ns_add_u32 s74, s{A.sQ}, 8192\ns_add_u32 s75, s{A.sQ}, 12288")
    ql += [I(f"buffer_load_dwordx4 a[{4*n}:{4*n+3}], v{A.vL16}, {WSR}, s{72 + n // 4 if n >= 4 else A.sQ} offen offset:{(n & 3) * 1024} sc1") for n in range(16)]
    c.block("d4h", d4("d4h", [], ql + L(f"s_cmp_ge_u32 s{sJ}, 2\ns_cselect_b32 s84, 4, 2") + lcheck("s84", "h4") + [By(58)], 0, 54, True))
    g = Gaps(pvb_mfmas() + qk_mfmas(0, C0))
    tile_reads(g, lambda b: rd_batch(4, b, A.vNEG), rd_batch(KSLOT[0], 0), [("T", KSLOT[0])], per=8, pat=P8)
    tile_reads(g, lambda b: rd_batch(KSLOT[0], b), rd_batch(KSLOT[1], 0), [("T", KSLOT[1])], base=32)
    g.put_s(29, NEED(R("a", 0, 64)))
    def cpk(kq, qb): return link(cvt_ctx(kq, qb) + [I(f"v_accvgpr_write_b32 a{A.aX + (qb * 8 + kq) * 4 + e}, v{Oreg(2 * kq, qb) + e}") for e in range(4)])
    order = [(0, 0), (1, 0)] + [x for kq in range(6) for x in ((kq, 1), (kq + 2, 0))] + [(6, 1), (7, 1)]
    cp = {k: cpk(*k) for k in order}
    s = Sched(g).add(dma_flat(KSLOT[1], A.sK) + adv_k() + L(f"s_mul_i32 s{A.sV}, s{sH}, {HS}\ns_add_u32 s{A.sV}, s{A.sV}, {WS_V + NO * 32768}") + dma_flat(VSLOT[0], A.sV) + adv_v() + dma_flat(VSLOT[1], A.sV, 0, 4), 2, 92)
    s.add(addb() + lfin2() + L(f"v_accvgpr_write_b32 a192, v{A.vRL}\nv_accvgpr_write_b32 a193, v{A.vRL + 1}") + [I(f"v_mov_b32 v{r}, 0") for r in [A.vLS, A.vLS + 1] + list(range(A.vNM, A.vNM + 8))], 0, 40).run()
    grp, early = groups_first(0, base=32)
    sched_sm(g, grp, 44, 94, early=early)
    left = Sched(g).add([x for k in order for x in ([At(4 * k[0] + 7)] if k[1] else []) + cp[k]], 0, 95, asap=True).run(spill=True)[0]
    w5 = g.flat() + fs('4')
    g = Gaps(qk_mfmas(1, C0, alt=True))
    tile_reads(g, lambda b: rd_batch(KSLOT[1], b), rd_batch(VSLOT[0], 0), [("T", VSLOT[0])])
    Sched(g).add(dma_flat(KSLOT[0], A.sK) + adv_k() + dma_flat(VSLOT[1], A.sV, 4, 8) + adv_v(), 1, 56).run()
    k = sched_sm(g, softmax_groups(0, 1), 0, 54)
    tail = check_first("L_sth1")
    ids = {id(i) for i in left}
    Sched(g).add(left + [By(57)], 0, 57).run()
    put_tail(g, max(k, 57), tail)
    w6 = g.flat() + L("L_rth1:")
    c.block("d5h", w5, w6, stampa(), win_pv0(VSLOT[0], None, lambda s: s.add(L(f"""s_mov_b32 s{sMODE}, 0
            s_mov_b32 s{A.sCHK}, 0
            s_and_b32 s{sMLD}, s{sMLD}, 1
            s_or_b32 s{sMLD}, s{sMLD}, 2
            s_sub_u32 s{A.sIT}, {15 - JH - 1}, s{sJ}"""), 10, 30)), f"s_cmp_lg_u32 s{A.sIT}, 0\ns_cbranch_scc1 L_loop_top")
    wo = WoQ([3, 2, 0, 4, 1, 3, 2] if opt['five'] == '1' else [3, 2, 0, 1, 3, 2, 0]); wh = ints('wh')
    if RELAY: wo.n = 16; wh = [ints('rh')[0], 0] + ints('rh')[1:]
    pst = lambda kq, qb: [I(f"buffer_store_dwordx4 v[{Oreg(2*kq, qb)}:{Oreg(2*kq, qb)+3}], v{A.vL16}, {WSR}, s{86 + (qb*8+kq) // 4} offen offset:{(kq & 3) * 1024} sc1", tag="PST")]
    g = Gaps(pv_mfmas(1, alt=False))
    tile_reads(g, lambda b: rd_batch(VSLOT[1], b), rd_wo(3, 0), [("T", 3)], npat=None if RELAY else RP16)
    w0 = wo_setup(A.vX + 4, 2 if RELAY else 0) + wo.take(wh[0]); nv = 0 if RELAY else 7
    left = Sched(g).add(oa_setup(A.vX + 4) + [By(46)], 0, 10).add([x for kq in range(8) for qb in range(2) for x in [At(8 * kq + 9 + 2 * qb)] + cvt_ctx(kq, qb) + pst(kq, qb)], 0, 63, asap=True, vmd=1).add(
        wo.take(wh[1]), 0, 12, vmd=1).run(spill=True)
    c.block("final_h", "L_final_h:", jitter(), stampa(), WAITV([("T", VSLOT[1])], lgkm0=True), "s_barrier", rd_batch(VSLOT[1], 0), wev('f', pg('wh2')), w0[:nv], mix(softmax_half(1, 1), w0[nv:], 1), check(1, "L_stfh"), "L_rtfh:", add_l(1), f"""
    v_mov_b32 v{A.vX}, v{A.vNM}
    v_mov_b32 v{A.vX+1}, v{A.vNM+4}
    v_mov_b32 v{A.vX+2}, v{A.vLS}
    v_mov_b32 v{A.vX+3}, v{A.vLS+1}
    """, I(f"buffer_store_dwordx4 v[{A.vX}:{A.vX+3}], v{A.vL16}, {WSR}, s90 offen sc1", tag="PST"), need_batch(0), fs('4'), g.flat(), left[1], left[2], stampa())
    assert not left[0]
    pflag = L(f"v_min_u32 v{A.vX}, 1, v{A.vL16}\nv_lshlrev_b32 v{A.vX}, 29, v{A.vX}") + [At(int(opt['pfg'])), WAITV("PST"), side.flag_store(47, A.vX, A.vX + 5)]
    c.block("oph", jitter(), "s_sleep 32" if 'o' in opt['idle'] else "", outproj(wo, wh[2:], lambda qb, ks: R("a", A.aX + (qb * 8 + ks) * 4, 4), L(f"v_accvgpr_read_b32 v{A.vRL}, a192\nv_accvgpr_read_b32 v{A.vRL + 1}, a193"), pflag))
    rm = side5.red_main(A.vL16, stampa, int(opt['lag']), int(opt['lag2']))
    if 'e' in opt['skip']: rm = []
    c.block("red0", "L_red:", [WAITV([("OP", 6)]), I(f"buffer_store_dword v{A.vX + 5}, v{A.vX + 6}, {WSR}, s3 offen sc1")] if SENT else [], side5.red_k1(A.vL16), side5.FOP_LOAD, "s_branch L_red1")
    c.block("red", "L_red1:", jitter(), f's_or_b32 s77, s77, {OOB}' if 'r' in opt['wi'] else '', f's_or_b32 s78, s78, {OOB}' if 's' in opt['wi'] else '', rm, EXIT())
    c.block("rpoll", side5.red_poll())
    stubs = ""
    for n, f in (("0", "slow0"), ("1", "slow1"), ("v1", "slowf"), ("k1", "slowf"), ("h1", "slowf"), ("j0", "slowj"), ("v2", "slow1"), ("v3", "slow0"), ("d1", "slow1"),
                 ("d3n", "slow0"), ("d3h", "slow0"), ("d4n", "slowb"), ("d4h", "slowb"), ("fh", "slow1n"), ("c", "comb")):
        stubs += f"L_x{n}:\ns_call_b64 s[{A.sRET}:{A.sRET+1}], L_{f}\ns_branch L_rt{n}\n".replace("L_x", "L_st")
    return stubs

def mid_blocks(c, stubs):
    c.block("stubs", stubs)
    c.block("slow", att.slow_sub(0), att.slow_sub(1), att.slow_sub(1, False), slow_first("L_slowf", True), slow_first("L_slowj", False), slow_b(), comb_slow(opt['lc'] == '1'))
    sp = []
    for n, v in LSPIN.items():
        ld = FL_LOAD().text
        if isinstance(v, tuple): v, ld = v[0], ld.replace("v9", "v%d" % v[1])
        sp += side.spin_stub(f"L_ls{n}", f"L_lr{n}", ld, A.vRL, 91, f"v_cmp_gt_u32 vcc, {v}, v{{vt}}")
    for n, (ld, half) in WSPIN.items():
        sp += side.spin_stub(f"L_ws{n}", f"L_wr{n}", ld, A.vRL, 91, f"v_cmp_ne_u32 vcc, 1, v{{vt}}\ns_nop 0\ns_mov_b32 vcc_{'hi' if half == 'lo' else 'lo'}, 0")
    c.block("spins", side.z_stub(0), side.z_stub(1), hw.key_stub(), side.spin_stub("L_has", "L_har", hw2.FA_LOAD, 16, 91) if H2 and 'h' not in opt['skip'] else [], sp, f"""
    L_fll:
    s_sub_u32 s65, s{A.sCHK}, s{sMODE}
    s_mov_b32 s64, -1
    s_cmp_eq_u32 s65, 1
    s_cbranch_scc1 L_fl2
    s_cmp_lg_u32 s{A.sWAVE}, 0
    s_cbranch_scc1 L_fl3
    s_lshr_b32 s64, s{sJ}, 3
    s_cmp_eq_u32 s{A.sCHK}, s64
    s_cbranch_scc0 L_fl1
    v_mov_b32 v{A.vX + 5}, 4
    {side.flag_store(sFL, A.vF0, A.vX + 5).text}
    L_fl1:
    s_cmp_lg_u32 s65, 0
    s_cbranch_scc1 L_fllr
    s_movk_i32 s64, 0x380
    L_fl2:
    v_min_u32 v{A.vX + 7}, s64, v9
    s_mov_b32 s{A.sREQ}, 4
    buffer_load_dword v{A.vRL}, v{A.vX + 7}, {WSR}, s46 offen sc1
    s_bitcmp1_b32 s{sMLD}, 15
    s_cbranch_scc0 L_fllr
    L_fl3:
    s_cmp_eq_u32 s{A.sCHK}, {TY}
    s_cbranch_scc1 L_y2
    s_cmp_eq_u32 s{A.sCHK}, {TY + 1}
    s_cbranch_scc1 L_y3
    s_cmp_eq_u32 s{A.sCHK}, {TY + 2}
    s_cbranch_scc1 L_y4
    s_branch L_y5
    s_waitcnt vmcnt(0)
    L_fps:
    s_cmp_lg_u32 s{sNC}, 0
    s_cbranch_scc1 L_fpr
    """, side.spin_stub("L_fps2", "L_fpr", FP_LOAD().text, A.vRL + 1, 91),
            side.spin_stub("L_fqs", "L_fqr", f"buffer_load_dword v{A.vRL + 1}, off, {WSR}, s47 offset:16 sc1", A.vRL + 1, 91),
            side.spin_stub("L_fls0", "L_flr0", FL_LOAD().text.replace("v9", f"v{A.vX + 7}"), A.vRL, 91, f"v_cmp_gt_u32 vcc, s{A.sREQ}, v{{vt}}"))
    c.block("ystubs", side5.y_stubs("L_fllr", int(opt['ht'])))

def paths(c):
    lp = ["loop_top", "loop_mid"]
    n = ["d1", "d2n", "d3n", "d4n", "d5n", "opn"]
    c.path("entry", "kv1", *lp, *lp, *lp, "p1", *n, "end1")
    c.path("entry", "kv0", "k1", *lp, *lp, *lp, "p1", *n, "red0", "red")
    for own in (["j0"], ["k1", "d1", "d2h"], ["k1", *lp, "p1", "d1", "d2h"], ["k1", *lp, *lp, *lp, "p1", "d1", "d2h"]):
        for nh in (0, 1, 2, 3):
            c.path("entry", "kv0", *own, "d3h", "d4h", "d5h", *(lp * nh), *(["p1"] if nh else []), "final_h", "oph", "red")
    for b in ("rpoll", "vfar", "stubs", "slow", "moe", "spins", "ystubs"): c.path(b)

def check_tiles(c):
    size = dict(U=7, T=8, W=4, C=4, X=4)
    for path in c.paths:
        cnt = {}; waited = set()
        for b in path:
            for i in c.blocks[b]:
                if i.kind == "vst": assert i.tag not in waited, (path, b, i.text, i.tag)
                if i.op == "WAITV": waited |= set(i.tag if isinstance(i.tag, list) else [i.tag])
                if i.kind == "dma" and isinstance(i.tag, tuple): cnt[i.tag] = cnt.get(i.tag, 0) + 1
                if i.op == "WAITV":
                    for t in (i.tag if isinstance(i.tag, list) else [i.tag]):
                        if isinstance(t, tuple) and t[0] in size:
                            n = cnt.pop(t, 0)
                            assert (n or b in ("final_h", "oph")) and n % size[t[0]] == 0, (path, b, t, n)
def ustamps(c):
    names = ["start"]
    for spec in [x for x in opt['us'].split(",") if x]:
        b, lo, hi = (spec.split(":") + ["0", "999"])[:3]
        o = []; pend = None; nb = 0
        def rec(n):
            r = L(f"v_accvgpr_write_b32 a255, v10\nv_accvgpr_read_b32 v10, a254\nv_writelane_b32 v10, s98, {n}\nv_accvgpr_write_b32 a254, v10\nv_accvgpr_read_b32 v10, a255")
            for i in r: i.extra["ghost"] = True
            return r
        for i in c.blocks[b]:
            if pend is not None and (i.op in ("s_endpgm", "s_call_b64") or i.kind == "branch" and i is c.blocks[b][-1]): o += rec(pend); pend = None
            o.append(i)
            if pend is not None and i.op in ("NEED", "WAITV"): o += rec(pend); pend = None
            if i.op == "s_barrier" or i.text.endswith("; us"):
                nb += 1
                if int(lo) <= nb <= int(hi):
                    pend = len(names); names.append(f"{b}.{nb}"); o.append(I("s_memtime s[98:99]"))
        if pend is not None: o += rec(pend)
        c.blocks[b] = o
    assert len(names) <= 64
    return names
def ipref(c):
    n = 0
    for b in [x for x in opt['ip'].split(",") if x]:
        o = []; q = b not in ("kv0", "kv1")
        for i in c.blocks[b]:
            o.append(i)
            if i.text.startswith("s_mov_b64 s[60:61], s[76:77]"): q = True
            if i.op == "s_barrier":
                n += 1
                o += [I("s_getpc_b64 s[100:101]"), I(f"s_load_dword s94, s[100:101], {opt['ipd']} ; ignore")]
        c.blocks[b] = o
SHORT = [("v_mfma_f32_16x16x32_bf16", "M", 4), ("ds_read_b128", "R", 0), ("ds_read_b64_tr_b16", "T", 0), ("v_cvt_pk_bf16_f32", "C", 3), ("v_exp_f32", "E", 2),
         ("v_accvgpr_write_b32", "W", 2), ("v_accvgpr_read_b32", "G", 2), ("v_add_f32", "AF", 3), ("v_mul_f32", "MF", 3), ("s_add_u32", "SA", 3)]
def compress(body):
    hdr = []; out = []
    for full, sh, n in SHORT:
        if n: hdr.append(f".macro {sh} " + ", ".join("abcd"[:n]) + f"\n{full} " + ", ".join("\\" + x for x in "abcd"[:n]) + "\n.endm")
        else: hdr.append(f".macro {sh} a, b, c\n{full} \\a, \\b offset:\\c\n.endm")
    for ln in body.split("\n"):
        ln = ln.strip()
        for full, sh, n in SHORT:
            if ln.startswith(full + " ") and "row_" not in ln and (n or " offset:" in ln):
                ln = sh + " " + ln[len(full) + 1:].replace(" offset:", ",").replace(", ", ","); break
        out.append(ln)
    return "\n".join(hdr), "\n".join(out)

if __name__ == "__main__":
    c = CFG(verbose=int(opt["v"]))
    entry(c); front(c, 0); front(c, 1)
    stubs = build_att(c)
    n0 = len(c.order)
    mid_blocks(c, stubs); c.block("moe", side5.red_moe() if 'e' not in opt['skip'] else [], "L_hr:\ns_endpgm" if 'h' in opt['skip'] else "")
    k = c.order.index("loop_top")
    c.order = c.order[:k] + c.order[n0:-1] + c.order[k:n0] + c.order[-1:]
    c.order.remove("red0"); c.order.append("red0")
    paths(c); opt['nochk'] == '1' or check_tiles(c); names = ustamps(c); ipref(c)
    txt = c.finalize()
    if opt['nochk'] == '0':
        ldscheck.check(c)
        bad = [x for b in c.order for x in check_order(c.mat[b], b) if not b.startswith("loop") and not (" lds" in x[1] and ("s[16:19]" in x[1] or "s[48:51]" in x[1]))]
        assert not bad, bad[:5]
    if int(opt['v']):
        for b in c.order:
            m = c.mat[b]; bad = sum(1 for x, y in zip(m, m[1:]) if x.kind in ("valu", "trans") and y.kind in ("dsr", "dsw", "dma", "vld", "vst"))
            if any(i.kind == "mfma" for i in m): sys.stderr.write(f"; {b}: valu->mem {bad}\n")
    for spec in [x for x in opt['fl_'].split(",") if x]:
        r, f = spec.split(":")
        for b in c.order:
            for i in c.mat[b]:
                if i.kind == "dma" and f"s[{r}:" in i.text: i.text = i.text.replace(" nt", "").replace(" sc1", "").replace(" lds", " " + f.replace("+", " ") + " lds")
    if opt['dbg'] != '-':
        for b in c.order:
            for i in c.mat[b]:
                if "s[12:15]" in i.text and i.op in ("buffer_store_dword", "buffer_load_dword") and "v17" in i.text: i.text = i.text.replace("offen", "offen offset:64")
    if 'h' in opt['skip']:
        for b in c.order:
            for i in c.mat[b]:
                if i.text.startswith("s_cbranch_vccnz L_moe"): i.text = "s_nop 0"
    if WARM: txt = warm.place(c, ("kv0", "kv1", "loop_top"))
    hdr, body = compress(txt)
    kn = NAME + "_kernel"
    print("; Fused MLA-style attention + gated MoD block for gfx950; generated by dev/gen5.py (hand-written generator)")
    if opt['us']: print("; sites " + " ".join(names))
    print("; @launch grid=(256,1,1) block=(256,1,1) lds=163840")
    print('.amdgcn_target "amdgcn-amd-amdhsa--gfx950"\n.text')
    print(hdr)
    print(kernel_header(kn))
    print(body)
    print("L_code_end:")
    print('.section .rodata,"a"\n.p2align 6')
    print(kernel_desc(kn, sgpr=102))
```
